```python
import torch

def _softmax(x, axis=-1):
    return torch.softmax(x, dim=axis)
def _gelu(x):
    return torch.nn.functional.gelu(x, approximate="tanh")
def _silu(x):
    return torch.nn.functional.silu(x)
def _sigmoid(x):
    return torch.sigmoid(x)
def _layernorm(x, axis=-1, eps=1e-5):
    m = x.mean(dim=axis, keepdim=True)
    v = x.var(dim=axis, keepdim=True, unbiased=False)
    return (x - m) / torch.sqrt(v + eps)
def _scatter_add(tgt, idx, src, axis=0):
    return tgt.clone().index_add_(axis, idx, src)
def _segment_sum(src, seg, n):
    out = torch.zeros((n,) + src.shape[1:], dtype=src.dtype)
    return out.index_add_(0, seg, src)
def _pad(x, pw):
    flat = tuple(v for pair in reversed(pw) for v in pair)
    return torch.nn.functional.pad(x, flat)

kernel_name = 'sequential_preLN__sliding_local_dilated__dense_activation_gelu__prompt'

def setup_inputs():

    _w = (lambda a: (lambda t: t.to(torch.bfloat16) if t.is_floating_point() else t)(torch.as_tensor(a)))
    def _A_setup():
        B, S, D = 1, 2048, 1024
        return {
            "x": _w((lambda *s: torch.randn(*s, dtype=torch.bfloat16) * 0.05)(B, S, D)),
            "wqkv": _w((lambda *s: torch.randn(*s, dtype=torch.bfloat16) * 0.05)(D, 3 * D)),
            "wo": _w((lambda *s: torch.randn(*s, dtype=torch.bfloat16) * 0.05)(D, D)),
        }
    _A_in = _A_setup()

    def _B_setup():
        B, S, D, F = 1, 2048, 1024, 3584
        return {
            "x": _w((lambda *s: torch.randn(*s, dtype=torch.bfloat16) * 0.05)(B, S, D)),
            "w1": _w((lambda *s: torch.randn(*s, dtype=torch.bfloat16) * 3.2)(D, F) * (D ** -0.5)),
            "b1": _w((lambda *s: torch.randn(*s, dtype=torch.bfloat16) * 3.2)(F) * 0.01),
            "w2": _w((lambda *s: torch.randn(*s, dtype=torch.bfloat16) * 0.4)(F, D) * (F ** -0.5)),
            "b2": _w((lambda *s: torch.randn(*s, dtype=torch.bfloat16) * 0.4)(D) * 0.01),
        }
    _B_in = _B_setup()

    return {
        "A_x": _A_in["x"],
        "A_wqkv": _A_in["wqkv"],
        "A_wo": _A_in["wo"],
        "B_x": _B_in["x"],
        "B_w1": _B_in["w1"],
        "B_b1": _B_in["b1"],
        "B_w2": _B_in["w2"],
        "B_b2": _B_in["b2"],
    }

def reference(A_x, A_wqkv, A_wo, B_x, B_w1, B_b1, B_w2, B_b2):
    def _A_ref(x, wqkv, wo):
        B, S, D = x.shape
        H = 32; Dh = D // H
        W, dil = 8, 2
        qkv = (lambda x, *d: x.permute(*d))((x @ wqkv).reshape(B, S, 3, H, Dh), 2, 0, 3, 1, 4)
        q, k, v = qkv[0], qkv[1], qkv[2]
        scale = Dh ** -0.5
        pos = torch.arange(S)
        off = torch.arange(W) * dil
        idx = pos[:, None] - off[None, :]
        mask = idx >= 0
        idx_c = torch.where(mask, idx, 0).reshape(-1)
        kg = k[:, :, idx_c, :].reshape(B, H, S, W, Dh)
        vg = v[:, :, idx_c, :].reshape(B, H, S, W, Dh)
        logits = torch.einsum("bhsd,bhswd->bhsw", q, kg) * scale
        logits = torch.where(mask[None, None, :, :], logits, -1e9)
        attn = _softmax(logits, axis=-1)
        o = torch.einsum("bhsw,bhswd->bhsd", attn, vg)
        return (lambda x, *d: x.permute(*d))(o, 0, 2, 1, 3).reshape(B, S, D) @ wo

    def _B_ref(x, w1, b1, w2, b2):
        h = torch.einsum("bsd,df->bsf", x, w1) + b1
        h = _gelu(h)
        return torch.einsum("bsf,fd->bsd", h, w2) + b2

    x = A_x
    h = x + _A_ref(_layernorm(x, axis=-1), A_wqkv, A_wo)
    h2 = h + _B_ref(_layernorm(h, axis=-1), B_w1, B_b1, B_w2, B_b2)
    return h2
```

```python
import re

TRANS = ("v_exp_f32", "v_log_f32", "v_rcp_f32", "v_rsq_f32", "v_sqrt_f32", "v_sin_f32", "v_cos_f32")


def regs_of(tok):
    tok = tok.strip()
    tok = tok.replace("abs(", "").replace(")", "") if tok.startswith(("abs(", "-abs(")) else tok
    tok = tok.lstrip("-").strip("|")
    m = re.fullmatch(r"([vsa])\[(\d+):(\d+)\]", tok)
    if m:
        return {f"{m.group(1)}{i}" for i in range(int(m.group(2)), int(m.group(3)) + 1)}
    m = re.fullmatch(r"([vsa])(\d+)", tok)
    if m:
        return {tok}
    if tok in ("vcc", "vcc_lo", "vcc_hi"):
        return {"vcc"}
    if tok in ("exec", "exec_lo", "exec_hi"):
        return {"exec"}
    if tok == "m0":
        return {"m0"}
    return set()


def split_ops(rest):
    out, depth, cur = [], 0, ""
    for ch in rest:
        if ch in "[(":
            depth += 1
        if ch in "])":
            depth -= 1
        if ch == "," and depth == 0:
            out.append(cur.strip())
            cur = ""
        else:
            cur += ch
    if cur.strip():
        out.append(cur.strip())
    return out


class Ins:
    def __init__(self, text):
        self.text = text
        t = text.split(";")[0].strip()
        parts = t.split(None, 1)
        self.op = parts[0]
        ops = split_ops(parts[1]) if len(parts) > 1 else []
        clean = []
        self.mods = ""
        for o in ops:
            f = o.split()
            if not f:
                continue
            clean.append(f[0])
            if len(f) > 1:
                self.mods += " " + " ".join(f[1:])
        self.ops = clean
        op = self.op
        self.w, self.r = set(), set()
        self.cls = "other"
        self.states = 1
        R = lambda lst: set().union(*[regs_of(x) for x in lst]) if lst else set()
        if op == "s_nop":
            self.states = int(clean[0], 0) + 1
            self.cls = "nop"
        elif op.startswith("v_mfma"):
            self.cls = "mfma"
            self.w = regs_of(clean[0])
            self.ra = regs_of(clean[1]) | regs_of(clean[2])
            self.rc = regs_of(clean[3])
            self.r = self.ra | self.rc
            self.passes = 4 if "16x16" in op else 8
        elif op.startswith("v_permlane"):
            self.cls = "valu"
            self.w = R(clean[:2])
            self.r = R(clean[:2])
        elif op.startswith(("v_readfirstlane", "v_readlane")):
            self.cls = "valu"
            self.w = regs_of(clean[0])
            self.r = R(clean[1:])
        elif op.startswith(("v_add_co", "v_sub_co", "v_addc_co", "v_subb_co", "v_subrev_co", "v_div_scale", "v_mad_u64")):
            self.cls = "valu"
            self.w = R(clean[:2])
            self.r = R(clean[2:])
        elif op.startswith("v_"):
            self.cls = "valu"
            self.w = regs_of(clean[0])
            self.r = R(clean[1:])
            if op.startswith(("v_fmac", "v_mac", "v_dot2c", "v_writelane")) or "dpp" in op or "sdwa" in op:
                self.r |= self.w
            if op.startswith("v_cmpx"):
                self.w |= {"exec"}
            if op.startswith("v_cndmask") and len(clean) == 3:
                self.r |= {"vcc"}
            if op.startswith("v_div_fmas"):
                self.r |= {"vcc"}
        elif op.startswith("ds_"):
            self.cls = "ds"
            if op.startswith(("ds_read", "ds_bpermute", "ds_permute", "ds_swizzle")) or "_rtn_" in op:
                self.w = regs_of(clean[0])
                self.r = R(clean[1:])
            else:
                self.r = R(clean)
        elif op.startswith(("buffer_", "global_")):
            self.cls = "vmem"
            islds = " lds" in (" " + t)
            self.lds = islds
            if "store" in op or ("atomic" in op and "sc0" not in t) or islds or op in ("buffer_wbl2", "buffer_inv"):
                self.r = R(clean)
                if islds:
                    self.r |= {"m0"}
                if "store" in op and ("x4" in op or "x3" in op):
                    self.wide = regs_of(clean[0]) if op.startswith("buffer_") else regs_of(clean[1])
            else:
                self.w = regs_of(clean[0])
                self.r = R(clean[1:])
        elif op.startswith("s_"):
            self.cls = "salu"
            if op.startswith(("s_cmp", "s_waitcnt", "s_barrier", "s_branch", "s_cbranch", "s_endpgm", "s_setprio", "s_sleep", "s_bitcmp")):
                self.r = R(clean)
            else:
                self.w = regs_of(clean[0]) if clean else set()
                self.r = R(clean[1:])
                if "saveexec" in op:
                    self.w |= {"exec"}
        self.trans = op.replace("_e32", "").replace("_e64", "") in TRANS
        self.dpp = "dpp" in op or "quad_perm" in t or "row_" in t
        self.perm = op.startswith("v_permlane")
        self.rdlane = op.startswith(("v_readfirstlane", "v_readlane", "v_writelane"))


def need(p, c):
    n = 0
    vw = {x for x in p.w if x[0] in "va" and x not in ("vcc",)}
    sw = {x for x in p.w if x[0] == "s" or x == "vcc"}
    if p.cls == "valu":
        if c.cls == "mfma" and (vw & c.r):
            n = max(n, 2)
        if c.cls == "mfma" and "exec" in p.w:
            n = max(n, 4)
        if c.cls == "valu":
            if c.dpp and (vw & c.r):
                n = max(n, 2)
            if c.dpp and "exec" in p.w:
                n = max(n, 5)
            if c.perm and (vw & c.r):
                n = max(n, 2)
            if c.rdlane and (vw & c.r):
                n = max(n, 1)
            if sw & c.r:
                n = max(n, 4 if (c.rdlane or c.op.startswith("v_div_fmas")) else 2)
            if p.trans and (vw & c.r):
                n = max(n, 1)
            if ("sdwa" in p.op or "op_sel" in p.mods) and not p.op.startswith("v_pk_") and (vw & (c.r | c.w)):
                n = max(n, 1)
            if "exec" in p.w and (c.rdlane or c.perm):
                n = max(n, 4)
        if c.cls == "vmem" and (sw & c.r):
            n = max(n, 5)
        if c.cls == "salu" and (sw & c.r):
            n = max(n, 1)
    if p.cls == "mfma":
        if c.cls == "mfma":
            if p.w & c.ra:
                n = max(n, 8 if p.passes == 4 else 12)
            if p.w & c.rc and not (p.w == c.rc and p.passes == c.passes):
                n = max(n, 6 if p.passes == 4 else 10)
            if (p.w & c.w) and not (p.w & c.rc):
                n = max(n, 8 if p.passes == 4 else 12)
        elif c.cls in ("valu", "vmem", "ds"):
            if p.w & (c.r | c.w):
                n = max(n, 8 if p.passes == 4 else 12)
            if c.cls == "valu" and (p.rc & c.w):
                n = max(n, 3 if p.passes == 4 else 7)
    if p.cls == "salu" and "m0" in p.w and c.cls == "vmem" and getattr(c, "lds", False):
        n = max(n, 1)
    if p.cls == "salu" and "exec" in p.w and c.cls == "valu" and (c.dpp or c.perm or c.rdlane):
        n = max(n, 1)
    if p.cls == "vmem" and hasattr(p, "wide") and (p.wide & c.w):
        n = max(n, 2 if c.cls in ("valu", "mfma") else 1)
    return n


class Asm:
    def __init__(self):
        self.lines = []
        self.hist = []
        self.nops = 0

    def raw(self, s):
        self.lines.append(s)

    def label(self, s):
        self.lines.append(s + ":")

    def comment(self, s):
        self.lines.append("; " + s)

    def __call__(self, text, *a):
        for t in text.split("\n"):
            t = t.strip()
            if not t:
                continue
            if t.endswith(":") or t.startswith((";", ".")):
                self.lines.append(t)
                continue
            ins = Ins(t)
            dist = 0
            pad = 0
            for p in reversed(self.hist):
                k = need(p, ins)
                if k > dist:
                    pad = max(pad, k - dist)
                dist += p.states
                if dist >= 24:
                    break
            if pad:
                self.nops += 1
                while pad > 0:
                    k = min(pad, 16)
                    self.lines.append(f"    s_nop {k-1}")
                    self.hist.append(Ins(f"s_nop {k-1}"))
                    pad -= k
            self.lines.append("    " + t)
            self.hist.append(ins)
            if len(self.hist) > 64:
                self.hist = self.hist[-40:]

    def text(self):
        return "\n".join(self.lines) + "\n"


class Regs:
    def __init__(self, prefix, start, limit):
        self.p, self.n, self.limit = prefix, start, limit
        self.hi = start

    def alloc(self, cnt=1, align=1):
        self.n = (self.n + align - 1) // align * align
        r = self.n
        self.n += cnt
        assert self.n <= self.limit, f"out of {self.p} regs: {self.n}"
        self.hi = max(self.hi, self.n)
        return r

    def mark(self):
        return self.n

    def release(self, m):
        self.n = m


def vr(a, n=1):
    return f"v{a}" if n == 1 else f"v[{a}:{a+n-1}]"


def sr(a, n=1):
    return f"s{a}" if n == 1 else f"s[{a}:{a+n-1}]"
```

```python
import sys, struct, math
from asmx import Asm, Regs, vr, sr

NAME = "sequential_preLN__sliding_local_dilated__dense_activation_gelu__prompt"
S, D, F = 2048, 1024, 3584
OPT = dict(stamp=0, map1=0, map3=0, ntB=0, ntx=0, rot=1, sleep=1, wsoff=0)
for a_ in sys.argv[2:]:
    k_, v_ = a_.split("=")
    assert k_ in OPT, k_
    OPT[k_] = int(v_)
WB = OPT["wsoff"] << 20
WS_XN, WS_O, WS_H, WS_H1 = WB, WB + (4 << 20), WB + (8 << 20), WB + (12 << 20)
WS_ST, WS_CS, WS_FL = WB + (28 << 20), WB + (29 << 20), WB + (30 << 20)
SLOT = 49152
LDS_X = 3 * SLOT
L_PAIR = LDS_X
L_ROW = LDS_X + 256
L_CS = L_ROW + 1024
L_B1 = L_CS + 1024
LDS_TOTAL = L_B1 + 1024
PX, PWQKV, PWO, PW1, PB1, PW2, PB2, POUT, PDBG, PWS = 48, 50, 52, 56, 58, 60, 62, 64, 66, 68
NONCE = 74


def f2u(x):
    return struct.unpack("<I", struct.pack("<f", x))[0]


def hexf(x):
    return "0x%08x" % f2u(x)


def srd(a, d, base, off, nbytes):
    if off:
        a(f"s_add_u32 s{d}, s{base}, {off}")
        a(f"s_addc_u32 s{d+1}, s{base+1}, 0")
    else:
        a(f"s_mov_b32 s{d}, s{base}")
        a(f"s_mov_b32 s{d+1}, s{base+1}")
    a(f"s_mov_b32 s{d+2}, {nbytes}")
    a(f"s_mov_b32 s{d+3}, 0x20000")


def round_bf16(a, v):
    a(f"v_cvt_pk_bf16_f32 v{v}, v{v}, v{v}")
    a(f"v_lshlrev_b32 v{v}, 16, v{v}")


def xrow_reduce(a, op, v, t):
    a(f"v_mov_b32 v{t}, v{v}")
    a(f"v_permlane16_swap_b32 v{v}, v{t}")
    a(f"{op} v{v}, v{v}, v{t}")
    a(f"v_mov_b32 v{t}, v{v}")
    a(f"v_permlane32_swap_b32 v{v}, v{t}")
    a(f"{op} v{v}, v{v}, v{t}")


def wave_sum(a, v, t):
    for p in ("quad_perm:[1,0,3,2]", "quad_perm:[2,3,0,1]", "row_half_mirror", "row_mirror"):
        a(f"v_add_f32_dpp v{v}, v{v}, v{v} {p} row_mask:0xf bank_mask:0xf")
    xrow_reduce(a, "v_add_f32", v, t)


STAMPS = {"c": [], "l": []}


def stamp(a, role, name):
    if not OPT["stamp"]:
        return
    if name in STAMPS[role]:
        i = STAMPS[role].index(name)
    else:
        i = len(STAMPS[role])
        STAMPS[role].append(name)
    a("s_memtime s[100:101]")
    a("s_waitcnt lgkmcnt(0)")
    a(f"v_writelane_b32 v254, s100, {i}")
    a("s_memrealtime s[100:101]")
    a("s_waitcnt lgkmcnt(0)")
    a(f"v_writelane_b32 v255, s100, {i}")


def stamp_flush(a, wavereg_off):
    if not OPT["stamp"]:
        return
    a("v_lshlrev_b32 v2, 2, v1")
    a("s_lshl_b32 s100, s2, 3")
    a(f"s_add_u32 s100, s100, s6")
    a(f"s_add_u32 s100, s100, {wavereg_off}")
    a("s_lshl_b32 s100, s100, 9")
    a(f"s_add_u32 s100, s100, {32<<20}")
    a("v_add_u32 v2, s100, v2")
    a(f"global_store_dword v2, v254, s[{PWS}:{PWS+1}]")
    a(f"global_store_dword v2, v255, s[{PWS}:{PWS+1}] offset:256")


class G:
    pass


def phase_cfgs():
    P = {}
    g = G(); P[1] = g
    g.n, g.KS, g.nst, g.halo, g.B448 = 1, 64, 16, True, False
    g.nA, g.nB, g.strideA, g.strideB, g.Boff = 18, 24, 2048, 6144, 24576
    g.A = (PWS, WS_XN, S * D * 2); g.B = (PWQKV, 0, D * 3 * D * 2); g.map = OPT["map1"]
    g = G(); P[2] = g
    g.n, g.KS, g.nst, g.halo, g.B448 = 2, 128, 8, False, False
    g.nA, g.nB, g.strideA, g.strideB, g.Boff = 32, 16, 2048, 2048, 32768
    g.A = (PWS, WS_O, S * D * 2); g.B = (PWO, 0, D * D * 2); g.map = 0
    g = G(); P[3] = g
    g.n, g.KS, g.nst, g.halo, g.B448 = 3, 64, 16, False, True
    g.nA, g.nB, g.strideA, g.strideB, g.Boff = 16, 28, 2048, 7168, 20480
    g.A = (PWS, WS_H, S * D * 2); g.B = (PW1, 0, D * F * 2); g.map = OPT["map3"]
    g = G(); P[4] = g
    g.n, g.KS, g.nst, g.halo, g.B448 = 4, 128, 28, False, False
    g.nA, g.nB, g.strideA, g.strideB, g.Boff = 32, 16, 7168, 2048, 32768
    g.A = (PWS, WS_H1, S * F * 2); g.B = (PW2, 0, F * D * 2); g.map = 0
    s = 0
    for p in (1, 2, 3, 4):
        P[p].slot0 = s % 3
        s += P[p].nst
        P[p].mj = (72, 73) if P[p].map else (70, 71)
    return P


PH = phase_cfgs()


def interleave(a, mf, fillers, first=None):
    n = len(mf)
    fl = list(fillers)
    k = len(fl)
    gaps = list(range(1, n)) if first is not None else list(range(n))
    assert k <= 2 * len(gaps), (k, len(gaps))
    two = max(0, k - len(gaps))
    idx = 0
    cnt = {}
    for gi, g in enumerate(gaps):
        c = 0
        if idx < k:
            c = 2 if gi < two else 1
        cnt[g] = min(c, k - idx)
        idx += cnt[g]
    idx = 0
    for i in range(n):
        a(mf[i])
        if i == 0 and first is not None:
            for f in first:
                a(f)
        for _ in range(cnt.get(i, 0)):
            a(fl[idx])
            idx += 1
    assert idx == k


def get_nonce(a, lab, vt):
    a(f"v_mov_b32 v{vt}, 0")
    a("s_mov_b32 s3, 0x40000")
    a(f"{lab}_nl:")
    a(f"global_load_dwordx2 v[{vt+2}:{vt+3}], v{vt}, s[{PDBG}:{PDBG+1}] sc1")
    a("s_waitcnt vmcnt(0)")
    a(f"v_readfirstlane_b32 s{NONCE}, v{vt+2}")
    a(f"v_readfirstlane_b32 s{NONCE+1}, v{vt+3}")
    a("s_sub_u32 s3, s3, 1")
    a("s_cmp_eq_u32 s3, 0")
    a(f"s_cbranch_scc1 {lab}_nd")
    a(f"s_cmp_eq_u32 s{NONCE}, 0")
    a(f"s_cbranch_scc1 {lab}_nl")
    a(f"{lab}_nd:")


def signal(a, off_sgpr, vt):
    a(f"v_mov_b32 v{vt}, s{off_sgpr}")
    a(f"v_mov_b32 v{vt+2}, s{NONCE}")
    a(f"v_mov_b32 v{vt+3}, s{NONCE+1}")
    a("s_mov_b64 exec, 1")
    a(f"global_store_dwordx2 v{vt}, v[{vt+2}:{vt+3}], s[{PWS}:{PWS+1}] sc1")
    a("s_mov_b64 exec, -1")


def flag_off(a, d, p, g):
    m, j = g.mj
    a(f"s_lshl_b32 s{d}, s{j}, 2")
    a(f"s_add_u32 s{d}, s{d}, s6")
    a(f"s_lshl_b32 s{d}, s{d}, 3")
    a(f"s_lshl_b32 s3, s{m}, 9")
    a(f"s_add_u32 s{d}, s{d}, s3")
    a(f"s_add_u32 s{d}, s{d}, {WS_FL + p*8192}")


def poll(a, lab, vaddrs, vt):
    a("s_mov_b32 s3, 0x40000")
    a(f"{lab}_pl:")
    for i, v in enumerate(vaddrs):
        a(f"global_load_dwordx2 v[{vt+2*i}:{vt+2*i+1}], v{v}, s[{PWS}:{PWS+1}] sc1")
    a("s_waitcnt vmcnt(0)")
    a(f"v_cmp_eq_u64 vcc, s[{NONCE}:{NONCE+1}], v[{vt}:{vt+1}]")
    for i in range(1, len(vaddrs)):
        a(f"v_cmp_eq_u64 s[34:35], s[{NONCE}:{NONCE+1}], v[{vt+2*i}:{vt+2*i+1}]")
        a("s_and_b64 vcc, vcc, s[34:35]")
    a("s_cmp_eq_u64 vcc, -1")
    a(f"s_cbranch_scc1 {lab}_pd")
    if OPT["sleep"]:
        a(f"s_sleep {OPT['sleep']}")
    a("s_sub_u32 s3, s3, 1")
    a("s_cmp_lg_u32 s3, 0")
    a(f"s_cbranch_scc1 {lab}_pl")
    a(f"{lab}_pd:")


def ld_offsets_A(a, g, vA):
    m, j = g.mj
    nAq = (g.nA + 3) // 4
    a(f"s_lshl_b32 s7, s{m}, 7")
    a("s_lshl_b32 s34, s6, 3")
    a("s_add_u32 s7, s7, s34")
    if g.halo:
        a("s_sub_u32 s7, s7, 16")
    a(f"s_mov_b32 s34, {g.strideA}")
    for q in range(nAq):
        sub, rq = (q >> 2, q & 3) if g.KS == 128 else (0, q)
        a("v_add_u32 v5, s7, v2")
        if rq:
            a(f"v_add_u32 v5, {32*rq}, v5")
        if g.halo:
            a("v_max_i32 v5, 0, v5")
        a("v_mul_lo_u32 v5, v5, s34")
        a(f"v_add_u32 v{vA+q}, v5, v4")
        if sub:
            a(f"v_add_u32 v{vA+q}, 128, v{vA+q}")


def ld_offsets_B(a, g, vB):
    m, j = g.mj
    nBq = g.nB // 4
    if g.B448:
        a("s_lshl_b32 s7, s6, 10")
        a("s_mov_b32 s34, 9586981")
        a(f"s_mul_i32 s35, s{j}, 448")
        for q in range(nBq):
            a("v_lshlrev_b32 v5, 4, v1")
            a("v_add_u32 v5, s7, v5")
            if q:
                a(f"v_add_u32 v5, {4096*q}, v5")
            a("v_mul_hi_u32 v6, v5, s34")
            a("v_mul_u32_u24 v7, 448, v6")
            a("v_sub_u32 v5, v5, v7")
            a("v_bfe_u32 v7, v6, 3, 1")
            a("v_lshlrev_b32 v7, 5, v7")
            a("v_xor_b32 v5, v5, v7")
            a("v_mul_u32_u24 v6, 7168, v6")
            a("v_add3_u32 v%d, v5, v6, s35" % (vB + q))
    else:
        a("v_bfe_u32 v5, v1, 4, 1")
        a("s_and_b32 s7, s6, 1")
        a("s_lshl_b32 s7, s7, 1")
        a("v_or_b32 v5, s7, v5")
        a("v_lshlrev_b32 v5, 1, v5")
        a("v_xor_b32 v5, v3, v5")
        a("v_lshlrev_b32 v5, 4, v5")
        a(f"s_lshl_b32 s7, s{j}, 7")
        a("v_add_u32 v5, s7, v5")
        a("s_lshl_b32 s7, s6, 3")
        a("v_add_u32 v6, s7, v2")
        a(f"v_mul_u32_u24 v6, {g.strideB}, v6")
        a("v_add_u32 v5, v5, v6")
        for q in range(nBq):
            if g.halo:
                off = (q >> 1) * 2048 + (q & 1) * 32 * g.strideB
            else:
                off = q * 32 * g.strideB
            a(f"v_add_u32 v{vB+q}, {off}, v5")


def rot_start(a, g, d):
    m, j = g.mj
    if not OPT["rot"]:
        a(f"s_mov_b32 s{d}, 0")
    elif g.map:
        assert g.nst == 16
        a(f"s_mov_b32 s{d}, s{m}")
    else:
        a(f"s_and_b32 s{d}, s{m}, 7")
        if g.nst == 16:
            a(f"s_lshl_b32 s{d}, s{d}, 1")
        elif g.nst == 28:
            a(f"s_mul_i32 s{d}, s{d}, 7")
            a(f"s_lshr_b32 s{d}, s{d}, 1")


class Stream:
    def __init__(self, g, isA, srd_, vbase, so, st, lb, sl):
        self.g, self.isA, self.srd, self.v, self.so, self.st, self.lb, self.sl = g, isA, srd_, vbase, so, st, lb, sl
        self.step = g.KS * 2 if isA else g.KS * g.strideB

    def init(self, a):
        g = self.g
        rot_start(a, g, self.st)
        a(f"s_mul_i32 s{self.so}, s{self.st}, {self.step}")
        a(f"s_lshl_b32 s{self.lb}, s6, 10")
        off = g.slot0 * SLOT + (0 if self.isA else g.Boff)
        if off:
            a(f"s_add_u32 s{self.lb}, s{self.lb}, {off}")
        a(f"s_mov_b32 s{self.sl}, {g.slot0}")

    def loads(self, n):
        fl = "sc1" if self.isA else ("nt" if OPT["ntB"] else "")
        return [(f"s_add_u32 m0, s{self.lb}, {q*4096}",
                 f"buffer_load_dwordx4 v{self.v+q}, s[{self.srd}:{self.srd+3}], s{self.so} offen {fl} lds") for q in range(n)]

    def advance(self, a):
        a(f"s_add_u32 s{self.so}, s{self.so}, {self.step}")
        a(f"s_add_u32 s{self.st}, s{self.st}, 1")
        a(f"s_cmp_eq_u32 s{self.st}, {self.g.nst}")
        a(f"s_cselect_b32 s{self.st}, 0, s{self.st}")
        a(f"s_cselect_b32 s{self.so}, 0, s{self.so}")
        a(f"s_add_u32 s{self.lb}, s{self.lb}, {SLOT}")
        a(f"s_add_u32 s{self.sl}, s{self.sl}, 1")
        a(f"s_cmp_eq_u32 s{self.sl}, 3")
        a(f"s_cselect_b32 s7, {3*SLOT}, 0")
        a(f"s_cselect_b32 s{self.sl}, 0, s{self.sl}")
        a(f"s_sub_u32 s{self.lb}, s{self.lb}, s7")


def issue(a, items):
    ls = [s.loads(n) for (s, n) in items]
    for q in range(max(len(x) for x in ls)):
        for x in ls:
            if q < len(x):
                a(x[q][0])
                a(x[q][1])
    for (s, n) in items:
        s.advance(a)


def gen_loader(a):
    a("LOADER:")
    a.hist = []
    a("s_sub_u32 s6, s6, 4")
    a("s_or_b32 s3, s2, s6")
    a("s_cmp_lg_u32 s3, 0")
    a("s_cbranch_scc1 LD_nopub")
    a("s_memrealtime s[34:35]")
    a("v_mov_b32 v2, 0")
    a("s_waitcnt lgkmcnt(0)")
    a("s_or_b32 s34, s34, 1")
    a("v_mov_b32 v4, s34")
    a("v_mov_b32 v5, s35")
    a("s_mov_b64 exec, 1")
    a(f"global_store_dwordx2 v2, v[4:5], s[{PDBG}:{PDBG+1}] sc1")
    a("s_mov_b64 exec, -1")
    a("LD_nopub:")
    stamp(a, "l", "start")
    a("v_lshrrev_b32 v2, 3, v1")
    a("v_and_b32 v3, 7, v1")
    a("s_and_b32 s3, s6, 1")
    a("s_lshl_b32 s7, s3, 2")
    a("v_lshrrev_b32 v4, 4, v1")
    a("v_or_b32 v4, s7, v4")
    a("v_xor_b32 v4, v3, v4")
    a("v_lshlrev_b32 v4, 4, v4")
    vA, vBs, VT = 8, [16, 24], 32
    srdB = [12, 16]
    regsB = [(36, 37, 38, 39), (40, 41, 42, 43)]
    regsA = (20, 21, 22, 23)
    SB = {}
    for p in (1, 2, 3, 4):
        SB[p] = Stream(PH[p], False, srdB[p & 1], vBs[p & 1], *regsB[p & 1])

    def prepB(p):
        g = PH[p]
        srd(a, SB[p].srd, *g.B)
        ld_offsets_B(a, g, SB[p].v)
        SB[p].init(a)

    prepB(1)
    for i in range(3):
        issue(a, [(SB[1], PH[1].nB // 4)])
    for p in (1, 2, 3, 4):
        g = PH[p]
        P = f"LD{p}"
        m, j = g.mj
        SA = Stream(g, True, 8, vA, *regsA)
        srd(a, 8, *g.A)
        ld_offsets_A(a, g, vA)
        SA.init(a)
        if p < 4:
            prepB(p + 1)
        stamp(a, "l", f"p{p}_prepoll")
        if p == 1 or p == 3:
            if p == 1:
                get_nonce(a, P, VT)
        a("s_cmp_lg_u32 s6, 0")
        a(f"s_cbranch_scc1 {P}_f")
        a(f"s_lshl_b32 s3, s{m}, 9")
        a(f"s_add_u32 s3, s3, {WS_FL + (p-1)*8192}")
        a(f"v_lshlrev_b32 v{VT}, 3, v1")
        a(f"v_add_u32 v{VT}, s3, v{VT}")
        addrs = [VT]
        if p == 1:
            a(f"v_or_b32 v{VT+1}, 56, v1")
            a(f"v_lshlrev_b32 v{VT+1}, 3, v{VT+1}")
            a(f"s_cmp_eq_u32 s{m}, 0")
            a("s_cselect_b32 s7, 0, 512")
            a("s_sub_u32 s3, s3, s7")
            a(f"v_add_u32 v{VT+1}, s3, v{VT+1}")
            addrs.append(VT + 1)
        poll(a, P, addrs, VT + 2)
        a(f"{P}_f:")
        stamp(a, "l", f"p{p}_polled")
        a("s_barrier")
        nBq = g.nB // 4
        nAq = (g.nA + 3) // 4
        variants = [(nAq, "")]
        if g.nA % 4:
            variants = [(nAq, "x"), (nAq - 1, "y")]
            a(f"s_cmp_ge_u32 s6, {g.nA % 4}")
            a(f"s_cbranch_scc1 {P}_y")
        for (na, sfx) in variants:
            if sfx == "y":
                a(f"{P}_y:")
            c = na + nBq
            for i in range(3):
                issue(a, [(SA, na)])
            a(f"s_waitcnt vmcnt({2*na})")
            a("s_barrier")
            both = [(SB[p], nBq), (SA, na)]

            def loop(tag, cnt):
                a(f"s_mov_b32 s44, {cnt}")
                a(f"{P}_l{tag}{sfx}:")
                issue(a, both)
                a(f"s_waitcnt vmcnt({c})")
                a("s_barrier")
                a("s_sub_u32 s44, s44, 1")
                a("s_cmp_lg_u32 s44, 0")
                a(f"s_cbranch_scc1 {P}_l{tag}{sfx}")

            if p != 3:
                a(f"s_waitcnt vmcnt({na})")
                a("s_barrier")
                loop("a", g.nst - 3)
            else:
                gen_p3_loader_body(a, g, both, c, na, loop, VT)
            if p < 4:
                nb2 = PH[p + 1].nB // 4
                issue(a, [(SB[p + 1], nb2)])
                a(f"s_waitcnt vmcnt({nb2})")
                a("s_barrier")
                issue(a, [(SB[p + 1], nb2)])
                a("s_barrier")
                issue(a, [(SB[p + 1], nb2)])
            else:
                a("s_waitcnt vmcnt(0)")
                a("s_barrier")
                a("s_barrier")
            if sfx == "x":
                a(f"s_branch {P}_e")
        a(f"{P}_e:")
    stamp(a, "l", "end")
    stamp_flush(a, 4)
    a("s_endpgm")


def gen_p3_loader_body(a, g, both, c, na, loop, VT):
    m, j = g.mj
    nsh = 16 if g.map else 8
    nstg = 1 if (g.map or not OPT["rot"]) else 2
    ACC, WF, ONE, AD = 64, 96, 128, 132
    b, t = 133, 134
    a(f"v_and_b32 v{t}, 15, v1")
    a(f"v_lshrrev_b32 v{AD}, 2, v{t}")
    a(f"v_lshrrev_b32 v{b}, 4, v1")
    a(f"v_lshl_add_u32 v{AD}, v{b}, 3, v{AD}")
    a(f"v_mul_u32_u24 v{AD}, 448, v{AD}")
    a(f"v_and_b32 v{t}, 3, v1")
    a(f"v_lshl_add_u32 v{AD}, v{t}, 3, v{AD}")
    a(f"v_and_b32 v{b}, 1, v{b}")
    a(f"v_lshlrev_b32 v{b}, 5, v{b}")
    a("s_and_b32 s3, s6, 1")
    a("s_cmp_eq_u32 s3, 0")
    a("s_cselect_b32 s3, 1, -1")
    a(f"v_mul_lo_u32 v{b}, v{b}, s3")
    a(f"v_add_u32 v{AD}, v{AD}, v{b}")
    a("s_lshl_b32 s3, s6, 5")
    a(f"s_add_u32 s3, s3, {g.slot0*SLOT + g.Boff}")
    a(f"v_add_u32 v{AD}, s3, v{AD}")
    for i in range(4):
        a(f"v_mov_b32 v{ONE+i}, 0x3f803f80")
    for i in range(16):
        a(f"v_mov_b32 v{ACC+i}, 0")

    def cs_step():
        for h in range(2):
            for i in range(4):
                for jj in range(2):
                    a(f"ds_read_b64_tr_b16 {vr(WF+16*h+4*i+2*jj,2)}, v{AD} offset:{i*128+jj*1792+h*14336}")
            a("s_waitcnt lgkmcnt(0)")
        for h in range(2):
            for i in range(4):
                a(f"v_mfma_f32_16x16x32_bf16 {vr(ACC+4*i,4)}, {vr(WF+16*h+4*i,4)}, {vr(ONE,4)}, {vr(ACC+4*i,4)}")

    if not OPT["rot"]:
        raise SystemExit("rot=0 needs another colsum scheme")
    cs_step()
    a(f"s_waitcnt vmcnt({na})")
    a("s_barrier")
    issue(a, both)
    if nstg == 2:
        d = SLOT if g.slot0 < 2 else -2 * SLOT
        a(f"v_add_u32 v{AD}, {d & 0xffffffff}, v{AD}")
        cs_step()
    srd(a, 24, PWS, WS_CS, 16 * F * 4)
    a(f"v_lshrrev_b32 v{t}, 4, v1")
    a(f"v_lshlrev_b32 v{t}, 4, v{t}")
    a(f"s_mul_i32 s3, s{m}, {F*4}")
    a(f"s_mul_i32 s7, s{j}, 896")
    a("s_add_u32 s3, s3, s7")
    a("s_lshl_b32 s7, s6, 6")
    a("s_add_u32 s3, s3, s7")
    a(f"v_add_u32 v{t}, s3, v{t}")
    a(f"v_and_b32 v{b}, 15, v1")
    a(f"v_cmp_eq_u32 vcc, 0, v{b}")
    a(f"v_mov_b32 v{b}, 0x7ffffff0")
    a(f"v_cndmask_b32 v{t}, v{b}, v{t}, vcc")
    a("s_cmp_ge_u32 s6, 2")
    a("s_cselect_b32 s3, 0x7ffffff0, 0")
    a(f"v_max_u32 v{b}, s3, v{t}")
    for i in range(4):
        a(f"buffer_store_dwordx4 {vr(ACC+4*i,4)}, v{t if i < 3 else b}, s[24:27], 0 offen offset:{i*256} sc1")
    a(f"s_waitcnt vmcnt({c+4})")
    a("s_barrier")
    issue(a, both)
    a(f"s_waitcnt vmcnt({c})")
    a(f"s_lshl_b32 s7, s{m}, 2")
    a("s_add_u32 s7, s7, s6")
    a("s_lshl_b32 s7, s7, 3")
    a(f"s_lshl_b32 s3, s{j}, 9")
    a("s_add_u32 s7, s7, s3")
    a(f"s_add_u32 s7, s7, {WS_FL + 32768}")
    signal(a, 7, VT)
    a("s_barrier")
    loop("a", 6)
    a(f"v_lshlrev_b32 v{VT}, 3, v1")
    a(f"s_lshl_b32 s3, s{j}, 9")
    a(f"s_add_u32 s3, s3, {WS_FL + 32768}")
    if nsh == 8:
        a(f"v_and_b32 v{VT}, 0xff, v{VT}")
        a(f"s_and_b32 s7, s{m}, 8")
        a("s_lshl_b32 s7, s7, 5")
        a("s_add_u32 s3, s3, s7")
    a(f"v_add_u32 v{VT}, s3, v{VT}")
    a(f"global_load_dwordx2 v[{VT+2}:{VT+3}], v{VT}, s[{PWS}:{PWS+1}] sc1")
    issue(a, both)
    a(f"s_waitcnt vmcnt({c})")
    a(f"v_cmp_eq_u64 vcc, s[{NONCE}:{NONCE+1}], v[{VT+2}:{VT+3}]")
    a("s_cmp_eq_u64 vcc, -1")
    a("s_cbranch_scc1 LD3_csok")
    poll(a, "LD3cs", [VT], VT + 2)
    a("LD3_csok:")
    a("s_barrier")
    srd(a, 28, PB1, 0, F * 2)
    a("s_lshl_b32 s3, s6, 6")
    a(f"v_add_u32 v{t}, s3, v1")
    a(f"v_cmp_gt_u32 vcc, 224, v{t}")
    a(f"v_lshlrev_b32 v{AD}, 2, v{t}")
    a(f"s_mul_i32 s3, s{j}, 896")
    a(f"v_add_u32 v{t}, s3, v{AD}")
    a(f"v_mov_b32 v{b}, 0x7ffffff0")
    a(f"v_cndmask_b32 v{t}, v{b}, v{t}, vcc")
    if nsh == 8:
        a(f"s_and_b32 s3, s{m}, 8")
        a(f"s_mul_i32 s3, s3, {F*4}")
    else:
        a("s_mov_b32 s3, 0")
    for i in range(nsh):
        a(f"buffer_load_dword v{ACC+i}, v{t}, s[24:27], s3 offen sc1")
        if i < nsh - 1:
            a(f"s_add_u32 s3, s3, {F*4}")
    a(f"v_lshrrev_b32 v{b}, 1, v{t}")
    a(f"buffer_load_ushort v{b}, v{b}, s[28:31], 0 offen")
    issue(a, both)
    a(f"s_waitcnt vmcnt({c})")
    for i in range(1, nsh):
        a(f"v_add_f32 v{ACC}, v{ACC}, v{ACC+i}")
    a(f"v_lshlrev_b32 v{b}, 16, v{b}")
    a(f"v_add_u32 v{AD}, {L_CS}, v{AD}")
    a(f"ds_write_b32 v{AD}, v{ACC}")
    a(f"ds_write_b32 v{AD}, v{b} offset:1024")
    a("s_waitcnt lgkmcnt(0)")
    a("s_barrier")
    loop("b", g.nst - 2 - 11)


def gen_mainloop(a, g, P):
    a(f"s_mov_b32 s42, {g.slot0}")
    a(f"s_mov_b32 s46, {(-2*SLOT) & 0xffffffff}")
    a(f"s_mov_b32 s47, {SLOT}")
    a(f"s_mov_b32 s43, {g.nst}")
    a("s_waitcnt lgkmcnt(0)")
    a("s_barrier")
    stamp(a, "c", f"p{g.n}_B0")
    for r in g.reads(0, 0):
        a(r)
    a(f"{P}_loop:")
    sal = ["s_cmp_eq_u32 s42, 2", "s_cselect_b32 s44, s46, s47",
           "s_add_u32 s42, s42, 1", "s_cmp_eq_u32 s42, 3", "s_cselect_b32 s42, 0, s42"]
    a("s_waitcnt lgkmcnt(0)")
    interleave(a, g.mfmas(0), g.reads(1, 1) + sal + [f"v_add_u32 v{v}, s44, v{v}" for v in g.adv[0]])
    a("s_waitcnt lgkmcnt(0)")
    interleave(a, g.mfmas(1), g.reads(0, 0) + [f"v_add_u32 v{v}, s44, v{v}" for v in g.adv[1]] +
               ["s_sub_u32 s43, s43, 1", "s_cmp_lg_u32 s43, 0"], first=["s_barrier"])
    a(f"s_cbranch_scc1 {P}_loop")
    a("s_waitcnt lgkmcnt(0)")
    stamp(a, "c", f"p{g.n}_loopend")


L15, GQ = 2, 3


def a_addr(a, V, srow, const):
    regs = []
    t = V.alloc()
    for h in range(2):
        v = V.alloc()
        a(f"v_lshrrev_b32 v{t}, 1, v{L15}")
        a(f"v_xor_b32 v{t}, v{t}, v{GQ}")
        if h:
            a(f"v_xor_b32 v{t}, 4, v{t}")
        a(f"v_lshlrev_b32 v{t}, 4, v{t}")
        a(f"v_lshl_add_u32 v{v}, v{L15}, 7, v{t}")
        if srow is not None:
            a(f"v_add_u32 v{v}, s{srow}, v{v}")
        if const:
            a(f"v_add_u32 v{v}, {const}, v{v}")
        regs.append(v)
    return regs


def b_addr128(a, V, units, sbase):
    t = V.alloc()
    f = V.alloc()
    base = V.alloc()
    a(f"v_bfe_u32 v{f}, v{L15}, 3, 1")
    a(f"v_and_b32 v{t}, 1, v{GQ}")
    a(f"v_lshl_or_b32 v{f}, v{t}, 1, v{f}")
    a(f"v_lshrrev_b32 v{t}, 2, v{L15}")
    a(f"v_lshl_add_u32 v{t}, v{GQ}, 3, v{t}")
    a(f"v_lshlrev_b32 v{base}, 7, v{t}")
    a(f"v_and_b32 v{t}, 3, v{L15}")
    a(f"v_lshl_add_u32 v{base}, v{t}, 3, v{base}")
    a(f"v_add_u32 v{base}, s{sbase}, v{base}")
    out = [[], []]
    for u in units:
        v0 = V.alloc()
        v1 = V.alloc()
        a(f"v_xor_b32 v{t}, {u}, v{f}")
        a(f"v_lshl_add_u32 v{v0}, v{t}, 5, v{base}")
        a(f"v_add_u32 v{v1}, 4096, v{v0}")
        out[0].append(v0)
        out[1].append(v1)
    return out


def zero_acc(a, acc, n):
    for i in range(n):
        a(f"v_mov_b32 v{acc+i}, 0")


def pair_sync(a, lab, tag, xor, vt):
    a("s_lshl_b32 s3, s6, 2")
    a(f"s_add_u32 s3, s3, {L_PAIR}")
    a(f"v_mov_b32 v{vt}, s3")
    a(f"v_mov_b32 v{vt+1}, {tag}")
    a("s_waitcnt lgkmcnt(0)")
    a(f"ds_write_b32 v{vt}, v{vt+1}")
    a(f"v_xor_b32 v{vt}, {xor*4}, v{vt}")
    a(f"{lab}_ps:")
    a(f"ds_read_b32 v{vt+1}, v{vt}")
    a("s_waitcnt lgkmcnt(0)")
    a(f"v_readfirstlane_b32 s3, v{vt+1}")
    a(f"s_cmp_lg_u32 s3, {tag}")
    a(f"s_cbranch_scc1 {lab}_ps")


def finish_phase(a, p, g, vt):
    flag_off(a, 7, p, g)
    a("s_waitcnt vmcnt(0)")
    signal(a, 7, vt)
    stamp(a, "c", f"p{p}_done")


def gen_p0(a):
    g = PH[1]
    m, j = g.mj
    srd(a, 8, PX, 0, S * D * 2)
    srd(a, 16, PWS, WS_XN, S * D * 2)
    a(f"s_lshl_b32 s3, s{m}, 7")
    a(f"s_lshl_b32 s7, s{j}, 3")
    a("s_add_u32 s3, s3, s7")
    a("s_lshl_b32 s7, s6, 1")
    a("s_add_u32 s3, s3, s7")
    a("s_lshl_b32 s3, s3, 11")
    a("v_lshlrev_b32 v4, 4, v1")
    a("v_add_u32 v4, s3, v4")
    fl = "nt" if OPT["ntx"] else ""
    for rr in range(2):
        for hh in range(2):
            a(f"buffer_load_dwordx4 v[{8+rr*8+hh*4}:{11+rr*8+hh*4}], v4, s[8:11], 0 offen offset:{rr*2048+hh*1024} {fl}")
    a("s_lshl_b32 s3, s6, 2")
    a(f"s_add_u32 s3, s3, {L_PAIR}")
    a("v_mov_b32 v5, s3")
    a("v_mov_b32 v6, 0")
    a("ds_write_b32 v5, v6")
    for rr in range(2):
        a(f"s_waitcnt vmcnt(2)")
        src = 8 + rr * 8
        for i in range(8):
            a(f"v_lshlrev_b32 v{24+2*i}, 16, v{src+i}")
            a(f"v_and_b32 v{25+2*i}, 0xffff0000, v{src+i}")
        a("v_add_f32 v40, v24, v25")
        for i in range(2, 16):
            a(f"v_add_f32 v40, v40, v{24+i}")
        wave_sum(a, 40, 41)
        a(f"v_mul_f32 v40, {hexf(1.0/1024)}, v40")
        a("v_sub_f32 v43, v24, v40")
        a("v_mul_f32 v42, v43, v43")
        for i in range(1, 16):
            a(f"v_sub_f32 v43, v{24+i}, v40")
            a("v_fmac_f32 v42, v43, v43")
        wave_sum(a, 42, 41)
        a(f"v_mul_f32 v42, {hexf(1.0/1024)}, v42")
        round_bf16(a, 40)
        round_bf16(a, 42)
        a(f"v_add_f32 v42, {hexf(1e-5)}, v42")
        round_bf16(a, 42)
        a("v_sqrt_f32 v42, v42")
        round_bf16(a, 42)
        a("v_rcp_f32 v42, v42")
        for i in range(8):
            a(f"v_sub_f32 v{24+2*i}, v{24+2*i}, v40")
            a(f"v_sub_f32 v{25+2*i}, v{25+2*i}, v40")
            a(f"v_cvt_pk_bf16_f32 v43, v{24+2*i}, v{25+2*i}")
            a(f"v_lshlrev_b32 v44, 16, v43")
            a(f"v_and_b32 v45, 0xffff0000, v43")
            a(f"v_mul_f32 v44, v44, v42")
            a(f"v_mul_f32 v45, v45, v42")
            a(f"v_cvt_pk_bf16_f32 v{48+rr*8+i}, v44, v45")
        for hh in range(2):
            a(f"buffer_store_dwordx4 v[{48+rr*8+hh*4}:{51+rr*8+hh*4}], v4, s[16:19], 0 offen offset:{rr*2048+hh*1024} sc1")
    get_nonce(a, "P0", 8)
    finish_phase(a, 0, g, 8)


def gen_p1(a):
    g = PH[1]
    m, j = g.mj
    V = Regs("v", 4, 254)
    srd(a, 16, PWS, WS_O, S * D * 2)
    a("s_and_b32 s34, s6, 1")
    a("s_lshr_b32 s35, s6, 1")
    a("s_lshl_b32 s36, s34, 13")
    vA = a_addr(a, V, 36, 2048 + g.slot0 * SLOT)
    vAh = a_addr(a, V, None, g.slot0 * SLOT)
    a(f"s_mov_b32 s36, {g.Boff + g.slot0*SLOT}")
    a("s_lshl_b32 s37, s35, 1")
    a("s_add_u32 s38, s37, 1")
    vB = b_addr128(a, V, ["s37", "s38"], 36)
    acc = V.alloc(104, 4)
    X = [V.alloc(20, 4) for _ in range(2)]
    W = [V.alloc(24, 4) for _ in range(2)]
    accr = lambda t, u: acc + (t * 4 + u) * 4
    acch = lambda c: acc + 96 + c * 4
    zero_acc(a, acc, 104)

    def reads(h, b):
        r = []
        for u in range(4):
            r.append(f"ds_read_b128 {vr(X[b]+4*u,4)}, v{vA[h]} offset:{u*2048}")
        for t in range(6):
            for jj in range(2):
                r.append(f"ds_read_b64_tr_b16 {vr(W[b]+4*t+2*jj,2)}, v{vB[h][t&1]} offset:{(t>>1)*8192+jj*512}")
            if t == 1:
                r.append(f"ds_read_b128 {vr(X[b]+16,4)}, v{vAh[h]}")
        return r

    def mk_mfmas(rsel):
        def mfmas(b):
            ml = []
            for t in range(6):
                for u in range(4):
                    w, x, d = vr(W[b] + 4 * t, 4), vr(X[b] + 4 * u, 4), vr(accr(t, u), 4)
                    ml.append(f"v_mfma_f32_16x16x32_bf16 {d}, {w}, {x}, {d}" if t < 4 else
                              f"v_mfma_f32_16x16x32_bf16 {d}, {x}, {w}, {d}")
                if (t >> 1) == 1 + rsel:
                    w, x, d = vr(W[b] + 4 * t, 4), vr(X[b] + 16, 4), vr(acch(t & 1), 4)
                    ml.append(f"v_mfma_f32_16x16x32_bf16 {d}, {w}, {x}, {d}" if t < 4 else
                              f"v_mfma_f32_16x16x32_bf16 {d}, {x}, {w}, {d}")
            return ml
        return mfmas

    g.reads = reads
    g.adv = [[vA[0], vAh[0]] + vB[0], [vA[1], vAh[1]] + vB[1]]
    a("s_waitcnt lgkmcnt(0)")
    a("s_barrier")
    a("s_cmp_eq_u32 s34, 1")
    a("s_cbranch_scc1 P1_r1")
    g.mfmas = mk_mfmas(0)
    gen_mainloop(a, g, "P1a")
    a("s_branch P1_epi")
    a("P1_r1:")
    g.mfmas = mk_mfmas(1)
    gen_mainloop(a, g, "P1b")
    a("P1_epi:")
    a("s_nop 7")
    Qf = X[0]
    Kf = W[0]
    Vp = [W[1], W[1] + 12]
    Hp = X[1]
    for c in range(2):
        a(f"v_cvt_pk_bf16_f32 v{Hp+2*c}, v{acch(c)}, v{acch(c)+1}")
        a(f"v_cvt_pk_bf16_f32 v{Hp+2*c+1}, v{acch(c)+2}, v{acch(c)+3}")
    for u in (3, 2, 1, 0):
        for c in range(2):
            a(f"v_cvt_pk_bf16_f32 v{Kf+4*(u+1)+2*c}, v{accr(2+c,u)}, v{accr(2+c,u)+1}")
            a(f"v_cvt_pk_bf16_f32 v{Kf+4*(u+1)+2*c+1}, v{accr(2+c,u)+2}, v{accr(2+c,u)+3}")
            a(f"v_cvt_pk_bf16_f32 v{Vp[c]+2*(u+1)}, v{accr(4+c,u)}, v{accr(4+c,u)+1}")
            a(f"v_cvt_pk_bf16_f32 v{Vp[c]+2*(u+1)+1}, v{accr(4+c,u)+2}, v{accr(4+c,u)+3}")
            a(f"v_cvt_pk_bf16_f32 v{Qf+4*u+2*c}, v{accr(c,u)}, v{accr(c,u)+1}")
            a(f"v_cvt_pk_bf16_f32 v{Qf+4*u+2*c+1}, v{accr(c,u)+2}, v{accr(c,u)+3}")
    ex = X[1] + 4
    a(f"v_lshlrev_b32 v{ex}, 4, v1")
    a("s_mul_i32 s36, s35, 3072")
    a(f"v_add_u32 v{ex}, s36, v{ex}")
    a("s_cmp_eq_u32 s34, 1")
    a("s_cbranch_scc1 P1_ex1")
    a(f"ds_write_b128 v{ex}, {vr(Kf+16,4)}")
    for c in range(2):
        a(f"ds_write_b64 v{ex}, {vr(Vp[c]+8,2)} offset:{1024+8*c}")
    for i in range(4):
        a(f"v_mov_b32 v{Kf+i}, v{Hp+i}")
    pair_sync(a, "P1a", 1, 1, X[1] + 6)
    for c in range(2):
        a(f"ds_read_b64 {vr(Vp[c],2)}, v{ex} offset:{2048+8*c}")
    a("s_branch P1_ex2")
    a("P1_ex1:")
    a(f"ds_write_b128 v{ex}, {vr(Hp,4)} offset:2048")
    pair_sync(a, "P1b", 1, 1, X[1] + 6)
    a(f"ds_read_b128 {vr(Kf,4)}, v{ex}")
    for c in range(2):
        a(f"ds_read_b64 {vr(Vp[c],2)}, v{ex} offset:{1024+8*c}")
    a("P1_ex2:")
    MK, MK0 = 76, 92
    t0, t1 = acc, acc + 1
    a(f"v_lshlrev_b32 v{t0}, 2, v{GQ}")
    a(f"v_sub_u32 v{t0}, v{L15}, v{t0}")
    for blk in range(2):
        for r in range(4):
            sp = MK + 2 * (blk * 4 + r)
            off = (16 if blk == 0 else 0) - r
            a(f"v_add_u32 v{t1}, {off}, v{t0}")
            a(f"v_and_b32 v{t1}, 0xfffffff1, v{t1}")
            a(f"v_cmp_eq_u32 s[{sp}:{sp+1}], 0, v{t1}")
    a(f"s_or_b32 s36, s{m}, s34")
    a("s_cmp_eq_u32 s36, 0")
    for r in range(4):
        a(f"s_cselect_b64 s[{MK0+2*r}:{MK0+2*r+1}], 0, s[{MK+2*r}:{MK+2*r+1}]")
    vo = acc + 2
    a(f"s_lshl_b32 s36, s{m}, 7")
    a("s_lshl_b32 s37, s34, 6")
    a("s_add_u32 s36, s36, s37")
    a(f"v_add_u32 v{vo}, s36, v{L15}")
    a(f"v_lshlrev_b32 v{vo}, 11, v{vo}")
    a(f"v_and_b32 v{t0}, 1, v{GQ}")
    a(f"v_lshl_add_u32 v{vo}, v{t0}, 5, v{vo}")
    a(f"v_lshrrev_b32 v{t0}, 1, v{GQ}")
    a(f"v_lshl_add_u32 v{vo}, v{t0}, 4, v{vo}")
    a(f"s_lshl_b32 s36, s{j}, 7")
    a("s_lshl_b32 s37, s35, 6")
    a("s_add_u32 s36, s36, s37")
    a(f"v_add_u32 v{vo}, s36, v{vo}")
    NEG = acc + 3
    a(f"v_mov_b32 v{NEG}, 0xff800000")
    a("s_waitcnt lgkmcnt(0)")
    Sc = acc + 8
    for u in range(4):
        for blk in range(2):
            a(f"v_mfma_f32_16x16x32_bf16 {vr(Sc+8*u+4*blk,4)}, {vr(Kf+4*(u+blk),4)}, {vr(Qf+4*u,4)}, 0")
    Om = acc + 48
    Pp = acc + 84
    mx, tm, sm = acc + 4, acc + 5, acc + 6
    a(f"s_mov_b32 s37, {hexf(32 ** -0.5)}")
    a(f"s_mov_b32 s38, {hexf(math.log2(math.e))}")
    for u in range(4):
        s = Sc + 8 * u
        for i in range(0, 8, 2):
            a(f"v_cvt_pk_bf16_f32 v{tm}, v{s+i}, v{s+i+1}")
            a(f"v_lshlrev_b32 v{s+i}, 16, v{tm}")
            a(f"v_and_b32 v{s+i+1}, 0xffff0000, v{tm}")
            a(f"v_mul_f32 v{s+i}, s37, v{s+i}")
            a(f"v_mul_f32 v{s+i+1}, s37, v{s+i+1}")
            a(f"v_cvt_pk_bf16_f32 v{tm}, v{s+i}, v{s+i+1}")
            a(f"v_lshlrev_b32 v{s+i}, 16, v{tm}")
            a(f"v_and_b32 v{s+i+1}, 0xffff0000, v{tm}")
        for i in range(8):
            sp = (MK0 + 2 * i) if (u == 0 and i < 4) else (MK + 2 * i)
            a(f"v_cndmask_b32 v{s+i}, v{NEG}, v{s+i}, s[{sp}:{sp+1}]")
        a(f"v_max3_f32 v{mx}, v{s}, v{s+1}, v{s+2}")
        a(f"v_max3_f32 v{mx}, v{mx}, v{s+3}, v{s+4}")
        a(f"v_max3_f32 v{mx}, v{mx}, v{s+5}, v{s+6}")
        a(f"v_max_f32 v{mx}, v{mx}, v{s+7}")
        xrow_reduce(a, "v_max_f32", mx, tm)
        a(f"v_mul_f32 v{mx}, s38, v{mx}")
        for i in range(8):
            a(f"v_fma_f32 v{s+i}, v{s+i}, s38, -v{mx}")
        for i in range(8):
            a(f"v_exp_f32 v{s+i}, v{s+i}")
        a(f"v_add_f32 v{sm}, v{s}, v{s+1}")
        for i in range(2, 8):
            a(f"v_add_f32 v{sm}, v{sm}, v{s+i}")
        xrow_reduce(a, "v_add_f32", sm, tm)
        a(f"v_rcp_f32 v{sm}, v{sm}")
        for i in range(8):
            a(f"v_mul_f32 v{s+i}, v{s+i}, v{sm}")
        for i in range(4):
            a(f"v_cvt_pk_bf16_f32 v{Pp+4*u+i}, v{s+2*i}, v{s+2*i+1}")
        for c in range(2):
            a(f"v_mfma_f32_16x16x32_bf16 {vr(Om+8*u+4*c,4)}, {vr(Vp[c]+2*u,4)}, {vr(Pp+4*u,4)}, 0")
    for u in range(4):
        o = Om + 8 * u
        p = Sc + 4 * u
        for i in range(4):
            a(f"v_cvt_pk_bf16_f32 v{p+i}, v{o+2*i}, v{o+2*i+1}")
        a(f"v_permlane16_swap_b32 v{p}, v{p+2}")
        a(f"v_permlane16_swap_b32 v{p+1}, v{p+3}")
        a(f"s_mov_b32 s36, {u*16*2048}")
        a(f"buffer_store_dwordx4 {vr(p,4)}, v{vo}, s[16:19], s36 offen sc1")
    stamp(a, "c", "p1_stored")
    finish_phase(a, 1, g, acc + 40)
    return V.hi


def gen_p24(a, which):
    g = PH[which]
    m, j = g.mj
    k2 = which == 2
    P = f"P{which}"
    V = Regs("v", 4, 254)
    if k2:
        srd(a, 16, PWS, WS_H, S * D * 2)
        srd(a, 20, PX, 0, S * D * 2)
        srd(a, 24, PWS, WS_ST, S * 16 * 8)
    else:
        srd(a, 16, POUT, 0, S * D * 2)
        srd(a, 20, PWS, WS_H, S * D * 2)
        srd(a, 24, PB2, 0, D * 2)
    a("s_and_b32 s34, s6, 1")
    a("s_lshr_b32 s35, s6, 1")
    a("s_lshl_b32 s36, s34, 13")
    a("s_lshl_b32 s37, s35, 14")
    a("s_add_u32 s36, s36, s37")
    vA = a_addr(a, V, 36, g.slot0 * SLOT)
    a("s_lshl_b32 s36, s35, 13")
    a(f"s_add_u32 s36, s36, {g.Boff + g.slot0*SLOT}")
    vB = b_addr128(a, V, [0, 1, 2, 3], 36)
    acc = V.alloc(64, 4)
    X = [V.alloc(16, 4) for _ in range(2)]
    W = [V.alloc(16, 4) for _ in range(2)]
    accr = lambda t, u: acc + (t * 4 + u) * 4
    vo = V.alloc()
    t0 = V.alloc()
    res = V.alloc(16, 4)
    bia = V.alloc(8, 4)
    a(f"s_lshl_b32 s36, s{m}, 7")
    a("s_lshl_b32 s37, s34, 6")
    a("s_add_u32 s36, s36, s37")
    a("s_lshl_b32 s37, s35, 5")
    a("s_add_u32 s36, s36, s37")
    a(f"v_add_u32 v{vo}, s36, v{L15}")
    vrow = V.alloc()
    a(f"v_mov_b32 v{vrow}, v{vo}")
    a(f"v_lshlrev_b32 v{vo}, 11, v{vo}")
    vcol = V.alloc()
    a(f"v_and_b32 v{t0}, 1, v{GQ}")
    a(f"v_lshlrev_b32 v{vcol}, 5, v{t0}")
    a(f"v_lshrrev_b32 v{t0}, 1, v{GQ}")
    a(f"v_lshl_add_u32 v{vcol}, v{t0}, 4, v{vcol}")
    a(f"s_lshl_b32 s36, s{j}, 7")
    a(f"v_add_u32 v{vcol}, s36, v{vcol}")
    a(f"v_add_u32 v{vo}, v{vo}, v{vcol}")
    a("s_mov_b32 s45, 32768")
    zero_acc(a, acc, 64)
    a("s_barrier")
    for uu in range(2):
        for p in range(2):
            so = "s45" if uu else "0"
            a(f"buffer_load_dwordx4 {vr(res+8*uu+4*p,4)}, v{vo}, s[20:23], {so} offen offset:{64*p}" + ("" if k2 else " sc1"))
    if not k2:
        for p in range(2):
            a(f"buffer_load_dwordx4 {vr(bia+4*p,4)}, v{vcol}, s[24:27], 0 offen offset:{64*p}")

    def reads(h, b):
        r = []
        for u in range(4):
            r.append(f"ds_read_b128 {vr(X[b]+4*u,4)}, v{vA[h]} offset:{u*2048}")
        for t in range(4):
            for jj in range(2):
                r.append(f"ds_read_b64_tr_b16 {vr(W[b]+4*t+2*jj,2)}, v{vB[h][t]} offset:{jj*512}")
        return r

    def mfmas(b):
        ml = []
        for t in range(4):
            for u in range(4):
                w, x, d = vr(W[b] + 4 * t, 4), vr(X[b] + 4 * u, 4), vr(accr(t, u), 4)
                ml.append(f"v_mfma_f32_16x16x32_bf16 {d}, {w}, {x}, {d}")
        return ml

    g.reads, g.mfmas = reads, mfmas
    g.adv = [[vA[0]] + vB[0], [vA[1]] + vB[1]]
    gen_mainloop(a, g, P)
    ex = V.alloc()
    exr = V.alloc()
    vt = V.alloc(2)
    a(f"v_lshlrev_b32 v{ex}, 4, v1")
    a("s_lshl_b32 s36, s34, 13")
    a(f"v_add_u32 v{ex}, s36, v{ex}")
    a(f"s_mul_i32 s36, s35, {SLOT}")
    a(f"s_sub_u32 s37, {SLOT}, s36")
    a(f"v_add_u32 v{exr}, s37, v{ex}")
    a(f"v_add_u32 v{ex}, s36, v{ex}")
    Rv = X[0]
    assert X[1] == X[0] + 16
    a("s_cmp_eq_u32 s35, 1")
    a(f"s_cbranch_scc1 {P}_ex1")
    for kh in range(2):
        if kh:
            a(f"{P}_ex1:")
            a("s_nop 7")
        for t in range(4):
            for uu in range(2):
                a(f"ds_write_b128 v{ex}, {vr(accr(t, 2*(1-kh)+uu),4)} offset:{(t*2+uu)*1024}")
        pair_sync(a, f"{P}{kh}", which, 2, vt)
        for t in range(4):
            for uu in range(2):
                a(f"ds_read_b128 {vr(Rv+(t*2+uu)*4,4)}, v{exr} offset:{(t*2+uu)*1024}")
        for t in range(4):
            for uu in range(2):
                a(f"s_waitcnt lgkmcnt({7-(t*2+uu)})")
                for i in range(0, 4, 2):
                    s = accr(t, 2 * kh + uu) + i
                    d = Rv + (t * 2 + uu) * 4 + i
                    a(f"v_pk_add_f32 {vr(d,2)}, {vr(d,2)}, {vr(s,2)}")
        if kh == 0:
            a(f"s_branch {P}_ex2")
    a(f"{P}_ex2:")
    a("s_waitcnt vmcnt(0)")
    Y = acc
    for uu in range(2):
        hv = Y + 32 * uu
        for p in range(2):
            pk = W[0] + 8 * uu + 4 * p
            for tt in range(2):
                s = Rv + ((2 * p + tt) * 2 + uu) * 4
                a(f"v_cvt_pk_bf16_f32 v{pk+2*tt}, v{s}, v{s+1}")
                a(f"v_cvt_pk_bf16_f32 v{pk+2*tt+1}, v{s+2}, v{s+3}")
            a(f"v_permlane16_swap_b32 v{pk}, v{pk+2}")
            a(f"v_permlane16_swap_b32 v{pk+1}, v{pk+3}")
            y = hv + 8 * p
            z = hv + 16
            for i in range(4):
                a(f"v_lshlrev_b32 v{y+2*i}, 16, v{pk+i}")
                a(f"v_and_b32 v{y+2*i+1}, 0xffff0000, v{pk+i}")
            if not k2:
                for i in range(4):
                    a(f"v_lshlrev_b32 v{z}, 16, v{bia+4*p+i}")
                    a(f"v_and_b32 v{z+1}, 0xffff0000, v{bia+4*p+i}")
                    a(f"v_pk_add_f32 {vr(y+2*i,2)}, {vr(y+2*i,2)}, {vr(z,2)}")
                    a(f"v_cvt_pk_bf16_f32 v{z}, v{y+2*i}, v{y+2*i+1}")
                    a(f"v_lshlrev_b32 v{y+2*i}, 16, v{z}")
                    a(f"v_and_b32 v{y+2*i+1}, 0xffff0000, v{z}")
            for i in range(4):
                rr = res + 8 * uu + 4 * p + i
                a(f"v_lshlrev_b32 v{z}, 16, v{rr}")
                a(f"v_and_b32 v{z+1}, 0xffff0000, v{rr}")
                a(f"v_pk_add_f32 {vr(y+2*i,2)}, {vr(y+2*i,2)}, {vr(z,2)}")
                a(f"v_cvt_pk_bf16_f32 v{pk+i}, v{y+2*i}, v{y+2*i+1}")
            so = "s45" if uu else "0"
            a(f"buffer_store_dwordx4 {vr(pk,4)}, v{vo}, s[16:19], {so} offen offset:{64*p}" + (" sc1" if k2 else ""))
            if k2:
                for i in range(4):
                    a(f"v_lshlrev_b32 v{y+2*i}, 16, v{pk+i}")
                    a(f"v_and_b32 v{y+2*i+1}, 0xffff0000, v{pk+i}")
        if k2:
            sm, m2, tm = hv + 16, hv + 17, hv + 18
            a(f"v_add_f32 v{sm}, v{hv}, v{hv+1}")
            for i in range(2, 16):
                a(f"v_add_f32 v{sm}, v{sm}, v{hv+i}")
            xrow_reduce(a, "v_add_f32", sm, tm)
            a(f"v_mul_f32 v{tm+1}, {hexf(1/64)}, v{sm}")
            a(f"v_sub_f32 v{tm}, v{hv}, v{tm+1}")
            a(f"v_mul_f32 v{m2}, v{tm}, v{tm}")
            for i in range(1, 16):
                a(f"v_sub_f32 v{tm}, v{hv+i}, v{tm+1}")
                a(f"v_fmac_f32 v{m2}, v{tm}, v{tm}")
            xrow_reduce(a, "v_add_f32", m2, tm)
            a(f"v_lshlrev_b32 v{tm}, 7, v{vrow}")
            a(f"s_lshl_b32 s36, s{j}, 3")
            a(f"s_add_u32 s36, s36, {uu*16*128}")
            a(f"v_cmp_eq_u32 vcc, 0, v{GQ}")
            a(f"v_mov_b32 v{tm+1}, 0x7ffffff0")
            a(f"v_cndmask_b32 v{tm}, v{tm+1}, v{tm}, vcc")
            a(f"buffer_store_dwordx2 {vr(sm,2)}, v{tm}, s[24:27], s36 offen sc1")
    stamp(a, "c", f"p{which}_stored")
    if k2:
        finish_phase(a, 2, g, X[0])
    return V.hi


def gen_p3(a):
    g = PH[3]
    m, j = g.mj
    V = Regs("v", 4, 254)
    srd(a, 16, PWS, WS_H1, S * F * 2)
    srd(a, 20, PWS, WS_ST, S * 16 * 8)
    acc = V.alloc(112, 4)
    X = [V.alloc(16, 4) for _ in range(2)]
    W = [V.alloc(28, 4) for _ in range(2)]
    accr = lambda t, u: acc + (t * 4 + u) * 4
    a("s_and_b32 s34, s6, 1")
    a("s_lshr_b32 s35, s6, 1")
    a("s_lshl_b32 s36, s34, 13")
    vA = a_addr(a, V, 36, g.slot0 * SLOT)
    t = V.alloc()
    base = V.alloc()
    vB = [[V.alloc(), V.alloc()], [V.alloc(), V.alloc()]]
    a(f"v_lshrrev_b32 v{t}, 2, v{L15}")
    a(f"v_lshl_add_u32 v{t}, v{GQ}, 3, v{t}")
    a(f"v_mul_u32_u24 v{base}, 448, v{t}")
    a(f"v_and_b32 v{t}, 3, v{L15}")
    a(f"v_lshl_add_u32 v{base}, v{t}, 3, v{base}")
    a("s_mul_i32 s36, s35, 224")
    a(f"s_add_u32 s36, s36, {g.Boff + g.slot0*SLOT}")
    a(f"v_add_u32 v{base}, s36, v{base}")
    a(f"v_and_b32 v{t}, 1, v{GQ}")
    a(f"v_lshlrev_b32 v{t}, 5, v{t}")
    a("s_cmp_eq_u32 s35, 0")
    a("s_cselect_b32 s36, 1, -1")
    a(f"v_mul_lo_u32 v{t}, v{t}, s36")
    a(f"v_add_u32 v{vB[0][0]}, v{base}, v{t}")
    a(f"v_sub_u32 v{vB[0][1]}, v{base}, v{t}")
    a(f"v_add_u32 v{vB[1][0]}, {32*448}, v{vB[0][0]}")
    a(f"v_add_u32 v{vB[1][1]}, {32*448}, v{vB[0][1]}")
    ta = W[1]
    st = W[0]
    st = X[0]
    assert X[1] == X[0] + 16
    a(f"s_lshl_b32 s36, s{m}, 14")
    a("s_lshl_b32 s37, s6, 12")
    a("s_add_u32 s36, s36, s37")
    a(f"v_and_b32 v{ta}, 31, v1")
    a(f"v_lshlrev_b32 v{ta}, 7, v{ta}")
    a(f"v_add_u32 v{ta}, s36, v{ta}")
    zero_acc(a, acc, 112)
    a("s_barrier")
    for i in range(8):
        a(f"buffer_load_dwordx4 {vr(st+4*i,4)}, v{ta}, s[20:23], 0 offen offset:{16*i} sc1")
    a("s_waitcnt vmcnt(0)")
    mean, m2, tm = W[1] + 2, W[1] + 3, W[1] + 4
    a(f"v_add_f32 v{mean}, v{st}, v{st+2}")
    a(f"v_add_f32 v{m2}, v{st+1}, v{st+3}")
    for i in range(2, 16):
        a(f"v_add_f32 v{mean}, v{mean}, v{st+2*i}")
        a(f"v_add_f32 v{m2}, v{m2}, v{st+2*i+1}")
    a(f"v_mul_f32 v{mean}, {hexf(1/1024)}, v{mean}")
    a(f"s_mov_b32 s36, {hexf(1/64)}")
    a(f"v_mov_b32 v{tm+1}, 0")
    for i in range(16):
        a(f"v_fma_f32 v{tm}, v{st+2*i}, s36, -v{mean}")
        a(f"v_fmac_f32 v{tm+1}, v{tm}, v{tm}")
    a(f"v_fmac_f32 v{m2}, 0x42800000, v{tm+1}")
    a(f"v_mul_f32 v{m2}, {hexf(1/1024)}, v{m2}")
    round_bf16(a, mean)
    round_bf16(a, m2)
    a(f"v_add_f32 v{m2}, {hexf(1e-5)}, v{m2}")
    round_bf16(a, m2)
    a(f"v_sqrt_f32 v{m2}, v{m2}")
    round_bf16(a, m2)
    a(f"v_rcp_f32 v{tm}, v{m2}")
    a(f"v_mul_f32 v{tm+1}, v{mean}, v{tm}")
    a(f"v_sub_f32 v{tm+1}, 0, v{tm+1}")
    a(f"v_and_b32 v{ta}, 31, v1")
    a(f"v_lshlrev_b32 v{ta}, 3, v{ta}")
    a("s_lshl_b32 s36, s6, 8")
    a(f"s_add_u32 s36, s36, {L_ROW}")
    a(f"v_add_u32 v{ta}, s36, v{ta}")
    a(f"ds_write_b64 v{ta}, {vr(tm,2)}")

    def reads(h, b):
        r = []
        for u in range(4):
            r.append(f"ds_read_b128 {vr(X[b]+4*u,4)}, v{vA[h]} offset:{u*2048}")
        for t_ in range(7):
            for jj in range(2):
                r.append(f"ds_read_b64_tr_b16 {vr(W[b]+4*t_+2*jj,2)}, v{vB[h][t_&1]} offset:{t_*32+jj*4*448}")
        return r

    def mfmas(b):
        ml = []
        for t_ in range(7):
            for u in range(4):
                w, x, d = vr(W[b] + 4 * t_, 4), vr(X[b] + 4 * u, 4), vr(accr(t_, u), 4)
                ml.append(f"v_mfma_f32_16x16x32_bf16 {d}, {w}, {x}, {d}")
        return ml

    g.reads, g.mfmas = reads, mfmas
    g.adv = [[vA[0]] + vB[0], [vA[1]] + vB[1]]
    gen_mainloop(a, g, "P3")
    RP = X[0]
    CSr, B1r = W[0], W[1]
    e0 = X[0] + 8
    a("s_lshl_b32 s36, s34, 9")
    a(f"s_add_u32 s36, s36, {L_ROW}")
    a(f"v_lshlrev_b32 v{e0}, 3, v{L15}")
    a(f"v_add_u32 v{e0}, s36, v{e0}")
    for u in range(4):
        a(f"ds_read_b64 {vr(RP+2*u,2)}, v{e0} offset:{u*128}")
    a("s_mul_i32 s36, s35, 448")
    a(f"s_add_u32 s36, s36, {L_CS}")
    a(f"v_lshlrev_b32 v{e0+1}, 4, v{GQ}")
    a(f"v_add_u32 v{e0+1}, s36, v{e0+1}")
    for t_ in range(7):
        a(f"ds_read_b128 {vr(CSr+4*t_,4)}, v{e0+1} offset:{t_*64}")
        a(f"ds_read_b128 {vr(B1r+4*t_,4)}, v{e0+1} offset:{1024+t_*64}")
    vo, vo6, tq = X[1], X[1] + 1, X[1] + 2
    KK = X[1] + 4
    T = X[1] + 6
    a(f"s_lshl_b32 s36, s{m}, 7")
    a("s_lshl_b32 s37, s34, 6")
    a("s_add_u32 s36, s36, s37")
    a(f"v_add_u32 v{vo}, s36, v{L15}")
    a(f"v_and_b32 v{tq}, 1, v{GQ}")
    a(f"v_lshl_add_u32 v{vo6}, v{tq}, 4, v{vo}")
    a(f"v_mul_u32_u24 v{vo}, 7168, v{vo}")
    a(f"v_mul_u32_u24 v{vo6}, 7168, v{vo6}")
    a(f"v_lshl_add_u32 v{vo}, v{tq}, 5, v{vo}")
    a(f"v_lshrrev_b32 v{tq}, 1, v{GQ}")
    a(f"v_lshl_add_u32 v{vo}, v{tq}, 4, v{vo}")
    a(f"v_lshl_add_u32 v{vo6}, v{tq}, 4, v{vo6}")
    a(f"s_mul_i32 s36, s{j}, 448")
    a("s_mul_i32 s37, s35, 224")
    a("s_add_u32 s36, s36, s37")
    a(f"v_add_u32 v{vo}, s36, v{vo}")
    a(f"v_add_u32 v{vo6}, s36, v{vo6}")
    k1 = -2.0 * math.sqrt(2.0 / math.pi) * math.log2(math.e)
    a(f"v_mov_b32 v{KK}, {hexf(k1*0.044715)}")
    a(f"v_mov_b32 v{KK+1}, {hexf(k1)}")
    for u in range(4):
        a(f"s_mov_b32 s{76+u}, {u*16*7168}")
    a("s_waitcnt lgkmcnt(0)")

    def gelu_tile(t_, u):
        d = accr(t_, u)
        rp = vr(RP + 2 * u, 2)
        for i in (0, 2):
            a(f"v_pk_fma_f32 {vr(T+i,2)}, {vr(CSr+4*t_+i,2)}, {rp}, {vr(B1r+4*t_+i,2)} op_sel:[0,1,0] op_sel_hi:[1,1,1]")
        for i in (0, 2):
            a(f"v_pk_fma_f32 {vr(d+i,2)}, {vr(d+i,2)}, {rp}, {vr(T+i,2)} op_sel:[0,0,0] op_sel_hi:[1,0,1]")
        for i in (0, 2):
            a(f"v_pk_mul_f32 {vr(T+i,2)}, {vr(d+i,2)}, {vr(d+i,2)}")
        for i in (0, 2):
            a(f"v_pk_fma_f32 {vr(T+i,2)}, {vr(T+i,2)}, {vr(KK,2)}, {vr(KK,2)} op_sel:[0,0,1] op_sel_hi:[1,0,1]")
        for i in (0, 2):
            a(f"v_pk_mul_f32 {vr(T+i,2)}, {vr(T+i,2)}, {vr(d+i,2)}")
        for i in range(4):
            a(f"v_exp_f32 v{T+i}, v{T+i}")
        for i in (0, 2):
            a(f"v_pk_add_f32 {vr(T+i,2)}, {vr(T+i,2)}, 1.0 op_sel_hi:[1,0]")
        for i in range(4):
            a(f"v_rcp_f32 v{T+i}, v{T+i}")
        for i in (0, 2):
            a(f"v_pk_mul_f32 {vr(d+i,2)}, {vr(d+i,2)}, {vr(T+i,2)}")

    obs = [X[0] + 12, X[1] + 12]
    n_ = 0
    for u in range(4):
        for p in range(3):
            o = obs[n_ & 1]
            n_ += 1
            for tt in range(2):
                gelu_tile(2 * p + tt, u)
                d = accr(2 * p + tt, u)
                a(f"v_cvt_pk_bf16_f32 v{o+2*tt}, v{d}, v{d+1}")
                a(f"v_cvt_pk_bf16_f32 v{o+2*tt+1}, v{d+2}, v{d+3}")
            a(f"v_permlane16_swap_b32 v{o}, v{o+2}")
            a(f"v_permlane16_swap_b32 v{o+1}, v{o+3}")
            a(f"buffer_store_dwordx4 {vr(o,4)}, v{vo}, s[16:19], s{76+u} offen offset:{64*p} sc1")
        if u & 1:
            o = obs[n_ & 1]
            n_ += 1
            for tt in range(2):
                gelu_tile(6, u - 1 + tt)
                d = accr(6, u - 1 + tt)
                a(f"v_cvt_pk_bf16_f32 v{o+2*tt}, v{d}, v{d+1}")
                a(f"v_cvt_pk_bf16_f32 v{o+2*tt+1}, v{d+2}, v{d+3}")
            a(f"v_permlane16_swap_b32 v{o}, v{o+2}")
            a(f"v_permlane16_swap_b32 v{o+1}, v{o+3}")
            a(f"buffer_store_dwordx4 {vr(o,4)}, v{vo6}, s[16:19], s{76+u-1} offen offset:192 sc1")
    stamp(a, "c", "p3_stored")
    finish_phase(a, 3, g, acc)
    return V.hi


def main():
    out = sys.argv[1]
    a = Asm()
    name = NAME + "_kernel"
    a.raw(f".globl {name}\n.p2align 8\n.type {name},@function\n{name}:")
    a("s_cmp_ge_u32 s2, 256\ns_cbranch_scc1 KEND")
    a("s_load_dwordx16 s[48:63], s[0:1], 0")
    a("s_load_dwordx4 s[64:67], s[0:1], 64")
    a("s_load_dwordx2 s[68:69], s[0:1], 80")
    a("v_lshrrev_b32 v1, 6, v0")
    a("s_and_b32 s3, s2, 7")
    a("s_lshr_b32 s7, s2, 3")
    a("v_readfirstlane_b32 s6, v1")
    a("s_and_b32 s70, s3, 1")
    a("s_lshl_b32 s70, s70, 3")
    a("s_and_b32 s4, s7, 7")
    a("s_add_u32 s70, s70, s4")
    a("s_lshr_b32 s71, s3, 1")
    a("s_lshl_b32 s71, s71, 2")
    a("s_lshr_b32 s4, s7, 3")
    a("s_add_u32 s71, s71, s4")
    a("s_and_b32 s72, s7, 15")
    a("s_lshl_b32 s73, s3, 1")
    a("s_lshr_b32 s4, s7, 4")
    a("s_add_u32 s73, s73, s4")
    a("v_and_b32 v1, 63, v0")
    a(f"v_and_b32 v{L15}, 15, v0")
    a(f"v_lshrrev_b32 v{GQ}, 4, v1")
    a("s_waitcnt lgkmcnt(0)")
    a("s_cmp_ge_u32 s6, 4")
    a("s_cbranch_scc1 LOADER")
    stamp(a, "c", "start")
    gen_p0(a)
    hi = [gen_p1(a), gen_p24(a, 2), gen_p3(a), gen_p24(a, 4)]
    stamp_flush(a, 0)
    a("KEND:")
    a("s_endpgm")
    gen_loader(a)
    vg = 256 if OPT["stamp"] else max(hi + [136])
    a.raw(f'.section .rodata,"a"\n.p2align 6\n.amdhsa_kernel {name}\n'
          f"  .amdhsa_next_free_vgpr {vg}\n  .amdhsa_next_free_sgpr 102\n  .amdhsa_accum_offset {(vg+3)//4*4}\n"
          "  .amdhsa_group_segment_fixed_size 0\n  .amdhsa_kernarg_size 88\n  .amdhsa_user_sgpr_count 2\n"
          "  .amdhsa_user_sgpr_kernarg_segment_ptr 1\n  .amdhsa_system_sgpr_workgroup_id_x 1\n"
          "  .amdhsa_float_denorm_mode_32 3\n"
          ".end_amdhsa_kernel\n")
    head = open("header.txt").read()
    head += f"; @launch grid=(256,1,1) block=(512,1,1) lds={LDS_TOTAL}\n"
    head += '.amdgcn_target "amdgcn-amd-amdhsa--gfx950"\n.text\n'
    open(out, "w").write(head + a.text())
    if OPT["stamp"]:
        import json
        json.dump(STAMPS, open(out + ".stamps.json", "w"))
    print("generated", out, "nops:", a.nops, "vgpr", hi, "lds", LDS_TOTAL)


main()
```

```python
import sys, struct, math
from asmx import Asm, Regs, vr, sr

NAME = "sequential_preLN__sliding_local_dilated__dense_activation_gelu__prompt"
S, D, F = 2048, 1024, 3584
OPT = dict(stamp=0, map1=0, map3=0, ntB=0, ntx=0, rot=1, sleep=1, wsoff=0, mimln=1, mimlg=1)
for a_ in sys.argv[2:]:
    k_, v_ = a_.split("=")
    assert k_ in OPT, k_
    OPT[k_] = int(v_)
WB = OPT["wsoff"] << 20
WS_XN, WS_O, WS_H, WS_H1 = WB, WB + (4 << 20), WB + (8 << 20), WB + (12 << 20)
WS_ST, WS_CS, WS_FL = WB + (28 << 20), WB + (29 << 20), WB + (30 << 20)
SLOT = 49152
LDS_X = 3 * SLOT
L_PAIR = LDS_X
L_ROW = LDS_X + 256
L_CS = L_ROW + 1024
L_B1 = L_CS + 1024
LDS_TOTAL = L_B1 + 1024
PX, PWQKV, PWO, PW1, PB1, PW2, PB2, POUT, PDBG, PWS = 48, 50, 52, 56, 58, 60, 62, 64, 66, 68
NONCE = 74


def f2u(x):
    return struct.unpack("<I", struct.pack("<f", x))[0]


def hexf(x):
    return "0x%08x" % f2u(x)


def srd(a, d, base, off, nbytes):
    if off:
        a(f"s_add_u32 s{d}, s{base}, {off}")
        a(f"s_addc_u32 s{d+1}, s{base+1}, 0")
    else:
        a(f"s_mov_b32 s{d}, s{base}")
        a(f"s_mov_b32 s{d+1}, s{base+1}")
    a(f"s_mov_b32 s{d+2}, {nbytes}")
    a(f"s_mov_b32 s{d+3}, 0x20000")


def round_bf16(a, v):
    a(f"v_cvt_pk_bf16_f32 v{v}, v{v}, v{v}")
    a(f"v_lshlrev_b32 v{v}, 16, v{v}")


def xrow_reduce(a, op, v, t):
    a(f"v_mov_b32 v{t}, v{v}")
    a(f"v_permlane16_swap_b32 v{v}, v{t}")
    a(f"{op} v{v}, v{v}, v{t}")
    a(f"v_mov_b32 v{t}, v{v}")
    a(f"v_permlane32_swap_b32 v{v}, v{t}")
    a(f"{op} v{v}, v{v}, v{t}")


def wave_sum(a, v, t):
    for p in ("quad_perm:[1,0,3,2]", "quad_perm:[2,3,0,1]", "row_half_mirror", "row_mirror"):
        a(f"v_add_f32_dpp v{v}, v{v}, v{v} {p} row_mask:0xf bank_mask:0xf")
    xrow_reduce(a, "v_add_f32", v, t)


STAMPS = {"c": [], "l": []}


def stamp(a, role, name):
    if not OPT["stamp"]:
        return
    if name in STAMPS[role]:
        i = STAMPS[role].index(name)
    else:
        i = len(STAMPS[role])
        STAMPS[role].append(name)
    a("s_memtime s[100:101]")
    a("s_waitcnt lgkmcnt(0)")
    a(f"v_writelane_b32 v254, s100, {i}")
    a("s_memrealtime s[100:101]")
    a("s_waitcnt lgkmcnt(0)")
    a(f"v_writelane_b32 v255, s100, {i}")


def stamp_flush(a, wavereg_off):
    if not OPT["stamp"]:
        return
    a("v_lshlrev_b32 v2, 2, v1")
    a("s_lshl_b32 s100, s2, 3")
    a(f"s_add_u32 s100, s100, s6")
    a(f"s_add_u32 s100, s100, {wavereg_off}")
    a("s_lshl_b32 s100, s100, 9")
    a(f"s_add_u32 s100, s100, {32<<20}")
    a("v_add_u32 v2, s100, v2")
    a(f"global_store_dword v2, v254, s[{PWS}:{PWS+1}]")
    a(f"global_store_dword v2, v255, s[{PWS}:{PWS+1}] offset:256")


class G:
    pass


def phase_cfgs():
    P = {}
    g = G(); P[1] = g
    g.n, g.KS, g.nst, g.halo, g.B448 = 1, 64, 16, True, False
    g.nA, g.nB, g.strideA, g.strideB, g.Boff = 18, 24, 2048, 6144, 24576
    g.A = (PWS, WS_XN, S * D * 2); g.B = (PWQKV, 0, D * 3 * D * 2); g.map = OPT["map1"]
    g = G(); P[2] = g
    g.n, g.KS, g.nst, g.halo, g.B448 = 2, 128, 8, False, False
    g.nA, g.nB, g.strideA, g.strideB, g.Boff = 32, 16, 2048, 2048, 32768
    g.A = (PWS, WS_O, S * D * 2); g.B = (PWO, 0, D * D * 2); g.map = 0
    g = G(); P[3] = g
    g.n, g.KS, g.nst, g.halo, g.B448 = 3, 64, 16, False, True
    g.nA, g.nB, g.strideA, g.strideB, g.Boff = 16, 28, 2048, 7168, 20480
    g.A = (PWS, WS_H, S * D * 2); g.B = (PW1, 0, D * F * 2); g.map = OPT["map3"]
    g = G(); P[4] = g
    g.n, g.KS, g.nst, g.halo, g.B448 = 4, 128, 28, False, False
    g.nA, g.nB, g.strideA, g.strideB, g.Boff = 32, 16, 7168, 2048, 32768
    g.A = (PWS, WS_H1, S * F * 2); g.B = (PW2, 0, F * D * 2); g.map = 0
    s = 0
    for p in (1, 2, 3, 4):
        P[p].slot0 = s % 3
        s += P[p].nst
        P[p].mj = (72, 73) if P[p].map else (70, 71)
    return P


PH = phase_cfgs()


def interleave(a, mf, fillers, first=None):
    n = len(mf)
    fl = list(fillers)
    k = len(fl)
    gaps = list(range(1, n)) if first is not None else list(range(n))
    assert k <= 2 * len(gaps), (k, len(gaps))
    two = max(0, k - len(gaps))
    idx = 0
    cnt = {}
    for gi, g in enumerate(gaps):
        c = 0
        if idx < k:
            c = 2 if gi < two else 1
        cnt[g] = min(c, k - idx)
        idx += cnt[g]
    idx = 0
    for i in range(n):
        a(mf[i])
        if i == 0 and first is not None:
            for f in first:
                a(f)
        for _ in range(cnt.get(i, 0)):
            a(fl[idx])
            idx += 1
    assert idx == k


def get_nonce(a, lab, vt):
    a(f"v_mov_b32 v{vt}, 0")
    a("s_mov_b32 s3, 0x40000")
    a(f"{lab}_nl:")
    a(f"global_load_dwordx2 v[{vt+2}:{vt+3}], v{vt}, s[{PDBG}:{PDBG+1}] sc1")
    a("s_waitcnt vmcnt(0)")
    a(f"v_readfirstlane_b32 s{NONCE}, v{vt+2}")
    a(f"v_readfirstlane_b32 s{NONCE+1}, v{vt+3}")
    a("s_sub_u32 s3, s3, 1")
    a("s_cmp_eq_u32 s3, 0")
    a(f"s_cbranch_scc1 {lab}_nd")
    a(f"s_cmp_eq_u32 s{NONCE}, 0")
    a(f"s_cbranch_scc1 {lab}_nl")
    a(f"{lab}_nd:")


def signal(a, off_sgpr, vt):
    a(f"v_mov_b32 v{vt}, s{off_sgpr}")
    a(f"v_mov_b32 v{vt+2}, s{NONCE}")
    a(f"v_mov_b32 v{vt+3}, s{NONCE+1}")
    a("s_mov_b64 exec, 1")
    a(f"global_store_dwordx2 v{vt}, v[{vt+2}:{vt+3}], s[{PWS}:{PWS+1}] sc1")
    a("s_mov_b64 exec, -1")


def flag_off(a, d, p, g):
    m, j = g.mj
    a(f"s_lshl_b32 s{d}, s{j}, 2")
    a(f"s_add_u32 s{d}, s{d}, s6")
    a(f"s_lshl_b32 s{d}, s{d}, 3")
    a(f"s_lshl_b32 s3, s{m}, 9")
    a(f"s_add_u32 s{d}, s{d}, s3")
    a(f"s_add_u32 s{d}, s{d}, {WS_FL + p*8192}")


def poll(a, lab, vaddrs, vt):
    a("s_mov_b32 s3, 0x40000")
    a(f"{lab}_pl:")
    for i, v in enumerate(vaddrs):
        a(f"global_load_dwordx2 v[{vt+2*i}:{vt+2*i+1}], v{v}, s[{PWS}:{PWS+1}] sc1")
    a("s_waitcnt vmcnt(0)")
    a(f"v_cmp_eq_u64 vcc, s[{NONCE}:{NONCE+1}], v[{vt}:{vt+1}]")
    for i in range(1, len(vaddrs)):
        a(f"v_cmp_eq_u64 s[34:35], s[{NONCE}:{NONCE+1}], v[{vt+2*i}:{vt+2*i+1}]")
        a("s_and_b64 vcc, vcc, s[34:35]")
    a("s_cmp_eq_u64 vcc, -1")
    a(f"s_cbranch_scc1 {lab}_pd")
    if OPT["sleep"]:
        a(f"s_sleep {OPT['sleep']}")
    a("s_sub_u32 s3, s3, 1")
    a("s_cmp_lg_u32 s3, 0")
    a(f"s_cbranch_scc1 {lab}_pl")
    a(f"{lab}_pd:")


def ld_offsets_A(a, g, vA):
    m, j = g.mj
    nAq = (g.nA + 3) // 4
    a(f"s_lshl_b32 s7, s{m}, 7")
    a("s_lshl_b32 s34, s6, 3")
    a("s_add_u32 s7, s7, s34")
    if g.halo:
        a("s_sub_u32 s7, s7, 16")
    a(f"s_mov_b32 s34, {g.strideA}")
    for q in range(nAq):
        sub, rq = (q >> 2, q & 3) if g.KS == 128 else (0, q)
        a("v_add_u32 v5, s7, v2")
        if rq:
            a(f"v_add_u32 v5, {32*rq}, v5")
        if g.halo:
            a("v_max_i32 v5, 0, v5")
        a("v_mul_lo_u32 v5, v5, s34")
        a(f"v_add_u32 v{vA+q}, v5, v4")
        if sub:
            a(f"v_add_u32 v{vA+q}, 128, v{vA+q}")


def ld_offsets_B(a, g, vB):
    m, j = g.mj
    nBq = g.nB // 4
    if g.B448:
        a("s_lshl_b32 s7, s6, 10")
        a("s_mov_b32 s34, 9586981")
        a(f"s_mul_i32 s35, s{j}, 448")
        for q in range(nBq):
            a("v_lshlrev_b32 v5, 4, v1")
            a("v_add_u32 v5, s7, v5")
            if q:
                a(f"v_add_u32 v5, {4096*q}, v5")
            a("v_mul_hi_u32 v6, v5, s34")
            a("v_mul_u32_u24 v7, 448, v6")
            a("v_sub_u32 v5, v5, v7")
            a("v_bfe_u32 v7, v6, 3, 1")
            a("v_lshlrev_b32 v7, 5, v7")
            a("v_xor_b32 v5, v5, v7")
            a("v_mul_u32_u24 v6, 7168, v6")
            a("v_add3_u32 v%d, v5, v6, s35" % (vB + q))
    else:
        a("v_bfe_u32 v5, v1, 4, 1")
        a("s_and_b32 s7, s6, 1")
        a("s_lshl_b32 s7, s7, 1")
        a("v_or_b32 v5, s7, v5")
        a("v_lshlrev_b32 v5, 1, v5")
        a("v_xor_b32 v5, v3, v5")
        a("v_lshlrev_b32 v5, 4, v5")
        a(f"s_lshl_b32 s7, s{j}, 7")
        a("v_add_u32 v5, s7, v5")
        a("s_lshl_b32 s7, s6, 3")
        a("v_add_u32 v6, s7, v2")
        a(f"v_mul_u32_u24 v6, {g.strideB}, v6")
        a("v_add_u32 v5, v5, v6")
        for q in range(nBq):
            if g.halo:
                off = (q >> 1) * 2048 + (q & 1) * 32 * g.strideB
            else:
                off = q * 32 * g.strideB
            a(f"v_add_u32 v{vB+q}, {off}, v5")


def rot_start(a, g, d):
    m, j = g.mj
    if not OPT["rot"]:
        a(f"s_mov_b32 s{d}, 0")
    elif g.map:
        assert g.nst == 16
        a(f"s_mov_b32 s{d}, s{m}")
    else:
        a(f"s_and_b32 s{d}, s{m}, 7")
        if g.nst == 16:
            a(f"s_lshl_b32 s{d}, s{d}, 1")
        elif g.nst == 28:
            a(f"s_mul_i32 s{d}, s{d}, 7")
            a(f"s_lshr_b32 s{d}, s{d}, 1")


class Stream:
    def __init__(self, g, isA, srd_, vbase, so, st, lb, sl):
        self.g, self.isA, self.srd, self.v, self.so, self.st, self.lb, self.sl = g, isA, srd_, vbase, so, st, lb, sl
        self.step = g.KS * 2 if isA else g.KS * g.strideB

    def init(self, a):
        g = self.g
        rot_start(a, g, self.st)
        a(f"s_mul_i32 s{self.so}, s{self.st}, {self.step}")
        a(f"s_lshl_b32 s{self.lb}, s6, 10")
        off = g.slot0 * SLOT + (0 if self.isA else g.Boff)
        if off:
            a(f"s_add_u32 s{self.lb}, s{self.lb}, {off}")
        a(f"s_mov_b32 s{self.sl}, {g.slot0}")

    def loads(self, n, pre=False):
        fl = "sc1" if self.isA else ("nt" if (OPT["ntB"] == 1 or (OPT["ntB"] == 2 and pre)) else "")
        return [(f"s_add_u32 m0, s{self.lb}, {q*4096}",
                 f"buffer_load_dwordx4 v{self.v+q}, s[{self.srd}:{self.srd+3}], s{self.so} offen {fl} lds") for q in range(n)]

    def advance(self, a):
        a(f"s_add_u32 s{self.so}, s{self.so}, {self.step}")
        a(f"s_add_u32 s{self.st}, s{self.st}, 1")
        a(f"s_cmp_eq_u32 s{self.st}, {self.g.nst}")
        a(f"s_cselect_b32 s{self.st}, 0, s{self.st}")
        a(f"s_cselect_b32 s{self.so}, 0, s{self.so}")
        a(f"s_add_u32 s{self.lb}, s{self.lb}, {SLOT}")
        a(f"s_add_u32 s{self.sl}, s{self.sl}, 1")
        a(f"s_cmp_eq_u32 s{self.sl}, 3")
        a(f"s_cselect_b32 s7, {3*SLOT}, 0")
        a(f"s_cselect_b32 s{self.sl}, 0, s{self.sl}")
        a(f"s_sub_u32 s{self.lb}, s{self.lb}, s7")


def issue(a, items, pre=False):
    ls = [s.loads(n, pre) for (s, n) in items]
    for q in range(max(len(x) for x in ls)):
        for x in ls:
            if q < len(x):
                a(x[q][0])
                a(x[q][1])
    for (s, n) in items:
        s.advance(a)


def gen_loader(a):
    a("LOADER:")
    a.hist = []
    a("s_sub_u32 s6, s6, 4")
    a("s_or_b32 s3, s2, s6")
    a("s_cmp_lg_u32 s3, 0")
    a("s_cbranch_scc1 LD_nopub")
    a("s_memrealtime s[34:35]")
    a("v_mov_b32 v2, 0")
    a("s_waitcnt lgkmcnt(0)")
    a("s_or_b32 s34, s34, 1")
    a("v_mov_b32 v4, s34")
    a("v_mov_b32 v5, s35")
    a("s_mov_b64 exec, 1")
    a(f"global_store_dwordx2 v2, v[4:5], s[{PDBG}:{PDBG+1}] sc1")
    a("s_mov_b64 exec, -1")
    a("LD_nopub:")
    stamp(a, "l", "start")
    a("v_lshrrev_b32 v2, 3, v1")
    a("v_and_b32 v3, 7, v1")
    a("s_and_b32 s3, s6, 1")
    a("s_lshl_b32 s7, s3, 2")
    a("v_lshrrev_b32 v4, 4, v1")
    a("v_or_b32 v4, s7, v4")
    a("v_xor_b32 v4, v3, v4")
    a("v_lshlrev_b32 v4, 4, v4")
    vA, vBs, VT = 8, [16, 24], 32
    srdB = [12, 16]
    regsB = [(36, 37, 38, 39), (40, 41, 42, 43)]
    regsA = (20, 21, 22, 23)
    SB = {}
    for p in (1, 2, 3, 4):
        SB[p] = Stream(PH[p], False, srdB[p & 1], vBs[p & 1], *regsB[p & 1])

    def prepB(p):
        g = PH[p]
        srd(a, SB[p].srd, *g.B)
        ld_offsets_B(a, g, SB[p].v)
        SB[p].init(a)

    prepB(1)
    for i in range(3):
        issue(a, [(SB[1], PH[1].nB // 4)], True)
    for p in (1, 2, 3, 4):
        g = PH[p]
        P = f"LD{p}"
        m, j = g.mj
        SA = Stream(g, True, 8, vA, *regsA)
        srd(a, 8, *g.A)
        ld_offsets_A(a, g, vA)
        SA.init(a)
        if p < 4:
            prepB(p + 1)
        stamp(a, "l", f"p{p}_prepoll")
        if p == 1 or p == 3:
            if p == 1:
                get_nonce(a, P, VT)
        a("s_cmp_lg_u32 s6, 0")
        a(f"s_cbranch_scc1 {P}_f")
        a(f"s_lshl_b32 s3, s{m}, 9")
        a(f"s_add_u32 s3, s3, {WS_FL + (p-1)*8192}")
        a(f"v_lshlrev_b32 v{VT}, 3, v1")
        a(f"v_add_u32 v{VT}, s3, v{VT}")
        addrs = [VT]
        if p == 1:
            a(f"v_or_b32 v{VT+1}, 56, v1")
            a(f"v_lshlrev_b32 v{VT+1}, 3, v{VT+1}")
            a(f"s_cmp_eq_u32 s{m}, 0")
            a("s_cselect_b32 s7, 0, 512")
            a("s_sub_u32 s3, s3, s7")
            a(f"v_add_u32 v{VT+1}, s3, v{VT+1}")
            addrs.append(VT + 1)
        poll(a, P, addrs, VT + 2)
        a(f"{P}_f:")
        stamp(a, "l", f"p{p}_polled")
        a("s_barrier")
        nBq = g.nB // 4
        nAq = (g.nA + 3) // 4
        variants = [(nAq, "")]
        if g.nA % 4:
            variants = [(nAq, "x"), (nAq - 1, "y")]
            a(f"s_cmp_ge_u32 s6, {g.nA % 4}")
            a(f"s_cbranch_scc1 {P}_y")
        for (na, sfx) in variants:
            if sfx == "y":
                a(f"{P}_y:")
            c = na + nBq
            for i in range(3):
                issue(a, [(SA, na)])
            a(f"s_waitcnt vmcnt({2*na})")
            a("s_barrier")
            both = [(SB[p], nBq), (SA, na)]

            def loop(tag, cnt):
                a(f"s_mov_b32 s44, {cnt}")
                a(f"{P}_l{tag}{sfx}:")
                issue(a, both)
                a(f"s_waitcnt vmcnt({c})")
                a("s_barrier")
                a("s_sub_u32 s44, s44, 1")
                a("s_cmp_lg_u32 s44, 0")
                a(f"s_cbranch_scc1 {P}_l{tag}{sfx}")

            if p != 3:
                a(f"s_waitcnt vmcnt({na})")
                a("s_barrier")
                loop("a", g.nst - 3)
            else:
                gen_p3_loader_body(a, g, both, c, na, loop, VT)
            if p < 4:
                nb2 = PH[p + 1].nB // 4
                issue(a, [(SB[p + 1], nb2)], True)
                a(f"s_waitcnt vmcnt({nb2})")
                a("s_barrier")
                issue(a, [(SB[p + 1], nb2)], True)
                a("s_barrier")
                issue(a, [(SB[p + 1], nb2)], True)
            else:
                a("s_waitcnt vmcnt(0)")
                a("s_barrier")
                a("s_barrier")
            if sfx == "x":
                a(f"s_branch {P}_e")
        a(f"{P}_e:")
    stamp(a, "l", "end")
    stamp_flush(a, 4)
    a("s_endpgm")


def gen_p3_loader_body(a, g, both, c, na, loop, VT):
    m, j = g.mj
    nsh = 16 if g.map else 8
    nstg = 1 if (g.map or not OPT["rot"]) else 2
    ACC, WF, ONE, AD = 64, 96, 128, 132
    b, t = 133, 134
    a(f"v_and_b32 v{t}, 15, v1")
    a(f"v_lshrrev_b32 v{AD}, 2, v{t}")
    a(f"v_lshrrev_b32 v{b}, 4, v1")
    a(f"v_lshl_add_u32 v{AD}, v{b}, 3, v{AD}")
    a(f"v_mul_u32_u24 v{AD}, 448, v{AD}")
    a(f"v_and_b32 v{t}, 3, v1")
    a(f"v_lshl_add_u32 v{AD}, v{t}, 3, v{AD}")
    a(f"v_and_b32 v{b}, 1, v{b}")
    a(f"v_lshlrev_b32 v{b}, 5, v{b}")
    a("s_and_b32 s3, s6, 1")
    a("s_cmp_eq_u32 s3, 0")
    a("s_cselect_b32 s3, 1, -1")
    a(f"v_mul_lo_u32 v{b}, v{b}, s3")
    a(f"v_add_u32 v{AD}, v{AD}, v{b}")
    a("s_lshl_b32 s3, s6, 5")
    a(f"s_add_u32 s3, s3, {g.slot0*SLOT + g.Boff}")
    a(f"v_add_u32 v{AD}, s3, v{AD}")
    for i in range(4):
        a(f"v_mov_b32 v{ONE+i}, 0x3f803f80")
    for i in range(16):
        a(f"v_mov_b32 v{ACC+i}, 0")

    def cs_step():
        for h in range(2):
            for i in range(4):
                for jj in range(2):
                    a(f"ds_read_b64_tr_b16 {vr(WF+16*h+4*i+2*jj,2)}, v{AD} offset:{i*128+jj*1792+h*14336}")
            a("s_waitcnt lgkmcnt(0)")
        for h in range(2):
            for i in range(4):
                a(f"v_mfma_f32_16x16x32_bf16 {vr(ACC+4*i,4)}, {vr(WF+16*h+4*i,4)}, {vr(ONE,4)}, {vr(ACC+4*i,4)}")

    if not OPT["rot"]:
        raise SystemExit("rot=0 needs another colsum scheme")
    cs_step()
    a(f"s_waitcnt vmcnt({na})")
    a("s_barrier")
    issue(a, both)
    if nstg == 2:
        d = SLOT if g.slot0 < 2 else -2 * SLOT
        a(f"v_add_u32 v{AD}, {d & 0xffffffff}, v{AD}")
        cs_step()
    srd(a, 24, PWS, WS_CS, 16 * F * 4)
    a(f"v_lshrrev_b32 v{t}, 4, v1")
    a(f"v_lshlrev_b32 v{t}, 4, v{t}")
    a(f"s_mul_i32 s3, s{m}, {F*4}")
    a(f"s_mul_i32 s7, s{j}, 896")
    a("s_add_u32 s3, s3, s7")
    a("s_lshl_b32 s7, s6, 6")
    a("s_add_u32 s3, s3, s7")
    a(f"v_add_u32 v{t}, s3, v{t}")
    a(f"v_and_b32 v{b}, 15, v1")
    a(f"v_cmp_eq_u32 vcc, 0, v{b}")
    a(f"v_mov_b32 v{b}, 0x7ffffff0")
    a(f"v_cndmask_b32 v{t}, v{b}, v{t}, vcc")
    a("s_cmp_ge_u32 s6, 2")
    a("s_cselect_b32 s3, 0x7ffffff0, 0")
    a(f"v_max_u32 v{b}, s3, v{t}")
    for i in range(4):
        a(f"buffer_store_dwordx4 {vr(ACC+4*i,4)}, v{t if i < 3 else b}, s[24:27], 0 offen offset:{i*256} sc1")
    a(f"s_waitcnt vmcnt({c+4})")
    a("s_barrier")
    issue(a, both)
    a(f"s_waitcnt vmcnt({c})")
    a(f"s_lshl_b32 s7, s{m}, 2")
    a("s_add_u32 s7, s7, s6")
    a("s_lshl_b32 s7, s7, 3")
    a(f"s_lshl_b32 s3, s{j}, 9")
    a("s_add_u32 s7, s7, s3")
    a(f"s_add_u32 s7, s7, {WS_FL + 32768}")
    signal(a, 7, VT)
    a("s_barrier")
    loop("a", 6)
    a(f"v_lshlrev_b32 v{VT}, 3, v1")
    a(f"s_lshl_b32 s3, s{j}, 9")
    a(f"s_add_u32 s3, s3, {WS_FL + 32768}")
    if nsh == 8:
        a(f"v_and_b32 v{VT}, 0xff, v{VT}")
        a(f"s_and_b32 s7, s{m}, 8")
        a("s_lshl_b32 s7, s7, 5")
        a("s_add_u32 s3, s3, s7")
    a(f"v_add_u32 v{VT}, s3, v{VT}")
    a(f"global_load_dwordx2 v[{VT+2}:{VT+3}], v{VT}, s[{PWS}:{PWS+1}] sc1")
    issue(a, both)
    a(f"s_waitcnt vmcnt({c})")
    a(f"v_cmp_eq_u64 vcc, s[{NONCE}:{NONCE+1}], v[{VT+2}:{VT+3}]")
    a("s_cmp_eq_u64 vcc, -1")
    a("s_cbranch_scc1 LD3_csok")
    poll(a, "LD3cs", [VT], VT + 2)
    a("LD3_csok:")
    a("s_barrier")
    srd(a, 28, PB1, 0, F * 2)
    a("s_lshl_b32 s3, s6, 6")
    a(f"v_add_u32 v{t}, s3, v1")
    a(f"v_cmp_gt_u32 vcc, 224, v{t}")
    a(f"v_lshlrev_b32 v{AD}, 2, v{t}")
    a(f"s_mul_i32 s3, s{j}, 896")
    a(f"v_add_u32 v{t}, s3, v{AD}")
    a(f"v_mov_b32 v{b}, 0x7ffffff0")
    a(f"v_cndmask_b32 v{t}, v{b}, v{t}, vcc")
    if nsh == 8:
        a(f"s_and_b32 s3, s{m}, 8")
        a(f"s_mul_i32 s3, s3, {F*4}")
    else:
        a("s_mov_b32 s3, 0")
    for i in range(nsh):
        a(f"buffer_load_dword v{ACC+i}, v{t}, s[24:27], s3 offen sc1")
        if i < nsh - 1:
            a(f"s_add_u32 s3, s3, {F*4}")
    a(f"v_lshrrev_b32 v{b}, 1, v{t}")
    a(f"buffer_load_ushort v{b}, v{b}, s[28:31], 0 offen")
    issue(a, both)
    a(f"s_waitcnt vmcnt({c})")
    for i in range(1, nsh):
        a(f"v_add_f32 v{ACC}, v{ACC}, v{ACC+i}")
    a(f"v_lshlrev_b32 v{b}, 16, v{b}")
    a(f"v_add_u32 v{AD}, {L_CS}, v{AD}")
    a(f"ds_write_b32 v{AD}, v{ACC}")
    a(f"ds_write_b32 v{AD}, v{b} offset:1024")
    a("s_waitcnt lgkmcnt(0)")
    a("s_barrier")
    loop("b", g.nst - 2 - 11)


def gen_mainloop(a, g, P):
    a(f"s_mov_b32 s42, {g.slot0}")
    a(f"s_mov_b32 s46, {(-2*SLOT) & 0xffffffff}")
    a(f"s_mov_b32 s47, {SLOT}")
    a(f"s_mov_b32 s43, {g.nst}")
    a("s_waitcnt lgkmcnt(0)")
    a("s_barrier")
    stamp(a, "c", f"p{g.n}_B0")
    for r in g.reads(0, 0):
        a(r)
    a(f"{P}_loop:")
    sal = ["s_cmp_eq_u32 s42, 2", "s_cselect_b32 s44, s46, s47",
           "s_add_u32 s42, s42, 1", "s_cmp_eq_u32 s42, 3", "s_cselect_b32 s42, 0, s42"]
    a("s_waitcnt lgkmcnt(0)")
    interleave(a, g.mfmas(0), g.reads(1, 1) + sal + [f"v_add_u32 v{v}, s44, v{v}" for v in g.adv[0]])
    a("s_waitcnt lgkmcnt(0)")
    interleave(a, g.mfmas(1), g.reads(0, 0) + [f"v_add_u32 v{v}, s44, v{v}" for v in g.adv[1]] +
               ["s_sub_u32 s43, s43, 1", "s_cmp_lg_u32 s43, 0"], first=["s_barrier"])
    a(f"s_cbranch_scc1 {P}_loop")
    a("s_waitcnt lgkmcnt(0)")
    stamp(a, "c", f"p{g.n}_loopend")


L15, GQ = 2, 3


def a_addr(a, V, srow, const):
    regs = []
    t = V.alloc()
    for h in range(2):
        v = V.alloc()
        a(f"v_lshrrev_b32 v{t}, 1, v{L15}")
        a(f"v_xor_b32 v{t}, v{t}, v{GQ}")
        if h:
            a(f"v_xor_b32 v{t}, 4, v{t}")
        a(f"v_lshlrev_b32 v{t}, 4, v{t}")
        a(f"v_lshl_add_u32 v{v}, v{L15}, 7, v{t}")
        if srow is not None:
            a(f"v_add_u32 v{v}, s{srow}, v{v}")
        if const:
            a(f"v_add_u32 v{v}, {const}, v{v}")
        regs.append(v)
    return regs


def b_addr128(a, V, units, sbase):
    t = V.alloc()
    f = V.alloc()
    base = V.alloc()
    a(f"v_bfe_u32 v{f}, v{L15}, 3, 1")
    a(f"v_and_b32 v{t}, 1, v{GQ}")
    a(f"v_lshl_or_b32 v{f}, v{t}, 1, v{f}")
    a(f"v_lshrrev_b32 v{t}, 2, v{L15}")
    a(f"v_lshl_add_u32 v{t}, v{GQ}, 3, v{t}")
    a(f"v_lshlrev_b32 v{base}, 7, v{t}")
    a(f"v_and_b32 v{t}, 3, v{L15}")
    a(f"v_lshl_add_u32 v{base}, v{t}, 3, v{base}")
    a(f"v_add_u32 v{base}, s{sbase}, v{base}")
    out = [[], []]
    for u in units:
        v0 = V.alloc()
        v1 = V.alloc()
        a(f"v_xor_b32 v{t}, {u}, v{f}")
        a(f"v_lshl_add_u32 v{v0}, v{t}, 5, v{base}")
        a(f"v_add_u32 v{v1}, 4096, v{v0}")
        out[0].append(v0)
        out[1].append(v1)
    return out


def zero_acc(a, acc, n):
    for i in range(n):
        a(f"v_mov_b32 v{acc+i}, 0")


def pair_sync(a, lab, tag, xor, vt):
    a("s_lshl_b32 s3, s6, 2")
    a(f"s_add_u32 s3, s3, {L_PAIR}")
    a(f"v_mov_b32 v{vt}, s3")
    a(f"v_mov_b32 v{vt+1}, {tag}")
    a("s_waitcnt lgkmcnt(0)")
    a(f"ds_write_b32 v{vt}, v{vt+1}")
    a(f"v_xor_b32 v{vt}, {xor*4}, v{vt}")
    a(f"{lab}_ps:")
    a(f"ds_read_b32 v{vt+1}, v{vt}")
    a("s_waitcnt lgkmcnt(0)")
    a(f"v_readfirstlane_b32 s3, v{vt+1}")
    a(f"s_cmp_lg_u32 s3, {tag}")
    a(f"s_cbranch_scc1 {lab}_ps")


def finish_phase(a, p, g, vt):
    flag_off(a, 7, p, g)
    a("s_waitcnt vmcnt(0)")
    signal(a, 7, vt)
    stamp(a, "c", f"p{p}_done")


def gen_p0(a):
    g = PH[1]
    m, j = g.mj
    srd(a, 8, PX, 0, S * D * 2)
    srd(a, 16, PWS, WS_XN, S * D * 2)
    a(f"s_lshl_b32 s3, s{m}, 7")
    a(f"s_lshl_b32 s7, s{j}, 3")
    a("s_add_u32 s3, s3, s7")
    a("s_lshl_b32 s7, s6, 1")
    a("s_add_u32 s3, s3, s7")
    a("s_lshl_b32 s3, s3, 11")
    a("v_lshlrev_b32 v4, 4, v1")
    a("v_add_u32 v4, s3, v4")
    fl = "nt" if OPT["ntx"] else ""
    for rr in range(2):
        for hh in range(2):
            a(f"buffer_load_dwordx4 v[{8+rr*8+hh*4}:{11+rr*8+hh*4}], v4, s[8:11], 0 offen offset:{rr*2048+hh*1024} {fl}")
    a("s_lshl_b32 s3, s6, 2")
    a(f"s_add_u32 s3, s3, {L_PAIR}")
    a("v_mov_b32 v5, s3")
    a("v_mov_b32 v6, 0")
    a("ds_write_b32 v5, v6")
    for rr in range(2):
        a(f"s_waitcnt vmcnt(2)")
        src = 8 + rr * 8
        for i in range(8):
            a(f"v_lshlrev_b32 v{24+2*i}, 16, v{src+i}")
            a(f"v_and_b32 v{25+2*i}, 0xffff0000, v{src+i}")
        a("v_add_f32 v40, v24, v25")
        for i in range(2, 16):
            a(f"v_add_f32 v40, v40, v{24+i}")
        wave_sum(a, 40, 41)
        a(f"v_mul_f32 v40, {hexf(1.0/1024)}, v40")
        a("v_sub_f32 v43, v24, v40")
        a("v_mul_f32 v42, v43, v43")
        for i in range(1, 16):
            a(f"v_sub_f32 v43, v{24+i}, v40")
            a("v_fmac_f32 v42, v43, v43")
        wave_sum(a, 42, 41)
        a(f"v_mul_f32 v42, {hexf(1.0/1024)}, v42")
        round_bf16(a, 40)
        round_bf16(a, 42)
        a(f"v_add_f32 v42, {hexf(1e-5)}, v42")
        round_bf16(a, 42)
        a("v_sqrt_f32 v42, v42")
        round_bf16(a, 42)
        a("v_rcp_f32 v42, v42")
        for i in range(8):
            a(f"v_sub_f32 v{24+2*i}, v{24+2*i}, v40")
            a(f"v_sub_f32 v{25+2*i}, v{25+2*i}, v40")
            if OPT["mimln"]:
                a(f"v_cvt_pk_bf16_f32 v43, v{24+2*i}, v{25+2*i}")
                a(f"v_lshlrev_b32 v44, 16, v43")
                a(f"v_and_b32 v45, 0xffff0000, v43")
                a(f"v_mul_f32 v44, v44, v42")
                a(f"v_mul_f32 v45, v45, v42")
            else:
                a(f"v_mul_f32 v44, v{24+2*i}, v42")
                a(f"v_mul_f32 v45, v{25+2*i}, v42")
            a(f"v_cvt_pk_bf16_f32 v{48+rr*8+i}, v44, v45")
        for hh in range(2):
            a(f"buffer_store_dwordx4 v[{48+rr*8+hh*4}:{51+rr*8+hh*4}], v4, s[16:19], 0 offen offset:{rr*2048+hh*1024} sc1")
    get_nonce(a, "P0", 8)
    finish_phase(a, 0, g, 8)


def gen_p1(a):
    g = PH[1]
    m, j = g.mj
    V = Regs("v", 4, 254)
    srd(a, 16, PWS, WS_O, S * D * 2)
    a("s_and_b32 s34, s6, 1")
    a("s_lshr_b32 s35, s6, 1")
    a("s_lshl_b32 s36, s34, 13")
    vA = a_addr(a, V, 36, 2048 + g.slot0 * SLOT)
    vAh = a_addr(a, V, None, g.slot0 * SLOT)
    a(f"s_mov_b32 s36, {g.Boff + g.slot0*SLOT}")
    a("s_lshl_b32 s37, s35, 1")
    a("s_add_u32 s38, s37, 1")
    vB = b_addr128(a, V, ["s37", "s38"], 36)
    acc = V.alloc(104, 4)
    X = [V.alloc(20, 4) for _ in range(2)]
    W = [V.alloc(24, 4) for _ in range(2)]
    accr = lambda t, u: acc + (t * 4 + u) * 4
    acch = lambda c: acc + 96 + c * 4
    zero_acc(a, acc, 104)

    def reads(h, b):
        r = []
        for u in range(4):
            r.append(f"ds_read_b128 {vr(X[b]+4*u,4)}, v{vA[h]} offset:{u*2048}")
        for t in range(6):
            for jj in range(2):
                r.append(f"ds_read_b64_tr_b16 {vr(W[b]+4*t+2*jj,2)}, v{vB[h][t&1]} offset:{(t>>1)*8192+jj*512}")
            if t == 1:
                r.append(f"ds_read_b128 {vr(X[b]+16,4)}, v{vAh[h]}")
        return r

    def mk_mfmas(rsel):
        def mfmas(b):
            ml = []
            for t in range(6):
                for u in range(4):
                    w, x, d = vr(W[b] + 4 * t, 4), vr(X[b] + 4 * u, 4), vr(accr(t, u), 4)
                    ml.append(f"v_mfma_f32_16x16x32_bf16 {d}, {w}, {x}, {d}" if t < 4 else
                              f"v_mfma_f32_16x16x32_bf16 {d}, {x}, {w}, {d}")
                if (t >> 1) == 1 + rsel:
                    w, x, d = vr(W[b] + 4 * t, 4), vr(X[b] + 16, 4), vr(acch(t & 1), 4)
                    ml.append(f"v_mfma_f32_16x16x32_bf16 {d}, {w}, {x}, {d}" if t < 4 else
                              f"v_mfma_f32_16x16x32_bf16 {d}, {x}, {w}, {d}")
            return ml
        return mfmas

    g.reads = reads
    g.adv = [[vA[0], vAh[0]] + vB[0], [vA[1], vAh[1]] + vB[1]]
    a("s_waitcnt lgkmcnt(0)")
    a("s_barrier")
    a("s_cmp_eq_u32 s34, 1")
    a("s_cbranch_scc1 P1_r1")
    g.mfmas = mk_mfmas(0)
    gen_mainloop(a, g, "P1a")
    a("s_branch P1_epi")
    a("P1_r1:")
    g.mfmas = mk_mfmas(1)
    gen_mainloop(a, g, "P1b")
    a("P1_epi:")
    a("s_nop 7")
    Qf = X[0]
    Kf = W[0]
    Vp = [W[1], W[1] + 12]
    Hp = X[1]
    for c in range(2):
        a(f"v_cvt_pk_bf16_f32 v{Hp+2*c}, v{acch(c)}, v{acch(c)+1}")
        a(f"v_cvt_pk_bf16_f32 v{Hp+2*c+1}, v{acch(c)+2}, v{acch(c)+3}")
    for u in (3, 2, 1, 0):
        for c in range(2):
            a(f"v_cvt_pk_bf16_f32 v{Kf+4*(u+1)+2*c}, v{accr(2+c,u)}, v{accr(2+c,u)+1}")
            a(f"v_cvt_pk_bf16_f32 v{Kf+4*(u+1)+2*c+1}, v{accr(2+c,u)+2}, v{accr(2+c,u)+3}")
            a(f"v_cvt_pk_bf16_f32 v{Vp[c]+2*(u+1)}, v{accr(4+c,u)}, v{accr(4+c,u)+1}")
            a(f"v_cvt_pk_bf16_f32 v{Vp[c]+2*(u+1)+1}, v{accr(4+c,u)+2}, v{accr(4+c,u)+3}")
            a(f"v_cvt_pk_bf16_f32 v{Qf+4*u+2*c}, v{accr(c,u)}, v{accr(c,u)+1}")
            a(f"v_cvt_pk_bf16_f32 v{Qf+4*u+2*c+1}, v{accr(c,u)+2}, v{accr(c,u)+3}")
    ex = X[1] + 4
    a(f"v_lshlrev_b32 v{ex}, 4, v1")
    a("s_mul_i32 s36, s35, 3072")
    a(f"v_add_u32 v{ex}, s36, v{ex}")
    a("s_cmp_eq_u32 s34, 1")
    a("s_cbranch_scc1 P1_ex1")
    a(f"ds_write_b128 v{ex}, {vr(Kf+16,4)}")
    for c in range(2):
        a(f"ds_write_b64 v{ex}, {vr(Vp[c]+8,2)} offset:{1024+8*c}")
    for i in range(4):
        a(f"v_mov_b32 v{Kf+i}, v{Hp+i}")
    pair_sync(a, "P1a", 1, 1, X[1] + 6)
    for c in range(2):
        a(f"ds_read_b64 {vr(Vp[c],2)}, v{ex} offset:{2048+8*c}")
    a("s_branch P1_ex2")
    a("P1_ex1:")
    a(f"ds_write_b128 v{ex}, {vr(Hp,4)} offset:2048")
    pair_sync(a, "P1b", 1, 1, X[1] + 6)
    a(f"ds_read_b128 {vr(Kf,4)}, v{ex}")
    for c in range(2):
        a(f"ds_read_b64 {vr(Vp[c],2)}, v{ex} offset:{1024+8*c}")
    a("P1_ex2:")
    MK, MK0 = 76, 92
    t0, t1 = acc, acc + 1
    a(f"v_lshlrev_b32 v{t0}, 2, v{GQ}")
    a(f"v_sub_u32 v{t0}, v{L15}, v{t0}")
    for blk in range(2):
        for r in range(4):
            sp = MK + 2 * (blk * 4 + r)
            off = (16 if blk == 0 else 0) - r
            a(f"v_add_u32 v{t1}, {off}, v{t0}")
            a(f"v_and_b32 v{t1}, 0xfffffff1, v{t1}")
            a(f"v_cmp_eq_u32 s[{sp}:{sp+1}], 0, v{t1}")
    a(f"s_or_b32 s36, s{m}, s34")
    a("s_cmp_eq_u32 s36, 0")
    for r in range(4):
        a(f"s_cselect_b64 s[{MK0+2*r}:{MK0+2*r+1}], 0, s[{MK+2*r}:{MK+2*r+1}]")
    vo = acc + 2
    a(f"s_lshl_b32 s36, s{m}, 7")
    a("s_lshl_b32 s37, s34, 6")
    a("s_add_u32 s36, s36, s37")
    a(f"v_add_u32 v{vo}, s36, v{L15}")
    a(f"v_lshlrev_b32 v{vo}, 11, v{vo}")
    a(f"v_and_b32 v{t0}, 1, v{GQ}")
    a(f"v_lshl_add_u32 v{vo}, v{t0}, 5, v{vo}")
    a(f"v_lshrrev_b32 v{t0}, 1, v{GQ}")
    a(f"v_lshl_add_u32 v{vo}, v{t0}, 4, v{vo}")
    a(f"s_lshl_b32 s36, s{j}, 7")
    a("s_lshl_b32 s37, s35, 6")
    a("s_add_u32 s36, s36, s37")
    a(f"v_add_u32 v{vo}, s36, v{vo}")
    NEG = acc + 3
    a(f"v_mov_b32 v{NEG}, 0xff800000")
    a("s_waitcnt lgkmcnt(0)")
    Sc = acc + 8
    for u in range(4):
        for blk in range(2):
            a(f"v_mfma_f32_16x16x32_bf16 {vr(Sc+8*u+4*blk,4)}, {vr(Kf+4*(u+blk),4)}, {vr(Qf+4*u,4)}, 0")
    Om = acc + 48
    Pp = acc + 84
    mx, tm, sm = acc + 4, acc + 5, acc + 6
    a(f"s_mov_b32 s37, {hexf(32 ** -0.5)}")
    a(f"s_mov_b32 s38, {hexf(math.log2(math.e))}")
    for u in range(4):
        s = Sc + 8 * u
        for i in range(0, 8, 2):
            if not OPT["mimlg"]:
                a(f"v_mul_f32 v{s+i}, s37, v{s+i}")
                a(f"v_mul_f32 v{s+i+1}, s37, v{s+i+1}")
                continue
            a(f"v_cvt_pk_bf16_f32 v{tm}, v{s+i}, v{s+i+1}")
            a(f"v_lshlrev_b32 v{s+i}, 16, v{tm}")
            a(f"v_and_b32 v{s+i+1}, 0xffff0000, v{tm}")
            a(f"v_mul_f32 v{s+i}, s37, v{s+i}")
            a(f"v_mul_f32 v{s+i+1}, s37, v{s+i+1}")
            a(f"v_cvt_pk_bf16_f32 v{tm}, v{s+i}, v{s+i+1}")
            a(f"v_lshlrev_b32 v{s+i}, 16, v{tm}")
            a(f"v_and_b32 v{s+i+1}, 0xffff0000, v{tm}")
        for i in range(8):
            sp = (MK0 + 2 * i) if (u == 0 and i < 4) else (MK + 2 * i)
            a(f"v_cndmask_b32 v{s+i}, v{NEG}, v{s+i}, s[{sp}:{sp+1}]")
        a(f"v_max3_f32 v{mx}, v{s}, v{s+1}, v{s+2}")
        a(f"v_max3_f32 v{mx}, v{mx}, v{s+3}, v{s+4}")
        a(f"v_max3_f32 v{mx}, v{mx}, v{s+5}, v{s+6}")
        a(f"v_max_f32 v{mx}, v{mx}, v{s+7}")
        xrow_reduce(a, "v_max_f32", mx, tm)
        a(f"v_mul_f32 v{mx}, s38, v{mx}")
        for i in range(8):
            a(f"v_fma_f32 v{s+i}, v{s+i}, s38, -v{mx}")
        for i in range(8):
            a(f"v_exp_f32 v{s+i}, v{s+i}")
        a(f"v_add_f32 v{sm}, v{s}, v{s+1}")
        for i in range(2, 8):
            a(f"v_add_f32 v{sm}, v{sm}, v{s+i}")
        xrow_reduce(a, "v_add_f32", sm, tm)
        a(f"v_rcp_f32 v{sm}, v{sm}")
        for i in range(8):
            a(f"v_mul_f32 v{s+i}, v{s+i}, v{sm}")
        for i in range(4):
            a(f"v_cvt_pk_bf16_f32 v{Pp+4*u+i}, v{s+2*i}, v{s+2*i+1}")
        for c in range(2):
            a(f"v_mfma_f32_16x16x32_bf16 {vr(Om+8*u+4*c,4)}, {vr(Vp[c]+2*u,4)}, {vr(Pp+4*u,4)}, 0")
    for u in range(4):
        o = Om + 8 * u
        p = Sc + 4 * u
        for i in range(4):
            a(f"v_cvt_pk_bf16_f32 v{p+i}, v{o+2*i}, v{o+2*i+1}")
        a(f"v_permlane16_swap_b32 v{p}, v{p+2}")
        a(f"v_permlane16_swap_b32 v{p+1}, v{p+3}")
        a(f"s_mov_b32 s36, {u*16*2048}")
        a(f"buffer_store_dwordx4 {vr(p,4)}, v{vo}, s[16:19], s36 offen sc1")
    stamp(a, "c", "p1_stored")
    finish_phase(a, 1, g, acc + 40)
    return V.hi


def gen_p24(a, which):
    g = PH[which]
    m, j = g.mj
    k2 = which == 2
    P = f"P{which}"
    V = Regs("v", 4, 254)
    if k2:
        srd(a, 16, PWS, WS_H, S * D * 2)
        srd(a, 20, PX, 0, S * D * 2)
        srd(a, 24, PWS, WS_ST, S * 16 * 8)
    else:
        srd(a, 16, POUT, 0, S * D * 2)
        srd(a, 20, PWS, WS_H, S * D * 2)
        srd(a, 24, PB2, 0, D * 2)
    a("s_and_b32 s34, s6, 1")
    a("s_lshr_b32 s35, s6, 1")
    a("s_lshl_b32 s36, s34, 13")
    a("s_lshl_b32 s37, s35, 14")
    a("s_add_u32 s36, s36, s37")
    vA = a_addr(a, V, 36, g.slot0 * SLOT)
    a("s_lshl_b32 s36, s35, 13")
    a(f"s_add_u32 s36, s36, {g.Boff + g.slot0*SLOT}")
    vB = b_addr128(a, V, [0, 1, 2, 3], 36)
    acc = V.alloc(64, 4)
    X = [V.alloc(16, 4) for _ in range(2)]
    W = [V.alloc(16, 4) for _ in range(2)]
    accr = lambda t, u: acc + (t * 4 + u) * 4
    vo = V.alloc()
    t0 = V.alloc()
    res = V.alloc(16, 4)
    bia = V.alloc(8, 4)
    a(f"s_lshl_b32 s36, s{m}, 7")
    a("s_lshl_b32 s37, s34, 6")
    a("s_add_u32 s36, s36, s37")
    a("s_lshl_b32 s37, s35, 5")
    a("s_add_u32 s36, s36, s37")
    a(f"v_add_u32 v{vo}, s36, v{L15}")
    vrow = V.alloc()
    a(f"v_mov_b32 v{vrow}, v{vo}")
    a(f"v_lshlrev_b32 v{vo}, 11, v{vo}")
    vcol = V.alloc()
    a(f"v_and_b32 v{t0}, 1, v{GQ}")
    a(f"v_lshlrev_b32 v{vcol}, 5, v{t0}")
    a(f"v_lshrrev_b32 v{t0}, 1, v{GQ}")
    a(f"v_lshl_add_u32 v{vcol}, v{t0}, 4, v{vcol}")
    a(f"s_lshl_b32 s36, s{j}, 7")
    a(f"v_add_u32 v{vcol}, s36, v{vcol}")
    a(f"v_add_u32 v{vo}, v{vo}, v{vcol}")
    a("s_mov_b32 s45, 32768")
    zero_acc(a, acc, 64)
    a("s_barrier")
    for uu in range(2):
        for p in range(2):
            so = "s45" if uu else "0"
            a(f"buffer_load_dwordx4 {vr(res+8*uu+4*p,4)}, v{vo}, s[20:23], {so} offen offset:{64*p}" + ("" if k2 else " sc1"))
    if not k2:
        for p in range(2):
            a(f"buffer_load_dwordx4 {vr(bia+4*p,4)}, v{vcol}, s[24:27], 0 offen offset:{64*p}")

    def reads(h, b):
        r = []
        for u in range(4):
            r.append(f"ds_read_b128 {vr(X[b]+4*u,4)}, v{vA[h]} offset:{u*2048}")
        for t in range(4):
            for jj in range(2):
                r.append(f"ds_read_b64_tr_b16 {vr(W[b]+4*t+2*jj,2)}, v{vB[h][t]} offset:{jj*512}")
        return r

    def mfmas(b):
        ml = []
        for t in range(4):
            for u in range(4):
                w, x, d = vr(W[b] + 4 * t, 4), vr(X[b] + 4 * u, 4), vr(accr(t, u), 4)
                ml.append(f"v_mfma_f32_16x16x32_bf16 {d}, {w}, {x}, {d}")
        return ml

    g.reads, g.mfmas = reads, mfmas
    g.adv = [[vA[0]] + vB[0], [vA[1]] + vB[1]]
    gen_mainloop(a, g, P)
    ex = V.alloc()
    exr = V.alloc()
    vt = V.alloc(2)
    a(f"v_lshlrev_b32 v{ex}, 4, v1")
    a("s_lshl_b32 s36, s34, 13")
    a(f"v_add_u32 v{ex}, s36, v{ex}")
    a(f"s_mul_i32 s36, s35, {SLOT}")
    a(f"s_sub_u32 s37, {SLOT}, s36")
    a(f"v_add_u32 v{exr}, s37, v{ex}")
    a(f"v_add_u32 v{ex}, s36, v{ex}")
    Rv = X[0]
    assert X[1] == X[0] + 16
    a("s_cmp_eq_u32 s35, 1")
    a(f"s_cbranch_scc1 {P}_ex1")
    for kh in range(2):
        if kh:
            a(f"{P}_ex1:")
            a("s_nop 7")
        for t in range(4):
            for uu in range(2):
                a(f"ds_write_b128 v{ex}, {vr(accr(t, 2*(1-kh)+uu),4)} offset:{(t*2+uu)*1024}")
        pair_sync(a, f"{P}{kh}", which, 2, vt)
        for t in range(4):
            for uu in range(2):
                a(f"ds_read_b128 {vr(Rv+(t*2+uu)*4,4)}, v{exr} offset:{(t*2+uu)*1024}")
        for t in range(4):
            for uu in range(2):
                a(f"s_waitcnt lgkmcnt({7-(t*2+uu)})")
                for i in range(0, 4, 2):
                    s = accr(t, 2 * kh + uu) + i
                    d = Rv + (t * 2 + uu) * 4 + i
                    a(f"v_pk_add_f32 {vr(d,2)}, {vr(d,2)}, {vr(s,2)}")
        if kh == 0:
            a(f"s_branch {P}_ex2")
    a(f"{P}_ex2:")
    a("s_waitcnt vmcnt(0)")
    Y = acc
    for uu in range(2):
        hv = Y + 32 * uu
        for p in range(2):
            pk = W[0] + 8 * uu + 4 * p
            for tt in range(2):
                s = Rv + ((2 * p + tt) * 2 + uu) * 4
                a(f"v_cvt_pk_bf16_f32 v{pk+2*tt}, v{s}, v{s+1}")
                a(f"v_cvt_pk_bf16_f32 v{pk+2*tt+1}, v{s+2}, v{s+3}")
            a(f"v_permlane16_swap_b32 v{pk}, v{pk+2}")
            a(f"v_permlane16_swap_b32 v{pk+1}, v{pk+3}")
            y = hv + 8 * p
            z = hv + 16
            for i in range(4):
                a(f"v_lshlrev_b32 v{y+2*i}, 16, v{pk+i}")
                a(f"v_and_b32 v{y+2*i+1}, 0xffff0000, v{pk+i}")
            if not k2:
                for i in range(4):
                    a(f"v_lshlrev_b32 v{z}, 16, v{bia+4*p+i}")
                    a(f"v_and_b32 v{z+1}, 0xffff0000, v{bia+4*p+i}")
                    a(f"v_pk_add_f32 {vr(y+2*i,2)}, {vr(y+2*i,2)}, {vr(z,2)}")
                    a(f"v_cvt_pk_bf16_f32 v{z}, v{y+2*i}, v{y+2*i+1}")
                    a(f"v_lshlrev_b32 v{y+2*i}, 16, v{z}")
                    a(f"v_and_b32 v{y+2*i+1}, 0xffff0000, v{z}")
            for i in range(4):
                rr = res + 8 * uu + 4 * p + i
                a(f"v_lshlrev_b32 v{z}, 16, v{rr}")
                a(f"v_and_b32 v{z+1}, 0xffff0000, v{rr}")
                a(f"v_pk_add_f32 {vr(y+2*i,2)}, {vr(y+2*i,2)}, {vr(z,2)}")
                a(f"v_cvt_pk_bf16_f32 v{pk+i}, v{y+2*i}, v{y+2*i+1}")
            so = "s45" if uu else "0"
            a(f"buffer_store_dwordx4 {vr(pk,4)}, v{vo}, s[16:19], {so} offen offset:{64*p}" + (" sc1" if k2 else ""))
            if k2:
                for i in range(4):
                    a(f"v_lshlrev_b32 v{y+2*i}, 16, v{pk+i}")
                    a(f"v_and_b32 v{y+2*i+1}, 0xffff0000, v{pk+i}")
        if k2:
            sm, m2, tm = hv + 16, hv + 17, hv + 18
            a(f"v_add_f32 v{sm}, v{hv}, v{hv+1}")
            for i in range(2, 16):
                a(f"v_add_f32 v{sm}, v{sm}, v{hv+i}")
            xrow_reduce(a, "v_add_f32", sm, tm)
            a(f"v_mul_f32 v{tm+1}, {hexf(1/64)}, v{sm}")
            a(f"v_sub_f32 v{tm}, v{hv}, v{tm+1}")
            a(f"v_mul_f32 v{m2}, v{tm}, v{tm}")
            for i in range(1, 16):
                a(f"v_sub_f32 v{tm}, v{hv+i}, v{tm+1}")
                a(f"v_fmac_f32 v{m2}, v{tm}, v{tm}")
            xrow_reduce(a, "v_add_f32", m2, tm)
            a(f"v_lshlrev_b32 v{tm}, 7, v{vrow}")
            a(f"s_lshl_b32 s36, s{j}, 3")
            a(f"s_add_u32 s36, s36, {uu*16*128}")
            a(f"v_cmp_eq_u32 vcc, 0, v{GQ}")
            a(f"v_mov_b32 v{tm+1}, 0x7ffffff0")
            a(f"v_cndmask_b32 v{tm}, v{tm+1}, v{tm}, vcc")
            a(f"buffer_store_dwordx2 {vr(sm,2)}, v{tm}, s[24:27], s36 offen sc1")
    stamp(a, "c", f"p{which}_stored")
    if k2:
        finish_phase(a, 2, g, X[0])
    return V.hi


def gen_p3(a):
    g = PH[3]
    m, j = g.mj
    V = Regs("v", 4, 254)
    srd(a, 16, PWS, WS_H1, S * F * 2)
    srd(a, 20, PWS, WS_ST, S * 16 * 8)
    acc = V.alloc(112, 4)
    X = [V.alloc(16, 4) for _ in range(2)]
    W = [V.alloc(28, 4) for _ in range(2)]
    accr = lambda t, u: acc + (t * 4 + u) * 4
    a("s_and_b32 s34, s6, 1")
    a("s_lshr_b32 s35, s6, 1")
    a("s_lshl_b32 s36, s34, 13")
    vA = a_addr(a, V, 36, g.slot0 * SLOT)
    t = V.alloc()
    base = V.alloc()
    vB = [[V.alloc(), V.alloc()], [V.alloc(), V.alloc()]]
    a(f"v_lshrrev_b32 v{t}, 2, v{L15}")
    a(f"v_lshl_add_u32 v{t}, v{GQ}, 3, v{t}")
    a(f"v_mul_u32_u24 v{base}, 448, v{t}")
    a(f"v_and_b32 v{t}, 3, v{L15}")
    a(f"v_lshl_add_u32 v{base}, v{t}, 3, v{base}")
    a("s_mul_i32 s36, s35, 224")
    a(f"s_add_u32 s36, s36, {g.Boff + g.slot0*SLOT}")
    a(f"v_add_u32 v{base}, s36, v{base}")
    a(f"v_and_b32 v{t}, 1, v{GQ}")
    a(f"v_lshlrev_b32 v{t}, 5, v{t}")
    a("s_cmp_eq_u32 s35, 0")
    a("s_cselect_b32 s36, 1, -1")
    a(f"v_mul_lo_u32 v{t}, v{t}, s36")
    a(f"v_add_u32 v{vB[0][0]}, v{base}, v{t}")
    a(f"v_sub_u32 v{vB[0][1]}, v{base}, v{t}")
    a(f"v_add_u32 v{vB[1][0]}, {32*448}, v{vB[0][0]}")
    a(f"v_add_u32 v{vB[1][1]}, {32*448}, v{vB[0][1]}")
    ta = W[1]
    st = W[0]
    st = X[0]
    assert X[1] == X[0] + 16
    a(f"s_lshl_b32 s36, s{m}, 14")
    a("s_lshl_b32 s37, s6, 12")
    a("s_add_u32 s36, s36, s37")
    a(f"v_and_b32 v{ta}, 31, v1")
    a(f"v_lshlrev_b32 v{ta}, 7, v{ta}")
    a(f"v_add_u32 v{ta}, s36, v{ta}")
    zero_acc(a, acc, 112)
    a("s_barrier")
    for i in range(8):
        a(f"buffer_load_dwordx4 {vr(st+4*i,4)}, v{ta}, s[20:23], 0 offen offset:{16*i} sc1")
    a("s_waitcnt vmcnt(0)")
    mean, m2, tm = W[1] + 2, W[1] + 3, W[1] + 4
    a(f"v_add_f32 v{mean}, v{st}, v{st+2}")
    a(f"v_add_f32 v{m2}, v{st+1}, v{st+3}")
    for i in range(2, 16):
        a(f"v_add_f32 v{mean}, v{mean}, v{st+2*i}")
        a(f"v_add_f32 v{m2}, v{m2}, v{st+2*i+1}")
    a(f"v_mul_f32 v{mean}, {hexf(1/1024)}, v{mean}")
    a(f"s_mov_b32 s36, {hexf(1/64)}")
    a(f"v_mov_b32 v{tm+1}, 0")
    for i in range(16):
        a(f"v_fma_f32 v{tm}, v{st+2*i}, s36, -v{mean}")
        a(f"v_fmac_f32 v{tm+1}, v{tm}, v{tm}")
    a(f"v_fmac_f32 v{m2}, 0x42800000, v{tm+1}")
    a(f"v_mul_f32 v{m2}, {hexf(1/1024)}, v{m2}")
    round_bf16(a, mean)
    round_bf16(a, m2)
    a(f"v_add_f32 v{m2}, {hexf(1e-5)}, v{m2}")
    round_bf16(a, m2)
    a(f"v_sqrt_f32 v{m2}, v{m2}")
    round_bf16(a, m2)
    a(f"v_rcp_f32 v{tm}, v{m2}")
    a(f"v_mul_f32 v{tm+1}, v{mean}, v{tm}")
    a(f"v_sub_f32 v{tm+1}, 0, v{tm+1}")
    a(f"v_and_b32 v{ta}, 31, v1")
    a(f"v_lshlrev_b32 v{ta}, 3, v{ta}")
    a("s_lshl_b32 s36, s6, 8")
    a(f"s_add_u32 s36, s36, {L_ROW}")
    a(f"v_add_u32 v{ta}, s36, v{ta}")
    a(f"ds_write_b64 v{ta}, {vr(tm,2)}")

    def reads(h, b):
        r = []
        for u in range(4):
            r.append(f"ds_read_b128 {vr(X[b]+4*u,4)}, v{vA[h]} offset:{u*2048}")
        for t_ in range(7):
            for jj in range(2):
                r.append(f"ds_read_b64_tr_b16 {vr(W[b]+4*t_+2*jj,2)}, v{vB[h][t_&1]} offset:{t_*32+jj*4*448}")
        return r

    def mfmas(b):
        ml = []
        for t_ in range(7):
            for u in range(4):
                w, x, d = vr(W[b] + 4 * t_, 4), vr(X[b] + 4 * u, 4), vr(accr(t_, u), 4)
                ml.append(f"v_mfma_f32_16x16x32_bf16 {d}, {w}, {x}, {d}")
        return ml

    g.reads, g.mfmas = reads, mfmas
    g.adv = [[vA[0]] + vB[0], [vA[1]] + vB[1]]
    gen_mainloop(a, g, "P3")
    RP = X[0]
    CSr, B1r = W[0], W[1]
    e0 = X[0] + 8
    a("s_lshl_b32 s36, s34, 9")
    a(f"s_add_u32 s36, s36, {L_ROW}")
    a(f"v_lshlrev_b32 v{e0}, 3, v{L15}")
    a(f"v_add_u32 v{e0}, s36, v{e0}")
    for u in range(4):
        a(f"ds_read_b64 {vr(RP+2*u,2)}, v{e0} offset:{u*128}")
    a("s_mul_i32 s36, s35, 448")
    a(f"s_add_u32 s36, s36, {L_CS}")
    a(f"v_lshlrev_b32 v{e0+1}, 4, v{GQ}")
    a(f"v_add_u32 v{e0+1}, s36, v{e0+1}")
    for t_ in range(7):
        a(f"ds_read_b128 {vr(CSr+4*t_,4)}, v{e0+1} offset:{t_*64}")
        a(f"ds_read_b128 {vr(B1r+4*t_,4)}, v{e0+1} offset:{1024+t_*64}")
    vo, vo6, tq = X[1], X[1] + 1, X[1] + 2
    KK = X[1] + 4
    T = X[1] + 6
    a(f"s_lshl_b32 s36, s{m}, 7")
    a("s_lshl_b32 s37, s34, 6")
    a("s_add_u32 s36, s36, s37")
    a(f"v_add_u32 v{vo}, s36, v{L15}")
    a(f"v_and_b32 v{tq}, 1, v{GQ}")
    a(f"v_lshl_add_u32 v{vo6}, v{tq}, 4, v{vo}")
    a(f"v_mul_u32_u24 v{vo}, 7168, v{vo}")
    a(f"v_mul_u32_u24 v{vo6}, 7168, v{vo6}")
    a(f"v_lshl_add_u32 v{vo}, v{tq}, 5, v{vo}")
    a(f"v_lshrrev_b32 v{tq}, 1, v{GQ}")
    a(f"v_lshl_add_u32 v{vo}, v{tq}, 4, v{vo}")
    a(f"v_lshl_add_u32 v{vo6}, v{tq}, 4, v{vo6}")
    a(f"s_mul_i32 s36, s{j}, 448")
    a("s_mul_i32 s37, s35, 224")
    a("s_add_u32 s36, s36, s37")
    a(f"v_add_u32 v{vo}, s36, v{vo}")
    a(f"v_add_u32 v{vo6}, s36, v{vo6}")
    k1 = -2.0 * math.sqrt(2.0 / math.pi) * math.log2(math.e)
    a(f"v_mov_b32 v{KK}, {hexf(k1*0.044715)}")
    a(f"v_mov_b32 v{KK+1}, {hexf(k1)}")
    for u in range(4):
        a(f"s_mov_b32 s{76+u}, {u*16*7168}")
    a("s_waitcnt lgkmcnt(0)")

    def gelu_tile(t_, u):
        d = accr(t_, u)
        rp = vr(RP + 2 * u, 2)
        for i in (0, 2):
            a(f"v_pk_fma_f32 {vr(T+i,2)}, {vr(CSr+4*t_+i,2)}, {rp}, {vr(B1r+4*t_+i,2)} op_sel:[0,1,0] op_sel_hi:[1,1,1]")
        for i in (0, 2):
            a(f"v_pk_fma_f32 {vr(d+i,2)}, {vr(d+i,2)}, {rp}, {vr(T+i,2)} op_sel:[0,0,0] op_sel_hi:[1,0,1]")
        for i in (0, 2):
            a(f"v_pk_mul_f32 {vr(T+i,2)}, {vr(d+i,2)}, {vr(d+i,2)}")
        for i in (0, 2):
            a(f"v_pk_fma_f32 {vr(T+i,2)}, {vr(T+i,2)}, {vr(KK,2)}, {vr(KK,2)} op_sel:[0,0,1] op_sel_hi:[1,0,1]")
        for i in (0, 2):
            a(f"v_pk_mul_f32 {vr(T+i,2)}, {vr(T+i,2)}, {vr(d+i,2)}")
        for i in range(4):
            a(f"v_exp_f32 v{T+i}, v{T+i}")
        for i in (0, 2):
            a(f"v_pk_add_f32 {vr(T+i,2)}, {vr(T+i,2)}, 1.0 op_sel_hi:[1,0]")
        for i in range(4):
            a(f"v_rcp_f32 v{T+i}, v{T+i}")
        for i in (0, 2):
            a(f"v_pk_mul_f32 {vr(d+i,2)}, {vr(d+i,2)}, {vr(T+i,2)}")

    obs = [X[0] + 12, X[1] + 12]
    n_ = 0
    for u in range(4):
        for p in range(3):
            o = obs[n_ & 1]
            n_ += 1
            for tt in range(2):
                gelu_tile(2 * p + tt, u)
                d = accr(2 * p + tt, u)
                a(f"v_cvt_pk_bf16_f32 v{o+2*tt}, v{d}, v{d+1}")
                a(f"v_cvt_pk_bf16_f32 v{o+2*tt+1}, v{d+2}, v{d+3}")
            a(f"v_permlane16_swap_b32 v{o}, v{o+2}")
            a(f"v_permlane16_swap_b32 v{o+1}, v{o+3}")
            a(f"buffer_store_dwordx4 {vr(o,4)}, v{vo}, s[16:19], s{76+u} offen offset:{64*p} sc1")
        if u & 1:
            o = obs[n_ & 1]
            n_ += 1
            for tt in range(2):
                gelu_tile(6, u - 1 + tt)
                d = accr(6, u - 1 + tt)
                a(f"v_cvt_pk_bf16_f32 v{o+2*tt}, v{d}, v{d+1}")
                a(f"v_cvt_pk_bf16_f32 v{o+2*tt+1}, v{d+2}, v{d+3}")
            a(f"v_permlane16_swap_b32 v{o}, v{o+2}")
            a(f"v_permlane16_swap_b32 v{o+1}, v{o+3}")
            a(f"buffer_store_dwordx4 {vr(o,4)}, v{vo6}, s[16:19], s{76+u-1} offen offset:192 sc1")
    stamp(a, "c", "p3_stored")
    finish_phase(a, 3, g, acc)
    return V.hi


def main():
    out = sys.argv[1]
    a = Asm()
    name = NAME + "_kernel"
    a.raw(f".globl {name}\n.p2align 8\n.type {name},@function\n{name}:")
    a("s_cmp_ge_u32 s2, 256\ns_cbranch_scc1 KEND")
    a("s_load_dwordx16 s[48:63], s[0:1], 0")
    a("s_load_dwordx4 s[64:67], s[0:1], 64")
    a("s_load_dwordx2 s[68:69], s[0:1], 80")
    a("v_lshrrev_b32 v1, 6, v0")
    a("s_and_b32 s3, s2, 7")
    a("s_lshr_b32 s7, s2, 3")
    a("v_readfirstlane_b32 s6, v1")
    a("s_and_b32 s70, s3, 1")
    a("s_lshl_b32 s70, s70, 3")
    a("s_and_b32 s4, s7, 7")
    a("s_add_u32 s70, s70, s4")
    a("s_lshr_b32 s71, s3, 1")
    a("s_lshl_b32 s71, s71, 2")
    a("s_lshr_b32 s4, s7, 3")
    a("s_add_u32 s71, s71, s4")
    a("s_and_b32 s72, s7, 15")
    a("s_lshl_b32 s73, s3, 1")
    a("s_lshr_b32 s4, s7, 4")
    a("s_add_u32 s73, s73, s4")
    a("v_and_b32 v1, 63, v0")
    a(f"v_and_b32 v{L15}, 15, v0")
    a(f"v_lshrrev_b32 v{GQ}, 4, v1")
    a("s_waitcnt lgkmcnt(0)")
    a("s_cmp_ge_u32 s6, 4")
    a("s_cbranch_scc1 LOADER")
    stamp(a, "c", "start")
    gen_p0(a)
    hi = [gen_p1(a), gen_p24(a, 2), gen_p3(a), gen_p24(a, 4)]
    stamp_flush(a, 0)
    a("KEND:")
    a("s_endpgm")
    gen_loader(a)
    vg = 256 if OPT["stamp"] else max(hi + [136])
    a.raw(f'.section .rodata,"a"\n.p2align 6\n.amdhsa_kernel {name}\n'
          f"  .amdhsa_next_free_vgpr {vg}\n  .amdhsa_next_free_sgpr 102\n  .amdhsa_accum_offset {(vg+3)//4*4}\n"
          "  .amdhsa_group_segment_fixed_size 0\n  .amdhsa_kernarg_size 88\n  .amdhsa_user_sgpr_count 2\n"
          "  .amdhsa_user_sgpr_kernarg_segment_ptr 1\n  .amdhsa_system_sgpr_workgroup_id_x 1\n"
          "  .amdhsa_float_denorm_mode_32 3\n"
          ".end_amdhsa_kernel\n")
    head = open("header.txt").read()
    head += f"; @launch grid=(256,1,1) block=(512,1,1) lds={LDS_TOTAL}\n"
    head += '.amdgcn_target "amdgcn-amd-amdhsa--gfx950"\n.text\n'
    open(out, "w").write(head + a.text())
    if OPT["stamp"]:
        import json
        json.dump(STAMPS, open(out + ".stamps.json", "w"))
    print("generated", out, "nops:", a.nops, "vgpr", hi, "lds", LDS_TOTAL)


main()
```

```python
import sys, struct, math
from asmx import Asm, Regs, vr, sr

NAME = "sequential_preLN__sliding_local_dilated__dense_activation_gelu__prompt"
S, D, F = 2048, 1024, 3584
OPT = dict(stamp=0, map1=1, map3=1, sleep=1, prio=0, nt1=1, seg=2, warm=1, wr1=2, wr2=2, wr3=3, wg=7, touch1=1)
for a_ in sys.argv[2:]:
    k_, v_ = a_.split("=")
    assert k_ in OPT, k_
    OPT[k_] = int(v_)
WS_O, WS_H, WS_H1 = 4 << 20, 8 << 20, 12 << 20
WS_ST, WS_CS, WS_FL = 28 << 20, 29 << 20, 30 << 20
WS_ST1, WS_CS1 = 0, 1 << 20
FL_CS3, FL_CS1 = WS_FL + 32768, WS_FL + 40960
WS_FD = WS_FL + 65536
SLOT = 49152
LDS_X = 3 * SLOT
L_PAIR = LDS_X
L_CNT = LDS_X + 16
L_NONCE = LDS_X + 32
L_P0 = LDS_X + 64
L_ROW = LDS_X + 256
L_RS = L_ROW + 2048
L_NM = L_RS + 1024
L_CS = L_NM + 1024
L_B1 = L_CS + 1024
L_SC = L_B1 + 1024
L_SS = L_SC + 4096
LDS_TOTAL = L_SS + 4096
PX, PWQKV, PWO, PW1, PB1, PW2, PB2, POUT, PDBG, PWS = 48, 50, 52, 56, 58, 60, 62, 64, 66, 68
NONCE = 74
RES, BIA = 216, 232
BIG = "0x7ffffff0"


def f2u(x):
    return struct.unpack("<I", struct.pack("<f", x))[0]


def hexf(x):
    return "0x%08x" % f2u(x)


def srd(a, d, base, off, nbytes):
    if off:
        a(f"s_add_u32 s{d}, s{base}, {off}")
        a(f"s_addc_u32 s{d+1}, s{base+1}, 0")
    else:
        a(f"s_mov_b32 s{d}, s{base}")
        a(f"s_mov_b32 s{d+1}, s{base+1}")
    a(f"s_mov_b32 s{d+2}, {nbytes}")
    a(f"s_mov_b32 s{d+3}, 0x20000")


def round_bf16(a, v):
    a(f"v_cvt_pk_bf16_f32 v{v}, v{v}, v{v}")
    a(f"v_lshlrev_b32 v{v}, 16, v{v}")


def xrow_reduce_multi(a, op, vs, ts):
    for sw in ("v_permlane16_swap_b32", "v_permlane32_swap_b32"):
        for v, t in zip(vs, ts):
            a(f"v_mov_b32 v{t}, v{v}")
        for v, t in zip(vs, ts):
            a(f"{sw} v{v}, v{t}")
        for v, t in zip(vs, ts):
            a(f"{op} v{v}, v{v}, v{t}")


def wave_sum_multi(a, vs, ts):
    for p in ("quad_perm:[1,0,3,2]", "quad_perm:[2,3,0,1]", "row_half_mirror", "row_mirror"):
        for v in vs:
            a(f"v_add_f32_dpp v{v}, v{v}, v{v} {p} row_mask:0xf bank_mask:0xf")
    xrow_reduce_multi(a, "v_add_f32", vs, ts)


def ln_finish(a, mean, var, out):
    round_bf16(a, mean)
    round_bf16(a, var)
    a(f"v_add_f32 v{var}, {hexf(1e-5)}, v{var}")
    round_bf16(a, var)
    a(f"v_sqrt_f32 v{var}, v{var}")
    round_bf16(a, var)
    a(f"v_rcp_f32 v{out}, v{var}")
    a(f"v_mul_f32 v{out+1}, v{mean}, v{out}")
    a(f"v_sub_f32 v{out+1}, 0, v{out+1}")


STAMPS = {"c": [], "l": []}


def stamp(a, role, name):
    if not OPT["stamp"]:
        return
    if name in STAMPS[role]:
        i = STAMPS[role].index(name)
    else:
        i = len(STAMPS[role])
        STAMPS[role].append(name)
    a("s_memtime s[100:101]")
    a("s_waitcnt lgkmcnt(0)")
    a(f"v_writelane_b32 v254, s100, {i}")
    a("s_memrealtime s[100:101]")
    a("s_waitcnt lgkmcnt(0)")
    a(f"v_writelane_b32 v255, s100, {i}")


def stamp_flush(a, wavereg_off):
    if not OPT["stamp"]:
        return
    a("v_lshlrev_b32 v2, 2, v1")
    a("s_lshl_b32 s100, s2, 3")
    a(f"s_add_u32 s100, s100, s6")
    a(f"s_add_u32 s100, s100, {wavereg_off}")
    a("s_lshl_b32 s100, s100, 9")
    a(f"s_add_u32 s100, s100, {32<<20}")
    a("v_add_u32 v2, s100, v2")
    a(f"global_store_dword v2, v254, s[{PWS}:{PWS+1}]")
    a(f"global_store_dword v2, v255, s[{PWS}:{PWS+1}] offset:256")
    if OPT["stamp"] == 2:
        a(f"v_add_u32 v2, {8<<20}, v2")
        a(f"global_store_dword v2, v252, s[{PWS}:{PWS+1}]")
        a(f"global_store_dword v2, v253, s[{PWS}:{PWS+1}] offset:256")


class G:
    pass


def phase_cfgs():
    P = {}
    g = G(); P[1] = g
    g.n, g.KS, g.nst, g.B448 = 1, 64, 16, False
    g.nA, g.nB, g.strideB, g.Boff, g.KT = 18, 24, 6144, 24576, 0
    g.A = (PX, 0, S * D * 2); g.B = (PWQKV, 0, D * 3 * D * 2); g.map = OPT["map1"]
    g = G(); P[2] = g
    g.n, g.KS, g.nst, g.B448 = 2, 128, 8, False
    g.nA, g.nB, g.strideB, g.Boff, g.KT = 32, 16, 2048, 32768, 32
    g.A = (PWS, WS_O, S * D * 2); g.B = (PWO, 0, D * D * 2); g.map = 0
    g = G(); P[3] = g
    g.n, g.KS, g.nst, g.B448 = 3, 64, 16, True
    g.nA, g.nB, g.strideB, g.Boff, g.KT = 16, 32, 7168, 16384, 32
    g.A = (PWS, WS_H, S * D * 2); g.B = (PW1, 0, D * F * 2); g.map = OPT["map3"]
    g = G(); P[4] = g
    g.n, g.KS, g.nst, g.B448 = 4, 128, 28, False
    g.nA, g.nB, g.strideB, g.Boff, g.KT = 32, 16, 2048, 32768, 112
    g.A = (PWS, WS_H1, S * F * 2); g.B = (PW2, 0, F * D * 2); g.map = 0
    s = 0
    for p in (1, 2, 3, 4):
        P[p].slot0 = s % 3
        s += P[p].nst
        P[p].mj = (72, 73) if P[p].map else (70, 71)
        P[p].exch = ((s - 1) % 3) * SLOT
    return P


PH = phase_cfgs()


def interleave(a, mf, fillers, first=None):
    n = len(mf)
    fl = list(fillers)
    k = len(fl)
    gaps = list(range(1, n)) if first is not None else list(range(n))
    assert k <= 2 * len(gaps), (k, len(gaps))
    two = max(0, k - len(gaps))
    idx = 0
    cnt = {}
    for gi, g in enumerate(gaps):
        c = 0
        if idx < k:
            c = 2 if gi < two else 1
        cnt[g] = min(c, k - idx)
        idx += cnt[g]
    idx = 0
    for i in range(n):
        a(mf[i])
        if i == 0 and first is not None:
            for f in first:
                a(f)
        for _ in range(cnt.get(i, 0)):
            a(fl[idx])
            idx += 1
    assert idx == k


def nonce_load(a, vt):
    a(f"v_mov_b32 v{vt}, 0")
    a(f"global_load_dwordx2 v[{vt+2}:{vt+3}], v{vt}, s[{PDBG}:{PDBG+1}] sc1")


def nonce_check(a, lab, vt):
    a("s_mov_b32 s3, 0x40000")
    a(f"{lab}_nl:")
    a(f"v_readfirstlane_b32 s{NONCE}, v{vt+2}")
    a(f"v_readfirstlane_b32 s{NONCE+1}, v{vt+3}")
    a(f"s_cmp_lg_u32 s{NONCE}, 0")
    a(f"s_cbranch_scc1 {lab}_nd")
    a(f"global_load_dwordx2 v[{vt+2}:{vt+3}], v{vt}, s[{PDBG}:{PDBG+1}] sc1")
    a("s_waitcnt vmcnt(0)")
    a("s_sub_u32 s3, s3, 1")
    a("s_cmp_lg_u32 s3, 0")
    a(f"s_cbranch_scc1 {lab}_nl")
    a(f"{lab}_nd:")


def signal(a, off_sgpr, vt):
    a(f"v_mov_b32 v{vt}, s{off_sgpr}")
    a(f"v_mov_b32 v{vt+2}, s{NONCE}")
    a(f"v_mov_b32 v{vt+3}, s{NONCE+1}")
    a("s_mov_b64 exec, 1")
    a(f"global_store_dwordx2 v{vt}, v[{vt+2}:{vt+3}], s[{PWS}:{PWS+1}] sc1")
    a("s_mov_b64 exec, -1")


def flag_off(a, d, base, hi, lo):
    a(f"s_lshl_b32 s{d}, s{lo}, 2")
    a(f"s_add_u32 s{d}, s{d}, s6")
    a(f"s_lshl_b32 s{d}, s{d}, 3")
    a(f"s_lshl_b32 s3, s{hi}, 9")
    a(f"s_add_u32 s{d}, s{d}, s3")
    a(f"s_add_u32 s{d}, s{d}, {base}")


def poll_loads(a, vaddrs, vt):
    for i, v in enumerate(vaddrs):
        a(f"global_load_dwordx2 v[{vt+2*i}:{vt+2*i+1}], v{v}, s[{PWS}:{PWS+1}] sc1")


def poll_check(a, lab, vaddrs, vt):
    a("s_mov_b32 s3, 0x40000")
    a(f"{lab}_pl:")
    a(f"v_cmp_eq_u64 vcc, s[{NONCE}:{NONCE+1}], v[{vt}:{vt+1}]")
    for i in range(1, len(vaddrs)):
        a(f"v_cmp_eq_u64 s[34:35], s[{NONCE}:{NONCE+1}], v[{vt+2*i}:{vt+2*i+1}]")
        a("s_and_b64 vcc, vcc, s[34:35]")
    a("s_cmp_eq_u64 vcc, -1")
    a(f"s_cbranch_scc1 {lab}_pd")
    if OPT["sleep"]:
        a(f"s_sleep {OPT['sleep']}")
    poll_loads(a, vaddrs, vt)
    a("s_waitcnt vmcnt(0)")
    a("s_sub_u32 s3, s3, 1")
    a("s_cmp_lg_u32 s3, 0")
    a(f"s_cbranch_scc1 {lab}_pl")
    a(f"{lab}_pd:")


def ld_offsets_A(a, g, vA):
    m, j = g.mj
    if g.KT:
        a(f"s_lshl_b32 s7, s{m}, 3")
        a("s_add_u32 s7, s7, s6")
        a(f"s_mul_i32 s7, s7, {g.KT*1024}")
        a(f"v_lshlrev_b32 v{vA}, 4, v1")
        a(f"v_add_u32 v{vA}, s7, v{vA}")
        a(f"v_add_u32 v{vA+1}, {4*g.KT*1024}, v{vA}")
        return
    a("s_and_b32 s3, s6, 1")
    a("s_lshl_b32 s7, s3, 2")
    a("v_lshrrev_b32 v4, 4, v1")
    a("v_or_b32 v4, s7, v4")
    a("v_xor_b32 v4, v3, v4")
    a("v_lshlrev_b32 v4, 4, v4")
    a(f"s_lshl_b32 s7, s{m}, 7")
    a("s_lshl_b32 s34, s6, 3")
    a("s_add_u32 s7, s7, s34")
    a("s_sub_u32 s7, s7, 16")
    for q in range(5):
        a("v_add_u32 v5, s7, v2")
        if q:
            a(f"v_add_u32 v5, {32*q}, v5")
        else:
            a("v_max_i32 v5, 0, v5")
        a(f"v_lshl_add_u32 v{vA+q}, v5, 11, v4")


def ld_offsets_B(a, g, vB):
    m, j = g.mj
    nBq = g.nB // 4
    if g.B448:
        a("v_lshrrev_b32 v5, 5, v1")
        a("s_lshl_b32 s7, s6, 1")
        a("v_add_u32 v5, s7, v5")
        a("v_and_b32 v6, 3, v5")
        a("v_lshlrev_b32 v6, 1, v6")
        a("v_and_b32 v7, 31, v1")
        a("v_xor_b32 v6, v6, v7")
        a("v_mul_u32_u24 v5, 7168, v5")
        a(f"s_mul_i32 s35, s{j}, 448")
        a("s_andn2_b32 s35, s35, 127")
        a("v_add_u32 v5, s35, v5")
        for q in range(nBq):
            if q < 2:
                if q:
                    a("v_xor_b32 v6, 8, v6")
                a(f"v_lshl_add_u32 v{vB+q}, v6, 4, v5")
                if q:
                    a(f"v_add_u32 v{vB+q}, {8*7168}, v{vB+q}")
            else:
                a(f"v_add_u32 v{vB+q}, {16*7168}, v{vB+q-2}")
    else:
        a("v_bfe_u32 v5, v1, 4, 1")
        a("s_and_b32 s7, s6, 1")
        a("s_lshl_b32 s7, s7, 1")
        a("v_or_b32 v5, s7, v5")
        a("v_lshlrev_b32 v5, 1, v5")
        a("v_xor_b32 v5, v3, v5")
        a("v_lshlrev_b32 v5, 4, v5")
        a(f"s_lshl_b32 s7, s{j}, 7")
        a("v_add_u32 v5, s7, v5")
        a("s_lshl_b32 s7, s6, 3")
        a("v_add_u32 v6, s7, v2")
        a(f"v_mul_u32_u24 v6, {g.strideB}, v6")
        a("v_add_u32 v5, v5, v6")
        for q in range(nBq):
            if g.n == 1:
                off = (q >> 1) * 2048 + (q & 1) * 32 * g.strideB
            else:
                off = q * 32 * g.strideB
            a(f"v_add_u32 v{vB+q}, {off}, v5")


def rot_start(a, g, d):
    m, j = g.mj
    if g.map:
        assert g.nst == 16
        a(f"s_mov_b32 s{d}, s{m}")
    else:
        a(f"s_and_b32 s{d}, s{m}, 7")
        if g.nst == 16:
            a(f"s_lshl_b32 s{d}, s{d}, 1")
        elif g.nst == 28:
            a(f"s_mul_i32 s{d}, s{d}, 7")
            a(f"s_lshr_b32 s{d}, s{d}, 1")


RDY, TMO, PF = 94, 96, 40
LAB = [0]


def poll_once(a):
    a("s_mov_b64 exec, 0xffff")
    a(f"global_load_dwordx2 v[{PF+2}:{PF+3}], v{PF}, s[{PWS}:{PWS+1}] sc1")
    a(f"s_sub_u32 s{TMO}, s{TMO}, 1")
    a("s_waitcnt vmcnt(0)")
    a(f"v_cmp_eq_u64 s[{RDY}:{RDY+1}], s[{NONCE}:{NONCE+1}], v[{PF+2}:{PF+3}]")
    a("s_mov_b64 exec, -1")
    a(f"s_cmp_eq_u32 s{TMO}, 0")
    a(f"s_cselect_b32 s{RDY}, 0xffff, s{RDY}")
    a(f"s_cselect_b32 s{TMO}, 1, s{TMO}")


class Stream:
    def __init__(self, g, isA, srd_, vbase, so, st, lb, sl, of, cur=None):
        self.g, self.isA, self.srd, self.v = g, isA, srd_, vbase
        self.so, self.st, self.lb, self.sl, self.of = so, st, lb, sl, of
        self.cur = cur
        self.frag = isA and g.KT
        self.seg = OPT["seg"] and g.KS == 128
        if self.frag:
            self.step = g.KS * 32
            self.per = g.KS // 32
        else:
            self.step = g.KS * 2 if isA else g.KS * g.strideB

    def seg_so(self, a):
        a(f"s_add_u32 s7, s{self.st}, s{self.of}")
        a("s_and_b32 s7, s7, 3")
        a(f"s_andn2_b32 s{self.so}, s{self.st}, 3")
        a(f"s_add_u32 s{self.so}, s{self.so}, s7")
        if self.cur:
            a(f"s_mov_b32 s{self.cur}, s{self.so}")
        a(f"s_mul_i32 s{self.so}, s{self.so}, {self.step}")

    def init(self, a):
        g = self.g
        m, j = g.mj
        if self.seg:
            a(f"s_and_b32 s{self.st}, s{m}, 7")
            a(f"s_mul_i32 s{self.st}, s{self.st}, {g.nst // 4}")
            a(f"s_lshr_b32 s{self.st}, s{self.st}, 3")
            a(f"s_lshl_b32 s{self.st}, s{self.st}, 2")
            if OPT["seg"] == 2 and g.n == 4:
                a(f"s_mov_b32 s{self.st}, 0")
            a(f"s_add_u32 s{self.of}, s{m}, s{j}")
            self.seg_so(a)
        else:
            rot_start(a, g, self.st)
            a(f"s_mul_i32 s{self.so}, s{self.st}, {self.step}")
        a(f"s_mul_i32 s{self.lb}, s6, {1024*self.per if self.frag else 1024}")
        off = g.slot0 * SLOT + (0 if self.isA else g.Boff)
        if off:
            a(f"s_add_u32 s{self.lb}, s{self.lb}, {off}")
        a(f"s_mov_b32 s{self.sl}, {g.slot0}")

    def need(self, a, ok):
        g = self.g
        cur = self.cur if self.seg else self.st
        a(f"s_cmp_eq_u32 s{RDY}, 0xffff")
        a(f"s_cbranch_scc1 {ok}")
        if g.n == 2:
            a(f"s_lshl_b32 s3, s{cur}, 1")
            a("s_lshl_b32 s34, 3, s3")
        elif g.n == 3:
            a(f"s_lshl_b32 s34, 1, s{cur}")
        else:
            a(f"s_mul_i32 s3, s{cur}, {4*9363}")
            a(f"s_add_u32 s7, s3, {3*9363}")
            a("s_lshr_b32 s3, s3, 16")
            a("s_lshr_b32 s7, s7, 16")
            a("s_lshl_b32 s34, 1, s3")
            a("s_bitset1_b32 s34, s7")
        a(f"s_andn2_b32 s3, s34, s{RDY}")
        a(f"s_cbranch_scc0 {ok}")

    def wait_ready(self, a):
        if not self.frag:
            return
        LAB[0] += 1
        L = f"WR{LAB[0]}"
        self.need(a, f"{L}_ok")
        a(f"{L}_t:")
        poll_once(a)
        a(f"s_andn2_b32 s3, s34, s{RDY}")
        a(f"s_cbranch_scc0 {L}_ok")
        if OPT["sleep"]:
            a(f"s_sleep {OPT['sleep']}")
        a(f"s_branch {L}_t")
        a(f"{L}_ok:")

    def loads(self, n, nt=False):
        out = []
        if self.frag:
            for q in range(n):
                u, k = q // self.per, q % self.per
                out.append((f"s_add_u32 m0, s{self.lb}, {u*4096*self.per}",
                            f"buffer_load_dwordx4 v{self.v+u}, s[{self.srd}:{self.srd+3}], s{self.so} offen offset:{k*1024} sc1 lds"))
            return out
        return [(f"s_add_u32 m0, s{self.lb}, {q*4096}",
                 f"buffer_load_dwordx4 v{self.v+q}, s[{self.srd}:{self.srd+3}], s{self.so} offen {'nt ' if (nt and not self.isA) else ''}lds") for q in range(n)]

    def advance(self, a):
        if not self.seg:
            a(f"s_add_u32 s{self.so}, s{self.so}, {self.step}")
        a(f"s_add_u32 s{self.st}, s{self.st}, 1")
        a(f"s_cmp_eq_u32 s{self.st}, {self.g.nst}")
        a(f"s_cselect_b32 s{self.st}, 0, s{self.st}")
        if self.seg:
            self.seg_so(a)
        else:
            a(f"s_cselect_b32 s{self.so}, 0, s{self.so}")
        a(f"s_add_u32 s{self.lb}, s{self.lb}, {SLOT}")
        a(f"s_add_u32 s{self.sl}, s{self.sl}, 1")
        a(f"s_cmp_eq_u32 s{self.sl}, 3")
        a(f"s_cselect_b32 s7, {3*SLOT}, 0")
        a(f"s_cselect_b32 s{self.sl}, 0, s{self.sl}")
        a(f"s_sub_u32 s{self.lb}, s{self.lb}, s7")


class Rec:
    def __init__(self):
        self.g = []
        self.open = False

    def __call__(self, t):
        if self.open:
            self.g[-1].append(t)
        else:
            self.g.append([t])

    def begin(self):
        self.g.append([])
        self.open = True

    def end(self):
        self.open = False


def issue(a, items, nt=False, fill=None, ready=True):
    if ready:
        for (s_, n) in items:
            s_.wait_ready(a)
    ls = [s.loads(n, nt) for (s, n) in items]
    seq = []
    for q in range(max(len(x) for x in ls)):
        for x in ls:
            if q < len(x):
                seq.append(x[q])
    fill = list(fill or [])
    per = -(-len(fill) // max(1, len(seq) - 1)) if fill else 0
    last = None
    for k, (m0, ld) in enumerate(seq):
        if m0 != last:
            a(m0)
            last = m0
        a(ld)
        for _ in range(per):
            if fill:
                for t in fill.pop(0):
                    a(t)
    for grp in fill:
        for t in grp:
            a(t)
    for (s, n) in items:
        s.advance(a)


ACC, WF, ONE, AD, TB, TT, VT = 64, 96, 128, 132, 133, 134, 32
A_CSS, A_CS3, A_ST, A_GA, A_GB, TID = 136, 137, 138, 139, 156, 157
ST = 140
AD2 = 158
A_SC = 166
SG = 160
PA = 168


def fold_setup(a, g):
    m, j = g.mj
    p1 = g.n == 1
    nsh = 16 if g.map else 8
    ncol = 3 * D if p1 else F
    wscs, flcs = (WS_CS1, FL_CS1) if p1 else (WS_CS, FL_CS3)
    row = 512 if g.B448 else 128
    a(f"v_and_b32 v{TT}, 15, v1")
    a(f"v_lshrrev_b32 v{AD}, 2, v{TT}")
    a(f"v_lshrrev_b32 v{TB}, 4, v1")
    a(f"v_lshl_add_u32 v{AD}, v{TB}, 3, v{AD}")
    a(f"v_mul_u32_u24 v{AD}, {row}, v{AD}")
    a(f"v_and_b32 v{TT}, 3, v1")
    a(f"v_lshl_add_u32 v{AD}, v{TT}, 3, v{AD}")
    a(f"v_and_b32 v{TB}, 1, v{TB}")
    if g.B448:
        a(f"v_bfe_u32 v{TT}, v1, 2, 2")
        a(f"v_lshl_or_b32 v{TB}, v{TB}, 2, v{TT}")
        a(f"s_and_b32 s3, s{j}, 1")
        a("s_lshl_b32 s3, s3, 1")
        a("s_add_u32 s3, s3, s6")
        a(f"v_add_u32 v{AD}, {g.slot0*SLOT + g.Boff}, v{AD}")
        a("s_add_u32 s7, s3, 4")
        a(f"v_xor_b32 v{TT}, s7, v{TB}")
        a(f"v_lshl_add_u32 v{AD2}, v{TT}, 5, v{AD}")
        a(f"v_xor_b32 v{TT}, s3, v{TB}")
        a(f"v_lshl_add_u32 v{AD}, v{TT}, 5, v{AD}")
    else:
        a(f"v_bfe_u32 v{TT}, v1, 3, 1")
        a(f"v_lshl_or_b32 v{TB}, v{TB}, 1, v{TT}")
        a(f"v_xor_b32 v{TB}, s6, v{TB}")
        a(f"v_lshl_add_u32 v{AD}, v{TB}, 5, v{AD}")
        a(f"v_add_u32 v{AD}, {g.slot0*SLOT + g.Boff}, v{AD}")
    d = SLOT if g.slot0 < 2 else -2 * SLOT
    a(f"v_add_u32 v{AD+3}, {d & 0xffffffff}, v{AD}")
    if g.B448:
        a(f"v_add_u32 v{AD2+1}, {d & 0xffffffff}, v{AD2}")
    for i in range(4):
        a(f"v_mov_b32 v{ONE+i}, 0x3f803f80")
    for i in range(16):
        a(f"v_mov_b32 v{ACC+i}, 0")
    srd(a, 24, PWS, wscs, 16 * ncol * 4)
    if p1:
        srd(a, 28, PWS, WS_ST1, S * 8)
    else:
        srd(a, 28, PWS, WS_ST, 16 * S * 8)
        srd(a, 76, PB1, 0, F * 2)
    a(f"v_lshrrev_b32 v{TT}, 4, v1")
    a(f"v_lshlrev_b32 v{TT}, 4, v{TT}")
    a(f"s_mul_i32 s3, s{m}, {ncol*4}")
    a(f"s_mul_i32 s7, s{j}, {256 if p1 else 896}")
    a("s_add_u32 s3, s3, s7")
    a("s_lshl_b32 s7, s6, 6")
    a("s_add_u32 s3, s3, s7")
    a(f"v_add_u32 v{TT}, s3, v{TT}")
    a(f"v_and_b32 v{TB}, 15, v1")
    a(f"v_cmp_eq_u32 vcc, 0, v{TB}")
    a(f"v_mov_b32 v{TB}, {BIG}")
    a(f"v_cndmask_b32 v{A_CSS}, v{TB}, v{TT}, vcc")
    a("s_lshl_b32 s3, s6, 6")
    a(f"v_add_u32 v{TID}, s3, v1")
    if p1:
        a("s_mov_b32 s80, 4096")
        a("s_mov_b32 s81, 8192")
        a(f"s_lshl_b32 s3, s{m}, 10")
        a(f"s_lshl_b32 s7, s{j}, 6")
        a("s_add_u32 s3, s3, s7")
        a("s_lshl_b32 s7, s6, 4")
        a("s_add_u32 s3, s3, s7")
        a(f"v_mov_b32 v{TT}, s3")
        a("v_cmp_eq_u32 vcc, 0, v1")
        a(f"v_cndmask_b32 v{A_ST}, v{TB}, v{TT}, vcc")
        a("v_cmp_gt_u32 vcc, 48, v1")
        a(f"v_lshrrev_b32 v{TT}, 4, v1")
        a(f"v_lshlrev_b32 v{TT}, 12, v{TT}")
        a(f"v_and_b32 v{A_GA}, 15, v1")
        a(f"v_lshl_add_u32 v{TT}, v{A_GA}, 4, v{TT}")
        a(f"s_lshl_b32 s3, s{j}, 8")
        a(f"v_add_u32 v{TT}, s3, v{TT}")
        a(f"v_cndmask_b32 v{A_GA}, v{TB}, v{TT}, vcc")
        a(f"s_lshl_b32 s3, s{m}, 7")
        a("s_sub_u32 s3, s3, 16")
        a(f"v_add_u32 v{TT}, s3, v{TID}")
        a(f"v_max_i32 v{TT}, 0, v{TT}")
        a(f"v_lshlrev_b32 v{TT}, 3, v{TT}")
        a(f"v_cmp_gt_u32 vcc, 144, v{TID}")
        a(f"v_cndmask_b32 v{A_GB}, v{TB}, v{TT}, vcc")
    else:
        a("s_cmp_ge_u32 s6, 2")
        a(f"s_cselect_b32 s3, {BIG}, 0")
        a(f"v_max_u32 v{A_CS3}, s3, v{A_CSS}")
        a(f"v_lshlrev_b32 v{A_ST}, 4, v1")
        a(f"s_lshl_b32 s3, s{m}, 10")
        a("s_lshl_b32 s7, s6, 16")
        a("s_add_u32 s3, s3, s7")
        a(f"v_add_u32 v{A_ST}, s3, v{A_ST}")
        a("v_cmp_gt_u32 vcc, 56, v1")
        a(f"v_lshlrev_b32 v{TT}, 4, v1")
        a(f"s_mul_i32 s3, s{j}, 896")
        a(f"v_add_u32 v{TT}, s3, v{TT}")
        a(f"v_cndmask_b32 v{A_GA}, v{TB}, v{TT}, vcc")
        a(f"v_cmp_gt_u32 vcc, 224, v{TID}")
        a(f"v_lshlrev_b32 v{TT}, 1, v{TID}")
        a(f"s_mul_i32 s3, s{j}, 448")
        a(f"v_add_u32 v{TT}, s3, v{TT}")
        a(f"v_cndmask_b32 v{A_GB}, v{TB}, v{TT}, vcc")
    if nsh == 8:
        a(f"s_and_b32 s82, s{m}, 8")
        a(f"s_mul_i32 s82, s82, {ncol*4}")
    else:
        a("s_mov_b32 s82, 0")
    a(f"s_mul_i32 s3, s6, {(nsh // 4) * ncol * 4}")
    a("s_add_u32 s82, s82, s3")
    a(f"v_lshlrev_b32 v{A_SC}, 4, v1")
    a("s_lshl_b32 s3, s6, 10")
    a(f"s_add_u32 s3, s3, {L_SC}")
    a(f"v_add_u32 v{A_SC}, s3, v{A_SC}")
    srd(a, 84, PWS, WS_FL, 65536)
    a("v_cmp_eq_u32 vcc, 0, v1")
    flag_off(a, 7, flcs - WS_FL, j, m)
    a(f"v_mov_b32 v{TT}, s7")
    a(f"v_cndmask_b32 v{SG}, v{TB}, v{TT}, vcc")
    if p1:
        flag_off(a, 7, 0, m, j)
        a(f"v_mov_b32 v{TT}, s7")
        a(f"v_cndmask_b32 v{SG+4}, v{TB}, v{TT}, vcc")
    else:
        a(f"v_mov_b32 v{SG+2}, s{NONCE}")
        a(f"v_mov_b32 v{SG+3}, s{NONCE+1}")
    a(f"v_lshlrev_b32 v{PA}, 3, v1")
    a(f"s_lshl_b32 s3, s{j}, 9")
    a(f"s_add_u32 s3, s3, {flcs}")
    if p1:
        a(f"s_lshl_b32 s7, s{m}, 9")
        a(f"s_add_u32 s7, s7, {WS_FL}")
        a(f"v_add_u32 v{PA+1}, s7, v{PA}")
        a(f"v_or_b32 v{PA+2}, 56, v1")
        a(f"v_lshlrev_b32 v{PA+2}, 3, v{PA+2}")
        a(f"s_cmp_eq_u32 s{m}, 0")
        a("s_cselect_b32 s34, 0, 512")
        a("s_sub_u32 s7, s7, s34")
        a(f"v_add_u32 v{PA+2}, s7, v{PA+2}")
    if nsh == 8:
        a(f"v_and_b32 v{PA}, 0xff, v{PA}")
        a(f"s_and_b32 s7, s{m}, 8")
        a("s_lshl_b32 s7, s7, 5")
        a("s_add_u32 s3, s3, s7")
    a(f"v_add_u32 v{PA}, s3, v{PA}")
    if p1:
        a("s_lshl_b32 s3, s6, 4")
        a(f"s_add_u32 s3, s3, {L_P0}")
        a(f"v_mov_b32 v{TB}, s3")
        a(f"v_mov_b32 v{VT}, 0")
        a(f"v_mov_b32 v{VT+1}, {L_NONCE}")


WARM = {"left": [56, 56], "save": None}


def warm(a, n, iters=1):
    if not OPT["warm"]:
        return
    w = 0 if WARM["phase"] == 1 else 1
    n = min(n, WARM["left"][w] // iters)
    if n <= 0:
        return
    WARM["left"][w] -= n * iters
    b = 88 if w else 32
    for i in range(n):
        a(f"s_load_dwordx2 s[{90+2*(i&1)}:{91+2*(i&1)}], s[{b}:{b+1}], {60+128*i}")
    a(f"s_add_u32 s{b}, s{b}, {128*n}")
    a(f"s_addc_u32 s{b+1}, s{b+1}, 0")


def fold_body(a, g, both, c, w1, loop, sfx):
    p1 = g.n == 1
    P = f"LD{g.n}{sfx}"
    nsh = 16 if g.map else 8
    nstg = 1 if g.map else 2
    nu = 3 if p1 else 4
    ncol = 3 * D if p1 else F
    npw = nsh // 4

    def cs_reads(r, ad):
        for h in range(2):
            for i in range(nu):
                for jj in range(2):
                    off = (i * 8192 + jj * 512 + h * 4096) if p1 else ((i >> 1) * 256 + jj * 2048 + h * 16384)
                    v = ad if (p1 or not i & 1) else (AD2 if ad == AD else AD2 + 1)
                    r(f"ds_read_b64_tr_b16 {vr(WF+16*h+4*i+2*jj,2)}, v{v} offset:{off}")
        r("s_waitcnt lgkmcnt(0)")

    def cs_mfma(r):
        for h in range(2):
            for i in range(nu):
                r(f"v_mfma_f32_16x16x32_bf16 {vr(ACC+4*i,4)}, {vr(WF+16*h+4*i,4)}, {vr(ONE,4)}, {vr(ACC+4*i,4)}")

    def f0(r):
        cs_reads(r, AD)
        return 0

    def f1(r):
        n = 0
        if p1:
            r.begin()
            r("s_mov_b64 exec, 1")
            r(f"buffer_store_dwordx4 {vr(ST,4)}, v{A_ST}, s[28:31], 0 offen sc1")
            r(f"global_load_dwordx2 v[{VT+2}:{VT+3}], v{VT}, s[{PDBG}:{PDBG+1}] sc1")
            r("s_mov_b64 exec, -1")
            r.end()
            n = 2
        cs_mfma(r)
        if nstg == 2:
            cs_reads(r, AD + 3)
        return n

    def f2(r):
        cs_mfma(r)
        return 0

    def f3(r):
        for i in range(nu):
            r.begin()
            r("s_mov_b32 exec_lo, 0x10001")
            r("s_mov_b32 exec_hi, 0x10001")
            if p1:
                r(f"buffer_store_dwordx4 {vr(ACC+4*i,4)}, v{A_CSS}, s[24:27], {['0','s80','s81'][i]} offen sc1")
            else:
                r(f"buffer_store_dwordx4 {vr(ACC+4*i,4)}, v{A_CSS if i < 3 else A_CS3}, s[24:27], 0 offen offset:{i*256} sc1")
            r("s_mov_b64 exec, -1")
            r.end()
        return nu

    def post3():
        nonce_check(a, P, VT)
        a(f"v_mov_b32 v{SG+2}, s{NONCE}")
        a(f"v_mov_b32 v{SG+3}, s{NONCE+1}")
        a(f"ds_write_b64 v{VT+1}, {vr(SG+2,2)}")

    def f5(r):
        r.begin()
        r("s_mov_b64 exec, 1")
        r(f"buffer_store_dwordx2 {vr(SG+2,2)}, v{SG}, s[84:85+2], 0 offen sc1".replace("85+2", "87"))
        if p1:
            r(f"buffer_store_dwordx2 {vr(SG+2,2)}, v{SG+4}, s[84:87], 0 offen sc1")
        r("s_mov_b64 exec, -1")
        r.end()
        return 2 if p1 else 1

    def pre_allready():
        a(f"{P}_ar:")
        a(f"s_cmp_eq_u32 s{RDY}, 0xffff")
        a(f"s_cbranch_scc1 {P}_ar2")
        poll_once(a)
        a(f"s_branch {P}_ar")
        a(f"{P}_ar2:")

    def f_stload(r):
        for i in range(4):
            r.begin()
            r(f"s_mov_b32 s3, {i*16384}")
            r(f"buffer_load_dwordx4 {vr(ST+4*i,4)}, v{A_ST}, s[28:31], s3 offen sc1")
            r.end()
        return 4

    def f_st1(r):
        for i in range(8):
            r(f"v_add_f32 v{ST+i}, v{ST+i}, v{ST+8+i}")
        for i in range(4):
            r(f"v_add_f32 v{ST+i}, v{ST+i}, v{ST+4+i}")
        r(f"ds_write_b128 v{A_SC}, {vr(ST,4)} offset:{L_SS-L_SC}")
        r(f"v_and_b32 v{TT}, 127, v{TID}")
        r(f"v_lshlrev_b32 v{TT}, 3, v{TT}")
        r(f"v_add_u32 v{TB}, {L_SS}, v{TT}")
        r(f"v_add_u32 v{TT}, {L_ROW}, v{TT}")
        r("s_waitcnt lgkmcnt(0)")
        return 0

    def f_st2(r):
        r(f"ds_read2st64_b64 {vr(ST,4)}, v{TB} offset0:0 offset1:2")
        r(f"ds_read2st64_b64 {vr(ST+4,4)}, v{TB} offset0:4 offset1:6")
        r("s_waitcnt lgkmcnt(0)")
        for i in range(4):
            r(f"v_add_f32 v{ST+i}, v{ST+i}, v{ST+4+i}")
        r(f"v_add_f32 v{ST}, v{ST}, v{ST+2}")
        r(f"v_add_f32 v{ST+1}, v{ST+1}, v{ST+3}")
        r(f"v_mul_f32 v{ST}, {hexf(1/1024)}, v{ST}")
        r(f"v_mul_f32 v{ST+1}, {hexf(1/1024)}, v{ST+1}")
        r(f"v_fma_f32 v{ST+1}, -v{ST}, v{ST}, v{ST+1}")
        r(f"v_max_f32 v{ST+1}, 0, v{ST+1}")
        ln_finish(r, ST, ST + 1, ST + 2)
        r(f"ds_write_b64 v{TT}, {vr(ST+2,2)}")
        return 0

    addrs = [PA] + ([PA + 1, PA + 2] if p1 else [])

    def f_poll(r):
        poll_loads(r, addrs, PA + 4)
        return len(addrs)

    def post_check():
        poll_check(a, P + "cs", addrs, PA + 4)

    def tail0():
        a("s_mov_b32 s3, s82")
        for i in range(npw):
            a(f"buffer_load_dwordx4 {vr(ACC+4*i,4)}, v{A_GA}, s[24:27], s3 offen sc1")
            if i < npw - 1:
                a(f"s_add_u32 s3, s3, {ncol*4}")
        if p1:
            a(f"buffer_load_dwordx2 {vr(ST,2)}, v{A_GB}, s[28:31], 0 offen sc1")
        else:
            a(f"buffer_load_ushort v{WF}, v{A_GB}, s[76:79], 0 offen")
        a(f"v_lshlrev_b32 v{AD}, 2, v{TID}")
        a(f"v_add_u32 v{TB}, {L_SC}, v{AD}")
        a(f"v_add_u32 v{AD}, {L_RS}, v{AD}")
        a(f"v_lshlrev_b32 v{TT}, 3, v{TID}")
        a(f"v_add_u32 v{TT}, {L_ROW}, v{TT}")

    def tail1():
        a("s_setprio 3")
        k = npw
        while k > 1:
            k //= 2
            for i in range(4 * k):
                a(f"v_add_f32 v{ACC+i}, v{ACC+i}, v{ACC+i+4*k}")
        a(f"ds_write_b128 v{A_SC}, {vr(ACC,4)}")
        a("s_waitcnt lgkmcnt(0)")
        a(f"s_setprio {OPT['prio']}")

    def tail2():
        a(f"ds_read2st64_b32 {vr(ACC,2)}, v{TB} offset0:0 offset1:4")
        a(f"ds_read2st64_b32 {vr(ACC+2,2)}, v{TB} offset0:8 offset1:12")
        if p1:
            a(f"ds_write_b32 v{AD}, v{ST}")
            a(f"ds_write_b32 v{AD}, v{ST+1} offset:{L_NM-L_RS}")
            a(f"ds_write_b64 v{TT}, {vr(ST,2)}")
        else:
            a(f"v_lshlrev_b32 v{WF}, 16, v{WF}")
            a(f"ds_write_b32 v{AD}, v{WF} offset:{L_B1-L_RS}")
        a("s_waitcnt lgkmcnt(0)")
        a(f"v_add_f32 v{ACC}, v{ACC}, v{ACC+1}")
        a(f"v_add_f32 v{ACC+2}, v{ACC+2}, v{ACC+3}")
        a(f"v_add_f32 v{ACC}, v{ACC}, v{ACC+2}")
        a(f"ds_write_b32 v{AD}, v{ACC} offset:{L_CS-L_RS}")
        a("s_waitcnt lgkmcnt(0)")

    fill = {1: f1, 3: f3, 5: f5, 11: f_poll}
    post = {13: post_check}
    pre = {}
    nowarm = {0, 1}
    if nstg == 2:
        fill[2] = f2
    if p1:
        post[3] = post3
        r = Rec()
        a(f"ds_read_b128 {vr(ST,4)}, v{TB}")
        cs_reads(a, AD)
        a(f"s_waitcnt vmcnt({w1})")
        a("s_barrier")
        i = 1
        nowarm = {1} if nstg == 2 else set()
    else:
        fill[0] = f0
        pre[7] = pre_allready
        fill[7] = f_stload
        fill[9] = f_st1
        fill[10] = f_st2
        nowarm |= {8, 9, 10}
        i = 0
    tag = 0
    special = set(fill) | set(post) | set(pre) | nowarm
    while i <= g.nst - 3:
        if i in special:
            if i in pre:
                pre[i]()
            r = Rec()
            x = fill[i](r) if i in fill else 0
            hot = any(t.startswith("v_") for grp in r.g for t in grp)
            if hot:
                a("s_setprio 3")
            issue(a, both, fill=r.g)
            if hot:
                a(f"s_setprio {OPT['prio']}")
            if i in post:
                post[i]()
            if i not in nowarm:
                warm(a, WARM["rate"])
            a(f"s_waitcnt vmcnt({c+x})")
            a("s_barrier")
            i += 1
        else:
            k = i
            while k <= g.nst - 3 and k not in special:
                k += 1
            loop(f"t{tag}", k - i)
            tag += 1
            i = k
    return tail0, tail1, tail2


def gen_loader(a):
    a("LOADER:")
    a.hist = []
    a("s_sub_u32 s6, s6, 4")
    if OPT["prio"]:
        a(f"s_setprio {OPT['prio']}")
    a("s_or_b32 s3, s2, s6")
    a("s_cmp_lg_u32 s3, 0")
    a("s_cbranch_scc1 LD_nopub")
    a("s_memrealtime s[34:35]")
    a("v_mov_b32 v2, 0")
    a("s_waitcnt lgkmcnt(0)")
    a("s_or_b32 s34, s34, 1")
    a("v_mov_b32 v4, s34")
    a("v_mov_b32 v5, s35")
    a("s_mov_b64 exec, 1")
    a(f"global_store_dwordx2 v2, v[4:5], s[{PDBG}:{PDBG+1}] sc1")
    a("s_mov_b64 exec, -1")
    a("LD_nopub:")
    stamp(a, "l", "start")
    a("v_lshrrev_b32 v2, 3, v1")
    a("v_and_b32 v3, 7, v1")
    vA, vBs = 8, [16, 24]
    srdB = [12, 16]
    regsB = [(36, 37, 38, 39, 46), (40, 41, 42, 43, 47)]
    regsA = (20, 21, 22, 23, 45, 97)
    SB = {p: Stream(PH[p], False, srdB[p & 1], vBs[p & 1], *regsB[p & 1]) for p in (1, 2, 3, 4)}

    def prepB(p):
        srd(a, SB[p].srd, *PH[p].B)
        ld_offsets_B(a, PH[p], SB[p].v)
        SB[p].init(a)

    prepB(1)
    a("s_lshl_b32 s3, s2, 2")
    a("s_add_u32 s3, s3, s6")
    a("s_mul_i32 s3, s3, 7168")
    a(f"s_add_u32 s88, s{PW2}, s3")
    a(f"s_addc_u32 s89, s{PW2+1}, 0")
    a(f"s_add_u32 s32, s{PW1}, s3")
    a(f"s_addc_u32 s33, s{PW1+1}, 0")
    for p in (1, 2, 3, 4):
        g = PH[p]
        P = f"LD{p}"
        m, j = g.mj
        SA = Stream(g, True, 8, vA, *regsA)
        srd(a, 8, *g.A)
        ld_offsets_A(a, g, vA)
        SA.init(a)
        nBq = g.nB // 4
        nAq = (g.nA + 3) // 4
        if p > 1:
            a(f"s_lshl_b32 s3, s{m}, 11")
            a(f"s_add_u32 s3, s3, {WS_FD + (p-1)*32768}")
            a(f"v_lshlrev_b32 v{PF}, 7, v1")
            a(f"v_add_u32 v{PF}, s3, v{PF}")
            a(f"s_mov_b64 s[{RDY}:{RDY+1}], 0")
            a(f"s_mov_b32 s{TMO}, 0x40000")
            if p < 4:
                prepB(p + 1)
            if p == 3:
                fold_setup(a, g)
            stamp(a, "l", f"p{p}_prepoll")
        variants = [(nAq, "")]
        if g.nA % 4:
            variants = [(nAq, "x"), (nAq - 1, "y")]
            a(f"s_cmp_ge_u32 s6, {g.nA % 4}")
            a(f"s_cbranch_scc1 {P}_y")
        for (na, sfx) in variants:
            if sfx == "y":
                a(f"{P}_y:")
            c = na + nBq
            WARM["phase"], WARM["rate"] = p, OPT[f"wr{p}"] if p < 4 else 0
            if sfx == "x":
                WARM["save"] = list(WARM["left"])
            if sfx == "y":
                WARM["left"] = list(WARM["save"])
            both = [(SB[p], nBq), (SA, na)]
            if p == 1:
                for i in range(3):
                    issue(a, both, i < OPT["nt1"])
                prepB(2)
                fold_setup(a, g)
                w0, w1 = 2 * c, c
            else:
                issue(a, [(SA, na)])
                stamp(a, "l", f"p{p}_A0")
                SA.need(a, f"{P}_x1")
                a("s_waitcnt vmcnt(0)")
                a("s_barrier")
                issue(a, [(SA, na)])
                a(f"s_branch {P}_x2")
                a(f"{P}_x1:")
                issue(a, [(SA, na)], ready=False)
                w0, w1 = na, None
            a(f"s_waitcnt vmcnt({w0})")
            a("s_barrier")
            if p > 1:
                a(f"{P}_x2:")

            def loop(tag, cnt):
                a(f"s_mov_b32 s44, {cnt}")
                a(f"{P}_l{tag}{sfx}:")
                issue(a, both)
                warm(a, WARM["rate"], cnt)
                a(f"s_waitcnt vmcnt({c})")
                a("s_barrier")
                a("s_sub_u32 s44, s44, 1")
                a("s_cmp_lg_u32 s44, 0")
                a(f"s_cbranch_scc1 {P}_l{tag}{sfx}")

            if p in (2, 4):
                loop("a", g.nst - 2)
                tails = (lambda: None, lambda: None, lambda: None)
            else:
                tails = fold_body(a, g, both, c, w1, loop, sfx)
            if p < 4:
                nb2 = PH[p + 1].nB // 4
                tails[0]()
                issue(a, [(SB[p + 1], nb2)])
                a(f"s_waitcnt vmcnt({nb2})")
                tails[1]()
                a("s_barrier")
                tails[2]()
                a("s_barrier")
                issue(a, [(SB[p + 1], nb2)])
                if p == 1 and OPT["touch1"] and OPT["warm"] and WARM["left"][0]:
                    a(f"v_lshlrev_b32 v{TT}, 7, v1")
                    a(f"s_mov_b64 exec, {hex((1 << WARM['left'][0]) - 1)}")
                    a(f"global_load_dword v{TB}, v{TT}, s[32:33]")
                    a("s_mov_b64 exec, -1")
                WARM["phase"] = 2
                warm(a, OPT["wg"])
            else:
                a("s_waitcnt vmcnt(0)")
                a("s_barrier")
                a("s_barrier")
            if sfx == "x":
                a(f"s_branch {P}_e")
        a(f"{P}_e:")
    print("warm lines not covered:", WARM["left"])
    stamp(a, "l", "end")
    stamp_flush(a, 4)
    a("s_endpgm")


def gen_mainloop(a, g, P):
    a(f"s_mov_b32 s42, {g.slot0}")
    a(f"s_mov_b32 s46, {(-2*SLOT) & 0xffffffff}")
    a(f"s_mov_b32 s47, {SLOT}")
    a(f"s_mov_b32 s43, {g.nst}")
    a("s_waitcnt lgkmcnt(0)")
    a("s_barrier")
    stamp(a, "c", f"p{g.n}_B0")
    for r in g.reads(0, 0):
        a(r)
    a(f"{P}_loop:")
    sal = ["s_cmp_eq_u32 s42, 2", "s_cselect_b32 s44, s46, s47"]
    sal2 = ["s_add_u32 s42, s42, 1", "s_cmp_eq_u32 s42, 3", "s_cselect_b32 s42, 0, s42",
            "s_sub_u32 s43, s43, 1", "s_cmp_lg_u32 s43, 0"]
    a("s_waitcnt lgkmcnt(0)")
    if OPT["stamp"] == 2:
        base = {1: 0, 2: 17, 3: 26, 4: 0}[g.n]
        a(f"s_add_u32 m0, s43, {base}")
        a(f"v_writelane_b32 v{253 if g.n == 4 else 252}, s98, m0")
        a("s_memtime s[98:99]")
    interleave(a, g.mfmas(0), g.reads(1, 1) + sal + [f"v_add_u32 v{v}, s44, v{v}" for v in g.adv])
    a("s_waitcnt lgkmcnt(0)")
    interleave(a, g.mfmas(1), g.reads(0, 0) + sal2, first=["s_barrier"])
    a(f"s_cbranch_scc1 {P}_loop")
    a("s_waitcnt lgkmcnt(0)")
    if OPT["stamp"] == 2:
        a(f"v_writelane_b32 v{253 if g.n == 4 else 252}, s98, {base}")
    stamp(a, "c", f"p{g.n}_loopend")


L15, GQ = 2, 3


def b_addr128(a, V, units, sbase):
    t = V.alloc()
    f = V.alloc()
    base = V.alloc()
    a(f"v_bfe_u32 v{f}, v{L15}, 3, 1")
    a(f"v_and_b32 v{t}, 1, v{GQ}")
    a(f"v_lshl_or_b32 v{f}, v{t}, 1, v{f}")
    a(f"v_lshrrev_b32 v{t}, 2, v{L15}")
    a(f"v_lshl_add_u32 v{t}, v{GQ}, 3, v{t}")
    a(f"v_lshlrev_b32 v{base}, 7, v{t}")
    a(f"v_and_b32 v{t}, 3, v{L15}")
    a(f"v_lshl_add_u32 v{base}, v{t}, 3, v{base}")
    a(f"v_add_u32 v{base}, s{sbase}, v{base}")
    out = []
    for u in units:
        v0 = V.alloc()
        a(f"v_xor_b32 v{t}, {u}, v{f}")
        a(f"v_lshl_add_u32 v{v0}, v{t}, 5, v{base}")
        out.append(v0)
    return out


def zero_acc(a, acc, n):
    for i in range(n):
        a(f"v_mov_b32 v{acc+i}, 0")


def pair_post(a, tag, vt):
    a("s_lshl_b32 s3, s6, 2")
    a(f"s_add_u32 s3, s3, {L_PAIR}")
    a(f"v_mov_b32 v{vt}, s3")
    a(f"v_mov_b32 v{vt+1}, {tag}")
    a("s_waitcnt lgkmcnt(0)")
    a(f"ds_write_b32 v{vt}, v{vt+1}")


def pair_wait(a, lab, tag, xor, vt):
    a(f"v_xor_b32 v{vt}, {xor*4}, v{vt}")
    a(f"{lab}_ps:")
    a(f"ds_read_b32 v{vt+1}, v{vt}")
    a("s_waitcnt lgkmcnt(0)")
    a(f"v_readfirstlane_b32 s3, v{vt+1}")
    a(f"s_cmp_lg_u32 s3, {tag}")
    a(f"s_cbranch_scc1 {lab}_ps")


def finish_phase(a, p, g, vt):
    m, j = g.mj
    a(f"s_lshl_b32 s7, s{m}, 11")
    a(f"s_lshl_b32 s3, s{j}, 7")
    a("s_add_u32 s7, s7, s3")
    a(f"s_add_u32 s7, s7, {WS_FD + p*32768}")
    a(f"v_mov_b32 v{vt}, {L_CNT}")
    a(f"v_mov_b32 v{vt+1}, 1")
    a(f"v_mov_b32 v{vt+2}, s{NONCE}")
    a(f"v_mov_b32 v{vt+3}, s{NONCE+1}")
    a("s_mov_b64 exec, 1")
    a("s_waitcnt vmcnt(0)")
    a(f"ds_add_rtn_u32 v{vt+1}, v{vt}, v{vt+1}")
    a(f"v_mov_b32 v{vt}, s7")
    a("s_waitcnt lgkmcnt(0)")
    a(f"v_readfirstlane_b32 s3, v{vt+1}")
    a(f"s_cmp_lg_u32 s3, {4*p-1}")
    a(f"s_cbranch_scc1 FIN{p}")
    a(f"global_store_dwordx2 v{vt}, v[{vt+2}:{vt+3}], s[{PWS}:{PWS+1}] sc1")
    a(f"FIN{p}:")
    a("s_mov_b64 exec, -1")
    stamp(a, "c", f"p{p}_done")


def frag_lane_off(a, d, t):
    a(f"v_and_b32 v{t}, 1, v{GQ}")
    a(f"v_lshlrev_b32 v{d}, 9, v{t}")
    a(f"v_lshrrev_b32 v{t}, 1, v{GQ}")
    a(f"v_lshl_add_u32 v{d}, v{t}, 8, v{d}")
    a(f"v_lshl_add_u32 v{d}, v{L15}, 4, v{d}")


def gen_p0(a):
    g = PH[1]
    m, j = g.mj
    srd(a, 8, PX, 0, S * D * 2)
    a(f"s_lshl_b32 s3, s{m}, 7")
    a(f"s_lshl_b32 s7, s{j}, 3")
    a("s_add_u32 s3, s3, s7")
    a("s_lshl_b32 s7, s6, 1")
    a("s_add_u32 s34, s3, s7")
    a("s_lshl_b32 s3, s34, 11")
    a("v_lshlrev_b32 v4, 4, v1")
    for rr in range(2):
        for hh in range(2):
            a(f"buffer_load_dwordx4 v[{24+rr*8+hh*4}:{27+rr*8+hh*4}], v4, s[8:11], s3 offen offset:{rr*2048+hh*1024}")
    a("s_lshl_b32 s3, s6, 2")
    a(f"s_add_u32 s3, s3, {L_PAIR}")
    a("v_mov_b32 v5, s3")
    a("v_mov_b32 v6, 0")
    a("ds_write_b32 v5, v6")
    a(f"v_mov_b32 v5, {L_CNT}")
    a("ds_write_b32 v5, v6")


def gen_p0b(a):
    a("s_waitcnt vmcnt(0)")
    a("v_mov_b32 v48, 0x3f803f80")
    R = [40, 41, 42, 43]
    for i in range(8):
        for rr in range(2):
            x = 24 + rr * 8 + i
            a(f"v_dot2_f32_bf16 v{R[2*rr]}, v{x}, v48, {'0' if i == 0 else 'v%d' % R[2*rr]}")
            a(f"v_dot2_f32_bf16 v{R[2*rr+1]}, v{x}, v{x}, {'0' if i == 0 else 'v%d' % R[2*rr+1]}")
    a("s_nop 2")
    wave_sum_multi(a, R, [44, 45, 46, 47])
    for rr in range(2):
        a(f"v_mul_f32 v{R[2*rr]}, {hexf(1.0/1024)}, v{R[2*rr]}")
        a(f"v_mul_f32 v{R[2*rr+1]}, {hexf(1.0/1024)}, v{R[2*rr+1]}")
        a(f"v_fma_f32 v{R[2*rr+1]}, -v{R[2*rr]}, v{R[2*rr]}, v{R[2*rr+1]}")
        a(f"v_max_f32 v{R[2*rr+1]}, 0, v{R[2*rr+1]}")
    for rr in range(2):
        ln_finish(a, R[2 * rr], R[2 * rr + 1], 44 + 2 * rr)
    a("s_lshl_b32 s3, s6, 4")
    a(f"s_add_u32 s3, s3, {L_P0}")
    a("v_mov_b32 v48, s3")
    a("ds_write_b128 v48, v[44:47]")
    stamp(a, "c", "p0_done")


def gen_p1(a):
    g = PH[1]
    m, j = g.mj
    g2 = PH[2]
    V = Regs("v", 68, RES)
    srd(a, 20, PWS, WS_O, S * D * 2)
    a("s_and_b32 s34, s6, 1")
    a("s_lshr_b32 s35, s6, 1")
    a("s_lshl_b32 s36, s34, 13")
    t = 4
    vA, vAh = [5, 6], [7, 8]
    for h in range(2):
        a(f"v_lshrrev_b32 v{t}, 1, v{L15}")
        a(f"v_xor_b32 v{t}, v{t}, v{GQ}")
        if h:
            a(f"v_xor_b32 v{t}, 4, v{t}")
        a(f"v_lshlrev_b32 v{t}, 4, v{t}")
        a(f"v_lshl_add_u32 v{vAh[h]}, v{L15}, 7, v{t}")
        if g.slot0:
            a(f"v_add_u32 v{vAh[h]}, {g.slot0*SLOT}, v{vAh[h]}")
        a(f"v_add_u32 v{vA[h]}, s36, v{vAh[h]}")
        a(f"v_add_u32 v{vA[h]}, 2048, v{vA[h]}")
    a(f"s_mov_b32 s36, {g.Boff + g.slot0*SLOT}")
    a("s_lshl_b32 s37, s35, 1")
    a("s_add_u32 s38, s37, 1")
    V2 = Regs("v", 12, 24)
    vB = b_addr128(a, V2, ["s37", "s38"], 36)
    acc = V.alloc(104, 4)
    W = [V.alloc(24, 4), 0]
    X = [V.alloc(20, 4), 0]
    W[1], X[1] = 24, 48
    accr = lambda t, u: acc + (t * 4 + u) * 4
    acch = lambda c: acc + 96 + c * 4
    zero_acc(a, acc, 104)
    gen_p0b(a)

    def reads(h, b):
        r = []
        for u in range(4):
            r.append(f"ds_read_b128 {vr(X[b]+4*u,4)}, v{vA[h]} offset:{u*2048}")
        for t in range(6):
            for jj in range(2):
                r.append(f"ds_read_b64_tr_b16 {vr(W[b]+4*t+2*jj,2)}, v{vB[t&1]} offset:{(t>>1)*8192+jj*512+h*4096}")
            if t == 1:
                r.append(f"ds_read_b128 {vr(X[b]+16,4)}, v{vAh[h]}")
        return r

    def mk_mfmas(rsel):
        def mfmas(b):
            ml = []
            for t in range(6):
                for u in range(4):
                    w, x, d = vr(W[b] + 4 * t, 4), vr(X[b] + 4 * u, 4), vr(accr(t, u), 4)
                    ml.append(f"v_mfma_f32_16x16x32_bf16 {d}, {w}, {x}, {d}" if t < 4 else
                              f"v_mfma_f32_16x16x32_bf16 {d}, {x}, {w}, {d}")
                if (t >> 1) == 1 + rsel:
                    w, x, d = vr(W[b] + 4 * t, 4), vr(X[b] + 16, 4), vr(acch(t & 1), 4)
                    ml.append(f"v_mfma_f32_16x16x32_bf16 {d}, {w}, {x}, {d}" if t < 4 else
                              f"v_mfma_f32_16x16x32_bf16 {d}, {x}, {w}, {d}")
            return ml
        return mfmas

    g.reads = reads
    g.adv = vA + vAh + vB
    a("s_cmp_eq_u32 s34, 1")
    a("s_cbranch_scc1 P1_r1")
    g.mfmas = mk_mfmas(0)
    gen_mainloop(a, g, "P1a")
    a("s_branch P1_epi")
    a("P1_r1:")
    g.mfmas = mk_mfmas(1)
    gen_mainloop(a, g, "P1b")
    a("P1_epi:")
    RP = 24
    CSq = 36
    CSv = 34
    R4 = W[0]
    N4 = W[0] + 20
    assert X[0] == W[0] + 24
    T = 52
    a("s_lshl_b32 s36, s34, 9")
    a(f"s_add_u32 s36, s36, {L_ROW + 128}")
    a(f"v_lshlrev_b32 v4, 3, v{L15}")
    a(f"v_add_u32 v5, {L_ROW}, v4")
    a(f"v_add_u32 v4, s36, v4")
    a(f"ds_read_b64 {vr(RP+8,2)}, v5")
    a(f"v_mov_b32 v16, {L_NONCE}")
    a("ds_read_b64 v[16:17], v16")
    a(f"v_lshlrev_b32 v6, 4, v{GQ}")
    a("s_lshl_b32 s36, s35, 7")
    a(f"s_add_u32 s36, s36, {L_CS}")
    a(f"v_add_u32 v7, s36, v6")
    for c in range(2):
        a(f"ds_read_b128 {vr(CSq+8+4*c,4)}, v7 offset:{256+64*c}")
    a(f"v_lshlrev_b32 v8, 2, v{L15}")
    a(f"v_add_u32 v8, s36, v8")
    a(f"ds_read2_b32 {vr(CSv,2)}, v8 offset0:128 offset1:144")
    a(f"v_add_u32 v9, {L_RS}, v6")
    a(f"ds_read_b128 {vr(R4+16,4)}, v9")
    a(f"ds_read_b128 {vr(N4+16,4)}, v9 offset:{L_NM-L_RS}")
    for u in (3, 2, 1, 0):
        a(f"ds_read_b64 {vr(RP+2*u,2)}, v4 offset:{u*128}")
    a("s_lshl_b32 s36, s34, 8")
    a(f"v_add_u32 v9, s36, v9")
    for u in (3, 2, 1, 0):
        a(f"ds_read_b128 {vr(R4+4*u,4)}, v9 offset:{64+64*u}")
        a(f"ds_read_b128 {vr(N4+4*u,4)}, v9 offset:{64+64*u+L_NM-L_RS}")
    for c in range(2):
        a(f"ds_read_b128 {vr(CSq+4*c,4)}, v7 offset:{64*c}")
    m2, j2 = g2.mj
    a(f"s_lshl_b32 s36, s{m2}, 7")
    a("s_lshl_b32 s37, s34, 6")
    a("s_add_u32 s36, s36, s37")
    a("s_lshl_b32 s37, s35, 5")
    a("s_add_u32 s36, s36, s37")
    a(f"v_add_u32 v10, s36, v{L15}")
    a("v_lshlrev_b32 v10, 11, v10")
    a(f"v_lshl_add_u32 v10, v{GQ}, 3, v10")
    a(f"s_lshl_b32 s36, s{j2}, 7")
    a("s_add_u32 s37, s36, 32768")
    for uu in range(2):
        for t_ in range(4):
            a(f"buffer_load_dwordx2 {vr(RES+8*uu+2*t_,2)}, v10, s[8:11], s{36+uu} offen offset:{32*t_}")

    def fold_qk(d, cs, rp):
        for i in (0, 2):
            a(f"v_pk_mul_f32 {vr(T+i,2)}, {vr(cs+i,2)}, {vr(rp,2)} op_sel:[0,1] op_sel_hi:[1,1]")
        for i in (0, 2):
            a(f"v_pk_fma_f32 {vr(d+i,2)}, {vr(d+i,2)}, {vr(rp,2)}, {vr(T+i,2)} op_sel:[0,0,0] op_sel_hi:[1,0,1]")

    def fold_v(d, c, ui):
        for i in (0, 2):
            a(f"v_pk_mul_f32 {vr(T+i,2)}, {vr(N4+4*ui+i,2)}, {vr(CSv,2)} op_sel:[0,{c}] op_sel_hi:[1,{c}]")
        for i in (0, 2):
            a(f"v_pk_fma_f32 {vr(d+i,2)}, {vr(d+i,2)}, {vr(R4+4*ui+i,2)}, {vr(T+i,2)}")

    def pack(dst, d):
        a(f"v_cvt_pk_bf16_f32 v{dst}, v{d}, v{d+1}")
        a(f"v_cvt_pk_bf16_f32 v{dst+1}, v{d+2}, v{d+3}")

    ex, PV = 12, 14
    a(f"v_lshlrev_b32 v{ex}, 4, v1")
    a("s_mul_i32 s36, s35, 3072")
    a(f"s_add_u32 s36, s36, {g.exch}")
    a(f"v_add_u32 v{ex}, s36, v{ex}")
    Hp = 60
    a("s_waitcnt lgkmcnt(0)")
    a(f"v_readfirstlane_b32 s{NONCE}, v16")
    a(f"v_readfirstlane_b32 s{NONCE+1}, v17")
    a("s_cmp_eq_u32 s34, 1")
    a("s_cbranch_scc1 P1_ex1")
    for c in range(2):
        fold_qk(accr(2 + c, 3), CSq + 8 + 4 * c, RP + 6)
        fold_v(accr(4 + c, 3), c, 3)
    for c in range(2):
        pack(Hp + 2 * c, accr(2 + c, 3))
        pack(Hp + 4 + 2 * c, accr(4 + c, 3))
    a(f"ds_write_b128 v{ex}, {vr(Hp,4)}")
    a(f"ds_write_b128 v{ex}, {vr(Hp+4,4)} offset:1024")
    pair_post(a, 1, PV)
    for c in range(2):
        fold_qk(acch(c), CSq + 8 + 4 * c, RP + 8)
    a("s_branch P1_ex2")
    a("P1_ex1:")
    for c in range(2):
        fold_v(acch(c), c, 4)
    for c in range(2):
        pack(Hp + 2 * c, acch(c))
    a(f"ds_write_b128 v{ex}, {vr(Hp,4)} offset:2048")
    pair_post(a, 1, PV)
    for c in range(2):
        fold_qk(accr(2 + c, 3), CSq + 8 + 4 * c, RP + 6)
        fold_v(accr(4 + c, 3), c, 3)
    a("P1_ex2:")
    for u in range(3):
        for c in range(2):
            fold_qk(accr(2 + c, u), CSq + 8 + 4 * c, RP + 2 * u)
            fold_v(accr(4 + c, u), c, u)
    a(f"s_mov_b32 s36, {hexf(32 ** -0.5 * math.log2(math.e))}")
    a("s_mov_b32 s37, s36")
    for u in range(4):
        a(f"v_pk_mul_f32 {vr(RP+2*u,2)}, {vr(RP+2*u,2)}, s[36:37]")
    for u in range(4):
        for c in range(2):
            fold_qk(accr(c, u), CSq + 4 * c, RP + 2 * u)
    Kf, Vp, Qf = W[0], [W[0] + 20, W[0] + 30], 24
    for u in range(4):
        for c in range(2):
            pack(Kf + 4 * (u + 1) + 2 * c, accr(2 + c, u))
            pack(Vp[c] + 2 * (u + 1), accr(4 + c, u))
            pack(Qf + 4 * u + 2 * c, accr(c, u))
    a("s_cmp_eq_u32 s34, 1")
    a("s_cbranch_scc1 P1_ex3")
    for c in range(2):
        pack(Kf + 2 * c, acch(c))
    pair_wait(a, "P1a", 1, 1, PV)
    for c in range(2):
        a(f"ds_read_b64 {vr(Vp[c],2)}, v{ex} offset:{2048+8*c}")
    a("s_branch P1_ex4")
    a("P1_ex3:")
    pair_wait(a, "P1b", 1, 1, PV)
    a(f"ds_read_b128 {vr(Kf,4)}, v{ex}")
    for c in range(2):
        a(f"ds_read_b64 {vr(Vp[c],2)}, v{ex} offset:{1024+8*c}")
    a("P1_ex4:")
    t0, t1 = acc, acc + 1
    MA, MB = acc + 2, acc + 4
    a(f"v_and_b32 v{t0}, 1, v{L15}")
    a(f"v_cmp_eq_u32 s[76:77], 1, v{t0}")
    a(f"v_lshl_add_u32 v{t0}, v{GQ}, 2, v{t0}")
    a(f"v_cmp_le_u32 s[78:79], v{t0}, v{L15}")
    a(f"v_add_u32 v{t0}, 2, v{t0}")
    a(f"v_cmp_le_u32 s[80:81], v{t0}, v{L15}")
    a(f"v_mov_b32 v{t0}, 0xffff")
    a(f"v_mov_b32 v{t1}, 0xffff0000")
    a(f"v_cndmask_b32 v{t0}, v{t0}, v{t1}, s[76:77]")
    a(f"v_cndmask_b32 v{MA}, v{t0}, 0, s[78:79]")
    a(f"v_cndmask_b32 v{MA+1}, 0, v{t0}, s[78:79]")
    a(f"v_cndmask_b32 v{MB}, v{t0}, 0, s[80:81]")
    a(f"v_cndmask_b32 v{MB+1}, 0, v{t0}, s[80:81]")
    a(f"s_or_b32 s36, s{m}, s34")
    a("s_cmp_eq_u32 s36, 0")
    a("s_cselect_b64 s[82:83], s[78:79], -1")
    a("s_cselect_b64 s[84:85], s[80:81], -1")
    vo = acc + 6
    frag_lane_off(a, vo, t0)
    a(f"s_lshl_b32 s36, s{m}, 3")
    a("s_lshl_b32 s37, s34, 2")
    a("s_add_u32 s36, s36, s37")
    a("s_lshl_b32 s36, s36, 5")
    a(f"s_lshl_b32 s37, s{j}, 1")
    a("s_add_u32 s36, s36, s37")
    a("s_add_u32 s36, s36, s35")
    a("s_lshl_b32 s36, s36, 10")
    a(f"v_add_u32 v{vo}, s36, v{vo}")
    NEG = acc + 7
    a(f"v_mov_b32 v{NEG}, 0xff800000")
    Sc = acc + 8
    for u in (1, 2, 3):
        for blk in range(2):
            a(f"v_mfma_f32_16x16x32_bf16 {vr(Sc+8*u+4*blk,4)}, {vr(Kf+4*(u+blk),4)}, {vr(Qf+4*u,4)}, 0")
    a("s_waitcnt lgkmcnt(0)")
    for blk in (1, 0):
        a(f"v_mfma_f32_16x16x32_bf16 {vr(Sc+4*blk,4)}, {vr(Kf+4*blk,4)}, {vr(Qf,4)}, 0")
    VA, VB_, MX, TM = acc + 40, acc + 44, acc + 48, acc + 52
    order = (1, 2, 3, 0)
    for u in order:
        s = Sc + 8 * u
        a(f"v_cndmask_b32 v{s}, v{s}, v{s+1}, s[76:77]")
        a(f"v_cndmask_b32 v{s+4}, v{s+4}, v{s+5}, s[76:77]")
        a(f"v_cndmask_b32 v{s+2}, v{s+2}, v{s+3}, s[76:77]")
        a(f"v_cndmask_b32 v{s+6}, v{s+6}, v{s+7}, s[76:77]")
        a(f"v_cndmask_b32 v{VA+u}, v{s}, v{s+4}, s[78:79]")
        a(f"v_cndmask_b32 v{VB_+u}, v{s+2}, v{s+6}, s[80:81]")
    a(f"v_cndmask_b32 v{VA}, v{NEG}, v{VA}, s[82:83]")
    a(f"v_cndmask_b32 v{VB_}, v{NEG}, v{VB_}, s[84:85]")
    for u in order:
        a(f"v_max_f32 v{MX+u}, v{VA+u}, v{VB_+u}")
    xrow_reduce_multi(a, "v_max_f32", [MX + u for u in order], [TM + u for u in order])
    for u in order:
        a(f"v_sub_f32 v{VA+u}, v{VA+u}, v{MX+u}")
        a(f"v_sub_f32 v{VB_+u}, v{VB_+u}, v{MX+u}")
    for u in order:
        a(f"v_exp_f32 v{VA+u}, v{VA+u}")
        a(f"v_exp_f32 v{VB_+u}, v{VB_+u}")
    for u in order:
        a(f"v_add_f32 v{MX+u}, v{VA+u}, v{VB_+u}")
    xrow_reduce_multi(a, "v_add_f32", [MX + u for u in order], [TM + u for u in order])
    for u in order:
        a(f"v_rcp_f32 v{MX+u}, v{MX+u}")
    for u in order:
        a(f"v_mul_f32 v{VA+u}, v{VA+u}, v{MX+u}")
        a(f"v_mul_f32 v{VB_+u}, v{VB_+u}, v{MX+u}")
    for u in order:
        a(f"v_cvt_pk_bf16_f32 v{VA+u}, v{VA+u}, v{VA+u}")
        a(f"v_cvt_pk_bf16_f32 v{VB_+u}, v{VB_+u}, v{VB_+u}")
    Pp, Om = acc + 56, acc + 72
    for u in order:
        a(f"v_and_b32 v{Pp+4*u}, v{VA+u}, v{MA}")
        a(f"v_and_b32 v{Pp+4*u+1}, v{VB_+u}, v{MB}")
        a(f"v_and_b32 v{Pp+4*u+2}, v{VA+u}, v{MA+1}")
        a(f"v_and_b32 v{Pp+4*u+3}, v{VB_+u}, v{MB+1}")
    for u in order:
        for c in range(2):
            a(f"v_mfma_f32_16x16x32_bf16 {vr(Om+8*u+4*c,4)}, {vr(Vp[c]+2*u,4)}, {vr(Pp+4*u,4)}, 0")
    for u in range(4):
        a(f"s_mov_b32 s{76+u}, {u*32768}")
    for u in order:
        o = Om + 8 * u
        p = Sc + 4 * u
        for i in range(4):
            a(f"v_cvt_pk_bf16_f32 v{p+i}, v{o+2*i}, v{o+2*i+1}")
    for u in order:
        p = Sc + 4 * u
        a(f"v_permlane16_swap_b32 v{p}, v{p+2}")
        a(f"v_permlane16_swap_b32 v{p+1}, v{p+3}")
        a(f"buffer_store_dwordx4 {vr(p,4)}, v{vo}, s[20:23], s{76+u} offen sc1")
    stamp(a, "c", "p1_stored")
    finish_phase(a, 1, g, acc + 40)


def gen_p24(a, which):
    g = PH[which]
    m, j = g.mj
    k2 = which == 2
    P = f"P{which}"
    V = Regs("v", 4, RES)
    if k2:
        srd(a, 16, PWS, WS_H, S * D * 2)
        srd(a, 24, PWS, WS_ST, 16 * S * 8)
    else:
        srd(a, 16, POUT, 0, S * D * 2)
    a("s_and_b32 s34, s6, 1")
    a("s_lshr_b32 s35, s6, 1")
    vA = [V.alloc(), V.alloc()]
    a("s_lshl_b32 s36, s34, 14")
    a("s_lshl_b32 s37, s35, 11")
    a("s_add_u32 s36, s36, s37")
    a(f"s_add_u32 s36, s36, {g.slot0*SLOT}")
    a(f"v_lshlrev_b32 v{vA[0]}, 4, v1")
    a(f"v_add_u32 v{vA[0]}, s36, v{vA[0]}")
    a("s_lshl_b32 s37, s35, 13")
    a(f"s_sub_u32 s38, 8192, s37")
    a(f"v_add_u32 v{vA[1]}, s38, v{vA[0]}")
    a(f"v_add_u32 v{vA[0]}, s37, v{vA[0]}")
    a("s_lshl_b32 s36, s35, 13")
    a(f"s_add_u32 s36, s36, {g.Boff + g.slot0*SLOT}")
    vB = b_addr128(a, V, [0, 1, 2, 3], 36)
    acc = V.alloc(64, 4)
    X = [V.alloc(16, 4) for _ in range(2)]
    W = [V.alloc(16, 4) for _ in range(2)]
    accr = lambda t, u: acc + (t * 4 + u) * 4
    vo, t0, vrow, ex, exr, PV = V.alloc(), V.alloc(), V.alloc(), V.alloc(), V.alloc(), V.alloc(2)
    a(f"s_lshl_b32 s36, s{m}, 7")
    a("s_lshl_b32 s37, s34, 6")
    a("s_add_u32 s36, s36, s37")
    a("s_lshl_b32 s37, s35, 5")
    a("s_add_u32 s36, s36, s37")
    if k2:
        a(f"v_add_u32 v{vrow}, s36, v{L15}")
        a(f"v_lshlrev_b32 v{vrow}, 3, v{vrow}")
        a(f"v_cmp_eq_u32 vcc, 0, v{GQ}")
        a(f"v_mov_b32 v{t0}, {BIG}")
        a(f"v_cndmask_b32 v{vrow}, v{t0}, v{vrow}, vcc")
        frag_lane_off(a, vo, t0)
        a("s_lshl_b32 s36, s36, 11")
        a(f"s_lshl_b32 s37, s{j}, 11")
        a("s_add_u32 s36, s36, s37")
        a(f"v_add_u32 v{vo}, s36, v{vo}")
    else:
        a(f"v_add_u32 v{vo}, s36, v{L15}")
        a(f"v_lshlrev_b32 v{vo}, 11, v{vo}")
        a(f"v_and_b32 v{t0}, 1, v{GQ}")
        a(f"v_lshl_add_u32 v{vo}, v{t0}, 5, v{vo}")
        a(f"v_lshrrev_b32 v{t0}, 1, v{GQ}")
        a(f"v_lshl_add_u32 v{vo}, v{t0}, 4, v{vo}")
        a(f"s_lshl_b32 s36, s{j}, 7")
        a(f"v_add_u32 v{vo}, s36, v{vo}")
    a("s_mov_b32 s45, 32768")
    a(f"v_lshlrev_b32 v{ex}, 4, v1")
    a("s_lshl_b32 s36, s6, 13")
    a(f"v_add_u32 v{ex}, s36, v{ex}")
    a(f"v_xor_b32 v{exr}, 16384, v{ex}")
    a(f"v_add_u32 v{ex}, {g.exch}, v{ex}")
    a(f"v_add_u32 v{exr}, {g.exch}, v{exr}")
    for t in range(4):
        for uu in range(2):
            d = accr(t, uu)
            for i in range(2):
                a(f"v_lshlrev_b32 v{d+2*i}, 16, v{RES+8*uu+2*t+i}")
                a(f"v_and_b32 v{d+2*i+1}, 0xffff0000, v{RES+8*uu+2*t+i}")
        if not k2:
            z = accr(t, 2)
            for i in range(2):
                a(f"v_lshlrev_b32 v{z+2*i}, 16, v{BIA+2*t+i}")
                a(f"v_and_b32 v{z+2*i+1}, 0xffff0000, v{BIA+2*t+i}")
            for uu in range(2):
                for i in (0, 2):
                    a(f"v_pk_add_f32 {vr(accr(t,uu)+i,2)}, {vr(accr(t,uu)+i,2)}, {vr(z+i,2)}")
        zero_acc(a, accr(t, 2), 8)

    def reads(h, b):
        r = []
        for u in range(4):
            r.append(f"ds_read_b128 {vr(X[b]+4*u,4)}, v{vA[u>>1]} offset:{(u&1)*4096+h*1024}")
        for t in range(4):
            for jj in range(2):
                r.append(f"ds_read_b64_tr_b16 {vr(W[b]+4*t+2*jj,2)}, v{vB[t]} offset:{jj*512+h*4096}")
        return r

    def mfmas(b):
        ml = []
        for t in range(4):
            for u in (2, 3, 0, 1):
                w, x, d = vr(W[b] + 4 * t, 4), vr(X[b] + 4 * u, 4), vr(accr(t, u), 4)
                ml.append(f"v_mfma_f32_16x16x32_bf16 {d}, {w}, {x}, {d}")
        return ml

    g.reads, g.mfmas = reads, mfmas
    g.adv = vA + vB
    gen_mainloop(a, g, P)
    for t in range(4):
        for uu in range(2):
            a(f"ds_write_b128 v{ex}, {vr(accr(t, 2+uu),4)} offset:{(t*2+uu)*1024}")
    pair_post(a, which, PV)
    pair_wait(a, P, which, 2, PV)
    Rv = X[0]
    assert X[1] == X[0] + 16
    lst = [(t, uu) for uu in range(2) for t in range(4)]
    for (t, uu) in lst:
        a(f"ds_read_b128 {vr(Rv+(t*2+uu)*4,4)}, v{exr} offset:{(t*2+uu)*1024}")
    ob = W[0]
    for n_, (t, uu) in enumerate(lst):
        a(f"s_waitcnt lgkmcnt({7-n_})")
        d = accr(t, uu)
        for i in (0, 2):
            a(f"v_pk_add_f32 {vr(d+i,2)}, {vr(d+i,2)}, {vr(Rv+(t*2+uu)*4+i,2)}")
        o = ob + 8 * uu + 2 * t
        a(f"v_cvt_pk_bf16_f32 v{o}, v{d}, v{d+1}")
        a(f"v_cvt_pk_bf16_f32 v{o+1}, v{d+2}, v{d+3}")
        if k2:
            a(f"v_mov_b32 v{RES+8*uu+2*t}, v{o}")
            a(f"v_mov_b32 v{RES+8*uu+2*t+1}, v{o+1}")
        if t & 1:
            o -= 2
            a(f"v_permlane16_swap_b32 v{o}, v{o+2}")
            a(f"v_permlane16_swap_b32 v{o+1}, v{o+3}")
            so = "s45" if uu else "0"
            if k2:
                a(f"buffer_store_dwordx4 {vr(o,4)}, v{vo}, s[16:19], {so} offen offset:{1024*(t>>1)} sc1")
            else:
                a(f"buffer_store_dwordx4 {vr(o,4)}, v{vo}, s[16:19], {so} offen offset:{64*(t>>1)}")
    if k2:
        SM = [Rv, Rv + 2]
        PK = [Rv + 8, Rv + 10]
        PQ = [Rv + 12, Rv + 14]
        for uu in range(2):
            a(f"v_pk_add_f32 {vr(PK[uu],2)}, {vr(accr(0,uu),2)}, {vr(accr(0,uu)+2,2)}")
            a(f"v_pk_mul_f32 {vr(PQ[uu],2)}, {vr(accr(0,uu),2)}, {vr(accr(0,uu),2)}")
        for t in range(4):
            for i in (0, 2):
                for uu in range(2):
                    d = vr(accr(t, uu) + i, 2)
                    if t:
                        a(f"v_pk_add_f32 {vr(PK[uu],2)}, {vr(PK[uu],2)}, {d}")
                    if t or i:
                        a(f"v_pk_fma_f32 {vr(PQ[uu],2)}, {d}, {d}, {vr(PQ[uu],2)}")
        for uu in range(2):
            a(f"v_add_f32 v{SM[uu]}, v{PK[uu]}, v{PK[uu]+1}")
            a(f"v_add_f32 v{SM[uu]+1}, v{PQ[uu]}, v{PQ[uu]+1}")
        xrow_reduce_multi(a, "v_add_f32", [Rv, Rv + 1, Rv + 2, Rv + 3], [Rv + 4, Rv + 5, Rv + 6, Rv + 7])
        a(f"s_lshl_b32 s36, s{j}, 14")
        for uu in range(2):
            a(f"buffer_store_dwordx2 {vr(SM[uu],2)}, v{vrow}, s[24:27], s36 offen offset:{uu*128} sc1")
    stamp(a, "c", f"p{which}_stored")
    if k2:
        finish_phase(a, 2, g, X[1])


def gen_p3(a):
    g = PH[3]
    m, j = g.mj
    g4 = PH[4]
    V = Regs("v", 4, RES)
    srd(a, 16, PWS, WS_H1, S * F * 2)
    srd(a, 20, PB2, 0, D * 2)
    acc = V.alloc(112, 4)
    X = [V.alloc(16, 4) for _ in range(2)]
    W = [V.alloc(28, 4) for _ in range(2)]
    accr = lambda t, u: acc + (t * 4 + u) * 4
    a("s_and_b32 s34, s6, 1")
    a("s_lshr_b32 s35, s6, 1")
    vA = V.alloc()
    a("s_lshl_b32 s36, s34, 13")
    a(f"s_add_u32 s36, s36, {g.slot0*SLOT}")
    a(f"v_lshlrev_b32 v{vA}, 4, v1")
    a(f"v_add_u32 v{vA}, s36, v{vA}")
    t = X[0]
    base, f = X[0] + 1, X[0] + 2
    vB = [V.alloc() for _ in range(7)]
    a(f"v_lshrrev_b32 v{t}, 2, v{L15}")
    a(f"v_and_b32 v{f}, 1, v{GQ}")
    a(f"v_lshl_or_b32 v{f}, v{f}, 2, v{t}")
    a(f"v_lshl_add_u32 v{t}, v{GQ}, 3, v{t}")
    a(f"v_lshlrev_b32 v{base}, 9, v{t}")
    a(f"v_and_b32 v{t}, 3, v{L15}")
    a(f"v_lshl_add_u32 v{base}, v{t}, 3, v{base}")
    a(f"v_add_u32 v{base}, {g.Boff + g.slot0*SLOT}, v{base}")
    a(f"s_and_b32 s36, s{j}, 1")
    a("s_lshl_b32 s36, s36, 1")
    a("s_add_u32 s37, s36, s35")
    a("s_add_u32 s37, s37, 12")
    a("s_mul_i32 s38, s35, 6")
    a("s_add_u32 s36, s36, s38")
    for t_ in range(7):
        a(f"v_xor_b32 v{t}, s{36 if t_ < 6 else 37}, v{f}")
        a(f"v_lshl_add_u32 v{vB[t_]}, v{t}, 5, v{base}")
        if t_ < 5:
            a("s_add_u32 s36, s36, 1")
    zero_acc(a, acc, 112)

    def reads(h, b):
        r = []
        for u in range(4):
            r.append(f"ds_read_b128 {vr(X[b]+4*u,4)}, v{vA} offset:{u*2048+h*1024}")
        for t_ in range(7):
            for jj in range(2):
                r.append(f"ds_read_b64_tr_b16 {vr(W[b]+4*t_+2*jj,2)}, v{vB[t_]} offset:{jj*2048+h*16384}")
        return r

    def mfmas(b):
        ml = []
        for t_ in range(7):
            for u in range(4):
                w, x, d = vr(W[b] + 4 * t_, 4), vr(X[b] + 4 * u, 4), vr(accr(t_, u), 4)
                ml.append(f"v_mfma_f32_16x16x32_bf16 {d}, {w}, {x}, {d}")
        return ml

    g.reads, g.mfmas = reads, mfmas
    g.adv = [vA] + vB
    gen_mainloop(a, g, "P3")
    RP = X[0]
    CSr, B1r = W[0], W[1]
    e0 = X[0] + 8
    a("s_lshl_b32 s36, s34, 9")
    a(f"s_add_u32 s36, s36, {L_ROW}")
    a(f"v_lshlrev_b32 v{e0}, 3, v{L15}")
    a(f"v_add_u32 v{e0}, s36, v{e0}")
    for u in range(4):
        a(f"ds_read_b64 {vr(RP+2*u,2)}, v{e0} offset:{u*128}")
    a(f"v_lshlrev_b32 v{e0+1}, 4, v{GQ}")
    a("s_lshl_b32 s36, s35, 6")
    a(f"s_add_u32 s36, s36, {L_CS + 768}")
    a(f"v_add_u32 v{e0+2}, s36, v{e0+1}")
    a(f"ds_read_b128 {vr(CSr+24,4)}, v{e0+2}")
    a(f"ds_read_b128 {vr(B1r+24,4)}, v{e0+2} offset:1024")
    a("s_mul_i32 s36, s35, 384")
    a(f"s_add_u32 s36, s36, {L_CS}")
    a(f"v_add_u32 v{e0+1}, s36, v{e0+1}")
    for t_ in range(6):
        a(f"ds_read_b128 {vr(CSr+4*t_,4)}, v{e0+1} offset:{t_*64}")
        a(f"ds_read_b128 {vr(B1r+4*t_,4)}, v{e0+1} offset:{1024+t_*64}")
    a(f"v_lshlrev_b32 v{e0}, 3, v{GQ}")
    a(f"s_lshl_b32 s36, s{g4.mj[1]}, 7")
    for t_ in range(4):
        a(f"buffer_load_dwordx2 {vr(BIA+2*t_,2)}, v{e0}, s[20:23], s36 offen offset:{32*t_}")
    vo, tq, ex = X[1], X[1] + 1, X[1] + 2
    KK = X[1] + 4
    T = X[1] + 6
    PV = X[1] + 10
    frag_lane_off(a, vo, tq)
    a(f"s_lshl_b32 s36, s{m}, 3")
    a("s_lshl_b32 s37, s34, 2")
    a("s_add_u32 s36, s36, s37")
    a("s_mul_i32 s36, s36, 112")
    a(f"s_mul_i32 s37, s{j}, 7")
    a("s_add_u32 s36, s36, s37")
    a("s_lshl_b32 s36, s36, 10")
    a(f"v_add_u32 v{vo}, s36, v{vo}")
    a("s_mul_i32 s36, s35, 3072")
    for u in range(4):
        a(f"s_add_u32 s{76+u}, s36, {u*112*1024}")
    a(f"s_mul_i32 s36, s35, {2*112*1024}")
    a("s_add_u32 s80, s36, 6144")
    a(f"s_add_u32 s81, s80, {112*1024}")
    a(f"v_lshlrev_b32 v{ex}, 4, v1")
    a("s_lshl_b32 s36, s34, 12")
    a(f"s_add_u32 s36, s36, {g.exch}")
    a(f"v_add_u32 v{ex}, s36, v{ex}")
    a("s_lshl_b32 s36, s35, 3")
    a(f"v_add_u32 v{ex+1}, s36, v{ex}")
    a("s_lshl_b32 s36, s35, 11")
    a(f"v_add_u32 v{ex}, s36, v{ex}")
    k1 = -2.0 * math.sqrt(2.0 / math.pi) * math.log2(math.e)
    a(f"v_mov_b32 v{KK}, {hexf(k1*0.044715)}")
    a(f"v_mov_b32 v{KK+1}, {hexf(k1)}")
    a("s_waitcnt lgkmcnt(0)")

    def gelu_tile(t_, u, o):
        d = accr(t_, u)
        rp = vr(RP + 2 * u, 2)
        for i in (0, 2):
            a(f"v_pk_fma_f32 {vr(T+i,2)}, {vr(CSr+4*t_+i,2)}, {rp}, {vr(B1r+4*t_+i,2)} op_sel:[0,1,0] op_sel_hi:[1,1,1]")
        for i in (0, 2):
            a(f"v_pk_fma_f32 {vr(d+i,2)}, {vr(d+i,2)}, {rp}, {vr(T+i,2)} op_sel:[0,0,0] op_sel_hi:[1,0,1]")
        for i in (0, 2):
            a(f"v_pk_mul_f32 {vr(T+i,2)}, {vr(d+i,2)}, {vr(d+i,2)}")
        for i in (0, 2):
            a(f"v_pk_fma_f32 {vr(T+i,2)}, {vr(T+i,2)}, {vr(KK,2)}, {vr(KK,2)} op_sel:[0,0,1] op_sel_hi:[1,0,1]")
        for i in (0, 2):
            a(f"v_pk_mul_f32 {vr(T+i,2)}, {vr(T+i,2)}, {vr(d+i,2)}")
        for i in range(4):
            a(f"v_exp_f32 v{T+i}, v{T+i}")
        for i in (0, 2):
            a(f"v_pk_add_f32 {vr(T+i,2)}, {vr(T+i,2)}, 1.0 op_sel_hi:[1,0]")
        for i in range(4):
            a(f"v_rcp_f32 v{T+i}, v{T+i}")
        for i in (0, 2):
            a(f"v_pk_mul_f32 {vr(d+i,2)}, {vr(d+i,2)}, {vr(T+i,2)}")
        a(f"v_cvt_pk_bf16_f32 v{o}, v{d}, v{d+1}")
        a(f"v_cvt_pk_bf16_f32 v{o+1}, v{d+2}, v{d+3}")

    obs = [X[0] + 12, X[1] + 12]
    for u in range(4):
        o = obs[u >> 1] + 2 * (u & 1)
        gelu_tile(6, u, o)
        a(f"ds_write_b64 v{ex+1}, {vr(o,2)} offset:{u*1024}")
    pair_post(a, 3, PV)
    n_ = 0
    for u in range(4):
        for p in range(3):
            o = obs[n_ & 1]
            n_ += 1
            for tt in range(2):
                gelu_tile(2 * p + tt, u, o + 2 * tt)
            a(f"v_permlane16_swap_b32 v{o}, v{o+2}")
            a(f"v_permlane16_swap_b32 v{o+1}, v{o+3}")
            a(f"buffer_store_dwordx4 {vr(o,4)}, v{vo}, s[16:19], s{76+u} offen offset:{1024*p} sc1")
        if u == 0:
            pair_wait(a, "P3", 3, 2, PV)
            for uu in range(2):
                a(f"ds_read_b128 {vr(accr(6,uu),4)}, v{ex} offset:{uu*1024}")
        if u == 1:
            a("s_waitcnt lgkmcnt(0)")
            for uu in range(2):
                o = accr(6, uu)
                a(f"v_permlane16_swap_b32 v{o}, v{o+2}")
                a(f"v_permlane16_swap_b32 v{o+1}, v{o+3}")
                a(f"buffer_store_dwordx4 {vr(o,4)}, v{vo}, s[16:19], s{80+uu} offen sc1")
    stamp(a, "c", "p3_stored")
    finish_phase(a, 3, g, acc)


def main():
    out = sys.argv[1]
    a = Asm()
    name = NAME + "_kernel"
    a.raw(f".globl {name}\n.p2align 8\n.type {name},@function\n{name}:")
    a("s_cmp_ge_u32 s2, 256\ns_cbranch_scc1 KEND")
    a("s_load_dwordx16 s[48:63], s[0:1], 0")
    a("s_load_dwordx4 s[64:67], s[0:1], 64")
    a("s_load_dwordx2 s[68:69], s[0:1], 80")
    a("v_lshrrev_b32 v1, 6, v0")
    a("s_and_b32 s3, s2, 7")
    a("s_lshr_b32 s7, s2, 3")
    a("v_readfirstlane_b32 s6, v1")
    a("s_and_b32 s70, s3, 1")
    a("s_lshl_b32 s70, s70, 3")
    a("s_and_b32 s4, s7, 7")
    a("s_add_u32 s70, s70, s4")
    a("s_lshr_b32 s71, s3, 1")
    a("s_lshr_b32 s4, s7, 3")
    a("s_lshl_b32 s71, s71, 2")
    a("s_add_u32 s71, s71, s4")
    a("s_and_b32 s72, s7, 15")
    a("s_lshl_b32 s73, s3, 1")
    a("s_lshr_b32 s4, s7, 4")
    a("s_add_u32 s73, s73, s4")
    a("v_and_b32 v1, 63, v0")
    a(f"v_and_b32 v{L15}, 15, v0")
    a(f"v_lshrrev_b32 v{GQ}, 4, v1")
    a("s_waitcnt lgkmcnt(0)")
    a("s_cmp_ge_u32 s6, 4")
    a("s_cbranch_scc1 LOADER")
    stamp(a, "c", "start")
    gen_p0(a)
    gen_p1(a)
    gen_p24(a, 2)
    gen_p3(a)
    gen_p24(a, 4)
    stamp_flush(a, 0)
    a("KEND:")
    a("s_endpgm")
    gen_loader(a)
    vg = 256 if OPT["stamp"] else 240
    a.raw(f'.section .rodata,"a"\n.p2align 6\n.amdhsa_kernel {name}\n'
          f"  .amdhsa_next_free_vgpr {vg}\n  .amdhsa_next_free_sgpr 102\n  .amdhsa_accum_offset {(vg+3)//4*4}\n"
          "  .amdhsa_group_segment_fixed_size 0\n  .amdhsa_kernarg_size 88\n  .amdhsa_user_sgpr_count 2\n"
          "  .amdhsa_user_sgpr_kernarg_segment_ptr 1\n  .amdhsa_system_sgpr_workgroup_id_x 1\n"
          "  .amdhsa_float_denorm_mode_32 3\n"
          ".end_amdhsa_kernel\n")
    head = open("header.txt").read()
    head += f"; @launch grid=(256,1,1) block=(512,1,1) lds={LDS_TOTAL}\n"
    head += '.amdgcn_target "amdgcn-amd-amdhsa--gfx950"\n.text\n'
    open(out, "w").write(head + a.text())
    if OPT["stamp"]:
        import json
        json.dump(STAMPS, open(out + ".stamps.json", "w"))
    print("generated", out, "nops:", a.nops, "lds", LDS_TOTAL)


main()
```

```python
import sys, struct, math
from asmx import Asm, Regs, vr, sr

NAME = "sequential_preLN__sliding_local_dilated__dense_activation_gelu__prompt"
S, D, F = 2048, 1024, 3584
OPT = dict(stamp=0, map1=1, map3=1, sleep=1, prio=0, nt1=1, seg=2, warm=1, wr1=2, wr2=2, wr3=3, wg=7, touch1=1, dbgt=0)
for a_ in sys.argv[2:]:
    k_, v_ = a_.split("=")
    assert k_ in OPT, k_
    OPT[k_] = int(v_)
WS_O, WS_H, WS_H1 = 4 << 20, 8 << 20, 12 << 20
WS_ST, WS_CS, WS_FL = 28 << 20, 29 << 20, 30 << 20
WS_ST1, WS_CS1 = 0, 1 << 20
FL_CS3, FL_CS1 = WS_FL + 32768, WS_FL + 40960
WS_FD = WS_FL + 65536
SLOT = 49152
LDS_X = 3 * SLOT
L_PAIR = LDS_X
L_CNT = LDS_X + 16
L_NONCE = LDS_X + 32
L_P0 = LDS_X + 64
L_ROW = LDS_X + 256
L_RS = L_ROW + 2048
L_NM = L_RS + 1024
L_CS = L_NM + 1024
L_B1 = L_CS + 1024
L_SC = L_B1 + 1024
L_SS = L_SC + 4096
LDS_TOTAL = L_SS + 4096
PX, PWQKV, PWO, PW1, PB1, PW2, PB2, POUT, PDBG, PWS = 48, 50, 52, 56, 58, 60, 62, 64, 66, 68
NONCE = 74
RES, BIA = 216, 232
BIG = "0x7ffffff0"


def f2u(x):
    return struct.unpack("<I", struct.pack("<f", x))[0]


def hexf(x):
    return "0x%08x" % f2u(x)


def srd(a, d, base, off, nbytes):
    if off:
        a(f"s_add_u32 s{d}, s{base}, {off}")
        a(f"s_addc_u32 s{d+1}, s{base+1}, 0")
    else:
        a(f"s_mov_b32 s{d}, s{base}")
        a(f"s_mov_b32 s{d+1}, s{base+1}")
    a(f"s_mov_b32 s{d+2}, {nbytes}")
    a(f"s_mov_b32 s{d+3}, 0x20000")


def round_bf16(a, v):
    a(f"v_cvt_pk_bf16_f32 v{v}, v{v}, v{v}")
    a(f"v_lshlrev_b32 v{v}, 16, v{v}")


def xrow_reduce_multi(a, op, vs, ts):
    for sw in ("v_permlane16_swap_b32", "v_permlane32_swap_b32"):
        for v, t in zip(vs, ts):
            a(f"v_mov_b32 v{t}, v{v}")
        for v, t in zip(vs, ts):
            a(f"{sw} v{v}, v{t}")
        for v, t in zip(vs, ts):
            a(f"{op} v{v}, v{v}, v{t}")


def wave_sum_multi(a, vs, ts):
    for p in ("quad_perm:[1,0,3,2]", "quad_perm:[2,3,0,1]", "row_half_mirror", "row_mirror"):
        for v in vs:
            a(f"v_add_f32_dpp v{v}, v{v}, v{v} {p} row_mask:0xf bank_mask:0xf")
    xrow_reduce_multi(a, "v_add_f32", vs, ts)


def ln_finish(a, mean, var, out):
    round_bf16(a, mean)
    round_bf16(a, var)
    a(f"v_add_f32 v{var}, {hexf(1e-5)}, v{var}")
    round_bf16(a, var)
    a(f"v_sqrt_f32 v{var}, v{var}")
    round_bf16(a, var)
    a(f"v_rcp_f32 v{out}, v{var}")
    a(f"v_mul_f32 v{out+1}, v{mean}, v{out}")
    a(f"v_sub_f32 v{out+1}, 0, v{out+1}")


STAMPS = {"c": [], "l": []}


DBG = []


def stamp(a, role, name):
    if OPT["dbgt"] and role == "c" and name not in ("start", "p0_done") and not name.endswith("stored") or (OPT["dbgt"] and name == "p4_stored"):
        if name not in DBG:
            DBG.append(name)
        a("s_memrealtime s[100:101]")
        a("s_waitcnt lgkmcnt(0)")
        a("v_mov_b32 v250, s100")
        a("v_mov_b32 v251, 0")
        a("s_mov_b64 exec, 1")
        a(f"global_atomic_umax v251, v250, s[{PDBG}:{PDBG+1}] offset:{8 + 4*DBG.index(name)}")
        a("s_mov_b64 exec, -1")
    if not OPT["stamp"]:
        return
    if name in STAMPS[role]:
        i = STAMPS[role].index(name)
    else:
        i = len(STAMPS[role])
        STAMPS[role].append(name)
    a("s_memtime s[100:101]")
    a("s_waitcnt lgkmcnt(0)")
    a(f"v_writelane_b32 v254, s100, {i}")
    a("s_memrealtime s[100:101]")
    a("s_waitcnt lgkmcnt(0)")
    a(f"v_writelane_b32 v255, s100, {i}")


def stamp_flush(a, wavereg_off):
    if not OPT["stamp"]:
        return
    a("v_lshlrev_b32 v2, 2, v1")
    a("s_lshl_b32 s100, s2, 3")
    a(f"s_add_u32 s100, s100, s6")
    a(f"s_add_u32 s100, s100, {wavereg_off}")
    a("s_lshl_b32 s100, s100, 9")
    a(f"s_add_u32 s100, s100, {32<<20}")
    a("v_add_u32 v2, s100, v2")
    a(f"global_store_dword v2, v254, s[{PWS}:{PWS+1}]")
    a(f"global_store_dword v2, v255, s[{PWS}:{PWS+1}] offset:256")
    if OPT["stamp"] == 2:
        a(f"v_add_u32 v2, {8<<20}, v2")
        a(f"global_store_dword v2, v252, s[{PWS}:{PWS+1}]")
        a(f"global_store_dword v2, v253, s[{PWS}:{PWS+1}] offset:256")


class G:
    pass


def phase_cfgs():
    P = {}
    g = G(); P[1] = g
    g.n, g.KS, g.nst, g.B448 = 1, 64, 16, False
    g.nA, g.nB, g.strideB, g.Boff, g.KT = 18, 24, 6144, 24576, 0
    g.A = (PX, 0, S * D * 2); g.B = (PWQKV, 0, D * 3 * D * 2); g.map = OPT["map1"]
    g = G(); P[2] = g
    g.n, g.KS, g.nst, g.B448 = 2, 128, 8, False
    g.nA, g.nB, g.strideB, g.Boff, g.KT = 32, 16, 2048, 32768, 32
    g.A = (PWS, WS_O, S * D * 2); g.B = (PWO, 0, D * D * 2); g.map = 0
    g = G(); P[3] = g
    g.n, g.KS, g.nst, g.B448 = 3, 64, 16, True
    g.nA, g.nB, g.strideB, g.Boff, g.KT = 16, 32, 7168, 16384, 32
    g.A = (PWS, WS_H, S * D * 2); g.B = (PW1, 0, D * F * 2); g.map = OPT["map3"]
    g = G(); P[4] = g
    g.n, g.KS, g.nst, g.B448 = 4, 128, 28, False
    g.nA, g.nB, g.strideB, g.Boff, g.KT = 32, 16, 2048, 32768, 112
    g.A = (PWS, WS_H1, S * F * 2); g.B = (PW2, 0, F * D * 2); g.map = 0
    s = 0
    for p in (1, 2, 3, 4):
        P[p].slot0 = s % 3
        s += P[p].nst
        P[p].mj = (72, 73) if P[p].map else (70, 71)
        P[p].exch = ((s - 1) % 3) * SLOT
    return P


PH = phase_cfgs()


def interleave(a, mf, fillers, first=None):
    n = len(mf)
    fl = list(fillers)
    k = len(fl)
    gaps = list(range(1, n)) if first is not None else list(range(n))
    assert k <= 2 * len(gaps), (k, len(gaps))
    two = max(0, k - len(gaps))
    idx = 0
    cnt = {}
    for gi, g in enumerate(gaps):
        c = 0
        if idx < k:
            c = 2 if gi < two else 1
        cnt[g] = min(c, k - idx)
        idx += cnt[g]
    idx = 0
    for i in range(n):
        a(mf[i])
        if i == 0 and first is not None:
            for f in first:
                a(f)
        for _ in range(cnt.get(i, 0)):
            a(fl[idx])
            idx += 1
    assert idx == k


def nonce_load(a, vt):
    a(f"v_mov_b32 v{vt}, 0")
    a(f"global_load_dwordx2 v[{vt+2}:{vt+3}], v{vt}, s[{PDBG}:{PDBG+1}] sc1")


def nonce_check(a, lab, vt):
    a("s_mov_b32 s3, 0x40000")
    a(f"{lab}_nl:")
    a(f"v_readfirstlane_b32 s{NONCE}, v{vt+2}")
    a(f"v_readfirstlane_b32 s{NONCE+1}, v{vt+3}")
    a(f"s_cmp_lg_u32 s{NONCE}, 0")
    a(f"s_cbranch_scc1 {lab}_nd")
    a(f"global_load_dwordx2 v[{vt+2}:{vt+3}], v{vt}, s[{PDBG}:{PDBG+1}] sc1")
    a("s_waitcnt vmcnt(0)")
    a("s_sub_u32 s3, s3, 1")
    a("s_cmp_lg_u32 s3, 0")
    a(f"s_cbranch_scc1 {lab}_nl")
    a(f"{lab}_nd:")


def signal(a, off_sgpr, vt):
    a(f"v_mov_b32 v{vt}, s{off_sgpr}")
    a(f"v_mov_b32 v{vt+2}, s{NONCE}")
    a(f"v_mov_b32 v{vt+3}, s{NONCE+1}")
    a("s_mov_b64 exec, 1")
    a(f"global_store_dwordx2 v{vt}, v[{vt+2}:{vt+3}], s[{PWS}:{PWS+1}] sc1")
    a("s_mov_b64 exec, -1")


def flag_off(a, d, base, hi, lo):
    a(f"s_lshl_b32 s{d}, s{lo}, 2")
    a(f"s_add_u32 s{d}, s{d}, s6")
    a(f"s_lshl_b32 s{d}, s{d}, 3")
    a(f"s_lshl_b32 s3, s{hi}, 9")
    a(f"s_add_u32 s{d}, s{d}, s3")
    a(f"s_add_u32 s{d}, s{d}, {base}")


def poll_loads(a, vaddrs, vt):
    for i, v in enumerate(vaddrs):
        a(f"global_load_dwordx2 v[{vt+2*i}:{vt+2*i+1}], v{v}, s[{PWS}:{PWS+1}] sc1")


def poll_check(a, lab, vaddrs, vt):
    a("s_mov_b32 s3, 0x40000")
    a(f"{lab}_pl:")
    a(f"v_cmp_eq_u64 vcc, s[{NONCE}:{NONCE+1}], v[{vt}:{vt+1}]")
    for i in range(1, len(vaddrs)):
        a(f"v_cmp_eq_u64 s[34:35], s[{NONCE}:{NONCE+1}], v[{vt+2*i}:{vt+2*i+1}]")
        a("s_and_b64 vcc, vcc, s[34:35]")
    a("s_cmp_eq_u64 vcc, -1")
    a(f"s_cbranch_scc1 {lab}_pd")
    if OPT["sleep"]:
        a(f"s_sleep {OPT['sleep']}")
    poll_loads(a, vaddrs, vt)
    a("s_waitcnt vmcnt(0)")
    a("s_sub_u32 s3, s3, 1")
    a("s_cmp_lg_u32 s3, 0")
    a(f"s_cbranch_scc1 {lab}_pl")
    a(f"{lab}_pd:")


def ld_offsets_A(a, g, vA):
    m, j = g.mj
    if g.KT:
        a(f"s_lshl_b32 s7, s{m}, 3")
        a("s_add_u32 s7, s7, s6")
        a(f"s_mul_i32 s7, s7, {g.KT*1024}")
        a(f"v_lshlrev_b32 v{vA}, 4, v1")
        a(f"v_add_u32 v{vA}, s7, v{vA}")
        a(f"v_add_u32 v{vA+1}, {4*g.KT*1024}, v{vA}")
        return
    a("s_and_b32 s3, s6, 1")
    a("s_lshl_b32 s7, s3, 2")
    a("v_lshrrev_b32 v4, 4, v1")
    a("v_or_b32 v4, s7, v4")
    a("v_xor_b32 v4, v3, v4")
    a("v_lshlrev_b32 v4, 4, v4")
    a(f"s_lshl_b32 s7, s{m}, 7")
    a("s_lshl_b32 s34, s6, 3")
    a("s_add_u32 s7, s7, s34")
    a("s_sub_u32 s7, s7, 16")
    for q in range(5):
        a("v_add_u32 v5, s7, v2")
        if q:
            a(f"v_add_u32 v5, {32*q}, v5")
        else:
            a("v_max_i32 v5, 0, v5")
        a(f"v_lshl_add_u32 v{vA+q}, v5, 11, v4")


def ld_offsets_B(a, g, vB):
    m, j = g.mj
    nBq = g.nB // 4
    if g.B448:
        a("v_lshrrev_b32 v5, 5, v1")
        a("s_lshl_b32 s7, s6, 1")
        a("v_add_u32 v5, s7, v5")
        a("v_and_b32 v6, 3, v5")
        a("v_lshlrev_b32 v6, 1, v6")
        a("v_and_b32 v7, 31, v1")
        a("v_xor_b32 v6, v6, v7")
        a("v_mul_u32_u24 v5, 7168, v5")
        a(f"s_mul_i32 s35, s{j}, 448")
        a("s_andn2_b32 s35, s35, 127")
        a("v_add_u32 v5, s35, v5")
        for q in range(nBq):
            if q < 2:
                if q:
                    a("v_xor_b32 v6, 8, v6")
                a(f"v_lshl_add_u32 v{vB+q}, v6, 4, v5")
                if q:
                    a(f"v_add_u32 v{vB+q}, {8*7168}, v{vB+q}")
            else:
                a(f"v_add_u32 v{vB+q}, {16*7168}, v{vB+q-2}")
    else:
        a("v_bfe_u32 v5, v1, 4, 1")
        a("s_and_b32 s7, s6, 1")
        a("s_lshl_b32 s7, s7, 1")
        a("v_or_b32 v5, s7, v5")
        a("v_lshlrev_b32 v5, 1, v5")
        a("v_xor_b32 v5, v3, v5")
        a("v_lshlrev_b32 v5, 4, v5")
        a(f"s_lshl_b32 s7, s{j}, 7")
        a("v_add_u32 v5, s7, v5")
        a("s_lshl_b32 s7, s6, 3")
        a("v_add_u32 v6, s7, v2")
        a(f"v_mul_u32_u24 v6, {g.strideB}, v6")
        a("v_add_u32 v5, v5, v6")
        for q in range(nBq):
            if g.n == 1:
                off = (q >> 1) * 2048 + (q & 1) * 32 * g.strideB
            else:
                off = q * 32 * g.strideB
            a(f"v_add_u32 v{vB+q}, {off}, v5")


def rot_start(a, g, d):
    m, j = g.mj
    if g.map:
        assert g.nst == 16
        a(f"s_mov_b32 s{d}, s{m}")
    else:
        a(f"s_and_b32 s{d}, s{m}, 7")
        if g.nst == 16:
            a(f"s_lshl_b32 s{d}, s{d}, 1")
        elif g.nst == 28:
            a(f"s_mul_i32 s{d}, s{d}, 7")
            a(f"s_lshr_b32 s{d}, s{d}, 1")


RDY, TMO, PF = 94, 96, 40
LAB = [0]


def poll_once(a):
    a("s_mov_b64 exec, 0xffff")
    a(f"global_load_dwordx2 v[{PF+2}:{PF+3}], v{PF}, s[{PWS}:{PWS+1}] sc1")
    a(f"s_sub_u32 s{TMO}, s{TMO}, 1")
    a("s_waitcnt vmcnt(0)")
    a(f"v_cmp_eq_u64 s[{RDY}:{RDY+1}], s[{NONCE}:{NONCE+1}], v[{PF+2}:{PF+3}]")
    a("s_mov_b64 exec, -1")
    a(f"s_cmp_eq_u32 s{TMO}, 0")
    a(f"s_cselect_b32 s{RDY}, 0xffff, s{RDY}")
    a(f"s_cselect_b32 s{TMO}, 1, s{TMO}")


class Stream:
    def __init__(self, g, isA, srd_, vbase, so, st, lb, sl, of, cur=None):
        self.g, self.isA, self.srd, self.v = g, isA, srd_, vbase
        self.so, self.st, self.lb, self.sl, self.of = so, st, lb, sl, of
        self.cur = cur
        self.frag = isA and g.KT
        self.seg = OPT["seg"] and g.KS == 128
        if self.frag:
            self.step = g.KS * 32
            self.per = g.KS // 32
        else:
            self.step = g.KS * 2 if isA else g.KS * g.strideB

    def seg_so(self, a):
        a(f"s_add_u32 s7, s{self.st}, s{self.of}")
        a("s_and_b32 s7, s7, 3")
        a(f"s_andn2_b32 s{self.so}, s{self.st}, 3")
        a(f"s_add_u32 s{self.so}, s{self.so}, s7")
        if self.cur:
            a(f"s_mov_b32 s{self.cur}, s{self.so}")
        a(f"s_mul_i32 s{self.so}, s{self.so}, {self.step}")

    def init(self, a):
        g = self.g
        m, j = g.mj
        if self.seg:
            a(f"s_and_b32 s{self.st}, s{m}, 7")
            a(f"s_mul_i32 s{self.st}, s{self.st}, {g.nst // 4}")
            a(f"s_lshr_b32 s{self.st}, s{self.st}, 3")
            a(f"s_lshl_b32 s{self.st}, s{self.st}, 2")
            if OPT["seg"] == 2 and g.n == 4:
                a(f"s_mov_b32 s{self.st}, 0")
            a(f"s_add_u32 s{self.of}, s{m}, s{j}")
            self.seg_so(a)
        else:
            rot_start(a, g, self.st)
            a(f"s_mul_i32 s{self.so}, s{self.st}, {self.step}")
        a(f"s_mul_i32 s{self.lb}, s6, {1024*self.per if self.frag else 1024}")
        off = g.slot0 * SLOT + (0 if self.isA else g.Boff)
        if off:
            a(f"s_add_u32 s{self.lb}, s{self.lb}, {off}")
        a(f"s_mov_b32 s{self.sl}, {g.slot0}")

    def need(self, a, ok):
        g = self.g
        cur = self.cur if self.seg else self.st
        a(f"s_cmp_eq_u32 s{RDY}, 0xffff")
        a(f"s_cbranch_scc1 {ok}")
        if g.n == 2:
            a(f"s_lshl_b32 s3, s{cur}, 1")
            a("s_lshl_b32 s34, 3, s3")
        elif g.n == 3:
            a(f"s_lshl_b32 s34, 1, s{cur}")
        else:
            a(f"s_mul_i32 s3, s{cur}, {4*9363}")
            a(f"s_add_u32 s7, s3, {3*9363}")
            a("s_lshr_b32 s3, s3, 16")
            a("s_lshr_b32 s7, s7, 16")
            a("s_lshl_b32 s34, 1, s3")
            a("s_bitset1_b32 s34, s7")
        a(f"s_andn2_b32 s3, s34, s{RDY}")
        a(f"s_cbranch_scc0 {ok}")

    def wait_ready(self, a):
        if not self.frag:
            return
        LAB[0] += 1
        L = f"WR{LAB[0]}"
        self.need(a, f"{L}_ok")
        a(f"{L}_t:")
        poll_once(a)
        a(f"s_andn2_b32 s3, s34, s{RDY}")
        a(f"s_cbranch_scc0 {L}_ok")
        if OPT["sleep"]:
            a(f"s_sleep {OPT['sleep']}")
        a(f"s_branch {L}_t")
        a(f"{L}_ok:")

    def loads(self, n, nt=False):
        out = []
        if self.frag:
            for q in range(n):
                u, k = q // self.per, q % self.per
                out.append((f"s_add_u32 m0, s{self.lb}, {u*4096*self.per}",
                            f"buffer_load_dwordx4 v{self.v+u}, s[{self.srd}:{self.srd+3}], s{self.so} offen offset:{k*1024} sc1 lds"))
            return out
        return [(f"s_add_u32 m0, s{self.lb}, {q*4096}",
                 f"buffer_load_dwordx4 v{self.v+q}, s[{self.srd}:{self.srd+3}], s{self.so} offen {'nt ' if (nt and not self.isA) else ''}lds") for q in range(n)]

    def advance(self, a):
        if not self.seg:
            a(f"s_add_u32 s{self.so}, s{self.so}, {self.step}")
        a(f"s_add_u32 s{self.st}, s{self.st}, 1")
        a(f"s_cmp_eq_u32 s{self.st}, {self.g.nst}")
        a(f"s_cselect_b32 s{self.st}, 0, s{self.st}")
        if self.seg:
            self.seg_so(a)
        else:
            a(f"s_cselect_b32 s{self.so}, 0, s{self.so}")
        a(f"s_add_u32 s{self.lb}, s{self.lb}, {SLOT}")
        a(f"s_add_u32 s{self.sl}, s{self.sl}, 1")
        a(f"s_cmp_eq_u32 s{self.sl}, 3")
        a(f"s_cselect_b32 s7, {3*SLOT}, 0")
        a(f"s_cselect_b32 s{self.sl}, 0, s{self.sl}")
        a(f"s_sub_u32 s{self.lb}, s{self.lb}, s7")


class Rec:
    def __init__(self):
        self.g = []
        self.open = False

    def __call__(self, t):
        if self.open:
            self.g[-1].append(t)
        else:
            self.g.append([t])

    def begin(self):
        self.g.append([])
        self.open = True

    def end(self):
        self.open = False


def issue(a, items, nt=False, fill=None, ready=True):
    if ready:
        for (s_, n) in items:
            s_.wait_ready(a)
    ls = [s.loads(n, nt) for (s, n) in items]
    seq = []
    for q in range(max(len(x) for x in ls)):
        for x in ls:
            if q < len(x):
                seq.append(x[q])
    fill = list(fill or [])
    per = -(-len(fill) // max(1, len(seq) - 1)) if fill else 0
    last = None
    for k, (m0, ld) in enumerate(seq):
        if m0 != last:
            a(m0)
            last = m0
        a(ld)
        for _ in range(per):
            if fill:
                for t in fill.pop(0):
                    a(t)
    for grp in fill:
        for t in grp:
            a(t)
    for (s, n) in items:
        s.advance(a)


ACC, WF, ONE, AD, TB, TT, VT = 64, 96, 128, 132, 133, 134, 32
A_CSS, A_CS3, A_ST, A_GA, A_GB, TID = 136, 137, 138, 139, 156, 157
ST = 140
AD2 = 158
A_SC = 166
SG = 160
PA = 168


def fold_setup(a, g):
    m, j = g.mj
    p1 = g.n == 1
    nsh = 16 if g.map else 8
    ncol = 3 * D if p1 else F
    wscs, flcs = (WS_CS1, FL_CS1) if p1 else (WS_CS, FL_CS3)
    row = 512 if g.B448 else 128
    a(f"v_and_b32 v{TT}, 15, v1")
    a(f"v_lshrrev_b32 v{AD}, 2, v{TT}")
    a(f"v_lshrrev_b32 v{TB}, 4, v1")
    a(f"v_lshl_add_u32 v{AD}, v{TB}, 3, v{AD}")
    a(f"v_mul_u32_u24 v{AD}, {row}, v{AD}")
    a(f"v_and_b32 v{TT}, 3, v1")
    a(f"v_lshl_add_u32 v{AD}, v{TT}, 3, v{AD}")
    a(f"v_and_b32 v{TB}, 1, v{TB}")
    if g.B448:
        a(f"v_bfe_u32 v{TT}, v1, 2, 2")
        a(f"v_lshl_or_b32 v{TB}, v{TB}, 2, v{TT}")
        a(f"s_and_b32 s3, s{j}, 1")
        a("s_lshl_b32 s3, s3, 1")
        a("s_add_u32 s3, s3, s6")
        a(f"v_add_u32 v{AD}, {g.slot0*SLOT + g.Boff}, v{AD}")
        a("s_add_u32 s7, s3, 4")
        a(f"v_xor_b32 v{TT}, s7, v{TB}")
        a(f"v_lshl_add_u32 v{AD2}, v{TT}, 5, v{AD}")
        a(f"v_xor_b32 v{TT}, s3, v{TB}")
        a(f"v_lshl_add_u32 v{AD}, v{TT}, 5, v{AD}")
    else:
        a(f"v_bfe_u32 v{TT}, v1, 3, 1")
        a(f"v_lshl_or_b32 v{TB}, v{TB}, 1, v{TT}")
        a(f"v_xor_b32 v{TB}, s6, v{TB}")
        a(f"v_lshl_add_u32 v{AD}, v{TB}, 5, v{AD}")
        a(f"v_add_u32 v{AD}, {g.slot0*SLOT + g.Boff}, v{AD}")
    d = SLOT if g.slot0 < 2 else -2 * SLOT
    a(f"v_add_u32 v{AD+3}, {d & 0xffffffff}, v{AD}")
    if g.B448:
        a(f"v_add_u32 v{AD2+1}, {d & 0xffffffff}, v{AD2}")
    for i in range(4):
        a(f"v_mov_b32 v{ONE+i}, 0x3f803f80")
    for i in range(16):
        a(f"v_mov_b32 v{ACC+i}, 0")
    srd(a, 24, PWS, wscs, 16 * ncol * 4)
    if p1:
        srd(a, 28, PWS, WS_ST1, S * 8)
    else:
        srd(a, 28, PWS, WS_ST, 16 * S * 8)
        srd(a, 76, PB1, 0, F * 2)
    a(f"v_lshrrev_b32 v{TT}, 4, v1")
    a(f"v_lshlrev_b32 v{TT}, 4, v{TT}")
    a(f"s_mul_i32 s3, s{m}, {ncol*4}")
    a(f"s_mul_i32 s7, s{j}, {256 if p1 else 896}")
    a("s_add_u32 s3, s3, s7")
    a("s_lshl_b32 s7, s6, 6")
    a("s_add_u32 s3, s3, s7")
    a(f"v_add_u32 v{TT}, s3, v{TT}")
    a(f"v_and_b32 v{TB}, 15, v1")
    a(f"v_cmp_eq_u32 vcc, 0, v{TB}")
    a(f"v_mov_b32 v{TB}, {BIG}")
    a(f"v_cndmask_b32 v{A_CSS}, v{TB}, v{TT}, vcc")
    a("s_lshl_b32 s3, s6, 6")
    a(f"v_add_u32 v{TID}, s3, v1")
    if p1:
        a("s_mov_b32 s80, 4096")
        a("s_mov_b32 s81, 8192")
        a(f"s_lshl_b32 s3, s{m}, 10")
        a(f"s_lshl_b32 s7, s{j}, 6")
        a("s_add_u32 s3, s3, s7")
        a("s_lshl_b32 s7, s6, 4")
        a("s_add_u32 s3, s3, s7")
        a(f"v_mov_b32 v{TT}, s3")
        a("v_cmp_eq_u32 vcc, 0, v1")
        a(f"v_cndmask_b32 v{A_ST}, v{TB}, v{TT}, vcc")
        a("v_cmp_gt_u32 vcc, 48, v1")
        a(f"v_lshrrev_b32 v{TT}, 4, v1")
        a(f"v_lshlrev_b32 v{TT}, 12, v{TT}")
        a(f"v_and_b32 v{A_GA}, 15, v1")
        a(f"v_lshl_add_u32 v{TT}, v{A_GA}, 4, v{TT}")
        a(f"s_lshl_b32 s3, s{j}, 8")
        a(f"v_add_u32 v{TT}, s3, v{TT}")
        a(f"v_cndmask_b32 v{A_GA}, v{TB}, v{TT}, vcc")
        a(f"s_lshl_b32 s3, s{m}, 7")
        a("s_sub_u32 s3, s3, 16")
        a(f"v_add_u32 v{TT}, s3, v{TID}")
        a(f"v_max_i32 v{TT}, 0, v{TT}")
        a(f"v_lshlrev_b32 v{TT}, 3, v{TT}")
        a(f"v_cmp_gt_u32 vcc, 144, v{TID}")
        a(f"v_cndmask_b32 v{A_GB}, v{TB}, v{TT}, vcc")
    else:
        a("s_cmp_ge_u32 s6, 2")
        a(f"s_cselect_b32 s3, {BIG}, 0")
        a(f"v_max_u32 v{A_CS3}, s3, v{A_CSS}")
        a(f"v_lshlrev_b32 v{A_ST}, 4, v1")
        a(f"s_lshl_b32 s3, s{m}, 10")
        a("s_lshl_b32 s7, s6, 16")
        a("s_add_u32 s3, s3, s7")
        a(f"v_add_u32 v{A_ST}, s3, v{A_ST}")
        a("v_cmp_gt_u32 vcc, 56, v1")
        a(f"v_lshlrev_b32 v{TT}, 4, v1")
        a(f"s_mul_i32 s3, s{j}, 896")
        a(f"v_add_u32 v{TT}, s3, v{TT}")
        a(f"v_cndmask_b32 v{A_GA}, v{TB}, v{TT}, vcc")
        a(f"v_cmp_gt_u32 vcc, 224, v{TID}")
        a(f"v_lshlrev_b32 v{TT}, 1, v{TID}")
        a(f"s_mul_i32 s3, s{j}, 448")
        a(f"v_add_u32 v{TT}, s3, v{TT}")
        a(f"v_cndmask_b32 v{A_GB}, v{TB}, v{TT}, vcc")
    if nsh == 8:
        a(f"s_and_b32 s82, s{m}, 8")
        a(f"s_mul_i32 s82, s82, {ncol*4}")
    else:
        a("s_mov_b32 s82, 0")
    a(f"s_mul_i32 s3, s6, {(nsh // 4) * ncol * 4}")
    a("s_add_u32 s82, s82, s3")
    a(f"v_lshlrev_b32 v{A_SC}, 4, v1")
    a("s_lshl_b32 s3, s6, 10")
    a(f"s_add_u32 s3, s3, {L_SC}")
    a(f"v_add_u32 v{A_SC}, s3, v{A_SC}")
    srd(a, 84, PWS, WS_FL, 65536)
    a("v_cmp_eq_u32 vcc, 0, v1")
    flag_off(a, 7, flcs - WS_FL, j, m)
    a(f"v_mov_b32 v{TT}, s7")
    a(f"v_cndmask_b32 v{SG}, v{TB}, v{TT}, vcc")
    if p1:
        flag_off(a, 7, 0, m, j)
        a(f"v_mov_b32 v{TT}, s7")
        a(f"v_cndmask_b32 v{SG+4}, v{TB}, v{TT}, vcc")
    else:
        a(f"v_mov_b32 v{SG+2}, s{NONCE}")
        a(f"v_mov_b32 v{SG+3}, s{NONCE+1}")
    a(f"v_lshlrev_b32 v{PA}, 3, v1")
    a(f"s_lshl_b32 s3, s{j}, 9")
    a(f"s_add_u32 s3, s3, {flcs}")
    if p1:
        a(f"s_lshl_b32 s7, s{m}, 9")
        a(f"s_add_u32 s7, s7, {WS_FL}")
        a(f"v_add_u32 v{PA+1}, s7, v{PA}")
        a(f"v_or_b32 v{PA+2}, 56, v1")
        a(f"v_lshlrev_b32 v{PA+2}, 3, v{PA+2}")
        a(f"s_cmp_eq_u32 s{m}, 0")
        a("s_cselect_b32 s34, 0, 512")
        a("s_sub_u32 s7, s7, s34")
        a(f"v_add_u32 v{PA+2}, s7, v{PA+2}")
    if nsh == 8:
        a(f"v_and_b32 v{PA}, 0xff, v{PA}")
        a(f"s_and_b32 s7, s{m}, 8")
        a("s_lshl_b32 s7, s7, 5")
        a("s_add_u32 s3, s3, s7")
    a(f"v_add_u32 v{PA}, s3, v{PA}")
    if p1:
        a("s_lshl_b32 s3, s6, 4")
        a(f"s_add_u32 s3, s3, {L_P0}")
        a(f"v_mov_b32 v{TB}, s3")
        a(f"v_mov_b32 v{VT}, 0")
        a(f"v_mov_b32 v{VT+1}, {L_NONCE}")


WARM = {"left": [56, 56], "save": None}


def warm(a, n, iters=1):
    if not OPT["warm"]:
        return
    w = 0 if WARM["phase"] == 1 else 1
    n = min(n, WARM["left"][w] // iters)
    if n <= 0:
        return
    WARM["left"][w] -= n * iters
    b = 88 if w else 32
    for i in range(n):
        a(f"s_load_dwordx2 s[{90+2*(i&1)}:{91+2*(i&1)}], s[{b}:{b+1}], {60+128*i}")
    a(f"s_add_u32 s{b}, s{b}, {128*n}")
    a(f"s_addc_u32 s{b+1}, s{b+1}, 0")


def fold_body(a, g, both, c, w1, loop, sfx):
    p1 = g.n == 1
    P = f"LD{g.n}{sfx}"
    nsh = 16 if g.map else 8
    nstg = 1 if g.map else 2
    nu = 3 if p1 else 4
    ncol = 3 * D if p1 else F
    npw = nsh // 4

    def cs_reads(r, ad):
        for h in range(2):
            for i in range(nu):
                for jj in range(2):
                    off = (i * 8192 + jj * 512 + h * 4096) if p1 else ((i >> 1) * 256 + jj * 2048 + h * 16384)
                    v = ad if (p1 or not i & 1) else (AD2 if ad == AD else AD2 + 1)
                    r(f"ds_read_b64_tr_b16 {vr(WF+16*h+4*i+2*jj,2)}, v{v} offset:{off}")
        r("s_waitcnt lgkmcnt(0)")

    def cs_mfma(r):
        for h in range(2):
            for i in range(nu):
                r(f"v_mfma_f32_16x16x32_bf16 {vr(ACC+4*i,4)}, {vr(WF+16*h+4*i,4)}, {vr(ONE,4)}, {vr(ACC+4*i,4)}")

    def f0(r):
        cs_reads(r, AD)
        return 0

    def f1(r):
        n = 0
        if p1:
            r.begin()
            r("s_mov_b64 exec, 1")
            r(f"buffer_store_dwordx4 {vr(ST,4)}, v{A_ST}, s[28:31], 0 offen sc1")
            r(f"global_load_dwordx2 v[{VT+2}:{VT+3}], v{VT}, s[{PDBG}:{PDBG+1}] sc1")
            r("s_mov_b64 exec, -1")
            r.end()
            n = 2
        cs_mfma(r)
        if nstg == 2:
            cs_reads(r, AD + 3)
        return n

    def f2(r):
        cs_mfma(r)
        return 0

    def f3(r):
        for i in range(nu):
            r.begin()
            r("s_mov_b32 exec_lo, 0x10001")
            r("s_mov_b32 exec_hi, 0x10001")
            if p1:
                r(f"buffer_store_dwordx4 {vr(ACC+4*i,4)}, v{A_CSS}, s[24:27], {['0','s80','s81'][i]} offen sc1")
            else:
                r(f"buffer_store_dwordx4 {vr(ACC+4*i,4)}, v{A_CSS if i < 3 else A_CS3}, s[24:27], 0 offen offset:{i*256} sc1")
            r("s_mov_b64 exec, -1")
            r.end()
        return nu

    def post3():
        nonce_check(a, P, VT)
        a(f"v_mov_b32 v{SG+2}, s{NONCE}")
        a(f"v_mov_b32 v{SG+3}, s{NONCE+1}")
        a(f"ds_write_b64 v{VT+1}, {vr(SG+2,2)}")

    def f5(r):
        r.begin()
        r("s_mov_b64 exec, 1")
        r(f"buffer_store_dwordx2 {vr(SG+2,2)}, v{SG}, s[84:85+2], 0 offen sc1".replace("85+2", "87"))
        if p1:
            r(f"buffer_store_dwordx2 {vr(SG+2,2)}, v{SG+4}, s[84:87], 0 offen sc1")
        r("s_mov_b64 exec, -1")
        r.end()
        return 2 if p1 else 1

    def pre_allready():
        a(f"{P}_ar:")
        a(f"s_cmp_eq_u32 s{RDY}, 0xffff")
        a(f"s_cbranch_scc1 {P}_ar2")
        poll_once(a)
        a(f"s_branch {P}_ar")
        a(f"{P}_ar2:")

    def f_stload(r):
        for i in range(4):
            r.begin()
            r(f"s_mov_b32 s3, {i*16384}")
            r(f"buffer_load_dwordx4 {vr(ST+4*i,4)}, v{A_ST}, s[28:31], s3 offen sc1")
            r.end()
        return 4

    def f_st1(r):
        for i in range(8):
            r(f"v_add_f32 v{ST+i}, v{ST+i}, v{ST+8+i}")
        for i in range(4):
            r(f"v_add_f32 v{ST+i}, v{ST+i}, v{ST+4+i}")
        r(f"ds_write_b128 v{A_SC}, {vr(ST,4)} offset:{L_SS-L_SC}")
        r(f"v_and_b32 v{TT}, 127, v{TID}")
        r(f"v_lshlrev_b32 v{TT}, 3, v{TT}")
        r(f"v_add_u32 v{TB}, {L_SS}, v{TT}")
        r(f"v_add_u32 v{TT}, {L_ROW}, v{TT}")
        r("s_waitcnt lgkmcnt(0)")
        return 0

    def f_st2(r):
        r(f"ds_read2st64_b64 {vr(ST,4)}, v{TB} offset0:0 offset1:2")
        r(f"ds_read2st64_b64 {vr(ST+4,4)}, v{TB} offset0:4 offset1:6")
        r("s_waitcnt lgkmcnt(0)")
        for i in range(4):
            r(f"v_add_f32 v{ST+i}, v{ST+i}, v{ST+4+i}")
        r(f"v_add_f32 v{ST}, v{ST}, v{ST+2}")
        r(f"v_add_f32 v{ST+1}, v{ST+1}, v{ST+3}")
        r(f"v_mul_f32 v{ST}, {hexf(1/1024)}, v{ST}")
        r(f"v_mul_f32 v{ST+1}, {hexf(1/1024)}, v{ST+1}")
        r(f"v_fma_f32 v{ST+1}, -v{ST}, v{ST}, v{ST+1}")
        r(f"v_max_f32 v{ST+1}, 0, v{ST+1}")
        ln_finish(r, ST, ST + 1, ST + 2)
        r(f"ds_write_b64 v{TT}, {vr(ST+2,2)}")
        return 0

    addrs = [PA] + ([PA + 1, PA + 2] if p1 else [])

    def f_poll(r):
        poll_loads(r, addrs, PA + 4)
        return len(addrs)

    def post_check():
        poll_check(a, P + "cs", addrs, PA + 4)

    def tail0():
        a("s_mov_b32 s3, s82")
        for i in range(npw):
            a(f"buffer_load_dwordx4 {vr(ACC+4*i,4)}, v{A_GA}, s[24:27], s3 offen sc1")
            if i < npw - 1:
                a(f"s_add_u32 s3, s3, {ncol*4}")
        if p1:
            a(f"buffer_load_dwordx2 {vr(ST,2)}, v{A_GB}, s[28:31], 0 offen sc1")
        else:
            a(f"buffer_load_ushort v{WF}, v{A_GB}, s[76:79], 0 offen")
        a(f"v_lshlrev_b32 v{AD}, 2, v{TID}")
        a(f"v_add_u32 v{TB}, {L_SC}, v{AD}")
        a(f"v_add_u32 v{AD}, {L_RS}, v{AD}")
        a(f"v_lshlrev_b32 v{TT}, 3, v{TID}")
        a(f"v_add_u32 v{TT}, {L_ROW}, v{TT}")

    def tail1():
        a("s_setprio 3")
        k = npw
        while k > 1:
            k //= 2
            for i in range(4 * k):
                a(f"v_add_f32 v{ACC+i}, v{ACC+i}, v{ACC+i+4*k}")
        a(f"ds_write_b128 v{A_SC}, {vr(ACC,4)}")
        a("s_waitcnt lgkmcnt(0)")
        a(f"s_setprio {OPT['prio']}")

    def tail2():
        a(f"ds_read2st64_b32 {vr(ACC,2)}, v{TB} offset0:0 offset1:4")
        a(f"ds_read2st64_b32 {vr(ACC+2,2)}, v{TB} offset0:8 offset1:12")
        if p1:
            a(f"ds_write_b32 v{AD}, v{ST}")
            a(f"ds_write_b32 v{AD}, v{ST+1} offset:{L_NM-L_RS}")
            a(f"ds_write_b64 v{TT}, {vr(ST,2)}")
        else:
            a(f"v_lshlrev_b32 v{WF}, 16, v{WF}")
            a(f"ds_write_b32 v{AD}, v{WF} offset:{L_B1-L_RS}")
        a("s_waitcnt lgkmcnt(0)")
        a(f"v_add_f32 v{ACC}, v{ACC}, v{ACC+1}")
        a(f"v_add_f32 v{ACC+2}, v{ACC+2}, v{ACC+3}")
        a(f"v_add_f32 v{ACC}, v{ACC}, v{ACC+2}")
        a(f"ds_write_b32 v{AD}, v{ACC} offset:{L_CS-L_RS}")
        a("s_waitcnt lgkmcnt(0)")

    fill = {1: f1, 3: f3, 5: f5, 11: f_poll}
    post = {13: post_check}
    pre = {}
    nowarm = {0, 1}
    if nstg == 2:
        fill[2] = f2
    if p1:
        post[3] = post3
        r = Rec()
        a(f"ds_read_b128 {vr(ST,4)}, v{TB}")
        cs_reads(a, AD)
        a(f"s_waitcnt vmcnt({w1})")
        a("s_barrier")
        i = 1
        nowarm = {1} if nstg == 2 else set()
    else:
        fill[0] = f0
        pre[7] = pre_allready
        fill[7] = f_stload
        fill[9] = f_st1
        fill[10] = f_st2
        nowarm |= {8, 9, 10}
        i = 0
    tag = 0
    special = set(fill) | set(post) | set(pre) | nowarm
    while i <= g.nst - 3:
        if i in special:
            if i in pre:
                pre[i]()
            r = Rec()
            x = fill[i](r) if i in fill else 0
            hot = any(t.startswith("v_") for grp in r.g for t in grp)
            if hot:
                a("s_setprio 3")
            issue(a, both, fill=r.g)
            if hot:
                a(f"s_setprio {OPT['prio']}")
            if i in post:
                post[i]()
            if i not in nowarm:
                warm(a, WARM["rate"])
            a(f"s_waitcnt vmcnt({c+x})")
            a("s_barrier")
            i += 1
        else:
            k = i
            while k <= g.nst - 3 and k not in special:
                k += 1
            loop(f"t{tag}", k - i)
            tag += 1
            i = k
    return tail0, tail1, tail2


def gen_loader(a):
    a("LOADER:")
    a.hist = []
    a("s_sub_u32 s6, s6, 4")
    if OPT["prio"]:
        a(f"s_setprio {OPT['prio']}")
    a("s_or_b32 s3, s2, s6")
    a("s_cmp_lg_u32 s3, 0")
    a("s_cbranch_scc1 LD_nopub")
    a("s_memrealtime s[34:35]")
    a("v_mov_b32 v2, 0")
    a("s_waitcnt lgkmcnt(0)")
    a("s_or_b32 s34, s34, 1")
    a("v_mov_b32 v4, s34")
    a("v_mov_b32 v5, s35")
    a("s_mov_b64 exec, 1")
    a(f"global_store_dwordx2 v2, v[4:5], s[{PDBG}:{PDBG+1}] sc1")
    a("s_mov_b64 exec, -1")
    a("LD_nopub:")
    stamp(a, "l", "start")
    a("v_lshrrev_b32 v2, 3, v1")
    a("v_and_b32 v3, 7, v1")
    vA, vBs = 8, [16, 24]
    srdB = [12, 16]
    regsB = [(36, 37, 38, 39, 46), (40, 41, 42, 43, 47)]
    regsA = (20, 21, 22, 23, 45, 97)
    SB = {p: Stream(PH[p], False, srdB[p & 1], vBs[p & 1], *regsB[p & 1]) for p in (1, 2, 3, 4)}

    def prepB(p):
        srd(a, SB[p].srd, *PH[p].B)
        ld_offsets_B(a, PH[p], SB[p].v)
        SB[p].init(a)

    prepB(1)
    a("s_lshl_b32 s3, s2, 2")
    a("s_add_u32 s3, s3, s6")
    a("s_mul_i32 s3, s3, 7168")
    a(f"s_add_u32 s88, s{PW2}, s3")
    a(f"s_addc_u32 s89, s{PW2+1}, 0")
    a(f"s_add_u32 s32, s{PW1}, s3")
    a(f"s_addc_u32 s33, s{PW1+1}, 0")
    for p in (1, 2, 3, 4):
        g = PH[p]
        P = f"LD{p}"
        m, j = g.mj
        SA = Stream(g, True, 8, vA, *regsA)
        srd(a, 8, *g.A)
        ld_offsets_A(a, g, vA)
        SA.init(a)
        nBq = g.nB // 4
        nAq = (g.nA + 3) // 4
        if p > 1:
            a(f"s_lshl_b32 s3, s{m}, 11")
            a(f"s_add_u32 s3, s3, {WS_FD + (p-1)*32768}")
            a(f"v_lshlrev_b32 v{PF}, 7, v1")
            a(f"v_add_u32 v{PF}, s3, v{PF}")
            a(f"s_mov_b64 s[{RDY}:{RDY+1}], 0")
            a(f"s_mov_b32 s{TMO}, 0x40000")
            if p < 4:
                prepB(p + 1)
            if p == 3:
                fold_setup(a, g)
            stamp(a, "l", f"p{p}_prepoll")
        variants = [(nAq, "")]
        if g.nA % 4:
            variants = [(nAq, "x"), (nAq - 1, "y")]
            a(f"s_cmp_ge_u32 s6, {g.nA % 4}")
            a(f"s_cbranch_scc1 {P}_y")
        for (na, sfx) in variants:
            if sfx == "y":
                a(f"{P}_y:")
            c = na + nBq
            WARM["phase"], WARM["rate"] = p, OPT[f"wr{p}"] if p < 4 else 0
            if sfx == "x":
                WARM["save"] = list(WARM["left"])
            if sfx == "y":
                WARM["left"] = list(WARM["save"])
            both = [(SB[p], nBq), (SA, na)]
            if p == 1:
                for i in range(3):
                    issue(a, both, i < OPT["nt1"])
                prepB(2)
                fold_setup(a, g)
                w0, w1 = 2 * c, c
            else:
                issue(a, [(SA, na)])
                stamp(a, "l", f"p{p}_A0")
                SA.need(a, f"{P}_x1")
                a("s_waitcnt vmcnt(0)")
                a("s_barrier")
                issue(a, [(SA, na)])
                a(f"s_branch {P}_x2")
                a(f"{P}_x1:")
                issue(a, [(SA, na)], ready=False)
                w0, w1 = na, None
            a(f"s_waitcnt vmcnt({w0})")
            a("s_barrier")
            if p > 1:
                a(f"{P}_x2:")

            def loop(tag, cnt):
                a(f"s_mov_b32 s44, {cnt}")
                a(f"{P}_l{tag}{sfx}:")
                issue(a, both)
                warm(a, WARM["rate"], cnt)
                a(f"s_waitcnt vmcnt({c})")
                a("s_barrier")
                a("s_sub_u32 s44, s44, 1")
                a("s_cmp_lg_u32 s44, 0")
                a(f"s_cbranch_scc1 {P}_l{tag}{sfx}")

            if p in (2, 4):
                loop("a", g.nst - 2)
                tails = (lambda: None, lambda: None, lambda: None)
            else:
                tails = fold_body(a, g, both, c, w1, loop, sfx)
            if p < 4:
                nb2 = PH[p + 1].nB // 4
                tails[0]()
                issue(a, [(SB[p + 1], nb2)])
                a(f"s_waitcnt vmcnt({nb2})")
                tails[1]()
                a("s_barrier")
                tails[2]()
                a("s_barrier")
                issue(a, [(SB[p + 1], nb2)])
                if p == 1 and OPT["touch1"] and OPT["warm"] and WARM["left"][0]:
                    a(f"v_lshlrev_b32 v{TT}, 7, v1")
                    a(f"s_mov_b64 exec, {hex((1 << WARM['left'][0]) - 1)}")
                    a(f"global_load_dword v{TB}, v{TT}, s[32:33]")
                    a("s_mov_b64 exec, -1")
                WARM["phase"] = 2
                warm(a, OPT["wg"])
            else:
                a("s_waitcnt vmcnt(0)")
                a("s_barrier")
                a("s_barrier")
            if sfx == "x":
                a(f"s_branch {P}_e")
        a(f"{P}_e:")
    print("warm lines not covered:", WARM["left"])
    stamp(a, "l", "end")
    stamp_flush(a, 4)
    a("s_endpgm")


def gen_mainloop(a, g, P):
    a(f"s_mov_b32 s42, {g.slot0}")
    a(f"s_mov_b32 s46, {(-2*SLOT) & 0xffffffff}")
    a(f"s_mov_b32 s47, {SLOT}")
    a(f"s_mov_b32 s43, {g.nst}")
    a("s_waitcnt lgkmcnt(0)")
    a("s_barrier")
    stamp(a, "c", f"p{g.n}_B0")
    for r in g.reads(0, 0):
        a(r)
    a(f"{P}_loop:")
    sal = ["s_cmp_eq_u32 s42, 2", "s_cselect_b32 s44, s46, s47"]
    sal2 = ["s_add_u32 s42, s42, 1", "s_cmp_eq_u32 s42, 3", "s_cselect_b32 s42, 0, s42",
            "s_sub_u32 s43, s43, 1", "s_cmp_lg_u32 s43, 0"]
    a("s_waitcnt lgkmcnt(0)")
    if OPT["stamp"] == 2:
        base = {1: 0, 2: 17, 3: 26, 4: 0}[g.n]
        a(f"s_add_u32 m0, s43, {base}")
        a(f"v_writelane_b32 v{253 if g.n == 4 else 252}, s98, m0")
        a("s_memtime s[98:99]")
    interleave(a, g.mfmas(0), g.reads(1, 1) + sal + [f"v_add_u32 v{v}, s44, v{v}" for v in g.adv])
    a("s_waitcnt lgkmcnt(0)")
    interleave(a, g.mfmas(1), g.reads(0, 0) + sal2, first=["s_barrier"])
    a(f"s_cbranch_scc1 {P}_loop")
    a("s_waitcnt lgkmcnt(0)")
    if OPT["stamp"] == 2:
        a(f"v_writelane_b32 v{253 if g.n == 4 else 252}, s98, {base}")
    stamp(a, "c", f"p{g.n}_loopend")


L15, GQ = 2, 3


def b_addr128(a, V, units, sbase):
    t = V.alloc()
    f = V.alloc()
    base = V.alloc()
    a(f"v_bfe_u32 v{f}, v{L15}, 3, 1")
    a(f"v_and_b32 v{t}, 1, v{GQ}")
    a(f"v_lshl_or_b32 v{f}, v{t}, 1, v{f}")
    a(f"v_lshrrev_b32 v{t}, 2, v{L15}")
    a(f"v_lshl_add_u32 v{t}, v{GQ}, 3, v{t}")
    a(f"v_lshlrev_b32 v{base}, 7, v{t}")
    a(f"v_and_b32 v{t}, 3, v{L15}")
    a(f"v_lshl_add_u32 v{base}, v{t}, 3, v{base}")
    a(f"v_add_u32 v{base}, s{sbase}, v{base}")
    out = []
    for u in units:
        v0 = V.alloc()
        a(f"v_xor_b32 v{t}, {u}, v{f}")
        a(f"v_lshl_add_u32 v{v0}, v{t}, 5, v{base}")
        out.append(v0)
    return out


def zero_acc(a, acc, n):
    for i in range(n):
        a(f"v_mov_b32 v{acc+i}, 0")


def pair_post(a, tag, vt):
    a("s_lshl_b32 s3, s6, 2")
    a(f"s_add_u32 s3, s3, {L_PAIR}")
    a(f"v_mov_b32 v{vt}, s3")
    a(f"v_mov_b32 v{vt+1}, {tag}")
    a("s_waitcnt lgkmcnt(0)")
    a(f"ds_write_b32 v{vt}, v{vt+1}")


def pair_wait(a, lab, tag, xor, vt):
    a(f"v_xor_b32 v{vt}, {xor*4}, v{vt}")
    a(f"{lab}_ps:")
    a(f"ds_read_b32 v{vt+1}, v{vt}")
    a("s_waitcnt lgkmcnt(0)")
    a(f"v_readfirstlane_b32 s3, v{vt+1}")
    a(f"s_cmp_lg_u32 s3, {tag}")
    a(f"s_cbranch_scc1 {lab}_ps")


def finish_phase(a, p, g, vt):
    m, j = g.mj
    a(f"s_lshl_b32 s7, s{m}, 11")
    a(f"s_lshl_b32 s3, s{j}, 7")
    a("s_add_u32 s7, s7, s3")
    a(f"s_add_u32 s7, s7, {WS_FD + p*32768}")
    a(f"v_mov_b32 v{vt}, {L_CNT}")
    a(f"v_mov_b32 v{vt+1}, 1")
    a(f"v_mov_b32 v{vt+2}, s{NONCE}")
    a(f"v_mov_b32 v{vt+3}, s{NONCE+1}")
    a("s_mov_b64 exec, 1")
    a("s_waitcnt vmcnt(0)")
    a(f"ds_add_rtn_u32 v{vt+1}, v{vt}, v{vt+1}")
    a(f"v_mov_b32 v{vt}, s7")
    a("s_waitcnt lgkmcnt(0)")
    a(f"v_readfirstlane_b32 s3, v{vt+1}")
    a(f"s_cmp_lg_u32 s3, {4*p-1}")
    a(f"s_cbranch_scc1 FIN{p}")
    a(f"global_store_dwordx2 v{vt}, v[{vt+2}:{vt+3}], s[{PWS}:{PWS+1}] sc1")
    a(f"FIN{p}:")
    a("s_mov_b64 exec, -1")
    stamp(a, "c", f"p{p}_done")


def frag_lane_off(a, d, t):
    a(f"v_and_b32 v{t}, 1, v{GQ}")
    a(f"v_lshlrev_b32 v{d}, 9, v{t}")
    a(f"v_lshrrev_b32 v{t}, 1, v{GQ}")
    a(f"v_lshl_add_u32 v{d}, v{t}, 8, v{d}")
    a(f"v_lshl_add_u32 v{d}, v{L15}, 4, v{d}")


def gen_p0(a):
    g = PH[1]
    m, j = g.mj
    srd(a, 8, PX, 0, S * D * 2)
    a(f"s_lshl_b32 s3, s{m}, 7")
    a(f"s_lshl_b32 s7, s{j}, 3")
    a("s_add_u32 s3, s3, s7")
    a("s_lshl_b32 s7, s6, 1")
    a("s_add_u32 s34, s3, s7")
    a("s_lshl_b32 s3, s34, 11")
    a("v_lshlrev_b32 v4, 4, v1")
    for rr in range(2):
        for hh in range(2):
            a(f"buffer_load_dwordx4 v[{24+rr*8+hh*4}:{27+rr*8+hh*4}], v4, s[8:11], s3 offen offset:{rr*2048+hh*1024}")
    a("s_lshl_b32 s3, s6, 2")
    a(f"s_add_u32 s3, s3, {L_PAIR}")
    a("v_mov_b32 v5, s3")
    a("v_mov_b32 v6, 0")
    a("ds_write_b32 v5, v6")
    a(f"v_mov_b32 v5, {L_CNT}")
    a("ds_write_b32 v5, v6")


def gen_p0b(a):
    a("s_waitcnt vmcnt(0)")
    a("v_mov_b32 v48, 0x3f803f80")
    R = [40, 41, 42, 43]
    for i in range(8):
        for rr in range(2):
            x = 24 + rr * 8 + i
            a(f"v_dot2_f32_bf16 v{R[2*rr]}, v{x}, v48, {'0' if i == 0 else 'v%d' % R[2*rr]}")
            a(f"v_dot2_f32_bf16 v{R[2*rr+1]}, v{x}, v{x}, {'0' if i == 0 else 'v%d' % R[2*rr+1]}")
    a("s_nop 2")
    wave_sum_multi(a, R, [44, 45, 46, 47])
    for rr in range(2):
        a(f"v_mul_f32 v{R[2*rr]}, {hexf(1.0/1024)}, v{R[2*rr]}")
        a(f"v_mul_f32 v{R[2*rr+1]}, {hexf(1.0/1024)}, v{R[2*rr+1]}")
        a(f"v_fma_f32 v{R[2*rr+1]}, -v{R[2*rr]}, v{R[2*rr]}, v{R[2*rr+1]}")
        a(f"v_max_f32 v{R[2*rr+1]}, 0, v{R[2*rr+1]}")
    for rr in range(2):
        ln_finish(a, R[2 * rr], R[2 * rr + 1], 44 + 2 * rr)
    a("s_lshl_b32 s3, s6, 4")
    a(f"s_add_u32 s3, s3, {L_P0}")
    a("v_mov_b32 v48, s3")
    a("ds_write_b128 v48, v[44:47]")
    stamp(a, "c", "p0_done")


def gen_p1(a):
    g = PH[1]
    m, j = g.mj
    g2 = PH[2]
    V = Regs("v", 68, RES)
    srd(a, 20, PWS, WS_O, S * D * 2)
    a("s_and_b32 s34, s6, 1")
    a("s_lshr_b32 s35, s6, 1")
    a("s_lshl_b32 s36, s34, 13")
    t = 4
    vA, vAh = [5, 6], [7, 8]
    for h in range(2):
        a(f"v_lshrrev_b32 v{t}, 1, v{L15}")
        a(f"v_xor_b32 v{t}, v{t}, v{GQ}")
        if h:
            a(f"v_xor_b32 v{t}, 4, v{t}")
        a(f"v_lshlrev_b32 v{t}, 4, v{t}")
        a(f"v_lshl_add_u32 v{vAh[h]}, v{L15}, 7, v{t}")
        if g.slot0:
            a(f"v_add_u32 v{vAh[h]}, {g.slot0*SLOT}, v{vAh[h]}")
        a(f"v_add_u32 v{vA[h]}, s36, v{vAh[h]}")
        a(f"v_add_u32 v{vA[h]}, 2048, v{vA[h]}")
    a(f"s_mov_b32 s36, {g.Boff + g.slot0*SLOT}")
    a("s_lshl_b32 s37, s35, 1")
    a("s_add_u32 s38, s37, 1")
    V2 = Regs("v", 12, 24)
    vB = b_addr128(a, V2, ["s37", "s38"], 36)
    acc = V.alloc(104, 4)
    W = [V.alloc(24, 4), 0]
    X = [V.alloc(20, 4), 0]
    W[1], X[1] = 24, 48
    accr = lambda t, u: acc + (t * 4 + u) * 4
    acch = lambda c: acc + 96 + c * 4
    zero_acc(a, acc, 104)
    gen_p0b(a)

    def reads(h, b):
        r = []
        for u in range(4):
            r.append(f"ds_read_b128 {vr(X[b]+4*u,4)}, v{vA[h]} offset:{u*2048}")
        for t in range(6):
            for jj in range(2):
                r.append(f"ds_read_b64_tr_b16 {vr(W[b]+4*t+2*jj,2)}, v{vB[t&1]} offset:{(t>>1)*8192+jj*512+h*4096}")
            if t == 1:
                r.append(f"ds_read_b128 {vr(X[b]+16,4)}, v{vAh[h]}")
        return r

    def mk_mfmas(rsel):
        def mfmas(b):
            ml = []
            for t in range(6):
                for u in range(4):
                    w, x, d = vr(W[b] + 4 * t, 4), vr(X[b] + 4 * u, 4), vr(accr(t, u), 4)
                    ml.append(f"v_mfma_f32_16x16x32_bf16 {d}, {w}, {x}, {d}" if t < 4 else
                              f"v_mfma_f32_16x16x32_bf16 {d}, {x}, {w}, {d}")
                if (t >> 1) == 1 + rsel:
                    w, x, d = vr(W[b] + 4 * t, 4), vr(X[b] + 16, 4), vr(acch(t & 1), 4)
                    ml.append(f"v_mfma_f32_16x16x32_bf16 {d}, {w}, {x}, {d}" if t < 4 else
                              f"v_mfma_f32_16x16x32_bf16 {d}, {x}, {w}, {d}")
            return ml
        return mfmas

    g.reads = reads
    g.adv = vA + vAh + vB
    a("s_cmp_eq_u32 s34, 1")
    a("s_cbranch_scc1 P1_r1")
    g.mfmas = mk_mfmas(0)
    gen_mainloop(a, g, "P1a")
    a("s_branch P1_epi")
    a("P1_r1:")
    g.mfmas = mk_mfmas(1)
    gen_mainloop(a, g, "P1b")
    a("P1_epi:")
    RP = 24
    CSq = 36
    CSv = 34
    R4 = W[0]
    N4 = W[0] + 20
    assert X[0] == W[0] + 24
    T = 52
    a("s_lshl_b32 s36, s34, 9")
    a(f"s_add_u32 s36, s36, {L_ROW + 128}")
    a(f"v_lshlrev_b32 v4, 3, v{L15}")
    a(f"v_add_u32 v5, {L_ROW}, v4")
    a(f"v_add_u32 v4, s36, v4")
    a(f"ds_read_b64 {vr(RP+8,2)}, v5")
    a(f"v_mov_b32 v16, {L_NONCE}")
    a("ds_read_b64 v[16:17], v16")
    a(f"v_lshlrev_b32 v6, 4, v{GQ}")
    a("s_lshl_b32 s36, s35, 7")
    a(f"s_add_u32 s36, s36, {L_CS}")
    a(f"v_add_u32 v7, s36, v6")
    for c in range(2):
        a(f"ds_read_b128 {vr(CSq+8+4*c,4)}, v7 offset:{256+64*c}")
    a(f"v_lshlrev_b32 v8, 2, v{L15}")
    a(f"v_add_u32 v8, s36, v8")
    a(f"ds_read2_b32 {vr(CSv,2)}, v8 offset0:128 offset1:144")
    a(f"v_add_u32 v9, {L_RS}, v6")
    a(f"ds_read_b128 {vr(R4+16,4)}, v9")
    a(f"ds_read_b128 {vr(N4+16,4)}, v9 offset:{L_NM-L_RS}")
    for u in (3, 2, 1, 0):
        a(f"ds_read_b64 {vr(RP+2*u,2)}, v4 offset:{u*128}")
    a("s_lshl_b32 s36, s34, 8")
    a(f"v_add_u32 v9, s36, v9")
    for u in (3, 2, 1, 0):
        a(f"ds_read_b128 {vr(R4+4*u,4)}, v9 offset:{64+64*u}")
        a(f"ds_read_b128 {vr(N4+4*u,4)}, v9 offset:{64+64*u+L_NM-L_RS}")
    for c in range(2):
        a(f"ds_read_b128 {vr(CSq+4*c,4)}, v7 offset:{64*c}")
    m2, j2 = g2.mj
    a(f"s_lshl_b32 s36, s{m2}, 7")
    a("s_lshl_b32 s37, s34, 6")
    a("s_add_u32 s36, s36, s37")
    a("s_lshl_b32 s37, s35, 5")
    a("s_add_u32 s36, s36, s37")
    a(f"v_add_u32 v10, s36, v{L15}")
    a("v_lshlrev_b32 v10, 11, v10")
    a(f"v_lshl_add_u32 v10, v{GQ}, 3, v10")
    a(f"s_lshl_b32 s36, s{j2}, 7")
    a("s_add_u32 s37, s36, 32768")
    for uu in range(2):
        for t_ in range(4):
            a(f"buffer_load_dwordx2 {vr(RES+8*uu+2*t_,2)}, v10, s[8:11], s{36+uu} offen offset:{32*t_}")

    def fold_qk(d, cs, rp):
        for i in (0, 2):
            a(f"v_pk_mul_f32 {vr(T+i,2)}, {vr(cs+i,2)}, {vr(rp,2)} op_sel:[0,1] op_sel_hi:[1,1]")
        for i in (0, 2):
            a(f"v_pk_fma_f32 {vr(d+i,2)}, {vr(d+i,2)}, {vr(rp,2)}, {vr(T+i,2)} op_sel:[0,0,0] op_sel_hi:[1,0,1]")

    def fold_v(d, c, ui):
        for i in (0, 2):
            a(f"v_pk_mul_f32 {vr(T+i,2)}, {vr(N4+4*ui+i,2)}, {vr(CSv,2)} op_sel:[0,{c}] op_sel_hi:[1,{c}]")
        for i in (0, 2):
            a(f"v_pk_fma_f32 {vr(d+i,2)}, {vr(d+i,2)}, {vr(R4+4*ui+i,2)}, {vr(T+i,2)}")

    def pack(dst, d):
        a(f"v_cvt_pk_bf16_f32 v{dst}, v{d}, v{d+1}")
        a(f"v_cvt_pk_bf16_f32 v{dst+1}, v{d+2}, v{d+3}")

    ex, PV = 12, 14
    a(f"v_lshlrev_b32 v{ex}, 4, v1")
    a("s_mul_i32 s36, s35, 3072")
    a(f"s_add_u32 s36, s36, {g.exch}")
    a(f"v_add_u32 v{ex}, s36, v{ex}")
    Hp = 60
    a("s_waitcnt lgkmcnt(0)")
    a(f"v_readfirstlane_b32 s{NONCE}, v16")
    a(f"v_readfirstlane_b32 s{NONCE+1}, v17")
    a("s_cmp_eq_u32 s34, 1")
    a("s_cbranch_scc1 P1_ex1")
    for c in range(2):
        fold_qk(accr(2 + c, 3), CSq + 8 + 4 * c, RP + 6)
        fold_v(accr(4 + c, 3), c, 3)
    for c in range(2):
        pack(Hp + 2 * c, accr(2 + c, 3))
        pack(Hp + 4 + 2 * c, accr(4 + c, 3))
    a(f"ds_write_b128 v{ex}, {vr(Hp,4)}")
    a(f"ds_write_b128 v{ex}, {vr(Hp+4,4)} offset:1024")
    pair_post(a, 1, PV)
    for c in range(2):
        fold_qk(acch(c), CSq + 8 + 4 * c, RP + 8)
    a("s_branch P1_ex2")
    a("P1_ex1:")
    for c in range(2):
        fold_v(acch(c), c, 4)
    for c in range(2):
        pack(Hp + 2 * c, acch(c))
    a(f"ds_write_b128 v{ex}, {vr(Hp,4)} offset:2048")
    pair_post(a, 1, PV)
    for c in range(2):
        fold_qk(accr(2 + c, 3), CSq + 8 + 4 * c, RP + 6)
        fold_v(accr(4 + c, 3), c, 3)
    a("P1_ex2:")
    for u in range(3):
        for c in range(2):
            fold_qk(accr(2 + c, u), CSq + 8 + 4 * c, RP + 2 * u)
            fold_v(accr(4 + c, u), c, u)
    a(f"s_mov_b32 s36, {hexf(32 ** -0.5 * math.log2(math.e))}")
    a("s_mov_b32 s37, s36")
    for u in range(4):
        a(f"v_pk_mul_f32 {vr(RP+2*u,2)}, {vr(RP+2*u,2)}, s[36:37]")
    for u in range(4):
        for c in range(2):
            fold_qk(accr(c, u), CSq + 4 * c, RP + 2 * u)
    Kf, Vp, Qf = W[0], [W[0] + 20, W[0] + 30], 24
    for u in range(4):
        for c in range(2):
            pack(Kf + 4 * (u + 1) + 2 * c, accr(2 + c, u))
            pack(Vp[c] + 2 * (u + 1), accr(4 + c, u))
            pack(Qf + 4 * u + 2 * c, accr(c, u))
    a("s_cmp_eq_u32 s34, 1")
    a("s_cbranch_scc1 P1_ex3")
    for c in range(2):
        pack(Kf + 2 * c, acch(c))
    pair_wait(a, "P1a", 1, 1, PV)
    for c in range(2):
        a(f"ds_read_b64 {vr(Vp[c],2)}, v{ex} offset:{2048+8*c}")
    a("s_branch P1_ex4")
    a("P1_ex3:")
    pair_wait(a, "P1b", 1, 1, PV)
    a(f"ds_read_b128 {vr(Kf,4)}, v{ex}")
    for c in range(2):
        a(f"ds_read_b64 {vr(Vp[c],2)}, v{ex} offset:{1024+8*c}")
    a("P1_ex4:")
    t0, t1 = acc, acc + 1
    MA, MB = acc + 2, acc + 4
    a(f"v_and_b32 v{t0}, 1, v{L15}")
    a(f"v_cmp_eq_u32 s[76:77], 1, v{t0}")
    a(f"v_lshl_add_u32 v{t0}, v{GQ}, 2, v{t0}")
    a(f"v_cmp_le_u32 s[78:79], v{t0}, v{L15}")
    a(f"v_add_u32 v{t0}, 2, v{t0}")
    a(f"v_cmp_le_u32 s[80:81], v{t0}, v{L15}")
    a(f"v_mov_b32 v{t0}, 0xffff")
    a(f"v_mov_b32 v{t1}, 0xffff0000")
    a(f"v_cndmask_b32 v{t0}, v{t0}, v{t1}, s[76:77]")
    a(f"v_cndmask_b32 v{MA}, v{t0}, 0, s[78:79]")
    a(f"v_cndmask_b32 v{MA+1}, 0, v{t0}, s[78:79]")
    a(f"v_cndmask_b32 v{MB}, v{t0}, 0, s[80:81]")
    a(f"v_cndmask_b32 v{MB+1}, 0, v{t0}, s[80:81]")
    a(f"s_or_b32 s36, s{m}, s34")
    a("s_cmp_eq_u32 s36, 0")
    a("s_cselect_b64 s[82:83], s[78:79], -1")
    a("s_cselect_b64 s[84:85], s[80:81], -1")
    vo = acc + 6
    frag_lane_off(a, vo, t0)
    a(f"s_lshl_b32 s36, s{m}, 3")
    a("s_lshl_b32 s37, s34, 2")
    a("s_add_u32 s36, s36, s37")
    a("s_lshl_b32 s36, s36, 5")
    a(f"s_lshl_b32 s37, s{j}, 1")
    a("s_add_u32 s36, s36, s37")
    a("s_add_u32 s36, s36, s35")
    a("s_lshl_b32 s36, s36, 10")
    a(f"v_add_u32 v{vo}, s36, v{vo}")
    NEG = acc + 7
    a(f"v_mov_b32 v{NEG}, 0xff800000")
    Sc = acc + 8
    for u in (1, 2, 3):
        for blk in range(2):
            a(f"v_mfma_f32_16x16x32_bf16 {vr(Sc+8*u+4*blk,4)}, {vr(Kf+4*(u+blk),4)}, {vr(Qf+4*u,4)}, 0")
    a("s_waitcnt lgkmcnt(0)")
    for blk in (1, 0):
        a(f"v_mfma_f32_16x16x32_bf16 {vr(Sc+4*blk,4)}, {vr(Kf+4*blk,4)}, {vr(Qf,4)}, 0")
    VA, VB_, MX, TM = acc + 40, acc + 44, acc + 48, acc + 52
    order = (1, 2, 3, 0)
    for u in order:
        s = Sc + 8 * u
        a(f"v_cndmask_b32 v{s}, v{s}, v{s+1}, s[76:77]")
        a(f"v_cndmask_b32 v{s+4}, v{s+4}, v{s+5}, s[76:77]")
        a(f"v_cndmask_b32 v{s+2}, v{s+2}, v{s+3}, s[76:77]")
        a(f"v_cndmask_b32 v{s+6}, v{s+6}, v{s+7}, s[76:77]")
        a(f"v_cndmask_b32 v{VA+u}, v{s}, v{s+4}, s[78:79]")
        a(f"v_cndmask_b32 v{VB_+u}, v{s+2}, v{s+6}, s[80:81]")
    a(f"v_cndmask_b32 v{VA}, v{NEG}, v{VA}, s[82:83]")
    a(f"v_cndmask_b32 v{VB_}, v{NEG}, v{VB_}, s[84:85]")
    for u in order:
        a(f"v_max_f32 v{MX+u}, v{VA+u}, v{VB_+u}")
    xrow_reduce_multi(a, "v_max_f32", [MX + u for u in order], [TM + u for u in order])
    for u in order:
        a(f"v_sub_f32 v{VA+u}, v{VA+u}, v{MX+u}")
        a(f"v_sub_f32 v{VB_+u}, v{VB_+u}, v{MX+u}")
    for u in order:
        a(f"v_exp_f32 v{VA+u}, v{VA+u}")
        a(f"v_exp_f32 v{VB_+u}, v{VB_+u}")
    for u in order:
        a(f"v_add_f32 v{MX+u}, v{VA+u}, v{VB_+u}")
    xrow_reduce_multi(a, "v_add_f32", [MX + u for u in order], [TM + u for u in order])
    for u in order:
        a(f"v_rcp_f32 v{MX+u}, v{MX+u}")
    for u in order:
        a(f"v_mul_f32 v{VA+u}, v{VA+u}, v{MX+u}")
        a(f"v_mul_f32 v{VB_+u}, v{VB_+u}, v{MX+u}")
    for u in order:
        a(f"v_cvt_pk_bf16_f32 v{VA+u}, v{VA+u}, v{VA+u}")
        a(f"v_cvt_pk_bf16_f32 v{VB_+u}, v{VB_+u}, v{VB_+u}")
    Pp, Om = acc + 56, acc + 72
    for u in order:
        a(f"v_and_b32 v{Pp+4*u}, v{VA+u}, v{MA}")
        a(f"v_and_b32 v{Pp+4*u+1}, v{VB_+u}, v{MB}")
        a(f"v_and_b32 v{Pp+4*u+2}, v{VA+u}, v{MA+1}")
        a(f"v_and_b32 v{Pp+4*u+3}, v{VB_+u}, v{MB+1}")
    for u in order:
        for c in range(2):
            a(f"v_mfma_f32_16x16x32_bf16 {vr(Om+8*u+4*c,4)}, {vr(Vp[c]+2*u,4)}, {vr(Pp+4*u,4)}, 0")
    for u in range(4):
        a(f"s_mov_b32 s{76+u}, {u*32768}")
    for u in order:
        o = Om + 8 * u
        p = Sc + 4 * u
        for i in range(4):
            a(f"v_cvt_pk_bf16_f32 v{p+i}, v{o+2*i}, v{o+2*i+1}")
    for u in order:
        p = Sc + 4 * u
        a(f"v_permlane16_swap_b32 v{p}, v{p+2}")
        a(f"v_permlane16_swap_b32 v{p+1}, v{p+3}")
        a(f"buffer_store_dwordx4 {vr(p,4)}, v{vo}, s[20:23], s{76+u} offen sc1")
    stamp(a, "c", "p1_stored")
    finish_phase(a, 1, g, acc + 40)


def gen_p24(a, which):
    g = PH[which]
    m, j = g.mj
    k2 = which == 2
    P = f"P{which}"
    V = Regs("v", 4, RES)
    if k2:
        srd(a, 16, PWS, WS_H, S * D * 2)
        srd(a, 24, PWS, WS_ST, 16 * S * 8)
    else:
        srd(a, 16, POUT, 0, S * D * 2)
    a("s_and_b32 s34, s6, 1")
    a("s_lshr_b32 s35, s6, 1")
    vA = [V.alloc(), V.alloc()]
    a("s_lshl_b32 s36, s34, 14")
    a("s_lshl_b32 s37, s35, 11")
    a("s_add_u32 s36, s36, s37")
    a(f"s_add_u32 s36, s36, {g.slot0*SLOT}")
    a(f"v_lshlrev_b32 v{vA[0]}, 4, v1")
    a(f"v_add_u32 v{vA[0]}, s36, v{vA[0]}")
    a("s_lshl_b32 s37, s35, 13")
    a(f"s_sub_u32 s38, 8192, s37")
    a(f"v_add_u32 v{vA[1]}, s38, v{vA[0]}")
    a(f"v_add_u32 v{vA[0]}, s37, v{vA[0]}")
    a("s_lshl_b32 s36, s35, 13")
    a(f"s_add_u32 s36, s36, {g.Boff + g.slot0*SLOT}")
    vB = b_addr128(a, V, [0, 1, 2, 3], 36)
    acc = V.alloc(64, 4)
    X = [V.alloc(16, 4) for _ in range(2)]
    W = [V.alloc(16, 4) for _ in range(2)]
    accr = lambda t, u: acc + (t * 4 + u) * 4
    vo, t0, vrow, ex, exr, PV = V.alloc(), V.alloc(), V.alloc(), V.alloc(), V.alloc(), V.alloc(2)
    a(f"s_lshl_b32 s36, s{m}, 7")
    a("s_lshl_b32 s37, s34, 6")
    a("s_add_u32 s36, s36, s37")
    a("s_lshl_b32 s37, s35, 5")
    a("s_add_u32 s36, s36, s37")
    if k2:
        a(f"v_add_u32 v{vrow}, s36, v{L15}")
        a(f"v_lshlrev_b32 v{vrow}, 3, v{vrow}")
        a(f"v_cmp_eq_u32 vcc, 0, v{GQ}")
        a(f"v_mov_b32 v{t0}, {BIG}")
        a(f"v_cndmask_b32 v{vrow}, v{t0}, v{vrow}, vcc")
        frag_lane_off(a, vo, t0)
        a("s_lshl_b32 s36, s36, 11")
        a(f"s_lshl_b32 s37, s{j}, 11")
        a("s_add_u32 s36, s36, s37")
        a(f"v_add_u32 v{vo}, s36, v{vo}")
    else:
        a(f"v_add_u32 v{vo}, s36, v{L15}")
        a(f"v_lshlrev_b32 v{vo}, 11, v{vo}")
        a(f"v_and_b32 v{t0}, 1, v{GQ}")
        a(f"v_lshl_add_u32 v{vo}, v{t0}, 5, v{vo}")
        a(f"v_lshrrev_b32 v{t0}, 1, v{GQ}")
        a(f"v_lshl_add_u32 v{vo}, v{t0}, 4, v{vo}")
        a(f"s_lshl_b32 s36, s{j}, 7")
        a(f"v_add_u32 v{vo}, s36, v{vo}")
    a("s_mov_b32 s45, 32768")
    a(f"v_lshlrev_b32 v{ex}, 4, v1")
    a("s_lshl_b32 s36, s6, 13")
    a(f"v_add_u32 v{ex}, s36, v{ex}")
    a(f"v_xor_b32 v{exr}, 16384, v{ex}")
    a(f"v_add_u32 v{ex}, {g.exch}, v{ex}")
    a(f"v_add_u32 v{exr}, {g.exch}, v{exr}")
    for t in range(4):
        for uu in range(2):
            d = accr(t, uu)
            for i in range(2):
                a(f"v_lshlrev_b32 v{d+2*i}, 16, v{RES+8*uu+2*t+i}")
                a(f"v_and_b32 v{d+2*i+1}, 0xffff0000, v{RES+8*uu+2*t+i}")
        if not k2:
            z = accr(t, 2)
            for i in range(2):
                a(f"v_lshlrev_b32 v{z+2*i}, 16, v{BIA+2*t+i}")
                a(f"v_and_b32 v{z+2*i+1}, 0xffff0000, v{BIA+2*t+i}")
            for uu in range(2):
                for i in (0, 2):
                    a(f"v_pk_add_f32 {vr(accr(t,uu)+i,2)}, {vr(accr(t,uu)+i,2)}, {vr(z+i,2)}")
        zero_acc(a, accr(t, 2), 8)

    def reads(h, b):
        r = []
        for u in range(4):
            r.append(f"ds_read_b128 {vr(X[b]+4*u,4)}, v{vA[u>>1]} offset:{(u&1)*4096+h*1024}")
        for t in range(4):
            for jj in range(2):
                r.append(f"ds_read_b64_tr_b16 {vr(W[b]+4*t+2*jj,2)}, v{vB[t]} offset:{jj*512+h*4096}")
        return r

    def mfmas(b):
        ml = []
        for t in range(4):
            for u in (2, 3, 0, 1):
                w, x, d = vr(W[b] + 4 * t, 4), vr(X[b] + 4 * u, 4), vr(accr(t, u), 4)
                ml.append(f"v_mfma_f32_16x16x32_bf16 {d}, {w}, {x}, {d}")
        return ml

    g.reads, g.mfmas = reads, mfmas
    g.adv = vA + vB
    gen_mainloop(a, g, P)
    for t in range(4):
        for uu in range(2):
            a(f"ds_write_b128 v{ex}, {vr(accr(t, 2+uu),4)} offset:{(t*2+uu)*1024}")
    pair_post(a, which, PV)
    pair_wait(a, P, which, 2, PV)
    Rv = X[0]
    assert X[1] == X[0] + 16
    lst = [(t, uu) for uu in range(2) for t in range(4)]
    for (t, uu) in lst:
        a(f"ds_read_b128 {vr(Rv+(t*2+uu)*4,4)}, v{exr} offset:{(t*2+uu)*1024}")
    ob = W[0]
    for n_, (t, uu) in enumerate(lst):
        a(f"s_waitcnt lgkmcnt({7-n_})")
        d = accr(t, uu)
        for i in (0, 2):
            a(f"v_pk_add_f32 {vr(d+i,2)}, {vr(d+i,2)}, {vr(Rv+(t*2+uu)*4+i,2)}")
        o = ob + 8 * uu + 2 * t
        a(f"v_cvt_pk_bf16_f32 v{o}, v{d}, v{d+1}")
        a(f"v_cvt_pk_bf16_f32 v{o+1}, v{d+2}, v{d+3}")
        if k2:
            a(f"v_mov_b32 v{RES+8*uu+2*t}, v{o}")
            a(f"v_mov_b32 v{RES+8*uu+2*t+1}, v{o+1}")
        if t & 1:
            o -= 2
            a(f"v_permlane16_swap_b32 v{o}, v{o+2}")
            a(f"v_permlane16_swap_b32 v{o+1}, v{o+3}")
            so = "s45" if uu else "0"
            if k2:
                a(f"buffer_store_dwordx4 {vr(o,4)}, v{vo}, s[16:19], {so} offen offset:{1024*(t>>1)} sc1")
            else:
                a(f"buffer_store_dwordx4 {vr(o,4)}, v{vo}, s[16:19], {so} offen offset:{64*(t>>1)}")
    if k2:
        SM = [Rv, Rv + 2]
        PK = [Rv + 8, Rv + 10]
        PQ = [Rv + 12, Rv + 14]
        for uu in range(2):
            a(f"v_pk_add_f32 {vr(PK[uu],2)}, {vr(accr(0,uu),2)}, {vr(accr(0,uu)+2,2)}")
            a(f"v_pk_mul_f32 {vr(PQ[uu],2)}, {vr(accr(0,uu),2)}, {vr(accr(0,uu),2)}")
        for t in range(4):
            for i in (0, 2):
                for uu in range(2):
                    d = vr(accr(t, uu) + i, 2)
                    if t:
                        a(f"v_pk_add_f32 {vr(PK[uu],2)}, {vr(PK[uu],2)}, {d}")
                    if t or i:
                        a(f"v_pk_fma_f32 {vr(PQ[uu],2)}, {d}, {d}, {vr(PQ[uu],2)}")
        for uu in range(2):
            a(f"v_add_f32 v{SM[uu]}, v{PK[uu]}, v{PK[uu]+1}")
            a(f"v_add_f32 v{SM[uu]+1}, v{PQ[uu]}, v{PQ[uu]+1}")
        xrow_reduce_multi(a, "v_add_f32", [Rv, Rv + 1, Rv + 2, Rv + 3], [Rv + 4, Rv + 5, Rv + 6, Rv + 7])
        a(f"s_lshl_b32 s36, s{j}, 14")
        for uu in range(2):
            a(f"buffer_store_dwordx2 {vr(SM[uu],2)}, v{vrow}, s[24:27], s36 offen offset:{uu*128} sc1")
    stamp(a, "c", f"p{which}_stored")
    if k2:
        finish_phase(a, 2, g, X[1])


def gen_p3(a):
    g = PH[3]
    m, j = g.mj
    g4 = PH[4]
    V = Regs("v", 4, RES)
    srd(a, 16, PWS, WS_H1, S * F * 2)
    srd(a, 20, PB2, 0, D * 2)
    acc = V.alloc(112, 4)
    X = [V.alloc(16, 4) for _ in range(2)]
    W = [V.alloc(28, 4) for _ in range(2)]
    accr = lambda t, u: acc + (t * 4 + u) * 4
    a("s_and_b32 s34, s6, 1")
    a("s_lshr_b32 s35, s6, 1")
    vA = V.alloc()
    a("s_lshl_b32 s36, s34, 13")
    a(f"s_add_u32 s36, s36, {g.slot0*SLOT}")
    a(f"v_lshlrev_b32 v{vA}, 4, v1")
    a(f"v_add_u32 v{vA}, s36, v{vA}")
    t = X[0]
    base, f = X[0] + 1, X[0] + 2
    vB = [V.alloc() for _ in range(7)]
    a(f"v_lshrrev_b32 v{t}, 2, v{L15}")
    a(f"v_and_b32 v{f}, 1, v{GQ}")
    a(f"v_lshl_or_b32 v{f}, v{f}, 2, v{t}")
    a(f"v_lshl_add_u32 v{t}, v{GQ}, 3, v{t}")
    a(f"v_lshlrev_b32 v{base}, 9, v{t}")
    a(f"v_and_b32 v{t}, 3, v{L15}")
    a(f"v_lshl_add_u32 v{base}, v{t}, 3, v{base}")
    a(f"v_add_u32 v{base}, {g.Boff + g.slot0*SLOT}, v{base}")
    a(f"s_and_b32 s36, s{j}, 1")
    a("s_lshl_b32 s36, s36, 1")
    a("s_add_u32 s37, s36, s35")
    a("s_add_u32 s37, s37, 12")
    a("s_mul_i32 s38, s35, 6")
    a("s_add_u32 s36, s36, s38")
    for t_ in range(7):
        a(f"v_xor_b32 v{t}, s{36 if t_ < 6 else 37}, v{f}")
        a(f"v_lshl_add_u32 v{vB[t_]}, v{t}, 5, v{base}")
        if t_ < 5:
            a("s_add_u32 s36, s36, 1")
    zero_acc(a, acc, 112)

    def reads(h, b):
        r = []
        for u in range(4):
            r.append(f"ds_read_b128 {vr(X[b]+4*u,4)}, v{vA} offset:{u*2048+h*1024}")
        for t_ in range(7):
            for jj in range(2):
                r.append(f"ds_read_b64_tr_b16 {vr(W[b]+4*t_+2*jj,2)}, v{vB[t_]} offset:{jj*2048+h*16384}")
        return r

    def mfmas(b):
        ml = []
        for t_ in range(7):
            for u in range(4):
                w, x, d = vr(W[b] + 4 * t_, 4), vr(X[b] + 4 * u, 4), vr(accr(t_, u), 4)
                ml.append(f"v_mfma_f32_16x16x32_bf16 {d}, {w}, {x}, {d}")
        return ml

    g.reads, g.mfmas = reads, mfmas
    g.adv = [vA] + vB
    gen_mainloop(a, g, "P3")
    RP = X[0]
    CSr, B1r = W[0], W[1]
    e0 = X[0] + 8
    a("s_lshl_b32 s36, s34, 9")
    a(f"s_add_u32 s36, s36, {L_ROW}")
    a(f"v_lshlrev_b32 v{e0}, 3, v{L15}")
    a(f"v_add_u32 v{e0}, s36, v{e0}")
    for u in range(4):
        a(f"ds_read_b64 {vr(RP+2*u,2)}, v{e0} offset:{u*128}")
    a(f"v_lshlrev_b32 v{e0+1}, 4, v{GQ}")
    a("s_lshl_b32 s36, s35, 6")
    a(f"s_add_u32 s36, s36, {L_CS + 768}")
    a(f"v_add_u32 v{e0+2}, s36, v{e0+1}")
    a(f"ds_read_b128 {vr(CSr+24,4)}, v{e0+2}")
    a(f"ds_read_b128 {vr(B1r+24,4)}, v{e0+2} offset:1024")
    a("s_mul_i32 s36, s35, 384")
    a(f"s_add_u32 s36, s36, {L_CS}")
    a(f"v_add_u32 v{e0+1}, s36, v{e0+1}")
    for t_ in range(6):
        a(f"ds_read_b128 {vr(CSr+4*t_,4)}, v{e0+1} offset:{t_*64}")
        a(f"ds_read_b128 {vr(B1r+4*t_,4)}, v{e0+1} offset:{1024+t_*64}")
    a(f"v_lshlrev_b32 v{e0}, 3, v{GQ}")
    a(f"s_lshl_b32 s36, s{g4.mj[1]}, 7")
    for t_ in range(4):
        a(f"buffer_load_dwordx2 {vr(BIA+2*t_,2)}, v{e0}, s[20:23], s36 offen offset:{32*t_}")
    vo, tq, ex = X[1], X[1] + 1, X[1] + 2
    KK = X[1] + 4
    T = X[1] + 6
    PV = X[1] + 10
    frag_lane_off(a, vo, tq)
    a(f"s_lshl_b32 s36, s{m}, 3")
    a("s_lshl_b32 s37, s34, 2")
    a("s_add_u32 s36, s36, s37")
    a("s_mul_i32 s36, s36, 112")
    a(f"s_mul_i32 s37, s{j}, 7")
    a("s_add_u32 s36, s36, s37")
    a("s_lshl_b32 s36, s36, 10")
    a(f"v_add_u32 v{vo}, s36, v{vo}")
    a("s_mul_i32 s36, s35, 3072")
    for u in range(4):
        a(f"s_add_u32 s{76+u}, s36, {u*112*1024}")
    a(f"s_mul_i32 s36, s35, {2*112*1024}")
    a("s_add_u32 s80, s36, 6144")
    a(f"s_add_u32 s81, s80, {112*1024}")
    a(f"v_lshlrev_b32 v{ex}, 4, v1")
    a("s_lshl_b32 s36, s34, 12")
    a(f"s_add_u32 s36, s36, {g.exch}")
    a(f"v_add_u32 v{ex}, s36, v{ex}")
    a("s_lshl_b32 s36, s35, 3")
    a(f"v_add_u32 v{ex+1}, s36, v{ex}")
    a("s_lshl_b32 s36, s35, 11")
    a(f"v_add_u32 v{ex}, s36, v{ex}")
    k1 = -2.0 * math.sqrt(2.0 / math.pi) * math.log2(math.e)
    a(f"v_mov_b32 v{KK}, {hexf(k1*0.044715)}")
    a(f"v_mov_b32 v{KK+1}, {hexf(k1)}")
    a("s_waitcnt lgkmcnt(0)")

    def gelu_tile(t_, u, o):
        d = accr(t_, u)
        rp = vr(RP + 2 * u, 2)
        for i in (0, 2):
            a(f"v_pk_fma_f32 {vr(T+i,2)}, {vr(CSr+4*t_+i,2)}, {rp}, {vr(B1r+4*t_+i,2)} op_sel:[0,1,0] op_sel_hi:[1,1,1]")
        for i in (0, 2):
            a(f"v_pk_fma_f32 {vr(d+i,2)}, {vr(d+i,2)}, {rp}, {vr(T+i,2)} op_sel:[0,0,0] op_sel_hi:[1,0,1]")
        for i in (0, 2):
            a(f"v_pk_mul_f32 {vr(T+i,2)}, {vr(d+i,2)}, {vr(d+i,2)}")
        for i in (0, 2):
            a(f"v_pk_fma_f32 {vr(T+i,2)}, {vr(T+i,2)}, {vr(KK,2)}, {vr(KK,2)} op_sel:[0,0,1] op_sel_hi:[1,0,1]")
        for i in (0, 2):
            a(f"v_pk_mul_f32 {vr(T+i,2)}, {vr(T+i,2)}, {vr(d+i,2)}")
        for i in range(4):
            a(f"v_exp_f32 v{T+i}, v{T+i}")
        for i in (0, 2):
            a(f"v_pk_add_f32 {vr(T+i,2)}, {vr(T+i,2)}, 1.0 op_sel_hi:[1,0]")
        for i in range(4):
            a(f"v_rcp_f32 v{T+i}, v{T+i}")
        for i in (0, 2):
            a(f"v_pk_mul_f32 {vr(d+i,2)}, {vr(d+i,2)}, {vr(T+i,2)}")
        a(f"v_cvt_pk_bf16_f32 v{o}, v{d}, v{d+1}")
        a(f"v_cvt_pk_bf16_f32 v{o+1}, v{d+2}, v{d+3}")

    obs = [X[0] + 12, X[1] + 12]
    for u in range(4):
        o = obs[u >> 1] + 2 * (u & 1)
        gelu_tile(6, u, o)
        a(f"ds_write_b64 v{ex+1}, {vr(o,2)} offset:{u*1024}")
    pair_post(a, 3, PV)
    n_ = 0
    for u in range(4):
        for p in range(3):
            o = obs[n_ & 1]
            n_ += 1
            for tt in range(2):
                gelu_tile(2 * p + tt, u, o + 2 * tt)
            a(f"v_permlane16_swap_b32 v{o}, v{o+2}")
            a(f"v_permlane16_swap_b32 v{o+1}, v{o+3}")
            a(f"buffer_store_dwordx4 {vr(o,4)}, v{vo}, s[16:19], s{76+u} offen offset:{1024*p} sc1")
        if u == 0:
            pair_wait(a, "P3", 3, 2, PV)
            for uu in range(2):
                a(f"ds_read_b128 {vr(accr(6,uu),4)}, v{ex} offset:{uu*1024}")
        if u == 1:
            a("s_waitcnt lgkmcnt(0)")
            for uu in range(2):
                o = accr(6, uu)
                a(f"v_permlane16_swap_b32 v{o}, v{o+2}")
                a(f"v_permlane16_swap_b32 v{o+1}, v{o+3}")
                a(f"buffer_store_dwordx4 {vr(o,4)}, v{vo}, s[16:19], s{80+uu} offen sc1")
    stamp(a, "c", "p3_stored")
    finish_phase(a, 3, g, acc)


def main():
    out = sys.argv[1]
    a = Asm()
    name = NAME + "_kernel"
    a.raw(f".globl {name}\n.p2align 8\n.type {name},@function\n{name}:")
    a("s_cmp_ge_u32 s2, 256\ns_cbranch_scc1 KEND")
    a("s_load_dwordx16 s[48:63], s[0:1], 0")
    a("s_load_dwordx4 s[64:67], s[0:1], 64")
    a("s_load_dwordx2 s[68:69], s[0:1], 80")
    a("v_lshrrev_b32 v1, 6, v0")
    a("s_and_b32 s3, s2, 7")
    a("s_lshr_b32 s7, s2, 3")
    a("v_readfirstlane_b32 s6, v1")
    a("s_and_b32 s70, s3, 1")
    a("s_lshl_b32 s70, s70, 3")
    a("s_and_b32 s4, s7, 7")
    a("s_add_u32 s70, s70, s4")
    a("s_lshr_b32 s71, s3, 1")
    a("s_lshr_b32 s4, s7, 3")
    a("s_lshl_b32 s71, s71, 2")
    a("s_add_u32 s71, s71, s4")
    a("s_and_b32 s72, s7, 15")
    a("s_lshl_b32 s73, s3, 1")
    a("s_lshr_b32 s4, s7, 4")
    a("s_add_u32 s73, s73, s4")
    a("v_and_b32 v1, 63, v0")
    a(f"v_and_b32 v{L15}, 15, v0")
    a(f"v_lshrrev_b32 v{GQ}, 4, v1")
    a("s_waitcnt lgkmcnt(0)")
    a("s_cmp_ge_u32 s6, 4")
    a("s_cbranch_scc1 LOADER")
    stamp(a, "c", "start")
    gen_p0(a)
    gen_p1(a)
    gen_p24(a, 2)
    gen_p3(a)
    gen_p24(a, 4)
    stamp_flush(a, 0)
    a("KEND:")
    a("s_endpgm")
    gen_loader(a)
    vg = 256 if (OPT["stamp"] or OPT["dbgt"]) else 240
    print(DBG)
    a.raw(f'.section .rodata,"a"\n.p2align 6\n.amdhsa_kernel {name}\n'
          f"  .amdhsa_next_free_vgpr {vg}\n  .amdhsa_next_free_sgpr 102\n  .amdhsa_accum_offset {(vg+3)//4*4}\n"
          "  .amdhsa_group_segment_fixed_size 0\n  .amdhsa_kernarg_size 88\n  .amdhsa_user_sgpr_count 2\n"
          "  .amdhsa_user_sgpr_kernarg_segment_ptr 1\n  .amdhsa_system_sgpr_workgroup_id_x 1\n"
          "  .amdhsa_float_denorm_mode_32 3\n"
          ".end_amdhsa_kernel\n")
    head = open("header.txt").read()
    head += f"; @launch grid=(256,1,1) block=(512,1,1) lds={LDS_TOTAL}\n"
    head += '.amdgcn_target "amdgcn-amd-amdhsa--gfx950"\n.text\n'
    open(out, "w").write(head + a.text())
    if OPT["stamp"]:
        import json
        json.dump(STAMPS, open(out + ".stamps.json", "w"))
    print("generated", out, "nops:", a.nops, "lds", LDS_TOTAL)


main()
```

```python
import sys, struct, math
from asmx import Asm, Regs, vr, sr

NAME = "sequential_preLN__sliding_local_dilated__dense_activation_gelu__prompt"
S, D, F = 2048, 1024, 3584
OPT = dict(stamp=0, map1=1, map3=1, sleep=1, prio=0, nt1=1, seg=2, warm=1, wr1=2, wr2=2, wr3=3, wg=7, touch1=1, dbgt=0)
for a_ in sys.argv[2:]:
    k_, v_ = a_.split("=")
    assert k_ in OPT, k_
    OPT[k_] = int(v_)
WS_O, WS_H, WS_H1 = 4 << 20, 8 << 20, 12 << 20
WS_ST, WS_CS, WS_FL = 28 << 20, 29 << 20, 30 << 20
WS_ST1, WS_CS1 = 0, 1 << 20
FL_CS3, FL_CS1 = WS_FL + 32768, WS_FL + 40960
WS_FD = WS_FL + 65536
SLOT = 49152
LDS_X = 3 * SLOT
L_PAIR = LDS_X
L_CNT = LDS_X + 16
L_NONCE = LDS_X + 32
L_P0 = LDS_X + 64
L_ROW = LDS_X + 256
L_RS = L_ROW + 2048
L_NM = L_RS + 1024
L_CS = L_NM + 1024
L_B1 = L_CS + 1024
L_SC = L_B1 + 1024
L_SS = L_SC + 4096
LDS_TOTAL = L_SS + 4096
PX, PWQKV, PWO, PW1, PB1, PW2, PB2, POUT, PDBG, PWS = 48, 50, 52, 56, 58, 60, 62, 64, 66, 68
NONCE = 74
RES, BIA = 216, 232
BIG = "0x7ffffff0"


def f2u(x):
    return struct.unpack("<I", struct.pack("<f", x))[0]


def hexf(x):
    return "0x%08x" % f2u(x)


def srd(a, d, base, off, nbytes):
    if off:
        a(f"s_add_u32 s{d}, s{base}, {off}")
        a(f"s_addc_u32 s{d+1}, s{base+1}, 0")
    else:
        a(f"s_mov_b32 s{d}, s{base}")
        a(f"s_mov_b32 s{d+1}, s{base+1}")
    a(f"s_mov_b32 s{d+2}, {nbytes}")
    a(f"s_mov_b32 s{d+3}, 0x20000")


def round_bf16(a, v):
    a(f"v_cvt_pk_bf16_f32 v{v}, v{v}, v{v}")
    a(f"v_lshlrev_b32 v{v}, 16, v{v}")


def xrow_reduce_multi(a, op, vs, ts):
    for sw in ("v_permlane16_swap_b32", "v_permlane32_swap_b32"):
        for v, t in zip(vs, ts):
            a(f"v_mov_b32 v{t}, v{v}")
        for v, t in zip(vs, ts):
            a(f"{sw} v{v}, v{t}")
        for v, t in zip(vs, ts):
            a(f"{op} v{v}, v{v}, v{t}")


def wave_sum_multi(a, vs, ts):
    for p in ("quad_perm:[1,0,3,2]", "quad_perm:[2,3,0,1]", "row_half_mirror", "row_mirror"):
        for v in vs:
            a(f"v_add_f32_dpp v{v}, v{v}, v{v} {p} row_mask:0xf bank_mask:0xf")
    xrow_reduce_multi(a, "v_add_f32", vs, ts)


def ln_finish(a, mean, var, out):
    round_bf16(a, mean)
    round_bf16(a, var)
    a(f"v_add_f32 v{var}, {hexf(1e-5)}, v{var}")
    round_bf16(a, var)
    a(f"v_sqrt_f32 v{var}, v{var}")
    round_bf16(a, var)
    a(f"v_rcp_f32 v{out}, v{var}")
    a(f"v_mul_f32 v{out+1}, v{mean}, v{out}")
    a(f"v_sub_f32 v{out+1}, 0, v{out+1}")


STAMPS = {"c": [], "l": []}


DBG = []


def stamp(a, role, name):
    if OPT["dbgt"] and role == "c" and name not in ("start", "p0_done") and not name.endswith("stored") or (OPT["dbgt"] and name == "p4_stored"):
        if name not in DBG:
            DBG.append(name)
        a("s_memrealtime s[100:101]")
        a("s_waitcnt lgkmcnt(0)")
        a(f"v_writelane_b32 v250, s100, {DBG.index(name)}")
        if name == "p4_stored":
            a("s_cmp_lg_u32 s6, 0")
            a("s_cbranch_scc1 DBG_e")
            a("v_mov_b32 v249, s100")
            a("v_mov_b32 v251, 0")
            a("s_mov_b64 exec, 1")
            a(f"global_atomic_umax v251, v249, s[{PDBG}:{PDBG+1}] offset:60")
            a("s_mov_b64 exec, 0xfff")
            a(f"s_cmp_lg_u32 s2, {OPT['dbgt']-1}")
            a("s_cbranch_scc1 DBG_e")
            a("v_lshlrev_b32 v251, 2, v1")
            a(f"global_store_dword v251, v250, s[{PDBG}:{PDBG+1}] offset:8")
            a("DBG_e:")
            a("s_mov_b64 exec, -1")
    if not OPT["stamp"]:
        return
    if name in STAMPS[role]:
        i = STAMPS[role].index(name)
    else:
        i = len(STAMPS[role])
        STAMPS[role].append(name)
    a("s_memtime s[100:101]")
    a("s_waitcnt lgkmcnt(0)")
    a(f"v_writelane_b32 v254, s100, {i}")
    a("s_memrealtime s[100:101]")
    a("s_waitcnt lgkmcnt(0)")
    a(f"v_writelane_b32 v255, s100, {i}")


def stamp_flush(a, wavereg_off):
    if not OPT["stamp"]:
        return
    a("v_lshlrev_b32 v2, 2, v1")
    a("s_lshl_b32 s100, s2, 3")
    a(f"s_add_u32 s100, s100, s6")
    a(f"s_add_u32 s100, s100, {wavereg_off}")
    a("s_lshl_b32 s100, s100, 9")
    a(f"s_add_u32 s100, s100, {32<<20}")
    a("v_add_u32 v2, s100, v2")
    a(f"global_store_dword v2, v254, s[{PWS}:{PWS+1}]")
    a(f"global_store_dword v2, v255, s[{PWS}:{PWS+1}] offset:256")
    if OPT["stamp"] == 2:
        a(f"v_add_u32 v2, {8<<20}, v2")
        a(f"global_store_dword v2, v252, s[{PWS}:{PWS+1}]")
        a(f"global_store_dword v2, v253, s[{PWS}:{PWS+1}] offset:256")


class G:
    pass


def phase_cfgs():
    P = {}
    g = G(); P[1] = g
    g.n, g.KS, g.nst, g.B448 = 1, 64, 16, False
    g.nA, g.nB, g.strideB, g.Boff, g.KT = 18, 24, 6144, 24576, 0
    g.A = (PX, 0, S * D * 2); g.B = (PWQKV, 0, D * 3 * D * 2); g.map = OPT["map1"]
    g = G(); P[2] = g
    g.n, g.KS, g.nst, g.B448 = 2, 128, 8, False
    g.nA, g.nB, g.strideB, g.Boff, g.KT = 32, 16, 2048, 32768, 32
    g.A = (PWS, WS_O, S * D * 2); g.B = (PWO, 0, D * D * 2); g.map = 0
    g = G(); P[3] = g
    g.n, g.KS, g.nst, g.B448 = 3, 64, 16, True
    g.nA, g.nB, g.strideB, g.Boff, g.KT = 16, 32, 7168, 16384, 32
    g.A = (PWS, WS_H, S * D * 2); g.B = (PW1, 0, D * F * 2); g.map = OPT["map3"]
    g = G(); P[4] = g
    g.n, g.KS, g.nst, g.B448 = 4, 128, 28, False
    g.nA, g.nB, g.strideB, g.Boff, g.KT = 32, 16, 2048, 32768, 112
    g.A = (PWS, WS_H1, S * F * 2); g.B = (PW2, 0, F * D * 2); g.map = 0
    s = 0
    for p in (1, 2, 3, 4):
        P[p].slot0 = s % 3
        s += P[p].nst
        P[p].mj = (72, 73) if P[p].map else (70, 71)
        P[p].exch = ((s - 1) % 3) * SLOT
    return P


PH = phase_cfgs()


def interleave(a, mf, fillers, first=None):
    n = len(mf)
    fl = list(fillers)
    k = len(fl)
    gaps = list(range(1, n)) if first is not None else list(range(n))
    assert k <= 2 * len(gaps), (k, len(gaps))
    two = max(0, k - len(gaps))
    idx = 0
    cnt = {}
    for gi, g in enumerate(gaps):
        c = 0
        if idx < k:
            c = 2 if gi < two else 1
        cnt[g] = min(c, k - idx)
        idx += cnt[g]
    idx = 0
    for i in range(n):
        a(mf[i])
        if i == 0 and first is not None:
            for f in first:
                a(f)
        for _ in range(cnt.get(i, 0)):
            a(fl[idx])
            idx += 1
    assert idx == k


def nonce_load(a, vt):
    a(f"v_mov_b32 v{vt}, 0")
    a(f"global_load_dwordx2 v[{vt+2}:{vt+3}], v{vt}, s[{PDBG}:{PDBG+1}] sc1")


def nonce_check(a, lab, vt):
    a("s_mov_b32 s3, 0x40000")
    a(f"{lab}_nl:")
    a(f"v_readfirstlane_b32 s{NONCE}, v{vt+2}")
    a(f"v_readfirstlane_b32 s{NONCE+1}, v{vt+3}")
    a(f"s_cmp_lg_u32 s{NONCE}, 0")
    a(f"s_cbranch_scc1 {lab}_nd")
    a(f"global_load_dwordx2 v[{vt+2}:{vt+3}], v{vt}, s[{PDBG}:{PDBG+1}] sc1")
    a("s_waitcnt vmcnt(0)")
    a("s_sub_u32 s3, s3, 1")
    a("s_cmp_lg_u32 s3, 0")
    a(f"s_cbranch_scc1 {lab}_nl")
    a(f"{lab}_nd:")


def signal(a, off_sgpr, vt):
    a(f"v_mov_b32 v{vt}, s{off_sgpr}")
    a(f"v_mov_b32 v{vt+2}, s{NONCE}")
    a(f"v_mov_b32 v{vt+3}, s{NONCE+1}")
    a("s_mov_b64 exec, 1")
    a(f"global_store_dwordx2 v{vt}, v[{vt+2}:{vt+3}], s[{PWS}:{PWS+1}] sc1")
    a("s_mov_b64 exec, -1")


def flag_off(a, d, base, hi, lo):
    a(f"s_lshl_b32 s{d}, s{lo}, 2")
    a(f"s_add_u32 s{d}, s{d}, s6")
    a(f"s_lshl_b32 s{d}, s{d}, 3")
    a(f"s_lshl_b32 s3, s{hi}, 9")
    a(f"s_add_u32 s{d}, s{d}, s3")
    a(f"s_add_u32 s{d}, s{d}, {base}")


def poll_loads(a, vaddrs, vt):
    for i, v in enumerate(vaddrs):
        a(f"global_load_dwordx2 v[{vt+2*i}:{vt+2*i+1}], v{v}, s[{PWS}:{PWS+1}] sc1")


def poll_check(a, lab, vaddrs, vt):
    a("s_mov_b32 s3, 0x40000")
    a(f"{lab}_pl:")
    a(f"v_cmp_eq_u64 vcc, s[{NONCE}:{NONCE+1}], v[{vt}:{vt+1}]")
    for i in range(1, len(vaddrs)):
        a(f"v_cmp_eq_u64 s[34:35], s[{NONCE}:{NONCE+1}], v[{vt+2*i}:{vt+2*i+1}]")
        a("s_and_b64 vcc, vcc, s[34:35]")
    a("s_cmp_eq_u64 vcc, -1")
    a(f"s_cbranch_scc1 {lab}_pd")
    if OPT["sleep"]:
        a(f"s_sleep {OPT['sleep']}")
    poll_loads(a, vaddrs, vt)
    a("s_waitcnt vmcnt(0)")
    a("s_sub_u32 s3, s3, 1")
    a("s_cmp_lg_u32 s3, 0")
    a(f"s_cbranch_scc1 {lab}_pl")
    a(f"{lab}_pd:")


def ld_offsets_A(a, g, vA):
    m, j = g.mj
    if g.KT:
        a(f"s_lshl_b32 s7, s{m}, 3")
        a("s_add_u32 s7, s7, s6")
        a(f"s_mul_i32 s7, s7, {g.KT*1024}")
        a(f"v_lshlrev_b32 v{vA}, 4, v1")
        a(f"v_add_u32 v{vA}, s7, v{vA}")
        a(f"v_add_u32 v{vA+1}, {4*g.KT*1024}, v{vA}")
        return
    a("s_and_b32 s3, s6, 1")
    a("s_lshl_b32 s7, s3, 2")
    a("v_lshrrev_b32 v4, 4, v1")
    a("v_or_b32 v4, s7, v4")
    a("v_xor_b32 v4, v3, v4")
    a("v_lshlrev_b32 v4, 4, v4")
    a(f"s_lshl_b32 s7, s{m}, 7")
    a("s_lshl_b32 s34, s6, 3")
    a("s_add_u32 s7, s7, s34")
    a("s_sub_u32 s7, s7, 16")
    for q in range(5):
        a("v_add_u32 v5, s7, v2")
        if q:
            a(f"v_add_u32 v5, {32*q}, v5")
        else:
            a("v_max_i32 v5, 0, v5")
        a(f"v_lshl_add_u32 v{vA+q}, v5, 11, v4")


def ld_offsets_B(a, g, vB):
    m, j = g.mj
    nBq = g.nB // 4
    if g.B448:
        a("v_lshrrev_b32 v5, 5, v1")
        a("s_lshl_b32 s7, s6, 1")
        a("v_add_u32 v5, s7, v5")
        a("v_and_b32 v6, 3, v5")
        a("v_lshlrev_b32 v6, 1, v6")
        a("v_and_b32 v7, 31, v1")
        a("v_xor_b32 v6, v6, v7")
        a("v_mul_u32_u24 v5, 7168, v5")
        a(f"s_mul_i32 s35, s{j}, 448")
        a("s_andn2_b32 s35, s35, 127")
        a("v_add_u32 v5, s35, v5")
        for q in range(nBq):
            if q < 2:
                if q:
                    a("v_xor_b32 v6, 8, v6")
                a(f"v_lshl_add_u32 v{vB+q}, v6, 4, v5")
                if q:
                    a(f"v_add_u32 v{vB+q}, {8*7168}, v{vB+q}")
            else:
                a(f"v_add_u32 v{vB+q}, {16*7168}, v{vB+q-2}")
    else:
        a("v_bfe_u32 v5, v1, 4, 1")
        a("s_and_b32 s7, s6, 1")
        a("s_lshl_b32 s7, s7, 1")
        a("v_or_b32 v5, s7, v5")
        a("v_lshlrev_b32 v5, 1, v5")
        a("v_xor_b32 v5, v3, v5")
        a("v_lshlrev_b32 v5, 4, v5")
        a(f"s_lshl_b32 s7, s{j}, 7")
        a("v_add_u32 v5, s7, v5")
        a("s_lshl_b32 s7, s6, 3")
        a("v_add_u32 v6, s7, v2")
        a(f"v_mul_u32_u24 v6, {g.strideB}, v6")
        a("v_add_u32 v5, v5, v6")
        for q in range(nBq):
            if g.n == 1:
                off = (q >> 1) * 2048 + (q & 1) * 32 * g.strideB
            else:
                off = q * 32 * g.strideB
            a(f"v_add_u32 v{vB+q}, {off}, v5")


def rot_start(a, g, d):
    m, j = g.mj
    if g.map:
        assert g.nst == 16
        a(f"s_mov_b32 s{d}, s{m}")
    else:
        a(f"s_and_b32 s{d}, s{m}, 7")
        if g.nst == 16:
            a(f"s_lshl_b32 s{d}, s{d}, 1")
        elif g.nst == 28:
            a(f"s_mul_i32 s{d}, s{d}, 7")
            a(f"s_lshr_b32 s{d}, s{d}, 1")


RDY, TMO, PF = 94, 96, 40
LAB = [0]


def poll_once(a):
    a("s_mov_b64 exec, 0xffff")
    a(f"global_load_dwordx2 v[{PF+2}:{PF+3}], v{PF}, s[{PWS}:{PWS+1}] sc1")
    a(f"s_sub_u32 s{TMO}, s{TMO}, 1")
    a("s_waitcnt vmcnt(0)")
    a(f"v_cmp_eq_u64 s[{RDY}:{RDY+1}], s[{NONCE}:{NONCE+1}], v[{PF+2}:{PF+3}]")
    a("s_mov_b64 exec, -1")
    a(f"s_cmp_eq_u32 s{TMO}, 0")
    a(f"s_cselect_b32 s{RDY}, 0xffff, s{RDY}")
    a(f"s_cselect_b32 s{TMO}, 1, s{TMO}")


class Stream:
    def __init__(self, g, isA, srd_, vbase, so, st, lb, sl, of, cur=None):
        self.g, self.isA, self.srd, self.v = g, isA, srd_, vbase
        self.so, self.st, self.lb, self.sl, self.of = so, st, lb, sl, of
        self.cur = cur
        self.frag = isA and g.KT
        self.seg = OPT["seg"] and g.KS == 128
        if self.frag:
            self.step = g.KS * 32
            self.per = g.KS // 32
        else:
            self.step = g.KS * 2 if isA else g.KS * g.strideB

    def seg_so(self, a):
        a(f"s_add_u32 s7, s{self.st}, s{self.of}")
        a("s_and_b32 s7, s7, 3")
        a(f"s_andn2_b32 s{self.so}, s{self.st}, 3")
        a(f"s_add_u32 s{self.so}, s{self.so}, s7")
        if self.cur:
            a(f"s_mov_b32 s{self.cur}, s{self.so}")
        a(f"s_mul_i32 s{self.so}, s{self.so}, {self.step}")

    def init(self, a):
        g = self.g
        m, j = g.mj
        if self.seg:
            a(f"s_and_b32 s{self.st}, s{m}, 7")
            a(f"s_mul_i32 s{self.st}, s{self.st}, {g.nst // 4}")
            a(f"s_lshr_b32 s{self.st}, s{self.st}, 3")
            a(f"s_lshl_b32 s{self.st}, s{self.st}, 2")
            if OPT["seg"] == 2 and g.n == 4:
                a(f"s_mov_b32 s{self.st}, 0")
            a(f"s_add_u32 s{self.of}, s{m}, s{j}")
            self.seg_so(a)
        else:
            rot_start(a, g, self.st)
            a(f"s_mul_i32 s{self.so}, s{self.st}, {self.step}")
        a(f"s_mul_i32 s{self.lb}, s6, {1024*self.per if self.frag else 1024}")
        off = g.slot0 * SLOT + (0 if self.isA else g.Boff)
        if off:
            a(f"s_add_u32 s{self.lb}, s{self.lb}, {off}")
        a(f"s_mov_b32 s{self.sl}, {g.slot0}")

    def need(self, a, ok):
        g = self.g
        cur = self.cur if self.seg else self.st
        a(f"s_cmp_eq_u32 s{RDY}, 0xffff")
        a(f"s_cbranch_scc1 {ok}")
        if g.n == 2:
            a(f"s_lshl_b32 s3, s{cur}, 1")
            a("s_lshl_b32 s34, 3, s3")
        elif g.n == 3:
            a(f"s_lshl_b32 s34, 1, s{cur}")
        else:
            a(f"s_mul_i32 s3, s{cur}, {4*9363}")
            a(f"s_add_u32 s7, s3, {3*9363}")
            a("s_lshr_b32 s3, s3, 16")
            a("s_lshr_b32 s7, s7, 16")
            a("s_lshl_b32 s34, 1, s3")
            a("s_bitset1_b32 s34, s7")
        a(f"s_andn2_b32 s3, s34, s{RDY}")
        a(f"s_cbranch_scc0 {ok}")

    def wait_ready(self, a):
        if not self.frag:
            return
        LAB[0] += 1
        L = f"WR{LAB[0]}"
        self.need(a, f"{L}_ok")
        a(f"{L}_t:")
        poll_once(a)
        a(f"s_andn2_b32 s3, s34, s{RDY}")
        a(f"s_cbranch_scc0 {L}_ok")
        if OPT["sleep"]:
            a(f"s_sleep {OPT['sleep']}")
        a(f"s_branch {L}_t")
        a(f"{L}_ok:")

    def loads(self, n, nt=False):
        out = []
        if self.frag:
            for q in range(n):
                u, k = q // self.per, q % self.per
                out.append((f"s_add_u32 m0, s{self.lb}, {u*4096*self.per}",
                            f"buffer_load_dwordx4 v{self.v+u}, s[{self.srd}:{self.srd+3}], s{self.so} offen offset:{k*1024} sc1 lds"))
            return out
        return [(f"s_add_u32 m0, s{self.lb}, {q*4096}",
                 f"buffer_load_dwordx4 v{self.v+q}, s[{self.srd}:{self.srd+3}], s{self.so} offen {'nt ' if (nt and not self.isA) else ''}lds") for q in range(n)]

    def advance(self, a):
        if not self.seg:
            a(f"s_add_u32 s{self.so}, s{self.so}, {self.step}")
        a(f"s_add_u32 s{self.st}, s{self.st}, 1")
        a(f"s_cmp_eq_u32 s{self.st}, {self.g.nst}")
        a(f"s_cselect_b32 s{self.st}, 0, s{self.st}")
        if self.seg:
            self.seg_so(a)
        else:
            a(f"s_cselect_b32 s{self.so}, 0, s{self.so}")
        a(f"s_add_u32 s{self.lb}, s{self.lb}, {SLOT}")
        a(f"s_add_u32 s{self.sl}, s{self.sl}, 1")
        a(f"s_cmp_eq_u32 s{self.sl}, 3")
        a(f"s_cselect_b32 s7, {3*SLOT}, 0")
        a(f"s_cselect_b32 s{self.sl}, 0, s{self.sl}")
        a(f"s_sub_u32 s{self.lb}, s{self.lb}, s7")


class Rec:
    def __init__(self):
        self.g = []
        self.open = False

    def __call__(self, t):
        if self.open:
            self.g[-1].append(t)
        else:
            self.g.append([t])

    def begin(self):
        self.g.append([])
        self.open = True

    def end(self):
        self.open = False


def issue(a, items, nt=False, fill=None, ready=True):
    if ready:
        for (s_, n) in items:
            s_.wait_ready(a)
    ls = [s.loads(n, nt) for (s, n) in items]
    seq = []
    for q in range(max(len(x) for x in ls)):
        for x in ls:
            if q < len(x):
                seq.append(x[q])
    fill = list(fill or [])
    per = -(-len(fill) // max(1, len(seq) - 1)) if fill else 0
    last = None
    for k, (m0, ld) in enumerate(seq):
        if m0 != last:
            a(m0)
            last = m0
        a(ld)
        for _ in range(per):
            if fill:
                for t in fill.pop(0):
                    a(t)
    for grp in fill:
        for t in grp:
            a(t)
    for (s, n) in items:
        s.advance(a)


ACC, WF, ONE, AD, TB, TT, VT = 64, 96, 128, 132, 133, 134, 32
A_CSS, A_CS3, A_ST, A_GA, A_GB, TID = 136, 137, 138, 139, 156, 157
ST = 140
AD2 = 158
A_SC = 166
SG = 160
PA = 168


def fold_setup(a, g):
    m, j = g.mj
    p1 = g.n == 1
    nsh = 16 if g.map else 8
    ncol = 3 * D if p1 else F
    wscs, flcs = (WS_CS1, FL_CS1) if p1 else (WS_CS, FL_CS3)
    row = 512 if g.B448 else 128
    a(f"v_and_b32 v{TT}, 15, v1")
    a(f"v_lshrrev_b32 v{AD}, 2, v{TT}")
    a(f"v_lshrrev_b32 v{TB}, 4, v1")
    a(f"v_lshl_add_u32 v{AD}, v{TB}, 3, v{AD}")
    a(f"v_mul_u32_u24 v{AD}, {row}, v{AD}")
    a(f"v_and_b32 v{TT}, 3, v1")
    a(f"v_lshl_add_u32 v{AD}, v{TT}, 3, v{AD}")
    a(f"v_and_b32 v{TB}, 1, v{TB}")
    if g.B448:
        a(f"v_bfe_u32 v{TT}, v1, 2, 2")
        a(f"v_lshl_or_b32 v{TB}, v{TB}, 2, v{TT}")
        a(f"s_and_b32 s3, s{j}, 1")
        a("s_lshl_b32 s3, s3, 1")
        a("s_add_u32 s3, s3, s6")
        a(f"v_add_u32 v{AD}, {g.slot0*SLOT + g.Boff}, v{AD}")
        a("s_add_u32 s7, s3, 4")
        a(f"v_xor_b32 v{TT}, s7, v{TB}")
        a(f"v_lshl_add_u32 v{AD2}, v{TT}, 5, v{AD}")
        a(f"v_xor_b32 v{TT}, s3, v{TB}")
        a(f"v_lshl_add_u32 v{AD}, v{TT}, 5, v{AD}")
    else:
        a(f"v_bfe_u32 v{TT}, v1, 3, 1")
        a(f"v_lshl_or_b32 v{TB}, v{TB}, 1, v{TT}")
        a(f"v_xor_b32 v{TB}, s6, v{TB}")
        a(f"v_lshl_add_u32 v{AD}, v{TB}, 5, v{AD}")
        a(f"v_add_u32 v{AD}, {g.slot0*SLOT + g.Boff}, v{AD}")
    d = SLOT if g.slot0 < 2 else -2 * SLOT
    a(f"v_add_u32 v{AD+3}, {d & 0xffffffff}, v{AD}")
    if g.B448:
        a(f"v_add_u32 v{AD2+1}, {d & 0xffffffff}, v{AD2}")
    for i in range(4):
        a(f"v_mov_b32 v{ONE+i}, 0x3f803f80")
    for i in range(16):
        a(f"v_mov_b32 v{ACC+i}, 0")
    srd(a, 24, PWS, wscs, 16 * ncol * 4)
    if p1:
        srd(a, 28, PWS, WS_ST1, S * 8)
    else:
        srd(a, 28, PWS, WS_ST, 16 * S * 8)
        srd(a, 76, PB1, 0, F * 2)
    a(f"v_lshrrev_b32 v{TT}, 4, v1")
    a(f"v_lshlrev_b32 v{TT}, 4, v{TT}")
    a(f"s_mul_i32 s3, s{m}, {ncol*4}")
    a(f"s_mul_i32 s7, s{j}, {256 if p1 else 896}")
    a("s_add_u32 s3, s3, s7")
    a("s_lshl_b32 s7, s6, 6")
    a("s_add_u32 s3, s3, s7")
    a(f"v_add_u32 v{TT}, s3, v{TT}")
    a(f"v_and_b32 v{TB}, 15, v1")
    a(f"v_cmp_eq_u32 vcc, 0, v{TB}")
    a(f"v_mov_b32 v{TB}, {BIG}")
    a(f"v_cndmask_b32 v{A_CSS}, v{TB}, v{TT}, vcc")
    a("s_lshl_b32 s3, s6, 6")
    a(f"v_add_u32 v{TID}, s3, v1")
    if p1:
        a("s_mov_b32 s80, 4096")
        a("s_mov_b32 s81, 8192")
        a(f"s_lshl_b32 s3, s{m}, 10")
        a(f"s_lshl_b32 s7, s{j}, 6")
        a("s_add_u32 s3, s3, s7")
        a("s_lshl_b32 s7, s6, 4")
        a("s_add_u32 s3, s3, s7")
        a(f"v_mov_b32 v{TT}, s3")
        a("v_cmp_eq_u32 vcc, 0, v1")
        a(f"v_cndmask_b32 v{A_ST}, v{TB}, v{TT}, vcc")
        a("v_cmp_gt_u32 vcc, 48, v1")
        a(f"v_lshrrev_b32 v{TT}, 4, v1")
        a(f"v_lshlrev_b32 v{TT}, 12, v{TT}")
        a(f"v_and_b32 v{A_GA}, 15, v1")
        a(f"v_lshl_add_u32 v{TT}, v{A_GA}, 4, v{TT}")
        a(f"s_lshl_b32 s3, s{j}, 8")
        a(f"v_add_u32 v{TT}, s3, v{TT}")
        a(f"v_cndmask_b32 v{A_GA}, v{TB}, v{TT}, vcc")
        a(f"s_lshl_b32 s3, s{m}, 7")
        a("s_sub_u32 s3, s3, 16")
        a(f"v_add_u32 v{TT}, s3, v{TID}")
        a(f"v_max_i32 v{TT}, 0, v{TT}")
        a(f"v_lshlrev_b32 v{TT}, 3, v{TT}")
        a(f"v_cmp_gt_u32 vcc, 144, v{TID}")
        a(f"v_cndmask_b32 v{A_GB}, v{TB}, v{TT}, vcc")
    else:
        a("s_cmp_ge_u32 s6, 2")
        a(f"s_cselect_b32 s3, {BIG}, 0")
        a(f"v_max_u32 v{A_CS3}, s3, v{A_CSS}")
        a(f"v_lshlrev_b32 v{A_ST}, 4, v1")
        a(f"s_lshl_b32 s3, s{m}, 10")
        a("s_lshl_b32 s7, s6, 16")
        a("s_add_u32 s3, s3, s7")
        a(f"v_add_u32 v{A_ST}, s3, v{A_ST}")
        a("v_cmp_gt_u32 vcc, 56, v1")
        a(f"v_lshlrev_b32 v{TT}, 4, v1")
        a(f"s_mul_i32 s3, s{j}, 896")
        a(f"v_add_u32 v{TT}, s3, v{TT}")
        a(f"v_cndmask_b32 v{A_GA}, v{TB}, v{TT}, vcc")
        a(f"v_cmp_gt_u32 vcc, 224, v{TID}")
        a(f"v_lshlrev_b32 v{TT}, 1, v{TID}")
        a(f"s_mul_i32 s3, s{j}, 448")
        a(f"v_add_u32 v{TT}, s3, v{TT}")
        a(f"v_cndmask_b32 v{A_GB}, v{TB}, v{TT}, vcc")
    if nsh == 8:
        a(f"s_and_b32 s82, s{m}, 8")
        a(f"s_mul_i32 s82, s82, {ncol*4}")
    else:
        a("s_mov_b32 s82, 0")
    a(f"s_mul_i32 s3, s6, {(nsh // 4) * ncol * 4}")
    a("s_add_u32 s82, s82, s3")
    a(f"v_lshlrev_b32 v{A_SC}, 4, v1")
    a("s_lshl_b32 s3, s6, 10")
    a(f"s_add_u32 s3, s3, {L_SC}")
    a(f"v_add_u32 v{A_SC}, s3, v{A_SC}")
    srd(a, 84, PWS, WS_FL, 65536)
    a("v_cmp_eq_u32 vcc, 0, v1")
    flag_off(a, 7, flcs - WS_FL, j, m)
    a(f"v_mov_b32 v{TT}, s7")
    a(f"v_cndmask_b32 v{SG}, v{TB}, v{TT}, vcc")
    if p1:
        flag_off(a, 7, 0, m, j)
        a(f"v_mov_b32 v{TT}, s7")
        a(f"v_cndmask_b32 v{SG+4}, v{TB}, v{TT}, vcc")
    else:
        a(f"v_mov_b32 v{SG+2}, s{NONCE}")
        a(f"v_mov_b32 v{SG+3}, s{NONCE+1}")
    a(f"v_lshlrev_b32 v{PA}, 3, v1")
    a(f"s_lshl_b32 s3, s{j}, 9")
    a(f"s_add_u32 s3, s3, {flcs}")
    if p1:
        a(f"s_lshl_b32 s7, s{m}, 9")
        a(f"s_add_u32 s7, s7, {WS_FL}")
        a(f"v_add_u32 v{PA+1}, s7, v{PA}")
        a(f"v_or_b32 v{PA+2}, 56, v1")
        a(f"v_lshlrev_b32 v{PA+2}, 3, v{PA+2}")
        a(f"s_cmp_eq_u32 s{m}, 0")
        a("s_cselect_b32 s34, 0, 512")
        a("s_sub_u32 s7, s7, s34")
        a(f"v_add_u32 v{PA+2}, s7, v{PA+2}")
    if nsh == 8:
        a(f"v_and_b32 v{PA}, 0xff, v{PA}")
        a(f"s_and_b32 s7, s{m}, 8")
        a("s_lshl_b32 s7, s7, 5")
        a("s_add_u32 s3, s3, s7")
    a(f"v_add_u32 v{PA}, s3, v{PA}")
    if p1:
        a("s_lshl_b32 s3, s6, 4")
        a(f"s_add_u32 s3, s3, {L_P0}")
        a(f"v_mov_b32 v{TB}, s3")
        a(f"v_mov_b32 v{VT}, 0")
        a(f"v_mov_b32 v{VT+1}, {L_NONCE}")


WARM = {"left": [56, 56], "save": None}


def warm(a, n, iters=1):
    if not OPT["warm"]:
        return
    w = 0 if WARM["phase"] == 1 else 1
    n = min(n, WARM["left"][w] // iters)
    if n <= 0:
        return
    WARM["left"][w] -= n * iters
    b = 88 if w else 32
    for i in range(n):
        a(f"s_load_dwordx2 s[{90+2*(i&1)}:{91+2*(i&1)}], s[{b}:{b+1}], {60+128*i}")
    a(f"s_add_u32 s{b}, s{b}, {128*n}")
    a(f"s_addc_u32 s{b+1}, s{b+1}, 0")


def fold_body(a, g, both, c, w1, loop, sfx):
    p1 = g.n == 1
    P = f"LD{g.n}{sfx}"
    nsh = 16 if g.map else 8
    nstg = 1 if g.map else 2
    nu = 3 if p1 else 4
    ncol = 3 * D if p1 else F
    npw = nsh // 4

    def cs_reads(r, ad):
        for h in range(2):
            for i in range(nu):
                for jj in range(2):
                    off = (i * 8192 + jj * 512 + h * 4096) if p1 else ((i >> 1) * 256 + jj * 2048 + h * 16384)
                    v = ad if (p1 or not i & 1) else (AD2 if ad == AD else AD2 + 1)
                    r(f"ds_read_b64_tr_b16 {vr(WF+16*h+4*i+2*jj,2)}, v{v} offset:{off}")
        r("s_waitcnt lgkmcnt(0)")

    def cs_mfma(r):
        for h in range(2):
            for i in range(nu):
                r(f"v_mfma_f32_16x16x32_bf16 {vr(ACC+4*i,4)}, {vr(WF+16*h+4*i,4)}, {vr(ONE,4)}, {vr(ACC+4*i,4)}")

    def f0(r):
        cs_reads(r, AD)
        return 0

    def f1(r):
        n = 0
        if p1:
            r.begin()
            r("s_mov_b64 exec, 1")
            r(f"buffer_store_dwordx4 {vr(ST,4)}, v{A_ST}, s[28:31], 0 offen sc1")
            r(f"global_load_dwordx2 v[{VT+2}:{VT+3}], v{VT}, s[{PDBG}:{PDBG+1}] sc1")
            r("s_mov_b64 exec, -1")
            r.end()
            n = 2
        cs_mfma(r)
        if nstg == 2:
            cs_reads(r, AD + 3)
        return n

    def f2(r):
        cs_mfma(r)
        return 0

    def f3(r):
        for i in range(nu):
            r.begin()
            r("s_mov_b32 exec_lo, 0x10001")
            r("s_mov_b32 exec_hi, 0x10001")
            if p1:
                r(f"buffer_store_dwordx4 {vr(ACC+4*i,4)}, v{A_CSS}, s[24:27], {['0','s80','s81'][i]} offen sc1")
            else:
                r(f"buffer_store_dwordx4 {vr(ACC+4*i,4)}, v{A_CSS if i < 3 else A_CS3}, s[24:27], 0 offen offset:{i*256} sc1")
            r("s_mov_b64 exec, -1")
            r.end()
        return nu

    def post3():
        nonce_check(a, P, VT)
        a(f"v_mov_b32 v{SG+2}, s{NONCE}")
        a(f"v_mov_b32 v{SG+3}, s{NONCE+1}")
        a(f"ds_write_b64 v{VT+1}, {vr(SG+2,2)}")

    def f5(r):
        r.begin()
        r("s_mov_b64 exec, 1")
        r(f"buffer_store_dwordx2 {vr(SG+2,2)}, v{SG}, s[84:85+2], 0 offen sc1".replace("85+2", "87"))
        if p1:
            r(f"buffer_store_dwordx2 {vr(SG+2,2)}, v{SG+4}, s[84:87], 0 offen sc1")
        r("s_mov_b64 exec, -1")
        r.end()
        return 2 if p1 else 1

    def pre_allready():
        a(f"{P}_ar:")
        a(f"s_cmp_eq_u32 s{RDY}, 0xffff")
        a(f"s_cbranch_scc1 {P}_ar2")
        poll_once(a)
        a(f"s_branch {P}_ar")
        a(f"{P}_ar2:")

    def f_stload(r):
        for i in range(4):
            r.begin()
            r(f"s_mov_b32 s3, {i*16384}")
            r(f"buffer_load_dwordx4 {vr(ST+4*i,4)}, v{A_ST}, s[28:31], s3 offen sc1")
            r.end()
        return 4

    def f_st1(r):
        for i in range(8):
            r(f"v_add_f32 v{ST+i}, v{ST+i}, v{ST+8+i}")
        for i in range(4):
            r(f"v_add_f32 v{ST+i}, v{ST+i}, v{ST+4+i}")
        r(f"ds_write_b128 v{A_SC}, {vr(ST,4)} offset:{L_SS-L_SC}")
        r(f"v_and_b32 v{TT}, 127, v{TID}")
        r(f"v_lshlrev_b32 v{TT}, 3, v{TT}")
        r(f"v_add_u32 v{TB}, {L_SS}, v{TT}")
        r(f"v_add_u32 v{TT}, {L_ROW}, v{TT}")
        r("s_waitcnt lgkmcnt(0)")
        return 0

    def f_st2(r):
        r(f"ds_read2st64_b64 {vr(ST,4)}, v{TB} offset0:0 offset1:2")
        r(f"ds_read2st64_b64 {vr(ST+4,4)}, v{TB} offset0:4 offset1:6")
        r("s_waitcnt lgkmcnt(0)")
        for i in range(4):
            r(f"v_add_f32 v{ST+i}, v{ST+i}, v{ST+4+i}")
        r(f"v_add_f32 v{ST}, v{ST}, v{ST+2}")
        r(f"v_add_f32 v{ST+1}, v{ST+1}, v{ST+3}")
        r(f"v_mul_f32 v{ST}, {hexf(1/1024)}, v{ST}")
        r(f"v_mul_f32 v{ST+1}, {hexf(1/1024)}, v{ST+1}")
        r(f"v_fma_f32 v{ST+1}, -v{ST}, v{ST}, v{ST+1}")
        r(f"v_max_f32 v{ST+1}, 0, v{ST+1}")
        ln_finish(r, ST, ST + 1, ST + 2)
        r(f"ds_write_b64 v{TT}, {vr(ST+2,2)}")
        return 0

    addrs = [PA] + ([PA + 1, PA + 2] if p1 else [])

    def f_poll(r):
        poll_loads(r, addrs, PA + 4)
        return len(addrs)

    def post_check():
        poll_check(a, P + "cs", addrs, PA + 4)

    def tail0():
        a("s_mov_b32 s3, s82")
        for i in range(npw):
            a(f"buffer_load_dwordx4 {vr(ACC+4*i,4)}, v{A_GA}, s[24:27], s3 offen sc1")
            if i < npw - 1:
                a(f"s_add_u32 s3, s3, {ncol*4}")
        if p1:
            a(f"buffer_load_dwordx2 {vr(ST,2)}, v{A_GB}, s[28:31], 0 offen sc1")
        else:
            a(f"buffer_load_ushort v{WF}, v{A_GB}, s[76:79], 0 offen")
        a(f"v_lshlrev_b32 v{AD}, 2, v{TID}")
        a(f"v_add_u32 v{TB}, {L_SC}, v{AD}")
        a(f"v_add_u32 v{AD}, {L_RS}, v{AD}")
        a(f"v_lshlrev_b32 v{TT}, 3, v{TID}")
        a(f"v_add_u32 v{TT}, {L_ROW}, v{TT}")

    def tail1():
        a("s_setprio 3")
        k = npw
        while k > 1:
            k //= 2
            for i in range(4 * k):
                a(f"v_add_f32 v{ACC+i}, v{ACC+i}, v{ACC+i+4*k}")
        a(f"ds_write_b128 v{A_SC}, {vr(ACC,4)}")
        a("s_waitcnt lgkmcnt(0)")
        a(f"s_setprio {OPT['prio']}")

    def tail2():
        a(f"ds_read2st64_b32 {vr(ACC,2)}, v{TB} offset0:0 offset1:4")
        a(f"ds_read2st64_b32 {vr(ACC+2,2)}, v{TB} offset0:8 offset1:12")
        if p1:
            a(f"ds_write_b32 v{AD}, v{ST}")
            a(f"ds_write_b32 v{AD}, v{ST+1} offset:{L_NM-L_RS}")
            a(f"ds_write_b64 v{TT}, {vr(ST,2)}")
        else:
            a(f"v_lshlrev_b32 v{WF}, 16, v{WF}")
            a(f"ds_write_b32 v{AD}, v{WF} offset:{L_B1-L_RS}")
        a("s_waitcnt lgkmcnt(0)")
        a(f"v_add_f32 v{ACC}, v{ACC}, v{ACC+1}")
        a(f"v_add_f32 v{ACC+2}, v{ACC+2}, v{ACC+3}")
        a(f"v_add_f32 v{ACC}, v{ACC}, v{ACC+2}")
        a(f"ds_write_b32 v{AD}, v{ACC} offset:{L_CS-L_RS}")
        a("s_waitcnt lgkmcnt(0)")

    fill = {1: f1, 3: f3, 5: f5, 11: f_poll}
    post = {13: post_check}
    pre = {}
    nowarm = {0, 1}
    if nstg == 2:
        fill[2] = f2
    if p1:
        post[3] = post3
        r = Rec()
        a(f"ds_read_b128 {vr(ST,4)}, v{TB}")
        cs_reads(a, AD)
        a(f"s_waitcnt vmcnt({w1})")
        a("s_barrier")
        i = 1
        nowarm = {1} if nstg == 2 else set()
    else:
        fill[0] = f0
        pre[7] = pre_allready
        fill[7] = f_stload
        fill[9] = f_st1
        fill[10] = f_st2
        nowarm |= {8, 9, 10}
        i = 0
    tag = 0
    special = set(fill) | set(post) | set(pre) | nowarm
    while i <= g.nst - 3:
        if i in special:
            if i in pre:
                pre[i]()
            r = Rec()
            x = fill[i](r) if i in fill else 0
            hot = any(t.startswith("v_") for grp in r.g for t in grp)
            if hot:
                a("s_setprio 3")
            issue(a, both, fill=r.g)
            if hot:
                a(f"s_setprio {OPT['prio']}")
            if i in post:
                post[i]()
            if i not in nowarm:
                warm(a, WARM["rate"])
            a(f"s_waitcnt vmcnt({c+x})")
            a("s_barrier")
            i += 1
        else:
            k = i
            while k <= g.nst - 3 and k not in special:
                k += 1
            loop(f"t{tag}", k - i)
            tag += 1
            i = k
    return tail0, tail1, tail2


def gen_loader(a):
    a("LOADER:")
    a.hist = []
    a("s_sub_u32 s6, s6, 4")
    if OPT["prio"]:
        a(f"s_setprio {OPT['prio']}")
    a("s_or_b32 s3, s2, s6")
    a("s_cmp_lg_u32 s3, 0")
    a("s_cbranch_scc1 LD_nopub")
    a("s_memrealtime s[34:35]")
    a("v_mov_b32 v2, 0")
    a("s_waitcnt lgkmcnt(0)")
    a("s_or_b32 s34, s34, 1")
    a("v_mov_b32 v4, s34")
    a("v_mov_b32 v5, s35")
    a("s_mov_b64 exec, 1")
    a(f"global_store_dwordx2 v2, v[4:5], s[{PDBG}:{PDBG+1}] sc1")
    a("s_mov_b64 exec, -1")
    a("LD_nopub:")
    stamp(a, "l", "start")
    a("v_lshrrev_b32 v2, 3, v1")
    a("v_and_b32 v3, 7, v1")
    vA, vBs = 8, [16, 24]
    srdB = [12, 16]
    regsB = [(36, 37, 38, 39, 46), (40, 41, 42, 43, 47)]
    regsA = (20, 21, 22, 23, 45, 97)
    SB = {p: Stream(PH[p], False, srdB[p & 1], vBs[p & 1], *regsB[p & 1]) for p in (1, 2, 3, 4)}

    def prepB(p):
        srd(a, SB[p].srd, *PH[p].B)
        ld_offsets_B(a, PH[p], SB[p].v)
        SB[p].init(a)

    prepB(1)
    a("s_lshl_b32 s3, s2, 2")
    a("s_add_u32 s3, s3, s6")
    a("s_mul_i32 s3, s3, 7168")
    a(f"s_add_u32 s88, s{PW2}, s3")
    a(f"s_addc_u32 s89, s{PW2+1}, 0")
    a(f"s_add_u32 s32, s{PW1}, s3")
    a(f"s_addc_u32 s33, s{PW1+1}, 0")
    for p in (1, 2, 3, 4):
        g = PH[p]
        P = f"LD{p}"
        m, j = g.mj
        SA = Stream(g, True, 8, vA, *regsA)
        srd(a, 8, *g.A)
        ld_offsets_A(a, g, vA)
        SA.init(a)
        nBq = g.nB // 4
        nAq = (g.nA + 3) // 4
        if p > 1:
            a(f"s_lshl_b32 s3, s{m}, 11")
            a(f"s_add_u32 s3, s3, {WS_FD + (p-1)*32768}")
            a(f"v_lshlrev_b32 v{PF}, 7, v1")
            a(f"v_add_u32 v{PF}, s3, v{PF}")
            a(f"s_mov_b64 s[{RDY}:{RDY+1}], 0")
            a(f"s_mov_b32 s{TMO}, 0x40000")
            if p < 4:
                prepB(p + 1)
            if p == 3:
                fold_setup(a, g)
            stamp(a, "l", f"p{p}_prepoll")
        variants = [(nAq, "")]
        if g.nA % 4:
            variants = [(nAq, "x"), (nAq - 1, "y")]
            a(f"s_cmp_ge_u32 s6, {g.nA % 4}")
            a(f"s_cbranch_scc1 {P}_y")
        for (na, sfx) in variants:
            if sfx == "y":
                a(f"{P}_y:")
            c = na + nBq
            WARM["phase"], WARM["rate"] = p, OPT[f"wr{p}"] if p < 4 else 0
            if sfx == "x":
                WARM["save"] = list(WARM["left"])
            if sfx == "y":
                WARM["left"] = list(WARM["save"])
            both = [(SB[p], nBq), (SA, na)]
            if p == 1:
                for i in range(3):
                    issue(a, both, i < OPT["nt1"])
                prepB(2)
                fold_setup(a, g)
                w0, w1 = 2 * c, c
            else:
                issue(a, [(SA, na)])
                stamp(a, "l", f"p{p}_A0")
                SA.need(a, f"{P}_x1")
                a("s_waitcnt vmcnt(0)")
                a("s_barrier")
                issue(a, [(SA, na)])
                a(f"s_branch {P}_x2")
                a(f"{P}_x1:")
                issue(a, [(SA, na)], ready=False)
                w0, w1 = na, None
            a(f"s_waitcnt vmcnt({w0})")
            a("s_barrier")
            if p > 1:
                a(f"{P}_x2:")

            def loop(tag, cnt):
                a(f"s_mov_b32 s44, {cnt}")
                a(f"{P}_l{tag}{sfx}:")
                issue(a, both)
                warm(a, WARM["rate"], cnt)
                a(f"s_waitcnt vmcnt({c})")
                a("s_barrier")
                a("s_sub_u32 s44, s44, 1")
                a("s_cmp_lg_u32 s44, 0")
                a(f"s_cbranch_scc1 {P}_l{tag}{sfx}")

            if p in (2, 4):
                loop("a", g.nst - 2)
                tails = (lambda: None, lambda: None, lambda: None)
            else:
                tails = fold_body(a, g, both, c, w1, loop, sfx)
            if p < 4:
                nb2 = PH[p + 1].nB // 4
                tails[0]()
                issue(a, [(SB[p + 1], nb2)])
                a(f"s_waitcnt vmcnt({nb2})")
                tails[1]()
                a("s_barrier")
                tails[2]()
                a("s_barrier")
                issue(a, [(SB[p + 1], nb2)])
                if p == 1 and OPT["touch1"] and OPT["warm"] and WARM["left"][0]:
                    a(f"v_lshlrev_b32 v{TT}, 7, v1")
                    a(f"s_mov_b64 exec, {hex((1 << WARM['left'][0]) - 1)}")
                    a(f"global_load_dword v{TB}, v{TT}, s[32:33]")
                    a("s_mov_b64 exec, -1")
                WARM["phase"] = 2
                warm(a, OPT["wg"])
            else:
                a("s_waitcnt vmcnt(0)")
                a("s_barrier")
                a("s_barrier")
            if sfx == "x":
                a(f"s_branch {P}_e")
        a(f"{P}_e:")
    print("warm lines not covered:", WARM["left"])
    stamp(a, "l", "end")
    stamp_flush(a, 4)
    a("s_endpgm")


def gen_mainloop(a, g, P):
    a(f"s_mov_b32 s42, {g.slot0}")
    a(f"s_mov_b32 s46, {(-2*SLOT) & 0xffffffff}")
    a(f"s_mov_b32 s47, {SLOT}")
    a(f"s_mov_b32 s43, {g.nst}")
    a("s_waitcnt lgkmcnt(0)")
    a("s_barrier")
    stamp(a, "c", f"p{g.n}_B0")
    for r in g.reads(0, 0):
        a(r)
    a(f"{P}_loop:")
    sal = ["s_cmp_eq_u32 s42, 2", "s_cselect_b32 s44, s46, s47"]
    sal2 = ["s_add_u32 s42, s42, 1", "s_cmp_eq_u32 s42, 3", "s_cselect_b32 s42, 0, s42",
            "s_sub_u32 s43, s43, 1", "s_cmp_lg_u32 s43, 0"]
    a("s_waitcnt lgkmcnt(0)")
    if OPT["stamp"] == 2:
        base = {1: 0, 2: 17, 3: 26, 4: 0}[g.n]
        a(f"s_add_u32 m0, s43, {base}")
        a(f"v_writelane_b32 v{253 if g.n == 4 else 252}, s98, m0")
        a("s_memtime s[98:99]")
    interleave(a, g.mfmas(0), g.reads(1, 1) + sal + [f"v_add_u32 v{v}, s44, v{v}" for v in g.adv])
    a("s_waitcnt lgkmcnt(0)")
    interleave(a, g.mfmas(1), g.reads(0, 0) + sal2, first=["s_barrier"])
    a(f"s_cbranch_scc1 {P}_loop")
    a("s_waitcnt lgkmcnt(0)")
    if OPT["stamp"] == 2:
        a(f"v_writelane_b32 v{253 if g.n == 4 else 252}, s98, {base}")
    stamp(a, "c", f"p{g.n}_loopend")


L15, GQ = 2, 3


def b_addr128(a, V, units, sbase):
    t = V.alloc()
    f = V.alloc()
    base = V.alloc()
    a(f"v_bfe_u32 v{f}, v{L15}, 3, 1")
    a(f"v_and_b32 v{t}, 1, v{GQ}")
    a(f"v_lshl_or_b32 v{f}, v{t}, 1, v{f}")
    a(f"v_lshrrev_b32 v{t}, 2, v{L15}")
    a(f"v_lshl_add_u32 v{t}, v{GQ}, 3, v{t}")
    a(f"v_lshlrev_b32 v{base}, 7, v{t}")
    a(f"v_and_b32 v{t}, 3, v{L15}")
    a(f"v_lshl_add_u32 v{base}, v{t}, 3, v{base}")
    a(f"v_add_u32 v{base}, s{sbase}, v{base}")
    out = []
    for u in units:
        v0 = V.alloc()
        a(f"v_xor_b32 v{t}, {u}, v{f}")
        a(f"v_lshl_add_u32 v{v0}, v{t}, 5, v{base}")
        out.append(v0)
    return out


def zero_acc(a, acc, n):
    for i in range(n):
        a(f"v_mov_b32 v{acc+i}, 0")


def pair_post(a, tag, vt):
    a("s_lshl_b32 s3, s6, 2")
    a(f"s_add_u32 s3, s3, {L_PAIR}")
    a(f"v_mov_b32 v{vt}, s3")
    a(f"v_mov_b32 v{vt+1}, {tag}")
    a("s_waitcnt lgkmcnt(0)")
    a(f"ds_write_b32 v{vt}, v{vt+1}")


def pair_wait(a, lab, tag, xor, vt):
    a(f"v_xor_b32 v{vt}, {xor*4}, v{vt}")
    a(f"{lab}_ps:")
    a(f"ds_read_b32 v{vt+1}, v{vt}")
    a("s_waitcnt lgkmcnt(0)")
    a(f"v_readfirstlane_b32 s3, v{vt+1}")
    a(f"s_cmp_lg_u32 s3, {tag}")
    a(f"s_cbranch_scc1 {lab}_ps")


def finish_phase(a, p, g, vt):
    m, j = g.mj
    a(f"s_lshl_b32 s7, s{m}, 11")
    a(f"s_lshl_b32 s3, s{j}, 7")
    a("s_add_u32 s7, s7, s3")
    a(f"s_add_u32 s7, s7, {WS_FD + p*32768}")
    a(f"v_mov_b32 v{vt}, {L_CNT}")
    a(f"v_mov_b32 v{vt+1}, 1")
    a(f"v_mov_b32 v{vt+2}, s{NONCE}")
    a(f"v_mov_b32 v{vt+3}, s{NONCE+1}")
    a("s_mov_b64 exec, 1")
    a("s_waitcnt vmcnt(0)")
    a(f"ds_add_rtn_u32 v{vt+1}, v{vt}, v{vt+1}")
    a(f"v_mov_b32 v{vt}, s7")
    a("s_waitcnt lgkmcnt(0)")
    a(f"v_readfirstlane_b32 s3, v{vt+1}")
    a(f"s_cmp_lg_u32 s3, {4*p-1}")
    a(f"s_cbranch_scc1 FIN{p}")
    a(f"global_store_dwordx2 v{vt}, v[{vt+2}:{vt+3}], s[{PWS}:{PWS+1}] sc1")
    a(f"FIN{p}:")
    a("s_mov_b64 exec, -1")
    stamp(a, "c", f"p{p}_done")


def frag_lane_off(a, d, t):
    a(f"v_and_b32 v{t}, 1, v{GQ}")
    a(f"v_lshlrev_b32 v{d}, 9, v{t}")
    a(f"v_lshrrev_b32 v{t}, 1, v{GQ}")
    a(f"v_lshl_add_u32 v{d}, v{t}, 8, v{d}")
    a(f"v_lshl_add_u32 v{d}, v{L15}, 4, v{d}")


def gen_p0(a):
    g = PH[1]
    m, j = g.mj
    srd(a, 8, PX, 0, S * D * 2)
    a(f"s_lshl_b32 s3, s{m}, 7")
    a(f"s_lshl_b32 s7, s{j}, 3")
    a("s_add_u32 s3, s3, s7")
    a("s_lshl_b32 s7, s6, 1")
    a("s_add_u32 s34, s3, s7")
    a("s_lshl_b32 s3, s34, 11")
    a("v_lshlrev_b32 v4, 4, v1")
    for rr in range(2):
        for hh in range(2):
            a(f"buffer_load_dwordx4 v[{24+rr*8+hh*4}:{27+rr*8+hh*4}], v4, s[8:11], s3 offen offset:{rr*2048+hh*1024}")
    a("s_lshl_b32 s3, s6, 2")
    a(f"s_add_u32 s3, s3, {L_PAIR}")
    a("v_mov_b32 v5, s3")
    a("v_mov_b32 v6, 0")
    a("ds_write_b32 v5, v6")
    a(f"v_mov_b32 v5, {L_CNT}")
    a("ds_write_b32 v5, v6")


def gen_p0b(a):
    a("s_waitcnt vmcnt(0)")
    a("v_mov_b32 v48, 0x3f803f80")
    R = [40, 41, 42, 43]
    for i in range(8):
        for rr in range(2):
            x = 24 + rr * 8 + i
            a(f"v_dot2_f32_bf16 v{R[2*rr]}, v{x}, v48, {'0' if i == 0 else 'v%d' % R[2*rr]}")
            a(f"v_dot2_f32_bf16 v{R[2*rr+1]}, v{x}, v{x}, {'0' if i == 0 else 'v%d' % R[2*rr+1]}")
    a("s_nop 2")
    wave_sum_multi(a, R, [44, 45, 46, 47])
    for rr in range(2):
        a(f"v_mul_f32 v{R[2*rr]}, {hexf(1.0/1024)}, v{R[2*rr]}")
        a(f"v_mul_f32 v{R[2*rr+1]}, {hexf(1.0/1024)}, v{R[2*rr+1]}")
        a(f"v_fma_f32 v{R[2*rr+1]}, -v{R[2*rr]}, v{R[2*rr]}, v{R[2*rr+1]}")
        a(f"v_max_f32 v{R[2*rr+1]}, 0, v{R[2*rr+1]}")
    for rr in range(2):
        ln_finish(a, R[2 * rr], R[2 * rr + 1], 44 + 2 * rr)
    a("s_lshl_b32 s3, s6, 4")
    a(f"s_add_u32 s3, s3, {L_P0}")
    a("v_mov_b32 v48, s3")
    a("ds_write_b128 v48, v[44:47]")
    stamp(a, "c", "p0_done")


def gen_p1(a):
    g = PH[1]
    m, j = g.mj
    g2 = PH[2]
    V = Regs("v", 68, RES)
    srd(a, 20, PWS, WS_O, S * D * 2)
    a("s_and_b32 s34, s6, 1")
    a("s_lshr_b32 s35, s6, 1")
    a("s_lshl_b32 s36, s34, 13")
    t = 4
    vA, vAh = [5, 6], [7, 8]
    for h in range(2):
        a(f"v_lshrrev_b32 v{t}, 1, v{L15}")
        a(f"v_xor_b32 v{t}, v{t}, v{GQ}")
        if h:
            a(f"v_xor_b32 v{t}, 4, v{t}")
        a(f"v_lshlrev_b32 v{t}, 4, v{t}")
        a(f"v_lshl_add_u32 v{vAh[h]}, v{L15}, 7, v{t}")
        if g.slot0:
            a(f"v_add_u32 v{vAh[h]}, {g.slot0*SLOT}, v{vAh[h]}")
        a(f"v_add_u32 v{vA[h]}, s36, v{vAh[h]}")
        a(f"v_add_u32 v{vA[h]}, 2048, v{vA[h]}")
    a(f"s_mov_b32 s36, {g.Boff + g.slot0*SLOT}")
    a("s_lshl_b32 s37, s35, 1")
    a("s_add_u32 s38, s37, 1")
    V2 = Regs("v", 12, 24)
    vB = b_addr128(a, V2, ["s37", "s38"], 36)
    acc = V.alloc(104, 4)
    W = [V.alloc(24, 4), 0]
    X = [V.alloc(20, 4), 0]
    W[1], X[1] = 24, 48
    accr = lambda t, u: acc + (t * 4 + u) * 4
    acch = lambda c: acc + 96 + c * 4
    zero_acc(a, acc, 104)
    gen_p0b(a)

    def reads(h, b):
        r = []
        for u in range(4):
            r.append(f"ds_read_b128 {vr(X[b]+4*u,4)}, v{vA[h]} offset:{u*2048}")
        for t in range(6):
            for jj in range(2):
                r.append(f"ds_read_b64_tr_b16 {vr(W[b]+4*t+2*jj,2)}, v{vB[t&1]} offset:{(t>>1)*8192+jj*512+h*4096}")
            if t == 1:
                r.append(f"ds_read_b128 {vr(X[b]+16,4)}, v{vAh[h]}")
        return r

    def mk_mfmas(rsel):
        def mfmas(b):
            ml = []
            for t in range(6):
                for u in range(4):
                    w, x, d = vr(W[b] + 4 * t, 4), vr(X[b] + 4 * u, 4), vr(accr(t, u), 4)
                    ml.append(f"v_mfma_f32_16x16x32_bf16 {d}, {w}, {x}, {d}" if t < 4 else
                              f"v_mfma_f32_16x16x32_bf16 {d}, {x}, {w}, {d}")
                if (t >> 1) == 1 + rsel:
                    w, x, d = vr(W[b] + 4 * t, 4), vr(X[b] + 16, 4), vr(acch(t & 1), 4)
                    ml.append(f"v_mfma_f32_16x16x32_bf16 {d}, {w}, {x}, {d}" if t < 4 else
                              f"v_mfma_f32_16x16x32_bf16 {d}, {x}, {w}, {d}")
            return ml
        return mfmas

    g.reads = reads
    g.adv = vA + vAh + vB
    a("s_cmp_eq_u32 s34, 1")
    a("s_cbranch_scc1 P1_r1")
    g.mfmas = mk_mfmas(0)
    gen_mainloop(a, g, "P1a")
    a("s_branch P1_epi")
    a("P1_r1:")
    g.mfmas = mk_mfmas(1)
    gen_mainloop(a, g, "P1b")
    a("P1_epi:")
    RP = 24
    CSq = 36
    CSv = 34
    R4 = W[0]
    N4 = W[0] + 20
    assert X[0] == W[0] + 24
    T = 52
    a("s_lshl_b32 s36, s34, 9")
    a(f"s_add_u32 s36, s36, {L_ROW + 128}")
    a(f"v_lshlrev_b32 v4, 3, v{L15}")
    a(f"v_add_u32 v5, {L_ROW}, v4")
    a(f"v_add_u32 v4, s36, v4")
    a(f"ds_read_b64 {vr(RP+8,2)}, v5")
    a(f"v_mov_b32 v16, {L_NONCE}")
    a("ds_read_b64 v[16:17], v16")
    a(f"v_lshlrev_b32 v6, 4, v{GQ}")
    a("s_lshl_b32 s36, s35, 7")
    a(f"s_add_u32 s36, s36, {L_CS}")
    a(f"v_add_u32 v7, s36, v6")
    for c in range(2):
        a(f"ds_read_b128 {vr(CSq+8+4*c,4)}, v7 offset:{256+64*c}")
    a(f"v_lshlrev_b32 v8, 2, v{L15}")
    a(f"v_add_u32 v8, s36, v8")
    a(f"ds_read2_b32 {vr(CSv,2)}, v8 offset0:128 offset1:144")
    a(f"v_add_u32 v9, {L_RS}, v6")
    a(f"ds_read_b128 {vr(R4+16,4)}, v9")
    a(f"ds_read_b128 {vr(N4+16,4)}, v9 offset:{L_NM-L_RS}")
    for u in (3, 2, 1, 0):
        a(f"ds_read_b64 {vr(RP+2*u,2)}, v4 offset:{u*128}")
    a("s_lshl_b32 s36, s34, 8")
    a(f"v_add_u32 v9, s36, v9")
    for u in (3, 2, 1, 0):
        a(f"ds_read_b128 {vr(R4+4*u,4)}, v9 offset:{64+64*u}")
        a(f"ds_read_b128 {vr(N4+4*u,4)}, v9 offset:{64+64*u+L_NM-L_RS}")
    for c in range(2):
        a(f"ds_read_b128 {vr(CSq+4*c,4)}, v7 offset:{64*c}")
    m2, j2 = g2.mj
    a(f"s_lshl_b32 s36, s{m2}, 7")
    a("s_lshl_b32 s37, s34, 6")
    a("s_add_u32 s36, s36, s37")
    a("s_lshl_b32 s37, s35, 5")
    a("s_add_u32 s36, s36, s37")
    a(f"v_add_u32 v10, s36, v{L15}")
    a("v_lshlrev_b32 v10, 11, v10")
    a(f"v_lshl_add_u32 v10, v{GQ}, 3, v10")
    a(f"s_lshl_b32 s36, s{j2}, 7")
    a("s_add_u32 s37, s36, 32768")
    for uu in range(2):
        for t_ in range(4):
            a(f"buffer_load_dwordx2 {vr(RES+8*uu+2*t_,2)}, v10, s[8:11], s{36+uu} offen offset:{32*t_}")

    def fold_qk(d, cs, rp):
        for i in (0, 2):
            a(f"v_pk_mul_f32 {vr(T+i,2)}, {vr(cs+i,2)}, {vr(rp,2)} op_sel:[0,1] op_sel_hi:[1,1]")
        for i in (0, 2):
            a(f"v_pk_fma_f32 {vr(d+i,2)}, {vr(d+i,2)}, {vr(rp,2)}, {vr(T+i,2)} op_sel:[0,0,0] op_sel_hi:[1,0,1]")

    def fold_v(d, c, ui):
        for i in (0, 2):
            a(f"v_pk_mul_f32 {vr(T+i,2)}, {vr(N4+4*ui+i,2)}, {vr(CSv,2)} op_sel:[0,{c}] op_sel_hi:[1,{c}]")
        for i in (0, 2):
            a(f"v_pk_fma_f32 {vr(d+i,2)}, {vr(d+i,2)}, {vr(R4+4*ui+i,2)}, {vr(T+i,2)}")

    def pack(dst, d):
        a(f"v_cvt_pk_bf16_f32 v{dst}, v{d}, v{d+1}")
        a(f"v_cvt_pk_bf16_f32 v{dst+1}, v{d+2}, v{d+3}")

    ex, PV = 12, 14
    a(f"v_lshlrev_b32 v{ex}, 4, v1")
    a("s_mul_i32 s36, s35, 3072")
    a(f"s_add_u32 s36, s36, {g.exch}")
    a(f"v_add_u32 v{ex}, s36, v{ex}")
    Hp = 60
    a("s_waitcnt lgkmcnt(0)")
    a(f"v_readfirstlane_b32 s{NONCE}, v16")
    a(f"v_readfirstlane_b32 s{NONCE+1}, v17")
    a("s_cmp_eq_u32 s34, 1")
    a("s_cbranch_scc1 P1_ex1")
    for c in range(2):
        fold_qk(accr(2 + c, 3), CSq + 8 + 4 * c, RP + 6)
        fold_v(accr(4 + c, 3), c, 3)
    for c in range(2):
        pack(Hp + 2 * c, accr(2 + c, 3))
        pack(Hp + 4 + 2 * c, accr(4 + c, 3))
    a(f"ds_write_b128 v{ex}, {vr(Hp,4)}")
    a(f"ds_write_b128 v{ex}, {vr(Hp+4,4)} offset:1024")
    pair_post(a, 1, PV)
    for c in range(2):
        fold_qk(acch(c), CSq + 8 + 4 * c, RP + 8)
    a("s_branch P1_ex2")
    a("P1_ex1:")
    for c in range(2):
        fold_v(acch(c), c, 4)
    for c in range(2):
        pack(Hp + 2 * c, acch(c))
    a(f"ds_write_b128 v{ex}, {vr(Hp,4)} offset:2048")
    pair_post(a, 1, PV)
    for c in range(2):
        fold_qk(accr(2 + c, 3), CSq + 8 + 4 * c, RP + 6)
        fold_v(accr(4 + c, 3), c, 3)
    a("P1_ex2:")
    for u in range(3):
        for c in range(2):
            fold_qk(accr(2 + c, u), CSq + 8 + 4 * c, RP + 2 * u)
            fold_v(accr(4 + c, u), c, u)
    a(f"s_mov_b32 s36, {hexf(32 ** -0.5 * math.log2(math.e))}")
    a("s_mov_b32 s37, s36")
    for u in range(4):
        a(f"v_pk_mul_f32 {vr(RP+2*u,2)}, {vr(RP+2*u,2)}, s[36:37]")
    for u in range(4):
        for c in range(2):
            fold_qk(accr(c, u), CSq + 4 * c, RP + 2 * u)
    Kf, Vp, Qf = W[0], [W[0] + 20, W[0] + 30], 24
    for u in range(4):
        for c in range(2):
            pack(Kf + 4 * (u + 1) + 2 * c, accr(2 + c, u))
            pack(Vp[c] + 2 * (u + 1), accr(4 + c, u))
            pack(Qf + 4 * u + 2 * c, accr(c, u))
    a("s_cmp_eq_u32 s34, 1")
    a("s_cbranch_scc1 P1_ex3")
    for c in range(2):
        pack(Kf + 2 * c, acch(c))
    pair_wait(a, "P1a", 1, 1, PV)
    for c in range(2):
        a(f"ds_read_b64 {vr(Vp[c],2)}, v{ex} offset:{2048+8*c}")
    a("s_branch P1_ex4")
    a("P1_ex3:")
    pair_wait(a, "P1b", 1, 1, PV)
    a(f"ds_read_b128 {vr(Kf,4)}, v{ex}")
    for c in range(2):
        a(f"ds_read_b64 {vr(Vp[c],2)}, v{ex} offset:{1024+8*c}")
    a("P1_ex4:")
    t0, t1 = acc, acc + 1
    MA, MB = acc + 2, acc + 4
    a(f"v_and_b32 v{t0}, 1, v{L15}")
    a(f"v_cmp_eq_u32 s[76:77], 1, v{t0}")
    a(f"v_lshl_add_u32 v{t0}, v{GQ}, 2, v{t0}")
    a(f"v_cmp_le_u32 s[78:79], v{t0}, v{L15}")
    a(f"v_add_u32 v{t0}, 2, v{t0}")
    a(f"v_cmp_le_u32 s[80:81], v{t0}, v{L15}")
    a(f"v_mov_b32 v{t0}, 0xffff")
    a(f"v_mov_b32 v{t1}, 0xffff0000")
    a(f"v_cndmask_b32 v{t0}, v{t0}, v{t1}, s[76:77]")
    a(f"v_cndmask_b32 v{MA}, v{t0}, 0, s[78:79]")
    a(f"v_cndmask_b32 v{MA+1}, 0, v{t0}, s[78:79]")
    a(f"v_cndmask_b32 v{MB}, v{t0}, 0, s[80:81]")
    a(f"v_cndmask_b32 v{MB+1}, 0, v{t0}, s[80:81]")
    a(f"s_or_b32 s36, s{m}, s34")
    a("s_cmp_eq_u32 s36, 0")
    a("s_cselect_b64 s[82:83], s[78:79], -1")
    a("s_cselect_b64 s[84:85], s[80:81], -1")
    vo = acc + 6
    frag_lane_off(a, vo, t0)
    a(f"s_lshl_b32 s36, s{m}, 3")
    a("s_lshl_b32 s37, s34, 2")
    a("s_add_u32 s36, s36, s37")
    a("s_lshl_b32 s36, s36, 5")
    a(f"s_lshl_b32 s37, s{j}, 1")
    a("s_add_u32 s36, s36, s37")
    a("s_add_u32 s36, s36, s35")
    a("s_lshl_b32 s36, s36, 10")
    a(f"v_add_u32 v{vo}, s36, v{vo}")
    NEG = acc + 7
    a(f"v_mov_b32 v{NEG}, 0xff800000")
    Sc = acc + 8
    for u in (1, 2, 3):
        for blk in range(2):
            a(f"v_mfma_f32_16x16x32_bf16 {vr(Sc+8*u+4*blk,4)}, {vr(Kf+4*(u+blk),4)}, {vr(Qf+4*u,4)}, 0")
    a("s_waitcnt lgkmcnt(0)")
    for blk in (1, 0):
        a(f"v_mfma_f32_16x16x32_bf16 {vr(Sc+4*blk,4)}, {vr(Kf+4*blk,4)}, {vr(Qf,4)}, 0")
    VA, VB_, MX, TM = acc + 40, acc + 44, acc + 48, acc + 52
    order = (1, 2, 3, 0)
    for u in order:
        s = Sc + 8 * u
        a(f"v_cndmask_b32 v{s}, v{s}, v{s+1}, s[76:77]")
        a(f"v_cndmask_b32 v{s+4}, v{s+4}, v{s+5}, s[76:77]")
        a(f"v_cndmask_b32 v{s+2}, v{s+2}, v{s+3}, s[76:77]")
        a(f"v_cndmask_b32 v{s+6}, v{s+6}, v{s+7}, s[76:77]")
        a(f"v_cndmask_b32 v{VA+u}, v{s}, v{s+4}, s[78:79]")
        a(f"v_cndmask_b32 v{VB_+u}, v{s+2}, v{s+6}, s[80:81]")
    a(f"v_cndmask_b32 v{VA}, v{NEG}, v{VA}, s[82:83]")
    a(f"v_cndmask_b32 v{VB_}, v{NEG}, v{VB_}, s[84:85]")
    for u in order:
        a(f"v_max_f32 v{MX+u}, v{VA+u}, v{VB_+u}")
    xrow_reduce_multi(a, "v_max_f32", [MX + u for u in order], [TM + u for u in order])
    for u in order:
        a(f"v_sub_f32 v{VA+u}, v{VA+u}, v{MX+u}")
        a(f"v_sub_f32 v{VB_+u}, v{VB_+u}, v{MX+u}")
    for u in order:
        a(f"v_exp_f32 v{VA+u}, v{VA+u}")
        a(f"v_exp_f32 v{VB_+u}, v{VB_+u}")
    for u in order:
        a(f"v_add_f32 v{MX+u}, v{VA+u}, v{VB_+u}")
    xrow_reduce_multi(a, "v_add_f32", [MX + u for u in order], [TM + u for u in order])
    for u in order:
        a(f"v_rcp_f32 v{MX+u}, v{MX+u}")
    for u in order:
        a(f"v_mul_f32 v{VA+u}, v{VA+u}, v{MX+u}")
        a(f"v_mul_f32 v{VB_+u}, v{VB_+u}, v{MX+u}")
    for u in order:
        a(f"v_cvt_pk_bf16_f32 v{VA+u}, v{VA+u}, v{VA+u}")
        a(f"v_cvt_pk_bf16_f32 v{VB_+u}, v{VB_+u}, v{VB_+u}")
    Pp, Om = acc + 56, acc + 72
    for u in order:
        a(f"v_and_b32 v{Pp+4*u}, v{VA+u}, v{MA}")
        a(f"v_and_b32 v{Pp+4*u+1}, v{VB_+u}, v{MB}")
        a(f"v_and_b32 v{Pp+4*u+2}, v{VA+u}, v{MA+1}")
        a(f"v_and_b32 v{Pp+4*u+3}, v{VB_+u}, v{MB+1}")
    for u in order:
        for c in range(2):
            a(f"v_mfma_f32_16x16x32_bf16 {vr(Om+8*u+4*c,4)}, {vr(Vp[c]+2*u,4)}, {vr(Pp+4*u,4)}, 0")
    for u in range(4):
        a(f"s_mov_b32 s{76+u}, {u*32768}")
    for u in order:
        o = Om + 8 * u
        p = Sc + 4 * u
        for i in range(4):
            a(f"v_cvt_pk_bf16_f32 v{p+i}, v{o+2*i}, v{o+2*i+1}")
    for u in order:
        p = Sc + 4 * u
        a(f"v_permlane16_swap_b32 v{p}, v{p+2}")
        a(f"v_permlane16_swap_b32 v{p+1}, v{p+3}")
        a(f"buffer_store_dwordx4 {vr(p,4)}, v{vo}, s[20:23], s{76+u} offen sc1")
    stamp(a, "c", "p1_stored")
    finish_phase(a, 1, g, acc + 40)


def gen_p24(a, which):
    g = PH[which]
    m, j = g.mj
    k2 = which == 2
    P = f"P{which}"
    V = Regs("v", 4, RES)
    if k2:
        srd(a, 16, PWS, WS_H, S * D * 2)
        srd(a, 24, PWS, WS_ST, 16 * S * 8)
    else:
        srd(a, 16, POUT, 0, S * D * 2)
    a("s_and_b32 s34, s6, 1")
    a("s_lshr_b32 s35, s6, 1")
    vA = [V.alloc(), V.alloc()]
    a("s_lshl_b32 s36, s34, 14")
    a("s_lshl_b32 s37, s35, 11")
    a("s_add_u32 s36, s36, s37")
    a(f"s_add_u32 s36, s36, {g.slot0*SLOT}")
    a(f"v_lshlrev_b32 v{vA[0]}, 4, v1")
    a(f"v_add_u32 v{vA[0]}, s36, v{vA[0]}")
    a("s_lshl_b32 s37, s35, 13")
    a(f"s_sub_u32 s38, 8192, s37")
    a(f"v_add_u32 v{vA[1]}, s38, v{vA[0]}")
    a(f"v_add_u32 v{vA[0]}, s37, v{vA[0]}")
    a("s_lshl_b32 s36, s35, 13")
    a(f"s_add_u32 s36, s36, {g.Boff + g.slot0*SLOT}")
    vB = b_addr128(a, V, [0, 1, 2, 3], 36)
    acc = V.alloc(64, 4)
    X = [V.alloc(16, 4) for _ in range(2)]
    W = [V.alloc(16, 4) for _ in range(2)]
    accr = lambda t, u: acc + (t * 4 + u) * 4
    vo, t0, vrow, ex, exr, PV = V.alloc(), V.alloc(), V.alloc(), V.alloc(), V.alloc(), V.alloc(2)
    a(f"s_lshl_b32 s36, s{m}, 7")
    a("s_lshl_b32 s37, s34, 6")
    a("s_add_u32 s36, s36, s37")
    a("s_lshl_b32 s37, s35, 5")
    a("s_add_u32 s36, s36, s37")
    if k2:
        a(f"v_add_u32 v{vrow}, s36, v{L15}")
        a(f"v_lshlrev_b32 v{vrow}, 3, v{vrow}")
        a(f"v_cmp_eq_u32 vcc, 0, v{GQ}")
        a(f"v_mov_b32 v{t0}, {BIG}")
        a(f"v_cndmask_b32 v{vrow}, v{t0}, v{vrow}, vcc")
        frag_lane_off(a, vo, t0)
        a("s_lshl_b32 s36, s36, 11")
        a(f"s_lshl_b32 s37, s{j}, 11")
        a("s_add_u32 s36, s36, s37")
        a(f"v_add_u32 v{vo}, s36, v{vo}")
    else:
        a(f"v_add_u32 v{vo}, s36, v{L15}")
        a(f"v_lshlrev_b32 v{vo}, 11, v{vo}")
        a(f"v_and_b32 v{t0}, 1, v{GQ}")
        a(f"v_lshl_add_u32 v{vo}, v{t0}, 5, v{vo}")
        a(f"v_lshrrev_b32 v{t0}, 1, v{GQ}")
        a(f"v_lshl_add_u32 v{vo}, v{t0}, 4, v{vo}")
        a(f"s_lshl_b32 s36, s{j}, 7")
        a(f"v_add_u32 v{vo}, s36, v{vo}")
    a("s_mov_b32 s45, 32768")
    a(f"v_lshlrev_b32 v{ex}, 4, v1")
    a("s_lshl_b32 s36, s6, 13")
    a(f"v_add_u32 v{ex}, s36, v{ex}")
    a(f"v_xor_b32 v{exr}, 16384, v{ex}")
    a(f"v_add_u32 v{ex}, {g.exch}, v{ex}")
    a(f"v_add_u32 v{exr}, {g.exch}, v{exr}")
    for t in range(4):
        for uu in range(2):
            d = accr(t, uu)
            for i in range(2):
                a(f"v_lshlrev_b32 v{d+2*i}, 16, v{RES+8*uu+2*t+i}")
                a(f"v_and_b32 v{d+2*i+1}, 0xffff0000, v{RES+8*uu+2*t+i}")
        if not k2:
            z = accr(t, 2)
            for i in range(2):
                a(f"v_lshlrev_b32 v{z+2*i}, 16, v{BIA+2*t+i}")
                a(f"v_and_b32 v{z+2*i+1}, 0xffff0000, v{BIA+2*t+i}")
            for uu in range(2):
                for i in (0, 2):
                    a(f"v_pk_add_f32 {vr(accr(t,uu)+i,2)}, {vr(accr(t,uu)+i,2)}, {vr(z+i,2)}")
        zero_acc(a, accr(t, 2), 8)

    def reads(h, b):
        r = []
        for u in range(4):
            r.append(f"ds_read_b128 {vr(X[b]+4*u,4)}, v{vA[u>>1]} offset:{(u&1)*4096+h*1024}")
        for t in range(4):
            for jj in range(2):
                r.append(f"ds_read_b64_tr_b16 {vr(W[b]+4*t+2*jj,2)}, v{vB[t]} offset:{jj*512+h*4096}")
        return r

    def mfmas(b):
        ml = []
        for t in range(4):
            for u in (2, 3, 0, 1):
                w, x, d = vr(W[b] + 4 * t, 4), vr(X[b] + 4 * u, 4), vr(accr(t, u), 4)
                ml.append(f"v_mfma_f32_16x16x32_bf16 {d}, {w}, {x}, {d}")
        return ml

    g.reads, g.mfmas = reads, mfmas
    g.adv = vA + vB
    gen_mainloop(a, g, P)
    for t in range(4):
        for uu in range(2):
            a(f"ds_write_b128 v{ex}, {vr(accr(t, 2+uu),4)} offset:{(t*2+uu)*1024}")
    pair_post(a, which, PV)
    pair_wait(a, P, which, 2, PV)
    Rv = X[0]
    assert X[1] == X[0] + 16
    lst = [(t, uu) for uu in range(2) for t in range(4)]
    for (t, uu) in lst:
        a(f"ds_read_b128 {vr(Rv+(t*2+uu)*4,4)}, v{exr} offset:{(t*2+uu)*1024}")
    ob = W[0]
    for n_, (t, uu) in enumerate(lst):
        a(f"s_waitcnt lgkmcnt({7-n_})")
        d = accr(t, uu)
        for i in (0, 2):
            a(f"v_pk_add_f32 {vr(d+i,2)}, {vr(d+i,2)}, {vr(Rv+(t*2+uu)*4+i,2)}")
        o = ob + 8 * uu + 2 * t
        a(f"v_cvt_pk_bf16_f32 v{o}, v{d}, v{d+1}")
        a(f"v_cvt_pk_bf16_f32 v{o+1}, v{d+2}, v{d+3}")
        if k2:
            a(f"v_mov_b32 v{RES+8*uu+2*t}, v{o}")
            a(f"v_mov_b32 v{RES+8*uu+2*t+1}, v{o+1}")
        if t & 1:
            o -= 2
            a(f"v_permlane16_swap_b32 v{o}, v{o+2}")
            a(f"v_permlane16_swap_b32 v{o+1}, v{o+3}")
            so = "s45" if uu else "0"
            if k2:
                a(f"buffer_store_dwordx4 {vr(o,4)}, v{vo}, s[16:19], {so} offen offset:{1024*(t>>1)} sc1")
            else:
                a(f"buffer_store_dwordx4 {vr(o,4)}, v{vo}, s[16:19], {so} offen offset:{64*(t>>1)}")
    if k2:
        SM = [Rv, Rv + 2]
        PK = [Rv + 8, Rv + 10]
        PQ = [Rv + 12, Rv + 14]
        for uu in range(2):
            a(f"v_pk_add_f32 {vr(PK[uu],2)}, {vr(accr(0,uu),2)}, {vr(accr(0,uu)+2,2)}")
            a(f"v_pk_mul_f32 {vr(PQ[uu],2)}, {vr(accr(0,uu),2)}, {vr(accr(0,uu),2)}")
        for t in range(4):
            for i in (0, 2):
                for uu in range(2):
                    d = vr(accr(t, uu) + i, 2)
                    if t:
                        a(f"v_pk_add_f32 {vr(PK[uu],2)}, {vr(PK[uu],2)}, {d}")
                    if t or i:
                        a(f"v_pk_fma_f32 {vr(PQ[uu],2)}, {d}, {d}, {vr(PQ[uu],2)}")
        for uu in range(2):
            a(f"v_add_f32 v{SM[uu]}, v{PK[uu]}, v{PK[uu]+1}")
            a(f"v_add_f32 v{SM[uu]+1}, v{PQ[uu]}, v{PQ[uu]+1}")
        xrow_reduce_multi(a, "v_add_f32", [Rv, Rv + 1, Rv + 2, Rv + 3], [Rv + 4, Rv + 5, Rv + 6, Rv + 7])
        a(f"s_lshl_b32 s36, s{j}, 14")
        for uu in range(2):
            a(f"buffer_store_dwordx2 {vr(SM[uu],2)}, v{vrow}, s[24:27], s36 offen offset:{uu*128} sc1")
    stamp(a, "c", f"p{which}_stored")
    if k2:
        finish_phase(a, 2, g, X[1])


def gen_p3(a):
    g = PH[3]
    m, j = g.mj
    g4 = PH[4]
    V = Regs("v", 4, RES)
    srd(a, 16, PWS, WS_H1, S * F * 2)
    srd(a, 20, PB2, 0, D * 2)
    acc = V.alloc(112, 4)
    X = [V.alloc(16, 4) for _ in range(2)]
    W = [V.alloc(28, 4) for _ in range(2)]
    accr = lambda t, u: acc + (t * 4 + u) * 4
    a("s_and_b32 s34, s6, 1")
    a("s_lshr_b32 s35, s6, 1")
    vA = V.alloc()
    a("s_lshl_b32 s36, s34, 13")
    a(f"s_add_u32 s36, s36, {g.slot0*SLOT}")
    a(f"v_lshlrev_b32 v{vA}, 4, v1")
    a(f"v_add_u32 v{vA}, s36, v{vA}")
    t = X[0]
    base, f = X[0] + 1, X[0] + 2
    vB = [V.alloc() for _ in range(7)]
    a(f"v_lshrrev_b32 v{t}, 2, v{L15}")
    a(f"v_and_b32 v{f}, 1, v{GQ}")
    a(f"v_lshl_or_b32 v{f}, v{f}, 2, v{t}")
    a(f"v_lshl_add_u32 v{t}, v{GQ}, 3, v{t}")
    a(f"v_lshlrev_b32 v{base}, 9, v{t}")
    a(f"v_and_b32 v{t}, 3, v{L15}")
    a(f"v_lshl_add_u32 v{base}, v{t}, 3, v{base}")
    a(f"v_add_u32 v{base}, {g.Boff + g.slot0*SLOT}, v{base}")
    a(f"s_and_b32 s36, s{j}, 1")
    a("s_lshl_b32 s36, s36, 1")
    a("s_add_u32 s37, s36, s35")
    a("s_add_u32 s37, s37, 12")
    a("s_mul_i32 s38, s35, 6")
    a("s_add_u32 s36, s36, s38")
    for t_ in range(7):
        a(f"v_xor_b32 v{t}, s{36 if t_ < 6 else 37}, v{f}")
        a(f"v_lshl_add_u32 v{vB[t_]}, v{t}, 5, v{base}")
        if t_ < 5:
            a("s_add_u32 s36, s36, 1")
    zero_acc(a, acc, 112)

    def reads(h, b):
        r = []
        for u in range(4):
            r.append(f"ds_read_b128 {vr(X[b]+4*u,4)}, v{vA} offset:{u*2048+h*1024}")
        for t_ in range(7):
            for jj in range(2):
                r.append(f"ds_read_b64_tr_b16 {vr(W[b]+4*t_+2*jj,2)}, v{vB[t_]} offset:{jj*2048+h*16384}")
        return r

    def mfmas(b):
        ml = []
        for t_ in range(7):
            for u in range(4):
                w, x, d = vr(W[b] + 4 * t_, 4), vr(X[b] + 4 * u, 4), vr(accr(t_, u), 4)
                ml.append(f"v_mfma_f32_16x16x32_bf16 {d}, {w}, {x}, {d}")
        return ml

    g.reads, g.mfmas = reads, mfmas
    g.adv = [vA] + vB
    gen_mainloop(a, g, "P3")
    RP = X[0]
    CSr, B1r = W[0], W[1]
    e0 = X[0] + 8
    a("s_lshl_b32 s36, s34, 9")
    a(f"s_add_u32 s36, s36, {L_ROW}")
    a(f"v_lshlrev_b32 v{e0}, 3, v{L15}")
    a(f"v_add_u32 v{e0}, s36, v{e0}")
    for u in range(4):
        a(f"ds_read_b64 {vr(RP+2*u,2)}, v{e0} offset:{u*128}")
    a(f"v_lshlrev_b32 v{e0+1}, 4, v{GQ}")
    a("s_lshl_b32 s36, s35, 6")
    a(f"s_add_u32 s36, s36, {L_CS + 768}")
    a(f"v_add_u32 v{e0+2}, s36, v{e0+1}")
    a(f"ds_read_b128 {vr(CSr+24,4)}, v{e0+2}")
    a(f"ds_read_b128 {vr(B1r+24,4)}, v{e0+2} offset:1024")
    a("s_mul_i32 s36, s35, 384")
    a(f"s_add_u32 s36, s36, {L_CS}")
    a(f"v_add_u32 v{e0+1}, s36, v{e0+1}")
    for t_ in range(6):
        a(f"ds_read_b128 {vr(CSr+4*t_,4)}, v{e0+1} offset:{t_*64}")
        a(f"ds_read_b128 {vr(B1r+4*t_,4)}, v{e0+1} offset:{1024+t_*64}")
    a(f"v_lshlrev_b32 v{e0}, 3, v{GQ}")
    a(f"s_lshl_b32 s36, s{g4.mj[1]}, 7")
    for t_ in range(4):
        a(f"buffer_load_dwordx2 {vr(BIA+2*t_,2)}, v{e0}, s[20:23], s36 offen offset:{32*t_}")
    vo, tq, ex = X[1], X[1] + 1, X[1] + 2
    KK = X[1] + 4
    T = X[1] + 6
    PV = X[1] + 10
    frag_lane_off(a, vo, tq)
    a(f"s_lshl_b32 s36, s{m}, 3")
    a("s_lshl_b32 s37, s34, 2")
    a("s_add_u32 s36, s36, s37")
    a("s_mul_i32 s36, s36, 112")
    a(f"s_mul_i32 s37, s{j}, 7")
    a("s_add_u32 s36, s36, s37")
    a("s_lshl_b32 s36, s36, 10")
    a(f"v_add_u32 v{vo}, s36, v{vo}")
    a("s_mul_i32 s36, s35, 3072")
    for u in range(4):
        a(f"s_add_u32 s{76+u}, s36, {u*112*1024}")
    a(f"s_mul_i32 s36, s35, {2*112*1024}")
    a("s_add_u32 s80, s36, 6144")
    a(f"s_add_u32 s81, s80, {112*1024}")
    a(f"v_lshlrev_b32 v{ex}, 4, v1")
    a("s_lshl_b32 s36, s34, 12")
    a(f"s_add_u32 s36, s36, {g.exch}")
    a(f"v_add_u32 v{ex}, s36, v{ex}")
    a("s_lshl_b32 s36, s35, 3")
    a(f"v_add_u32 v{ex+1}, s36, v{ex}")
    a("s_lshl_b32 s36, s35, 11")
    a(f"v_add_u32 v{ex}, s36, v{ex}")
    k1 = -2.0 * math.sqrt(2.0 / math.pi) * math.log2(math.e)
    a(f"v_mov_b32 v{KK}, {hexf(k1*0.044715)}")
    a(f"v_mov_b32 v{KK+1}, {hexf(k1)}")
    a("s_waitcnt lgkmcnt(0)")

    def gelu_tile(t_, u, o):
        d = accr(t_, u)
        rp = vr(RP + 2 * u, 2)
        for i in (0, 2):
            a(f"v_pk_fma_f32 {vr(T+i,2)}, {vr(CSr+4*t_+i,2)}, {rp}, {vr(B1r+4*t_+i,2)} op_sel:[0,1,0] op_sel_hi:[1,1,1]")
        for i in (0, 2):
            a(f"v_pk_fma_f32 {vr(d+i,2)}, {vr(d+i,2)}, {rp}, {vr(T+i,2)} op_sel:[0,0,0] op_sel_hi:[1,0,1]")
        for i in (0, 2):
            a(f"v_pk_mul_f32 {vr(T+i,2)}, {vr(d+i,2)}, {vr(d+i,2)}")
        for i in (0, 2):
            a(f"v_pk_fma_f32 {vr(T+i,2)}, {vr(T+i,2)}, {vr(KK,2)}, {vr(KK,2)} op_sel:[0,0,1] op_sel_hi:[1,0,1]")
        for i in (0, 2):
            a(f"v_pk_mul_f32 {vr(T+i,2)}, {vr(T+i,2)}, {vr(d+i,2)}")
        for i in range(4):
            a(f"v_exp_f32 v{T+i}, v{T+i}")
        for i in (0, 2):
            a(f"v_pk_add_f32 {vr(T+i,2)}, {vr(T+i,2)}, 1.0 op_sel_hi:[1,0]")
        for i in range(4):
            a(f"v_rcp_f32 v{T+i}, v{T+i}")
        for i in (0, 2):
            a(f"v_pk_mul_f32 {vr(d+i,2)}, {vr(d+i,2)}, {vr(T+i,2)}")
        a(f"v_cvt_pk_bf16_f32 v{o}, v{d}, v{d+1}")
        a(f"v_cvt_pk_bf16_f32 v{o+1}, v{d+2}, v{d+3}")

    obs = [X[0] + 12, X[1] + 12]
    for u in range(4):
        o = obs[u >> 1] + 2 * (u & 1)
        gelu_tile(6, u, o)
        a(f"ds_write_b64 v{ex+1}, {vr(o,2)} offset:{u*1024}")
    pair_post(a, 3, PV)
    n_ = 0
    for u in range(4):
        for p in range(3):
            o = obs[n_ & 1]
            n_ += 1
            for tt in range(2):
                gelu_tile(2 * p + tt, u, o + 2 * tt)
            a(f"v_permlane16_swap_b32 v{o}, v{o+2}")
            a(f"v_permlane16_swap_b32 v{o+1}, v{o+3}")
            a(f"buffer_store_dwordx4 {vr(o,4)}, v{vo}, s[16:19], s{76+u} offen offset:{1024*p} sc1")
        if u == 0:
            pair_wait(a, "P3", 3, 2, PV)
            for uu in range(2):
                a(f"ds_read_b128 {vr(accr(6,uu),4)}, v{ex} offset:{uu*1024}")
        if u == 1:
            a("s_waitcnt lgkmcnt(0)")
            for uu in range(2):
                o = accr(6, uu)
                a(f"v_permlane16_swap_b32 v{o}, v{o+2}")
                a(f"v_permlane16_swap_b32 v{o+1}, v{o+3}")
                a(f"buffer_store_dwordx4 {vr(o,4)}, v{vo}, s[16:19], s{80+uu} offen sc1")
    stamp(a, "c", "p3_stored")
    finish_phase(a, 3, g, acc)


def main():
    out = sys.argv[1]
    a = Asm()
    name = NAME + "_kernel"
    a.raw(f".globl {name}\n.p2align 8\n.type {name},@function\n{name}:")
    a("s_cmp_ge_u32 s2, 256\ns_cbranch_scc1 KEND")
    a("s_load_dwordx16 s[48:63], s[0:1], 0")
    a("s_load_dwordx4 s[64:67], s[0:1], 64")
    a("s_load_dwordx2 s[68:69], s[0:1], 80")
    a("v_lshrrev_b32 v1, 6, v0")
    a("s_and_b32 s3, s2, 7")
    a("s_lshr_b32 s7, s2, 3")
    a("v_readfirstlane_b32 s6, v1")
    a("s_and_b32 s70, s3, 1")
    a("s_lshl_b32 s70, s70, 3")
    a("s_and_b32 s4, s7, 7")
    a("s_add_u32 s70, s70, s4")
    a("s_lshr_b32 s71, s3, 1")
    a("s_lshr_b32 s4, s7, 3")
    a("s_lshl_b32 s71, s71, 2")
    a("s_add_u32 s71, s71, s4")
    a("s_and_b32 s72, s7, 15")
    a("s_lshl_b32 s73, s3, 1")
    a("s_lshr_b32 s4, s7, 4")
    a("s_add_u32 s73, s73, s4")
    a("v_and_b32 v1, 63, v0")
    a(f"v_and_b32 v{L15}, 15, v0")
    a(f"v_lshrrev_b32 v{GQ}, 4, v1")
    a("s_waitcnt lgkmcnt(0)")
    a("s_cmp_ge_u32 s6, 4")
    a("s_cbranch_scc1 LOADER")
    stamp(a, "c", "start")
    gen_p0(a)
    gen_p1(a)
    gen_p24(a, 2)
    gen_p3(a)
    gen_p24(a, 4)
    stamp_flush(a, 0)
    a("KEND:")
    a("s_endpgm")
    gen_loader(a)
    vg = 256 if (OPT["stamp"] or OPT["dbgt"]) else 240
    print(DBG)
    a.raw(f'.section .rodata,"a"\n.p2align 6\n.amdhsa_kernel {name}\n'
          f"  .amdhsa_next_free_vgpr {vg}\n  .amdhsa_next_free_sgpr 102\n  .amdhsa_accum_offset {(vg+3)//4*4}\n"
          "  .amdhsa_group_segment_fixed_size 0\n  .amdhsa_kernarg_size 88\n  .amdhsa_user_sgpr_count 2\n"
          "  .amdhsa_user_sgpr_kernarg_segment_ptr 1\n  .amdhsa_system_sgpr_workgroup_id_x 1\n"
          "  .amdhsa_float_denorm_mode_32 3\n"
          ".end_amdhsa_kernel\n")
    head = open("header.txt").read()
    head += f"; @launch grid=(256,1,1) block=(512,1,1) lds={LDS_TOTAL}\n"
    head += '.amdgcn_target "amdgcn-amd-amdhsa--gfx950"\n.text\n'
    open(out, "w").write(head + a.text())
    if OPT["stamp"]:
        import json
        json.dump(STAMPS, open(out + ".stamps.json", "w"))
    print("generated", out, "nops:", a.nops, "lds", LDS_TOTAL)


main()
```

```python
import sys, struct, math
from asmx import Asm, Regs, vr, sr

NAME = "sequential_preLN__sliding_local_dilated__dense_activation_gelu__prompt"
S, D, F = 2048, 1024, 3584
OPT = dict(stamp=0, map1=1, map3=1, sleep=1, prio=0, nt1=0, seg=2, warm=1, wr1=2, wr2=2, wr3=3, wg=7, touch1=1, dbgt=0, ctouch=1, ost=0)
for a_ in sys.argv[2:]:
    k_, v_ = a_.split("=")
    assert k_ in OPT, k_
    OPT[k_] = int(v_)
WS_O, WS_H, WS_H1 = 4 << 20, 8 << 20, 12 << 20
WS_ST, WS_CS, WS_FL = 28 << 20, 29 << 20, 30 << 20
WS_ST1, WS_CS1 = 0, 1 << 20
FL_CS3, FL_CS1 = WS_FL + 32768, WS_FL + 40960
WS_FD = WS_FL + 65536
SLOT = 49152
LDS_X = 3 * SLOT
L_PAIR = LDS_X
L_CNT = LDS_X + 16
L_NONCE = LDS_X + 32
L_P0 = LDS_X + 64
L_ROW = LDS_X + 256
L_RS = L_ROW + 2048
L_NM = L_RS + 1024
L_CS = L_NM + 1024
L_B1 = L_CS + 1024
L_SC = L_B1 + 1024
L_SS = L_SC + 4096
LDS_TOTAL = L_SS + 4096
PX, PWQKV, PWO, PW1, PB1, PW2, PB2, POUT, PDBG, PWS = 48, 50, 52, 56, 58, 60, 62, 64, 66, 68
NONCE = 74
RES, BIA = 216, 232
BIG = "0x7ffffff0"


def f2u(x):
    return struct.unpack("<I", struct.pack("<f", x))[0]


def hexf(x):
    return "0x%08x" % f2u(x)


def srd(a, d, base, off, nbytes):
    if off:
        a(f"s_add_u32 s{d}, s{base}, {off}")
        a(f"s_addc_u32 s{d+1}, s{base+1}, 0")
    else:
        a(f"s_mov_b32 s{d}, s{base}")
        a(f"s_mov_b32 s{d+1}, s{base+1}")
    a(f"s_mov_b32 s{d+2}, {nbytes}")
    a(f"s_mov_b32 s{d+3}, 0x20000")


def round_bf16(a, v):
    a(f"v_cvt_pk_bf16_f32 v{v}, v{v}, v{v}")
    a(f"v_lshlrev_b32 v{v}, 16, v{v}")


def xrow_reduce_multi(a, op, vs, ts):
    for sw in ("v_permlane16_swap_b32", "v_permlane32_swap_b32"):
        for v, t in zip(vs, ts):
            a(f"v_mov_b32 v{t}, v{v}")
        for v, t in zip(vs, ts):
            a(f"{sw} v{v}, v{t}")
        for v, t in zip(vs, ts):
            a(f"{op} v{v}, v{v}, v{t}")


def wave_sum_multi(a, vs, ts):
    for p in ("quad_perm:[1,0,3,2]", "quad_perm:[2,3,0,1]", "row_half_mirror", "row_mirror"):
        for v in vs:
            a(f"v_add_f32_dpp v{v}, v{v}, v{v} {p} row_mask:0xf bank_mask:0xf")
    xrow_reduce_multi(a, "v_add_f32", vs, ts)


def ln_finish(a, mean, var, out):
    round_bf16(a, mean)
    round_bf16(a, var)
    a(f"v_add_f32 v{var}, {hexf(1e-5)}, v{var}")
    round_bf16(a, var)
    a(f"v_sqrt_f32 v{var}, v{var}")
    round_bf16(a, var)
    a(f"v_rcp_f32 v{out}, v{var}")
    a(f"v_mul_f32 v{out+1}, v{mean}, v{out}")
    a(f"v_sub_f32 v{out+1}, 0, v{out+1}")


STAMPS = {"c": [], "l": []}


DBG = []


def stamp(a, role, name):
    if OPT["dbgt"] and role == "c" and name not in ("start", "p0_done") and not name.endswith("stored") or (OPT["dbgt"] and name == "p4_stored"):
        if name not in DBG:
            DBG.append(name)
        a("s_memrealtime s[100:101]")
        a("s_waitcnt lgkmcnt(0)")
        a(f"v_writelane_b32 v250, s100, {DBG.index(name)}")
        if name == "p4_stored":
            a("s_cmp_lg_u32 s6, 0")
            a("s_cbranch_scc1 DBG_e")
            a("v_mov_b32 v249, s100")
            a("v_mov_b32 v251, 0")
            a("s_mov_b64 exec, 1")
            a(f"global_atomic_umax v251, v249, s[{PDBG}:{PDBG+1}] offset:60")
            a("s_mov_b64 exec, 0xfff")
            a(f"s_cmp_lg_u32 s2, {OPT['dbgt']-1}")
            a("s_cbranch_scc1 DBG_e")
            a("v_lshlrev_b32 v251, 2, v1")
            a(f"global_store_dword v251, v250, s[{PDBG}:{PDBG+1}] offset:8")
            a("DBG_e:")
            a("s_mov_b64 exec, -1")
    if not OPT["stamp"]:
        return
    if name in STAMPS[role]:
        i = STAMPS[role].index(name)
    else:
        i = len(STAMPS[role])
        STAMPS[role].append(name)
    a("s_memtime s[100:101]")
    a("s_waitcnt lgkmcnt(0)")
    a(f"v_writelane_b32 v254, s100, {i}")
    a("s_memrealtime s[100:101]")
    a("s_waitcnt lgkmcnt(0)")
    a(f"v_writelane_b32 v255, s100, {i}")


def stamp_flush(a, wavereg_off):
    if not OPT["stamp"]:
        return
    a("v_lshlrev_b32 v2, 2, v1")
    a("s_lshl_b32 s100, s2, 3")
    a(f"s_add_u32 s100, s100, s6")
    a(f"s_add_u32 s100, s100, {wavereg_off}")
    a("s_lshl_b32 s100, s100, 9")
    a(f"s_add_u32 s100, s100, {32<<20}")
    a("v_add_u32 v2, s100, v2")
    a(f"global_store_dword v2, v254, s[{PWS}:{PWS+1}]")
    a(f"global_store_dword v2, v255, s[{PWS}:{PWS+1}] offset:256")
    if OPT["stamp"] == 2:
        a(f"v_add_u32 v2, {8<<20}, v2")
        a(f"global_store_dword v2, v252, s[{PWS}:{PWS+1}]")
        a(f"global_store_dword v2, v253, s[{PWS}:{PWS+1}] offset:256")


class G:
    pass


def phase_cfgs():
    P = {}
    g = G(); P[1] = g
    g.n, g.KS, g.nst, g.B448 = 1, 64, 16, False
    g.nA, g.nB, g.strideB, g.Boff, g.KT = 18, 24, 6144, 24576, 0
    g.A = (PX, 0, S * D * 2); g.B = (PWQKV, 0, D * 3 * D * 2); g.map = OPT["map1"]
    g = G(); P[2] = g
    g.n, g.KS, g.nst, g.B448 = 2, 128, 8, False
    g.nA, g.nB, g.strideB, g.Boff, g.KT = 32, 16, 2048, 32768, 32
    g.A = (PWS, WS_O, S * D * 2); g.B = (PWO, 0, D * D * 2); g.map = 0
    g = G(); P[3] = g
    g.n, g.KS, g.nst, g.B448 = 3, 64, 16, True
    g.nA, g.nB, g.strideB, g.Boff, g.KT = 16, 32, 7168, 16384, 32
    g.A = (PWS, WS_H, S * D * 2); g.B = (PW1, 0, D * F * 2); g.map = OPT["map3"]
    g = G(); P[4] = g
    g.n, g.KS, g.nst, g.B448 = 4, 128, 28, False
    g.nA, g.nB, g.strideB, g.Boff, g.KT = 32, 16, 2048, 32768, 112
    g.A = (PWS, WS_H1, S * F * 2); g.B = (PW2, 0, F * D * 2); g.map = 0
    s = 0
    for p in (1, 2, 3, 4):
        P[p].slot0 = s % 3
        s += P[p].nst
        P[p].mj = (72, 73) if P[p].map else (70, 71)
        P[p].exch = ((s - 1) % 3) * SLOT
    return P


PH = phase_cfgs()


def interleave(a, mf, fillers, first=None):
    n = len(mf)
    fl = list(fillers)
    k = len(fl)
    gaps = list(range(1, n)) if first is not None else list(range(n))
    assert k <= 2 * len(gaps), (k, len(gaps))
    two = max(0, k - len(gaps))
    idx = 0
    cnt = {}
    for gi, g in enumerate(gaps):
        c = 0
        if idx < k:
            c = 2 if gi < two else 1
        cnt[g] = min(c, k - idx)
        idx += cnt[g]
    idx = 0
    for i in range(n):
        a(mf[i])
        if i == 0 and first is not None:
            for f in first:
                a(f)
        for _ in range(cnt.get(i, 0)):
            a(fl[idx])
            idx += 1
    assert idx == k


def nonce_load(a, vt):
    a(f"v_mov_b32 v{vt}, 0")
    a(f"global_load_dwordx2 v[{vt+2}:{vt+3}], v{vt}, s[{PDBG}:{PDBG+1}] sc1")


def nonce_check(a, lab, vt):
    a("s_mov_b32 s3, 0x40000")
    a(f"{lab}_nl:")
    a(f"v_readfirstlane_b32 s{NONCE}, v{vt+2}")
    a(f"v_readfirstlane_b32 s{NONCE+1}, v{vt+3}")
    a(f"s_cmp_lg_u32 s{NONCE}, 0")
    a(f"s_cbranch_scc1 {lab}_nd")
    a(f"global_load_dwordx2 v[{vt+2}:{vt+3}], v{vt}, s[{PDBG}:{PDBG+1}] sc1")
    a("s_waitcnt vmcnt(0)")
    a("s_sub_u32 s3, s3, 1")
    a("s_cmp_lg_u32 s3, 0")
    a(f"s_cbranch_scc1 {lab}_nl")
    a(f"{lab}_nd:")


def signal(a, off_sgpr, vt):
    a(f"v_mov_b32 v{vt}, s{off_sgpr}")
    a(f"v_mov_b32 v{vt+2}, s{NONCE}")
    a(f"v_mov_b32 v{vt+3}, s{NONCE+1}")
    a("s_mov_b64 exec, 1")
    a(f"global_store_dwordx2 v{vt}, v[{vt+2}:{vt+3}], s[{PWS}:{PWS+1}] sc1")
    a("s_mov_b64 exec, -1")


def flag_off(a, d, base, hi, lo):
    a(f"s_lshl_b32 s{d}, s{lo}, 2")
    a(f"s_add_u32 s{d}, s{d}, s6")
    a(f"s_lshl_b32 s{d}, s{d}, 3")
    a(f"s_lshl_b32 s3, s{hi}, 9")
    a(f"s_add_u32 s{d}, s{d}, s3")
    a(f"s_add_u32 s{d}, s{d}, {base}")


def poll_loads(a, vaddrs, vt):
    for i, v in enumerate(vaddrs):
        a(f"global_load_dwordx2 v[{vt+2*i}:{vt+2*i+1}], v{v}, s[{PWS}:{PWS+1}] sc1")


def poll_check(a, lab, vaddrs, vt):
    a("s_mov_b32 s3, 0x40000")
    a(f"{lab}_pl:")
    a(f"v_cmp_eq_u64 vcc, s[{NONCE}:{NONCE+1}], v[{vt}:{vt+1}]")
    for i in range(1, len(vaddrs)):
        a(f"v_cmp_eq_u64 s[34:35], s[{NONCE}:{NONCE+1}], v[{vt+2*i}:{vt+2*i+1}]")
        a("s_and_b64 vcc, vcc, s[34:35]")
    a("s_cmp_eq_u64 vcc, -1")
    a(f"s_cbranch_scc1 {lab}_pd")
    if OPT["sleep"]:
        a(f"s_sleep {OPT['sleep']}")
    poll_loads(a, vaddrs, vt)
    a("s_waitcnt vmcnt(0)")
    a("s_sub_u32 s3, s3, 1")
    a("s_cmp_lg_u32 s3, 0")
    a(f"s_cbranch_scc1 {lab}_pl")
    a(f"{lab}_pd:")


def ld_offsets_A(a, g, vA):
    m, j = g.mj
    if g.KT:
        a(f"s_lshl_b32 s7, s{m}, 3")
        a("s_add_u32 s7, s7, s6")
        a(f"s_mul_i32 s7, s7, {g.KT*1024}")
        a(f"v_lshlrev_b32 v{vA}, 4, v1")
        a(f"v_add_u32 v{vA}, s7, v{vA}")
        a(f"v_add_u32 v{vA+1}, {4*g.KT*1024}, v{vA}")
        return
    a("s_and_b32 s3, s6, 1")
    a("s_lshl_b32 s7, s3, 2")
    a("v_lshrrev_b32 v4, 4, v1")
    a("v_or_b32 v4, s7, v4")
    a("v_xor_b32 v4, v3, v4")
    a("v_lshlrev_b32 v4, 4, v4")
    a(f"s_lshl_b32 s7, s{m}, 7")
    a("s_lshl_b32 s34, s6, 3")
    a("s_add_u32 s7, s7, s34")
    a("s_sub_u32 s7, s7, 16")
    for q in range(5):
        a("v_add_u32 v5, s7, v2")
        if q:
            a(f"v_add_u32 v5, {32*q}, v5")
        else:
            a("v_max_i32 v5, 0, v5")
        a(f"v_lshl_add_u32 v{vA+q}, v5, 11, v4")


def ld_offsets_B(a, g, vB):
    m, j = g.mj
    nBq = g.nB // 4
    if g.B448:
        a("v_lshrrev_b32 v5, 5, v1")
        a("s_lshl_b32 s7, s6, 1")
        a("v_add_u32 v5, s7, v5")
        a("v_and_b32 v6, 3, v5")
        a("v_lshlrev_b32 v6, 1, v6")
        a("v_and_b32 v7, 31, v1")
        a("v_xor_b32 v6, v6, v7")
        a("v_mul_u32_u24 v5, 7168, v5")
        a(f"s_mul_i32 s35, s{j}, 448")
        a("s_andn2_b32 s35, s35, 127")
        a("v_add_u32 v5, s35, v5")
        for q in range(nBq):
            if q < 2:
                if q:
                    a("v_xor_b32 v6, 8, v6")
                a(f"v_lshl_add_u32 v{vB+q}, v6, 4, v5")
                if q:
                    a(f"v_add_u32 v{vB+q}, {8*7168}, v{vB+q}")
            else:
                a(f"v_add_u32 v{vB+q}, {16*7168}, v{vB+q-2}")
    else:
        a("v_bfe_u32 v5, v1, 4, 1")
        a("s_and_b32 s7, s6, 1")
        a("s_lshl_b32 s7, s7, 1")
        a("v_or_b32 v5, s7, v5")
        a("v_lshlrev_b32 v5, 1, v5")
        a("v_xor_b32 v5, v3, v5")
        a("v_lshlrev_b32 v5, 4, v5")
        a(f"s_lshl_b32 s7, s{j}, 7")
        a("v_add_u32 v5, s7, v5")
        a("s_lshl_b32 s7, s6, 3")
        a("v_add_u32 v6, s7, v2")
        a(f"v_mul_u32_u24 v6, {g.strideB}, v6")
        a("v_add_u32 v5, v5, v6")
        for q in range(nBq):
            if g.n == 1:
                off = (q >> 1) * 2048 + (q & 1) * 32 * g.strideB
            else:
                off = q * 32 * g.strideB
            a(f"v_add_u32 v{vB+q}, {off}, v5")


def rot_start(a, g, d):
    m, j = g.mj
    if g.map:
        assert g.nst == 16
        a(f"s_mov_b32 s{d}, s{m}")
    else:
        a(f"s_and_b32 s{d}, s{m}, 7")
        if g.nst == 16:
            a(f"s_lshl_b32 s{d}, s{d}, 1")
        elif g.nst == 28:
            a(f"s_mul_i32 s{d}, s{d}, 7")
            a(f"s_lshr_b32 s{d}, s{d}, 1")


RDY, TMO, PF = 94, 96, 40
LAB = [0]


def poll_once(a):
    a("s_mov_b64 exec, 0xffff")
    a(f"global_load_dwordx2 v[{PF+2}:{PF+3}], v{PF}, s[{PWS}:{PWS+1}] sc1")
    a(f"s_sub_u32 s{TMO}, s{TMO}, 1")
    a("s_waitcnt vmcnt(0)")
    a(f"v_cmp_eq_u64 s[{RDY}:{RDY+1}], s[{NONCE}:{NONCE+1}], v[{PF+2}:{PF+3}]")
    a("s_mov_b64 exec, -1")
    a(f"s_cmp_eq_u32 s{TMO}, 0")
    a(f"s_cselect_b32 s{RDY}, 0xffff, s{RDY}")
    a(f"s_cselect_b32 s{TMO}, 1, s{TMO}")


class Stream:
    def __init__(self, g, isA, srd_, vbase, so, st, lb, sl, of, cur=None):
        self.g, self.isA, self.srd, self.v = g, isA, srd_, vbase
        self.so, self.st, self.lb, self.sl, self.of = so, st, lb, sl, of
        self.cur = cur
        self.frag = isA and g.KT
        self.seg = OPT["seg"] and g.KS == 128
        if self.frag:
            self.step = g.KS * 32
            self.per = g.KS // 32
        else:
            self.step = g.KS * 2 if isA else g.KS * g.strideB

    def seg_so(self, a):
        a(f"s_add_u32 s7, s{self.st}, s{self.of}")
        a("s_and_b32 s7, s7, 3")
        a(f"s_andn2_b32 s{self.so}, s{self.st}, 3")
        a(f"s_add_u32 s{self.so}, s{self.so}, s7")
        if self.cur:
            a(f"s_mov_b32 s{self.cur}, s{self.so}")
        a(f"s_mul_i32 s{self.so}, s{self.so}, {self.step}")

    def init(self, a):
        g = self.g
        m, j = g.mj
        if self.seg:
            a(f"s_and_b32 s{self.st}, s{m}, 7")
            a(f"s_mul_i32 s{self.st}, s{self.st}, {g.nst // 4}")
            a(f"s_lshr_b32 s{self.st}, s{self.st}, 3")
            a(f"s_lshl_b32 s{self.st}, s{self.st}, 2")
            if OPT["seg"] == 2 and g.n == 4:
                a(f"s_mov_b32 s{self.st}, 0")
            a(f"s_add_u32 s{self.of}, s{m}, s{j}")
            self.seg_so(a)
        else:
            rot_start(a, g, self.st)
            a(f"s_mul_i32 s{self.so}, s{self.st}, {self.step}")
        a(f"s_mul_i32 s{self.lb}, s6, {1024*self.per if self.frag else 1024}")
        off = g.slot0 * SLOT + (0 if self.isA else g.Boff)
        if off:
            a(f"s_add_u32 s{self.lb}, s{self.lb}, {off}")
        a(f"s_mov_b32 s{self.sl}, {g.slot0}")

    def need(self, a, ok):
        g = self.g
        cur = self.cur if self.seg else self.st
        a(f"s_cmp_eq_u32 s{RDY}, 0xffff")
        a(f"s_cbranch_scc1 {ok}")
        if g.n == 2:
            a(f"s_lshl_b32 s3, s{cur}, 1")
            a("s_lshl_b32 s34, 3, s3")
        elif g.n == 3:
            a(f"s_lshl_b32 s34, 1, s{cur}")
        else:
            a(f"s_mul_i32 s3, s{cur}, {4*9363}")
            a(f"s_add_u32 s7, s3, {3*9363}")
            a("s_lshr_b32 s3, s3, 16")
            a("s_lshr_b32 s7, s7, 16")
            a("s_lshl_b32 s34, 1, s3")
            a("s_bitset1_b32 s34, s7")
        a(f"s_andn2_b32 s3, s34, s{RDY}")
        a(f"s_cbranch_scc0 {ok}")

    def wait_ready(self, a):
        if not self.frag:
            return
        LAB[0] += 1
        L = f"WR{LAB[0]}"
        self.need(a, f"{L}_ok")
        a(f"{L}_t:")
        poll_once(a)
        a(f"s_andn2_b32 s3, s34, s{RDY}")
        a(f"s_cbranch_scc0 {L}_ok")
        if OPT["sleep"]:
            a(f"s_sleep {OPT['sleep']}")
        a(f"s_branch {L}_t")
        a(f"{L}_ok:")

    def loads(self, n, nt=False):
        out = []
        if self.frag:
            for q in range(n):
                u, k = q // self.per, q % self.per
                out.append((f"s_add_u32 m0, s{self.lb}, {u*4096*self.per}",
                            f"buffer_load_dwordx4 v{self.v+u}, s[{self.srd}:{self.srd+3}], s{self.so} offen offset:{k*1024} sc1 lds"))
            return out
        return [(f"s_add_u32 m0, s{self.lb}, {q*4096}",
                 f"buffer_load_dwordx4 v{self.v+q}, s[{self.srd}:{self.srd+3}], s{self.so} offen {'nt ' if (nt and not self.isA) else ''}lds") for q in range(n)]

    def advance(self, a):
        if not self.seg:
            a(f"s_add_u32 s{self.so}, s{self.so}, {self.step}")
        a(f"s_add_u32 s{self.st}, s{self.st}, 1")
        a(f"s_cmp_eq_u32 s{self.st}, {self.g.nst}")
        a(f"s_cselect_b32 s{self.st}, 0, s{self.st}")
        if self.seg:
            self.seg_so(a)
        else:
            a(f"s_cselect_b32 s{self.so}, 0, s{self.so}")
        a(f"s_add_u32 s{self.lb}, s{self.lb}, {SLOT}")
        a(f"s_add_u32 s{self.sl}, s{self.sl}, 1")
        a(f"s_cmp_eq_u32 s{self.sl}, 3")
        a(f"s_cselect_b32 s7, {3*SLOT}, 0")
        a(f"s_cselect_b32 s{self.sl}, 0, s{self.sl}")
        a(f"s_sub_u32 s{self.lb}, s{self.lb}, s7")


class Rec:
    def __init__(self):
        self.g = []
        self.open = False

    def __call__(self, t):
        if self.open:
            self.g[-1].append(t)
        else:
            self.g.append([t])

    def begin(self):
        self.g.append([])
        self.open = True

    def end(self):
        self.open = False


def issue(a, items, nt=False, fill=None, ready=True):
    if ready:
        for (s_, n) in items:
            s_.wait_ready(a)
    ls = [s.loads(n, nt) for (s, n) in items]
    seq = []
    for q in range(max(len(x) for x in ls)):
        for x in ls:
            if q < len(x):
                seq.append(x[q])
    fill = list(fill or [])
    per = -(-len(fill) // max(1, len(seq) - 1)) if fill else 0
    last = None
    for k, (m0, ld) in enumerate(seq):
        if m0 != last:
            a(m0)
            last = m0
        a(ld)
        for _ in range(per):
            if fill:
                for t in fill.pop(0):
                    a(t)
    for grp in fill:
        for t in grp:
            a(t)
    for (s, n) in items:
        s.advance(a)


ACC, WF, ONE, AD, TB, TT, VT = 64, 96, 128, 132, 133, 134, 32
A_CSS, A_CS3, A_ST, A_GA, A_GB, TID = 136, 137, 138, 139, 156, 157
ST = 140
AD2 = 158
A_SC = 166
SG = 160
PA = 168


def fold_setup(a, g):
    m, j = g.mj
    p1 = g.n == 1
    nsh = 16 if g.map else 8
    ncol = 3 * D if p1 else F
    wscs, flcs = (WS_CS1, FL_CS1) if p1 else (WS_CS, FL_CS3)
    row = 512 if g.B448 else 128
    a(f"v_and_b32 v{TT}, 15, v1")
    a(f"v_lshrrev_b32 v{AD}, 2, v{TT}")
    a(f"v_lshrrev_b32 v{TB}, 4, v1")
    a(f"v_lshl_add_u32 v{AD}, v{TB}, 3, v{AD}")
    a(f"v_mul_u32_u24 v{AD}, {row}, v{AD}")
    a(f"v_and_b32 v{TT}, 3, v1")
    a(f"v_lshl_add_u32 v{AD}, v{TT}, 3, v{AD}")
    a(f"v_and_b32 v{TB}, 1, v{TB}")
    if g.B448:
        a(f"v_bfe_u32 v{TT}, v1, 2, 2")
        a(f"v_lshl_or_b32 v{TB}, v{TB}, 2, v{TT}")
        a(f"s_and_b32 s3, s{j}, 1")
        a("s_lshl_b32 s3, s3, 1")
        a("s_add_u32 s3, s3, s6")
        a(f"v_add_u32 v{AD}, {g.slot0*SLOT + g.Boff}, v{AD}")
        a("s_add_u32 s7, s3, 4")
        a(f"v_xor_b32 v{TT}, s7, v{TB}")
        a(f"v_lshl_add_u32 v{AD2}, v{TT}, 5, v{AD}")
        a(f"v_xor_b32 v{TT}, s3, v{TB}")
        a(f"v_lshl_add_u32 v{AD}, v{TT}, 5, v{AD}")
    else:
        a(f"v_bfe_u32 v{TT}, v1, 3, 1")
        a(f"v_lshl_or_b32 v{TB}, v{TB}, 1, v{TT}")
        a(f"v_xor_b32 v{TB}, s6, v{TB}")
        a(f"v_lshl_add_u32 v{AD}, v{TB}, 5, v{AD}")
        a(f"v_add_u32 v{AD}, {g.slot0*SLOT + g.Boff}, v{AD}")
    d = SLOT if g.slot0 < 2 else -2 * SLOT
    a(f"v_add_u32 v{AD+3}, {d & 0xffffffff}, v{AD}")
    if g.B448:
        a(f"v_add_u32 v{AD2+1}, {d & 0xffffffff}, v{AD2}")
    for i in range(4):
        a(f"v_mov_b32 v{ONE+i}, 0x3f803f80")
    for i in range(16):
        a(f"v_mov_b32 v{ACC+i}, 0")
    srd(a, 24, PWS, wscs, 16 * ncol * 4)
    if p1:
        srd(a, 28, PWS, WS_ST1, S * 8)
    else:
        srd(a, 28, PWS, WS_ST, 16 * S * 8)
        srd(a, 76, PB1, 0, F * 2)
    a(f"v_lshrrev_b32 v{TT}, 4, v1")
    a(f"v_lshlrev_b32 v{TT}, 4, v{TT}")
    a(f"s_mul_i32 s3, s{m}, {ncol*4}")
    a(f"s_mul_i32 s7, s{j}, {256 if p1 else 896}")
    a("s_add_u32 s3, s3, s7")
    a("s_lshl_b32 s7, s6, 6")
    a("s_add_u32 s3, s3, s7")
    a(f"v_add_u32 v{TT}, s3, v{TT}")
    a(f"v_and_b32 v{TB}, 15, v1")
    a(f"v_cmp_eq_u32 vcc, 0, v{TB}")
    a(f"v_mov_b32 v{TB}, {BIG}")
    a(f"v_cndmask_b32 v{A_CSS}, v{TB}, v{TT}, vcc")
    a("s_lshl_b32 s3, s6, 6")
    a(f"v_add_u32 v{TID}, s3, v1")
    if p1:
        a("s_mov_b32 s80, 4096")
        a("s_mov_b32 s81, 8192")
        a(f"s_lshl_b32 s3, s{m}, 10")
        a(f"s_lshl_b32 s7, s{j}, 6")
        a("s_add_u32 s3, s3, s7")
        a("s_lshl_b32 s7, s6, 4")
        a("s_add_u32 s3, s3, s7")
        a(f"v_mov_b32 v{TT}, s3")
        a("v_cmp_eq_u32 vcc, 0, v1")
        a(f"v_cndmask_b32 v{A_ST}, v{TB}, v{TT}, vcc")
        a("v_cmp_gt_u32 vcc, 48, v1")
        a(f"v_lshrrev_b32 v{TT}, 4, v1")
        a(f"v_lshlrev_b32 v{TT}, 12, v{TT}")
        a(f"v_and_b32 v{A_GA}, 15, v1")
        a(f"v_lshl_add_u32 v{TT}, v{A_GA}, 4, v{TT}")
        a(f"s_lshl_b32 s3, s{j}, 8")
        a(f"v_add_u32 v{TT}, s3, v{TT}")
        a(f"v_cndmask_b32 v{A_GA}, v{TB}, v{TT}, vcc")
        a(f"s_lshl_b32 s3, s{m}, 7")
        a("s_sub_u32 s3, s3, 16")
        a(f"v_add_u32 v{TT}, s3, v{TID}")
        a(f"v_max_i32 v{TT}, 0, v{TT}")
        a(f"v_lshlrev_b32 v{TT}, 3, v{TT}")
        a(f"v_cmp_gt_u32 vcc, 144, v{TID}")
        a(f"v_cndmask_b32 v{A_GB}, v{TB}, v{TT}, vcc")
    else:
        a("s_cmp_ge_u32 s6, 2")
        a(f"s_cselect_b32 s3, {BIG}, 0")
        a(f"v_max_u32 v{A_CS3}, s3, v{A_CSS}")
        a(f"v_lshlrev_b32 v{A_ST}, 4, v1")
        a(f"s_lshl_b32 s3, s{m}, 10")
        a("s_lshl_b32 s7, s6, 16")
        a("s_add_u32 s3, s3, s7")
        a(f"v_add_u32 v{A_ST}, s3, v{A_ST}")
        a("v_cmp_gt_u32 vcc, 56, v1")
        a(f"v_lshlrev_b32 v{TT}, 4, v1")
        a(f"s_mul_i32 s3, s{j}, 896")
        a(f"v_add_u32 v{TT}, s3, v{TT}")
        a(f"v_cndmask_b32 v{A_GA}, v{TB}, v{TT}, vcc")
        a(f"v_cmp_gt_u32 vcc, 224, v{TID}")
        a(f"v_lshlrev_b32 v{TT}, 1, v{TID}")
        a(f"s_mul_i32 s3, s{j}, 448")
        a(f"v_add_u32 v{TT}, s3, v{TT}")
        a(f"v_cndmask_b32 v{A_GB}, v{TB}, v{TT}, vcc")
    if nsh == 8:
        a(f"s_and_b32 s82, s{m}, 8")
        a(f"s_mul_i32 s82, s82, {ncol*4}")
    else:
        a("s_mov_b32 s82, 0")
    a(f"s_mul_i32 s3, s6, {(nsh // 4) * ncol * 4}")
    a("s_add_u32 s82, s82, s3")
    a(f"v_lshlrev_b32 v{A_SC}, 4, v1")
    a("s_lshl_b32 s3, s6, 10")
    a(f"s_add_u32 s3, s3, {L_SC}")
    a(f"v_add_u32 v{A_SC}, s3, v{A_SC}")
    srd(a, 84, PWS, WS_FL, 65536)
    a("v_cmp_eq_u32 vcc, 0, v1")
    flag_off(a, 7, flcs - WS_FL, j, m)
    a(f"v_mov_b32 v{TT}, s7")
    a(f"v_cndmask_b32 v{SG}, v{TB}, v{TT}, vcc")
    if p1:
        flag_off(a, 7, 0, m, j)
        a(f"v_mov_b32 v{TT}, s7")
        a(f"v_cndmask_b32 v{SG+4}, v{TB}, v{TT}, vcc")
    else:
        a(f"v_mov_b32 v{SG+2}, s{NONCE}")
        a(f"v_mov_b32 v{SG+3}, s{NONCE+1}")
    a(f"v_lshlrev_b32 v{PA}, 3, v1")
    a(f"s_lshl_b32 s3, s{j}, 9")
    a(f"s_add_u32 s3, s3, {flcs}")
    if p1:
        a(f"s_lshl_b32 s7, s{m}, 9")
        a(f"s_add_u32 s7, s7, {WS_FL}")
        a(f"v_add_u32 v{PA+1}, s7, v{PA}")
        a(f"v_or_b32 v{PA+2}, 56, v1")
        a(f"v_lshlrev_b32 v{PA+2}, 3, v{PA+2}")
        a(f"s_cmp_eq_u32 s{m}, 0")
        a("s_cselect_b32 s34, 0, 512")
        a("s_sub_u32 s7, s7, s34")
        a(f"v_add_u32 v{PA+2}, s7, v{PA+2}")
    if nsh == 8:
        a(f"v_and_b32 v{PA}, 0xff, v{PA}")
        a(f"s_and_b32 s7, s{m}, 8")
        a("s_lshl_b32 s7, s7, 5")
        a("s_add_u32 s3, s3, s7")
    a(f"v_add_u32 v{PA}, s3, v{PA}")
    if p1:
        a("s_lshl_b32 s3, s6, 4")
        a(f"s_add_u32 s3, s3, {L_P0}")
        a(f"v_mov_b32 v{TB}, s3")
        a(f"v_mov_b32 v{VT}, 0")
        a(f"v_mov_b32 v{VT+1}, {L_NONCE}")


WARM = {"left": [56, 56], "save": None}


def warm(a, n, iters=1):
    if not OPT["warm"]:
        return
    w = 0 if WARM["phase"] == 1 else 1
    n = min(n, WARM["left"][w] // iters)
    if n <= 0:
        return
    WARM["left"][w] -= n * iters
    b = 88 if w else 32
    for i in range(n):
        a(f"s_load_dwordx2 s[{90+2*(i&1)}:{91+2*(i&1)}], s[{b}:{b+1}], {60+128*i}")
    a(f"s_add_u32 s{b}, s{b}, {128*n}")
    a(f"s_addc_u32 s{b+1}, s{b+1}, 0")


def fold_body(a, g, both, c, w1, loop, sfx):
    p1 = g.n == 1
    P = f"LD{g.n}{sfx}"
    nsh = 16 if g.map else 8
    nstg = 1 if g.map else 2
    nu = 3 if p1 else 4
    ncol = 3 * D if p1 else F
    npw = nsh // 4

    def cs_reads(r, ad):
        for h in range(2):
            for i in range(nu):
                for jj in range(2):
                    off = (i * 8192 + jj * 512 + h * 4096) if p1 else ((i >> 1) * 256 + jj * 2048 + h * 16384)
                    v = ad if (p1 or not i & 1) else (AD2 if ad == AD else AD2 + 1)
                    r(f"ds_read_b64_tr_b16 {vr(WF+16*h+4*i+2*jj,2)}, v{v} offset:{off}")
        r("s_waitcnt lgkmcnt(0)")

    def cs_mfma(r):
        for h in range(2):
            for i in range(nu):
                r(f"v_mfma_f32_16x16x32_bf16 {vr(ACC+4*i,4)}, {vr(WF+16*h+4*i,4)}, {vr(ONE,4)}, {vr(ACC+4*i,4)}")

    def f0(r):
        cs_reads(r, AD)
        return 0

    def f1(r):
        n = 0
        if p1:
            r.begin()
            r("s_mov_b64 exec, 1")
            r(f"buffer_store_dwordx4 {vr(ST,4)}, v{A_ST}, s[28:31], 0 offen sc1")
            r(f"global_load_dwordx2 v[{VT+2}:{VT+3}], v{VT}, s[{PDBG}:{PDBG+1}] sc1")
            r("s_mov_b64 exec, -1")
            r.end()
            n = 2
        cs_mfma(r)
        if nstg == 2:
            cs_reads(r, AD + 3)
        return n

    def f2(r):
        cs_mfma(r)
        return 0

    def f3(r):
        for i in range(nu):
            r.begin()
            r("s_mov_b32 exec_lo, 0x10001")
            r("s_mov_b32 exec_hi, 0x10001")
            if p1:
                r(f"buffer_store_dwordx4 {vr(ACC+4*i,4)}, v{A_CSS}, s[24:27], {['0','s80','s81'][i]} offen sc1")
            else:
                r(f"buffer_store_dwordx4 {vr(ACC+4*i,4)}, v{A_CSS if i < 3 else A_CS3}, s[24:27], 0 offen offset:{i*256} sc1")
            r("s_mov_b64 exec, -1")
            r.end()
        return nu

    def post3():
        nonce_check(a, P, VT)
        a(f"v_mov_b32 v{SG+2}, s{NONCE}")
        a(f"v_mov_b32 v{SG+3}, s{NONCE+1}")
        a(f"ds_write_b64 v{VT+1}, {vr(SG+2,2)}")

    def f5(r):
        r.begin()
        r("s_mov_b64 exec, 1")
        r(f"buffer_store_dwordx2 {vr(SG+2,2)}, v{SG}, s[84:85+2], 0 offen sc1".replace("85+2", "87"))
        if p1:
            r(f"buffer_store_dwordx2 {vr(SG+2,2)}, v{SG+4}, s[84:87], 0 offen sc1")
        r("s_mov_b64 exec, -1")
        r.end()
        return 2 if p1 else 1

    def pre_allready():
        a(f"{P}_ar:")
        a(f"s_cmp_eq_u32 s{RDY}, 0xffff")
        a(f"s_cbranch_scc1 {P}_ar2")
        poll_once(a)
        a(f"s_branch {P}_ar")
        a(f"{P}_ar2:")

    def f_stload(r):
        for i in range(4):
            r.begin()
            r(f"s_mov_b32 s3, {i*16384}")
            r(f"buffer_load_dwordx4 {vr(ST+4*i,4)}, v{A_ST}, s[28:31], s3 offen sc1")
            r.end()
        return 4

    def f_st1(r):
        for i in range(8):
            r(f"v_add_f32 v{ST+i}, v{ST+i}, v{ST+8+i}")
        for i in range(4):
            r(f"v_add_f32 v{ST+i}, v{ST+i}, v{ST+4+i}")
        r(f"ds_write_b128 v{A_SC}, {vr(ST,4)} offset:{L_SS-L_SC}")
        r(f"v_and_b32 v{TT}, 127, v{TID}")
        r(f"v_lshlrev_b32 v{TT}, 3, v{TT}")
        r(f"v_add_u32 v{TB}, {L_SS}, v{TT}")
        r(f"v_add_u32 v{TT}, {L_ROW}, v{TT}")
        r("s_waitcnt lgkmcnt(0)")
        return 0

    def f_st2(r):
        r(f"ds_read2st64_b64 {vr(ST,4)}, v{TB} offset0:0 offset1:2")
        r(f"ds_read2st64_b64 {vr(ST+4,4)}, v{TB} offset0:4 offset1:6")
        r("s_waitcnt lgkmcnt(0)")
        for i in range(4):
            r(f"v_add_f32 v{ST+i}, v{ST+i}, v{ST+4+i}")
        r(f"v_add_f32 v{ST}, v{ST}, v{ST+2}")
        r(f"v_add_f32 v{ST+1}, v{ST+1}, v{ST+3}")
        r(f"v_mul_f32 v{ST}, {hexf(1/1024)}, v{ST}")
        r(f"v_mul_f32 v{ST+1}, {hexf(1/1024)}, v{ST+1}")
        r(f"v_fma_f32 v{ST+1}, -v{ST}, v{ST}, v{ST+1}")
        r(f"v_max_f32 v{ST+1}, 0, v{ST+1}")
        ln_finish(r, ST, ST + 1, ST + 2)
        r(f"ds_write_b64 v{TT}, {vr(ST+2,2)}")
        return 0

    addrs = [PA] + ([PA + 1, PA + 2] if p1 else [])

    def f_poll(r):
        poll_loads(r, addrs, PA + 4)
        return len(addrs)

    def post_check():
        poll_check(a, P + "cs", addrs, PA + 4)

    def tail0():
        a("s_mov_b32 s3, s82")
        for i in range(npw):
            a(f"buffer_load_dwordx4 {vr(ACC+4*i,4)}, v{A_GA}, s[24:27], s3 offen sc1")
            if i < npw - 1:
                a(f"s_add_u32 s3, s3, {ncol*4}")
        if p1:
            a(f"buffer_load_dwordx2 {vr(ST,2)}, v{A_GB}, s[28:31], 0 offen sc1")
        else:
            a(f"buffer_load_ushort v{WF}, v{A_GB}, s[76:79], 0 offen")
        a(f"v_lshlrev_b32 v{AD}, 2, v{TID}")
        a(f"v_add_u32 v{TB}, {L_SC}, v{AD}")
        a(f"v_add_u32 v{AD}, {L_RS}, v{AD}")
        a(f"v_lshlrev_b32 v{TT}, 3, v{TID}")
        a(f"v_add_u32 v{TT}, {L_ROW}, v{TT}")

    def tail1():
        a("s_setprio 3")
        k = npw
        while k > 1:
            k //= 2
            for i in range(4 * k):
                a(f"v_add_f32 v{ACC+i}, v{ACC+i}, v{ACC+i+4*k}")
        a(f"ds_write_b128 v{A_SC}, {vr(ACC,4)}")
        a("s_waitcnt lgkmcnt(0)")
        a(f"s_setprio {OPT['prio']}")

    def tail2():
        a(f"ds_read2st64_b32 {vr(ACC,2)}, v{TB} offset0:0 offset1:4")
        a(f"ds_read2st64_b32 {vr(ACC+2,2)}, v{TB} offset0:8 offset1:12")
        if p1:
            a(f"ds_write_b32 v{AD}, v{ST}")
            a(f"ds_write_b32 v{AD}, v{ST+1} offset:{L_NM-L_RS}")
            a(f"ds_write_b64 v{TT}, {vr(ST,2)}")
        else:
            a(f"v_lshlrev_b32 v{WF}, 16, v{WF}")
            a(f"ds_write_b32 v{AD}, v{WF} offset:{L_B1-L_RS}")
        a("s_waitcnt lgkmcnt(0)")
        a(f"v_add_f32 v{ACC}, v{ACC}, v{ACC+1}")
        a(f"v_add_f32 v{ACC+2}, v{ACC+2}, v{ACC+3}")
        a(f"v_add_f32 v{ACC}, v{ACC}, v{ACC+2}")
        a(f"ds_write_b32 v{AD}, v{ACC} offset:{L_CS-L_RS}")
        a("s_waitcnt lgkmcnt(0)")

    fill = {1: f1, 3: f3, 5: f5, 11: f_poll}
    post = {13: post_check}
    pre = {}
    nowarm = {0, 1}
    if nstg == 2:
        fill[2] = f2
    if p1:
        post[3] = post3
        r = Rec()
        a(f"ds_read_b128 {vr(ST,4)}, v{TB}")
        cs_reads(a, AD)
        a(f"s_waitcnt vmcnt({w1})")
        a("s_barrier")
        i = 1
        nowarm = {1} if nstg == 2 else set()
    else:
        fill[0] = f0
        pre[7] = pre_allready
        fill[7] = f_stload
        fill[9] = f_st1
        fill[10] = f_st2
        nowarm |= {8, 9, 10}
        i = 0
    tag = 0
    special = set(fill) | set(post) | set(pre) | nowarm
    while i <= g.nst - 3:
        if i in special:
            if i in pre:
                pre[i]()
            r = Rec()
            x = fill[i](r) if i in fill else 0
            hot = any(t.startswith("v_") for grp in r.g for t in grp)
            if hot:
                a("s_setprio 3")
            issue(a, both, fill=r.g)
            if hot:
                a(f"s_setprio {OPT['prio']}")
            if i in post:
                post[i]()
            if i not in nowarm:
                warm(a, WARM["rate"])
            a(f"s_waitcnt vmcnt({c+x})")
            a("s_barrier")
            i += 1
        else:
            k = i
            while k <= g.nst - 3 and k not in special:
                k += 1
            loop(f"t{tag}", k - i)
            tag += 1
            i = k
    return tail0, tail1, tail2


def code_touch(a, lab0, lab1, vt, vo):
    if not OPT["ctouch"]:
        return
    LAB[0] += 1
    L = f"CT{LAB[0]}"
    a("s_getpc_b64 s[34:35]")
    a(f"{L}:")
    a(f"s_add_u32 s34, s34, {lab0}-{L}")
    a(f"s_addc_u32 s35, s35, ({lab0}-{L})>>32")
    a("s_lshl_b32 s3, s6, 7")
    a(f"v_lshlrev_b32 v{vo}, 9, v1")
    a(f"v_add_u32 v{vo}, s3, v{vo}")
    a(f"v_cmp_gt_u32 vcc, {lab1}-{lab0}, v{vo}")
    a("s_and_saveexec_b64 s[4:5], vcc")
    a(f"s_cbranch_execz {L}_e")
    a(f"global_load_dword v{vt}, v{vo}, s[34:35]")
    a(f"{L}_e:")
    a("s_mov_b64 exec, s[4:5]")


def gen_loader(a):
    a("LOADER:")
    a.hist = []
    a("s_sub_u32 s6, s6, 4")
    if OPT["prio"]:
        a(f"s_setprio {OPT['prio']}")
    a("s_or_b32 s3, s2, s6")
    a("s_cmp_lg_u32 s3, 0")
    a("s_cbranch_scc1 LD_nopub")
    a("s_memrealtime s[34:35]")
    a("v_mov_b32 v2, 0")
    a("s_waitcnt lgkmcnt(0)")
    a("s_or_b32 s34, s34, 1")
    a("v_mov_b32 v4, s34")
    a("v_mov_b32 v5, s35")
    a("s_mov_b64 exec, 1")
    a(f"global_store_dwordx2 v2, v[4:5], s[{PDBG}:{PDBG+1}] sc1")
    a("s_mov_b64 exec, -1")
    a("LD_nopub:")
    stamp(a, "l", "start")
    a("v_lshrrev_b32 v2, 3, v1")
    a("v_and_b32 v3, 7, v1")
    vA, vBs = 8, [16, 24]
    srdB = [12, 16]
    regsB = [(36, 37, 38, 39, 46), (40, 41, 42, 43, 47)]
    regsA = (20, 21, 22, 23, 45, 97)
    SB = {p: Stream(PH[p], False, srdB[p & 1], vBs[p & 1], *regsB[p & 1]) for p in (1, 2, 3, 4)}

    def prepB(p):
        srd(a, SB[p].srd, *PH[p].B)
        ld_offsets_B(a, PH[p], SB[p].v)
        SB[p].init(a)

    prepB(1)
    a("s_lshl_b32 s3, s2, 2")
    a("s_add_u32 s3, s3, s6")
    a("s_mul_i32 s3, s3, 7168")
    a(f"s_add_u32 s88, s{PW2}, s3")
    a(f"s_addc_u32 s89, s{PW2+1}, 0")
    a(f"s_add_u32 s32, s{PW1}, s3")
    a(f"s_addc_u32 s33, s{PW1+1}, 0")
    for p in (1, 2, 3, 4):
        g = PH[p]
        P = f"LD{p}"
        m, j = g.mj
        SA = Stream(g, True, 8, vA, *regsA)
        srd(a, 8, *g.A)
        ld_offsets_A(a, g, vA)
        SA.init(a)
        nBq = g.nB // 4
        nAq = (g.nA + 3) // 4
        if p > 1:
            a(f"s_lshl_b32 s3, s{m}, 11")
            a(f"s_add_u32 s3, s3, {WS_FD + (p-1)*32768}")
            a(f"v_lshlrev_b32 v{PF}, 7, v1")
            a(f"v_add_u32 v{PF}, s3, v{PF}")
            a(f"s_mov_b64 s[{RDY}:{RDY+1}], 0")
            a(f"s_mov_b32 s{TMO}, 0x40000")
            if p < 4:
                prepB(p + 1)
            if p == 3:
                fold_setup(a, g)
            stamp(a, "l", f"p{p}_prepoll")
        variants = [(nAq, "")]
        if g.nA % 4:
            variants = [(nAq, "x"), (nAq - 1, "y")]
            a(f"s_cmp_ge_u32 s6, {g.nA % 4}")
            a(f"s_cbranch_scc1 {P}_y")
        for (na, sfx) in variants:
            if sfx == "y":
                a(f"{P}_y:")
            c = na + nBq
            WARM["phase"], WARM["rate"] = p, OPT[f"wr{p}"] if p < 4 else 0
            if sfx == "x":
                WARM["save"] = list(WARM["left"])
            if sfx == "y":
                WARM["left"] = list(WARM["save"])
            both = [(SB[p], nBq), (SA, na)]
            if p == 1:
                for i in range(3):
                    issue(a, both, i < OPT["nt1"])
                prepB(2)
                fold_setup(a, g)
                w0, w1 = 2 * c, c
            else:
                issue(a, [(SA, na)])
                stamp(a, "l", f"p{p}_A0")
                SA.need(a, f"{P}_x1")
                a("s_waitcnt vmcnt(0)")
                a("s_barrier")
                issue(a, [(SA, na)])
                a(f"s_branch {P}_x2")
                a(f"{P}_x1:")
                issue(a, [(SA, na)], ready=False)
                w0, w1 = na, None
            a(f"s_waitcnt vmcnt({w0})")
            a("s_barrier")
            if p > 1:
                a(f"{P}_x2:")

            def loop(tag, cnt):
                a(f"s_mov_b32 s44, {cnt}")
                a(f"{P}_l{tag}{sfx}:")
                issue(a, both)
                warm(a, WARM["rate"], cnt)
                a(f"s_waitcnt vmcnt({c})")
                a("s_barrier")
                a("s_sub_u32 s44, s44, 1")
                a("s_cmp_lg_u32 s44, 0")
                a(f"s_cbranch_scc1 {P}_l{tag}{sfx}")

            if p in (2, 4):
                loop("a", g.nst - 2)
                tails = (lambda: None, lambda: None, lambda: None)
            else:
                tails = fold_body(a, g, both, c, w1, loop, sfx)
            if p < 4:
                nb2 = PH[p + 1].nB // 4
                tails[0]()
                issue(a, [(SB[p + 1], nb2)])
                a(f"s_waitcnt vmcnt({nb2})")
                tails[1]()
                a("s_barrier")
                tails[2]()
                code_touch(a, f"CT_e{p}", f"CT_e{p+1}", 44, 45)
                code_touch(a, f"LD{p}_e", f"LD{p+1}_e", 46, 45)
                a("s_barrier")
                issue(a, [(SB[p + 1], nb2)])
                if p == 1 and OPT["touch1"] and OPT["warm"] and WARM["left"][0]:
                    a(f"v_lshlrev_b32 v{TT}, 7, v1")
                    a(f"s_mov_b64 exec, {hex((1 << WARM['left'][0]) - 1)}")
                    a(f"global_load_dword v{TB}, v{TT}, s[32:33]")
                    a("s_mov_b64 exec, -1")
                WARM["phase"] = 2
                warm(a, OPT["wg"])
            else:
                a("s_waitcnt vmcnt(0)")
                a("s_barrier")
                code_touch(a, "CT_e4", "KEND", 44, 45)
                a("s_barrier")
            if sfx == "x":
                a(f"s_branch {P}_e")
        a(f"{P}_e:")
    print("warm lines not covered:", WARM["left"])
    stamp(a, "l", "end")
    stamp_flush(a, 4)
    a("s_endpgm")


def gen_mainloop(a, g, P):
    a(f"s_mov_b32 s42, {g.slot0}")
    a(f"s_mov_b32 s46, {(-2*SLOT) & 0xffffffff}")
    a(f"s_mov_b32 s47, {SLOT}")
    a(f"s_mov_b32 s43, {g.nst}")
    a("s_waitcnt lgkmcnt(0)")
    a("s_barrier")
    stamp(a, "c", f"p{g.n}_B0")
    for r in g.reads(0, 0):
        a(r)
    a(f"{P}_loop:")
    sal = ["s_cmp_eq_u32 s42, 2", "s_cselect_b32 s44, s46, s47"]
    sal2 = ["s_add_u32 s42, s42, 1", "s_cmp_eq_u32 s42, 3", "s_cselect_b32 s42, 0, s42",
            "s_sub_u32 s43, s43, 1", "s_cmp_lg_u32 s43, 0"]
    a("s_waitcnt lgkmcnt(0)")
    if OPT["stamp"] == 2:
        base = {1: 0, 2: 17, 3: 26, 4: 0}[g.n]
        a(f"s_add_u32 m0, s43, {base}")
        a(f"v_writelane_b32 v{253 if g.n == 4 else 252}, s98, m0")
        a("s_memtime s[98:99]")
    interleave(a, g.mfmas(0), g.reads(1, 1) + sal + [f"v_add_u32 v{v}, s44, v{v}" for v in g.adv])
    a("s_waitcnt lgkmcnt(0)")
    interleave(a, g.mfmas(1), g.reads(0, 0) + sal2, first=["s_barrier"])
    a(f"s_cbranch_scc1 {P}_loop")
    if P != "P1a":
        a(f"CT_e{g.n}:")
    a("s_waitcnt lgkmcnt(0)")
    if OPT["stamp"] == 2:
        a(f"v_writelane_b32 v{253 if g.n == 4 else 252}, s98, {base}")
    stamp(a, "c", f"p{g.n}_loopend")


L15, GQ = 2, 3


def b_addr128(a, V, units, sbase):
    t = V.alloc()
    f = V.alloc()
    base = V.alloc()
    a(f"v_bfe_u32 v{f}, v{L15}, 3, 1")
    a(f"v_and_b32 v{t}, 1, v{GQ}")
    a(f"v_lshl_or_b32 v{f}, v{t}, 1, v{f}")
    a(f"v_lshrrev_b32 v{t}, 2, v{L15}")
    a(f"v_lshl_add_u32 v{t}, v{GQ}, 3, v{t}")
    a(f"v_lshlrev_b32 v{base}, 7, v{t}")
    a(f"v_and_b32 v{t}, 3, v{L15}")
    a(f"v_lshl_add_u32 v{base}, v{t}, 3, v{base}")
    a(f"v_add_u32 v{base}, s{sbase}, v{base}")
    out = []
    for u in units:
        v0 = V.alloc()
        a(f"v_xor_b32 v{t}, {u}, v{f}")
        a(f"v_lshl_add_u32 v{v0}, v{t}, 5, v{base}")
        out.append(v0)
    return out


def zero_acc(a, acc, n):
    for i in range(n):
        a(f"v_mov_b32 v{acc+i}, 0")


def pair_post(a, tag, vt):
    a("s_lshl_b32 s3, s6, 2")
    a(f"s_add_u32 s3, s3, {L_PAIR}")
    a(f"v_mov_b32 v{vt}, s3")
    a(f"v_mov_b32 v{vt+1}, {tag}")
    a("s_waitcnt lgkmcnt(0)")
    a(f"ds_write_b32 v{vt}, v{vt+1}")


def pair_wait(a, lab, tag, xor, vt):
    a(f"v_xor_b32 v{vt}, {xor*4}, v{vt}")
    a(f"{lab}_ps:")
    a(f"ds_read_b32 v{vt+1}, v{vt}")
    a("s_waitcnt lgkmcnt(0)")
    a(f"v_readfirstlane_b32 s3, v{vt+1}")
    a(f"s_cmp_lg_u32 s3, {tag}")
    a(f"s_cbranch_scc1 {lab}_ps")


def finish_phase(a, p, g, vt):
    m, j = g.mj
    a(f"s_lshl_b32 s7, s{m}, 11")
    a(f"s_lshl_b32 s3, s{j}, 7")
    a("s_add_u32 s7, s7, s3")
    a(f"s_add_u32 s7, s7, {WS_FD + p*32768}")
    a(f"v_mov_b32 v{vt}, {L_CNT}")
    a(f"v_mov_b32 v{vt+1}, 1")
    a(f"v_mov_b32 v{vt+2}, s{NONCE}")
    a(f"v_mov_b32 v{vt+3}, s{NONCE+1}")
    a("s_mov_b64 exec, 1")
    a("s_waitcnt vmcnt(0)")
    a(f"ds_add_rtn_u32 v{vt+1}, v{vt}, v{vt+1}")
    a(f"v_mov_b32 v{vt}, s7")
    a("s_waitcnt lgkmcnt(0)")
    a(f"v_readfirstlane_b32 s3, v{vt+1}")
    a(f"s_cmp_lg_u32 s3, {4*p-1}")
    a(f"s_cbranch_scc1 FIN{p}")
    a(f"global_store_dwordx2 v{vt}, v[{vt+2}:{vt+3}], s[{PWS}:{PWS+1}] sc1")
    a(f"FIN{p}:")
    a("s_mov_b64 exec, -1")
    stamp(a, "c", f"p{p}_done")


def frag_lane_off(a, d, t):
    a(f"v_and_b32 v{t}, 1, v{GQ}")
    a(f"v_lshlrev_b32 v{d}, 9, v{t}")
    a(f"v_lshrrev_b32 v{t}, 1, v{GQ}")
    a(f"v_lshl_add_u32 v{d}, v{t}, 8, v{d}")
    a(f"v_lshl_add_u32 v{d}, v{L15}, 4, v{d}")


def gen_p0(a):
    g = PH[1]
    m, j = g.mj
    srd(a, 8, PX, 0, S * D * 2)
    a(f"s_lshl_b32 s3, s{m}, 7")
    a(f"s_lshl_b32 s7, s{j}, 3")
    a("s_add_u32 s3, s3, s7")
    a("s_lshl_b32 s7, s6, 1")
    a("s_add_u32 s34, s3, s7")
    a("s_lshl_b32 s3, s34, 11")
    a("v_lshlrev_b32 v4, 4, v1")
    for rr in range(2):
        for hh in range(2):
            a(f"buffer_load_dwordx4 v[{24+rr*8+hh*4}:{27+rr*8+hh*4}], v4, s[8:11], s3 offen offset:{rr*2048+hh*1024}")
    a("s_lshl_b32 s3, s6, 2")
    a(f"s_add_u32 s3, s3, {L_PAIR}")
    a("v_mov_b32 v5, s3")
    a("v_mov_b32 v6, 0")
    a("ds_write_b32 v5, v6")
    a(f"v_mov_b32 v5, {L_CNT}")
    a("ds_write_b32 v5, v6")


def gen_p0t(a):
    code_touch(a, "CT_s", "CT_e1", 50, 51)
    code_touch(a, "LOADER", "LD1_e", 52, 51)
    a("CT_s:")


def gen_p0b(a):
    a("s_waitcnt vmcnt(0)")
    a("v_mov_b32 v48, 0x3f803f80")
    R = [40, 41, 42, 43]
    for i in range(8):
        for rr in range(2):
            x = 24 + rr * 8 + i
            a(f"v_dot2_f32_bf16 v{R[2*rr]}, v{x}, v48, {'0' if i == 0 else 'v%d' % R[2*rr]}")
            a(f"v_dot2_f32_bf16 v{R[2*rr+1]}, v{x}, v{x}, {'0' if i == 0 else 'v%d' % R[2*rr+1]}")
    a("s_nop 2")
    wave_sum_multi(a, R, [44, 45, 46, 47])
    for rr in range(2):
        a(f"v_mul_f32 v{R[2*rr]}, {hexf(1.0/1024)}, v{R[2*rr]}")
        a(f"v_mul_f32 v{R[2*rr+1]}, {hexf(1.0/1024)}, v{R[2*rr+1]}")
        a(f"v_fma_f32 v{R[2*rr+1]}, -v{R[2*rr]}, v{R[2*rr]}, v{R[2*rr+1]}")
        a(f"v_max_f32 v{R[2*rr+1]}, 0, v{R[2*rr+1]}")
    for rr in range(2):
        ln_finish(a, R[2 * rr], R[2 * rr + 1], 44 + 2 * rr)
    a("s_lshl_b32 s3, s6, 4")
    a(f"s_add_u32 s3, s3, {L_P0}")
    a("v_mov_b32 v48, s3")
    a("ds_write_b128 v48, v[44:47]")
    stamp(a, "c", "p0_done")


def gen_p1(a):
    g = PH[1]
    m, j = g.mj
    g2 = PH[2]
    V = Regs("v", 68, RES)
    srd(a, 20, PWS, WS_O, S * D * 2)
    a("s_and_b32 s34, s6, 1")
    a("s_lshr_b32 s35, s6, 1")
    a("s_lshl_b32 s36, s34, 13")
    t = 4
    vA, vAh = [5, 6], [7, 8]
    for h in range(2):
        a(f"v_lshrrev_b32 v{t}, 1, v{L15}")
        a(f"v_xor_b32 v{t}, v{t}, v{GQ}")
        if h:
            a(f"v_xor_b32 v{t}, 4, v{t}")
        a(f"v_lshlrev_b32 v{t}, 4, v{t}")
        a(f"v_lshl_add_u32 v{vAh[h]}, v{L15}, 7, v{t}")
        if g.slot0:
            a(f"v_add_u32 v{vAh[h]}, {g.slot0*SLOT}, v{vAh[h]}")
        a(f"v_add_u32 v{vA[h]}, s36, v{vAh[h]}")
        a(f"v_add_u32 v{vA[h]}, 2048, v{vA[h]}")
    a(f"s_mov_b32 s36, {g.Boff + g.slot0*SLOT}")
    a("s_lshl_b32 s37, s35, 1")
    a("s_add_u32 s38, s37, 1")
    V2 = Regs("v", 12, 24)
    vB = b_addr128(a, V2, ["s37", "s38"], 36)
    acc = V.alloc(104, 4)
    W = [V.alloc(24, 4), 0]
    X = [V.alloc(20, 4), 0]
    W[1], X[1] = 24, 48
    accr = lambda t, u: acc + (t * 4 + u) * 4
    acch = lambda c: acc + 96 + c * 4
    zero_acc(a, acc, 104)
    gen_p0b(a)

    def reads(h, b):
        r = []
        for u in range(4):
            r.append(f"ds_read_b128 {vr(X[b]+4*u,4)}, v{vA[h]} offset:{u*2048}")
        for t in range(6):
            for jj in range(2):
                r.append(f"ds_read_b64_tr_b16 {vr(W[b]+4*t+2*jj,2)}, v{vB[t&1]} offset:{(t>>1)*8192+jj*512+h*4096}")
            if t == 1:
                r.append(f"ds_read_b128 {vr(X[b]+16,4)}, v{vAh[h]}")
        return r

    def mk_mfmas(rsel):
        def mfmas(b):
            ml = []
            for t in range(6):
                for u in range(4):
                    w, x, d = vr(W[b] + 4 * t, 4), vr(X[b] + 4 * u, 4), vr(accr(t, u), 4)
                    ml.append(f"v_mfma_f32_16x16x32_bf16 {d}, {w}, {x}, {d}" if t < 4 else
                              f"v_mfma_f32_16x16x32_bf16 {d}, {x}, {w}, {d}")
                if (t >> 1) == 1 + rsel:
                    w, x, d = vr(W[b] + 4 * t, 4), vr(X[b] + 16, 4), vr(acch(t & 1), 4)
                    ml.append(f"v_mfma_f32_16x16x32_bf16 {d}, {w}, {x}, {d}" if t < 4 else
                              f"v_mfma_f32_16x16x32_bf16 {d}, {x}, {w}, {d}")
            return ml
        return mfmas

    g.reads = reads
    g.adv = vA + vAh + vB
    a("s_cmp_eq_u32 s34, 1")
    a("s_cbranch_scc1 P1_r1")
    g.mfmas = mk_mfmas(0)
    gen_mainloop(a, g, "P1a")
    a("s_branch P1_epi")
    a("P1_r1:")
    g.mfmas = mk_mfmas(1)
    gen_mainloop(a, g, "P1b")
    a("P1_epi:")
    RP = 24
    CSq = 36
    CSv = 34
    R4 = W[0]
    N4 = W[0] + 20
    assert X[0] == W[0] + 24
    T = 52
    a("s_lshl_b32 s36, s34, 9")
    a(f"s_add_u32 s36, s36, {L_ROW + 128}")
    a(f"v_lshlrev_b32 v4, 3, v{L15}")
    a(f"v_add_u32 v5, {L_ROW}, v4")
    a(f"v_add_u32 v4, s36, v4")
    a(f"ds_read_b64 {vr(RP+8,2)}, v5")
    a(f"v_mov_b32 v16, {L_NONCE}")
    a("ds_read_b64 v[16:17], v16")
    a(f"v_lshlrev_b32 v6, 4, v{GQ}")
    a("s_lshl_b32 s36, s35, 7")
    a(f"s_add_u32 s36, s36, {L_CS}")
    a(f"v_add_u32 v7, s36, v6")
    for c in range(2):
        a(f"ds_read_b128 {vr(CSq+8+4*c,4)}, v7 offset:{256+64*c}")
    a(f"v_lshlrev_b32 v8, 2, v{L15}")
    a(f"v_add_u32 v8, s36, v8")
    a(f"ds_read2_b32 {vr(CSv,2)}, v8 offset0:128 offset1:144")
    a(f"v_add_u32 v9, {L_RS}, v6")
    a(f"ds_read_b128 {vr(R4+16,4)}, v9")
    a(f"ds_read_b128 {vr(N4+16,4)}, v9 offset:{L_NM-L_RS}")
    for u in (3, 2, 1, 0):
        a(f"ds_read_b64 {vr(RP+2*u,2)}, v4 offset:{u*128}")
    a("s_lshl_b32 s36, s34, 8")
    a(f"v_add_u32 v9, s36, v9")
    for u in (3, 2, 1, 0):
        a(f"ds_read_b128 {vr(R4+4*u,4)}, v9 offset:{64+64*u}")
        a(f"ds_read_b128 {vr(N4+4*u,4)}, v9 offset:{64+64*u+L_NM-L_RS}")
    for c in range(2):
        a(f"ds_read_b128 {vr(CSq+4*c,4)}, v7 offset:{64*c}")
    m2, j2 = g2.mj
    a(f"s_lshl_b32 s36, s{m2}, 7")
    a("s_lshl_b32 s37, s34, 6")
    a("s_add_u32 s36, s36, s37")
    a("s_lshl_b32 s37, s35, 5")
    a("s_add_u32 s36, s36, s37")
    a(f"v_add_u32 v10, s36, v{L15}")
    a("v_lshlrev_b32 v10, 11, v10")
    a(f"v_lshl_add_u32 v10, v{GQ}, 3, v10")
    a(f"s_lshl_b32 s36, s{j2}, 7")
    a("s_add_u32 s37, s36, 32768")
    for uu in range(2):
        for t_ in range(4):
            a(f"buffer_load_dwordx2 {vr(RES+8*uu+2*t_,2)}, v10, s[8:11], s{36+uu} offen offset:{32*t_}")

    def fold_qk(d, cs, rp):
        for i in (0, 2):
            a(f"v_pk_mul_f32 {vr(T+i,2)}, {vr(cs+i,2)}, {vr(rp,2)} op_sel:[0,1] op_sel_hi:[1,1]")
        for i in (0, 2):
            a(f"v_pk_fma_f32 {vr(d+i,2)}, {vr(d+i,2)}, {vr(rp,2)}, {vr(T+i,2)} op_sel:[0,0,0] op_sel_hi:[1,0,1]")

    def fold_v(d, c, ui):
        for i in (0, 2):
            a(f"v_pk_mul_f32 {vr(T+i,2)}, {vr(N4+4*ui+i,2)}, {vr(CSv,2)} op_sel:[0,{c}] op_sel_hi:[1,{c}]")
        for i in (0, 2):
            a(f"v_pk_fma_f32 {vr(d+i,2)}, {vr(d+i,2)}, {vr(R4+4*ui+i,2)}, {vr(T+i,2)}")

    def pack(dst, d):
        a(f"v_cvt_pk_bf16_f32 v{dst}, v{d}, v{d+1}")
        a(f"v_cvt_pk_bf16_f32 v{dst+1}, v{d+2}, v{d+3}")

    ex, PV = 12, 14
    a(f"v_lshlrev_b32 v{ex}, 4, v1")
    a("s_mul_i32 s36, s35, 3072")
    a(f"s_add_u32 s36, s36, {g.exch}")
    a(f"v_add_u32 v{ex}, s36, v{ex}")
    Hp = 60
    a("s_waitcnt lgkmcnt(0)")
    a(f"v_readfirstlane_b32 s{NONCE}, v16")
    a(f"v_readfirstlane_b32 s{NONCE+1}, v17")
    a("s_cmp_eq_u32 s34, 1")
    a("s_cbranch_scc1 P1_ex1")
    for c in range(2):
        fold_qk(accr(2 + c, 3), CSq + 8 + 4 * c, RP + 6)
        fold_v(accr(4 + c, 3), c, 3)
    for c in range(2):
        pack(Hp + 2 * c, accr(2 + c, 3))
        pack(Hp + 4 + 2 * c, accr(4 + c, 3))
    a(f"ds_write_b128 v{ex}, {vr(Hp,4)}")
    a(f"ds_write_b128 v{ex}, {vr(Hp+4,4)} offset:1024")
    pair_post(a, 1, PV)
    for c in range(2):
        fold_qk(acch(c), CSq + 8 + 4 * c, RP + 8)
    a("s_branch P1_ex2")
    a("P1_ex1:")
    for c in range(2):
        fold_v(acch(c), c, 4)
    for c in range(2):
        pack(Hp + 2 * c, acch(c))
    a(f"ds_write_b128 v{ex}, {vr(Hp,4)} offset:2048")
    pair_post(a, 1, PV)
    for c in range(2):
        fold_qk(accr(2 + c, 3), CSq + 8 + 4 * c, RP + 6)
        fold_v(accr(4 + c, 3), c, 3)
    a("P1_ex2:")
    for u in range(3):
        for c in range(2):
            fold_qk(accr(2 + c, u), CSq + 8 + 4 * c, RP + 2 * u)
            fold_v(accr(4 + c, u), c, u)
    a(f"s_mov_b32 s36, {hexf(32 ** -0.5 * math.log2(math.e))}")
    a("s_mov_b32 s37, s36")
    for u in range(4):
        a(f"v_pk_mul_f32 {vr(RP+2*u,2)}, {vr(RP+2*u,2)}, s[36:37]")
    for u in range(4):
        for c in range(2):
            fold_qk(accr(c, u), CSq + 4 * c, RP + 2 * u)
    Kf, Vp, Qf = W[0], [W[0] + 20, W[0] + 30], 24
    for u in range(4):
        for c in range(2):
            pack(Kf + 4 * (u + 1) + 2 * c, accr(2 + c, u))
            pack(Vp[c] + 2 * (u + 1), accr(4 + c, u))
            pack(Qf + 4 * u + 2 * c, accr(c, u))
    a("s_cmp_eq_u32 s34, 1")
    a("s_cbranch_scc1 P1_ex3")
    for c in range(2):
        pack(Kf + 2 * c, acch(c))
    pair_wait(a, "P1a", 1, 1, PV)
    for c in range(2):
        a(f"ds_read_b64 {vr(Vp[c],2)}, v{ex} offset:{2048+8*c}")
    a("s_branch P1_ex4")
    a("P1_ex3:")
    pair_wait(a, "P1b", 1, 1, PV)
    a(f"ds_read_b128 {vr(Kf,4)}, v{ex}")
    for c in range(2):
        a(f"ds_read_b64 {vr(Vp[c],2)}, v{ex} offset:{1024+8*c}")
    a("P1_ex4:")
    t0, t1 = acc, acc + 1
    MA, MB = acc + 2, acc + 4
    a(f"v_and_b32 v{t0}, 1, v{L15}")
    a(f"v_cmp_eq_u32 s[76:77], 1, v{t0}")
    a(f"v_lshl_add_u32 v{t0}, v{GQ}, 2, v{t0}")
    a(f"v_cmp_le_u32 s[78:79], v{t0}, v{L15}")
    a(f"v_add_u32 v{t0}, 2, v{t0}")
    a(f"v_cmp_le_u32 s[80:81], v{t0}, v{L15}")
    a(f"v_mov_b32 v{t0}, 0xffff")
    a(f"v_mov_b32 v{t1}, 0xffff0000")
    a(f"v_cndmask_b32 v{t0}, v{t0}, v{t1}, s[76:77]")
    a(f"v_cndmask_b32 v{MA}, v{t0}, 0, s[78:79]")
    a(f"v_cndmask_b32 v{MA+1}, 0, v{t0}, s[78:79]")
    a(f"v_cndmask_b32 v{MB}, v{t0}, 0, s[80:81]")
    a(f"v_cndmask_b32 v{MB+1}, 0, v{t0}, s[80:81]")
    a(f"s_or_b32 s36, s{m}, s34")
    a("s_cmp_eq_u32 s36, 0")
    a("s_cselect_b64 s[82:83], s[78:79], -1")
    a("s_cselect_b64 s[84:85], s[80:81], -1")
    vo = acc + 6
    frag_lane_off(a, vo, t0)
    a(f"s_lshl_b32 s36, s{m}, 3")
    a("s_lshl_b32 s37, s34, 2")
    a("s_add_u32 s36, s36, s37")
    a("s_lshl_b32 s36, s36, 5")
    a(f"s_lshl_b32 s37, s{j}, 1")
    a("s_add_u32 s36, s36, s37")
    a("s_add_u32 s36, s36, s35")
    a("s_lshl_b32 s36, s36, 10")
    a(f"v_add_u32 v{vo}, s36, v{vo}")
    NEG = acc + 7
    a(f"v_mov_b32 v{NEG}, 0xff800000")
    Sc = acc + 8
    for u in (1, 2, 3):
        for blk in range(2):
            a(f"v_mfma_f32_16x16x32_bf16 {vr(Sc+8*u+4*blk,4)}, {vr(Kf+4*(u+blk),4)}, {vr(Qf+4*u,4)}, 0")
    a("s_waitcnt lgkmcnt(0)")
    for blk in (1, 0):
        a(f"v_mfma_f32_16x16x32_bf16 {vr(Sc+4*blk,4)}, {vr(Kf+4*blk,4)}, {vr(Qf,4)}, 0")
    VA, VB_, MX, TM = acc + 40, acc + 44, acc + 48, acc + 52
    order = (1, 2, 3, 0)
    for u in order:
        s = Sc + 8 * u
        a(f"v_cndmask_b32 v{s}, v{s}, v{s+1}, s[76:77]")
        a(f"v_cndmask_b32 v{s+4}, v{s+4}, v{s+5}, s[76:77]")
        a(f"v_cndmask_b32 v{s+2}, v{s+2}, v{s+3}, s[76:77]")
        a(f"v_cndmask_b32 v{s+6}, v{s+6}, v{s+7}, s[76:77]")
        a(f"v_cndmask_b32 v{VA+u}, v{s}, v{s+4}, s[78:79]")
        a(f"v_cndmask_b32 v{VB_+u}, v{s+2}, v{s+6}, s[80:81]")
    a(f"v_cndmask_b32 v{VA}, v{NEG}, v{VA}, s[82:83]")
    a(f"v_cndmask_b32 v{VB_}, v{NEG}, v{VB_}, s[84:85]")
    for u in order:
        a(f"v_max_f32 v{MX+u}, v{VA+u}, v{VB_+u}")
    xrow_reduce_multi(a, "v_max_f32", [MX + u for u in order], [TM + u for u in order])
    for u in order:
        a(f"v_sub_f32 v{VA+u}, v{VA+u}, v{MX+u}")
        a(f"v_sub_f32 v{VB_+u}, v{VB_+u}, v{MX+u}")
    for u in order:
        a(f"v_exp_f32 v{VA+u}, v{VA+u}")
        a(f"v_exp_f32 v{VB_+u}, v{VB_+u}")
    for u in order:
        a(f"v_add_f32 v{MX+u}, v{VA+u}, v{VB_+u}")
    xrow_reduce_multi(a, "v_add_f32", [MX + u for u in order], [TM + u for u in order])
    for u in order:
        a(f"v_rcp_f32 v{MX+u}, v{MX+u}")
    for u in order:
        a(f"v_mul_f32 v{VA+u}, v{VA+u}, v{MX+u}")
        a(f"v_mul_f32 v{VB_+u}, v{VB_+u}, v{MX+u}")
    for u in order:
        a(f"v_cvt_pk_bf16_f32 v{VA+u}, v{VA+u}, v{VA+u}")
        a(f"v_cvt_pk_bf16_f32 v{VB_+u}, v{VB_+u}, v{VB_+u}")
    Pp, Om = acc + 56, acc + 72
    for u in order:
        a(f"v_and_b32 v{Pp+4*u}, v{VA+u}, v{MA}")
        a(f"v_and_b32 v{Pp+4*u+1}, v{VB_+u}, v{MB}")
        a(f"v_and_b32 v{Pp+4*u+2}, v{VA+u}, v{MA+1}")
        a(f"v_and_b32 v{Pp+4*u+3}, v{VB_+u}, v{MB+1}")
    for u in order:
        for c in range(2):
            a(f"v_mfma_f32_16x16x32_bf16 {vr(Om+8*u+4*c,4)}, {vr(Vp[c]+2*u,4)}, {vr(Pp+4*u,4)}, 0")
    for u in range(4):
        a(f"s_mov_b32 s{76+u}, {u*32768}")
    for u in order:
        o = Om + 8 * u
        p = Sc + 4 * u
        for i in range(4):
            a(f"v_cvt_pk_bf16_f32 v{p+i}, v{o+2*i}, v{o+2*i+1}")
    for u in order:
        p = Sc + 4 * u
        a(f"v_permlane16_swap_b32 v{p}, v{p+2}")
        a(f"v_permlane16_swap_b32 v{p+1}, v{p+3}")
        a(f"buffer_store_dwordx4 {vr(p,4)}, v{vo}, s[20:23], s{76+u} offen sc1")
    stamp(a, "c", "p1_stored")
    finish_phase(a, 1, g, acc + 40)


def gen_p24(a, which):
    g = PH[which]
    m, j = g.mj
    k2 = which == 2
    P = f"P{which}"
    V = Regs("v", 4, RES)
    if k2:
        srd(a, 16, PWS, WS_H, S * D * 2)
        srd(a, 24, PWS, WS_ST, 16 * S * 8)
    else:
        srd(a, 16, POUT, 0, S * D * 2)
    a("s_and_b32 s34, s6, 1")
    a("s_lshr_b32 s35, s6, 1")
    vA = [V.alloc(), V.alloc()]
    a("s_lshl_b32 s36, s34, 14")
    a("s_lshl_b32 s37, s35, 11")
    a("s_add_u32 s36, s36, s37")
    a(f"s_add_u32 s36, s36, {g.slot0*SLOT}")
    a(f"v_lshlrev_b32 v{vA[0]}, 4, v1")
    a(f"v_add_u32 v{vA[0]}, s36, v{vA[0]}")
    a("s_lshl_b32 s37, s35, 13")
    a(f"s_sub_u32 s38, 8192, s37")
    a(f"v_add_u32 v{vA[1]}, s38, v{vA[0]}")
    a(f"v_add_u32 v{vA[0]}, s37, v{vA[0]}")
    a("s_lshl_b32 s36, s35, 13")
    a(f"s_add_u32 s36, s36, {g.Boff + g.slot0*SLOT}")
    vB = b_addr128(a, V, [0, 1, 2, 3], 36)
    acc = V.alloc(64, 4)
    X = [V.alloc(16, 4) for _ in range(2)]
    W = [V.alloc(16, 4) for _ in range(2)]
    accr = lambda t, u: acc + (t * 4 + u) * 4
    vo, t0, vrow, ex, exr, PV = V.alloc(), V.alloc(), V.alloc(), V.alloc(), V.alloc(), V.alloc(2)
    a(f"s_lshl_b32 s36, s{m}, 7")
    a("s_lshl_b32 s37, s34, 6")
    a("s_add_u32 s36, s36, s37")
    a("s_lshl_b32 s37, s35, 5")
    a("s_add_u32 s36, s36, s37")
    if k2:
        a(f"v_add_u32 v{vrow}, s36, v{L15}")
        a(f"v_lshlrev_b32 v{vrow}, 3, v{vrow}")
        a(f"v_cmp_eq_u32 vcc, 0, v{GQ}")
        a(f"v_mov_b32 v{t0}, {BIG}")
        a(f"v_cndmask_b32 v{vrow}, v{t0}, v{vrow}, vcc")
        frag_lane_off(a, vo, t0)
        a("s_lshl_b32 s36, s36, 11")
        a(f"s_lshl_b32 s37, s{j}, 11")
        a("s_add_u32 s36, s36, s37")
        a(f"v_add_u32 v{vo}, s36, v{vo}")
    else:
        a(f"v_add_u32 v{vo}, s36, v{L15}")
        a(f"v_lshlrev_b32 v{vo}, 11, v{vo}")
        a(f"v_and_b32 v{t0}, 1, v{GQ}")
        a(f"v_lshl_add_u32 v{vo}, v{t0}, 5, v{vo}")
        a(f"v_lshrrev_b32 v{t0}, 1, v{GQ}")
        a(f"v_lshl_add_u32 v{vo}, v{t0}, 4, v{vo}")
        a(f"s_lshl_b32 s36, s{j}, 7")
        a(f"v_add_u32 v{vo}, s36, v{vo}")
    a("s_mov_b32 s45, 32768")
    a(f"v_lshlrev_b32 v{ex}, 4, v1")
    a("s_lshl_b32 s36, s6, 13")
    a(f"v_add_u32 v{ex}, s36, v{ex}")
    a(f"v_xor_b32 v{exr}, 16384, v{ex}")
    a(f"v_add_u32 v{ex}, {g.exch}, v{ex}")
    a(f"v_add_u32 v{exr}, {g.exch}, v{exr}")
    for t in range(4):
        for uu in range(2):
            d = accr(t, uu)
            for i in range(2):
                a(f"v_lshlrev_b32 v{d+2*i}, 16, v{RES+8*uu+2*t+i}")
                a(f"v_and_b32 v{d+2*i+1}, 0xffff0000, v{RES+8*uu+2*t+i}")
        if not k2:
            z = accr(t, 2)
            for i in range(2):
                a(f"v_lshlrev_b32 v{z+2*i}, 16, v{BIA+2*t+i}")
                a(f"v_and_b32 v{z+2*i+1}, 0xffff0000, v{BIA+2*t+i}")
            for uu in range(2):
                for i in (0, 2):
                    a(f"v_pk_add_f32 {vr(accr(t,uu)+i,2)}, {vr(accr(t,uu)+i,2)}, {vr(z+i,2)}")
        zero_acc(a, accr(t, 2), 8)

    def reads(h, b):
        r = []
        for u in range(4):
            r.append(f"ds_read_b128 {vr(X[b]+4*u,4)}, v{vA[u>>1]} offset:{(u&1)*4096+h*1024}")
        for t in range(4):
            for jj in range(2):
                r.append(f"ds_read_b64_tr_b16 {vr(W[b]+4*t+2*jj,2)}, v{vB[t]} offset:{jj*512+h*4096}")
        return r

    def mfmas(b):
        ml = []
        for t in range(4):
            for u in (2, 3, 0, 1):
                w, x, d = vr(W[b] + 4 * t, 4), vr(X[b] + 4 * u, 4), vr(accr(t, u), 4)
                ml.append(f"v_mfma_f32_16x16x32_bf16 {d}, {w}, {x}, {d}")
        return ml

    g.reads, g.mfmas = reads, mfmas
    g.adv = vA + vB
    gen_mainloop(a, g, P)
    for t in range(4):
        for uu in range(2):
            a(f"ds_write_b128 v{ex}, {vr(accr(t, 2+uu),4)} offset:{(t*2+uu)*1024}")
    pair_post(a, which, PV)
    pair_wait(a, P, which, 2, PV)
    Rv = X[0]
    assert X[1] == X[0] + 16
    lst = [(t, uu) for uu in range(2) for t in range(4)]
    for (t, uu) in lst:
        a(f"ds_read_b128 {vr(Rv+(t*2+uu)*4,4)}, v{exr} offset:{(t*2+uu)*1024}")
    ob = W[0]
    for n_, (t, uu) in enumerate(lst):
        a(f"s_waitcnt lgkmcnt({7-n_})")
        d = accr(t, uu)
        for i in (0, 2):
            a(f"v_pk_add_f32 {vr(d+i,2)}, {vr(d+i,2)}, {vr(Rv+(t*2+uu)*4+i,2)}")
        o = ob + 8 * uu + 2 * t
        a(f"v_cvt_pk_bf16_f32 v{o}, v{d}, v{d+1}")
        a(f"v_cvt_pk_bf16_f32 v{o+1}, v{d+2}, v{d+3}")
        if k2:
            a(f"v_mov_b32 v{RES+8*uu+2*t}, v{o}")
            a(f"v_mov_b32 v{RES+8*uu+2*t+1}, v{o+1}")
        if t & 1:
            o -= 2
            a(f"v_permlane16_swap_b32 v{o}, v{o+2}")
            a(f"v_permlane16_swap_b32 v{o+1}, v{o+3}")
            so = "s45" if uu else "0"
            if k2:
                a(f"buffer_store_dwordx4 {vr(o,4)}, v{vo}, s[16:19], {so} offen offset:{1024*(t>>1)} sc1")
            else:
                a(f"buffer_store_dwordx4 {vr(o,4)}, v{vo}, s[16:19], {so} offen offset:{64*(t>>1)} {['', 'sc1', 'nt', 'sc0 sc1', 'sc1 nt'][OPT['ost']]}")
    if k2:
        SM = [Rv, Rv + 2]
        PK = [Rv + 8, Rv + 10]
        PQ = [Rv + 12, Rv + 14]
        for uu in range(2):
            a(f"v_pk_add_f32 {vr(PK[uu],2)}, {vr(accr(0,uu),2)}, {vr(accr(0,uu)+2,2)}")
            a(f"v_pk_mul_f32 {vr(PQ[uu],2)}, {vr(accr(0,uu),2)}, {vr(accr(0,uu),2)}")
        for t in range(4):
            for i in (0, 2):
                for uu in range(2):
                    d = vr(accr(t, uu) + i, 2)
                    if t:
                        a(f"v_pk_add_f32 {vr(PK[uu],2)}, {vr(PK[uu],2)}, {d}")
                    if t or i:
                        a(f"v_pk_fma_f32 {vr(PQ[uu],2)}, {d}, {d}, {vr(PQ[uu],2)}")
        for uu in range(2):
            a(f"v_add_f32 v{SM[uu]}, v{PK[uu]}, v{PK[uu]+1}")
            a(f"v_add_f32 v{SM[uu]+1}, v{PQ[uu]}, v{PQ[uu]+1}")
        xrow_reduce_multi(a, "v_add_f32", [Rv, Rv + 1, Rv + 2, Rv + 3], [Rv + 4, Rv + 5, Rv + 6, Rv + 7])
        a(f"s_lshl_b32 s36, s{j}, 14")
        for uu in range(2):
            a(f"buffer_store_dwordx2 {vr(SM[uu],2)}, v{vrow}, s[24:27], s36 offen offset:{uu*128} sc1")
    stamp(a, "c", f"p{which}_stored")
    if k2:
        finish_phase(a, 2, g, X[1])


def gen_p3(a):
    g = PH[3]
    m, j = g.mj
    g4 = PH[4]
    V = Regs("v", 4, RES)
    srd(a, 16, PWS, WS_H1, S * F * 2)
    srd(a, 20, PB2, 0, D * 2)
    acc = V.alloc(112, 4)
    X = [V.alloc(16, 4) for _ in range(2)]
    W = [V.alloc(28, 4) for _ in range(2)]
    accr = lambda t, u: acc + (t * 4 + u) * 4
    a("s_and_b32 s34, s6, 1")
    a("s_lshr_b32 s35, s6, 1")
    vA = V.alloc()
    a("s_lshl_b32 s36, s34, 13")
    a(f"s_add_u32 s36, s36, {g.slot0*SLOT}")
    a(f"v_lshlrev_b32 v{vA}, 4, v1")
    a(f"v_add_u32 v{vA}, s36, v{vA}")
    t = X[0]
    base, f = X[0] + 1, X[0] + 2
    vB = [V.alloc() for _ in range(7)]
    a(f"v_lshrrev_b32 v{t}, 2, v{L15}")
    a(f"v_and_b32 v{f}, 1, v{GQ}")
    a(f"v_lshl_or_b32 v{f}, v{f}, 2, v{t}")
    a(f"v_lshl_add_u32 v{t}, v{GQ}, 3, v{t}")
    a(f"v_lshlrev_b32 v{base}, 9, v{t}")
    a(f"v_and_b32 v{t}, 3, v{L15}")
    a(f"v_lshl_add_u32 v{base}, v{t}, 3, v{base}")
    a(f"v_add_u32 v{base}, {g.Boff + g.slot0*SLOT}, v{base}")
    a(f"s_and_b32 s36, s{j}, 1")
    a("s_lshl_b32 s36, s36, 1")
    a("s_add_u32 s37, s36, s35")
    a("s_add_u32 s37, s37, 12")
    a("s_mul_i32 s38, s35, 6")
    a("s_add_u32 s36, s36, s38")
    for t_ in range(7):
        a(f"v_xor_b32 v{t}, s{36 if t_ < 6 else 37}, v{f}")
        a(f"v_lshl_add_u32 v{vB[t_]}, v{t}, 5, v{base}")
        if t_ < 5:
            a("s_add_u32 s36, s36, 1")
    zero_acc(a, acc, 112)

    def reads(h, b):
        r = []
        for u in range(4):
            r.append(f"ds_read_b128 {vr(X[b]+4*u,4)}, v{vA} offset:{u*2048+h*1024}")
        for t_ in range(7):
            for jj in range(2):
                r.append(f"ds_read_b64_tr_b16 {vr(W[b]+4*t_+2*jj,2)}, v{vB[t_]} offset:{jj*2048+h*16384}")
        return r

    def mfmas(b):
        ml = []
        for t_ in range(7):
            for u in range(4):
                w, x, d = vr(W[b] + 4 * t_, 4), vr(X[b] + 4 * u, 4), vr(accr(t_, u), 4)
                ml.append(f"v_mfma_f32_16x16x32_bf16 {d}, {w}, {x}, {d}")
        return ml

    g.reads, g.mfmas = reads, mfmas
    g.adv = [vA] + vB
    gen_mainloop(a, g, "P3")
    RP = X[0]
    CSr, B1r = W[0], W[1]
    e0 = X[0] + 8
    a("s_lshl_b32 s36, s34, 9")
    a(f"s_add_u32 s36, s36, {L_ROW}")
    a(f"v_lshlrev_b32 v{e0}, 3, v{L15}")
    a(f"v_add_u32 v{e0}, s36, v{e0}")
    for u in range(4):
        a(f"ds_read_b64 {vr(RP+2*u,2)}, v{e0} offset:{u*128}")
    a(f"v_lshlrev_b32 v{e0+1}, 4, v{GQ}")
    a("s_lshl_b32 s36, s35, 6")
    a(f"s_add_u32 s36, s36, {L_CS + 768}")
    a(f"v_add_u32 v{e0+2}, s36, v{e0+1}")
    a(f"ds_read_b128 {vr(CSr+24,4)}, v{e0+2}")
    a(f"ds_read_b128 {vr(B1r+24,4)}, v{e0+2} offset:1024")
    a("s_mul_i32 s36, s35, 384")
    a(f"s_add_u32 s36, s36, {L_CS}")
    a(f"v_add_u32 v{e0+1}, s36, v{e0+1}")
    for t_ in range(6):
        a(f"ds_read_b128 {vr(CSr+4*t_,4)}, v{e0+1} offset:{t_*64}")
        a(f"ds_read_b128 {vr(B1r+4*t_,4)}, v{e0+1} offset:{1024+t_*64}")
    a(f"v_lshlrev_b32 v{e0}, 3, v{GQ}")
    a(f"s_lshl_b32 s36, s{g4.mj[1]}, 7")
    for t_ in range(4):
        a(f"buffer_load_dwordx2 {vr(BIA+2*t_,2)}, v{e0}, s[20:23], s36 offen offset:{32*t_}")
    vo, tq, ex = X[1], X[1] + 1, X[1] + 2
    KK = X[1] + 4
    T = X[1] + 6
    PV = X[1] + 10
    frag_lane_off(a, vo, tq)
    a(f"s_lshl_b32 s36, s{m}, 3")
    a("s_lshl_b32 s37, s34, 2")
    a("s_add_u32 s36, s36, s37")
    a("s_mul_i32 s36, s36, 112")
    a(f"s_mul_i32 s37, s{j}, 7")
    a("s_add_u32 s36, s36, s37")
    a("s_lshl_b32 s36, s36, 10")
    a(f"v_add_u32 v{vo}, s36, v{vo}")
    a("s_mul_i32 s36, s35, 3072")
    for u in range(4):
        a(f"s_add_u32 s{76+u}, s36, {u*112*1024}")
    a(f"s_mul_i32 s36, s35, {2*112*1024}")
    a("s_add_u32 s80, s36, 6144")
    a(f"s_add_u32 s81, s80, {112*1024}")
    a(f"v_lshlrev_b32 v{ex}, 4, v1")
    a("s_lshl_b32 s36, s34, 12")
    a(f"s_add_u32 s36, s36, {g.exch}")
    a(f"v_add_u32 v{ex}, s36, v{ex}")
    a("s_lshl_b32 s36, s35, 3")
    a(f"v_add_u32 v{ex+1}, s36, v{ex}")
    a("s_lshl_b32 s36, s35, 11")
    a(f"v_add_u32 v{ex}, s36, v{ex}")
    k1 = -2.0 * math.sqrt(2.0 / math.pi) * math.log2(math.e)
    a(f"v_mov_b32 v{KK}, {hexf(k1*0.044715)}")
    a(f"v_mov_b32 v{KK+1}, {hexf(k1)}")
    a("s_waitcnt lgkmcnt(0)")

    def gelu_tile(t_, u, o):
        d = accr(t_, u)
        rp = vr(RP + 2 * u, 2)
        for i in (0, 2):
            a(f"v_pk_fma_f32 {vr(T+i,2)}, {vr(CSr+4*t_+i,2)}, {rp}, {vr(B1r+4*t_+i,2)} op_sel:[0,1,0] op_sel_hi:[1,1,1]")
        for i in (0, 2):
            a(f"v_pk_fma_f32 {vr(d+i,2)}, {vr(d+i,2)}, {rp}, {vr(T+i,2)} op_sel:[0,0,0] op_sel_hi:[1,0,1]")
        for i in (0, 2):
            a(f"v_pk_mul_f32 {vr(T+i,2)}, {vr(d+i,2)}, {vr(d+i,2)}")
        for i in (0, 2):
            a(f"v_pk_fma_f32 {vr(T+i,2)}, {vr(T+i,2)}, {vr(KK,2)}, {vr(KK,2)} op_sel:[0,0,1] op_sel_hi:[1,0,1]")
        for i in (0, 2):
            a(f"v_pk_mul_f32 {vr(T+i,2)}, {vr(T+i,2)}, {vr(d+i,2)}")
        for i in range(4):
            a(f"v_exp_f32 v{T+i}, v{T+i}")
        for i in (0, 2):
            a(f"v_pk_add_f32 {vr(T+i,2)}, {vr(T+i,2)}, 1.0 op_sel_hi:[1,0]")
        for i in range(4):
            a(f"v_rcp_f32 v{T+i}, v{T+i}")
        for i in (0, 2):
            a(f"v_pk_mul_f32 {vr(d+i,2)}, {vr(d+i,2)}, {vr(T+i,2)}")
        a(f"v_cvt_pk_bf16_f32 v{o}, v{d}, v{d+1}")
        a(f"v_cvt_pk_bf16_f32 v{o+1}, v{d+2}, v{d+3}")

    obs = [X[0] + 12, X[1] + 12]
    for u in range(4):
        o = obs[u >> 1] + 2 * (u & 1)
        gelu_tile(6, u, o)
        a(f"ds_write_b64 v{ex+1}, {vr(o,2)} offset:{u*1024}")
    pair_post(a, 3, PV)
    n_ = 0
    for u in range(4):
        for p in range(3):
            o = obs[n_ & 1]
            n_ += 1
            for tt in range(2):
                gelu_tile(2 * p + tt, u, o + 2 * tt)
            a(f"v_permlane16_swap_b32 v{o}, v{o+2}")
            a(f"v_permlane16_swap_b32 v{o+1}, v{o+3}")
            a(f"buffer_store_dwordx4 {vr(o,4)}, v{vo}, s[16:19], s{76+u} offen offset:{1024*p} sc1")
        if u == 0:
            pair_wait(a, "P3", 3, 2, PV)
            for uu in range(2):
                a(f"ds_read_b128 {vr(accr(6,uu),4)}, v{ex} offset:{uu*1024}")
        if u == 1:
            a("s_waitcnt lgkmcnt(0)")
            for uu in range(2):
                o = accr(6, uu)
                a(f"v_permlane16_swap_b32 v{o}, v{o+2}")
                a(f"v_permlane16_swap_b32 v{o+1}, v{o+3}")
                a(f"buffer_store_dwordx4 {vr(o,4)}, v{vo}, s[16:19], s{80+uu} offen sc1")
    stamp(a, "c", "p3_stored")
    finish_phase(a, 3, g, acc)


def main():
    out = sys.argv[1]
    a = Asm()
    name = NAME + "_kernel"
    a.raw(f".globl {name}\n.p2align 8\n.type {name},@function\n{name}:")
    a("s_cmp_ge_u32 s2, 256\ns_cbranch_scc1 KEND")
    a("s_load_dwordx16 s[48:63], s[0:1], 0")
    a("s_load_dwordx4 s[64:67], s[0:1], 64")
    a("s_load_dwordx2 s[68:69], s[0:1], 80")
    a("v_lshrrev_b32 v1, 6, v0")
    a("s_and_b32 s3, s2, 7")
    a("s_lshr_b32 s7, s2, 3")
    a("v_readfirstlane_b32 s6, v1")
    a("s_and_b32 s70, s3, 1")
    a("s_lshl_b32 s70, s70, 3")
    a("s_and_b32 s4, s7, 7")
    a("s_add_u32 s70, s70, s4")
    a("s_lshr_b32 s71, s3, 1")
    a("s_lshr_b32 s4, s7, 3")
    a("s_lshl_b32 s71, s71, 2")
    a("s_add_u32 s71, s71, s4")
    a("s_and_b32 s72, s7, 15")
    a("s_lshl_b32 s73, s3, 1")
    a("s_lshr_b32 s4, s7, 4")
    a("s_add_u32 s73, s73, s4")
    a("v_and_b32 v1, 63, v0")
    a(f"v_and_b32 v{L15}, 15, v0")
    a(f"v_lshrrev_b32 v{GQ}, 4, v1")
    a("s_waitcnt lgkmcnt(0)")
    a("s_cmp_ge_u32 s6, 4")
    a("s_cbranch_scc1 LOADER")
    stamp(a, "c", "start")
    gen_p0(a)
    gen_p0t(a)
    gen_p1(a)
    gen_p24(a, 2)
    gen_p3(a)
    gen_p24(a, 4)
    stamp_flush(a, 0)
    a("KEND:")
    a("s_endpgm")
    gen_loader(a)
    vg = 256 if (OPT["stamp"] or OPT["dbgt"]) else 240
    print(DBG)
    a.raw(f'.section .rodata,"a"\n.p2align 6\n.amdhsa_kernel {name}\n'
          f"  .amdhsa_next_free_vgpr {vg}\n  .amdhsa_next_free_sgpr 102\n  .amdhsa_accum_offset {(vg+3)//4*4}\n"
          "  .amdhsa_group_segment_fixed_size 0\n  .amdhsa_kernarg_size 88\n  .amdhsa_user_sgpr_count 2\n"
          "  .amdhsa_user_sgpr_kernarg_segment_ptr 1\n  .amdhsa_system_sgpr_workgroup_id_x 1\n"
          "  .amdhsa_float_denorm_mode_32 3\n"
          ".end_amdhsa_kernel\n")
    head = open("header.txt").read()
    head += f"; @launch grid=(256,1,1) block=(512,1,1) lds={LDS_TOTAL}\n"
    head += '.amdgcn_target "amdgcn-amd-amdhsa--gfx950"\n.text\n'
    open(out, "w").write(head + a.text())
    if OPT["stamp"]:
        import json
        json.dump(STAMPS, open(out + ".stamps.json", "w"))
    print("generated", out, "nops:", a.nops, "lds", LDS_TOTAL)


main()
```

```python
import sys, struct, math
from asmx import Asm, Regs, vr, sr

NAME = "sequential_preLN__sliding_local_dilated__dense_activation_gelu__prompt"
S, D, F = 2048, 1024, 3584
OPT = dict(stamp=0, map1=1, map3=1, sleep=1, prio=0, nt1=0, seg=2, warm=1, wr1=2, wr2=2, wr3=3, wg=7, touch1=1, dbgt=0, ctouch=1, ost=1, spin=0)
for a_ in sys.argv[2:]:
    k_, v_ = a_.split("=")
    assert k_ in OPT, k_
    OPT[k_] = int(v_)
WS_O, WS_H, WS_H1 = 4 << 20, 8 << 20, 12 << 20
WS_ST, WS_CS, WS_FL = 28 << 20, 29 << 20, 30 << 20
WS_ST1, WS_CS1 = 0, 1 << 20
FL_CS3, FL_CS1 = WS_FL + 32768, WS_FL + 40960
WS_FD = WS_FL + 65536
SLOT = 49152
LDS_X = 3 * SLOT
L_PAIR = LDS_X
L_CNT = LDS_X + 16
L_NONCE = LDS_X + 32
L_P0 = LDS_X + 64
L_ROW = LDS_X + 256
L_RS = L_ROW + 2048
L_NM = L_RS + 1024
L_CS = L_NM + 1024
L_B1 = L_CS + 1024
L_SC = L_B1 + 1024
L_SS = L_SC + 4096
LDS_TOTAL = L_SS + 4096
PX, PWQKV, PWO, PW1, PB1, PW2, PB2, POUT, PDBG, PWS = 48, 50, 52, 56, 58, 60, 62, 64, 66, 68
NONCE = 74
RES, BIA = 216, 232
BIG = "0x7ffffff0"


def f2u(x):
    return struct.unpack("<I", struct.pack("<f", x))[0]


def hexf(x):
    return "0x%08x" % f2u(x)


def srd(a, d, base, off, nbytes):
    if off:
        a(f"s_add_u32 s{d}, s{base}, {off}")
        a(f"s_addc_u32 s{d+1}, s{base+1}, 0")
    else:
        a(f"s_mov_b32 s{d}, s{base}")
        a(f"s_mov_b32 s{d+1}, s{base+1}")
    a(f"s_mov_b32 s{d+2}, {nbytes}")
    a(f"s_mov_b32 s{d+3}, 0x20000")


def round_bf16(a, v):
    a(f"v_cvt_pk_bf16_f32 v{v}, v{v}, v{v}")
    a(f"v_lshlrev_b32 v{v}, 16, v{v}")


def xrow_reduce_multi(a, op, vs, ts):
    for sw in ("v_permlane16_swap_b32", "v_permlane32_swap_b32"):
        for v, t in zip(vs, ts):
            a(f"v_mov_b32 v{t}, v{v}")
        for v, t in zip(vs, ts):
            a(f"{sw} v{v}, v{t}")
        for v, t in zip(vs, ts):
            a(f"{op} v{v}, v{v}, v{t}")


def wave_sum_multi(a, vs, ts):
    for p in ("quad_perm:[1,0,3,2]", "quad_perm:[2,3,0,1]", "row_half_mirror", "row_mirror"):
        for v in vs:
            a(f"v_add_f32_dpp v{v}, v{v}, v{v} {p} row_mask:0xf bank_mask:0xf")
    xrow_reduce_multi(a, "v_add_f32", vs, ts)


def ln_finish(a, mean, var, out):
    round_bf16(a, mean)
    round_bf16(a, var)
    a(f"v_add_f32 v{var}, {hexf(1e-5)}, v{var}")
    round_bf16(a, var)
    a(f"v_sqrt_f32 v{var}, v{var}")
    round_bf16(a, var)
    a(f"v_rcp_f32 v{out}, v{var}")
    a(f"v_mul_f32 v{out+1}, v{mean}, v{out}")
    a(f"v_sub_f32 v{out+1}, 0, v{out+1}")


STAMPS = {"c": [], "l": []}


DBG = []


def stamp(a, role, name):
    if OPT["dbgt"] and role == "c" and name not in ("start", "p0_done") and not name.endswith("stored") or (OPT["dbgt"] and name == "p4_stored"):
        if name not in DBG:
            DBG.append(name)
        a("s_memrealtime s[100:101]")
        a("s_waitcnt lgkmcnt(0)")
        a(f"v_writelane_b32 v250, s100, {DBG.index(name)}")
        if name == "p4_stored":
            a("s_cmp_lg_u32 s6, 0")
            a("s_cbranch_scc1 DBG_e")
            a("v_mov_b32 v249, s100")
            a("v_mov_b32 v251, 0")
            a("s_mov_b64 exec, 1")
            a(f"global_atomic_umax v251, v249, s[{PDBG}:{PDBG+1}] offset:60")
            a("s_mov_b64 exec, 0xfff")
            a(f"s_cmp_lg_u32 s2, {OPT['dbgt']-1}")
            a("s_cbranch_scc1 DBG_e")
            a("v_lshlrev_b32 v251, 2, v1")
            a(f"global_store_dword v251, v250, s[{PDBG}:{PDBG+1}] offset:8")
            a("DBG_e:")
            a("s_mov_b64 exec, -1")
    if not OPT["stamp"]:
        return
    if name in STAMPS[role]:
        i = STAMPS[role].index(name)
    else:
        i = len(STAMPS[role])
        STAMPS[role].append(name)
    a("s_memtime s[100:101]")
    a("s_waitcnt lgkmcnt(0)")
    a(f"v_writelane_b32 v254, s100, {i}")
    a("s_memrealtime s[100:101]")
    a("s_waitcnt lgkmcnt(0)")
    a(f"v_writelane_b32 v255, s100, {i}")


def stamp_flush(a, wavereg_off):
    if not OPT["stamp"]:
        return
    a("v_lshlrev_b32 v2, 2, v1")
    a("s_lshl_b32 s100, s2, 3")
    a(f"s_add_u32 s100, s100, s6")
    a(f"s_add_u32 s100, s100, {wavereg_off}")
    a("s_lshl_b32 s100, s100, 9")
    a(f"s_add_u32 s100, s100, {32<<20}")
    a("v_add_u32 v2, s100, v2")
    a(f"global_store_dword v2, v254, s[{PWS}:{PWS+1}]")
    a(f"global_store_dword v2, v255, s[{PWS}:{PWS+1}] offset:256")
    if OPT["stamp"] == 2:
        a(f"v_add_u32 v2, {8<<20}, v2")
        a(f"global_store_dword v2, v252, s[{PWS}:{PWS+1}]")
        a(f"global_store_dword v2, v253, s[{PWS}:{PWS+1}] offset:256")


class G:
    pass


def phase_cfgs():
    P = {}
    g = G(); P[1] = g
    g.n, g.KS, g.nst, g.B448 = 1, 64, 16, False
    g.nA, g.nB, g.strideB, g.Boff, g.KT = 18, 24, 6144, 24576, 0
    g.A = (PX, 0, S * D * 2); g.B = (PWQKV, 0, D * 3 * D * 2); g.map = OPT["map1"]
    g = G(); P[2] = g
    g.n, g.KS, g.nst, g.B448 = 2, 128, 8, False
    g.nA, g.nB, g.strideB, g.Boff, g.KT = 32, 16, 2048, 32768, 32
    g.A = (PWS, WS_O, S * D * 2); g.B = (PWO, 0, D * D * 2); g.map = 0
    g = G(); P[3] = g
    g.n, g.KS, g.nst, g.B448 = 3, 64, 16, True
    g.nA, g.nB, g.strideB, g.Boff, g.KT = 16, 32, 7168, 16384, 32
    g.A = (PWS, WS_H, S * D * 2); g.B = (PW1, 0, D * F * 2); g.map = OPT["map3"]
    g = G(); P[4] = g
    g.n, g.KS, g.nst, g.B448 = 4, 128, 28, False
    g.nA, g.nB, g.strideB, g.Boff, g.KT = 32, 16, 2048, 32768, 112
    g.A = (PWS, WS_H1, S * F * 2); g.B = (PW2, 0, F * D * 2); g.map = 0
    s = 0
    for p in (1, 2, 3, 4):
        P[p].slot0 = s % 3
        s += P[p].nst
        P[p].mj = (72, 73) if P[p].map else (70, 71)
        P[p].exch = ((s - 1) % 3) * SLOT
    return P


PH = phase_cfgs()


def interleave(a, mf, fillers, first=None):
    n = len(mf)
    fl = list(fillers)
    k = len(fl)
    gaps = list(range(1, n)) if first is not None else list(range(n))
    assert k <= 2 * len(gaps), (k, len(gaps))
    two = max(0, k - len(gaps))
    idx = 0
    cnt = {}
    for gi, g in enumerate(gaps):
        c = 0
        if idx < k:
            c = 2 if gi < two else 1
        cnt[g] = min(c, k - idx)
        idx += cnt[g]
    idx = 0
    for i in range(n):
        a(mf[i])
        if i == 0 and first is not None:
            for f in first:
                a(f)
        for _ in range(cnt.get(i, 0)):
            a(fl[idx])
            idx += 1
    assert idx == k


def nonce_load(a, vt):
    a(f"v_mov_b32 v{vt}, 0")
    a(f"global_load_dwordx2 v[{vt+2}:{vt+3}], v{vt}, s[{PDBG}:{PDBG+1}] sc1")


def nonce_check(a, lab, vt):
    a("s_mov_b32 s3, 0x40000")
    a(f"{lab}_nl:")
    a(f"v_readfirstlane_b32 s{NONCE}, v{vt+2}")
    a(f"v_readfirstlane_b32 s{NONCE+1}, v{vt+3}")
    a(f"s_cmp_lg_u32 s{NONCE}, 0")
    a(f"s_cbranch_scc1 {lab}_nd")
    a(f"global_load_dwordx2 v[{vt+2}:{vt+3}], v{vt}, s[{PDBG}:{PDBG+1}] sc1")
    a("s_waitcnt vmcnt(0)")
    a("s_sub_u32 s3, s3, 1")
    a("s_cmp_lg_u32 s3, 0")
    a(f"s_cbranch_scc1 {lab}_nl")
    a(f"{lab}_nd:")


def signal(a, off_sgpr, vt):
    a(f"v_mov_b32 v{vt}, s{off_sgpr}")
    a(f"v_mov_b32 v{vt+2}, s{NONCE}")
    a(f"v_mov_b32 v{vt+3}, s{NONCE+1}")
    a("s_mov_b64 exec, 1")
    a(f"global_store_dwordx2 v{vt}, v[{vt+2}:{vt+3}], s[{PWS}:{PWS+1}] sc1")
    a("s_mov_b64 exec, -1")


def flag_off(a, d, base, hi, lo):
    a(f"s_lshl_b32 s{d}, s{lo}, 2")
    a(f"s_add_u32 s{d}, s{d}, s6")
    a(f"s_lshl_b32 s{d}, s{d}, 3")
    a(f"s_lshl_b32 s3, s{hi}, 9")
    a(f"s_add_u32 s{d}, s{d}, s3")
    a(f"s_add_u32 s{d}, s{d}, {base}")


def poll_loads(a, vaddrs, vt):
    for i, v in enumerate(vaddrs):
        a(f"global_load_dwordx2 v[{vt+2*i}:{vt+2*i+1}], v{v}, s[{PWS}:{PWS+1}] sc1")


def poll_check(a, lab, vaddrs, vt):
    a("s_mov_b32 s3, 0x40000")
    a(f"{lab}_pl:")
    a(f"v_cmp_eq_u64 vcc, s[{NONCE}:{NONCE+1}], v[{vt}:{vt+1}]")
    for i in range(1, len(vaddrs)):
        a(f"v_cmp_eq_u64 s[34:35], s[{NONCE}:{NONCE+1}], v[{vt+2*i}:{vt+2*i+1}]")
        a("s_and_b64 vcc, vcc, s[34:35]")
    a("s_cmp_eq_u64 vcc, -1")
    a(f"s_cbranch_scc1 {lab}_pd")
    if OPT["sleep"]:
        a(f"s_sleep {OPT['sleep']}")
    poll_loads(a, vaddrs, vt)
    a("s_waitcnt vmcnt(0)")
    a("s_sub_u32 s3, s3, 1")
    a("s_cmp_lg_u32 s3, 0")
    a(f"s_cbranch_scc1 {lab}_pl")
    a(f"{lab}_pd:")


def ld_offsets_A(a, g, vA):
    m, j = g.mj
    if g.KT:
        a(f"s_lshl_b32 s7, s{m}, 3")
        a("s_add_u32 s7, s7, s6")
        a(f"s_mul_i32 s7, s7, {g.KT*1024}")
        a(f"v_lshlrev_b32 v{vA}, 4, v1")
        a(f"v_add_u32 v{vA}, s7, v{vA}")
        a(f"v_add_u32 v{vA+1}, {4*g.KT*1024}, v{vA}")
        return
    a("s_and_b32 s3, s6, 1")
    a("s_lshl_b32 s7, s3, 2")
    a("v_lshrrev_b32 v4, 4, v1")
    a("v_or_b32 v4, s7, v4")
    a("v_xor_b32 v4, v3, v4")
    a("v_lshlrev_b32 v4, 4, v4")
    a(f"s_lshl_b32 s7, s{m}, 7")
    a("s_lshl_b32 s34, s6, 3")
    a("s_add_u32 s7, s7, s34")
    a("s_sub_u32 s7, s7, 16")
    for q in range(5):
        a("v_add_u32 v5, s7, v2")
        if q:
            a(f"v_add_u32 v5, {32*q}, v5")
        else:
            a("v_max_i32 v5, 0, v5")
        a(f"v_lshl_add_u32 v{vA+q}, v5, 11, v4")


def ld_offsets_B(a, g, vB):
    m, j = g.mj
    nBq = g.nB // 4
    if g.B448:
        a("v_lshrrev_b32 v5, 5, v1")
        a("s_lshl_b32 s7, s6, 1")
        a("v_add_u32 v5, s7, v5")
        a("v_and_b32 v6, 3, v5")
        a("v_lshlrev_b32 v6, 1, v6")
        a("v_and_b32 v7, 31, v1")
        a("v_xor_b32 v6, v6, v7")
        a("v_mul_u32_u24 v5, 7168, v5")
        a(f"s_mul_i32 s35, s{j}, 448")
        a("s_andn2_b32 s35, s35, 127")
        a("v_add_u32 v5, s35, v5")
        for q in range(nBq):
            if q < 2:
                if q:
                    a("v_xor_b32 v6, 8, v6")
                a(f"v_lshl_add_u32 v{vB+q}, v6, 4, v5")
                if q:
                    a(f"v_add_u32 v{vB+q}, {8*7168}, v{vB+q}")
            else:
                a(f"v_add_u32 v{vB+q}, {16*7168}, v{vB+q-2}")
    else:
        a("v_bfe_u32 v5, v1, 4, 1")
        a("s_and_b32 s7, s6, 1")
        a("s_lshl_b32 s7, s7, 1")
        a("v_or_b32 v5, s7, v5")
        a("v_lshlrev_b32 v5, 1, v5")
        a("v_xor_b32 v5, v3, v5")
        a("v_lshlrev_b32 v5, 4, v5")
        a(f"s_lshl_b32 s7, s{j}, 7")
        a("v_add_u32 v5, s7, v5")
        a("s_lshl_b32 s7, s6, 3")
        a("v_add_u32 v6, s7, v2")
        a(f"v_mul_u32_u24 v6, {g.strideB}, v6")
        a("v_add_u32 v5, v5, v6")
        for q in range(nBq):
            if g.n == 1:
                off = (q >> 1) * 2048 + (q & 1) * 32 * g.strideB
            else:
                off = q * 32 * g.strideB
            a(f"v_add_u32 v{vB+q}, {off}, v5")


def rot_start(a, g, d):
    m, j = g.mj
    if g.map:
        assert g.nst == 16
        a(f"s_mov_b32 s{d}, s{m}")
    else:
        a(f"s_and_b32 s{d}, s{m}, 7")
        if g.nst == 16:
            a(f"s_lshl_b32 s{d}, s{d}, 1")
        elif g.nst == 28:
            a(f"s_mul_i32 s{d}, s{d}, 7")
            a(f"s_lshr_b32 s{d}, s{d}, 1")


RDY, TMO, PF = 94, 96, 40
LAB = [0]


def poll_once(a):
    a("s_mov_b64 exec, 0xffff")
    a(f"global_load_dwordx2 v[{PF+2}:{PF+3}], v{PF}, s[{PWS}:{PWS+1}] sc1")
    a(f"s_sub_u32 s{TMO}, s{TMO}, 1")
    a("s_waitcnt vmcnt(0)")
    a(f"v_cmp_eq_u64 s[{RDY}:{RDY+1}], s[{NONCE}:{NONCE+1}], v[{PF+2}:{PF+3}]")
    a("s_mov_b64 exec, -1")
    a(f"s_cmp_eq_u32 s{TMO}, 0")
    a(f"s_cselect_b32 s{RDY}, 0xffff, s{RDY}")
    a(f"s_cselect_b32 s{TMO}, 1, s{TMO}")


class Stream:
    def __init__(self, g, isA, srd_, vbase, so, st, lb, sl, of, cur=None):
        self.g, self.isA, self.srd, self.v = g, isA, srd_, vbase
        self.so, self.st, self.lb, self.sl, self.of = so, st, lb, sl, of
        self.cur = cur
        self.frag = isA and g.KT
        self.seg = OPT["seg"] and g.KS == 128
        if self.frag:
            self.step = g.KS * 32
            self.per = g.KS // 32
        else:
            self.step = g.KS * 2 if isA else g.KS * g.strideB

    def seg_so(self, a):
        a(f"s_add_u32 s7, s{self.st}, s{self.of}")
        a("s_and_b32 s7, s7, 3")
        a(f"s_andn2_b32 s{self.so}, s{self.st}, 3")
        a(f"s_add_u32 s{self.so}, s{self.so}, s7")
        if self.cur:
            a(f"s_mov_b32 s{self.cur}, s{self.so}")
        a(f"s_mul_i32 s{self.so}, s{self.so}, {self.step}")

    def init(self, a):
        g = self.g
        m, j = g.mj
        if self.seg:
            a(f"s_and_b32 s{self.st}, s{m}, 7")
            a(f"s_mul_i32 s{self.st}, s{self.st}, {g.nst // 4}")
            a(f"s_lshr_b32 s{self.st}, s{self.st}, 3")
            a(f"s_lshl_b32 s{self.st}, s{self.st}, 2")
            if OPT["seg"] == 2 and g.n == 4:
                a(f"s_mov_b32 s{self.st}, 0")
            a(f"s_add_u32 s{self.of}, s{m}, s{j}")
            self.seg_so(a)
        else:
            rot_start(a, g, self.st)
            a(f"s_mul_i32 s{self.so}, s{self.st}, {self.step}")
        a(f"s_mul_i32 s{self.lb}, s6, {1024*self.per if self.frag else 1024}")
        off = g.slot0 * SLOT + (0 if self.isA else g.Boff)
        if off:
            a(f"s_add_u32 s{self.lb}, s{self.lb}, {off}")
        a(f"s_mov_b32 s{self.sl}, {g.slot0}")

    def need(self, a, ok):
        g = self.g
        cur = self.cur if self.seg else self.st
        a(f"s_cmp_eq_u32 s{RDY}, 0xffff")
        a(f"s_cbranch_scc1 {ok}")
        if g.n == 2:
            a(f"s_lshl_b32 s3, s{cur}, 1")
            a("s_lshl_b32 s34, 3, s3")
        elif g.n == 3:
            a(f"s_lshl_b32 s34, 1, s{cur}")
        else:
            a(f"s_mul_i32 s3, s{cur}, {4*9363}")
            a(f"s_add_u32 s7, s3, {3*9363}")
            a("s_lshr_b32 s3, s3, 16")
            a("s_lshr_b32 s7, s7, 16")
            a("s_lshl_b32 s34, 1, s3")
            a("s_bitset1_b32 s34, s7")
        a(f"s_andn2_b32 s3, s34, s{RDY}")
        a(f"s_cbranch_scc0 {ok}")

    def wait_ready(self, a):
        if not self.frag:
            return
        LAB[0] += 1
        L = f"WR{LAB[0]}"
        self.need(a, f"{L}_ok")
        a(f"{L}_t:")
        poll_once(a)
        a(f"s_andn2_b32 s3, s34, s{RDY}")
        a(f"s_cbranch_scc0 {L}_ok")
        if OPT["sleep"]:
            a(f"s_sleep {OPT['sleep']}")
        a(f"s_branch {L}_t")
        a(f"{L}_ok:")

    def loads(self, n, nt=False):
        out = []
        if self.frag:
            for q in range(n):
                u, k = q // self.per, q % self.per
                out.append((f"s_add_u32 m0, s{self.lb}, {u*4096*self.per}",
                            f"buffer_load_dwordx4 v{self.v+u}, s[{self.srd}:{self.srd+3}], s{self.so} offen offset:{k*1024} sc1 lds"))
            return out
        return [(f"s_add_u32 m0, s{self.lb}, {q*4096}",
                 f"buffer_load_dwordx4 v{self.v+q}, s[{self.srd}:{self.srd+3}], s{self.so} offen {'nt ' if (nt and not self.isA) else ''}lds") for q in range(n)]

    def advance(self, a):
        if not self.seg:
            a(f"s_add_u32 s{self.so}, s{self.so}, {self.step}")
        a(f"s_add_u32 s{self.st}, s{self.st}, 1")
        a(f"s_cmp_eq_u32 s{self.st}, {self.g.nst}")
        a(f"s_cselect_b32 s{self.st}, 0, s{self.st}")
        if self.seg:
            self.seg_so(a)
        else:
            a(f"s_cselect_b32 s{self.so}, 0, s{self.so}")
        a(f"s_add_u32 s{self.lb}, s{self.lb}, {SLOT}")
        a(f"s_add_u32 s{self.sl}, s{self.sl}, 1")
        a(f"s_cmp_eq_u32 s{self.sl}, 3")
        a(f"s_cselect_b32 s7, {3*SLOT}, 0")
        a(f"s_cselect_b32 s{self.sl}, 0, s{self.sl}")
        a(f"s_sub_u32 s{self.lb}, s{self.lb}, s7")


class Rec:
    def __init__(self):
        self.g = []
        self.open = False

    def __call__(self, t):
        if self.open:
            self.g[-1].append(t)
        else:
            self.g.append([t])

    def begin(self):
        self.g.append([])
        self.open = True

    def end(self):
        self.open = False


def issue(a, items, nt=False, fill=None, ready=True):
    if ready:
        for (s_, n) in items:
            s_.wait_ready(a)
    ls = [s.loads(n, nt) for (s, n) in items]
    seq = []
    for q in range(max(len(x) for x in ls)):
        for x in ls:
            if q < len(x):
                seq.append(x[q])
    fill = list(fill or [])
    per = -(-len(fill) // max(1, len(seq) - 1)) if fill else 0
    last = None
    for k, (m0, ld) in enumerate(seq):
        if m0 != last:
            a(m0)
            last = m0
        a(ld)
        for _ in range(per):
            if fill:
                for t in fill.pop(0):
                    a(t)
    for grp in fill:
        for t in grp:
            a(t)
    for (s, n) in items:
        s.advance(a)


ACC, WF, ONE, AD, TB, TT, VT = 64, 96, 128, 132, 133, 134, 32
A_CSS, A_CS3, A_ST, A_GA, A_GB, TID = 136, 137, 138, 139, 156, 157
ST = 140
AD2 = 158
A_SC = 166
SG = 160
PA = 168


def fold_setup(a, g):
    m, j = g.mj
    p1 = g.n == 1
    nsh = 16 if g.map else 8
    ncol = 3 * D if p1 else F
    wscs, flcs = (WS_CS1, FL_CS1) if p1 else (WS_CS, FL_CS3)
    row = 512 if g.B448 else 128
    a(f"v_and_b32 v{TT}, 15, v1")
    a(f"v_lshrrev_b32 v{AD}, 2, v{TT}")
    a(f"v_lshrrev_b32 v{TB}, 4, v1")
    a(f"v_lshl_add_u32 v{AD}, v{TB}, 3, v{AD}")
    a(f"v_mul_u32_u24 v{AD}, {row}, v{AD}")
    a(f"v_and_b32 v{TT}, 3, v1")
    a(f"v_lshl_add_u32 v{AD}, v{TT}, 3, v{AD}")
    a(f"v_and_b32 v{TB}, 1, v{TB}")
    if g.B448:
        a(f"v_bfe_u32 v{TT}, v1, 2, 2")
        a(f"v_lshl_or_b32 v{TB}, v{TB}, 2, v{TT}")
        a(f"s_and_b32 s3, s{j}, 1")
        a("s_lshl_b32 s3, s3, 1")
        a("s_add_u32 s3, s3, s6")
        a(f"v_add_u32 v{AD}, {g.slot0*SLOT + g.Boff}, v{AD}")
        a("s_add_u32 s7, s3, 4")
        a(f"v_xor_b32 v{TT}, s7, v{TB}")
        a(f"v_lshl_add_u32 v{AD2}, v{TT}, 5, v{AD}")
        a(f"v_xor_b32 v{TT}, s3, v{TB}")
        a(f"v_lshl_add_u32 v{AD}, v{TT}, 5, v{AD}")
    else:
        a(f"v_bfe_u32 v{TT}, v1, 3, 1")
        a(f"v_lshl_or_b32 v{TB}, v{TB}, 1, v{TT}")
        a(f"v_xor_b32 v{TB}, s6, v{TB}")
        a(f"v_lshl_add_u32 v{AD}, v{TB}, 5, v{AD}")
        a(f"v_add_u32 v{AD}, {g.slot0*SLOT + g.Boff}, v{AD}")
    d = SLOT if g.slot0 < 2 else -2 * SLOT
    a(f"v_add_u32 v{AD+3}, {d & 0xffffffff}, v{AD}")
    if g.B448:
        a(f"v_add_u32 v{AD2+1}, {d & 0xffffffff}, v{AD2}")
    for i in range(4):
        a(f"v_mov_b32 v{ONE+i}, 0x3f803f80")
    for i in range(16):
        a(f"v_mov_b32 v{ACC+i}, 0")
    srd(a, 24, PWS, wscs, 16 * ncol * 4)
    if p1:
        srd(a, 28, PWS, WS_ST1, S * 8)
    else:
        srd(a, 28, PWS, WS_ST, 16 * S * 8)
        srd(a, 76, PB1, 0, F * 2)
    a(f"v_lshrrev_b32 v{TT}, 4, v1")
    a(f"v_lshlrev_b32 v{TT}, 4, v{TT}")
    a(f"s_mul_i32 s3, s{m}, {ncol*4}")
    a(f"s_mul_i32 s7, s{j}, {256 if p1 else 896}")
    a("s_add_u32 s3, s3, s7")
    a("s_lshl_b32 s7, s6, 6")
    a("s_add_u32 s3, s3, s7")
    a(f"v_add_u32 v{TT}, s3, v{TT}")
    a(f"v_and_b32 v{TB}, 15, v1")
    a(f"v_cmp_eq_u32 vcc, 0, v{TB}")
    a(f"v_mov_b32 v{TB}, {BIG}")
    a(f"v_cndmask_b32 v{A_CSS}, v{TB}, v{TT}, vcc")
    a("s_lshl_b32 s3, s6, 6")
    a(f"v_add_u32 v{TID}, s3, v1")
    if p1:
        a("s_mov_b32 s80, 4096")
        a("s_mov_b32 s81, 8192")
        a(f"s_lshl_b32 s3, s{m}, 10")
        a(f"s_lshl_b32 s7, s{j}, 6")
        a("s_add_u32 s3, s3, s7")
        a("s_lshl_b32 s7, s6, 4")
        a("s_add_u32 s3, s3, s7")
        a(f"v_mov_b32 v{TT}, s3")
        a("v_cmp_eq_u32 vcc, 0, v1")
        a(f"v_cndmask_b32 v{A_ST}, v{TB}, v{TT}, vcc")
        a("v_cmp_gt_u32 vcc, 48, v1")
        a(f"v_lshrrev_b32 v{TT}, 4, v1")
        a(f"v_lshlrev_b32 v{TT}, 12, v{TT}")
        a(f"v_and_b32 v{A_GA}, 15, v1")
        a(f"v_lshl_add_u32 v{TT}, v{A_GA}, 4, v{TT}")
        a(f"s_lshl_b32 s3, s{j}, 8")
        a(f"v_add_u32 v{TT}, s3, v{TT}")
        a(f"v_cndmask_b32 v{A_GA}, v{TB}, v{TT}, vcc")
        a(f"s_lshl_b32 s3, s{m}, 7")
        a("s_sub_u32 s3, s3, 16")
        a(f"v_add_u32 v{TT}, s3, v{TID}")
        a(f"v_max_i32 v{TT}, 0, v{TT}")
        a(f"v_lshlrev_b32 v{TT}, 3, v{TT}")
        a(f"v_cmp_gt_u32 vcc, 144, v{TID}")
        a(f"v_cndmask_b32 v{A_GB}, v{TB}, v{TT}, vcc")
    else:
        a("s_cmp_ge_u32 s6, 2")
        a(f"s_cselect_b32 s3, {BIG}, 0")
        a(f"v_max_u32 v{A_CS3}, s3, v{A_CSS}")
        a(f"v_lshlrev_b32 v{A_ST}, 4, v1")
        a(f"s_lshl_b32 s3, s{m}, 10")
        a("s_lshl_b32 s7, s6, 16")
        a("s_add_u32 s3, s3, s7")
        a(f"v_add_u32 v{A_ST}, s3, v{A_ST}")
        a("v_cmp_gt_u32 vcc, 56, v1")
        a(f"v_lshlrev_b32 v{TT}, 4, v1")
        a(f"s_mul_i32 s3, s{j}, 896")
        a(f"v_add_u32 v{TT}, s3, v{TT}")
        a(f"v_cndmask_b32 v{A_GA}, v{TB}, v{TT}, vcc")
        a(f"v_cmp_gt_u32 vcc, 224, v{TID}")
        a(f"v_lshlrev_b32 v{TT}, 1, v{TID}")
        a(f"s_mul_i32 s3, s{j}, 448")
        a(f"v_add_u32 v{TT}, s3, v{TT}")
        a(f"v_cndmask_b32 v{A_GB}, v{TB}, v{TT}, vcc")
    if nsh == 8:
        a(f"s_and_b32 s82, s{m}, 8")
        a(f"s_mul_i32 s82, s82, {ncol*4}")
    else:
        a("s_mov_b32 s82, 0")
    a(f"s_mul_i32 s3, s6, {(nsh // 4) * ncol * 4}")
    a("s_add_u32 s82, s82, s3")
    a(f"v_lshlrev_b32 v{A_SC}, 4, v1")
    a("s_lshl_b32 s3, s6, 10")
    a(f"s_add_u32 s3, s3, {L_SC}")
    a(f"v_add_u32 v{A_SC}, s3, v{A_SC}")
    srd(a, 84, PWS, WS_FL, 65536)
    a("v_cmp_eq_u32 vcc, 0, v1")
    flag_off(a, 7, flcs - WS_FL, j, m)
    a(f"v_mov_b32 v{TT}, s7")
    a(f"v_cndmask_b32 v{SG}, v{TB}, v{TT}, vcc")
    if p1:
        flag_off(a, 7, 0, m, j)
        a(f"v_mov_b32 v{TT}, s7")
        a(f"v_cndmask_b32 v{SG+4}, v{TB}, v{TT}, vcc")
    else:
        a(f"v_mov_b32 v{SG+2}, s{NONCE}")
        a(f"v_mov_b32 v{SG+3}, s{NONCE+1}")
    a(f"v_lshlrev_b32 v{PA}, 3, v1")
    a(f"s_lshl_b32 s3, s{j}, 9")
    a(f"s_add_u32 s3, s3, {flcs}")
    if p1:
        a(f"s_lshl_b32 s7, s{m}, 9")
        a(f"s_add_u32 s7, s7, {WS_FL}")
        a(f"v_add_u32 v{PA+1}, s7, v{PA}")
        a(f"v_or_b32 v{PA+2}, 56, v1")
        a(f"v_lshlrev_b32 v{PA+2}, 3, v{PA+2}")
        a(f"s_cmp_eq_u32 s{m}, 0")
        a("s_cselect_b32 s34, 0, 512")
        a("s_sub_u32 s7, s7, s34")
        a(f"v_add_u32 v{PA+2}, s7, v{PA+2}")
    if nsh == 8:
        a(f"v_and_b32 v{PA}, 0xff, v{PA}")
        a(f"s_and_b32 s7, s{m}, 8")
        a("s_lshl_b32 s7, s7, 5")
        a("s_add_u32 s3, s3, s7")
    a(f"v_add_u32 v{PA}, s3, v{PA}")
    if p1:
        a("s_lshl_b32 s3, s6, 4")
        a(f"s_add_u32 s3, s3, {L_P0}")
        a(f"v_mov_b32 v{TB}, s3")
        a(f"v_mov_b32 v{VT}, 0")
        a(f"v_mov_b32 v{VT+1}, {L_NONCE}")


WARM = {"left": [56, 56], "save": None}


def warm(a, n, iters=1):
    if not OPT["warm"]:
        return
    w = 0 if WARM["phase"] == 1 else 1
    n = min(n, WARM["left"][w] // iters)
    if n <= 0:
        return
    WARM["left"][w] -= n * iters
    b = 88 if w else 32
    for i in range(n):
        a(f"s_load_dwordx2 s[{90+2*(i&1)}:{91+2*(i&1)}], s[{b}:{b+1}], {60+128*i}")
    a(f"s_add_u32 s{b}, s{b}, {128*n}")
    a(f"s_addc_u32 s{b+1}, s{b+1}, 0")


def fold_body(a, g, both, c, w1, loop, sfx):
    p1 = g.n == 1
    P = f"LD{g.n}{sfx}"
    nsh = 16 if g.map else 8
    nstg = 1 if g.map else 2
    nu = 3 if p1 else 4
    ncol = 3 * D if p1 else F
    npw = nsh // 4

    def cs_reads(r, ad):
        for h in range(2):
            for i in range(nu):
                for jj in range(2):
                    off = (i * 8192 + jj * 512 + h * 4096) if p1 else ((i >> 1) * 256 + jj * 2048 + h * 16384)
                    v = ad if (p1 or not i & 1) else (AD2 if ad == AD else AD2 + 1)
                    r(f"ds_read_b64_tr_b16 {vr(WF+16*h+4*i+2*jj,2)}, v{v} offset:{off}")
        r("s_waitcnt lgkmcnt(0)")

    def cs_mfma(r):
        for h in range(2):
            for i in range(nu):
                r(f"v_mfma_f32_16x16x32_bf16 {vr(ACC+4*i,4)}, {vr(WF+16*h+4*i,4)}, {vr(ONE,4)}, {vr(ACC+4*i,4)}")

    def f0(r):
        cs_reads(r, AD)
        return 0

    def f1(r):
        n = 0
        if p1:
            r.begin()
            r("s_mov_b64 exec, 1")
            r(f"buffer_store_dwordx4 {vr(ST,4)}, v{A_ST}, s[28:31], 0 offen sc1")
            r(f"global_load_dwordx2 v[{VT+2}:{VT+3}], v{VT}, s[{PDBG}:{PDBG+1}] sc1")
            r("s_mov_b64 exec, -1")
            r.end()
            n = 2
        cs_mfma(r)
        if nstg == 2:
            cs_reads(r, AD + 3)
        return n

    def f2(r):
        cs_mfma(r)
        return 0

    def f3(r):
        for i in range(nu):
            r.begin()
            r("s_mov_b32 exec_lo, 0x10001")
            r("s_mov_b32 exec_hi, 0x10001")
            if p1:
                r(f"buffer_store_dwordx4 {vr(ACC+4*i,4)}, v{A_CSS}, s[24:27], {['0','s80','s81'][i]} offen sc1")
            else:
                r(f"buffer_store_dwordx4 {vr(ACC+4*i,4)}, v{A_CSS if i < 3 else A_CS3}, s[24:27], 0 offen offset:{i*256} sc1")
            r("s_mov_b64 exec, -1")
            r.end()
        return nu

    def post3():
        nonce_check(a, P, VT)
        a(f"v_mov_b32 v{SG+2}, s{NONCE}")
        a(f"v_mov_b32 v{SG+3}, s{NONCE+1}")
        a(f"ds_write_b64 v{VT+1}, {vr(SG+2,2)}")

    def f5(r):
        r.begin()
        r("s_mov_b64 exec, 1")
        r(f"buffer_store_dwordx2 {vr(SG+2,2)}, v{SG}, s[84:85+2], 0 offen sc1".replace("85+2", "87"))
        if p1:
            r(f"buffer_store_dwordx2 {vr(SG+2,2)}, v{SG+4}, s[84:87], 0 offen sc1")
        r("s_mov_b64 exec, -1")
        r.end()
        return 2 if p1 else 1

    def pre_allready():
        a(f"{P}_ar:")
        a(f"s_cmp_eq_u32 s{RDY}, 0xffff")
        a(f"s_cbranch_scc1 {P}_ar2")
        poll_once(a)
        a(f"s_branch {P}_ar")
        a(f"{P}_ar2:")

    def f_stload(r):
        for i in range(4):
            r.begin()
            r(f"s_mov_b32 s3, {i*16384}")
            r(f"buffer_load_dwordx4 {vr(ST+4*i,4)}, v{A_ST}, s[28:31], s3 offen sc1")
            r.end()
        return 4

    def f_st1(r):
        for i in range(8):
            r(f"v_add_f32 v{ST+i}, v{ST+i}, v{ST+8+i}")
        for i in range(4):
            r(f"v_add_f32 v{ST+i}, v{ST+i}, v{ST+4+i}")
        r(f"ds_write_b128 v{A_SC}, {vr(ST,4)} offset:{L_SS-L_SC}")
        r(f"v_and_b32 v{TT}, 127, v{TID}")
        r(f"v_lshlrev_b32 v{TT}, 3, v{TT}")
        r(f"v_add_u32 v{TB}, {L_SS}, v{TT}")
        r(f"v_add_u32 v{TT}, {L_ROW}, v{TT}")
        r("s_waitcnt lgkmcnt(0)")
        return 0

    def f_st2(r):
        r(f"ds_read2st64_b64 {vr(ST,4)}, v{TB} offset0:0 offset1:2")
        r(f"ds_read2st64_b64 {vr(ST+4,4)}, v{TB} offset0:4 offset1:6")
        r("s_waitcnt lgkmcnt(0)")
        for i in range(4):
            r(f"v_add_f32 v{ST+i}, v{ST+i}, v{ST+4+i}")
        r(f"v_add_f32 v{ST}, v{ST}, v{ST+2}")
        r(f"v_add_f32 v{ST+1}, v{ST+1}, v{ST+3}")
        r(f"v_mul_f32 v{ST}, {hexf(1/1024)}, v{ST}")
        r(f"v_mul_f32 v{ST+1}, {hexf(1/1024)}, v{ST+1}")
        r(f"v_fma_f32 v{ST+1}, -v{ST}, v{ST}, v{ST+1}")
        r(f"v_max_f32 v{ST+1}, 0, v{ST+1}")
        ln_finish(r, ST, ST + 1, ST + 2)
        r(f"ds_write_b64 v{TT}, {vr(ST+2,2)}")
        return 0

    addrs = [PA] + ([PA + 1, PA + 2] if p1 else [])

    def f_poll(r):
        poll_loads(r, addrs, PA + 4)
        return len(addrs)

    def post_check():
        poll_check(a, P + "cs", addrs, PA + 4)

    def tail0():
        a("s_mov_b32 s3, s82")
        for i in range(npw):
            a(f"buffer_load_dwordx4 {vr(ACC+4*i,4)}, v{A_GA}, s[24:27], s3 offen sc1")
            if i < npw - 1:
                a(f"s_add_u32 s3, s3, {ncol*4}")
        if p1:
            a(f"buffer_load_dwordx2 {vr(ST,2)}, v{A_GB}, s[28:31], 0 offen sc1")
        else:
            a(f"buffer_load_ushort v{WF}, v{A_GB}, s[76:79], 0 offen")
        a(f"v_lshlrev_b32 v{AD}, 2, v{TID}")
        a(f"v_add_u32 v{TB}, {L_SC}, v{AD}")
        a(f"v_add_u32 v{AD}, {L_RS}, v{AD}")
        a(f"v_lshlrev_b32 v{TT}, 3, v{TID}")
        a(f"v_add_u32 v{TT}, {L_ROW}, v{TT}")

    def tail1():
        a("s_setprio 3")
        k = npw
        while k > 1:
            k //= 2
            for i in range(4 * k):
                a(f"v_add_f32 v{ACC+i}, v{ACC+i}, v{ACC+i+4*k}")
        a(f"ds_write_b128 v{A_SC}, {vr(ACC,4)}")
        a("s_waitcnt lgkmcnt(0)")
        a(f"s_setprio {OPT['prio']}")

    def tail2():
        a(f"ds_read2st64_b32 {vr(ACC,2)}, v{TB} offset0:0 offset1:4")
        a(f"ds_read2st64_b32 {vr(ACC+2,2)}, v{TB} offset0:8 offset1:12")
        if p1:
            a(f"ds_write_b32 v{AD}, v{ST}")
            a(f"ds_write_b32 v{AD}, v{ST+1} offset:{L_NM-L_RS}")
            a(f"ds_write_b64 v{TT}, {vr(ST,2)}")
        else:
            a(f"v_lshlrev_b32 v{WF}, 16, v{WF}")
            a(f"ds_write_b32 v{AD}, v{WF} offset:{L_B1-L_RS}")
        a("s_waitcnt lgkmcnt(0)")
        a(f"v_add_f32 v{ACC}, v{ACC}, v{ACC+1}")
        a(f"v_add_f32 v{ACC+2}, v{ACC+2}, v{ACC+3}")
        a(f"v_add_f32 v{ACC}, v{ACC}, v{ACC+2}")
        a(f"ds_write_b32 v{AD}, v{ACC} offset:{L_CS-L_RS}")
        a("s_waitcnt lgkmcnt(0)")

    fill = {1: f1, 3: f3, 5: f5, 11: f_poll}
    post = {13: post_check}
    pre = {}
    nowarm = {0, 1}
    if nstg == 2:
        fill[2] = f2
    if p1:
        post[3] = post3
        r = Rec()
        a(f"ds_read_b128 {vr(ST,4)}, v{TB}")
        cs_reads(a, AD)
        a(f"s_waitcnt vmcnt({w1})")
        a("s_barrier")
        i = 1
        nowarm = {1} if nstg == 2 else set()
    else:
        fill[0] = f0
        pre[7] = pre_allready
        fill[7] = f_stload
        fill[9] = f_st1
        fill[10] = f_st2
        nowarm |= {8, 9, 10}
        i = 0
    tag = 0
    special = set(fill) | set(post) | set(pre) | nowarm
    while i <= g.nst - 3:
        if i in special:
            if i in pre:
                pre[i]()
            r = Rec()
            x = fill[i](r) if i in fill else 0
            hot = any(t.startswith("v_") for grp in r.g for t in grp)
            if hot:
                a("s_setprio 3")
            issue(a, both, fill=r.g)
            if hot:
                a(f"s_setprio {OPT['prio']}")
            if i in post:
                post[i]()
            if i not in nowarm:
                warm(a, WARM["rate"])
            a(f"s_waitcnt vmcnt({c+x})")
            a("s_barrier")
            i += 1
        else:
            k = i
            while k <= g.nst - 3 and k not in special:
                k += 1
            loop(f"t{tag}", k - i)
            tag += 1
            i = k
    return tail0, tail1, tail2


def code_touch(a, lab0, lab1, vt, vo):
    if not OPT["ctouch"]:
        return
    LAB[0] += 1
    L = f"CT{LAB[0]}"
    a("s_getpc_b64 s[34:35]")
    a(f"{L}:")
    a(f"s_add_u32 s34, s34, {lab0}-{L}")
    a(f"s_addc_u32 s35, s35, ({lab0}-{L})>>32")
    a("s_lshl_b32 s3, s6, 7")
    a(f"v_lshlrev_b32 v{vo}, 9, v1")
    a(f"v_add_u32 v{vo}, s3, v{vo}")
    a(f"v_cmp_gt_u32 vcc, {lab1}-{lab0}, v{vo}")
    a("s_and_saveexec_b64 s[4:5], vcc")
    a(f"s_cbranch_execz {L}_e")
    a(f"global_load_dword v{vt}, v{vo}, s[34:35]")
    a(f"{L}_e:")
    a("s_mov_b64 exec, s[4:5]")


def gen_loader(a):
    a("LOADER:")
    a.hist = []
    a("s_sub_u32 s6, s6, 4")
    if OPT["prio"]:
        a(f"s_setprio {OPT['prio']}")
    a("s_or_b32 s3, s2, s6")
    a("s_cmp_lg_u32 s3, 0")
    a("s_cbranch_scc1 LD_nopub")
    a("s_memrealtime s[34:35]")
    a("v_mov_b32 v2, 0")
    a("s_waitcnt lgkmcnt(0)")
    a("s_or_b32 s34, s34, 1")
    a("v_mov_b32 v4, s34")
    a("v_mov_b32 v5, s35")
    a("s_mov_b64 exec, 1")
    a(f"global_store_dwordx2 v2, v[4:5], s[{PDBG}:{PDBG+1}] sc1")
    a("s_mov_b64 exec, -1")
    a("LD_nopub:")
    stamp(a, "l", "start")
    a("v_lshrrev_b32 v2, 3, v1")
    a("v_and_b32 v3, 7, v1")
    vA, vBs = 8, [16, 24]
    srdB = [12, 16]
    regsB = [(36, 37, 38, 39, 46), (40, 41, 42, 43, 47)]
    regsA = (20, 21, 22, 23, 45, 97)
    SB = {p: Stream(PH[p], False, srdB[p & 1], vBs[p & 1], *regsB[p & 1]) for p in (1, 2, 3, 4)}

    def prepB(p):
        srd(a, SB[p].srd, *PH[p].B)
        ld_offsets_B(a, PH[p], SB[p].v)
        SB[p].init(a)

    prepB(1)
    a("s_lshl_b32 s3, s2, 2")
    a("s_add_u32 s3, s3, s6")
    a("s_mul_i32 s3, s3, 7168")
    a(f"s_add_u32 s88, s{PW2}, s3")
    a(f"s_addc_u32 s89, s{PW2+1}, 0")
    a(f"s_add_u32 s32, s{PW1}, s3")
    a(f"s_addc_u32 s33, s{PW1+1}, 0")
    for p in (1, 2, 3, 4):
        g = PH[p]
        P = f"LD{p}"
        m, j = g.mj
        SA = Stream(g, True, 8, vA, *regsA)
        srd(a, 8, *g.A)
        ld_offsets_A(a, g, vA)
        SA.init(a)
        nBq = g.nB // 4
        nAq = (g.nA + 3) // 4
        if p > 1:
            a(f"s_lshl_b32 s3, s{m}, 11")
            a(f"s_add_u32 s3, s3, {WS_FD + (p-1)*32768}")
            a(f"v_lshlrev_b32 v{PF}, 7, v1")
            a(f"v_add_u32 v{PF}, s3, v{PF}")
            a(f"s_mov_b64 s[{RDY}:{RDY+1}], 0")
            a(f"s_mov_b32 s{TMO}, 0x40000")
            if p < 4:
                prepB(p + 1)
            if p == 3:
                fold_setup(a, g)
            stamp(a, "l", f"p{p}_prepoll")
        variants = [(nAq, "")]
        if g.nA % 4:
            variants = [(nAq, "x"), (nAq - 1, "y")]
            a(f"s_cmp_ge_u32 s6, {g.nA % 4}")
            a(f"s_cbranch_scc1 {P}_y")
        for (na, sfx) in variants:
            if sfx == "y":
                a(f"{P}_y:")
            c = na + nBq
            WARM["phase"], WARM["rate"] = p, OPT[f"wr{p}"] if p < 4 else 0
            if sfx == "x":
                WARM["save"] = list(WARM["left"])
            if sfx == "y":
                WARM["left"] = list(WARM["save"])
            both = [(SB[p], nBq), (SA, na)]
            if p == 1:
                for i in range(3):
                    issue(a, both, i < OPT["nt1"])
                prepB(2)
                fold_setup(a, g)
                w0, w1 = 2 * c, c
            else:
                issue(a, [(SA, na)])
                stamp(a, "l", f"p{p}_A0")
                SA.need(a, f"{P}_x1")
                a("s_waitcnt vmcnt(0)")
                a("s_barrier")
                issue(a, [(SA, na)])
                a(f"s_branch {P}_x2")
                a(f"{P}_x1:")
                issue(a, [(SA, na)], ready=False)
                w0, w1 = na, None
            a(f"s_waitcnt vmcnt({w0})")
            a("s_barrier")
            if p > 1:
                a(f"{P}_x2:")

            def loop(tag, cnt):
                a(f"s_mov_b32 s44, {cnt}")
                a(f"{P}_l{tag}{sfx}:")
                issue(a, both)
                warm(a, WARM["rate"], cnt)
                a(f"s_waitcnt vmcnt({c})")
                a("s_barrier")
                a("s_sub_u32 s44, s44, 1")
                a("s_cmp_lg_u32 s44, 0")
                a(f"s_cbranch_scc1 {P}_l{tag}{sfx}")

            if p in (2, 4):
                loop("a", g.nst - 2)
                tails = (lambda: None, lambda: None, lambda: None)
            else:
                tails = fold_body(a, g, both, c, w1, loop, sfx)
            if p < 4:
                nb2 = PH[p + 1].nB // 4
                tails[0]()
                issue(a, [(SB[p + 1], nb2)])
                a(f"s_waitcnt vmcnt({nb2})")
                tails[1]()
                a("s_barrier")
                tails[2]()
                code_touch(a, f"CT_e{p}", f"CT_e{p+1}", 44, 45)
                code_touch(a, f"LD{p}_e", f"LD{p+1}_e", 46, 45)
                a("s_barrier")
                issue(a, [(SB[p + 1], nb2)])
                if p == 1 and OPT["touch1"] and OPT["warm"] and WARM["left"][0]:
                    a(f"v_lshlrev_b32 v{TT}, 7, v1")
                    a(f"s_mov_b64 exec, {hex((1 << WARM['left'][0]) - 1)}")
                    a(f"global_load_dword v{TB}, v{TT}, s[32:33]")
                    a("s_mov_b64 exec, -1")
                WARM["phase"] = 2
                warm(a, OPT["wg"])
            else:
                a("s_waitcnt vmcnt(0)")
                a("s_barrier")
                code_touch(a, "CT_e4", "KEND", 44, 45)
                a("s_barrier")
            if sfx == "x":
                a(f"s_branch {P}_e")
        a(f"{P}_e:")
    print("warm lines not covered:", WARM["left"])
    stamp(a, "l", "end")
    stamp_flush(a, 4)
    a("s_endpgm")


def gen_mainloop(a, g, P):
    a(f"s_mov_b32 s42, {g.slot0}")
    a(f"s_mov_b32 s46, {(-2*SLOT) & 0xffffffff}")
    a(f"s_mov_b32 s47, {SLOT}")
    a(f"s_mov_b32 s43, {g.nst}")
    a("s_waitcnt lgkmcnt(0)")
    a("s_barrier")
    stamp(a, "c", f"p{g.n}_B0")
    for r in g.reads(0, 0):
        a(r)
    a(f"{P}_loop:")
    sal = ["s_cmp_eq_u32 s42, 2", "s_cselect_b32 s44, s46, s47"]
    sal2 = ["s_add_u32 s42, s42, 1", "s_cmp_eq_u32 s42, 3", "s_cselect_b32 s42, 0, s42",
            "s_sub_u32 s43, s43, 1", "s_cmp_lg_u32 s43, 0"]
    a("s_waitcnt lgkmcnt(0)")
    if OPT["stamp"] == 2:
        base = {1: 0, 2: 17, 3: 26, 4: 0}[g.n]
        a(f"s_add_u32 m0, s43, {base}")
        a(f"v_writelane_b32 v{253 if g.n == 4 else 252}, s98, m0")
        a("s_memtime s[98:99]")
    interleave(a, g.mfmas(0), g.reads(1, 1) + sal + [f"v_add_u32 v{v}, s44, v{v}" for v in g.adv])
    a("s_waitcnt lgkmcnt(0)")
    interleave(a, g.mfmas(1), g.reads(0, 0) + sal2, first=["s_barrier"])
    a(f"s_cbranch_scc1 {P}_loop")
    if P != "P1a":
        a(f"CT_e{g.n}:")
    a("s_waitcnt lgkmcnt(0)")
    if OPT["stamp"] == 2:
        a(f"v_writelane_b32 v{253 if g.n == 4 else 252}, s98, {base}")
    stamp(a, "c", f"p{g.n}_loopend")


L15, GQ = 2, 3


def b_addr128(a, V, units, sbase):
    t = V.alloc()
    f = V.alloc()
    base = V.alloc()
    a(f"v_bfe_u32 v{f}, v{L15}, 3, 1")
    a(f"v_and_b32 v{t}, 1, v{GQ}")
    a(f"v_lshl_or_b32 v{f}, v{t}, 1, v{f}")
    a(f"v_lshrrev_b32 v{t}, 2, v{L15}")
    a(f"v_lshl_add_u32 v{t}, v{GQ}, 3, v{t}")
    a(f"v_lshlrev_b32 v{base}, 7, v{t}")
    a(f"v_and_b32 v{t}, 3, v{L15}")
    a(f"v_lshl_add_u32 v{base}, v{t}, 3, v{base}")
    a(f"v_add_u32 v{base}, s{sbase}, v{base}")
    out = []
    for u in units:
        v0 = V.alloc()
        a(f"v_xor_b32 v{t}, {u}, v{f}")
        a(f"v_lshl_add_u32 v{v0}, v{t}, 5, v{base}")
        out.append(v0)
    return out


def zero_acc(a, acc, n):
    for i in range(n):
        a(f"v_mov_b32 v{acc+i}, 0")


def pair_post(a, tag, vt):
    a("s_lshl_b32 s3, s6, 2")
    a(f"s_add_u32 s3, s3, {L_PAIR}")
    a(f"v_mov_b32 v{vt}, s3")
    a(f"v_mov_b32 v{vt+1}, {tag}")
    a("s_waitcnt lgkmcnt(0)")
    a(f"ds_write_b32 v{vt}, v{vt+1}")


def pair_wait(a, lab, tag, xor, vt):
    a(f"v_xor_b32 v{vt}, {xor*4}, v{vt}")
    a(f"{lab}_ps:")
    a(f"ds_read_b32 v{vt+1}, v{vt}")
    a("s_waitcnt lgkmcnt(0)")
    a(f"v_readfirstlane_b32 s3, v{vt+1}")
    a(f"s_cmp_lg_u32 s3, {tag}")
    a(f"s_cbranch_scc1 {lab}_ps")


def finish_phase(a, p, g, vt):
    m, j = g.mj
    a(f"s_lshl_b32 s7, s{m}, 11")
    a(f"s_lshl_b32 s3, s{j}, 7")
    a("s_add_u32 s7, s7, s3")
    a(f"s_add_u32 s7, s7, {WS_FD + p*32768}")
    a(f"v_mov_b32 v{vt}, {L_CNT}")
    a(f"v_mov_b32 v{vt+1}, 1")
    a(f"v_mov_b32 v{vt+2}, s{NONCE}")
    a(f"v_mov_b32 v{vt+3}, s{NONCE+1}")
    a("s_mov_b64 exec, 1")
    a("s_waitcnt vmcnt(0)")
    a(f"ds_add_rtn_u32 v{vt+1}, v{vt}, v{vt+1}")
    a(f"v_mov_b32 v{vt}, s7")
    a("s_waitcnt lgkmcnt(0)")
    a(f"v_readfirstlane_b32 s3, v{vt+1}")
    a(f"s_cmp_lg_u32 s3, {4*p-1}")
    a(f"s_cbranch_scc1 FIN{p}")
    a(f"global_store_dwordx2 v{vt}, v[{vt+2}:{vt+3}], s[{PWS}:{PWS+1}] sc1")
    a(f"FIN{p}:")
    a("s_mov_b64 exec, -1")
    stamp(a, "c", f"p{p}_done")


def frag_lane_off(a, d, t):
    a(f"v_and_b32 v{t}, 1, v{GQ}")
    a(f"v_lshlrev_b32 v{d}, 9, v{t}")
    a(f"v_lshrrev_b32 v{t}, 1, v{GQ}")
    a(f"v_lshl_add_u32 v{d}, v{t}, 8, v{d}")
    a(f"v_lshl_add_u32 v{d}, v{L15}, 4, v{d}")


def gen_p0(a):
    g = PH[1]
    m, j = g.mj
    srd(a, 8, PX, 0, S * D * 2)
    a(f"s_lshl_b32 s3, s{m}, 7")
    a(f"s_lshl_b32 s7, s{j}, 3")
    a("s_add_u32 s3, s3, s7")
    a("s_lshl_b32 s7, s6, 1")
    a("s_add_u32 s34, s3, s7")
    a("s_lshl_b32 s3, s34, 11")
    a("v_lshlrev_b32 v4, 4, v1")
    for rr in range(2):
        for hh in range(2):
            a(f"buffer_load_dwordx4 v[{24+rr*8+hh*4}:{27+rr*8+hh*4}], v4, s[8:11], s3 offen offset:{rr*2048+hh*1024}")
    a("s_lshl_b32 s3, s6, 2")
    a(f"s_add_u32 s3, s3, {L_PAIR}")
    a("v_mov_b32 v5, s3")
    a("v_mov_b32 v6, 0")
    a("ds_write_b32 v5, v6")
    a(f"v_mov_b32 v5, {L_CNT}")
    a("ds_write_b32 v5, v6")


def gen_p0t(a):
    code_touch(a, "CT_s", "CT_e1", 50, 51)
    code_touch(a, "LOADER", "LD1_e", 52, 51)
    a("CT_s:")


def gen_p0b(a):
    a("s_waitcnt vmcnt(0)")
    a("v_mov_b32 v48, 0x3f803f80")
    R = [40, 41, 42, 43]
    for i in range(8):
        for rr in range(2):
            x = 24 + rr * 8 + i
            a(f"v_dot2_f32_bf16 v{R[2*rr]}, v{x}, v48, {'0' if i == 0 else 'v%d' % R[2*rr]}")
            a(f"v_dot2_f32_bf16 v{R[2*rr+1]}, v{x}, v{x}, {'0' if i == 0 else 'v%d' % R[2*rr+1]}")
    a("s_nop 2")
    wave_sum_multi(a, R, [44, 45, 46, 47])
    for rr in range(2):
        a(f"v_mul_f32 v{R[2*rr]}, {hexf(1.0/1024)}, v{R[2*rr]}")
        a(f"v_mul_f32 v{R[2*rr+1]}, {hexf(1.0/1024)}, v{R[2*rr+1]}")
        a(f"v_fma_f32 v{R[2*rr+1]}, -v{R[2*rr]}, v{R[2*rr]}, v{R[2*rr+1]}")
        a(f"v_max_f32 v{R[2*rr+1]}, 0, v{R[2*rr+1]}")
    for rr in range(2):
        ln_finish(a, R[2 * rr], R[2 * rr + 1], 44 + 2 * rr)
    a("s_lshl_b32 s3, s6, 4")
    a(f"s_add_u32 s3, s3, {L_P0}")
    a("v_mov_b32 v48, s3")
    a("ds_write_b128 v48, v[44:47]")
    stamp(a, "c", "p0_done")


def gen_p1(a):
    g = PH[1]
    m, j = g.mj
    g2 = PH[2]
    V = Regs("v", 68, RES)
    srd(a, 20, PWS, WS_O, S * D * 2)
    a("s_and_b32 s34, s6, 1")
    a("s_lshr_b32 s35, s6, 1")
    a("s_lshl_b32 s36, s34, 13")
    t = 4
    vA, vAh = [5, 6], [7, 8]
    for h in range(2):
        a(f"v_lshrrev_b32 v{t}, 1, v{L15}")
        a(f"v_xor_b32 v{t}, v{t}, v{GQ}")
        if h:
            a(f"v_xor_b32 v{t}, 4, v{t}")
        a(f"v_lshlrev_b32 v{t}, 4, v{t}")
        a(f"v_lshl_add_u32 v{vAh[h]}, v{L15}, 7, v{t}")
        if g.slot0:
            a(f"v_add_u32 v{vAh[h]}, {g.slot0*SLOT}, v{vAh[h]}")
        a(f"v_add_u32 v{vA[h]}, s36, v{vAh[h]}")
        a(f"v_add_u32 v{vA[h]}, 2048, v{vA[h]}")
    a(f"s_mov_b32 s36, {g.Boff + g.slot0*SLOT}")
    a("s_lshl_b32 s37, s35, 1")
    a("s_add_u32 s38, s37, 1")
    V2 = Regs("v", 12, 24)
    vB = b_addr128(a, V2, ["s37", "s38"], 36)
    acc = V.alloc(104, 4)
    W = [V.alloc(24, 4), 0]
    X = [V.alloc(20, 4), 0]
    W[1], X[1] = 24, 48
    accr = lambda t, u: acc + (t * 4 + u) * 4
    acch = lambda c: acc + 96 + c * 4
    zero_acc(a, acc, 104)
    gen_p0b(a)

    def reads(h, b):
        r = []
        for u in range(4):
            r.append(f"ds_read_b128 {vr(X[b]+4*u,4)}, v{vA[h]} offset:{u*2048}")
        for t in range(6):
            for jj in range(2):
                r.append(f"ds_read_b64_tr_b16 {vr(W[b]+4*t+2*jj,2)}, v{vB[t&1]} offset:{(t>>1)*8192+jj*512+h*4096}")
            if t == 1:
                r.append(f"ds_read_b128 {vr(X[b]+16,4)}, v{vAh[h]}")
        return r

    def mk_mfmas(rsel):
        def mfmas(b):
            ml = []
            for t in range(6):
                for u in range(4):
                    w, x, d = vr(W[b] + 4 * t, 4), vr(X[b] + 4 * u, 4), vr(accr(t, u), 4)
                    ml.append(f"v_mfma_f32_16x16x32_bf16 {d}, {w}, {x}, {d}" if t < 4 else
                              f"v_mfma_f32_16x16x32_bf16 {d}, {x}, {w}, {d}")
                if (t >> 1) == 1 + rsel:
                    w, x, d = vr(W[b] + 4 * t, 4), vr(X[b] + 16, 4), vr(acch(t & 1), 4)
                    ml.append(f"v_mfma_f32_16x16x32_bf16 {d}, {w}, {x}, {d}" if t < 4 else
                              f"v_mfma_f32_16x16x32_bf16 {d}, {x}, {w}, {d}")
            return ml
        return mfmas

    g.reads = reads
    g.adv = vA + vAh + vB
    a("s_cmp_eq_u32 s34, 1")
    a("s_cbranch_scc1 P1_r1")
    g.mfmas = mk_mfmas(0)
    gen_mainloop(a, g, "P1a")
    a("s_branch P1_epi")
    a("P1_r1:")
    g.mfmas = mk_mfmas(1)
    gen_mainloop(a, g, "P1b")
    a("P1_epi:")
    RP = 24
    CSq = 36
    CSv = 34
    R4 = W[0]
    N4 = W[0] + 20
    assert X[0] == W[0] + 24
    T = 52
    a("s_lshl_b32 s36, s34, 9")
    a(f"s_add_u32 s36, s36, {L_ROW + 128}")
    a(f"v_lshlrev_b32 v4, 3, v{L15}")
    a(f"v_add_u32 v5, {L_ROW}, v4")
    a(f"v_add_u32 v4, s36, v4")
    a(f"ds_read_b64 {vr(RP+8,2)}, v5")
    a(f"v_mov_b32 v16, {L_NONCE}")
    a("ds_read_b64 v[16:17], v16")
    a(f"v_lshlrev_b32 v6, 4, v{GQ}")
    a("s_lshl_b32 s36, s35, 7")
    a(f"s_add_u32 s36, s36, {L_CS}")
    a(f"v_add_u32 v7, s36, v6")
    for c in range(2):
        a(f"ds_read_b128 {vr(CSq+8+4*c,4)}, v7 offset:{256+64*c}")
    a(f"v_lshlrev_b32 v8, 2, v{L15}")
    a(f"v_add_u32 v8, s36, v8")
    a(f"ds_read2_b32 {vr(CSv,2)}, v8 offset0:128 offset1:144")
    a(f"v_add_u32 v9, {L_RS}, v6")
    a(f"ds_read_b128 {vr(R4+16,4)}, v9")
    a(f"ds_read_b128 {vr(N4+16,4)}, v9 offset:{L_NM-L_RS}")
    for u in (3, 2, 1, 0):
        a(f"ds_read_b64 {vr(RP+2*u,2)}, v4 offset:{u*128}")
    a("s_lshl_b32 s36, s34, 8")
    a(f"v_add_u32 v9, s36, v9")
    for u in (3, 2, 1, 0):
        a(f"ds_read_b128 {vr(R4+4*u,4)}, v9 offset:{64+64*u}")
        a(f"ds_read_b128 {vr(N4+4*u,4)}, v9 offset:{64+64*u+L_NM-L_RS}")
    for c in range(2):
        a(f"ds_read_b128 {vr(CSq+4*c,4)}, v7 offset:{64*c}")
    m2, j2 = g2.mj
    a(f"s_lshl_b32 s36, s{m2}, 7")
    a("s_lshl_b32 s37, s34, 6")
    a("s_add_u32 s36, s36, s37")
    a("s_lshl_b32 s37, s35, 5")
    a("s_add_u32 s36, s36, s37")
    a(f"v_add_u32 v10, s36, v{L15}")
    a("v_lshlrev_b32 v10, 11, v10")
    a(f"v_lshl_add_u32 v10, v{GQ}, 3, v10")
    a(f"s_lshl_b32 s36, s{j2}, 7")
    a("s_add_u32 s37, s36, 32768")
    for uu in range(2):
        for t_ in range(4):
            a(f"buffer_load_dwordx2 {vr(RES+8*uu+2*t_,2)}, v10, s[8:11], s{36+uu} offen offset:{32*t_}")

    def fold_qk(d, cs, rp):
        for i in (0, 2):
            a(f"v_pk_mul_f32 {vr(T+i,2)}, {vr(cs+i,2)}, {vr(rp,2)} op_sel:[0,1] op_sel_hi:[1,1]")
        for i in (0, 2):
            a(f"v_pk_fma_f32 {vr(d+i,2)}, {vr(d+i,2)}, {vr(rp,2)}, {vr(T+i,2)} op_sel:[0,0,0] op_sel_hi:[1,0,1]")

    def fold_v(d, c, ui):
        for i in (0, 2):
            a(f"v_pk_mul_f32 {vr(T+i,2)}, {vr(N4+4*ui+i,2)}, {vr(CSv,2)} op_sel:[0,{c}] op_sel_hi:[1,{c}]")
        for i in (0, 2):
            a(f"v_pk_fma_f32 {vr(d+i,2)}, {vr(d+i,2)}, {vr(R4+4*ui+i,2)}, {vr(T+i,2)}")

    def pack(dst, d):
        a(f"v_cvt_pk_bf16_f32 v{dst}, v{d}, v{d+1}")
        a(f"v_cvt_pk_bf16_f32 v{dst+1}, v{d+2}, v{d+3}")

    ex, PV = 12, 14
    a(f"v_lshlrev_b32 v{ex}, 4, v1")
    a("s_mul_i32 s36, s35, 3072")
    a(f"s_add_u32 s36, s36, {g.exch}")
    a(f"v_add_u32 v{ex}, s36, v{ex}")
    Hp = 60
    a("s_waitcnt lgkmcnt(0)")
    a(f"v_readfirstlane_b32 s{NONCE}, v16")
    a(f"v_readfirstlane_b32 s{NONCE+1}, v17")
    a("s_cmp_eq_u32 s34, 1")
    a("s_cbranch_scc1 P1_ex1")
    for c in range(2):
        fold_qk(accr(2 + c, 3), CSq + 8 + 4 * c, RP + 6)
        fold_v(accr(4 + c, 3), c, 3)
    for c in range(2):
        pack(Hp + 2 * c, accr(2 + c, 3))
        pack(Hp + 4 + 2 * c, accr(4 + c, 3))
    a(f"ds_write_b128 v{ex}, {vr(Hp,4)}")
    a(f"ds_write_b128 v{ex}, {vr(Hp+4,4)} offset:1024")
    pair_post(a, 1, PV)
    for c in range(2):
        fold_qk(acch(c), CSq + 8 + 4 * c, RP + 8)
    a("s_branch P1_ex2")
    a("P1_ex1:")
    for c in range(2):
        fold_v(acch(c), c, 4)
    for c in range(2):
        pack(Hp + 2 * c, acch(c))
    a(f"ds_write_b128 v{ex}, {vr(Hp,4)} offset:2048")
    pair_post(a, 1, PV)
    for c in range(2):
        fold_qk(accr(2 + c, 3), CSq + 8 + 4 * c, RP + 6)
        fold_v(accr(4 + c, 3), c, 3)
    a("P1_ex2:")
    for u in range(3):
        for c in range(2):
            fold_qk(accr(2 + c, u), CSq + 8 + 4 * c, RP + 2 * u)
            fold_v(accr(4 + c, u), c, u)
    a(f"s_mov_b32 s36, {hexf(32 ** -0.5 * math.log2(math.e))}")
    a("s_mov_b32 s37, s36")
    for u in range(4):
        a(f"v_pk_mul_f32 {vr(RP+2*u,2)}, {vr(RP+2*u,2)}, s[36:37]")
    for u in range(4):
        for c in range(2):
            fold_qk(accr(c, u), CSq + 4 * c, RP + 2 * u)
    Kf, Vp, Qf = W[0], [W[0] + 20, W[0] + 30], 24
    for u in range(4):
        for c in range(2):
            pack(Kf + 4 * (u + 1) + 2 * c, accr(2 + c, u))
            pack(Vp[c] + 2 * (u + 1), accr(4 + c, u))
            pack(Qf + 4 * u + 2 * c, accr(c, u))
    a("s_cmp_eq_u32 s34, 1")
    a("s_cbranch_scc1 P1_ex3")
    for c in range(2):
        pack(Kf + 2 * c, acch(c))
    pair_wait(a, "P1a", 1, 1, PV)
    for c in range(2):
        a(f"ds_read_b64 {vr(Vp[c],2)}, v{ex} offset:{2048+8*c}")
    a("s_branch P1_ex4")
    a("P1_ex3:")
    pair_wait(a, "P1b", 1, 1, PV)
    a(f"ds_read_b128 {vr(Kf,4)}, v{ex}")
    for c in range(2):
        a(f"ds_read_b64 {vr(Vp[c],2)}, v{ex} offset:{1024+8*c}")
    a("P1_ex4:")
    t0, t1 = acc, acc + 1
    MA, MB = acc + 2, acc + 4
    a(f"v_and_b32 v{t0}, 1, v{L15}")
    a(f"v_cmp_eq_u32 s[76:77], 1, v{t0}")
    a(f"v_lshl_add_u32 v{t0}, v{GQ}, 2, v{t0}")
    a(f"v_cmp_le_u32 s[78:79], v{t0}, v{L15}")
    a(f"v_add_u32 v{t0}, 2, v{t0}")
    a(f"v_cmp_le_u32 s[80:81], v{t0}, v{L15}")
    a(f"v_mov_b32 v{t0}, 0xffff")
    a(f"v_mov_b32 v{t1}, 0xffff0000")
    a(f"v_cndmask_b32 v{t0}, v{t0}, v{t1}, s[76:77]")
    a(f"v_cndmask_b32 v{MA}, v{t0}, 0, s[78:79]")
    a(f"v_cndmask_b32 v{MA+1}, 0, v{t0}, s[78:79]")
    a(f"v_cndmask_b32 v{MB}, v{t0}, 0, s[80:81]")
    a(f"v_cndmask_b32 v{MB+1}, 0, v{t0}, s[80:81]")
    a(f"s_or_b32 s36, s{m}, s34")
    a("s_cmp_eq_u32 s36, 0")
    a("s_cselect_b64 s[82:83], s[78:79], -1")
    a("s_cselect_b64 s[84:85], s[80:81], -1")
    vo = acc + 6
    frag_lane_off(a, vo, t0)
    a(f"s_lshl_b32 s36, s{m}, 3")
    a("s_lshl_b32 s37, s34, 2")
    a("s_add_u32 s36, s36, s37")
    a("s_lshl_b32 s36, s36, 5")
    a(f"s_lshl_b32 s37, s{j}, 1")
    a("s_add_u32 s36, s36, s37")
    a("s_add_u32 s36, s36, s35")
    a("s_lshl_b32 s36, s36, 10")
    a(f"v_add_u32 v{vo}, s36, v{vo}")
    NEG = acc + 7
    a(f"v_mov_b32 v{NEG}, 0xff800000")
    Sc = acc + 8
    for u in (1, 2, 3):
        for blk in range(2):
            a(f"v_mfma_f32_16x16x32_bf16 {vr(Sc+8*u+4*blk,4)}, {vr(Kf+4*(u+blk),4)}, {vr(Qf+4*u,4)}, 0")
    a("s_waitcnt lgkmcnt(0)")
    for blk in (1, 0):
        a(f"v_mfma_f32_16x16x32_bf16 {vr(Sc+4*blk,4)}, {vr(Kf+4*blk,4)}, {vr(Qf,4)}, 0")
    VA, VB_, MX, TM = acc + 40, acc + 44, acc + 48, acc + 52
    order = (1, 2, 3, 0)
    for u in order:
        s = Sc + 8 * u
        a(f"v_cndmask_b32 v{s}, v{s}, v{s+1}, s[76:77]")
        a(f"v_cndmask_b32 v{s+4}, v{s+4}, v{s+5}, s[76:77]")
        a(f"v_cndmask_b32 v{s+2}, v{s+2}, v{s+3}, s[76:77]")
        a(f"v_cndmask_b32 v{s+6}, v{s+6}, v{s+7}, s[76:77]")
        a(f"v_cndmask_b32 v{VA+u}, v{s}, v{s+4}, s[78:79]")
        a(f"v_cndmask_b32 v{VB_+u}, v{s+2}, v{s+6}, s[80:81]")
    a(f"v_cndmask_b32 v{VA}, v{NEG}, v{VA}, s[82:83]")
    a(f"v_cndmask_b32 v{VB_}, v{NEG}, v{VB_}, s[84:85]")
    for u in order:
        a(f"v_max_f32 v{MX+u}, v{VA+u}, v{VB_+u}")
    xrow_reduce_multi(a, "v_max_f32", [MX + u for u in order], [TM + u for u in order])
    for u in order:
        a(f"v_sub_f32 v{VA+u}, v{VA+u}, v{MX+u}")
        a(f"v_sub_f32 v{VB_+u}, v{VB_+u}, v{MX+u}")
    for u in order:
        a(f"v_exp_f32 v{VA+u}, v{VA+u}")
        a(f"v_exp_f32 v{VB_+u}, v{VB_+u}")
    for u in order:
        a(f"v_add_f32 v{MX+u}, v{VA+u}, v{VB_+u}")
    xrow_reduce_multi(a, "v_add_f32", [MX + u for u in order], [TM + u for u in order])
    for u in order:
        a(f"v_rcp_f32 v{MX+u}, v{MX+u}")
    for u in order:
        a(f"v_mul_f32 v{VA+u}, v{VA+u}, v{MX+u}")
        a(f"v_mul_f32 v{VB_+u}, v{VB_+u}, v{MX+u}")
    for u in order:
        a(f"v_cvt_pk_bf16_f32 v{VA+u}, v{VA+u}, v{VA+u}")
        a(f"v_cvt_pk_bf16_f32 v{VB_+u}, v{VB_+u}, v{VB_+u}")
    Pp, Om = acc + 56, acc + 72
    for u in order:
        a(f"v_and_b32 v{Pp+4*u}, v{VA+u}, v{MA}")
        a(f"v_and_b32 v{Pp+4*u+1}, v{VB_+u}, v{MB}")
        a(f"v_and_b32 v{Pp+4*u+2}, v{VA+u}, v{MA+1}")
        a(f"v_and_b32 v{Pp+4*u+3}, v{VB_+u}, v{MB+1}")
    for u in order:
        for c in range(2):
            a(f"v_mfma_f32_16x16x32_bf16 {vr(Om+8*u+4*c,4)}, {vr(Vp[c]+2*u,4)}, {vr(Pp+4*u,4)}, 0")
    for u in range(4):
        a(f"s_mov_b32 s{76+u}, {u*32768}")
    for u in order:
        o = Om + 8 * u
        p = Sc + 4 * u
        for i in range(4):
            a(f"v_cvt_pk_bf16_f32 v{p+i}, v{o+2*i}, v{o+2*i+1}")
    for u in order:
        p = Sc + 4 * u
        a(f"v_permlane16_swap_b32 v{p}, v{p+2}")
        a(f"v_permlane16_swap_b32 v{p+1}, v{p+3}")
        a(f"buffer_store_dwordx4 {vr(p,4)}, v{vo}, s[20:23], s{76+u} offen sc1")
    stamp(a, "c", "p1_stored")
    finish_phase(a, 1, g, acc + 40)


def gen_p24(a, which):
    g = PH[which]
    m, j = g.mj
    k2 = which == 2
    P = f"P{which}"
    V = Regs("v", 4, RES)
    if k2:
        srd(a, 16, PWS, WS_H, S * D * 2)
        srd(a, 24, PWS, WS_ST, 16 * S * 8)
    else:
        srd(a, 16, POUT, 0, S * D * 2)
    a("s_and_b32 s34, s6, 1")
    a("s_lshr_b32 s35, s6, 1")
    vA = [V.alloc(), V.alloc()]
    a("s_lshl_b32 s36, s34, 14")
    a("s_lshl_b32 s37, s35, 11")
    a("s_add_u32 s36, s36, s37")
    a(f"s_add_u32 s36, s36, {g.slot0*SLOT}")
    a(f"v_lshlrev_b32 v{vA[0]}, 4, v1")
    a(f"v_add_u32 v{vA[0]}, s36, v{vA[0]}")
    a("s_lshl_b32 s37, s35, 13")
    a(f"s_sub_u32 s38, 8192, s37")
    a(f"v_add_u32 v{vA[1]}, s38, v{vA[0]}")
    a(f"v_add_u32 v{vA[0]}, s37, v{vA[0]}")
    a("s_lshl_b32 s36, s35, 13")
    a(f"s_add_u32 s36, s36, {g.Boff + g.slot0*SLOT}")
    vB = b_addr128(a, V, [0, 1, 2, 3], 36)
    acc = V.alloc(64, 4)
    X = [V.alloc(16, 4) for _ in range(2)]
    W = [V.alloc(16, 4) for _ in range(2)]
    accr = lambda t, u: acc + (t * 4 + u) * 4
    vo, t0, vrow, ex, exr, PV = V.alloc(), V.alloc(), V.alloc(), V.alloc(), V.alloc(), V.alloc(2)
    a(f"s_lshl_b32 s36, s{m}, 7")
    a("s_lshl_b32 s37, s34, 6")
    a("s_add_u32 s36, s36, s37")
    a("s_lshl_b32 s37, s35, 5")
    a("s_add_u32 s36, s36, s37")
    if k2:
        a(f"v_add_u32 v{vrow}, s36, v{L15}")
        a(f"v_lshlrev_b32 v{vrow}, 3, v{vrow}")
        a(f"v_cmp_eq_u32 vcc, 0, v{GQ}")
        a(f"v_mov_b32 v{t0}, {BIG}")
        a(f"v_cndmask_b32 v{vrow}, v{t0}, v{vrow}, vcc")
        frag_lane_off(a, vo, t0)
        a("s_lshl_b32 s36, s36, 11")
        a(f"s_lshl_b32 s37, s{j}, 11")
        a("s_add_u32 s36, s36, s37")
        a(f"v_add_u32 v{vo}, s36, v{vo}")
    else:
        a(f"v_add_u32 v{vo}, s36, v{L15}")
        a(f"v_lshlrev_b32 v{vo}, 11, v{vo}")
        a(f"v_and_b32 v{t0}, 1, v{GQ}")
        a(f"v_lshl_add_u32 v{vo}, v{t0}, 5, v{vo}")
        a(f"v_lshrrev_b32 v{t0}, 1, v{GQ}")
        a(f"v_lshl_add_u32 v{vo}, v{t0}, 4, v{vo}")
        a(f"s_lshl_b32 s36, s{j}, 7")
        a(f"v_add_u32 v{vo}, s36, v{vo}")
    a("s_mov_b32 s45, 32768")
    a(f"v_lshlrev_b32 v{ex}, 4, v1")
    a("s_lshl_b32 s36, s6, 13")
    a(f"v_add_u32 v{ex}, s36, v{ex}")
    a(f"v_xor_b32 v{exr}, 16384, v{ex}")
    a(f"v_add_u32 v{ex}, {g.exch}, v{ex}")
    a(f"v_add_u32 v{exr}, {g.exch}, v{exr}")
    for t in range(4):
        for uu in range(2):
            d = accr(t, uu)
            for i in range(2):
                a(f"v_lshlrev_b32 v{d+2*i}, 16, v{RES+8*uu+2*t+i}")
                a(f"v_and_b32 v{d+2*i+1}, 0xffff0000, v{RES+8*uu+2*t+i}")
        if not k2:
            z = accr(t, 2)
            for i in range(2):
                a(f"v_lshlrev_b32 v{z+2*i}, 16, v{BIA+2*t+i}")
                a(f"v_and_b32 v{z+2*i+1}, 0xffff0000, v{BIA+2*t+i}")
            for uu in range(2):
                for i in (0, 2):
                    a(f"v_pk_add_f32 {vr(accr(t,uu)+i,2)}, {vr(accr(t,uu)+i,2)}, {vr(z+i,2)}")
        zero_acc(a, accr(t, 2), 8)

    def reads(h, b):
        r = []
        for u in range(4):
            r.append(f"ds_read_b128 {vr(X[b]+4*u,4)}, v{vA[u>>1]} offset:{(u&1)*4096+h*1024}")
        for t in range(4):
            for jj in range(2):
                r.append(f"ds_read_b64_tr_b16 {vr(W[b]+4*t+2*jj,2)}, v{vB[t]} offset:{jj*512+h*4096}")
        return r

    def mfmas(b):
        ml = []
        for t in range(4):
            for u in (2, 3, 0, 1):
                w, x, d = vr(W[b] + 4 * t, 4), vr(X[b] + 4 * u, 4), vr(accr(t, u), 4)
                ml.append(f"v_mfma_f32_16x16x32_bf16 {d}, {w}, {x}, {d}")
        return ml

    g.reads, g.mfmas = reads, mfmas
    g.adv = vA + vB
    gen_mainloop(a, g, P)
    for t in range(4):
        for uu in range(2):
            a(f"ds_write_b128 v{ex}, {vr(accr(t, 2+uu),4)} offset:{(t*2+uu)*1024}")
    pair_post(a, which, PV)
    pair_wait(a, P, which, 2, PV)
    Rv = X[0]
    assert X[1] == X[0] + 16
    lst = [(t, uu) for uu in range(2) for t in range(4)]
    for (t, uu) in lst:
        a(f"ds_read_b128 {vr(Rv+(t*2+uu)*4,4)}, v{exr} offset:{(t*2+uu)*1024}")
    ob = W[0]
    for n_, (t, uu) in enumerate(lst):
        a(f"s_waitcnt lgkmcnt({7-n_})")
        d = accr(t, uu)
        for i in (0, 2):
            a(f"v_pk_add_f32 {vr(d+i,2)}, {vr(d+i,2)}, {vr(Rv+(t*2+uu)*4+i,2)}")
        o = ob + 8 * uu + 2 * t
        a(f"v_cvt_pk_bf16_f32 v{o}, v{d}, v{d+1}")
        a(f"v_cvt_pk_bf16_f32 v{o+1}, v{d+2}, v{d+3}")
        if k2:
            a(f"v_mov_b32 v{RES+8*uu+2*t}, v{o}")
            a(f"v_mov_b32 v{RES+8*uu+2*t+1}, v{o+1}")
        if t & 1:
            o -= 2
            a(f"v_permlane16_swap_b32 v{o}, v{o+2}")
            a(f"v_permlane16_swap_b32 v{o+1}, v{o+3}")
            so = "s45" if uu else "0"
            if k2:
                a(f"buffer_store_dwordx4 {vr(o,4)}, v{vo}, s[16:19], {so} offen offset:{1024*(t>>1)} sc1")
            else:
                a(f"buffer_store_dwordx4 {vr(o,4)}, v{vo}, s[16:19], {so} offen offset:{64*(t>>1)} {['', 'sc1', 'nt', 'sc0 sc1', 'sc1 nt'][OPT['ost']]}")
    if k2:
        SM = [Rv, Rv + 2]
        PK = [Rv + 8, Rv + 10]
        PQ = [Rv + 12, Rv + 14]
        for uu in range(2):
            a(f"v_pk_add_f32 {vr(PK[uu],2)}, {vr(accr(0,uu),2)}, {vr(accr(0,uu)+2,2)}")
            a(f"v_pk_mul_f32 {vr(PQ[uu],2)}, {vr(accr(0,uu),2)}, {vr(accr(0,uu),2)}")
        for t in range(4):
            for i in (0, 2):
                for uu in range(2):
                    d = vr(accr(t, uu) + i, 2)
                    if t:
                        a(f"v_pk_add_f32 {vr(PK[uu],2)}, {vr(PK[uu],2)}, {d}")
                    if t or i:
                        a(f"v_pk_fma_f32 {vr(PQ[uu],2)}, {d}, {d}, {vr(PQ[uu],2)}")
        for uu in range(2):
            a(f"v_add_f32 v{SM[uu]}, v{PK[uu]}, v{PK[uu]+1}")
            a(f"v_add_f32 v{SM[uu]+1}, v{PQ[uu]}, v{PQ[uu]+1}")
        xrow_reduce_multi(a, "v_add_f32", [Rv, Rv + 1, Rv + 2, Rv + 3], [Rv + 4, Rv + 5, Rv + 6, Rv + 7])
        a(f"s_lshl_b32 s36, s{j}, 14")
        for uu in range(2):
            a(f"buffer_store_dwordx2 {vr(SM[uu],2)}, v{vrow}, s[24:27], s36 offen offset:{uu*128} sc1")
    stamp(a, "c", f"p{which}_stored")
    if k2:
        finish_phase(a, 2, g, X[1])


def gen_p3(a):
    g = PH[3]
    m, j = g.mj
    g4 = PH[4]
    V = Regs("v", 4, RES)
    srd(a, 16, PWS, WS_H1, S * F * 2)
    srd(a, 20, PB2, 0, D * 2)
    acc = V.alloc(112, 4)
    X = [V.alloc(16, 4) for _ in range(2)]
    W = [V.alloc(28, 4) for _ in range(2)]
    accr = lambda t, u: acc + (t * 4 + u) * 4
    a("s_and_b32 s34, s6, 1")
    a("s_lshr_b32 s35, s6, 1")
    vA = V.alloc()
    a("s_lshl_b32 s36, s34, 13")
    a(f"s_add_u32 s36, s36, {g.slot0*SLOT}")
    a(f"v_lshlrev_b32 v{vA}, 4, v1")
    a(f"v_add_u32 v{vA}, s36, v{vA}")
    t = X[0]
    base, f = X[0] + 1, X[0] + 2
    vB = [V.alloc() for _ in range(7)]
    a(f"v_lshrrev_b32 v{t}, 2, v{L15}")
    a(f"v_and_b32 v{f}, 1, v{GQ}")
    a(f"v_lshl_or_b32 v{f}, v{f}, 2, v{t}")
    a(f"v_lshl_add_u32 v{t}, v{GQ}, 3, v{t}")
    a(f"v_lshlrev_b32 v{base}, 9, v{t}")
    a(f"v_and_b32 v{t}, 3, v{L15}")
    a(f"v_lshl_add_u32 v{base}, v{t}, 3, v{base}")
    a(f"v_add_u32 v{base}, {g.Boff + g.slot0*SLOT}, v{base}")
    a(f"s_and_b32 s36, s{j}, 1")
    a("s_lshl_b32 s36, s36, 1")
    a("s_add_u32 s37, s36, s35")
    a("s_add_u32 s37, s37, 12")
    a("s_mul_i32 s38, s35, 6")
    a("s_add_u32 s36, s36, s38")
    for t_ in range(7):
        a(f"v_xor_b32 v{t}, s{36 if t_ < 6 else 37}, v{f}")
        a(f"v_lshl_add_u32 v{vB[t_]}, v{t}, 5, v{base}")
        if t_ < 5:
            a("s_add_u32 s36, s36, 1")
    zero_acc(a, acc, 112)

    def reads(h, b):
        r = []
        for u in range(4):
            r.append(f"ds_read_b128 {vr(X[b]+4*u,4)}, v{vA} offset:{u*2048+h*1024}")
        for t_ in range(7):
            for jj in range(2):
                r.append(f"ds_read_b64_tr_b16 {vr(W[b]+4*t_+2*jj,2)}, v{vB[t_]} offset:{jj*2048+h*16384}")
        return r

    def mfmas(b):
        ml = []
        for t_ in range(7):
            for u in range(4):
                w, x, d = vr(W[b] + 4 * t_, 4), vr(X[b] + 4 * u, 4), vr(accr(t_, u), 4)
                ml.append(f"v_mfma_f32_16x16x32_bf16 {d}, {w}, {x}, {d}")
        return ml

    g.reads, g.mfmas = reads, mfmas
    g.adv = [vA] + vB
    gen_mainloop(a, g, "P3")
    RP = X[0]
    CSr, B1r = W[0], W[1]
    e0 = X[0] + 8
    a("s_lshl_b32 s36, s34, 9")
    a(f"s_add_u32 s36, s36, {L_ROW}")
    a(f"v_lshlrev_b32 v{e0}, 3, v{L15}")
    a(f"v_add_u32 v{e0}, s36, v{e0}")
    for u in range(4):
        a(f"ds_read_b64 {vr(RP+2*u,2)}, v{e0} offset:{u*128}")
    a(f"v_lshlrev_b32 v{e0+1}, 4, v{GQ}")
    a("s_lshl_b32 s36, s35, 6")
    a(f"s_add_u32 s36, s36, {L_CS + 768}")
    a(f"v_add_u32 v{e0+2}, s36, v{e0+1}")
    a(f"ds_read_b128 {vr(CSr+24,4)}, v{e0+2}")
    a(f"ds_read_b128 {vr(B1r+24,4)}, v{e0+2} offset:1024")
    a("s_mul_i32 s36, s35, 384")
    a(f"s_add_u32 s36, s36, {L_CS}")
    a(f"v_add_u32 v{e0+1}, s36, v{e0+1}")
    for t_ in range(6):
        a(f"ds_read_b128 {vr(CSr+4*t_,4)}, v{e0+1} offset:{t_*64}")
        a(f"ds_read_b128 {vr(B1r+4*t_,4)}, v{e0+1} offset:{1024+t_*64}")
    a(f"v_lshlrev_b32 v{e0}, 3, v{GQ}")
    a(f"s_lshl_b32 s36, s{g4.mj[1]}, 7")
    for t_ in range(4):
        a(f"buffer_load_dwordx2 {vr(BIA+2*t_,2)}, v{e0}, s[20:23], s36 offen offset:{32*t_}")
    vo, tq, ex = X[1], X[1] + 1, X[1] + 2
    KK = X[1] + 4
    T = X[1] + 6
    PV = X[1] + 10
    frag_lane_off(a, vo, tq)
    a(f"s_lshl_b32 s36, s{m}, 3")
    a("s_lshl_b32 s37, s34, 2")
    a("s_add_u32 s36, s36, s37")
    a("s_mul_i32 s36, s36, 112")
    a(f"s_mul_i32 s37, s{j}, 7")
    a("s_add_u32 s36, s36, s37")
    a("s_lshl_b32 s36, s36, 10")
    a(f"v_add_u32 v{vo}, s36, v{vo}")
    a("s_mul_i32 s36, s35, 3072")
    for u in range(4):
        a(f"s_add_u32 s{76+u}, s36, {u*112*1024}")
    a(f"s_mul_i32 s36, s35, {2*112*1024}")
    a("s_add_u32 s80, s36, 6144")
    a(f"s_add_u32 s81, s80, {112*1024}")
    a(f"v_lshlrev_b32 v{ex}, 4, v1")
    a("s_lshl_b32 s36, s34, 12")
    a(f"s_add_u32 s36, s36, {g.exch}")
    a(f"v_add_u32 v{ex}, s36, v{ex}")
    a("s_lshl_b32 s36, s35, 3")
    a(f"v_add_u32 v{ex+1}, s36, v{ex}")
    a("s_lshl_b32 s36, s35, 11")
    a(f"v_add_u32 v{ex}, s36, v{ex}")
    k1 = -2.0 * math.sqrt(2.0 / math.pi) * math.log2(math.e)
    a(f"v_mov_b32 v{KK}, {hexf(k1*0.044715)}")
    a(f"v_mov_b32 v{KK+1}, {hexf(k1)}")
    a("s_waitcnt lgkmcnt(0)")

    def gelu_tile(t_, u, o):
        d = accr(t_, u)
        rp = vr(RP + 2 * u, 2)
        for i in (0, 2):
            a(f"v_pk_fma_f32 {vr(T+i,2)}, {vr(CSr+4*t_+i,2)}, {rp}, {vr(B1r+4*t_+i,2)} op_sel:[0,1,0] op_sel_hi:[1,1,1]")
        for i in (0, 2):
            a(f"v_pk_fma_f32 {vr(d+i,2)}, {vr(d+i,2)}, {rp}, {vr(T+i,2)} op_sel:[0,0,0] op_sel_hi:[1,0,1]")
        for i in (0, 2):
            a(f"v_pk_mul_f32 {vr(T+i,2)}, {vr(d+i,2)}, {vr(d+i,2)}")
        for i in (0, 2):
            a(f"v_pk_fma_f32 {vr(T+i,2)}, {vr(T+i,2)}, {vr(KK,2)}, {vr(KK,2)} op_sel:[0,0,1] op_sel_hi:[1,0,1]")
        for i in (0, 2):
            a(f"v_pk_mul_f32 {vr(T+i,2)}, {vr(T+i,2)}, {vr(d+i,2)}")
        for i in range(4):
            a(f"v_exp_f32 v{T+i}, v{T+i}")
        for i in (0, 2):
            a(f"v_pk_add_f32 {vr(T+i,2)}, {vr(T+i,2)}, 1.0 op_sel_hi:[1,0]")
        for i in range(4):
            a(f"v_rcp_f32 v{T+i}, v{T+i}")
        for i in (0, 2):
            a(f"v_pk_mul_f32 {vr(d+i,2)}, {vr(d+i,2)}, {vr(T+i,2)}")
        a(f"v_cvt_pk_bf16_f32 v{o}, v{d}, v{d+1}")
        a(f"v_cvt_pk_bf16_f32 v{o+1}, v{d+2}, v{d+3}")

    obs = [X[0] + 12, X[1] + 12]
    for u in range(4):
        o = obs[u >> 1] + 2 * (u & 1)
        gelu_tile(6, u, o)
        a(f"ds_write_b64 v{ex+1}, {vr(o,2)} offset:{u*1024}")
    pair_post(a, 3, PV)
    n_ = 0
    for u in range(4):
        for p in range(3):
            o = obs[n_ & 1]
            n_ += 1
            for tt in range(2):
                gelu_tile(2 * p + tt, u, o + 2 * tt)
            a(f"v_permlane16_swap_b32 v{o}, v{o+2}")
            a(f"v_permlane16_swap_b32 v{o+1}, v{o+3}")
            a(f"buffer_store_dwordx4 {vr(o,4)}, v{vo}, s[16:19], s{76+u} offen offset:{1024*p} sc1")
        if u == 0:
            pair_wait(a, "P3", 3, 2, PV)
            for uu in range(2):
                a(f"ds_read_b128 {vr(accr(6,uu),4)}, v{ex} offset:{uu*1024}")
        if u == 1:
            a("s_waitcnt lgkmcnt(0)")
            for uu in range(2):
                o = accr(6, uu)
                a(f"v_permlane16_swap_b32 v{o}, v{o+2}")
                a(f"v_permlane16_swap_b32 v{o+1}, v{o+3}")
                a(f"buffer_store_dwordx4 {vr(o,4)}, v{vo}, s[16:19], s{80+uu} offen sc1")
    stamp(a, "c", "p3_stored")
    finish_phase(a, 3, g, acc)


def main():
    out = sys.argv[1]
    a = Asm()
    name = NAME + "_kernel"
    a.raw(f".globl {name}\n.p2align 8\n.type {name},@function\n{name}:")
    a("s_cmp_ge_u32 s2, 256\ns_cbranch_scc1 KEND")
    a("s_load_dwordx16 s[48:63], s[0:1], 0")
    a("s_load_dwordx4 s[64:67], s[0:1], 64")
    a("s_load_dwordx2 s[68:69], s[0:1], 80")
    a("v_lshrrev_b32 v1, 6, v0")
    a("s_and_b32 s3, s2, 7")
    a("s_lshr_b32 s7, s2, 3")
    a("v_readfirstlane_b32 s6, v1")
    a("s_and_b32 s70, s3, 1")
    a("s_lshl_b32 s70, s70, 3")
    a("s_and_b32 s4, s7, 7")
    a("s_add_u32 s70, s70, s4")
    a("s_lshr_b32 s71, s3, 1")
    a("s_lshr_b32 s4, s7, 3")
    a("s_lshl_b32 s71, s71, 2")
    a("s_add_u32 s71, s71, s4")
    a("s_and_b32 s72, s7, 15")
    a("s_lshl_b32 s73, s3, 1")
    a("s_lshr_b32 s4, s7, 4")
    a("s_add_u32 s73, s73, s4")
    a("v_and_b32 v1, 63, v0")
    a(f"v_and_b32 v{L15}, 15, v0")
    a(f"v_lshrrev_b32 v{GQ}, 4, v1")
    a("s_waitcnt lgkmcnt(0)")
    a("s_cmp_ge_u32 s6, 4")
    a("s_cbranch_scc1 LOADER")
    stamp(a, "c", "start")
    gen_p0(a)
    gen_p0t(a)
    gen_p1(a)
    gen_p24(a, 2)
    gen_p3(a)
    gen_p24(a, 4)
    stamp_flush(a, 0)
    if OPT["spin"]:
        a("SPIN:")
        a("s_memrealtime s[100:101]")
        a("s_waitcnt lgkmcnt(0)")
        a(f"s_sub_u32 s100, s100, s{NONCE}")
        a(f"s_cmp_lt_u32 s100, {OPT['spin']*100}")
        a("s_cbranch_scc1 SPIN")
    a("KEND:")
    a("s_endpgm")
    gen_loader(a)
    vg = 256 if (OPT["stamp"] or OPT["dbgt"]) else 240
    print(DBG)
    a.raw(f'.section .rodata,"a"\n.p2align 6\n.amdhsa_kernel {name}\n'
          f"  .amdhsa_next_free_vgpr {vg}\n  .amdhsa_next_free_sgpr 102\n  .amdhsa_accum_offset {(vg+3)//4*4}\n"
          "  .amdhsa_group_segment_fixed_size 0\n  .amdhsa_kernarg_size 88\n  .amdhsa_user_sgpr_count 2\n"
          "  .amdhsa_user_sgpr_kernarg_segment_ptr 1\n  .amdhsa_system_sgpr_workgroup_id_x 1\n"
          "  .amdhsa_float_denorm_mode_32 3\n"
          ".end_amdhsa_kernel\n")
    head = open("header.txt").read()
    head += f"; @launch grid=(256,1,1) block=(512,1,1) lds={LDS_TOTAL}\n"
    head += '.amdgcn_target "amdgcn-amd-amdhsa--gfx950"\n.text\n'
    open(out, "w").write(head + a.text())
    if OPT["stamp"]:
        import json
        json.dump(STAMPS, open(out + ".stamps.json", "w"))
    print("generated", out, "nops:", a.nops, "lds", LDS_TOTAL)


main()
```

```python
import sys, struct, math
from asmx import Asm, Regs, vr, sr

NAME = "sequential_preLN__sliding_local_dilated__dense_activation_gelu__prompt"
S, D, F = 2048, 1024, 3584
OPT = dict(stamp=0, map1=1, map3=0, sleep=1, prio=0, nt1=0, seg=2, warm=0, wr1=2, wr2=2, wr3=3, wg=7, touch1=1, dbgt=0, ctouch=1, ost=1, spin=0, rd2=0, tagx=2, prew=1, unr=2, gadv=1)
for a_ in sys.argv[2:]:
    k_, v_ = a_.split("=")
    assert k_ in OPT, k_
    OPT[k_] = int(v_)
WS_O, WS_H, WS_H1 = 4 << 20, 8 << 20, 12 << 20
WS_ST, WS_CS, WS_FL = 28 << 20, 29 << 20, 30 << 20
WS_ST1, WS_CS1 = 0, 1 << 20
WS_XB = 48 << 20
WS_XF = 31 << 20
FL_CS3, FL_CS1 = WS_FL + 32768, WS_FL + 40960
WS_FD = WS_FL + 65536
SLOT = 49152
LDS_X = 3 * SLOT
L_PAIR = LDS_X
L_CNT = LDS_X + 16
L_LCNT = LDS_X + 20
L_NONCE = LDS_X + 32
L_P0 = LDS_X + 64
L_ROW = LDS_X + 256
L_RS = L_ROW + 2048
L_NM = L_RS + 1024
L_CS = L_NM + 1024
L_B1 = L_CS + 1024
L_SC = L_B1 + 1024
L_SS = L_SC + 4096
LDS_TOTAL = L_SS + 4096
PX, PWQKV, PWO, PW1, PB1, PW2, PB2, POUT, PDBG, PWS = 48, 50, 52, 56, 58, 60, 62, 64, 66, 68
NONCE = 74
RES, BIA = 216, 232
BIG = "0x7ffffff0"


def f2u(x):
    return struct.unpack("<I", struct.pack("<f", x))[0]


def hexf(x):
    return "0x%08x" % f2u(x)


def srd(a, d, base, off, nbytes):
    if off:
        a(f"s_add_u32 s{d}, s{base}, {off}")
        a(f"s_addc_u32 s{d+1}, s{base+1}, 0")
    else:
        a(f"s_mov_b32 s{d}, s{base}")
        a(f"s_mov_b32 s{d+1}, s{base+1}")
    a(f"s_mov_b32 s{d+2}, {nbytes}")
    a(f"s_mov_b32 s{d+3}, 0x20000")


def round_bf16(a, v):
    a(f"v_cvt_pk_bf16_f32 v{v}, v{v}, v{v}")
    a(f"v_lshlrev_b32 v{v}, 16, v{v}")


def xrow_reduce_multi(a, op, vs, ts):
    for sw in ("v_permlane16_swap_b32", "v_permlane32_swap_b32"):
        for v, t in zip(vs, ts):
            a(f"v_mov_b32 v{t}, v{v}")
        for v, t in zip(vs, ts):
            a(f"{sw} v{v}, v{t}")
        for v, t in zip(vs, ts):
            a(f"{op} v{v}, v{v}, v{t}")


def wave_sum_multi(a, vs, ts):
    for p in ("quad_perm:[1,0,3,2]", "quad_perm:[2,3,0,1]", "row_half_mirror", "row_mirror"):
        for v in vs:
            a(f"v_add_f32_dpp v{v}, v{v}, v{v} {p} row_mask:0xf bank_mask:0xf")
    xrow_reduce_multi(a, "v_add_f32", vs, ts)


def ln_finish(a, mean, var, out):
    round_bf16(a, mean)
    round_bf16(a, var)
    a(f"v_add_f32 v{var}, {hexf(1e-5)}, v{var}")
    round_bf16(a, var)
    a(f"v_sqrt_f32 v{var}, v{var}")
    round_bf16(a, var)
    a(f"v_rcp_f32 v{out}, v{var}")
    a(f"v_mul_f32 v{out+1}, v{mean}, v{out}")
    a(f"v_sub_f32 v{out+1}, 0, v{out+1}")


STAMPS = {"c": [], "l": []}


DBG = []


def stamp(a, role, name):
    if OPT["dbgt"] and role == "c" and name not in ("start", "p0_done") and not name.endswith("stored") or (OPT["dbgt"] and name == "p4_stored"):
        if name not in DBG:
            DBG.append(name)
        a("s_memrealtime s[100:101]")
        a("s_waitcnt lgkmcnt(0)")
        a(f"v_writelane_b32 v255, s100, {DBG.index(name)}")
        if name == "p4_stored":
            a("s_cmp_lg_u32 s6, 0")
            a("s_cbranch_scc1 DBG_e")
            a("v_mov_b32 v254, s100")
            a("v_mov_b32 v253, 0")
            a("s_mov_b64 exec, 1")
            a(f"global_atomic_umax v253, v254, s[{PDBG}:{PDBG+1}] offset:60")
            a("s_mov_b64 exec, 0xfff")
            a(f"s_cmp_lg_u32 s2, {OPT['dbgt']-1}")
            a("s_cbranch_scc1 DBG_e")
            a("v_lshlrev_b32 v253, 2, v1")
            a(f"global_store_dword v253, v255, s[{PDBG}:{PDBG+1}] offset:8")
            a("DBG_e:")
            a("s_mov_b64 exec, -1")
    if not OPT["stamp"]:
        return
    if name in STAMPS[role]:
        i = STAMPS[role].index(name)
    else:
        i = len(STAMPS[role])
        STAMPS[role].append(name)
    a("s_memtime s[100:101]")
    a("s_waitcnt lgkmcnt(0)")
    a(f"v_writelane_b32 v254, s100, {i}")
    a("s_memrealtime s[100:101]")
    a("s_waitcnt lgkmcnt(0)")
    a(f"v_writelane_b32 v255, s100, {i}")


def stamp_flush(a, wavereg_off):
    if not OPT["stamp"]:
        return
    a("v_lshlrev_b32 v2, 2, v1")
    a("s_lshl_b32 s100, s2, 3")
    a(f"s_add_u32 s100, s100, s6")
    a(f"s_add_u32 s100, s100, {wavereg_off}")
    a("s_lshl_b32 s100, s100, 9")
    a(f"s_add_u32 s100, s100, {32<<20}")
    a("v_add_u32 v2, s100, v2")
    a(f"global_store_dword v2, v254, s[{PWS}:{PWS+1}]")
    a(f"global_store_dword v2, v255, s[{PWS}:{PWS+1}] offset:256")
    if OPT["stamp"] == 2:
        a(f"v_add_u32 v2, {8<<20}, v2")
        a(f"global_store_dword v2, v252, s[{PWS}:{PWS+1}]")
        a(f"global_store_dword v2, v253, s[{PWS}:{PWS+1}] offset:256")


class G:
    pass


def phase_cfgs():
    P = {}
    g = G(); P[1] = g
    g.n, g.KS, g.nst, g.B448 = 1, 64, 16, False
    g.nA, g.nB, g.strideB, g.Boff, g.KT = 18, 24, 6144, 24576, 0
    g.A = (PX, 0, S * D * 2); g.B = (PWQKV, 0, D * 3 * D * 2); g.map = OPT["map1"]
    g = G(); P[2] = g
    g.n, g.KS, g.nst, g.B448 = 2, 128, 8, False
    g.nA, g.nB, g.strideB, g.Boff, g.KT = 32, 16, 2048, 32768, 32
    g.A = (PWS, WS_O, S * D * 2); g.B = (PWO, 0, D * D * 2); g.map = 0
    g = G(); P[3] = g
    g.n, g.KS, g.nst, g.B448 = 3, 64, 16, True
    g.nA, g.nB, g.strideB, g.Boff, g.KT = 16, 32, 7168, 16384, 32
    g.A = (PWS, WS_H, S * D * 2); g.B = (PW1, 0, D * F * 2); g.map = OPT["map3"]
    g = G(); P[4] = g
    g.n, g.KS, g.nst, g.B448 = 4, 64, 28, False
    g.nA, g.nB, g.strideB, g.Boff, g.KT = 16, 16, 2048, 16384, 112
    g.A = (PWS, WS_H1, S * F * 2); g.B = (PW2, 0, F * D * 2); g.map = 0
    s = 0
    for p in (1, 2, 3, 4):
        P[p].slot0 = s % 3
        s += P[p].nst
        P[p].mj = (72, 73) if P[p].map else (70, 71)
        if p == 4:
            P[p].mj = (70, 4)
        P[p].exch = ((s - 1) % 3) * SLOT
    return P


PH = phase_cfgs()


def interleave(a, mf, fillers, first=None, dense=0):
    n = len(mf)
    fl = list(fillers)
    gaps = list(range(1, n)) if first is not None else list(range(n))
    k = len(fl)
    assert k <= 2 * len(gaps), (k, len(gaps))
    cnt = {}
    idx = 0
    for gi, g in enumerate(gaps):
        left_gaps = len(gaps) - gi
        c = 2 if (idx < dense or k - idx > left_gaps) else 1
        cnt[g] = min(c, k - idx)
        idx += cnt[g]
    idx = 0
    for i in range(n):
        a(mf[i])
        if i == 0 and first is not None:
            for f in first:
                a(f)
        for _ in range(cnt.get(i, 0)):
            a(fl[idx])
            idx += 1
    assert idx == k


def nonce_load(a, vt):
    a(f"v_mov_b32 v{vt}, 0")
    a(f"global_load_dwordx2 v[{vt+2}:{vt+3}], v{vt}, s[{PDBG}:{PDBG+1}] sc1")


def nonce_check(a, lab, vt):
    a("s_mov_b32 s3, 0x40000")
    a(f"{lab}_nl:")
    a(f"v_readfirstlane_b32 s{NONCE}, v{vt+2}")
    a(f"v_readfirstlane_b32 s{NONCE+1}, v{vt+3}")
    a(f"s_cmp_lg_u32 s{NONCE}, 0")
    a(f"s_cbranch_scc1 {lab}_nd")
    a(f"global_load_dwordx2 v[{vt+2}:{vt+3}], v{vt}, s[{PDBG}:{PDBG+1}] sc1")
    a("s_waitcnt vmcnt(0)")
    a("s_sub_u32 s3, s3, 1")
    a("s_cmp_lg_u32 s3, 0")
    a(f"s_cbranch_scc1 {lab}_nl")
    a(f"{lab}_nd:")


def signal(a, off_sgpr, vt):
    a(f"v_mov_b32 v{vt}, s{off_sgpr}")
    a(f"v_mov_b32 v{vt+2}, s{NONCE}")
    a(f"v_mov_b32 v{vt+3}, s{NONCE+1}")
    a("s_mov_b64 exec, 1")
    a(f"global_store_dwordx2 v{vt}, v[{vt+2}:{vt+3}], s[{PWS}:{PWS+1}] sc1")
    a("s_mov_b64 exec, -1")


def flag_off(a, d, base, hi, lo):
    a(f"s_lshl_b32 s{d}, s{lo}, 2")
    a(f"s_add_u32 s{d}, s{d}, s6")
    a(f"s_lshl_b32 s{d}, s{d}, 3")
    a(f"s_lshl_b32 s3, s{hi}, 9")
    a(f"s_add_u32 s{d}, s{d}, s3")
    a(f"s_add_u32 s{d}, s{d}, {base}")


def poll_loads(a, vaddrs, vt):
    for i, v in enumerate(vaddrs):
        a(f"global_load_dwordx2 v[{vt+2*i}:{vt+2*i+1}], v{v}, s[{PWS}:{PWS+1}] sc1")


def poll_check(a, lab, vaddrs, vt):
    a("s_mov_b32 s3, 0x40000")
    a(f"{lab}_pl:")
    a(f"v_cmp_eq_u64 vcc, s[{NONCE}:{NONCE+1}], v[{vt}:{vt+1}]")
    for i in range(1, len(vaddrs)):
        a(f"v_cmp_eq_u64 s[34:35], s[{NONCE}:{NONCE+1}], v[{vt+2*i}:{vt+2*i+1}]")
        a("s_and_b64 vcc, vcc, s[34:35]")
    a("s_cmp_eq_u64 vcc, -1")
    a(f"s_cbranch_scc1 {lab}_pd")
    if OPT["sleep"]:
        a(f"s_sleep {OPT['sleep']}")
    poll_loads(a, vaddrs, vt)
    a("s_waitcnt vmcnt(0)")
    a("s_sub_u32 s3, s3, 1")
    a("s_cmp_lg_u32 s3, 0")
    a(f"s_cbranch_scc1 {lab}_pl")
    a(f"{lab}_pd:")


def ld_offsets_A(a, g, vA):
    m, j = g.mj
    if g.KT:
        a(f"s_lshl_b32 s7, s{m}, 3")
        a("s_add_u32 s7, s7, s6")
        a(f"s_mul_i32 s7, s7, {g.KT*1024}")
        if g.n == 4:
            a(f"s_mul_i32 s3, s5, {56*1024}")
            a("s_add_u32 s7, s7, s3")
        a(f"v_lshlrev_b32 v{vA}, 4, v1")
        a(f"v_add_u32 v{vA}, s7, v{vA}")
        a(f"v_add_u32 v{vA+1}, {4*g.KT*1024}, v{vA}")
        return
    a("s_and_b32 s3, s6, 1")
    a("s_lshl_b32 s7, s3, 2")
    a("v_lshrrev_b32 v4, 4, v1")
    a("v_or_b32 v4, s7, v4")
    a("v_xor_b32 v4, v3, v4")
    a("v_lshlrev_b32 v4, 4, v4")
    a(f"s_lshl_b32 s7, s{m}, 7")
    a("s_lshl_b32 s34, s6, 3")
    a("s_add_u32 s7, s7, s34")
    a("s_sub_u32 s7, s7, 16")
    for q in range(5):
        a("v_add_u32 v5, s7, v2")
        if q:
            a(f"v_add_u32 v5, {32*q}, v5")
        else:
            a("v_max_i32 v5, 0, v5")
        a(f"v_lshl_add_u32 v{vA+q}, v5, 11, v4")


def ld_offsets_B(a, g, vB):
    m, j = g.mj
    nBq = g.nB // 4
    if g.B448:
        a("v_lshrrev_b32 v5, 5, v1")
        a("s_lshl_b32 s7, s6, 1")
        a("v_add_u32 v5, s7, v5")
        a("v_and_b32 v6, 3, v5")
        a("v_lshlrev_b32 v6, 1, v6")
        a("v_and_b32 v7, 31, v1")
        a("v_xor_b32 v6, v6, v7")
        a("v_mul_u32_u24 v5, 7168, v5")
        a(f"s_mul_i32 s35, s{j}, 448")
        a("s_andn2_b32 s35, s35, 127")
        a("v_add_u32 v5, s35, v5")
        for q in range(nBq):
            if q < 2:
                if q:
                    a("v_xor_b32 v6, 8, v6")
                a(f"v_lshl_add_u32 v{vB+q}, v6, 4, v5")
                if q:
                    a(f"v_add_u32 v{vB+q}, {8*7168}, v{vB+q}")
            else:
                a(f"v_add_u32 v{vB+q}, {16*7168}, v{vB+q-2}")
    else:
        a("v_bfe_u32 v5, v1, 4, 1")
        a("s_and_b32 s7, s6, 1")
        a("s_lshl_b32 s7, s7, 1")
        a("v_or_b32 v5, s7, v5")
        a("v_lshlrev_b32 v5, 1, v5")
        a("v_xor_b32 v5, v3, v5")
        a("v_lshlrev_b32 v5, 4, v5")
        a(f"s_lshl_b32 s7, s{j}, {8 if g.n == 4 else 7}")
        a("v_add_u32 v5, s7, v5")
        if g.n == 4:
            a(f"s_mul_i32 s7, s5, {1792*2048}")
            a("v_add_u32 v5, s7, v5")
        a("s_lshl_b32 s7, s6, 3")
        a("v_add_u32 v6, s7, v2")
        a(f"v_mul_u32_u24 v6, {g.strideB}, v6")
        a("v_add_u32 v5, v5, v6")
        for q in range(nBq):
            if g.n in (1, 4):
                off = (q >> 1) * (2048 if g.n == 1 else 128) + (q & 1) * 32 * g.strideB
            else:
                off = q * 32 * g.strideB
            a(f"v_add_u32 v{vB+q}, {off}, v5")


def rot_start(a, g, d):
    m, j = g.mj
    if g.map:
        assert g.nst == 16
        a(f"s_mov_b32 s{d}, s{m}")
    else:
        a(f"s_and_b32 s{d}, s{m}, 7")
        if g.nst == 16:
            a(f"s_lshl_b32 s{d}, s{d}, 1")
        elif g.nst == 28:
            a(f"s_mul_i32 s{d}, s{d}, 7")
            a(f"s_lshr_b32 s{d}, s{d}, 1")


RDY, TMO, PF = 94, 96, 40
LAB = [0]


def poll_once(a):
    a("s_mov_b64 exec, 0xffff")
    a(f"global_load_dwordx2 v[{PF+2}:{PF+3}], v{PF}, s[{PWS}:{PWS+1}] sc1")
    a(f"s_sub_u32 s{TMO}, s{TMO}, 1")
    a("s_waitcnt vmcnt(0)")
    a(f"v_cmp_eq_u64 s[{RDY}:{RDY+1}], s[{NONCE}:{NONCE+1}], v[{PF+2}:{PF+3}]")
    a("s_mov_b64 exec, -1")
    a(f"s_cmp_eq_u32 s{TMO}, 0")
    a(f"s_cselect_b32 s{RDY}, 0xffff, s{RDY}")
    a(f"s_cselect_b32 s{TMO}, 1, s{TMO}")


class Stream:
    def __init__(self, g, isA, srd_, vbase, so, st, lb, sl, of, cur=None):
        self.g, self.isA, self.srd, self.v = g, isA, srd_, vbase
        self.so, self.st, self.lb, self.sl, self.of = so, st, lb, sl, of
        self.cur = cur
        self.frag = isA and g.KT
        self.seg = OPT["seg"] and g.n in (2, 4)
        if self.frag:
            self.step = g.KS * 32
            self.per = g.KS // 32
        else:
            self.step = g.KS * 2 if isA else g.KS * g.strideB

    def seg_so(self, a):
        a(f"s_add_u32 s7, s{self.st}, s{self.of}")
        a("s_and_b32 s7, s7, 3")
        a(f"s_andn2_b32 s{self.so}, s{self.st}, 3")
        a(f"s_add_u32 s{self.so}, s{self.so}, s7")
        if self.cur:
            a(f"s_mov_b32 s{self.cur}, s{self.so}")
        a(f"s_mul_i32 s{self.so}, s{self.so}, {self.step}")

    def init(self, a):
        g = self.g
        m, j = g.mj
        if self.seg:
            a(f"s_and_b32 s{self.st}, s{m}, 7")
            a(f"s_mul_i32 s{self.st}, s{self.st}, {g.nst // 4}")
            a(f"s_lshr_b32 s{self.st}, s{self.st}, 3")
            a(f"s_lshl_b32 s{self.st}, s{self.st}, 2")
            if OPT["seg"] == 2 and g.n == 4:
                a(f"s_mov_b32 s{self.st}, 0")
            a(f"s_add_u32 s{self.of}, s{m}, s{j}")
            self.seg_so(a)
        else:
            rot_start(a, g, self.st)
            a(f"s_mul_i32 s{self.so}, s{self.st}, {self.step}")
        a(f"s_mul_i32 s{self.lb}, s6, {1024*self.per if self.frag else 1024}")
        off = g.slot0 * SLOT + (0 if self.isA else g.Boff)
        if off:
            a(f"s_add_u32 s{self.lb}, s{self.lb}, {off}")
        a(f"s_mov_b32 s{self.sl}, {g.slot0}")

    def need(self, a, ok):
        g = self.g
        cur = self.cur if self.seg else self.st
        a(f"s_cmp_eq_u32 s{RDY}, 0xffff")
        a(f"s_cbranch_scc1 {ok}")
        if g.n == 2:
            a(f"s_lshl_b32 s3, s{cur}, 1")
            a("s_lshl_b32 s34, 3, s3")
        elif g.n == 3:
            a(f"s_lshl_b32 s34, 1, s{cur}")
        else:
            a("s_mul_i32 s3, s5, 28")
            a(f"s_add_u32 s3, s3, s{cur}")
            a(f"s_mul_i32 s3, s3, {2*9363}")
            a(f"s_add_u32 s7, s3, 9363")
            a("s_lshr_b32 s3, s3, 16")
            a("s_lshr_b32 s7, s7, 16")
            a("s_lshl_b32 s34, 1, s3")
            a("s_bitset1_b32 s34, s7")
        a(f"s_andn2_b32 s3, s34, s{RDY}")
        a(f"s_cbranch_scc0 {ok}")

    def wait_ready(self, a):
        if not self.frag:
            return
        LAB[0] += 1
        L = f"WR{LAB[0]}"
        self.need(a, f"{L}_ok")
        a(f"{L}_t:")
        poll_once(a)
        a(f"s_andn2_b32 s3, s34, s{RDY}")
        a(f"s_cbranch_scc0 {L}_ok")
        if OPT["sleep"]:
            a(f"s_sleep {OPT['sleep']}")
        a(f"s_branch {L}_t")
        a(f"{L}_ok:")

    def loads(self, n, nt=False):
        out = []
        if self.frag:
            for q in range(n):
                u, k = q // self.per, q % self.per
                out.append((f"s_add_u32 m0, s{self.lb}, {u*4096*self.per}",
                            f"buffer_load_dwordx4 v{self.v+u}, s[{self.srd}:{self.srd+3}], s{self.so} offen offset:{k*1024} sc1 lds"))
            return out
        return [(f"s_add_u32 m0, s{self.lb}, {q*4096}",
                 f"buffer_load_dwordx4 v{self.v+q}, s[{self.srd}:{self.srd+3}], s{self.so} offen {'nt ' if (nt and not self.isA) else ''}lds") for q in range(n)]

    def advance(self, a):
        if not self.seg:
            a(f"s_add_u32 s{self.so}, s{self.so}, {self.step}")
        a(f"s_add_u32 s{self.st}, s{self.st}, 1")
        a(f"s_cmp_eq_u32 s{self.st}, {self.g.nst}")
        a(f"s_cselect_b32 s{self.st}, 0, s{self.st}")
        if self.seg:
            self.seg_so(a)
        else:
            a(f"s_cselect_b32 s{self.so}, 0, s{self.so}")
        a(f"s_add_u32 s{self.lb}, s{self.lb}, {SLOT}")
        a(f"s_add_u32 s{self.sl}, s{self.sl}, 1")
        a(f"s_cmp_eq_u32 s{self.sl}, 3")
        a(f"s_cselect_b32 s7, {3*SLOT}, 0")
        a(f"s_cselect_b32 s{self.sl}, 0, s{self.sl}")
        a(f"s_sub_u32 s{self.lb}, s{self.lb}, s7")


class Rec:
    def __init__(self):
        self.g = []
        self.open = False

    def __call__(self, t):
        if self.open:
            self.g[-1].append(t)
        else:
            self.g.append([t])

    def begin(self):
        self.g.append([])
        self.open = True

    def end(self):
        self.open = False


def issue(a, items, nt=False, fill=None, ready=True, mid=0):
    if ready:
        for (s_, n) in items:
            s_.wait_ready(a)
    ls = [s.loads(n, nt) for (s, n) in items]
    seq = []
    for q in range(max(len(x) for x in ls)):
        for x in ls:
            if q < len(x):
                seq.append(x[q])
    fill = list(fill or [])
    commit = None
    if OPT["gadv"] and len(items) == 2:
        B_, A_ = items[0][0], items[1][0]
        g_ = A_.g
        pre_ = [f"s_add_u32 s{A_.st}, s{A_.st}, 1", [f"s_cmp_eq_u32 s{A_.st}, {g_.nst}", f"s_cselect_b32 s{A_.st}, 0, s{A_.st}"]]
        if A_.seg:
            pre_ += [f"s_add_u32 s92, s{A_.st}, s{A_.of}", "s_and_b32 s92, s92, 3", f"s_andn2_b32 s93, s{A_.st}, 3",
                     f"s_add_u32 s{A_.cur}, s93, s92"]
            cur = A_.cur
        else:
            cur = A_.st
        pre_ += [f"s_mul_i32 s90, s{cur}, {A_.step}", f"s_mul_i32 s91, s{cur}, {B_.step}",
                 f"s_add_u32 s{A_.sl}, s{A_.sl}, 1",
                 [f"s_cmp_eq_u32 s{A_.sl}, 3", f"s_cselect_b32 s93, {3*SLOT}, 0", f"s_cselect_b32 s{A_.sl}, 0, s{A_.sl}"],
                 f"s_sub_u32 s93, {SLOT}, s93"]
        fill = [(x if isinstance(x, list) else [x]) for x in pre_] + fill
        commit = [f"s_mov_b32 s{A_.so}, s90", f"s_mov_b32 s{B_.so}, s91", f"s_add_u32 s{A_.lb}, s{A_.lb}, s93",
                  f"s_add_u32 s{B_.lb}, s{B_.lb}, s93"]
    per = -(-len(fill) // max(1, len(seq) - 1)) if fill else 0
    last = None
    for k, (m0, ld) in enumerate(seq):
        if m0 != last:
            a(m0)
            last = m0
        a(ld)
        if mid and k == mid - 1:
            a(f"s_waitcnt vmcnt({mid})")
            a("s_barrier")
        for _ in range(per):
            if fill:
                for t in fill.pop(0):
                    a(t)
    for grp in fill:
        for t in grp:
            a(t)
    if commit:
        for t in commit:
            a(t)
    else:
        for (s, n) in items:
            s.advance(a)


ACC, WF, ONE, AD, TB, TT, VT = 64, 96, 128, 132, 133, 134, 32
A_CSS, A_CS3, A_ST, A_GA, A_GB, TID = 136, 137, 138, 139, 156, 157
ST = 140
AD2 = 158
A_XB, ZERO = 180, 184
A_SC = 166
SG = 160
PA = 168


def fold_setup(a, g):
    m, j = g.mj
    p1 = g.n == 1
    nsh = 16 if g.map else 8
    ncol = 3 * D if p1 else F
    wscs, flcs = (WS_CS1, FL_CS1) if p1 else (WS_CS, FL_CS3)
    row = 512 if g.B448 else 128
    a(f"v_and_b32 v{TT}, 15, v1")
    a(f"v_lshrrev_b32 v{AD}, 2, v{TT}")
    a(f"v_lshrrev_b32 v{TB}, 4, v1")
    a(f"v_lshl_add_u32 v{AD}, v{TB}, 3, v{AD}")
    a(f"v_mul_u32_u24 v{AD}, {row}, v{AD}")
    a(f"v_and_b32 v{TT}, 3, v1")
    a(f"v_lshl_add_u32 v{AD}, v{TT}, 3, v{AD}")
    a(f"v_and_b32 v{TB}, 1, v{TB}")
    if g.B448:
        a(f"v_bfe_u32 v{TT}, v1, 2, 2")
        a(f"v_lshl_or_b32 v{TB}, v{TB}, 2, v{TT}")
        a(f"s_and_b32 s3, s{j}, 1")
        a("s_lshl_b32 s3, s3, 1")
        a("s_add_u32 s3, s3, s6")
        a(f"v_add_u32 v{AD}, {g.slot0*SLOT + g.Boff}, v{AD}")
        a("s_add_u32 s7, s3, 4")
        a(f"v_xor_b32 v{TT}, s7, v{TB}")
        a(f"v_lshl_add_u32 v{AD2}, v{TT}, 5, v{AD}")
        a(f"v_xor_b32 v{TT}, s3, v{TB}")
        a(f"v_lshl_add_u32 v{AD}, v{TT}, 5, v{AD}")
    else:
        a(f"v_bfe_u32 v{TT}, v1, 3, 1")
        a(f"v_lshl_or_b32 v{TB}, v{TB}, 1, v{TT}")
        a(f"v_xor_b32 v{TB}, s6, v{TB}")
        a(f"v_lshl_add_u32 v{AD}, v{TB}, 5, v{AD}")
        a(f"v_add_u32 v{AD}, {g.slot0*SLOT + g.Boff}, v{AD}")
    d = SLOT if g.slot0 < 2 else -2 * SLOT
    a(f"v_add_u32 v{AD+3}, {d & 0xffffffff}, v{AD}")
    if g.B448:
        a(f"v_add_u32 v{AD2+1}, {d & 0xffffffff}, v{AD2}")
    for i in range(4):
        a(f"v_mov_b32 v{ONE+i}, 0x3f803f80")
    for i in range(16):
        a(f"v_mov_b32 v{ACC+i}, 0")
    srd(a, 24, PWS, wscs, 16 * ncol * 4)
    if p1:
        srd(a, 28, PWS, WS_ST1, S * 8)
    else:
        srd(a, 28, PWS, WS_ST, 16 * S * 8)
        srd(a, 76, PB1, 0, F * 2)
    a(f"v_lshrrev_b32 v{TT}, 4, v1")
    a(f"v_lshlrev_b32 v{TT}, 4, v{TT}")
    a(f"s_mul_i32 s3, s{m}, {ncol*4}")
    a(f"s_mul_i32 s7, s{j}, {256 if p1 else 896}")
    a("s_add_u32 s3, s3, s7")
    a("s_lshl_b32 s7, s6, 6")
    a("s_add_u32 s3, s3, s7")
    a(f"v_add_u32 v{TT}, s3, v{TT}")
    a(f"v_and_b32 v{TB}, 15, v1")
    a(f"v_cmp_eq_u32 vcc, 0, v{TB}")
    a(f"v_mov_b32 v{TB}, {BIG}")
    a(f"v_cndmask_b32 v{A_CSS}, v{TB}, v{TT}, vcc")
    a("s_lshl_b32 s3, s6, 6")
    a(f"v_add_u32 v{TID}, s3, v1")
    if p1:
        a("s_mov_b32 s80, 4096")
        a("s_mov_b32 s81, 8192")
        a(f"s_lshl_b32 s3, s{m}, 10")
        a(f"s_lshl_b32 s7, s{j}, 6")
        a("s_add_u32 s3, s3, s7")
        a("s_lshl_b32 s7, s6, 4")
        a("s_add_u32 s3, s3, s7")
        a(f"v_mov_b32 v{TT}, s3")
        a("v_cmp_eq_u32 vcc, 0, v1")
        a(f"v_cndmask_b32 v{A_ST}, v{TB}, v{TT}, vcc")
        a("v_cmp_gt_u32 vcc, 48, v1")
        a(f"v_lshrrev_b32 v{TT}, 4, v1")
        a(f"v_lshlrev_b32 v{TT}, 12, v{TT}")
        a(f"v_and_b32 v{A_GA}, 15, v1")
        a(f"v_lshl_add_u32 v{TT}, v{A_GA}, 4, v{TT}")
        a(f"s_lshl_b32 s3, s{j}, 8")
        a(f"v_add_u32 v{TT}, s3, v{TT}")
        a(f"v_cndmask_b32 v{A_GA}, v{TB}, v{TT}, vcc")
        a(f"s_lshl_b32 s3, s{m}, 7")
        a("s_sub_u32 s3, s3, 16")
        a(f"v_add_u32 v{TT}, s3, v{TID}")
        a(f"v_max_i32 v{TT}, 0, v{TT}")
        a(f"v_lshlrev_b32 v{TT}, 3, v{TT}")
        a(f"v_cmp_gt_u32 vcc, 144, v{TID}")
        a(f"v_cndmask_b32 v{A_GB}, v{TB}, v{TT}, vcc")
    else:
        a("s_cmp_ge_u32 s6, 2")
        a(f"s_cselect_b32 s3, {BIG}, 0")
        a(f"v_max_u32 v{A_CS3}, s3, v{A_CSS}")
        a(f"v_lshlrev_b32 v{A_ST}, 4, v1")
        a(f"s_lshl_b32 s3, s{m}, 10")
        a("s_lshl_b32 s7, s6, 16")
        a("s_add_u32 s3, s3, s7")
        a(f"v_add_u32 v{A_ST}, s3, v{A_ST}")
        a("v_cmp_gt_u32 vcc, 56, v1")
        a(f"v_lshlrev_b32 v{TT}, 4, v1")
        a(f"s_mul_i32 s3, s{j}, 896")
        a(f"v_add_u32 v{TT}, s3, v{TT}")
        a(f"v_cndmask_b32 v{A_GA}, v{TB}, v{TT}, vcc")
        a(f"v_cmp_gt_u32 vcc, 224, v{TID}")
        a(f"v_lshlrev_b32 v{TT}, 1, v{TID}")
        a(f"s_mul_i32 s3, s{j}, 448")
        a(f"v_add_u32 v{TT}, s3, v{TT}")
        a(f"v_cndmask_b32 v{A_GB}, v{TB}, v{TT}, vcc")
    if nsh == 8:
        a(f"s_and_b32 s82, s{m}, 8")
        a(f"s_mul_i32 s82, s82, {ncol*4}")
    else:
        a("s_mov_b32 s82, 0")
    a(f"s_mul_i32 s3, s6, {(nsh // 4) * ncol * 4}")
    a("s_add_u32 s82, s82, s3")
    a(f"v_lshlrev_b32 v{A_SC}, 4, v1")
    a("s_lshl_b32 s3, s6, 10")
    a(f"s_add_u32 s3, s3, {L_SC}")
    a(f"v_add_u32 v{A_SC}, s3, v{A_SC}")
    srd(a, 84, PWS, WS_FL, 65536)
    a("v_cmp_eq_u32 vcc, 0, v1")
    flag_off(a, 7, flcs - WS_FL, j, m)
    a(f"v_mov_b32 v{TT}, s7")
    a(f"v_cndmask_b32 v{SG}, v{TB}, v{TT}, vcc")
    if p1:
        flag_off(a, 7, 0, m, j)
        a(f"v_mov_b32 v{TT}, s7")
        a(f"v_cndmask_b32 v{SG+4}, v{TB}, v{TT}, vcc")
    else:
        a(f"v_mov_b32 v{SG+2}, s{NONCE}")
        a(f"v_mov_b32 v{SG+3}, s{NONCE+1}")
    a(f"v_lshlrev_b32 v{PA}, 3, v1")
    a(f"s_lshl_b32 s3, s{j}, 9")
    a(f"s_add_u32 s3, s3, {flcs}")
    if p1:
        a(f"s_lshl_b32 s7, s{m}, 9")
        a(f"s_add_u32 s7, s7, {WS_FL}")
        a(f"v_add_u32 v{PA+1}, s7, v{PA}")
        a(f"v_or_b32 v{PA+2}, 56, v1")
        a(f"v_lshlrev_b32 v{PA+2}, 3, v{PA+2}")
        a(f"s_cmp_eq_u32 s{m}, 0")
        a("s_cselect_b32 s34, 0, 512")
        a("s_sub_u32 s7, s7, s34")
        a(f"v_add_u32 v{PA+2}, s7, v{PA+2}")
    if nsh == 8:
        a(f"v_and_b32 v{PA}, 0xff, v{PA}")
        a(f"s_and_b32 s7, s{m}, 8")
        a("s_lshl_b32 s7, s7, 5")
        a("s_add_u32 s3, s3, s7")
    a(f"v_add_u32 v{PA}, s3, v{PA}")
    if p1:
        a("s_lshl_b32 s3, s6, 4")
        a(f"s_add_u32 s3, s3, {L_P0}")
        a(f"v_mov_b32 v{TB}, s3")
        a(f"v_mov_b32 v{VT}, 0")
        a(f"v_mov_b32 v{VT+1}, {L_NONCE}")
        a("s_lshl_b32 s3, s2, 2")
        a("s_add_u32 s3, s3, s6")
        a("s_lshl_b32 s3, s3, 13")
        a(f"s_add_u32 s3, s3, {WS_XB}")
        a(f"v_lshlrev_b32 v{A_XB}, 4, v1")
        a(f"v_add_u32 v{A_XB}, s3, v{A_XB}")
        a(f"v_add_u32 v{A_XB+1}, 4096, v{A_XB}")
        for i in range(4):
            a(f"v_mov_b32 v{ZERO+i}, 0")


LGK = [False]
WARM = {"left": [56, 56], "save": None}


def warm(a, n, iters=1):
    if not OPT["warm"]:
        return
    w = 0 if WARM["phase"] == 1 else 1
    n = min(n, WARM["left"][w] // iters)
    if n <= 0:
        return
    WARM["left"][w] -= n * iters
    b = 88 if w else 32
    for i in range(n):
        a(f"s_load_dwordx2 s[{90+2*(i&1)}:{91+2*(i&1)}], s[{b}:{b+1}], {60+128*i}")
    a(f"s_add_u32 s{b}, s{b}, {128*n}")
    a(f"s_addc_u32 s{b+1}, s{b+1}, 0")


def fold_body(a, g, both, c, loop, sfx):
    p1 = g.n == 1
    P = f"LD{g.n}{sfx}"
    nsh = 16 if g.map else 8
    nstg = 1 if g.map else 2
    nu = 3 if p1 else 4
    ncol = 3 * D if p1 else F
    npw = nsh // 4

    def cs_reads(r, ad):
        for h in range(2):
            for i in range(nu):
                for jj in range(2):
                    off = (i * 8192 + jj * 512 + h * 4096) if p1 else ((i >> 1) * 256 + jj * 2048 + h * 16384)
                    v = ad if (p1 or not i & 1) else (AD2 if ad == AD else AD2 + 1)
                    r(f"ds_read_b64_tr_b16 {vr(WF+16*h+4*i+2*jj,2)}, v{v} offset:{off}")
        LGK[0] = True

    def cs_mfma(r):
        for h in range(2):
            for i in range(nu):
                r(f"v_mfma_f32_16x16x32_bf16 {vr(ACC+4*i,4)}, {vr(WF+16*h+4*i,4)}, {vr(ONE,4)}, {vr(ACC+4*i,4)}")

    def f0(r):
        if p1:
            r(f"ds_read_b128 {vr(ST,4)}, v{TB}")
        cs_reads(r, AD)
        return 0

    def f1(r):
        n = 0
        if p1:
            r.begin()
            r("s_mov_b64 exec, 1")
            r(f"buffer_store_dwordx4 {vr(ST,4)}, v{A_ST}, s[28:31], 0 offen sc1")
            r(f"global_load_dwordx2 v[{VT+2}:{VT+3}], v{VT}, s[{PDBG}:{PDBG+1}] sc1")
            r("s_mov_b64 exec, -1")
            r.end()
            n = 2
        cs_mfma(r)
        if nstg == 2:
            cs_reads(r, AD + 3)
        return n

    def f2(r):
        cs_mfma(r)
        return 0

    def f3(r):
        for i in range(nu):
            r.begin()
            r("s_mov_b32 exec_lo, 0x10001")
            r("s_mov_b32 exec_hi, 0x10001")
            if p1:
                r(f"buffer_store_dwordx4 {vr(ACC+4*i,4)}, v{A_CSS}, s[24:27], {['0','s80','s81'][i]} offen sc1")
            else:
                r(f"buffer_store_dwordx4 {vr(ACC+4*i,4)}, v{A_CSS if i < 3 else A_CS3}, s[24:27], 0 offen offset:{i*256} sc1")
            r("s_mov_b64 exec, -1")
            r.end()
        return nu

    def post3():
        nonce_check(a, P, VT)
        a(f"v_mov_b32 v{SG+2}, s{NONCE}")
        a(f"v_mov_b32 v{SG+3}, s{NONCE+1}")
        a(f"ds_write_b64 v{VT+1}, {vr(SG+2,2)}")

    def f5(r):
        r.begin()
        r("s_mov_b64 exec, 1")
        r(f"buffer_store_dwordx2 {vr(SG+2,2)}, v{SG}, s[84:85+2], 0 offen sc1".replace("85+2", "87"))
        if p1:
            r(f"buffer_store_dwordx2 {vr(SG+2,2)}, v{SG+4}, s[84:87], 0 offen sc1")
        r("s_mov_b64 exec, -1")
        r.end()
        return 2 if p1 else 1

    def pre_allready():
        a(f"{P}_ar:")
        a(f"s_cmp_eq_u32 s{RDY}, 0xffff")
        a(f"s_cbranch_scc1 {P}_ar2")
        poll_once(a)
        a(f"s_branch {P}_ar")
        a(f"{P}_ar2:")

    def f_stload(r):
        for i in range(4):
            r.begin()
            r(f"s_mov_b32 s3, {i*16384}")
            r(f"buffer_load_dwordx4 {vr(ST+4*i,4)}, v{A_ST}, s[28:31], s3 offen sc1")
            r.end()
        return 4

    def f_st1(r):
        for i in range(8):
            r(f"v_add_f32 v{ST+i}, v{ST+i}, v{ST+8+i}")
        for i in range(4):
            r(f"v_add_f32 v{ST+i}, v{ST+i}, v{ST+4+i}")
        r(f"ds_write_b128 v{A_SC}, {vr(ST,4)} offset:{L_SS-L_SC}")
        r(f"v_and_b32 v{TT}, 127, v{TID}")
        r(f"v_lshlrev_b32 v{TT}, 3, v{TT}")
        r(f"v_add_u32 v{TB}, {L_SS}, v{TT}")
        r(f"v_add_u32 v{TT}, {L_ROW}, v{TT}")
        r("s_waitcnt lgkmcnt(0)")
        return 0

    def f_st2(r):
        r(f"ds_read2st64_b64 {vr(ST,4)}, v{TB} offset0:0 offset1:2")
        r(f"ds_read2st64_b64 {vr(ST+4,4)}, v{TB} offset0:4 offset1:6")
        r("s_waitcnt lgkmcnt(0)")
        for i in range(4):
            r(f"v_add_f32 v{ST+i}, v{ST+i}, v{ST+4+i}")
        r(f"v_add_f32 v{ST}, v{ST}, v{ST+2}")
        r(f"v_add_f32 v{ST+1}, v{ST+1}, v{ST+3}")
        r(f"v_mul_f32 v{ST}, {hexf(1/1024)}, v{ST}")
        r(f"v_mul_f32 v{ST+1}, {hexf(1/1024)}, v{ST+1}")
        r(f"v_fma_f32 v{ST+1}, -v{ST}, v{ST}, v{ST+1}")
        r(f"v_max_f32 v{ST+1}, 0, v{ST+1}")
        ln_finish(r, ST, ST + 1, ST + 2)
        r(f"ds_write_b64 v{TT}, {vr(ST+2,2)}")
        return 0

    def mk_prew(k):
        def f(r):
            for gi in (2 * k, 2 * k + 1):
                r(f"global_store_dwordx4 v{A_XB+(gi>>2)}, {vr(ZERO,4)}, s[{PWS}:{PWS+1}] offset:{(gi&3)*1024} sc1")
            return 2
        return f

    addrs = [PA] + ([PA + 1, PA + 2] if p1 else [])

    def f_poll(r):
        poll_loads(r, addrs, PA + 4)
        return len(addrs)

    def post_check():
        poll_check(a, P + "cs", addrs, PA + 4)

    def tail0():
        a("s_mov_b32 s3, s82")
        for i in range(npw):
            a(f"buffer_load_dwordx4 {vr(ACC+4*i,4)}, v{A_GA}, s[24:27], s3 offen sc1")
            if i < npw - 1:
                a(f"s_add_u32 s3, s3, {ncol*4}")
        if p1:
            a(f"buffer_load_dwordx2 {vr(ST,2)}, v{A_GB}, s[28:31], 0 offen sc1")
        else:
            a(f"buffer_load_ushort v{WF}, v{A_GB}, s[76:79], 0 offen")
            pre_allready()
            r = Rec()
            f_stload(r)
            for grp in r.g:
                for t in grp:
                    a(t)
        a(f"v_lshlrev_b32 v{AD}, 2, v{TID}")
        a(f"v_add_u32 v{TB}, {L_SC}, v{AD}")
        a(f"v_add_u32 v{AD}, {L_RS}, v{AD}")
        if p1:
            a(f"v_lshlrev_b32 v{TT}, 3, v{TID}")
        else:
            a(f"v_and_b32 v{TT}, 127, v{TID}")
            a(f"v_lshlrev_b32 v{TT}, 3, v{TT}")
            a(f"v_add_u32 v{AD2}, {L_SS}, v{TT}")
        a(f"v_add_u32 v{TT}, {L_ROW}, v{TT}")
        a(f"v_mov_b32 v{VT}, {L_LCNT}")
        a(f"v_mov_b32 v{VT+1}, 1")
        return npw + 1 + (0 if p1 else 4)

    def tail1():
        a("s_setprio 3")
        k = npw
        while k > 1:
            k //= 2
            for i in range(4 * k):
                a(f"v_add_f32 v{ACC+i}, v{ACC+i}, v{ACC+i+4*k}")
        a(f"ds_write_b128 v{A_SC}, {vr(ACC,4)}")
        if not p1:
            for i in range(8):
                a(f"v_add_f32 v{ST+i}, v{ST+i}, v{ST+8+i}")
            for i in range(4):
                a(f"v_add_f32 v{ST+i}, v{ST+i}, v{ST+4+i}")
            a(f"ds_write_b128 v{A_SC}, {vr(ST,4)} offset:{L_SS-L_SC}")
        a("s_mov_b64 exec, 1")
        a("s_waitcnt lgkmcnt(0)")
        a(f"ds_add_u32 v{VT}, v{VT+1}")
        a(f"{P}_ls:")
        a(f"ds_read_b32 v{VT+2}, v{VT}")
        a("s_waitcnt lgkmcnt(0)")
        a(f"v_readfirstlane_b32 s3, v{VT+2}")
        a(f"s_cmp_lt_u32 s3, {4 if p1 else 8}")
        a(f"s_cbranch_scc1 {P}_ls")
        a("s_mov_b64 exec, -1")

    def tail2():
        if not p1:
            a(f"ds_read2st64_b64 {vr(ST,4)}, v{AD2} offset0:0 offset1:2")
            a(f"ds_read2st64_b64 {vr(ST+4,4)}, v{AD2} offset0:4 offset1:6")
        a(f"ds_read2st64_b32 {vr(ACC,2)}, v{TB} offset0:0 offset1:4")
        a(f"ds_read2st64_b32 {vr(ACC+2,2)}, v{TB} offset0:8 offset1:12")
        if p1:
            a(f"ds_write_b32 v{AD}, v{ST}")
            a(f"ds_write_b32 v{AD}, v{ST+1} offset:{L_NM-L_RS}")
            a(f"ds_write_b64 v{TT}, {vr(ST,2)}")
        else:
            a(f"v_lshlrev_b32 v{WF}, 16, v{WF}")
            a(f"ds_write_b32 v{AD}, v{WF} offset:{L_B1-L_RS}")
        a("s_waitcnt lgkmcnt(0)")
        a(f"v_add_f32 v{ACC}, v{ACC}, v{ACC+1}")
        a(f"v_add_f32 v{ACC+2}, v{ACC+2}, v{ACC+3}")
        a(f"v_add_f32 v{ACC}, v{ACC}, v{ACC+2}")
        a(f"ds_write_b32 v{AD}, v{ACC} offset:{L_CS-L_RS}")
        if not p1:
            for i in range(4):
                a(f"v_add_f32 v{ST+i}, v{ST+i}, v{ST+4+i}")
            a(f"v_add_f32 v{ST}, v{ST}, v{ST+2}")
            a(f"v_add_f32 v{ST+1}, v{ST+1}, v{ST+3}")
            a(f"v_mul_f32 v{ST}, {hexf(1/1024)}, v{ST}")
            a(f"v_mul_f32 v{ST+1}, {hexf(1/1024)}, v{ST+1}")
            a(f"v_fma_f32 v{ST+1}, -v{ST}, v{ST}, v{ST+1}")
            a(f"v_max_f32 v{ST+1}, 0, v{ST+1}")
            ln_finish(a, ST, ST + 1, ST + 2)
            a(f"ds_write_b64 v{TT}, {vr(ST+2,2)}")
        a("s_waitcnt lgkmcnt(0)")
        a(f"s_setprio {OPT['prio']}")

    fill = {1: f1, 3: f3, 5: f5, 11: f_poll}
    post = {13: post_check}
    pre = {}
    nowarm = {0, 1}
    if nstg == 2:
        fill[2] = f2
    fill[0] = f0
    i = 0
    if p1:
        post[3] = post3

    if not OPT["warm"]:
        nowarm = set()
    tag = 0
    special = set(fill) | set(post) | set(pre) | nowarm
    while i <= g.nst - 3:
        if i in special:
            if i in pre:
                pre[i]()
            r = Rec()
            LGK[0] = False
            x = fill[i](r) if i in fill else 0
            hot = any(t.startswith("v_") for grp in r.g for t in grp)
            if hot:
                a("s_setprio 3")
            issue(a, both, fill=r.g)
            if hot:
                a(f"s_setprio {OPT['prio']}")
            if i in post:
                post[i]()
            if i not in nowarm:
                warm(a, WARM["rate"])
            a(f"s_waitcnt vmcnt({c+x})" + (" lgkmcnt(0)" if LGK[0] else ""))
            a("s_barrier")
            i += 1
        else:
            k = i
            while k <= g.nst - 3 and k not in special:
                k += 1
            loop(f"t{tag}", k - i)
            tag += 1
            i = k
    return tail0, tail1, tail2


def code_touch(a, lab0, lab1, vt, vo, always=False):
    if not OPT["ctouch"]:
        return
    LAB[0] += 1
    L = f"CT{LAB[0]}"
    a("s_getpc_b64 s[34:35]")
    a(f"{L}:")
    a(f"s_add_u32 s34, s34, {lab0}-{L}")
    a(f"s_addc_u32 s35, s35, ({lab0}-{L})>>32")
    a("s_lshl_b32 s3, s6, 7")
    a(f"v_lshlrev_b32 v{vo}, 9, v1")
    a(f"v_add_u32 v{vo}, s3, v{vo}")
    a(f"v_cmp_gt_u32 vcc, {lab1}-{lab0}, v{vo}")
    a("s_mov_b64 exec, vcc")
    if not always:
        a(f"s_cbranch_execz {L}_e")
    a(f"global_load_dword v{vt}, v{vo}, s[34:35]")
    a(f"{L}_e:")
    a("s_mov_b64 exec, -1")


def gen_loader(a):
    a("LOADER:")
    a.hist = []
    a("s_sub_u32 s6, s6, 4")
    if OPT["prio"]:
        a(f"s_setprio {OPT['prio']}")
    a("v_lshrrev_b32 v2, 3, v1")
    a("v_and_b32 v3, 7, v1")
    vA, vBs = 8, [16, 24]
    srdB = [12, 16]
    regsB = [(36, 37, 38, 39, 46), (40, 41, 42, 43, 47)]
    regsA = (20, 21, 22, 23, 45, 97)
    SB = {p: Stream(PH[p], False, srdB[p & 1], vBs[p & 1], *regsB[p & 1]) for p in (1, 2, 3, 4)}

    def prepB(p):
        srd(a, SB[p].srd, *PH[p].B)
        ld_offsets_B(a, PH[p], SB[p].v)
        SB[p].init(a)

    ld_offsets_B(a, PH[1], SB[1].v)
    SB[1].init(a)
    SA1 = Stream(PH[1], True, 8, vA, *regsA)
    ld_offsets_A(a, PH[1], vA)
    SA1.init(a)
    a("s_waitcnt lgkmcnt(0)")
    srd(a, SB[1].srd, *PH[1].B)
    a("s_or_b32 s3, s2, s6")
    a("s_cmp_lg_u32 s3, 0")
    a("s_cbranch_scc1 LD_nopub")
    a("s_memrealtime s[34:35]")
    a("v_mov_b32 v6, 0")
    a("s_waitcnt lgkmcnt(0)")
    a("s_or_b32 s34, s34, 1")
    a("v_mov_b32 v4, s34")
    a("v_mov_b32 v5, s35")
    a("s_mov_b64 exec, 1")
    a(f"global_store_dwordx2 v6, v[4:5], s[{PDBG}:{PDBG+1}] sc1")
    a("s_mov_b64 exec, -1")
    a("LD_nopub:")
    stamp(a, "l", "start")
    a("s_lshl_b32 s3, s2, 2")
    a("s_add_u32 s3, s3, s6")
    a("s_mul_i32 s3, s3, 7168")
    a(f"s_add_u32 s88, s{PW2}, s3")
    a(f"s_addc_u32 s89, s{PW2+1}, 0")
    a(f"s_add_u32 s32, s{PW1}, s3")
    a(f"s_addc_u32 s33, s{PW1+1}, 0")
    for p in (1, 2, 3, 4):
        g = PH[p]
        P = f"LD{p}"
        m, j = g.mj
        SA = Stream(g, True, 8, vA, *regsA)
        srd(a, 8, *g.A)
        if p > 1:
            ld_offsets_A(a, g, vA)
            SA.init(a)
        nBq = g.nB // 4
        nAq = (g.nA + 3) // 4
        if p > 1:
            a(f"s_lshl_b32 s3, s{m}, 11")
            a(f"s_add_u32 s3, s3, {WS_FD + (p-1)*32768}")
            a(f"v_lshlrev_b32 v{PF}, 7, v1")
            a(f"v_add_u32 v{PF}, s3, v{PF}")
            a(f"s_mov_b64 s[{RDY}:{RDY+1}], 0")
            a(f"s_mov_b32 s{TMO}, 0x40000")
            if p < 4:
                prepB(p + 1)
            if p == 3:
                fold_setup(a, g)
            stamp(a, "l", f"p{p}_prepoll")
        variants = [(nAq, "")]
        if g.nA % 4:
            variants = [(nAq, "x"), (nAq - 1, "y")]
            a(f"s_cmp_ge_u32 s6, {g.nA % 4}")
            a(f"s_cbranch_scc1 {P}_y")
        for (na, sfx) in variants:
            if sfx == "y":
                a(f"{P}_y:")
            c = na + nBq
            WARM["phase"], WARM["rate"] = p, OPT[f"wr{p}"] if p < 4 else 0
            if sfx == "x":
                WARM["save"] = list(WARM["left"])
            if sfx == "y":
                WARM["left"] = list(WARM["save"])
            both = [(SB[p], nBq), (SA, na)]
            if p == 1:
                issue(a, both, OPT["nt1"] > 0)
                prepB(2)
                fold_setup(a, g)
                issue(a, both, mid=5)
            else:
                issue(a, [(SA, na)])
                stamp(a, "l", f"p{p}_A0")
                SA.need(a, f"{P}_x1")
                a("s_waitcnt vmcnt(0)")
                a("s_barrier")
                issue(a, [(SA, na)])
                a(f"s_branch {P}_x2")
                a(f"{P}_x1:")
                issue(a, [(SA, na)], ready=False, mid=min(na, 5))
            if p > 1:
                a(f"{P}_x2:")

            def loop(tag, cnt):
                a(f"s_mov_b32 s44, {cnt}")
                a(f"{P}_l{tag}{sfx}:")
                issue(a, both)
                warm(a, WARM["rate"], cnt)
                a(f"s_waitcnt vmcnt({c})")
                a("s_barrier")
                a("s_sub_u32 s44, s44, 1")
                a("s_cmp_lg_u32 s44, 0")
                a(f"s_cbranch_scc1 {P}_l{tag}{sfx}")

            if p in (2, 4):
                loop("a", g.nst - 2)
                tails = (lambda: None, lambda: None, lambda: None)
            else:
                tails = fold_body(a, g, both, c, loop, sfx)
            if p < 4:
                nb2 = PH[p + 1].nB // 4
                ng = tails[0]() or 0
                issue(a, [(SB[p + 1], nb2)])
                a(f"s_waitcnt vmcnt({nb2 + ng})")
                a("s_barrier")
                if ng:
                    a(f"s_waitcnt vmcnt({nb2})")
                tails[1]()
                tails[2]()
                code_touch(a, f"CT_e{p}", f"CT_e{p+1}", 44, 45)
                code_touch(a, f"LD{p}_e", f"LD{p+1}_e", 46, 45)
                a("s_barrier")
                issue(a, [(SB[p + 1], nb2)])
                if p == 1 and OPT["touch1"] and OPT["warm"] and WARM["left"][0]:
                    a(f"v_lshlrev_b32 v{TT}, 7, v1")
                    a(f"s_mov_b64 exec, {hex((1 << WARM['left'][0]) - 1)}")
                    a(f"global_load_dword v{TB}, v{TT}, s[32:33]")
                    a("s_mov_b64 exec, -1")
                if p == 3 and OPT["prew"]:
                    for gi in range(6):
                        a(f"global_store_dwordx4 v{A_XB+(gi>>2)}, {vr(ZERO,4)}, s[{PWS}:{PWS+1}] offset:{(gi&3)*1024} sc1")
                WARM["phase"] = 2
                warm(a, OPT["wg"])
            else:
                a("s_waitcnt vmcnt(0)")
                a("s_barrier")
                code_touch(a, "CT_e4", "KEND", 44, 45)
                a("s_barrier")
            if sfx == "x":
                a(f"s_branch {P}_e")
        a(f"{P}_e:")
    print("warm lines not covered:", WARM["left"])
    stamp(a, "l", "end")
    stamp_flush(a, 4)
    a("s_endpgm")


def gen_mainloop(a, g, P):
    a(f"s_mov_b32 s42, {g.slot0}")
    a(f"s_mov_b32 s46, {(-2*SLOT) & 0xffffffff}")
    a(f"s_mov_b32 s47, {SLOT}")
    a(f"s_mov_b32 s43, {g.nst}")
    a("s_waitcnt lgkmcnt(0)")
    a("s_barrier")
    stamp(a, "c", f"p{g.n}_B0")
    for r in g.reads(0, 0):
        a(r)
    a(f"{P}_loop:")
    U = 1 if OPT["stamp"] == 2 and not OPT["unr"] else max(1, OPT["unr"])
    dn = len(g.reads(0, 0)) if (OPT["rd2"] == 2 or (OPT["rd2"] and g.n in (2, 4))) else 0
    for k in range(U):
        sal = ["s_cmp_eq_u32 s42, 2", "s_cselect_b32 s44, s46, s47"]
        sal2 = ["s_add_u32 s42, s42, 1", "s_cmp_eq_u32 s42, 3", "s_cselect_b32 s42, 0, s42", "s_sub_u32 s43, s43, 1"]
        if k == U - 1:
            sal2 += ["s_cmp_lg_u32 s43, 0"]
        a("s_waitcnt lgkmcnt(0)")
        if OPT["stamp"] == 2:
            base = {1: 0, 2: 17, 3: 26, 4: 0}[g.n]
            a(f"s_add_u32 m0, s43, {base}")
            a(f"v_writelane_b32 v{253 if g.n == 4 else 252}, s98, m0")
            a("s_memtime s[98:99]")
        interleave(a, g.mfmas(0), g.reads(1, 1) + sal + [f"v_add_u32 v{v}, s44, v{v}" for v in g.adv], dense=dn)
        a("s_waitcnt lgkmcnt(0)")
        interleave(a, g.mfmas(1), g.reads(0, 0) + sal2, first=["s_barrier"], dense=dn)
    a(f"s_cbranch_scc1 {P}_loop")
    if P != "P1a":
        a(f"CT_e{g.n}:")
    a("s_waitcnt lgkmcnt(0)")
    if OPT["stamp"] == 2:
        a(f"v_writelane_b32 v{253 if g.n == 4 else 252}, s98, {base}")
    stamp(a, "c", f"p{g.n}_loopend")


L15, GQ = 2, 3


def b_addr128(a, V, units, sbase):
    t = V.alloc()
    f = V.alloc()
    base = V.alloc()
    a(f"v_bfe_u32 v{f}, v{L15}, 3, 1")
    a(f"v_and_b32 v{t}, 1, v{GQ}")
    a(f"v_lshl_or_b32 v{f}, v{t}, 1, v{f}")
    a(f"v_lshrrev_b32 v{t}, 2, v{L15}")
    a(f"v_lshl_add_u32 v{t}, v{GQ}, 3, v{t}")
    a(f"v_lshlrev_b32 v{base}, 7, v{t}")
    a(f"v_and_b32 v{t}, 3, v{L15}")
    a(f"v_lshl_add_u32 v{base}, v{t}, 3, v{base}")
    a(f"v_add_u32 v{base}, s{sbase}, v{base}")
    out = []
    for u in units:
        v0 = V.alloc()
        a(f"v_xor_b32 v{t}, {u}, v{f}")
        a(f"v_lshl_add_u32 v{v0}, v{t}, 5, v{base}")
        out.append(v0)
    return out


def zero_acc(a, acc, n):
    for i in range(n):
        a(f"v_mov_b32 v{acc+i}, 0")


def pair_post(a, tag, vt):
    a("s_lshl_b32 s3, s6, 2")
    a(f"s_add_u32 s3, s3, {L_PAIR}")
    a(f"v_mov_b32 v{vt}, s3")
    a(f"v_mov_b32 v{vt+1}, {tag}")
    a("s_waitcnt lgkmcnt(0)")
    a(f"ds_write_b32 v{vt}, v{vt+1}")


def pair_wait(a, lab, tag, xor, vt):
    a(f"v_xor_b32 v{vt}, {xor*4}, v{vt}")
    a(f"{lab}_ps:")
    a(f"ds_read_b32 v{vt+1}, v{vt}")
    a("s_waitcnt lgkmcnt(0)")
    a(f"v_readfirstlane_b32 s3, v{vt+1}")
    a(f"s_cmp_lg_u32 s3, {tag}")
    a(f"s_cbranch_scc1 {lab}_ps")


def finish_phase(a, p, g, vt):
    m, j = g.mj
    a(f"s_lshl_b32 s7, s{m}, 11")
    a(f"s_lshl_b32 s3, s{j}, 7")
    a("s_add_u32 s7, s7, s3")
    a(f"s_add_u32 s7, s7, {WS_FD + p*32768}")
    a(f"v_mov_b32 v{vt}, {L_CNT}")
    a(f"v_mov_b32 v{vt+1}, 1")
    a(f"v_mov_b32 v{vt+2}, s{NONCE}")
    a(f"v_mov_b32 v{vt+3}, s{NONCE+1}")
    a("s_mov_b64 exec, 1")
    a("s_waitcnt vmcnt(0)")
    a(f"ds_add_rtn_u32 v{vt+1}, v{vt}, v{vt+1}")
    a(f"v_mov_b32 v{vt}, s7")
    a("s_waitcnt lgkmcnt(0)")
    a(f"v_readfirstlane_b32 s3, v{vt+1}")
    a(f"s_cmp_lg_u32 s3, {4*p-1}")
    a(f"s_cbranch_scc1 FIN{p}")
    a(f"global_store_dwordx2 v{vt}, v[{vt+2}:{vt+3}], s[{PWS}:{PWS+1}] sc1")
    a(f"FIN{p}:")
    a("s_mov_b64 exec, -1")
    stamp(a, "c", f"p{p}_done")


def frag_lane_off(a, d, t):
    a(f"v_and_b32 v{t}, 1, v{GQ}")
    a(f"v_lshlrev_b32 v{d}, 9, v{t}")
    a(f"v_lshrrev_b32 v{t}, 1, v{GQ}")
    a(f"v_lshl_add_u32 v{d}, v{t}, 8, v{d}")
    a(f"v_lshl_add_u32 v{d}, v{L15}, 4, v{d}")


def gen_p0(a):
    g = PH[1]
    m, j = g.mj
    a(f"s_lshl_b32 s3, s{m}, 7")
    a(f"s_lshl_b32 s7, s{j}, 3")
    a("s_add_u32 s3, s3, s7")
    a("s_lshl_b32 s7, s6, 1")
    a("s_add_u32 s34, s3, s7")
    a("s_lshl_b32 s3, s34, 11")
    a("v_lshlrev_b32 v4, 4, v1")
    a("s_waitcnt lgkmcnt(0)")
    stamp(a, "c", "start")
    srd(a, 8, PX, 0, S * D * 2)
    for rr in range(2):
        for hh in range(2):
            a(f"buffer_load_dwordx4 v[{24+rr*8+hh*4}:{27+rr*8+hh*4}], v4, s[8:11], s3 offen offset:{rr*2048+hh*1024}")
    a("s_lshl_b32 s3, s6, 2")
    a(f"s_add_u32 s3, s3, {L_PAIR}")
    a("v_mov_b32 v5, s3")
    a("v_mov_b32 v6, 0")
    a("ds_write_b32 v5, v6")
    a(f"v_mov_b32 v5, {L_CNT}")
    a("ds_write_b32 v5, v6")
    a(f"ds_write_b32 v5, v6 offset:{L_LCNT-L_CNT}")


def gen_p0t(a):
    if OPT["prew"]:
        for p in (1, 2, 3):
            m, j = PH[p].mj
            a(f"s_lshl_b32 s7, s{m}, 11")
            a(f"s_lshl_b32 s3, s{j}, 7")
            a("s_add_u32 s7, s7, s3")
            a(f"s_add_u32 s{35+p}, s7, {WS_FD + p*32768}")
        a("s_cmp_eq_u32 s6, 2")
        a("s_cselect_b32 s36, s37, s36")
        a("s_cmp_eq_u32 s6, 3")
        a("s_cselect_b32 s36, s38, s36")
        a("v_lshlrev_b32 v54, 4, v1")
        a("v_add_u32 v54, s36, v54")
        for i in range(4):
            a(f"v_mov_b32 v{56+i}, 0")
        a("s_mov_b64 exec, 0xff")
        a(f"global_store_dwordx4 v54, v[56:59], s[{PWS}:{PWS+1}] sc1")
        a("s_mov_b64 exec, -1")
    code_touch(a, "CT_s", "CT_e1", 240, 51, True)
    code_touch(a, "LOADER", "LD1_e", 241, 51, True)
    a("CT_s:")


def gen_p0b(a):
    a(f"s_waitcnt vmcnt({(2 if OPT['ctouch'] else 0) + (1 if OPT['prew'] else 0)})")
    a("v_mov_b32 v48, 0x3f803f80")
    R = [40, 41, 42, 43]
    for i in range(8):
        for rr in range(2):
            x = 24 + rr * 8 + i
            a(f"v_dot2_f32_bf16 v{R[2*rr]}, v{x}, v48, {'0' if i == 0 else 'v%d' % R[2*rr]}")
            a(f"v_dot2_f32_bf16 v{R[2*rr+1]}, v{x}, v{x}, {'0' if i == 0 else 'v%d' % R[2*rr+1]}")
    a("s_nop 2")
    wave_sum_multi(a, R, [44, 45, 46, 47])
    for rr in range(2):
        a(f"v_mul_f32 v{R[2*rr]}, {hexf(1.0/1024)}, v{R[2*rr]}")
        a(f"v_mul_f32 v{R[2*rr+1]}, {hexf(1.0/1024)}, v{R[2*rr+1]}")
        a(f"v_fma_f32 v{R[2*rr+1]}, -v{R[2*rr]}, v{R[2*rr]}, v{R[2*rr+1]}")
        a(f"v_max_f32 v{R[2*rr+1]}, 0, v{R[2*rr+1]}")
    for rr in range(2):
        ln_finish(a, R[2 * rr], R[2 * rr + 1], 44 + 2 * rr)
    a("s_lshl_b32 s3, s6, 4")
    a(f"s_add_u32 s3, s3, {L_P0}")
    a("v_mov_b32 v48, s3")
    a("ds_write_b128 v48, v[44:47]")
    stamp(a, "c", "p0_done")


def gen_p1(a):
    g = PH[1]
    m, j = g.mj
    g2 = PH[2]
    V = Regs("v", 68, RES)
    srd(a, 20, PWS, WS_O, S * D * 2)
    a("s_and_b32 s34, s6, 1")
    a("s_lshr_b32 s35, s6, 1")
    a("s_lshl_b32 s36, s34, 13")
    t = 4
    vA, vAh = [5, 6], [7, 8]
    for h in range(2):
        a(f"v_lshrrev_b32 v{t}, 1, v{L15}")
        a(f"v_xor_b32 v{t}, v{t}, v{GQ}")
        if h:
            a(f"v_xor_b32 v{t}, 4, v{t}")
        a(f"v_lshlrev_b32 v{t}, 4, v{t}")
        a(f"v_lshl_add_u32 v{vAh[h]}, v{L15}, 7, v{t}")
        if g.slot0:
            a(f"v_add_u32 v{vAh[h]}, {g.slot0*SLOT}, v{vAh[h]}")
        a(f"v_add_u32 v{vA[h]}, s36, v{vAh[h]}")
        a(f"v_add_u32 v{vA[h]}, 2048, v{vA[h]}")
    a(f"s_mov_b32 s36, {g.Boff + g.slot0*SLOT}")
    a("s_lshl_b32 s37, s35, 1")
    a("s_add_u32 s38, s37, 1")
    V2 = Regs("v", 12, 24)
    vB = b_addr128(a, V2, ["s37", "s38"], 36)
    acc = V.alloc(104, 4)
    W = [V.alloc(24, 4), 0]
    X = [V.alloc(20, 4), 0]
    W[1], X[1] = 24, 48
    accr = lambda t, u: acc + (t * 4 + u) * 4
    acch = lambda c: acc + 96 + c * 4
    zero_acc(a, acc, 104)
    gen_p0b(a)

    def reads(h, b):
        r = []
        for u in range(4):
            r.append(f"ds_read_b128 {vr(X[b]+4*u,4)}, v{vA[h]} offset:{u*2048}")
        for t in range(6):
            for jj in range(2):
                r.append(f"ds_read_b64_tr_b16 {vr(W[b]+4*t+2*jj,2)}, v{vB[t&1]} offset:{(t>>1)*8192+jj*512+h*4096}")
            if t == 1:
                r.append(f"ds_read_b128 {vr(X[b]+16,4)}, v{vAh[h]}")
        return r

    def mk_mfmas(rsel):
        def mfmas(b):
            ml = []
            for t in range(6):
                for u in (range(4) if t % 2 == 0 else (3, 2, 1, 0)):
                    w, x, d = vr(W[b] + 4 * t, 4), vr(X[b] + 4 * u, 4), vr(accr(t, u), 4)
                    ml.append(f"v_mfma_f32_16x16x32_bf16 {d}, {w}, {x}, {d}" if t < 4 else
                              f"v_mfma_f32_16x16x32_bf16 {d}, {x}, {w}, {d}")
                if (t >> 1) == 1 + rsel:
                    w, x, d = vr(W[b] + 4 * t, 4), vr(X[b] + 16, 4), vr(acch(t & 1), 4)
                    ml.append(f"v_mfma_f32_16x16x32_bf16 {d}, {w}, {x}, {d}" if t < 4 else
                              f"v_mfma_f32_16x16x32_bf16 {d}, {x}, {w}, {d}")
            return ml
        return mfmas

    g.reads = reads
    g.adv = vA + vAh + vB
    a("s_cmp_eq_u32 s34, 1")
    a("s_cbranch_scc1 P1_r1")
    g.mfmas = mk_mfmas(0)
    gen_mainloop(a, g, "P1a")
    a("s_branch P1_epi")
    a("P1_r1:")
    g.mfmas = mk_mfmas(1)
    gen_mainloop(a, g, "P1b")
    a("P1_epi:")
    RP = 24
    CSq = 36
    CSv = 34
    R4 = W[0]
    N4 = W[0] + 20
    assert X[0] == W[0] + 24
    T = 52
    a("s_lshl_b32 s36, s34, 9")
    a(f"s_add_u32 s36, s36, {L_ROW + 128}")
    a(f"v_lshlrev_b32 v4, 3, v{L15}")
    a(f"v_add_u32 v5, {L_ROW}, v4")
    a(f"v_add_u32 v4, s36, v4")
    a(f"ds_read_b64 {vr(RP+8,2)}, v5")
    a(f"v_mov_b32 v16, {L_NONCE}")
    a("ds_read_b64 v[16:17], v16")
    a(f"v_lshlrev_b32 v6, 4, v{GQ}")
    a("s_lshl_b32 s36, s35, 7")
    a(f"s_add_u32 s36, s36, {L_CS}")
    a(f"v_add_u32 v7, s36, v6")
    for c in range(2):
        a(f"ds_read_b128 {vr(CSq+8+4*c,4)}, v7 offset:{256+64*c}")
    a(f"v_lshlrev_b32 v8, 2, v{L15}")
    a(f"v_add_u32 v8, s36, v8")
    a(f"ds_read2_b32 {vr(CSv,2)}, v8 offset0:128 offset1:144")
    a(f"v_add_u32 v9, {L_RS}, v6")
    a(f"ds_read_b128 {vr(R4+16,4)}, v9")
    a(f"ds_read_b128 {vr(N4+16,4)}, v9 offset:{L_NM-L_RS}")
    for u in (3, 2, 1, 0):
        a(f"ds_read_b64 {vr(RP+2*u,2)}, v4 offset:{u*128}")
    a("s_lshl_b32 s36, s34, 8")
    a(f"v_add_u32 v9, s36, v9")
    for u in (3, 2, 1, 0):
        a(f"ds_read_b128 {vr(R4+4*u,4)}, v9 offset:{64+64*u}")
        a(f"ds_read_b128 {vr(N4+4*u,4)}, v9 offset:{64+64*u+L_NM-L_RS}")
    for c in range(2):
        a(f"ds_read_b128 {vr(CSq+4*c,4)}, v7 offset:{64*c}")
    m2, j2 = g2.mj
    a(f"s_lshl_b32 s36, s{m2}, 7")
    a("s_lshl_b32 s37, s34, 6")
    a("s_add_u32 s36, s36, s37")
    a("s_lshl_b32 s37, s35, 5")
    a("s_add_u32 s36, s36, s37")
    a(f"v_add_u32 v10, s36, v{L15}")
    a("v_lshlrev_b32 v10, 11, v10")
    a(f"v_lshl_add_u32 v10, v{GQ}, 3, v10")
    a(f"s_lshl_b32 s36, s{j2}, 7")
    a("s_add_u32 s37, s36, 32768")
    for uu in range(2):
        for t_ in range(4):
            a(f"buffer_load_dwordx2 {vr(RES+8*uu+2*t_,2)}, v10, s[8:11], s{36+uu} offen offset:{32*t_}")

    def fold_qk(d, cs, rp):
        for i in (0, 2):
            a(f"v_pk_mul_f32 {vr(T+i,2)}, {vr(cs+i,2)}, {vr(rp,2)} op_sel:[0,1] op_sel_hi:[1,1]")
        for i in (0, 2):
            a(f"v_pk_fma_f32 {vr(d+i,2)}, {vr(d+i,2)}, {vr(rp,2)}, {vr(T+i,2)} op_sel:[0,0,0] op_sel_hi:[1,0,1]")

    def fold_v(d, c, ui):
        for i in (0, 2):
            a(f"v_pk_mul_f32 {vr(T+i,2)}, {vr(N4+4*ui+i,2)}, {vr(CSv,2)} op_sel:[0,{c}] op_sel_hi:[1,{c}]")
        for i in (0, 2):
            a(f"v_pk_fma_f32 {vr(d+i,2)}, {vr(d+i,2)}, {vr(R4+4*ui+i,2)}, {vr(T+i,2)}")

    def pack(dst, d):
        a(f"v_cvt_pk_bf16_f32 v{dst}, v{d}, v{d+1}")
        a(f"v_cvt_pk_bf16_f32 v{dst+1}, v{d+2}, v{d+3}")

    ex, PV = 12, 14
    a(f"v_lshlrev_b32 v{ex}, 4, v1")
    a("s_mul_i32 s36, s35, 3072")
    a(f"s_add_u32 s36, s36, {g.exch}")
    a(f"v_add_u32 v{ex}, s36, v{ex}")
    Hp = 60
    a("s_waitcnt lgkmcnt(0)")
    a(f"v_readfirstlane_b32 s{NONCE}, v16")
    a(f"v_readfirstlane_b32 s{NONCE+1}, v17")
    a("s_cmp_eq_u32 s34, 1")
    a("s_cbranch_scc1 P1_ex1")
    for c in range(2):
        fold_qk(accr(2 + c, 3), CSq + 8 + 4 * c, RP + 6)
        fold_v(accr(4 + c, 3), c, 3)
    for c in range(2):
        pack(Hp + 2 * c, accr(2 + c, 3))
        pack(Hp + 4 + 2 * c, accr(4 + c, 3))
    a(f"ds_write_b128 v{ex}, {vr(Hp,4)}")
    a(f"ds_write_b128 v{ex}, {vr(Hp+4,4)} offset:1024")
    pair_post(a, 1, PV)
    for c in range(2):
        fold_qk(acch(c), CSq + 8 + 4 * c, RP + 8)
    a("s_branch P1_ex2")
    a("P1_ex1:")
    for c in range(2):
        fold_v(acch(c), c, 4)
    for c in range(2):
        pack(Hp + 2 * c, acch(c))
    a(f"ds_write_b128 v{ex}, {vr(Hp,4)} offset:2048")
    pair_post(a, 1, PV)
    for c in range(2):
        fold_qk(accr(2 + c, 3), CSq + 8 + 4 * c, RP + 6)
        fold_v(accr(4 + c, 3), c, 3)
    a("P1_ex2:")
    for u in range(3):
        for c in range(2):
            fold_qk(accr(2 + c, u), CSq + 8 + 4 * c, RP + 2 * u)
            fold_v(accr(4 + c, u), c, u)
    a(f"s_mov_b32 s36, {hexf(32 ** -0.5 * math.log2(math.e))}")
    a("s_mov_b32 s37, s36")
    for u in range(4):
        a(f"v_pk_mul_f32 {vr(RP+2*u,2)}, {vr(RP+2*u,2)}, s[36:37]")
    for u in range(4):
        for c in range(2):
            fold_qk(accr(c, u), CSq + 4 * c, RP + 2 * u)
    Kf, Vp, Qf = W[0], [W[0] + 20, W[0] + 30], 24
    for u in range(4):
        for c in range(2):
            pack(Kf + 4 * (u + 1) + 2 * c, accr(2 + c, u))
            pack(Vp[c] + 2 * (u + 1), accr(4 + c, u))
            pack(Qf + 4 * u + 2 * c, accr(c, u))
    a("s_cmp_eq_u32 s34, 1")
    a("s_cbranch_scc1 P1_ex3")
    for c in range(2):
        pack(Kf + 2 * c, acch(c))
    pair_wait(a, "P1a", 1, 1, PV)
    for c in range(2):
        a(f"ds_read_b64 {vr(Vp[c],2)}, v{ex} offset:{2048+8*c}")
    a("s_branch P1_ex4")
    a("P1_ex3:")
    pair_wait(a, "P1b", 1, 1, PV)
    a(f"ds_read_b128 {vr(Kf,4)}, v{ex}")
    for c in range(2):
        a(f"ds_read_b64 {vr(Vp[c],2)}, v{ex} offset:{1024+8*c}")
    a("P1_ex4:")
    t0, t1 = acc, acc + 1
    MA, MB = acc + 2, acc + 4
    a(f"v_and_b32 v{t0}, 1, v{L15}")
    a(f"v_cmp_eq_u32 s[76:77], 1, v{t0}")
    a(f"v_lshl_add_u32 v{t0}, v{GQ}, 2, v{t0}")
    a(f"v_cmp_le_u32 s[78:79], v{t0}, v{L15}")
    a(f"v_add_u32 v{t0}, 2, v{t0}")
    a(f"v_cmp_le_u32 s[80:81], v{t0}, v{L15}")
    a(f"v_mov_b32 v{t0}, 0xffff")
    a(f"v_mov_b32 v{t1}, 0xffff0000")
    a(f"v_cndmask_b32 v{t0}, v{t0}, v{t1}, s[76:77]")
    a(f"v_cndmask_b32 v{MA}, v{t0}, 0, s[78:79]")
    a(f"v_cndmask_b32 v{MA+1}, 0, v{t0}, s[78:79]")
    a(f"v_cndmask_b32 v{MB}, v{t0}, 0, s[80:81]")
    a(f"v_cndmask_b32 v{MB+1}, 0, v{t0}, s[80:81]")
    a(f"s_or_b32 s36, s{m}, s34")
    a("s_cmp_eq_u32 s36, 0")
    a("s_cselect_b64 s[82:83], s[78:79], -1")
    a("s_cselect_b64 s[84:85], s[80:81], -1")
    vo = acc + 6
    frag_lane_off(a, vo, t0)
    a(f"s_lshl_b32 s36, s{m}, 3")
    a("s_lshl_b32 s37, s34, 2")
    a("s_add_u32 s36, s36, s37")
    a("s_lshl_b32 s36, s36, 5")
    a(f"s_lshl_b32 s37, s{j}, 1")
    a("s_add_u32 s36, s36, s37")
    a("s_add_u32 s36, s36, s35")
    a("s_lshl_b32 s36, s36, 10")
    a(f"v_add_u32 v{vo}, s36, v{vo}")
    NEG = acc + 7
    a(f"v_mov_b32 v{NEG}, 0xff800000")
    Sc = acc + 8
    for u in (1, 2, 3):
        for blk in range(2):
            a(f"v_mfma_f32_16x16x32_bf16 {vr(Sc+8*u+4*blk,4)}, {vr(Kf+4*(u+blk),4)}, {vr(Qf+4*u,4)}, 0")
    a("s_waitcnt lgkmcnt(0)")
    for blk in (1, 0):
        a(f"v_mfma_f32_16x16x32_bf16 {vr(Sc+4*blk,4)}, {vr(Kf+4*blk,4)}, {vr(Qf,4)}, 0")
    VA, VB_, MX, TM = acc + 40, acc + 44, acc + 48, acc + 52
    order = (1, 2, 3, 0)
    for u in order:
        s = Sc + 8 * u
        a(f"v_cndmask_b32 v{s}, v{s}, v{s+1}, s[76:77]")
        a(f"v_cndmask_b32 v{s+4}, v{s+4}, v{s+5}, s[76:77]")
        a(f"v_cndmask_b32 v{s+2}, v{s+2}, v{s+3}, s[76:77]")
        a(f"v_cndmask_b32 v{s+6}, v{s+6}, v{s+7}, s[76:77]")
        a(f"v_cndmask_b32 v{VA+u}, v{s}, v{s+4}, s[78:79]")
        a(f"v_cndmask_b32 v{VB_+u}, v{s+2}, v{s+6}, s[80:81]")
    a(f"v_cndmask_b32 v{VA}, v{NEG}, v{VA}, s[82:83]")
    a(f"v_cndmask_b32 v{VB_}, v{NEG}, v{VB_}, s[84:85]")
    for u in order:
        a(f"v_max_f32 v{MX+u}, v{VA+u}, v{VB_+u}")
    xrow_reduce_multi(a, "v_max_f32", [MX + u for u in order], [TM + u for u in order])
    for u in order:
        a(f"v_sub_f32 v{VA+u}, v{VA+u}, v{MX+u}")
        a(f"v_sub_f32 v{VB_+u}, v{VB_+u}, v{MX+u}")
    for u in order:
        a(f"v_exp_f32 v{VA+u}, v{VA+u}")
        a(f"v_exp_f32 v{VB_+u}, v{VB_+u}")
    for u in order:
        a(f"v_add_f32 v{MX+u}, v{VA+u}, v{VB_+u}")
    xrow_reduce_multi(a, "v_add_f32", [MX + u for u in order], [TM + u for u in order])
    for u in order:
        a(f"v_rcp_f32 v{MX+u}, v{MX+u}")
    for u in order:
        a(f"v_mul_f32 v{VA+u}, v{VA+u}, v{MX+u}")
        a(f"v_mul_f32 v{VB_+u}, v{VB_+u}, v{MX+u}")
    for u in order:
        a(f"v_cvt_pk_bf16_f32 v{VA+u}, v{VA+u}, v{VA+u}")
        a(f"v_cvt_pk_bf16_f32 v{VB_+u}, v{VB_+u}, v{VB_+u}")
    Pp, Om = acc + 56, acc + 72
    for u in order:
        a(f"v_and_b32 v{Pp+4*u}, v{VA+u}, v{MA}")
        a(f"v_and_b32 v{Pp+4*u+1}, v{VB_+u}, v{MB}")
        a(f"v_and_b32 v{Pp+4*u+2}, v{VA+u}, v{MA+1}")
        a(f"v_and_b32 v{Pp+4*u+3}, v{VB_+u}, v{MB+1}")
    for u in order:
        for c in range(2):
            a(f"v_mfma_f32_16x16x32_bf16 {vr(Om+8*u+4*c,4)}, {vr(Vp[c]+2*u,4)}, {vr(Pp+4*u,4)}, 0")
    for u in range(4):
        a(f"s_mov_b32 s{76+u}, {u*32768}")
    for u in order:
        o = Om + 8 * u
        p = Sc + 4 * u
        for i in range(4):
            a(f"v_cvt_pk_bf16_f32 v{p+i}, v{o+2*i}, v{o+2*i+1}")
    for u in order:
        p = Sc + 4 * u
        a(f"v_permlane16_swap_b32 v{p}, v{p+2}")
        a(f"v_permlane16_swap_b32 v{p+1}, v{p+3}")
        a(f"buffer_store_dwordx4 {vr(p,4)}, v{vo}, s[20:23], s{76+u} offen sc1")
    stamp(a, "c", "p1_stored")
    finish_phase(a, 1, g, acc + 40)


def gen_p24(a, which):
    g = PH[which]
    m, j = g.mj
    k2 = which == 2
    P = f"P{which}"
    V = Regs("v", 4, RES)
    if k2:
        srd(a, 16, PWS, WS_H, S * D * 2)
        srd(a, 24, PWS, WS_ST, 16 * S * 8)
    else:
        srd(a, 16, POUT, 0, S * D * 2)
    a("s_and_b32 s34, s6, 1")
    a("s_lshr_b32 s35, s6, 1")
    vA = [V.alloc(), V.alloc()]
    a("s_lshl_b32 s36, s34, 14")
    a("s_lshl_b32 s37, s35, 11")
    a("s_add_u32 s36, s36, s37")
    a(f"s_add_u32 s36, s36, {g.slot0*SLOT}")
    a(f"v_lshlrev_b32 v{vA[0]}, 4, v1")
    a(f"v_add_u32 v{vA[0]}, s36, v{vA[0]}")
    a("s_lshl_b32 s37, s35, 13")
    a(f"s_sub_u32 s38, 8192, s37")
    a(f"v_add_u32 v{vA[1]}, s38, v{vA[0]}")
    a(f"v_add_u32 v{vA[0]}, s37, v{vA[0]}")
    a("s_lshl_b32 s36, s35, 13")
    a(f"s_add_u32 s36, s36, {g.Boff + g.slot0*SLOT}")
    vB = b_addr128(a, V, [0, 1, 2, 3], 36)
    acc = V.alloc(64, 4)
    X = [V.alloc(16, 4) for _ in range(2)]
    W = [V.alloc(16, 4) for _ in range(2)]
    accr = lambda t, u: acc + (t * 4 + u) * 4
    vo, t0, vrow, ex, exr, PV = V.alloc(), V.alloc(), V.alloc(), V.alloc(), V.alloc(), V.alloc(2)
    a(f"s_lshl_b32 s36, s{m}, 7")
    a("s_lshl_b32 s37, s34, 6")
    a("s_add_u32 s36, s36, s37")
    a("s_lshl_b32 s37, s35, 5")
    a("s_add_u32 s36, s36, s37")
    if k2:
        a(f"v_add_u32 v{vrow}, s36, v{L15}")
        a(f"v_lshlrev_b32 v{vrow}, 3, v{vrow}")
        a(f"v_cmp_eq_u32 vcc, 0, v{GQ}")
        a(f"v_mov_b32 v{t0}, {BIG}")
        a(f"v_cndmask_b32 v{vrow}, v{t0}, v{vrow}, vcc")
        frag_lane_off(a, vo, t0)
        a("s_lshl_b32 s36, s36, 11")
        a(f"s_lshl_b32 s37, s{j}, 11")
        a("s_add_u32 s36, s36, s37")
        a(f"v_add_u32 v{vo}, s36, v{vo}")
    else:
        a(f"v_add_u32 v{vo}, s36, v{L15}")
        a(f"v_lshlrev_b32 v{vo}, 11, v{vo}")
        a(f"v_and_b32 v{t0}, 1, v{GQ}")
        a(f"v_lshl_add_u32 v{vo}, v{t0}, 5, v{vo}")
        a(f"v_lshrrev_b32 v{t0}, 1, v{GQ}")
        a(f"v_lshl_add_u32 v{vo}, v{t0}, 4, v{vo}")
        a(f"s_lshl_b32 s36, s{j}, 7")
        a(f"v_add_u32 v{vo}, s36, v{vo}")
    a("s_mov_b32 s45, 32768")
    a(f"v_lshlrev_b32 v{ex}, 4, v1")
    a("s_lshl_b32 s36, s6, 13")
    a(f"v_add_u32 v{ex}, s36, v{ex}")
    a(f"v_xor_b32 v{exr}, 16384, v{ex}")
    a(f"v_add_u32 v{ex}, {g.exch}, v{ex}")
    a(f"v_add_u32 v{exr}, {g.exch}, v{exr}")
    for t in range(4):
        for uu in range(2):
            d = accr(t, uu)
            for i in range(2):
                a(f"v_lshlrev_b32 v{d+2*i}, 16, v{RES+8*uu+2*t+i}")
                a(f"v_and_b32 v{d+2*i+1}, 0xffff0000, v{RES+8*uu+2*t+i}")
        if not k2:
            z = accr(t, 2)
            for i in range(2):
                a(f"v_lshlrev_b32 v{z+2*i}, 16, v{BIA+2*t+i}")
                a(f"v_and_b32 v{z+2*i+1}, 0xffff0000, v{BIA+2*t+i}")
            for uu in range(2):
                for i in (0, 2):
                    a(f"v_pk_add_f32 {vr(accr(t,uu)+i,2)}, {vr(accr(t,uu)+i,2)}, {vr(z+i,2)}")
        zero_acc(a, accr(t, 2), 8)

    def reads(h, b):
        r = []
        for u in range(4):
            r.append(f"ds_read_b128 {vr(X[b]+4*u,4)}, v{vA[u>>1]} offset:{(u&1)*4096+h*1024}")
        for t in range(4):
            for jj in range(2):
                r.append(f"ds_read_b64_tr_b16 {vr(W[b]+4*t+2*jj,2)}, v{vB[t]} offset:{jj*512+h*4096}")
        return r

    def mfmas(b):
        ml = []
        for t in range(4):
            for u in ((2, 3, 0, 1) if t % 2 == 0 else (1, 0, 3, 2)):
                w, x, d = vr(W[b] + 4 * t, 4), vr(X[b] + 4 * u, 4), vr(accr(t, u), 4)
                ml.append(f"v_mfma_f32_16x16x32_bf16 {d}, {w}, {x}, {d}")
        return ml

    g.reads, g.mfmas = reads, mfmas
    g.adv = vA + vB
    gen_mainloop(a, g, P)
    for t in range(4):
        for uu in range(2):
            a(f"ds_write_b128 v{ex}, {vr(accr(t, 2+uu),4)} offset:{(t*2+uu)*1024}")
    pair_post(a, which, PV)
    pair_wait(a, P, which, 2, PV)
    Rv = X[0]
    assert X[1] == X[0] + 16
    lst = [(t, uu) for uu in range(2) for t in range(4)]
    for (t, uu) in lst:
        a(f"ds_read_b128 {vr(Rv+(t*2+uu)*4,4)}, v{exr} offset:{(t*2+uu)*1024}")
    ob = W[0]
    for n_, (t, uu) in enumerate(lst):
        a(f"s_waitcnt lgkmcnt({7-n_})")
        d = accr(t, uu)
        for i in (0, 2):
            a(f"v_pk_add_f32 {vr(d+i,2)}, {vr(d+i,2)}, {vr(Rv+(t*2+uu)*4+i,2)}")
        o = ob + 8 * uu + 2 * t
        a(f"v_cvt_pk_bf16_f32 v{o}, v{d}, v{d+1}")
        a(f"v_cvt_pk_bf16_f32 v{o+1}, v{d+2}, v{d+3}")
        if t & 1:
            o -= 2
            a(f"v_permlane16_swap_b32 v{o}, v{o+2}")
            a(f"v_permlane16_swap_b32 v{o+1}, v{o+3}")
            so = "s45" if uu else "0"
            if k2:
                a(f"buffer_store_dwordx4 {vr(o,4)}, v{vo}, s[16:19], {so} offen offset:{1024*(t>>1)} sc1")
            else:
                a(f"buffer_store_dwordx4 {vr(o,4)}, v{vo}, s[16:19], {so} offen offset:{64*(t>>1)} {['', 'sc1', 'nt', 'sc0 sc1', 'sc1 nt'][OPT['ost']]}")
    if k2:
        SM = [Rv, Rv + 2]
        PK = [Rv + 8, Rv + 10]
        PQ = [Rv + 12, Rv + 14]
        for uu in range(2):
            a(f"v_pk_add_f32 {vr(PK[uu],2)}, {vr(accr(0,uu),2)}, {vr(accr(0,uu)+2,2)}")
            a(f"v_pk_mul_f32 {vr(PQ[uu],2)}, {vr(accr(0,uu),2)}, {vr(accr(0,uu),2)}")
        for t in range(4):
            for i in (0, 2):
                for uu in range(2):
                    d = vr(accr(t, uu) + i, 2)
                    if t:
                        a(f"v_pk_add_f32 {vr(PK[uu],2)}, {vr(PK[uu],2)}, {d}")
                    if t or i:
                        a(f"v_pk_fma_f32 {vr(PQ[uu],2)}, {d}, {d}, {vr(PQ[uu],2)}")
        for uu in range(2):
            a(f"v_add_f32 v{SM[uu]}, v{PK[uu]}, v{PK[uu]+1}")
            a(f"v_add_f32 v{SM[uu]+1}, v{PQ[uu]}, v{PQ[uu]+1}")
        xrow_reduce_multi(a, "v_add_f32", [Rv, Rv + 1, Rv + 2, Rv + 3], [Rv + 4, Rv + 5, Rv + 6, Rv + 7])
        a(f"s_lshl_b32 s36, s{j}, 14")
        for uu in range(2):
            a(f"buffer_store_dwordx2 {vr(SM[uu],2)}, v{vrow}, s[24:27], s36 offen offset:{uu*128} sc1")
    stamp(a, "c", f"p{which}_stored")
    if k2:
        finish_phase(a, 2, g, X[1])


def gen_p4(a):
    g = PH[4]
    m, J = g.mj
    V = Regs("v", 4, RES)
    srd(a, 16, POUT, 0, S * D * 2)
    srd(a, 20, PWS, WS_XB, 256 * 4 * 8192)
    a("s_and_b32 s34, s6, 1")
    a("s_lshr_b32 s35, s6, 1")
    vA = [V.alloc(), V.alloc()]
    a("s_lshl_b32 s36, s34, 13")
    a(f"s_add_u32 s36, s36, {g.slot0*SLOT}")
    a(f"v_lshlrev_b32 v{vA[0]}, 4, v1")
    a(f"v_add_u32 v{vA[0]}, s36, v{vA[0]}")
    a("s_lshl_b32 s37, s5, 12")
    a("s_sub_u32 s38, 4096, s37")
    a(f"v_add_u32 v{vA[1]}, s38, v{vA[0]}")
    a(f"v_add_u32 v{vA[0]}, s37, v{vA[0]}")
    a("s_lshl_b32 s36, s35, 13")
    a(f"s_add_u32 s36, s36, {g.Boff + g.slot0*SLOT}")
    vB = b_addr128(a, V, [0, 1, 2, 3], 36)
    acc = V.alloc(64, 4)
    X = [V.alloc(16, 4) for _ in range(2)]
    W = [V.alloc(16, 4) for _ in range(2)]
    accr = lambda t, u: acc + (t * 4 + u) * 4
    vo, t0, xl = V.alloc(), V.alloc(), V.alloc()
    FA = V.alloc(6, 2)
    a(f"s_lshl_b32 s36, s{m}, 7")
    a("s_lshl_b32 s37, s34, 6")
    a("s_add_u32 s36, s36, s37")
    a("s_lshl_b32 s37, s5, 5")
    a("s_add_u32 s36, s36, s37")
    a(f"v_add_u32 v{vo}, s36, v{L15}")
    a(f"v_lshlrev_b32 v{vo}, 11, v{vo}")
    a(f"v_and_b32 v{t0}, 1, v{GQ}")
    a(f"v_lshl_add_u32 v{vo}, v{t0}, 5, v{vo}")
    a(f"v_lshrrev_b32 v{t0}, 1, v{GQ}")
    a(f"v_lshl_add_u32 v{vo}, v{t0}, 4, v{vo}")
    a(f"s_lshl_b32 s36, s{J}, 8")
    a("s_lshl_b32 s37, s35, 7")
    a("s_add_u32 s36, s36, s37")
    a(f"v_add_u32 v{vo}, s36, v{vo}")
    a("s_mov_b32 s45, 32768")
    a(f"v_lshlrev_b32 v{xl}, 4, v1")
    a("s_lshl_b32 s36, s2, 2")
    a("s_add_u32 s36, s36, s6")
    a("s_xor_b32 s37, s36, 8")
    a("s_lshl_b32 s76, s36, 13")
    a("s_add_u32 s77, s76, 4096")
    a("s_lshl_b32 s78, s37, 13")
    a("s_add_u32 s79, s78, 4096")
    a("s_lshl_b32 s36, s36, 7")
    a("s_lshl_b32 s37, s37, 7")
    a(f"s_add_u32 s36, s36, {WS_XF}")
    a(f"s_add_u32 s37, s37, {WS_XF}")
    a(f"v_mov_b32 v{FA}, s36")
    a(f"v_mov_b32 v{FA+1}, s37")
    a(f"v_mov_b32 v{FA+2}, s{NONCE}")
    a(f"v_mov_b32 v{FA+3}, s{NONCE+1}")
    for t in range(4):
        z = accr(t, 2)
        for i in range(2):
            a(f"v_lshlrev_b32 v{z+2*i}, 16, v{BIA+2*t+i}")
            a(f"v_and_b32 v{z+2*i+1}, 0xffff0000, v{BIA+2*t+i}")
        for uu in range(2):
            d = accr(t, uu)
            for i in range(2):
                a(f"v_lshlrev_b32 v{d+2*i}, 16, v{RES+8*uu+2*t+i}")
                a(f"v_and_b32 v{d+2*i+1}, 0xffff0000, v{RES+8*uu+2*t+i}")
        for uu in range(2):
            for i in (0, 2):
                a(f"v_pk_add_f32 {vr(accr(t,uu)+i,2)}, {vr(accr(t,uu)+i,2)}, {vr(z+i,2)}")
        zero_acc(a, accr(t, 2), 8)

    def reads(h, b):
        r = []
        for u in range(4):
            r.append(f"ds_read_b128 {vr(X[b]+4*u,4)}, v{vA[u>>1]} offset:{(u&1)*2048+h*1024}")
        for t in range(4):
            for jj in range(2):
                r.append(f"ds_read_b64_tr_b16 {vr(W[b]+4*t+2*jj,2)}, v{vB[t]} offset:{jj*512+h*4096}")
        return r

    def mfmas(b):
        if b == 0:
            order = [(t, u) for t in range(4) for u in ((2, 3, 0, 1) if t % 2 == 0 else (1, 0, 3, 2))]
        else:
            order = [(t, u) for t in range(4) for u in ((2, 3) if t % 2 == 0 else (3, 2))]
            order += [(t, u) for t in (3, 2, 1, 0) for u in ((0, 1) if t % 2 else (1, 0))]
        return [f"v_mfma_f32_16x16x32_bf16 {vr(accr(t,u),4)}, {vr(W[b]+4*t,4)}, {vr(X[b]+4*u,4)}, {vr(accr(t,u),4)}" for (t, u) in order]

    g.reads, g.mfmas = reads, mfmas
    g.adv = vA + vB
    gen_mainloop(a, g, "P4")
    if OPT["tagx"]:
        lst = [(t, uu) for uu in range(2) for t in range(4)]
        SB_, RB = X[0], W[0]
        slot = lambda k: 4 * (k // 3) + k % 3
        for gi in range(6):
            a(f"v_mov_b32 v{SB_+4*gi+3}, s{NONCE}")
        done = 0
        for n_, (t, uu) in enumerate(lst):
            d = accr(t, 2 + uu)
            for i in range(2):
                a(f"v_cvt_pk_bf16_f32 v{SB_+slot(2*n_+i)}, v{d+2*i}, v{d+2*i+1}")
            while done < 6 and (3 * done + 2 <= 2 * n_ + 1 or n_ == 7):
                a(f"buffer_store_dwordx4 {vr(SB_+4*done,4)}, v{xl}, s[20:23], s{76+(done>>2)} offen offset:{(done&3)*1024} sc1")
                done += 1
        stamp(a, "c", "p4_sent")
        a("s_mov_b32 s3, 0x40000")
        if OPT["tagx"] == 2:
            a("s_mov_b32 exec_lo, 0")
            a("s_mov_b32 exec_hi, 0x80000000")
            a("P4_hl:")
            a(f"buffer_load_dword v{RB}, v{xl}, s[20:23], s79 offen offset:{1024+12} sc1")
            a("s_sub_u32 s3, s3, 1")
            a("s_waitcnt vmcnt(0)")
            a(f"v_cmp_eq_u32 vcc, s{NONCE}, v{RB}")
            a("s_cmp_eq_u32 s3, 0")
            a("s_cselect_b32 s3, 1, s3")
            a("s_cbranch_scc1 P4_hd")
            a("s_cmp_eq_u32 vcc_hi, 0")
            a("s_cbranch_scc1 P4_hl")
            a("P4_hd:")
            stamp(a, "c", "p4_hint")
            a("s_mov_b64 exec, -1")
        a("P4_pl:")
        for gi in range(6):
            a(f"buffer_load_dwordx4 {vr(RB+4*gi,4)}, v{xl}, s[20:23], s{78+(gi>>2)} offen offset:{(gi&3)*1024} sc1")
        a("s_sub_u32 s3, s3, 1")
        a("s_mov_b64 s[36:37], -1")
        for gi in range(6):
            a(f"s_waitcnt vmcnt({5-gi})")
            a(f"v_cmp_eq_u32 vcc, s{NONCE}, v{RB+4*gi+3}")
            a("s_and_b64 s[36:37], s[36:37], vcc")
        a("s_cmp_eq_u32 s3, 0")
        a("s_cbranch_scc1 P4_pd")
        a("s_cmp_eq_u64 s[36:37], -1")
        a("s_cbranch_scc0 P4_pl")
        a("P4_pd:")
        stamp(a, "c", "p4_got")
        if OPT["stamp"]:
            a("v_writelane_b32 v254, s3, 40")
        ob, Z = X[0], X[1] + 8
        for n_, (t, uu) in enumerate(lst):
            d = accr(t, uu)
            z = Z + 4 * (n_ & 1)
            for i in range(2):
                a(f"v_lshlrev_b32 v{z+2*i}, 16, v{RB+slot(2*n_+i)}")
                a(f"v_and_b32 v{z+2*i+1}, 0xffff0000, v{RB+slot(2*n_+i)}")
            for i in (0, 2):
                a(f"v_pk_add_f32 {vr(d+i,2)}, {vr(d+i,2)}, {vr(z+i,2)}")
            o = ob + 8 * uu + 2 * t
            a(f"v_cvt_pk_bf16_f32 v{o}, v{d}, v{d+1}")
            a(f"v_cvt_pk_bf16_f32 v{o+1}, v{d+2}, v{d+3}")
            if t & 1:
                o -= 2
                a(f"v_permlane16_swap_b32 v{o}, v{o+2}")
                a(f"v_permlane16_swap_b32 v{o+1}, v{o+3}")
                so = "s45" if uu else "0"
                a(f"buffer_store_dwordx4 {vr(o,4)}, v{vo}, s[16:19], {so} offen offset:{64*(t>>1)} {['', 'sc1', 'nt', 'sc0 sc1', 'sc1 nt'][OPT['ost']]}")
        stamp(a, "c", "p4_stored")
        return
    lst = [(t, uu) for uu in range(2) for t in range(4)]
    for n_, (t, uu) in enumerate(lst):
        a(f"buffer_store_dwordx4 {vr(accr(t,2+uu),4)}, v{xl}, s[20:23], s{76+uu} offen offset:{t*1024} sc1")
    a("s_mov_b32 s3, 0x40000")
    a("s_mov_b64 exec, 1")
    a("s_waitcnt vmcnt(0)")
    a(f"global_store_dwordx2 v{FA}, {vr(FA+2,2)}, s[{PWS}:{PWS+1}] sc1")
    stamp(a, "c", "p4_sent")
    a("P4_pl:")
    a(f"global_load_dwordx2 {vr(FA+4,2)}, v{FA+1}, s[{PWS}:{PWS+1}] sc1")
    a("s_sub_u32 s3, s3, 1")
    a("s_waitcnt vmcnt(0)")
    a(f"v_cmp_eq_u64 vcc, {vr(FA+2,2)}, {vr(FA+4,2)}")
    a("s_cmp_eq_u32 s3, 0")
    a("s_cbranch_scc1 P4_pd")
    a("s_cmp_eq_u32 vcc_lo, 0")
    a("s_cbranch_scc1 P4_pl")
    a("P4_pd:")
    a("s_mov_b64 exec, -1")
    Rv = X[0]
    assert X[1] == X[0] + 16
    for n_, (t, uu) in enumerate(lst):
        a(f"buffer_load_dwordx4 {vr(Rv+4*n_,4)}, v{xl}, s[20:23], s{78+uu} offen offset:{t*1024} sc1")
    ob = W[0]
    for n_, (t, uu) in enumerate(lst):
        a(f"s_waitcnt vmcnt({7 - n_ + (n_ >> 1)})")
        d = accr(t, uu)
        for i in (0, 2):
            a(f"v_pk_add_f32 {vr(d+i,2)}, {vr(d+i,2)}, {vr(Rv+4*n_+i,2)}")
        o = ob + 8 * uu + 2 * t
        a(f"v_cvt_pk_bf16_f32 v{o}, v{d}, v{d+1}")
        a(f"v_cvt_pk_bf16_f32 v{o+1}, v{d+2}, v{d+3}")
        if t & 1:
            o -= 2
            a(f"v_permlane16_swap_b32 v{o}, v{o+2}")
            a(f"v_permlane16_swap_b32 v{o+1}, v{o+3}")
            so = "s45" if uu else "0"
            a(f"buffer_store_dwordx4 {vr(o,4)}, v{vo}, s[16:19], {so} offen offset:{64*(t>>1)} {['', 'sc1', 'nt', 'sc0 sc1', 'sc1 nt'][OPT['ost']]}")
    stamp(a, "c", "p4_stored")


def gen_p3(a):
    g = PH[3]
    m, j = g.mj
    g4 = PH[4]
    V = Regs("v", 4, RES)
    srd(a, 16, PWS, WS_H1, S * F * 2)
    srd(a, 20, PB2, 0, D * 2)
    acc = V.alloc(112, 4)
    X = [V.alloc(16, 4) for _ in range(2)]
    W = [V.alloc(28, 4) for _ in range(2)]
    accr = lambda t, u: acc + (t * 4 + u) * 4
    a("s_and_b32 s34, s6, 1")
    a("s_lshr_b32 s35, s6, 1")
    vA = V.alloc()
    a("s_lshl_b32 s36, s34, 13")
    a(f"s_add_u32 s36, s36, {g.slot0*SLOT}")
    a(f"v_lshlrev_b32 v{vA}, 4, v1")
    a(f"v_add_u32 v{vA}, s36, v{vA}")
    t = X[0]
    base, f = X[0] + 1, X[0] + 2
    vB = [V.alloc() for _ in range(7)]
    a(f"v_lshrrev_b32 v{t}, 2, v{L15}")
    a(f"v_and_b32 v{f}, 1, v{GQ}")
    a(f"v_lshl_or_b32 v{f}, v{f}, 2, v{t}")
    a(f"v_lshl_add_u32 v{t}, v{GQ}, 3, v{t}")
    a(f"v_lshlrev_b32 v{base}, 9, v{t}")
    a(f"v_and_b32 v{t}, 3, v{L15}")
    a(f"v_lshl_add_u32 v{base}, v{t}, 3, v{base}")
    a(f"v_add_u32 v{base}, {g.Boff + g.slot0*SLOT}, v{base}")
    a(f"s_and_b32 s36, s{j}, 1")
    a("s_lshl_b32 s36, s36, 1")
    a("s_add_u32 s37, s36, s35")
    a("s_add_u32 s37, s37, 12")
    a("s_mul_i32 s38, s35, 6")
    a("s_add_u32 s36, s36, s38")
    for t_ in range(7):
        a(f"v_xor_b32 v{t}, s{36 if t_ < 6 else 37}, v{f}")
        a(f"v_lshl_add_u32 v{vB[t_]}, v{t}, 5, v{base}")
        if t_ < 5:
            a("s_add_u32 s36, s36, 1")
    RP, CSr, B1r = X[0], W[0], W[1]
    e0, vo, ex, KK, tq = 240, 244, 246, 248, X[0] + 3
    a("s_lshl_b32 s36, s34, 9")
    a(f"s_add_u32 s36, s36, {L_ROW}")
    a(f"v_lshlrev_b32 v{e0}, 3, v{L15}")
    a(f"v_add_u32 v{e0}, s36, v{e0}")
    a(f"v_lshlrev_b32 v{e0+1}, 4, v{GQ}")
    a("s_lshl_b32 s36, s35, 6")
    a(f"s_add_u32 s36, s36, {L_CS + 768}")
    a(f"v_add_u32 v{e0+2}, s36, v{e0+1}")
    a("s_mul_i32 s36, s35, 384")
    a(f"s_add_u32 s36, s36, {L_CS}")
    a(f"v_add_u32 v{e0+1}, s36, v{e0+1}")
    a(f"v_lshlrev_b32 v{e0+3}, 3, v{GQ}")
    a(f"s_lshl_b32 s82, s{g4.mj[1]}, 8")
    a("s_lshl_b32 s36, s35, 7")
    a("s_add_u32 s82, s82, s36")
    srd(a, 24, PWS, WS_H, S * D * 2)
    hv = 250
    a(f"v_lshrrev_b32 v{hv}, 1, v{GQ}")
    a(f"v_lshlrev_b32 v{hv}, 8, v{hv}")
    a(f"v_lshl_add_u32 v{hv}, v{L15}, 4, v{hv}")
    a(f"v_and_b32 v{tq}, 1, v{GQ}")
    a(f"v_lshl_add_u32 v{hv}, v{tq}, 3, v{hv}")
    a(f"s_lshl_b32 s36, s{g4.mj[0]}, 3")
    a("s_lshl_b32 s37, s34, 2")
    a("s_add_u32 s36, s36, s37")
    a("s_lshl_b32 s37, s5, 1")
    a("s_add_u32 s36, s36, s37")
    a("s_lshl_b32 s36, s36, 5")
    a(f"s_lshl_b32 s37, s{g4.mj[1]}, 2")
    a("s_add_u32 s36, s36, s37")
    a("s_lshl_b32 s37, s35, 1")
    a("s_add_u32 s36, s36, s37")
    a("s_lshl_b32 s83, s36, 10")
    a("s_add_u32 s84, s83, 32768")
    assert g.mj[0] == g4.mj[0]
    frag_lane_off(a, vo, tq)
    a(f"s_lshl_b32 s36, s{m}, 3")
    a("s_lshl_b32 s37, s34, 2")
    a("s_add_u32 s36, s36, s37")
    a("s_mul_i32 s36, s36, 112")
    a(f"s_mul_i32 s37, s{j}, 7")
    a("s_add_u32 s36, s36, s37")
    a("s_lshl_b32 s36, s36, 10")
    a(f"v_add_u32 v{vo}, s36, v{vo}")
    a("s_mul_i32 s36, s35, 3072")
    for u in range(4):
        a(f"s_add_u32 s{76+u}, s36, {u*112*1024}")
    a(f"s_mul_i32 s36, s35, {2*112*1024}")
    a("s_add_u32 s80, s36, 6144")
    a(f"s_add_u32 s81, s80, {112*1024}")
    a(f"v_lshlrev_b32 v{ex}, 4, v1")
    a("s_lshl_b32 s36, s34, 12")
    a(f"s_add_u32 s36, s36, {g.exch}")
    a(f"v_add_u32 v{ex}, s36, v{ex}")
    a("s_lshl_b32 s36, s35, 3")
    a(f"v_add_u32 v{ex+1}, s36, v{ex}")
    a("s_lshl_b32 s36, s35, 11")
    a(f"v_add_u32 v{ex}, s36, v{ex}")
    k1 = -2.0 * math.sqrt(2.0 / math.pi) * math.log2(math.e)
    a(f"v_mov_b32 v{KK}, {hexf(k1*0.044715)}")
    a(f"v_mov_b32 v{KK+1}, {hexf(k1)}")
    zero_acc(a, acc, 112)

    def reads(h, b):
        r = []
        for u in range(4):
            r.append(f"ds_read_b128 {vr(X[b]+4*u,4)}, v{vA} offset:{u*2048+h*1024}")
        for t_ in range(7):
            for jj in range(2):
                r.append(f"ds_read_b64_tr_b16 {vr(W[b]+4*t_+2*jj,2)}, v{vB[t_]} offset:{jj*2048+h*16384}")
        return r

    def mfmas(b):
        ml = []
        for t_ in range(7):
            for u in (range(4) if t_ % 2 == 0 else (3, 2, 1, 0)):
                w, x, d = vr(W[b] + 4 * t_, 4), vr(X[b] + 4 * u, 4), vr(accr(t_, u), 4)
                ml.append(f"v_mfma_f32_16x16x32_bf16 {d}, {w}, {x}, {d}")
        return ml

    g.reads, g.mfmas = reads, mfmas
    g.adv = [vA] + vB
    gen_mainloop(a, g, "P3")
    for u in range(4):
        a(f"ds_read_b64 {vr(RP+2*u,2)}, v{e0} offset:{u*128}")
    a(f"ds_read_b128 {vr(CSr+24,4)}, v{e0+2}")
    a(f"ds_read_b128 {vr(B1r+24,4)}, v{e0+2} offset:1024")
    for t_ in range(6):
        a(f"ds_read_b128 {vr(CSr+4*t_,4)}, v{e0+1} offset:{t_*64}")
        a(f"ds_read_b128 {vr(B1r+4*t_,4)}, v{e0+1} offset:{1024+t_*64}")
    for t_ in range(4):
        a(f"buffer_load_dwordx2 {vr(BIA+2*t_,2)}, v{e0+3}, s[20:23], s82 offen offset:{32*t_}")
    for uu in range(2):
        for t_ in range(4):
            a(f"buffer_load_dwordx2 {vr(RES+8*uu+2*t_,2)}, v{hv}, s[24:27], s{83+uu} offen offset:{(t_>>1)*1024+(t_&1)*512} sc1")
    T, PV = X[1], X[0] + 8
    a("s_waitcnt lgkmcnt(12)")

    def gelu2(tiles, o):
        ch = [(accr(t_, u) + i, T + 4 * k + i, t_, u, i) for k, (t_, u) in enumerate(tiles) for i in (0, 2)]
        for (d, tt, t_, u, i) in ch:
            a(f"v_pk_fma_f32 {vr(tt,2)}, {vr(CSr+4*t_+i,2)}, {vr(RP+2*u,2)}, {vr(B1r+4*t_+i,2)} op_sel:[0,1,0] op_sel_hi:[1,1,1]")
        for (d, tt, t_, u, i) in ch:
            a(f"v_pk_fma_f32 {vr(d,2)}, {vr(d,2)}, {vr(RP+2*u,2)}, {vr(tt,2)} op_sel:[0,0,0] op_sel_hi:[1,0,1]")
        for (d, tt, t_, u, i) in ch:
            a(f"v_pk_mul_f32 {vr(tt,2)}, {vr(d,2)}, {vr(d,2)}")
        for (d, tt, t_, u, i) in ch:
            a(f"v_pk_fma_f32 {vr(tt,2)}, {vr(tt,2)}, {vr(KK,2)}, {vr(KK,2)} op_sel:[0,0,1] op_sel_hi:[1,0,1]")
        for (d, tt, t_, u, i) in ch:
            a(f"v_pk_mul_f32 {vr(tt,2)}, {vr(tt,2)}, {vr(d,2)}")
        for i in range(8):
            a(f"v_exp_f32 v{T+i}, v{T+i}")
        for (d, tt, t_, u, i) in ch:
            a(f"v_pk_add_f32 {vr(tt,2)}, {vr(tt,2)}, 1.0 op_sel_hi:[1,0]")
        for i in range(8):
            a(f"v_rcp_f32 v{T+i}, v{T+i}")
        for (d, tt, t_, u, i) in ch:
            a(f"v_pk_mul_f32 {vr(d,2)}, {vr(d,2)}, {vr(tt,2)}")
        for k, (d, tt, t_, u, i) in enumerate(ch):
            a(f"v_cvt_pk_bf16_f32 v{o+k}, v{d}, v{d+1}")

    obs = [X[0] + 12, X[1] + 12]
    for up in range(2):
        gelu2([(6, 2 * up), (6, 2 * up + 1)], obs[up])
        for k in range(2):
            a(f"ds_write_b64 v{ex+1}, {vr(obs[up]+2*k,2)} offset:{(2*up+k)*1024}")
    pair_post(a, 3, PV)
    pend = None

    def flush():
        o, so, off = pend
        a(f"v_permlane16_swap_b32 v{o}, v{o+2}")
        a(f"v_permlane16_swap_b32 v{o+1}, v{o+3}")
        a(f"buffer_store_dwordx4 {vr(o,4)}, v{vo}, s[16:19], s{so} offen offset:{off} sc1")

    n_ = 0
    for u in range(4):
        for p in range(3):
            o = obs[n_ & 1]
            n_ += 1
            gelu2([(2 * p, u), (2 * p + 1, u)], o)
            pend = (o, 76 + u, 1024 * p)
            flush()
        if u == 0:
            pair_wait(a, "P3", 3, 2, PV)
            for uu in range(2):
                a(f"ds_read_b128 {vr(accr(6,uu),4)}, v{ex} offset:{uu*1024}")
        if u == 1:
            a("s_waitcnt lgkmcnt(0)")
            for uu in range(2):
                pend = (accr(6, uu), 80 + uu, 0)
                flush()
    stamp(a, "c", "p3_stored")
    finish_phase(a, 3, g, acc)


def main():
    out = sys.argv[1]
    a = Asm()
    name = NAME + "_kernel"
    a.raw(f".globl {name}\n.p2align 8\n.type {name},@function\n{name}:")
    a("s_cmp_ge_u32 s2, 256\ns_cbranch_scc1 KEND")
    a("s_load_dwordx16 s[48:63], s[0:1], 0")
    a("s_load_dwordx4 s[64:67], s[0:1], 64")
    a("s_load_dwordx2 s[68:69], s[0:1], 80")
    a("v_lshrrev_b32 v1, 6, v0")
    a("s_and_b32 s3, s2, 7")
    a("s_lshr_b32 s7, s2, 3")
    a("v_readfirstlane_b32 s6, v1")
    a("s_and_b32 s70, s3, 1")
    a("s_lshl_b32 s70, s70, 3")
    a("s_and_b32 s4, s7, 7")
    a("s_add_u32 s70, s70, s4")
    a("s_lshr_b32 s71, s3, 1")
    a("s_lshr_b32 s4, s7, 3")
    a("s_lshl_b32 s71, s71, 2")
    a("s_add_u32 s71, s71, s4")
    a("s_and_b32 s72, s7, 15")
    a("s_lshl_b32 s73, s3, 1")
    a("s_lshr_b32 s4, s7, 4")
    a("s_add_u32 s73, s73, s4")
    a("s_lshr_b32 s4, s3, 2")
    a("s_lshl_b32 s4, s4, 2")
    a("s_lshr_b32 s5, s7, 3")
    a("s_add_u32 s4, s4, s5")
    a("s_bfe_u32 s5, s3, 0x10001")
    a("v_and_b32 v1, 63, v0")
    a(f"v_and_b32 v{L15}, 15, v0")
    a(f"v_lshrrev_b32 v{GQ}, 4, v1")
    a("s_cmp_ge_u32 s6, 4")
    a("s_cbranch_scc1 LOADER")
    gen_p0(a)
    gen_p0t(a)
    gen_p1(a)
    gen_p24(a, 2)
    gen_p3(a)
    gen_p4(a)
    stamp_flush(a, 0)
    if OPT["spin"]:
        a("SPIN:")
        a("s_memrealtime s[100:101]")
        a("s_waitcnt lgkmcnt(0)")
        a(f"s_sub_u32 s100, s100, s{NONCE}")
        a(f"s_cmp_lt_u32 s100, {OPT['spin']*100}")
        a("s_cbranch_scc1 SPIN")
    a("KEND:")
    a("s_endpgm")
    gen_loader(a)
    vg = 256
    print(DBG)
    a.raw(f'.section .rodata,"a"\n.p2align 6\n.amdhsa_kernel {name}\n'
          f"  .amdhsa_next_free_vgpr {vg}\n  .amdhsa_next_free_sgpr 102\n  .amdhsa_accum_offset {(vg+3)//4*4}\n"
          "  .amdhsa_group_segment_fixed_size 0\n  .amdhsa_kernarg_size 88\n  .amdhsa_user_sgpr_count 2\n"
          "  .amdhsa_user_sgpr_kernarg_segment_ptr 1\n  .amdhsa_system_sgpr_workgroup_id_x 1\n"
          "  .amdhsa_float_denorm_mode_32 3\n"
          ".end_amdhsa_kernel\n")
    head = open("header.txt").read()
    head += f"; @launch grid=(256,1,1) block=(512,1,1) lds={LDS_TOTAL}\n"
    head += '.amdgcn_target "amdgcn-amd-amdhsa--gfx950"\n.text\n'
    open(out, "w").write(head + a.text())
    if OPT["stamp"]:
        import json
        json.dump(STAMPS, open(out + ".stamps.json", "w"))
    print("generated", out, "nops:", a.nops, "lds", LDS_TOTAL)


main()
```

```python
import re

TRANS = ("v_exp_f32", "v_log_f32", "v_rcp_f32", "v_rsq_f32", "v_sqrt_f32", "v_sin_f32", "v_cos_f32")


def regs_of(tok):
    tok = tok.strip()
    tok = tok.replace("abs(", "").replace(")", "") if tok.startswith(("abs(", "-abs(")) else tok
    tok = tok.lstrip("-").strip("|")
    m = re.fullmatch(r"([vsa])\[(\d+):(\d+)\]", tok)
    if m:
        return {f"{m.group(1)}{i}" for i in range(int(m.group(2)), int(m.group(3)) + 1)}
    m = re.fullmatch(r"([vsa])(\d+)", tok)
    if m:
        return {tok}
    if tok in ("vcc", "vcc_lo", "vcc_hi"):
        return {"vcc"}
    if tok in ("exec", "exec_lo", "exec_hi"):
        return {"exec"}
    if tok == "m0":
        return {"m0"}
    return set()


def split_ops(rest):
    out, depth, cur = [], 0, ""
    for ch in rest:
        if ch in "[(":
            depth += 1
        if ch in "])":
            depth -= 1
        if ch == "," and depth == 0:
            out.append(cur.strip())
            cur = ""
        else:
            cur += ch
    if cur.strip():
        out.append(cur.strip())
    return out


class Ins:
    def __init__(self, text):
        self.text = text
        t = text.split(";")[0].strip()
        parts = t.split(None, 1)
        self.op = parts[0]
        ops = split_ops(parts[1]) if len(parts) > 1 else []
        clean = []
        self.mods = ""
        for o in ops:
            f = o.split()
            if not f:
                continue
            clean.append(f[0])
            if len(f) > 1:
                self.mods += " " + " ".join(f[1:])
        self.ops = clean
        op = self.op
        self.w, self.r = set(), set()
        self.cls = "other"
        self.states = 1
        R = lambda lst: set().union(*[regs_of(x) for x in lst]) if lst else set()
        if op == "s_nop":
            self.states = int(clean[0], 0) + 1
            self.cls = "nop"
        elif op.startswith("v_mfma"):
            self.cls = "mfma"
            self.w = regs_of(clean[0])
            self.ra = regs_of(clean[1]) | regs_of(clean[2])
            self.rc = regs_of(clean[3])
            self.r = self.ra | self.rc
            self.passes = 4 if "16x16" in op else 8
        elif op.startswith("v_permlane"):
            self.cls = "valu"
            self.w = R(clean[:2])
            self.r = R(clean[:2])
        elif op.startswith(("v_readfirstlane", "v_readlane")):
            self.cls = "valu"
            self.w = regs_of(clean[0])
            self.r = R(clean[1:])
        elif op.startswith(("v_add_co", "v_sub_co", "v_addc_co", "v_subb_co", "v_subrev_co", "v_div_scale", "v_mad_u64")):
            self.cls = "valu"
            self.w = R(clean[:2])
            self.r = R(clean[2:])
        elif op.startswith("v_"):
            self.cls = "valu"
            self.w = regs_of(clean[0])
            self.r = R(clean[1:])
            if op.startswith(("v_fmac", "v_mac", "v_dot2c", "v_writelane")) or "dpp" in op or "sdwa" in op:
                self.r |= self.w
            if op.startswith("v_cmpx"):
                self.w |= {"exec"}
            if op.startswith("v_cndmask") and len(clean) == 3:
                self.r |= {"vcc"}
            if op.startswith("v_div_fmas"):
                self.r |= {"vcc"}
        elif op.startswith("ds_"):
            self.cls = "ds"
            if op.startswith(("ds_read", "ds_bpermute", "ds_permute", "ds_swizzle")) or "_rtn_" in op:
                self.w = regs_of(clean[0])
                self.r = R(clean[1:])
            else:
                self.r = R(clean)
        elif op.startswith(("buffer_", "global_")):
            self.cls = "vmem"
            islds = " lds" in (" " + t)
            self.lds = islds
            if "store" in op or ("atomic" in op and "sc0" not in t) or islds or op in ("buffer_wbl2", "buffer_inv"):
                self.r = R(clean)
                if islds:
                    self.r |= {"m0"}
                if "store" in op and ("x4" in op or "x3" in op):
                    self.wide = regs_of(clean[0]) if op.startswith("buffer_") else regs_of(clean[1])
            else:
                self.w = regs_of(clean[0])
                self.r = R(clean[1:])
        elif op.startswith("s_"):
            self.cls = "salu"
            if op.startswith(("s_cmp", "s_waitcnt", "s_barrier", "s_branch", "s_cbranch", "s_endpgm", "s_setprio", "s_sleep", "s_bitcmp")):
                self.r = R(clean)
            else:
                self.w = regs_of(clean[0]) if clean else set()
                self.r = R(clean[1:])
                if "saveexec" in op:
                    self.w |= {"exec"}
        self.trans = op.replace("_e32", "").replace("_e64", "") in TRANS
        self.dpp = "dpp" in op or "quad_perm" in t or "row_" in t
        self.perm = op.startswith("v_permlane")
        self.rdlane = op.startswith(("v_readfirstlane", "v_readlane", "v_writelane"))


def need(p, c):
    n = 0
    vw = {x for x in p.w if x[0] in "va" and x not in ("vcc",)}
    sw = {x for x in p.w if x[0] == "s" or x == "vcc"}
    if p.cls == "valu":
        if c.cls == "mfma" and (vw & c.r):
            n = max(n, 2)
        if c.cls == "mfma" and "exec" in p.w:
            n = max(n, 4)
        if c.cls == "valu":
            if c.dpp and (vw & c.r):
                n = max(n, 2)
            if c.dpp and "exec" in p.w:
                n = max(n, 5)
            if c.perm and (vw & c.r):
                n = max(n, 2)
            if c.rdlane and (vw & c.r):
                n = max(n, 1)
            if sw & c.r:
                n = max(n, 4 if (c.rdlane or c.op.startswith("v_div_fmas")) else 2)
            if p.trans and (vw & c.r):
                n = max(n, 1)
            if ("sdwa" in p.op or "op_sel" in p.mods) and not p.op.startswith("v_pk_") and (vw & (c.r | c.w)):
                n = max(n, 1)
            if "exec" in p.w and (c.rdlane or c.perm):
                n = max(n, 4)
        if c.cls == "vmem" and (sw & c.r):
            n = max(n, 5)
        if c.cls == "salu" and (sw & c.r):
            n = max(n, 1)
    if p.cls == "mfma":
        if c.cls == "mfma":
            if p.w & c.ra:
                n = max(n, 8 if p.passes == 4 else 12)
            if p.w & c.rc and not (p.w == c.rc and p.passes == c.passes):
                n = max(n, 6 if p.passes == 4 else 10)
            if (p.w & c.w) and not (p.w & c.rc):
                n = max(n, 8 if p.passes == 4 else 12)
        elif c.cls in ("valu", "vmem", "ds"):
            if p.w & (c.r | c.w):
                n = max(n, 8 if p.passes == 4 else 12)
            if c.cls == "valu" and (p.rc & c.w):
                n = max(n, 3 if p.passes == 4 else 7)
    if p.cls == "salu" and "m0" in p.w and c.cls == "vmem" and getattr(c, "lds", False):
        n = max(n, 1)
    if p.cls == "salu" and "exec" in p.w and c.cls == "valu" and (c.dpp or c.perm or c.rdlane):
        n = max(n, 1)
    if p.cls == "vmem" and hasattr(p, "wide") and (p.wide & c.w):
        n = max(n, 2 if c.cls in ("valu", "mfma") else 1)
    return n


class Asm:
    def __init__(self):
        self.lines = []
        self.hist = []
        self.nops = 0
        self.lgkm = 0

    def raw(self, s):
        self.lines.append(s)

    def label(self, s):
        self.lines.append(s + ":")

    def comment(self, s):
        self.lines.append("; " + s)

    def __call__(self, text, *a):
        for t in text.split("\n"):
            t = t.strip()
            if not t:
                continue
            if t.endswith(":") or t.startswith((";", ".")):
                self.lines.append(t)
                continue
            ins = Ins(t)
            if ins.cls == "ds":
                if self.lgkm >= 14:
                    self.lines.append("    s_waitcnt lgkmcnt(8)")
                    self.hist.append(Ins("s_waitcnt lgkmcnt(8)"))
                    self.lgkm = 8
                self.lgkm += 1
            elif ins.op == "s_waitcnt":
                m_ = re.search(r"lgkmcnt\((\d+)\)", t)
                if m_:
                    self.lgkm = min(self.lgkm, int(m_.group(1)))
            dist = 0
            pad = 0
            for p in reversed(self.hist):
                k = need(p, ins)
                if k > dist:
                    pad = max(pad, k - dist)
                dist += p.states
                if dist >= 24:
                    break
            if pad:
                self.nops += 1
                while pad > 0:
                    k = min(pad, 16)
                    self.lines.append(f"    s_nop {k-1}")
                    self.hist.append(Ins(f"s_nop {k-1}"))
                    pad -= k
            self.lines.append("    " + t)
            self.hist.append(ins)
            if len(self.hist) > 64:
                self.hist = self.hist[-40:]

    def text(self):
        return "\n".join(self.lines) + "\n"


class Regs:
    def __init__(self, prefix, start, limit):
        self.p, self.n, self.limit = prefix, start, limit
        self.hi = start

    def alloc(self, cnt=1, align=1):
        self.n = (self.n + align - 1) // align * align
        r = self.n
        self.n += cnt
        assert self.n <= self.limit, f"out of {self.p} regs: {self.n}"
        self.hi = max(self.hi, self.n)
        return r

    def mark(self):
        return self.n

    def release(self, m):
        self.n = m


def vr(a, n=1):
    return f"v{a}" if n == 1 else f"v[{a}:{a+n-1}]"


def sr(a, n=1):
    return f"s{a}" if n == 1 else f"s[{a}:{a+n-1}]"
```

```python
import sys, struct, math
from asmx import Asm, Regs, vr, sr

NAME = "sequential_preLN__sliding_local_dilated__dense_activation_gelu__prompt"
S, D, F = 2048, 1024, 3584
OPT = dict(stamp=0, map1=1, map3=0, sleep=1, prio=0, nt1=0, seg=2, warm=0, wr1=2, wr2=2, wr3=3, wg=7, touch1=1, dbgt=0, ctouch=1, ost=1, spin=0, rd2=0, tagx=2, prew=1, unr=2, gadv=1, early=0)
for a_ in sys.argv[2:]:
    k_, v_ = a_.split("=")
    assert k_ in OPT, k_
    OPT[k_] = int(v_)
WS_O, WS_H, WS_H1 = 4 << 20, 8 << 20, 12 << 20
WS_ST, WS_CS, WS_FL = 28 << 20, 29 << 20, 30 << 20
WS_ST1, WS_CS1 = 0, 1 << 20
WS_XB = 48 << 20
WS_XF = 31 << 20
FL_CS3, FL_CS1 = WS_FL + 32768, WS_FL + 40960
WS_FD = WS_FL + 65536
SLOT = 49152
LDS_X = 3 * SLOT
L_PAIR = LDS_X
L_CNT = LDS_X + 16
L_LCNT = LDS_X + 20
L_NONCE = LDS_X + 32
L_P0 = LDS_X + 64
L_ROW = LDS_X + 256
L_RS = L_ROW + 2048
L_NM = L_RS + 1024
L_CS = L_NM + 1024
L_B1 = L_CS + 1024
L_SC = L_B1 + 1024
L_SS = L_SC + 4096
LDS_TOTAL = L_SS + 4096
PX, PWQKV, PWO, PW1, PB1, PW2, PB2, POUT, PDBG, PWS = 48, 50, 52, 56, 58, 60, 62, 64, 66, 68
NONCE = 74
RES, BIA = 216, 232
BIG = "0x7ffffff0"


def f2u(x):
    return struct.unpack("<I", struct.pack("<f", x))[0]


def hexf(x):
    return "0x%08x" % f2u(x)


def srd(a, d, base, off, nbytes):
    if off:
        a(f"s_add_u32 s{d}, s{base}, {off}")
        a(f"s_addc_u32 s{d+1}, s{base+1}, 0")
    else:
        a(f"s_mov_b32 s{d}, s{base}")
        a(f"s_mov_b32 s{d+1}, s{base+1}")
    a(f"s_mov_b32 s{d+2}, {nbytes}")
    a(f"s_mov_b32 s{d+3}, 0x20000")


def round_bf16(a, v):
    a(f"v_cvt_pk_bf16_f32 v{v}, v{v}, v{v}")
    a(f"v_lshlrev_b32 v{v}, 16, v{v}")


def xrow_reduce_multi(a, op, vs, ts):
    for sw in ("v_permlane16_swap_b32", "v_permlane32_swap_b32"):
        for v, t in zip(vs, ts):
            a(f"v_mov_b32 v{t}, v{v}")
        for v, t in zip(vs, ts):
            a(f"{sw} v{v}, v{t}")
        for v, t in zip(vs, ts):
            a(f"{op} v{v}, v{v}, v{t}")


def wave_sum_multi(a, vs, ts):
    for p in ("quad_perm:[1,0,3,2]", "quad_perm:[2,3,0,1]", "row_half_mirror", "row_mirror"):
        for v in vs:
            a(f"v_add_f32_dpp v{v}, v{v}, v{v} {p} row_mask:0xf bank_mask:0xf")
    xrow_reduce_multi(a, "v_add_f32", vs, ts)


def ln_finish(a, mean, var, out):
    round_bf16(a, mean)
    round_bf16(a, var)
    a(f"v_add_f32 v{var}, {hexf(1e-5)}, v{var}")
    round_bf16(a, var)
    a(f"v_sqrt_f32 v{var}, v{var}")
    round_bf16(a, var)
    a(f"v_rcp_f32 v{out}, v{var}")
    a(f"v_mul_f32 v{out+1}, v{mean}, v{out}")
    a(f"v_sub_f32 v{out+1}, 0, v{out+1}")


STAMPS = {"c": [], "l": []}


DBG = []


def stamp(a, role, name):
    if OPT["dbgt"] and role == "c" and name not in ("start", "p0_done") and not name.endswith("stored") or (OPT["dbgt"] and name == "p4_stored"):
        if name not in DBG:
            DBG.append(name)
        a("s_memrealtime s[100:101]")
        a("s_waitcnt lgkmcnt(0)")
        a(f"v_writelane_b32 v255, s100, {DBG.index(name)}")
        if name == "p4_stored":
            a("s_cmp_lg_u32 s6, 0")
            a("s_cbranch_scc1 DBG_e")
            a("v_mov_b32 v254, s100")
            a("v_mov_b32 v253, 0")
            a("s_mov_b64 exec, 1")
            a(f"global_atomic_umax v253, v254, s[{PDBG}:{PDBG+1}] offset:60")
            a("s_mov_b64 exec, 0xfff")
            a(f"s_cmp_lg_u32 s2, {OPT['dbgt']-1}")
            a("s_cbranch_scc1 DBG_e")
            a("v_lshlrev_b32 v253, 2, v1")
            a(f"global_store_dword v253, v255, s[{PDBG}:{PDBG+1}] offset:8")
            a("DBG_e:")
            a("s_mov_b64 exec, -1")
    if not OPT["stamp"]:
        return
    if name in STAMPS[role]:
        i = STAMPS[role].index(name)
    else:
        i = len(STAMPS[role])
        STAMPS[role].append(name)
    a("s_memtime s[100:101]")
    a("s_waitcnt lgkmcnt(0)")
    a(f"v_writelane_b32 v254, s100, {i}")
    a("s_memrealtime s[100:101]")
    a("s_waitcnt lgkmcnt(0)")
    a(f"v_writelane_b32 v255, s100, {i}")


def stamp_flush(a, wavereg_off):
    if not OPT["stamp"]:
        return
    a("v_lshlrev_b32 v2, 2, v1")
    a("s_lshl_b32 s100, s2, 3")
    a(f"s_add_u32 s100, s100, s6")
    a(f"s_add_u32 s100, s100, {wavereg_off}")
    a("s_lshl_b32 s100, s100, 9")
    a(f"s_add_u32 s100, s100, {32<<20}")
    a("v_add_u32 v2, s100, v2")
    a(f"global_store_dword v2, v254, s[{PWS}:{PWS+1}]")
    a(f"global_store_dword v2, v255, s[{PWS}:{PWS+1}] offset:256")
    if OPT["stamp"] == 2:
        a(f"v_add_u32 v2, {8<<20}, v2")
        a(f"global_store_dword v2, v252, s[{PWS}:{PWS+1}]")
        a(f"global_store_dword v2, v253, s[{PWS}:{PWS+1}] offset:256")


class G:
    pass


def phase_cfgs():
    P = {}
    g = G(); P[1] = g
    g.n, g.KS, g.nst, g.B448 = 1, 64, 16, False
    g.nA, g.nB, g.strideB, g.Boff, g.KT = 18, 24, 6144, 24576, 0
    g.A = (PX, 0, S * D * 2); g.B = (PWQKV, 0, D * 3 * D * 2); g.map = OPT["map1"]
    g = G(); P[2] = g
    g.n, g.KS, g.nst, g.B448 = 2, 128, 8, False
    g.nA, g.nB, g.strideB, g.Boff, g.KT = 32, 16, 2048, 32768, 32
    g.A = (PWS, WS_O, S * D * 2); g.B = (PWO, 0, D * D * 2); g.map = 0
    g = G(); P[3] = g
    g.n, g.KS, g.nst, g.B448 = 3, 64, 16, True
    g.nA, g.nB, g.strideB, g.Boff, g.KT = 16, 32, 7168, 16384, 32
    g.A = (PWS, WS_H, S * D * 2); g.B = (PW1, 0, D * F * 2); g.map = OPT["map3"]
    g = G(); P[4] = g
    g.n, g.KS, g.nst, g.B448 = 4, 64, 28, False
    g.nA, g.nB, g.strideB, g.Boff, g.KT = 16, 16, 2048, 16384, 112
    g.A = (PWS, WS_H1, S * F * 2); g.B = (PW2, 0, F * D * 2); g.map = 0
    s = 0
    for p in (1, 2, 3, 4):
        P[p].slot0 = s % 3
        s += P[p].nst
        P[p].mj = (72, 73) if P[p].map else (70, 71)
        if p == 4:
            P[p].mj = (70, 4)
        P[p].exch = ((s - 1) % 3) * SLOT
    return P


PH = phase_cfgs()


def interleave(a, mf, fillers, first=None, dense=0):
    n = len(mf)
    fl = list(fillers)
    gaps = list(range(1, n)) if first is not None else list(range(n))
    k = len(fl)
    assert k <= 2 * len(gaps), (k, len(gaps))
    cnt = {}
    idx = 0
    for gi, g in enumerate(gaps):
        left_gaps = len(gaps) - gi
        c = 2 if (idx < dense or k - idx > left_gaps) else 1
        cnt[g] = min(c, k - idx)
        idx += cnt[g]
    idx = 0
    for i in range(n):
        a(mf[i])
        if i == 0 and first is not None:
            for f in first:
                a(f)
        for _ in range(cnt.get(i, 0)):
            a(fl[idx])
            idx += 1
    assert idx == k


def nonce_load(a, vt):
    a(f"v_mov_b32 v{vt}, 0")
    a(f"global_load_dwordx2 v[{vt+2}:{vt+3}], v{vt}, s[{PDBG}:{PDBG+1}] sc1")


def nonce_check(a, lab, vt):
    a("s_mov_b32 s3, 0x40000")
    a(f"{lab}_nl:")
    a(f"v_readfirstlane_b32 s{NONCE}, v{vt+2}")
    a(f"v_readfirstlane_b32 s{NONCE+1}, v{vt+3}")
    a(f"s_cmp_lg_u32 s{NONCE}, 0")
    a(f"s_cbranch_scc1 {lab}_nd")
    a(f"global_load_dwordx2 v[{vt+2}:{vt+3}], v{vt}, s[{PDBG}:{PDBG+1}] sc1")
    a("s_waitcnt vmcnt(0)")
    a("s_sub_u32 s3, s3, 1")
    a("s_cmp_lg_u32 s3, 0")
    a(f"s_cbranch_scc1 {lab}_nl")
    a(f"{lab}_nd:")


def signal(a, off_sgpr, vt):
    a(f"v_mov_b32 v{vt}, s{off_sgpr}")
    a(f"v_mov_b32 v{vt+2}, s{NONCE}")
    a(f"v_mov_b32 v{vt+3}, s{NONCE+1}")
    a("s_mov_b64 exec, 1")
    a(f"global_store_dwordx2 v{vt}, v[{vt+2}:{vt+3}], s[{PWS}:{PWS+1}] sc1")
    a("s_mov_b64 exec, -1")


def flag_off(a, d, base, hi, lo):
    a(f"s_lshl_b32 s{d}, s{lo}, 2")
    a(f"s_add_u32 s{d}, s{d}, s6")
    a(f"s_lshl_b32 s{d}, s{d}, 3")
    a(f"s_lshl_b32 s3, s{hi}, 9")
    a(f"s_add_u32 s{d}, s{d}, s3")
    a(f"s_add_u32 s{d}, s{d}, {base}")


def poll_loads(a, vaddrs, vt):
    for i, v in enumerate(vaddrs):
        a(f"global_load_dwordx2 v[{vt+2*i}:{vt+2*i+1}], v{v}, s[{PWS}:{PWS+1}] sc1")


def poll_check(a, lab, vaddrs, vt):
    a("s_mov_b32 s3, 0x40000")
    a(f"{lab}_pl:")
    a(f"v_cmp_eq_u64 vcc, s[{NONCE}:{NONCE+1}], v[{vt}:{vt+1}]")
    for i in range(1, len(vaddrs)):
        a(f"v_cmp_eq_u64 s[34:35], s[{NONCE}:{NONCE+1}], v[{vt+2*i}:{vt+2*i+1}]")
        a("s_and_b64 vcc, vcc, s[34:35]")
    a("s_cmp_eq_u64 vcc, -1")
    a(f"s_cbranch_scc1 {lab}_pd")
    if OPT["sleep"]:
        a(f"s_sleep {OPT['sleep']}")
    poll_loads(a, vaddrs, vt)
    a("s_waitcnt vmcnt(0)")
    a("s_sub_u32 s3, s3, 1")
    a("s_cmp_lg_u32 s3, 0")
    a(f"s_cbranch_scc1 {lab}_pl")
    a(f"{lab}_pd:")


def ld_offsets_A(a, g, vA):
    m, j = g.mj
    if g.KT:
        a(f"s_lshl_b32 s7, s{m}, 3")
        a("s_add_u32 s7, s7, s6")
        a(f"s_mul_i32 s7, s7, {g.KT*1024}")
        if g.n == 4:
            a(f"s_mul_i32 s3, s5, {56*1024}")
            a("s_add_u32 s7, s7, s3")
        a(f"v_lshlrev_b32 v{vA}, 4, v1")
        a(f"v_add_u32 v{vA}, s7, v{vA}")
        a(f"v_add_u32 v{vA+1}, {4*g.KT*1024}, v{vA}")
        return
    a("s_and_b32 s3, s6, 1")
    a("s_lshl_b32 s7, s3, 2")
    a("v_lshrrev_b32 v4, 4, v1")
    a("v_or_b32 v4, s7, v4")
    a("v_xor_b32 v4, v3, v4")
    a("v_lshlrev_b32 v4, 4, v4")
    a(f"s_lshl_b32 s7, s{m}, 7")
    a("s_lshl_b32 s34, s6, 3")
    a("s_add_u32 s7, s7, s34")
    a("s_sub_u32 s7, s7, 16")
    for q in range(5):
        a("v_add_u32 v5, s7, v2")
        if q:
            a(f"v_add_u32 v5, {32*q}, v5")
        else:
            a("v_max_i32 v5, 0, v5")
        a(f"v_lshl_add_u32 v{vA+q}, v5, 11, v4")


def ld_offsets_B(a, g, vB):
    m, j = g.mj
    nBq = g.nB // 4
    if g.B448:
        a("v_lshrrev_b32 v5, 5, v1")
        a("s_lshl_b32 s7, s6, 1")
        a("v_add_u32 v5, s7, v5")
        a("v_and_b32 v6, 3, v5")
        a("v_lshlrev_b32 v6, 1, v6")
        a("v_and_b32 v7, 31, v1")
        a("v_xor_b32 v6, v6, v7")
        a("v_mul_u32_u24 v5, 7168, v5")
        a(f"s_mul_i32 s35, s{j}, 448")
        a("s_andn2_b32 s35, s35, 127")
        a("v_add_u32 v5, s35, v5")
        for q in range(nBq):
            if q < 2:
                if q:
                    a("v_xor_b32 v6, 8, v6")
                a(f"v_lshl_add_u32 v{vB+q}, v6, 4, v5")
                if q:
                    a(f"v_add_u32 v{vB+q}, {8*7168}, v{vB+q}")
            else:
                a(f"v_add_u32 v{vB+q}, {16*7168}, v{vB+q-2}")
    else:
        a("v_bfe_u32 v5, v1, 4, 1")
        a("s_and_b32 s7, s6, 1")
        a("s_lshl_b32 s7, s7, 1")
        a("v_or_b32 v5, s7, v5")
        a("v_lshlrev_b32 v5, 1, v5")
        a("v_xor_b32 v5, v3, v5")
        a("v_lshlrev_b32 v5, 4, v5")
        a(f"s_lshl_b32 s7, s{j}, {8 if g.n == 4 else 7}")
        a("v_add_u32 v5, s7, v5")
        if g.n == 4:
            a(f"s_mul_i32 s7, s5, {1792*2048}")
            a("v_add_u32 v5, s7, v5")
        a("s_lshl_b32 s7, s6, 3")
        a("v_add_u32 v6, s7, v2")
        a(f"v_mul_u32_u24 v6, {g.strideB}, v6")
        a("v_add_u32 v5, v5, v6")
        for q in range(nBq):
            if g.n in (1, 4):
                off = (q >> 1) * (2048 if g.n == 1 else 128) + (q & 1) * 32 * g.strideB
            else:
                off = q * 32 * g.strideB
            a(f"v_add_u32 v{vB+q}, {off}, v5")


def rot_start(a, g, d):
    m, j = g.mj
    if g.map:
        assert g.nst == 16
        a(f"s_mov_b32 s{d}, s{m}")
    else:
        a(f"s_and_b32 s{d}, s{m}, 7")
        if g.nst == 16:
            a(f"s_lshl_b32 s{d}, s{d}, 1")
        elif g.nst == 28:
            a(f"s_mul_i32 s{d}, s{d}, 7")
            a(f"s_lshr_b32 s{d}, s{d}, 1")


RDY, TMO, PF = 94, 96, 40
LAB = [0]


def poll_once(a):
    a("s_mov_b64 exec, 0xffff")
    a(f"global_load_dwordx2 v[{PF+2}:{PF+3}], v{PF}, s[{PWS}:{PWS+1}] sc1")
    a(f"s_sub_u32 s{TMO}, s{TMO}, 1")
    a("s_waitcnt vmcnt(0)")
    a(f"v_cmp_eq_u64 s[{RDY}:{RDY+1}], s[{NONCE}:{NONCE+1}], v[{PF+2}:{PF+3}]")
    a("s_mov_b64 exec, -1")
    a(f"s_cmp_eq_u32 s{TMO}, 0")
    a(f"s_cselect_b32 s{RDY}, 0xffff, s{RDY}")
    a(f"s_cselect_b32 s{TMO}, 1, s{TMO}")


class Stream:
    def __init__(self, g, isA, srd_, vbase, so, st, lb, sl, of, cur=None):
        self.g, self.isA, self.srd, self.v = g, isA, srd_, vbase
        self.so, self.st, self.lb, self.sl, self.of = so, st, lb, sl, of
        self.cur = cur
        self.frag = isA and g.KT
        self.seg = OPT["seg"] and g.n in (2, 4)
        if self.frag:
            self.step = g.KS * 32
            self.per = g.KS // 32
        else:
            self.step = g.KS * 2 if isA else g.KS * g.strideB

    def seg_so(self, a):
        a(f"s_add_u32 s7, s{self.st}, s{self.of}")
        a("s_and_b32 s7, s7, 3")
        a(f"s_andn2_b32 s{self.so}, s{self.st}, 3")
        a(f"s_add_u32 s{self.so}, s{self.so}, s7")
        if self.cur:
            a(f"s_mov_b32 s{self.cur}, s{self.so}")
        a(f"s_mul_i32 s{self.so}, s{self.so}, {self.step}")

    def init(self, a):
        g = self.g
        m, j = g.mj
        if self.seg:
            a(f"s_and_b32 s{self.st}, s{m}, 7")
            a(f"s_mul_i32 s{self.st}, s{self.st}, {g.nst // 4}")
            a(f"s_lshr_b32 s{self.st}, s{self.st}, 3")
            a(f"s_lshl_b32 s{self.st}, s{self.st}, 2")
            if OPT["seg"] == 2 and g.n == 4:
                a(f"s_mov_b32 s{self.st}, 0")
            a(f"s_add_u32 s{self.of}, s{m}, s{j}")
            self.seg_so(a)
        else:
            rot_start(a, g, self.st)
            a(f"s_mul_i32 s{self.so}, s{self.st}, {self.step}")
        a(f"s_mul_i32 s{self.lb}, s6, {1024*self.per if self.frag else 1024}")
        off = g.slot0 * SLOT + (0 if self.isA else g.Boff)
        if off:
            a(f"s_add_u32 s{self.lb}, s{self.lb}, {off}")
        a(f"s_mov_b32 s{self.sl}, {g.slot0}")

    def need(self, a, ok):
        g = self.g
        cur = self.cur if self.seg else self.st
        a(f"s_cmp_eq_u32 s{RDY}, 0xffff")
        a(f"s_cbranch_scc1 {ok}")
        if g.n == 2:
            a(f"s_lshl_b32 s3, s{cur}, 1")
            a("s_lshl_b32 s34, 3, s3")
        elif g.n == 3:
            a(f"s_lshl_b32 s34, 1, s{cur}")
        else:
            a("s_mul_i32 s3, s5, 28")
            a(f"s_add_u32 s3, s3, s{cur}")
            a(f"s_mul_i32 s3, s3, {2*9363}")
            a(f"s_add_u32 s7, s3, 9363")
            a("s_lshr_b32 s3, s3, 16")
            a("s_lshr_b32 s7, s7, 16")
            a("s_lshl_b32 s34, 1, s3")
            a("s_bitset1_b32 s34, s7")
        a(f"s_andn2_b32 s3, s34, s{RDY}")
        a(f"s_cbranch_scc0 {ok}")

    def wait_ready(self, a):
        if not self.frag:
            return
        LAB[0] += 1
        L = f"WR{LAB[0]}"
        self.need(a, f"{L}_ok")
        a(f"{L}_t:")
        poll_once(a)
        a(f"s_andn2_b32 s3, s34, s{RDY}")
        a(f"s_cbranch_scc0 {L}_ok")
        if OPT["sleep"]:
            a(f"s_sleep {OPT['sleep']}")
        a(f"s_branch {L}_t")
        a(f"{L}_ok:")

    def loads(self, n, nt=False):
        out = []
        if self.frag:
            for q in range(n):
                u, k = q // self.per, q % self.per
                out.append((f"s_add_u32 m0, s{self.lb}, {u*4096*self.per}",
                            f"buffer_load_dwordx4 v{self.v+u}, s[{self.srd}:{self.srd+3}], s{self.so} offen offset:{k*1024} sc1 lds"))
            return out
        return [(f"s_add_u32 m0, s{self.lb}, {q*4096}",
                 f"buffer_load_dwordx4 v{self.v+q}, s[{self.srd}:{self.srd+3}], s{self.so} offen {'nt ' if (nt and not self.isA) else ''}lds") for q in range(n)]

    def advance(self, a):
        if not self.seg:
            a(f"s_add_u32 s{self.so}, s{self.so}, {self.step}")
        a(f"s_add_u32 s{self.st}, s{self.st}, 1")
        a(f"s_cmp_eq_u32 s{self.st}, {self.g.nst}")
        a(f"s_cselect_b32 s{self.st}, 0, s{self.st}")
        if self.seg:
            self.seg_so(a)
        else:
            a(f"s_cselect_b32 s{self.so}, 0, s{self.so}")
        a(f"s_add_u32 s{self.lb}, s{self.lb}, {SLOT}")
        a(f"s_add_u32 s{self.sl}, s{self.sl}, 1")
        a(f"s_cmp_eq_u32 s{self.sl}, 3")
        a(f"s_cselect_b32 s7, {3*SLOT}, 0")
        a(f"s_cselect_b32 s{self.sl}, 0, s{self.sl}")
        a(f"s_sub_u32 s{self.lb}, s{self.lb}, s7")


class Rec:
    def __init__(self):
        self.g = []
        self.open = False

    def __call__(self, t):
        if self.open:
            self.g[-1].append(t)
        else:
            self.g.append([t])

    def begin(self):
        self.g.append([])
        self.open = True

    def end(self):
        self.open = False


def issue(a, items, nt=False, fill=None, ready=True, mid=0):
    if ready:
        for (s_, n) in items:
            s_.wait_ready(a)
    ls = [s.loads(n, nt) for (s, n) in items]
    seq = []
    for q in range(max(len(x) for x in ls)):
        for x in ls:
            if q < len(x):
                seq.append(x[q])
    fill = list(fill or [])
    commit = None
    if OPT["gadv"] and len(items) == 2:
        B_, A_ = items[0][0], items[1][0]
        g_ = A_.g
        pre_ = [f"s_add_u32 s{A_.st}, s{A_.st}, 1", [f"s_cmp_eq_u32 s{A_.st}, {g_.nst}", f"s_cselect_b32 s{A_.st}, 0, s{A_.st}"]]
        if A_.seg:
            pre_ += [f"s_add_u32 s92, s{A_.st}, s{A_.of}", "s_and_b32 s92, s92, 3", f"s_andn2_b32 s93, s{A_.st}, 3",
                     f"s_add_u32 s{A_.cur}, s93, s92"]
            cur = A_.cur
        else:
            cur = A_.st
        pre_ += [f"s_mul_i32 s90, s{cur}, {A_.step}", f"s_mul_i32 s91, s{cur}, {B_.step}",
                 f"s_add_u32 s{A_.sl}, s{A_.sl}, 1",
                 [f"s_cmp_eq_u32 s{A_.sl}, 3", f"s_cselect_b32 s93, {3*SLOT}, 0", f"s_cselect_b32 s{A_.sl}, 0, s{A_.sl}"],
                 f"s_sub_u32 s93, {SLOT}, s93"]
        fill = [(x if isinstance(x, list) else [x]) for x in pre_] + fill
        commit = [f"s_mov_b32 s{A_.so}, s90", f"s_mov_b32 s{B_.so}, s91", f"s_add_u32 s{A_.lb}, s{A_.lb}, s93",
                  f"s_add_u32 s{B_.lb}, s{B_.lb}, s93"]
    per = -(-len(fill) // max(1, len(seq) - 1)) if fill else 0
    last = None
    for k, (m0, ld) in enumerate(seq):
        if m0 != last:
            a(m0)
            last = m0
        a(ld)
        if mid and k == mid - 1:
            a(f"s_waitcnt vmcnt({mid})")
            a("s_barrier")
        for _ in range(per):
            if fill:
                for t in fill.pop(0):
                    a(t)
    for grp in fill:
        for t in grp:
            a(t)
    if commit:
        for t in commit:
            a(t)
    else:
        for (s, n) in items:
            s.advance(a)


ACC, WF, ONE, AD, TB, TT, VT = 64, 96, 128, 132, 133, 134, 32
A_CSS, A_CS3, A_ST, A_GA, A_GB, TID = 136, 137, 138, 139, 156, 157
ST = 140
AD2 = 158
A_XB, ZERO = 180, 184
A_SC = 166
SG = 160
PA = 168


def fold_setup(a, g):
    m, j = g.mj
    p1 = g.n == 1
    nsh = 16 if g.map else 8
    ncol = 3 * D if p1 else F
    wscs, flcs = (WS_CS1, FL_CS1) if p1 else (WS_CS, FL_CS3)
    row = 512 if g.B448 else 128
    a(f"v_and_b32 v{TT}, 15, v1")
    a(f"v_lshrrev_b32 v{AD}, 2, v{TT}")
    a(f"v_lshrrev_b32 v{TB}, 4, v1")
    a(f"v_lshl_add_u32 v{AD}, v{TB}, 3, v{AD}")
    a(f"v_mul_u32_u24 v{AD}, {row}, v{AD}")
    a(f"v_and_b32 v{TT}, 3, v1")
    a(f"v_lshl_add_u32 v{AD}, v{TT}, 3, v{AD}")
    a(f"v_and_b32 v{TB}, 1, v{TB}")
    if g.B448:
        a(f"v_bfe_u32 v{TT}, v1, 2, 2")
        a(f"v_lshl_or_b32 v{TB}, v{TB}, 2, v{TT}")
        a(f"s_and_b32 s3, s{j}, 1")
        a("s_lshl_b32 s3, s3, 1")
        a("s_add_u32 s3, s3, s6")
        a(f"v_add_u32 v{AD}, {g.slot0*SLOT + g.Boff}, v{AD}")
        a("s_add_u32 s7, s3, 4")
        a(f"v_xor_b32 v{TT}, s7, v{TB}")
        a(f"v_lshl_add_u32 v{AD2}, v{TT}, 5, v{AD}")
        a(f"v_xor_b32 v{TT}, s3, v{TB}")
        a(f"v_lshl_add_u32 v{AD}, v{TT}, 5, v{AD}")
    else:
        a(f"v_bfe_u32 v{TT}, v1, 3, 1")
        a(f"v_lshl_or_b32 v{TB}, v{TB}, 1, v{TT}")
        a(f"v_xor_b32 v{TB}, s6, v{TB}")
        a(f"v_lshl_add_u32 v{AD}, v{TB}, 5, v{AD}")
        a(f"v_add_u32 v{AD}, {g.slot0*SLOT + g.Boff}, v{AD}")
    d = SLOT if g.slot0 < 2 else -2 * SLOT
    a(f"v_add_u32 v{AD+3}, {d & 0xffffffff}, v{AD}")
    if g.B448:
        a(f"v_add_u32 v{AD2+1}, {d & 0xffffffff}, v{AD2}")
    for i in range(4):
        a(f"v_mov_b32 v{ONE+i}, 0x3f803f80")
    for i in range(16):
        a(f"v_mov_b32 v{ACC+i}, 0")
    srd(a, 24, PWS, wscs, 16 * ncol * 4)
    if p1:
        srd(a, 28, PWS, WS_ST1, S * 8)
    else:
        srd(a, 28, PWS, WS_ST, 16 * S * 8)
        srd(a, 76, PB1, 0, F * 2)
    a(f"v_lshrrev_b32 v{TT}, 4, v1")
    a(f"v_lshlrev_b32 v{TT}, 4, v{TT}")
    a(f"s_mul_i32 s3, s{m}, {ncol*4}")
    a(f"s_mul_i32 s7, s{j}, {256 if p1 else 896}")
    a("s_add_u32 s3, s3, s7")
    a("s_lshl_b32 s7, s6, 6")
    a("s_add_u32 s3, s3, s7")
    a(f"v_add_u32 v{TT}, s3, v{TT}")
    a(f"v_and_b32 v{TB}, 15, v1")
    a(f"v_cmp_eq_u32 vcc, 0, v{TB}")
    a(f"v_mov_b32 v{TB}, {BIG}")
    a(f"v_cndmask_b32 v{A_CSS}, v{TB}, v{TT}, vcc")
    a("s_lshl_b32 s3, s6, 6")
    a(f"v_add_u32 v{TID}, s3, v1")
    if p1:
        a("s_mov_b32 s80, 4096")
        a("s_mov_b32 s81, 8192")
        a(f"s_lshl_b32 s3, s{m}, 10")
        a(f"s_lshl_b32 s7, s{j}, 6")
        a("s_add_u32 s3, s3, s7")
        a("s_lshl_b32 s7, s6, 4")
        a("s_add_u32 s3, s3, s7")
        a(f"v_mov_b32 v{TT}, s3")
        a("v_cmp_eq_u32 vcc, 0, v1")
        a(f"v_cndmask_b32 v{A_ST}, v{TB}, v{TT}, vcc")
        a("v_cmp_gt_u32 vcc, 48, v1")
        a(f"v_lshrrev_b32 v{TT}, 4, v1")
        a(f"v_lshlrev_b32 v{TT}, 12, v{TT}")
        a(f"v_and_b32 v{A_GA}, 15, v1")
        a(f"v_lshl_add_u32 v{TT}, v{A_GA}, 4, v{TT}")
        a(f"s_lshl_b32 s3, s{j}, 8")
        a(f"v_add_u32 v{TT}, s3, v{TT}")
        a(f"v_cndmask_b32 v{A_GA}, v{TB}, v{TT}, vcc")
        a(f"s_lshl_b32 s3, s{m}, 7")
        a("s_sub_u32 s3, s3, 16")
        a(f"v_add_u32 v{TT}, s3, v{TID}")
        a(f"v_max_i32 v{TT}, 0, v{TT}")
        a(f"v_lshlrev_b32 v{TT}, 3, v{TT}")
        a(f"v_cmp_gt_u32 vcc, 144, v{TID}")
        a(f"v_cndmask_b32 v{A_GB}, v{TB}, v{TT}, vcc")
    else:
        a("s_cmp_ge_u32 s6, 2")
        a(f"s_cselect_b32 s3, {BIG}, 0")
        a(f"v_max_u32 v{A_CS3}, s3, v{A_CSS}")
        a(f"v_lshlrev_b32 v{A_ST}, 4, v1")
        a(f"s_lshl_b32 s3, s{m}, 10")
        a("s_lshl_b32 s7, s6, 16")
        a("s_add_u32 s3, s3, s7")
        a(f"v_add_u32 v{A_ST}, s3, v{A_ST}")
        a("v_cmp_gt_u32 vcc, 56, v1")
        a(f"v_lshlrev_b32 v{TT}, 4, v1")
        a(f"s_mul_i32 s3, s{j}, 896")
        a(f"v_add_u32 v{TT}, s3, v{TT}")
        a(f"v_cndmask_b32 v{A_GA}, v{TB}, v{TT}, vcc")
        a(f"v_cmp_gt_u32 vcc, 224, v{TID}")
        a(f"v_lshlrev_b32 v{TT}, 1, v{TID}")
        a(f"s_mul_i32 s3, s{j}, 448")
        a(f"v_add_u32 v{TT}, s3, v{TT}")
        a(f"v_cndmask_b32 v{A_GB}, v{TB}, v{TT}, vcc")
    if nsh == 8:
        a(f"s_and_b32 s82, s{m}, 8")
        a(f"s_mul_i32 s82, s82, {ncol*4}")
    else:
        a("s_mov_b32 s82, 0")
    a(f"s_mul_i32 s3, s6, {(nsh // 4) * ncol * 4}")
    a("s_add_u32 s82, s82, s3")
    a(f"v_lshlrev_b32 v{A_SC}, 4, v1")
    a("s_lshl_b32 s3, s6, 10")
    a(f"s_add_u32 s3, s3, {L_SC}")
    a(f"v_add_u32 v{A_SC}, s3, v{A_SC}")
    srd(a, 84, PWS, WS_FL, 65536)
    a("v_cmp_eq_u32 vcc, 0, v1")
    flag_off(a, 7, flcs - WS_FL, j, m)
    a(f"v_mov_b32 v{TT}, s7")
    a(f"v_cndmask_b32 v{SG}, v{TB}, v{TT}, vcc")
    if p1:
        flag_off(a, 7, 0, m, j)
        a(f"v_mov_b32 v{TT}, s7")
        a(f"v_cndmask_b32 v{SG+4}, v{TB}, v{TT}, vcc")
    else:
        a(f"v_mov_b32 v{SG+2}, s{NONCE}")
        a(f"v_mov_b32 v{SG+3}, s{NONCE+1}")
    a(f"v_lshlrev_b32 v{PA}, 3, v1")
    a(f"s_lshl_b32 s3, s{j}, 9")
    a(f"s_add_u32 s3, s3, {flcs}")
    if p1:
        a(f"s_lshl_b32 s7, s{m}, 9")
        a(f"s_add_u32 s7, s7, {WS_FL}")
        a(f"v_add_u32 v{PA+1}, s7, v{PA}")
        a(f"v_or_b32 v{PA+2}, 56, v1")
        a(f"v_lshlrev_b32 v{PA+2}, 3, v{PA+2}")
        a(f"s_cmp_eq_u32 s{m}, 0")
        a("s_cselect_b32 s34, 0, 512")
        a("s_sub_u32 s7, s7, s34")
        a(f"v_add_u32 v{PA+2}, s7, v{PA+2}")
    if nsh == 8:
        a(f"v_and_b32 v{PA}, 0xff, v{PA}")
        a(f"s_and_b32 s7, s{m}, 8")
        a("s_lshl_b32 s7, s7, 5")
        a("s_add_u32 s3, s3, s7")
    a(f"v_add_u32 v{PA}, s3, v{PA}")
    if p1:
        a("s_lshl_b32 s3, s6, 4")
        a(f"s_add_u32 s3, s3, {L_P0}")
        a(f"v_mov_b32 v{TB}, s3")
        a(f"v_mov_b32 v{VT}, 0")
        a(f"v_mov_b32 v{VT+1}, {L_NONCE}")
        a("s_lshl_b32 s3, s2, 2")
        a("s_add_u32 s3, s3, s6")
        a("s_lshl_b32 s3, s3, 13")
        a(f"s_add_u32 s3, s3, {WS_XB}")
        a(f"v_lshlrev_b32 v{A_XB}, 4, v1")
        a(f"v_add_u32 v{A_XB}, s3, v{A_XB}")
        a(f"v_add_u32 v{A_XB+1}, 4096, v{A_XB}")
        for i in range(4):
            a(f"v_mov_b32 v{ZERO+i}, 0")


LGK = [False]
WARM = {"left": [56, 56], "save": None}


def warm(a, n, iters=1):
    if not OPT["warm"]:
        return
    w = 0 if WARM["phase"] == 1 else 1
    n = min(n, WARM["left"][w] // iters)
    if n <= 0:
        return
    WARM["left"][w] -= n * iters
    b = 88 if w else 32
    for i in range(n):
        a(f"s_load_dwordx2 s[{90+2*(i&1)}:{91+2*(i&1)}], s[{b}:{b+1}], {60+128*i}")
    a(f"s_add_u32 s{b}, s{b}, {128*n}")
    a(f"s_addc_u32 s{b+1}, s{b+1}, 0")


def fold_body(a, g, both, c, loop, sfx):
    p1 = g.n == 1
    P = f"LD{g.n}{sfx}"
    nsh = 16 if g.map else 8
    nstg = 1 if g.map else 2
    nu = 3 if p1 else 4
    ncol = 3 * D if p1 else F
    npw = nsh // 4

    def cs_reads(r, ad):
        for h in range(2):
            for i in range(nu):
                for jj in range(2):
                    off = (i * 8192 + jj * 512 + h * 4096) if p1 else ((i >> 1) * 256 + jj * 2048 + h * 16384)
                    v = ad if (p1 or not i & 1) else (AD2 if ad == AD else AD2 + 1)
                    r(f"ds_read_b64_tr_b16 {vr(WF+16*h+4*i+2*jj,2)}, v{v} offset:{off}")
        LGK[0] = True

    def cs_mfma(r):
        for h in range(2):
            for i in range(nu):
                r(f"v_mfma_f32_16x16x32_bf16 {vr(ACC+4*i,4)}, {vr(WF+16*h+4*i,4)}, {vr(ONE,4)}, {vr(ACC+4*i,4)}")

    def f0(r):
        if p1:
            r(f"ds_read_b128 {vr(ST,4)}, v{TB}")
        cs_reads(r, AD)
        return 0

    def f1(r):
        n = 0
        if p1:
            r.begin()
            r("s_mov_b64 exec, 1")
            r(f"buffer_store_dwordx4 {vr(ST,4)}, v{A_ST}, s[28:31], 0 offen sc1")
            r(f"global_load_dwordx2 v[{VT+2}:{VT+3}], v{VT}, s[{PDBG}:{PDBG+1}] sc1")
            r("s_mov_b64 exec, -1")
            r.end()
            n = 2
        cs_mfma(r)
        if nstg == 2:
            cs_reads(r, AD + 3)
        return n

    def f2(r):
        cs_mfma(r)
        return 0

    def f3(r):
        for i in range(nu):
            r.begin()
            r("s_mov_b32 exec_lo, 0x10001")
            r("s_mov_b32 exec_hi, 0x10001")
            if p1:
                r(f"buffer_store_dwordx4 {vr(ACC+4*i,4)}, v{A_CSS}, s[24:27], {['0','s80','s81'][i]} offen sc1")
            else:
                r(f"buffer_store_dwordx4 {vr(ACC+4*i,4)}, v{A_CSS if i < 3 else A_CS3}, s[24:27], 0 offen offset:{i*256} sc1")
            r("s_mov_b64 exec, -1")
            r.end()
        return nu

    def post3():
        nonce_check(a, P, VT)
        a(f"v_mov_b32 v{SG+2}, s{NONCE}")
        a(f"v_mov_b32 v{SG+3}, s{NONCE+1}")
        a(f"ds_write_b64 v{VT+1}, {vr(SG+2,2)}")

    def f5(r):
        r.begin()
        r("s_mov_b64 exec, 1")
        r(f"buffer_store_dwordx2 {vr(SG+2,2)}, v{SG}, s[84:85+2], 0 offen sc1".replace("85+2", "87"))
        if p1:
            r(f"buffer_store_dwordx2 {vr(SG+2,2)}, v{SG+4}, s[84:87], 0 offen sc1")
        r("s_mov_b64 exec, -1")
        r.end()
        return 2 if p1 else 1

    def pre_allready():
        a(f"{P}_ar:")
        a(f"s_cmp_eq_u32 s{RDY}, 0xffff")
        a(f"s_cbranch_scc1 {P}_ar2")
        poll_once(a)
        a(f"s_branch {P}_ar")
        a(f"{P}_ar2:")

    def f_stload(r):
        for i in range(4):
            r.begin()
            r(f"s_mov_b32 s3, {i*16384}")
            r(f"buffer_load_dwordx4 {vr(ST+4*i,4)}, v{A_ST}, s[28:31], s3 offen sc1")
            r.end()
        return 4

    def f_st1(r):
        for i in range(8):
            r(f"v_add_f32 v{ST+i}, v{ST+i}, v{ST+8+i}")
        for i in range(4):
            r(f"v_add_f32 v{ST+i}, v{ST+i}, v{ST+4+i}")
        r(f"ds_write_b128 v{A_SC}, {vr(ST,4)} offset:{L_SS-L_SC}")
        r(f"v_and_b32 v{TT}, 127, v{TID}")
        r(f"v_lshlrev_b32 v{TT}, 3, v{TT}")
        r(f"v_add_u32 v{TB}, {L_SS}, v{TT}")
        r(f"v_add_u32 v{TT}, {L_ROW}, v{TT}")
        r("s_waitcnt lgkmcnt(0)")
        return 0

    def f_st2(r):
        r(f"ds_read2st64_b64 {vr(ST,4)}, v{TB} offset0:0 offset1:2")
        r(f"ds_read2st64_b64 {vr(ST+4,4)}, v{TB} offset0:4 offset1:6")
        r("s_waitcnt lgkmcnt(0)")
        for i in range(4):
            r(f"v_add_f32 v{ST+i}, v{ST+i}, v{ST+4+i}")
        r(f"v_add_f32 v{ST}, v{ST}, v{ST+2}")
        r(f"v_add_f32 v{ST+1}, v{ST+1}, v{ST+3}")
        r(f"v_mul_f32 v{ST}, {hexf(1/1024)}, v{ST}")
        r(f"v_mul_f32 v{ST+1}, {hexf(1/1024)}, v{ST+1}")
        r(f"v_fma_f32 v{ST+1}, -v{ST}, v{ST}, v{ST+1}")
        r(f"v_max_f32 v{ST+1}, 0, v{ST+1}")
        ln_finish(r, ST, ST + 1, ST + 2)
        r(f"ds_write_b64 v{TT}, {vr(ST+2,2)}")
        return 0

    def mk_prew(k):
        def f(r):
            for gi in (2 * k, 2 * k + 1):
                r(f"global_store_dwordx4 v{A_XB+(gi>>2)}, {vr(ZERO,4)}, s[{PWS}:{PWS+1}] offset:{(gi&3)*1024} sc1")
            return 2
        return f

    addrs = [PA] + ([PA + 1, PA + 2] if p1 else [])

    def f_poll(r):
        poll_loads(r, addrs, PA + 4)
        return len(addrs)

    def post_check():
        poll_check(a, P + "cs", addrs, PA + 4)

    def tail0():
        a("s_mov_b32 s3, s82")
        for i in range(npw):
            a(f"buffer_load_dwordx4 {vr(ACC+4*i,4)}, v{A_GA}, s[24:27], s3 offen sc1")
            if i < npw - 1:
                a(f"s_add_u32 s3, s3, {ncol*4}")
        if p1:
            a(f"buffer_load_dwordx2 {vr(ST,2)}, v{A_GB}, s[28:31], 0 offen sc1")
        else:
            a(f"buffer_load_ushort v{WF}, v{A_GB}, s[76:79], 0 offen")
            pre_allready()
            r = Rec()
            f_stload(r)
            for grp in r.g:
                for t in grp:
                    a(t)
        a(f"v_lshlrev_b32 v{AD}, 2, v{TID}")
        a(f"v_add_u32 v{TB}, {L_SC}, v{AD}")
        a(f"v_add_u32 v{AD}, {L_RS}, v{AD}")
        if p1:
            a(f"v_lshlrev_b32 v{TT}, 3, v{TID}")
        else:
            a(f"v_and_b32 v{TT}, 127, v{TID}")
            a(f"v_lshlrev_b32 v{TT}, 3, v{TT}")
            a(f"v_add_u32 v{AD2}, {L_SS}, v{TT}")
        a(f"v_add_u32 v{TT}, {L_ROW}, v{TT}")
        a(f"v_mov_b32 v{VT}, {L_LCNT}")
        a(f"v_mov_b32 v{VT+1}, 1")
        return npw + 1 + (0 if p1 else 4)

    def tail1():
        a("s_setprio 3")
        k = npw
        while k > 1:
            k //= 2
            for i in range(4 * k):
                a(f"v_add_f32 v{ACC+i}, v{ACC+i}, v{ACC+i+4*k}")
        a(f"ds_write_b128 v{A_SC}, {vr(ACC,4)}")
        if not p1:
            for i in range(8):
                a(f"v_add_f32 v{ST+i}, v{ST+i}, v{ST+8+i}")
            for i in range(4):
                a(f"v_add_f32 v{ST+i}, v{ST+i}, v{ST+4+i}")
            a(f"ds_write_b128 v{A_SC}, {vr(ST,4)} offset:{L_SS-L_SC}")
        a("s_mov_b64 exec, 1")
        a("s_waitcnt lgkmcnt(0)")
        a(f"ds_add_u32 v{VT}, v{VT+1}")
        a(f"{P}_ls:")
        a(f"ds_read_b32 v{VT+2}, v{VT}")
        a("s_waitcnt lgkmcnt(0)")
        a(f"v_readfirstlane_b32 s3, v{VT+2}")
        a(f"s_cmp_lt_u32 s3, {4 if p1 else 8}")
        a(f"s_cbranch_scc1 {P}_ls")
        a("s_mov_b64 exec, -1")

    def tail2():
        if not p1:
            a(f"ds_read2st64_b64 {vr(ST,4)}, v{AD2} offset0:0 offset1:2")
            a(f"ds_read2st64_b64 {vr(ST+4,4)}, v{AD2} offset0:4 offset1:6")
        a(f"ds_read2st64_b32 {vr(ACC,2)}, v{TB} offset0:0 offset1:4")
        a(f"ds_read2st64_b32 {vr(ACC+2,2)}, v{TB} offset0:8 offset1:12")
        if p1:
            a(f"ds_write_b32 v{AD}, v{ST}")
            a(f"ds_write_b32 v{AD}, v{ST+1} offset:{L_NM-L_RS}")
            a(f"ds_write_b64 v{TT}, {vr(ST,2)}")
        else:
            a(f"v_lshlrev_b32 v{WF}, 16, v{WF}")
            a(f"ds_write_b32 v{AD}, v{WF} offset:{L_B1-L_RS}")
        a("s_waitcnt lgkmcnt(0)")
        a(f"v_add_f32 v{ACC}, v{ACC}, v{ACC+1}")
        a(f"v_add_f32 v{ACC+2}, v{ACC+2}, v{ACC+3}")
        a(f"v_add_f32 v{ACC}, v{ACC}, v{ACC+2}")
        a(f"ds_write_b32 v{AD}, v{ACC} offset:{L_CS-L_RS}")
        if not p1:
            for i in range(4):
                a(f"v_add_f32 v{ST+i}, v{ST+i}, v{ST+4+i}")
            a(f"v_add_f32 v{ST}, v{ST}, v{ST+2}")
            a(f"v_add_f32 v{ST+1}, v{ST+1}, v{ST+3}")
            a(f"v_mul_f32 v{ST}, {hexf(1/1024)}, v{ST}")
            a(f"v_mul_f32 v{ST+1}, {hexf(1/1024)}, v{ST+1}")
            a(f"v_fma_f32 v{ST+1}, -v{ST}, v{ST}, v{ST+1}")
            a(f"v_max_f32 v{ST+1}, 0, v{ST+1}")
            ln_finish(a, ST, ST + 1, ST + 2)
            a(f"ds_write_b64 v{TT}, {vr(ST+2,2)}")
        a("s_waitcnt lgkmcnt(0)")
        a(f"s_setprio {OPT['prio']}")

    fill = {1: f1, 3: f3, 5: f5, 11: f_poll}
    post = {13: post_check}
    pre = {}
    nowarm = {0, 1}
    if nstg == 2:
        fill[2] = f2
    fill[0] = f0
    i = 0
    if p1:
        post[3] = post3

    if not OPT["warm"]:
        nowarm = set()
    tag = 0
    special = set(fill) | set(post) | set(pre) | nowarm
    while i <= g.nst - 3:
        if i in special:
            if i in pre:
                pre[i]()
            r = Rec()
            LGK[0] = False
            x = fill[i](r) if i in fill else 0
            hot = any(t.startswith("v_") for grp in r.g for t in grp)
            if hot:
                a("s_setprio 3")
            issue(a, both, fill=r.g)
            if hot:
                a(f"s_setprio {OPT['prio']}")
            if i in post:
                post[i]()
            if i not in nowarm:
                warm(a, WARM["rate"])
            a(f"s_waitcnt vmcnt({c+x})" + (" lgkmcnt(0)" if LGK[0] else ""))
            a("s_barrier")
            i += 1
        else:
            k = i
            while k <= g.nst - 3 and k not in special:
                k += 1
            loop(f"t{tag}", k - i)
            tag += 1
            i = k
    return tail0, tail1, tail2


def code_touch(a, lab0, lab1, vt, vo, always=False):
    if not OPT["ctouch"]:
        return
    LAB[0] += 1
    L = f"CT{LAB[0]}"
    a("s_getpc_b64 s[34:35]")
    a(f"{L}:")
    a(f"s_add_u32 s34, s34, {lab0}-{L}")
    a(f"s_addc_u32 s35, s35, ({lab0}-{L})>>32")
    a("s_lshl_b32 s3, s6, 7")
    a(f"v_lshlrev_b32 v{vo}, 9, v1")
    a(f"v_add_u32 v{vo}, s3, v{vo}")
    a(f"v_cmp_gt_u32 vcc, {lab1}-{lab0}, v{vo}")
    a("s_mov_b64 exec, vcc")
    if not always:
        a(f"s_cbranch_execz {L}_e")
    a(f"global_load_dword v{vt}, v{vo}, s[34:35]")
    a(f"{L}_e:")
    a("s_mov_b64 exec, -1")


def gen_loader(a):
    a("LOADER:")
    a.hist = []
    a("s_sub_u32 s6, s6, 4")
    if OPT["prio"]:
        a(f"s_setprio {OPT['prio']}")
    a("v_lshrrev_b32 v2, 3, v1")
    a("v_and_b32 v3, 7, v1")
    vA, vBs = 8, [16, 24]
    srdB = [12, 16]
    regsB = [(36, 37, 38, 39, 46), (40, 41, 42, 43, 47)]
    regsA = (20, 21, 22, 23, 45, 97)
    SB = {p: Stream(PH[p], False, srdB[p & 1], vBs[p & 1], *regsB[p & 1]) for p in (1, 2, 3, 4)}

    def prepB(p):
        srd(a, SB[p].srd, *PH[p].B)
        ld_offsets_B(a, PH[p], SB[p].v)
        SB[p].init(a)

    ld_offsets_B(a, PH[1], SB[1].v)
    SB[1].init(a)
    SA1 = Stream(PH[1], True, 8, vA, *regsA)
    ld_offsets_A(a, PH[1], vA)
    SA1.init(a)
    a("s_waitcnt lgkmcnt(0)")
    srd(a, SB[1].srd, *PH[1].B)
    a("s_or_b32 s3, s2, s6")
    a("s_cmp_lg_u32 s3, 0")
    a("s_cbranch_scc1 LD_nopub")
    a("s_mov_b64 s[34:35], s[98:99]" if OPT["early"] else "s_memrealtime s[34:35]")
    a("v_mov_b32 v6, 0")
    a("s_waitcnt lgkmcnt(0)")
    a("s_or_b32 s34, s34, 1")
    a("v_mov_b32 v4, s34")
    a("v_mov_b32 v5, s35")
    a("s_mov_b64 exec, 1")
    a(f"global_store_dwordx2 v6, v[4:5], s[{PDBG}:{PDBG+1}] sc1")
    a("s_mov_b64 exec, -1")
    a("LD_nopub:")
    stamp(a, "l", "start")
    a("s_lshl_b32 s3, s2, 2")
    a("s_add_u32 s3, s3, s6")
    a("s_mul_i32 s3, s3, 7168")
    a(f"s_add_u32 s88, s{PW2}, s3")
    a(f"s_addc_u32 s89, s{PW2+1}, 0")
    a(f"s_add_u32 s32, s{PW1}, s3")
    a(f"s_addc_u32 s33, s{PW1+1}, 0")
    for p in (1, 2, 3, 4):
        g = PH[p]
        P = f"LD{p}"
        m, j = g.mj
        SA = Stream(g, True, 8, vA, *regsA)
        srd(a, 8, *g.A)
        if p > 1:
            ld_offsets_A(a, g, vA)
            SA.init(a)
        nBq = g.nB // 4
        nAq = (g.nA + 3) // 4
        if p > 1:
            a(f"s_lshl_b32 s3, s{m}, 11")
            a(f"s_add_u32 s3, s3, {WS_FD + (p-1)*32768}")
            a(f"v_lshlrev_b32 v{PF}, 7, v1")
            a(f"v_add_u32 v{PF}, s3, v{PF}")
            a(f"s_mov_b64 s[{RDY}:{RDY+1}], 0")
            a(f"s_mov_b32 s{TMO}, 0x40000")
            if p < 4:
                prepB(p + 1)
            if p == 3:
                fold_setup(a, g)
            stamp(a, "l", f"p{p}_prepoll")
        variants = [(nAq, "")]
        if g.nA % 4:
            variants = [(nAq, "x"), (nAq - 1, "y")]
            a(f"s_cmp_ge_u32 s6, {g.nA % 4}")
            a(f"s_cbranch_scc1 {P}_y")
        for (na, sfx) in variants:
            if sfx == "y":
                a(f"{P}_y:")
            c = na + nBq
            WARM["phase"], WARM["rate"] = p, OPT[f"wr{p}"] if p < 4 else 0
            if sfx == "x":
                WARM["save"] = list(WARM["left"])
            if sfx == "y":
                WARM["left"] = list(WARM["save"])
            both = [(SB[p], nBq), (SA, na)]
            if p == 1:
                issue(a, both, OPT["nt1"] > 0)
                prepB(2)
                fold_setup(a, g)
                issue(a, both, mid=5)
            else:
                issue(a, [(SA, na)])
                stamp(a, "l", f"p{p}_A0")
                SA.need(a, f"{P}_x1")
                a("s_waitcnt vmcnt(0)")
                a("s_barrier")
                issue(a, [(SA, na)])
                a(f"s_branch {P}_x2")
                a(f"{P}_x1:")
                issue(a, [(SA, na)], ready=False, mid=min(na, 5))
            if p > 1:
                a(f"{P}_x2:")

            def loop(tag, cnt):
                a(f"s_mov_b32 s44, {cnt}")
                a(f"{P}_l{tag}{sfx}:")
                issue(a, both)
                warm(a, WARM["rate"], cnt)
                a(f"s_waitcnt vmcnt({c})")
                a("s_barrier")
                a("s_sub_u32 s44, s44, 1")
                a("s_cmp_lg_u32 s44, 0")
                a(f"s_cbranch_scc1 {P}_l{tag}{sfx}")

            if p in (2, 4):
                loop("a", g.nst - 2)
                tails = (lambda: None, lambda: None, lambda: None)
            else:
                tails = fold_body(a, g, both, c, loop, sfx)
            if p < 4:
                nb2 = PH[p + 1].nB // 4
                ng = tails[0]() or 0
                issue(a, [(SB[p + 1], nb2)])
                a(f"s_waitcnt vmcnt({nb2 + ng})")
                a("s_barrier")
                if ng:
                    a(f"s_waitcnt vmcnt({nb2})")
                tails[1]()
                tails[2]()
                code_touch(a, f"CT_e{p}", f"CT_e{p+1}", 44, 45)
                code_touch(a, f"LD{p}_e", f"LD{p+1}_e", 46, 45)
                a("s_barrier")
                issue(a, [(SB[p + 1], nb2)])
                if p == 1 and OPT["touch1"] and OPT["warm"] and WARM["left"][0]:
                    a(f"v_lshlrev_b32 v{TT}, 7, v1")
                    a(f"s_mov_b64 exec, {hex((1 << WARM['left'][0]) - 1)}")
                    a(f"global_load_dword v{TB}, v{TT}, s[32:33]")
                    a("s_mov_b64 exec, -1")
                if p == 3 and OPT["prew"]:
                    for gi in range(6):
                        a(f"global_store_dwordx4 v{A_XB+(gi>>2)}, {vr(ZERO,4)}, s[{PWS}:{PWS+1}] offset:{(gi&3)*1024} sc1")
                WARM["phase"] = 2
                warm(a, OPT["wg"])
            else:
                a("s_waitcnt vmcnt(0)")
                a("s_barrier")
                code_touch(a, "CT_e4", "KEND", 44, 45)
                a("s_barrier")
            if sfx == "x":
                a(f"s_branch {P}_e")
        a(f"{P}_e:")
    print("warm lines not covered:", WARM["left"])
    stamp(a, "l", "end")
    stamp_flush(a, 4)
    a("s_endpgm")


def gen_mainloop(a, g, P):
    a(f"s_mov_b32 s42, {g.slot0}")
    a(f"s_mov_b32 s46, {(-2*SLOT) & 0xffffffff}")
    a(f"s_mov_b32 s47, {SLOT}")
    a(f"s_mov_b32 s43, {g.nst}")
    a("s_waitcnt lgkmcnt(0)")
    a("s_barrier")
    stamp(a, "c", f"p{g.n}_B0")
    for r in g.reads(0, 0):
        a(r)
    a(f"{P}_loop:")
    U = 1 if OPT["stamp"] == 2 and not OPT["unr"] else max(1, OPT["unr"])
    dn = len(g.reads(0, 0)) if (OPT["rd2"] == 2 or (OPT["rd2"] and g.n in (2, 4))) else 0
    for k in range(U):
        sal = ["s_cmp_eq_u32 s42, 2", "s_cselect_b32 s44, s46, s47"]
        sal2 = ["s_add_u32 s42, s42, 1", "s_cmp_eq_u32 s42, 3", "s_cselect_b32 s42, 0, s42", "s_sub_u32 s43, s43, 1"]
        if k == U - 1:
            sal2 += ["s_cmp_lg_u32 s43, 0"]
        a("s_waitcnt lgkmcnt(0)")
        if OPT["stamp"] == 2:
            base = {1: 0, 2: 17, 3: 26, 4: 0}[g.n]
            a(f"s_add_u32 m0, s43, {base}")
            a(f"v_writelane_b32 v{253 if g.n == 4 else 252}, s98, m0")
            a("s_memtime s[98:99]")
        interleave(a, g.mfmas(0), g.reads(1, 1) + sal + [f"v_add_u32 v{v}, s44, v{v}" for v in g.adv], dense=dn)
        a("s_waitcnt lgkmcnt(0)")
        interleave(a, g.mfmas(1), g.reads(0, 0) + sal2, first=["s_barrier"], dense=dn)
    a(f"s_cbranch_scc1 {P}_loop")
    if P != "P1a":
        a(f"CT_e{g.n}:")
    a("s_waitcnt lgkmcnt(0)")
    if OPT["stamp"] == 2:
        a(f"v_writelane_b32 v{253 if g.n == 4 else 252}, s98, {base}")
    stamp(a, "c", f"p{g.n}_loopend")


L15, GQ = 2, 3


def b_addr128(a, V, units, sbase):
    t = V.alloc()
    f = V.alloc()
    base = V.alloc()
    a(f"v_bfe_u32 v{f}, v{L15}, 3, 1")
    a(f"v_and_b32 v{t}, 1, v{GQ}")
    a(f"v_lshl_or_b32 v{f}, v{t}, 1, v{f}")
    a(f"v_lshrrev_b32 v{t}, 2, v{L15}")
    a(f"v_lshl_add_u32 v{t}, v{GQ}, 3, v{t}")
    a(f"v_lshlrev_b32 v{base}, 7, v{t}")
    a(f"v_and_b32 v{t}, 3, v{L15}")
    a(f"v_lshl_add_u32 v{base}, v{t}, 3, v{base}")
    a(f"v_add_u32 v{base}, s{sbase}, v{base}")
    out = []
    for u in units:
        v0 = V.alloc()
        a(f"v_xor_b32 v{t}, {u}, v{f}")
        a(f"v_lshl_add_u32 v{v0}, v{t}, 5, v{base}")
        out.append(v0)
    return out


def zero_acc(a, acc, n):
    for i in range(n):
        a(f"v_mov_b32 v{acc+i}, 0")


def pair_post(a, tag, vt):
    a("s_lshl_b32 s3, s6, 2")
    a(f"s_add_u32 s3, s3, {L_PAIR}")
    a(f"v_mov_b32 v{vt}, s3")
    a(f"v_mov_b32 v{vt+1}, {tag}")
    a("s_waitcnt lgkmcnt(0)")
    a(f"ds_write_b32 v{vt}, v{vt+1}")


def pair_wait(a, lab, tag, xor, vt):
    a(f"v_xor_b32 v{vt}, {xor*4}, v{vt}")
    a(f"{lab}_ps:")
    a(f"ds_read_b32 v{vt+1}, v{vt}")
    a("s_waitcnt lgkmcnt(0)")
    a(f"v_readfirstlane_b32 s3, v{vt+1}")
    a(f"s_cmp_lg_u32 s3, {tag}")
    a(f"s_cbranch_scc1 {lab}_ps")


def finish_phase(a, p, g, vt):
    m, j = g.mj
    a(f"s_lshl_b32 s7, s{m}, 11")
    a(f"s_lshl_b32 s3, s{j}, 7")
    a("s_add_u32 s7, s7, s3")
    a(f"s_add_u32 s7, s7, {WS_FD + p*32768}")
    a(f"v_mov_b32 v{vt}, {L_CNT}")
    a(f"v_mov_b32 v{vt+1}, 1")
    a(f"v_mov_b32 v{vt+2}, s{NONCE}")
    a(f"v_mov_b32 v{vt+3}, s{NONCE+1}")
    a("s_mov_b64 exec, 1")
    a("s_waitcnt vmcnt(0)")
    a(f"ds_add_rtn_u32 v{vt+1}, v{vt}, v{vt+1}")
    a(f"v_mov_b32 v{vt}, s7")
    a("s_waitcnt lgkmcnt(0)")
    a(f"v_readfirstlane_b32 s3, v{vt+1}")
    a(f"s_cmp_lg_u32 s3, {4*p-1}")
    a(f"s_cbranch_scc1 FIN{p}")
    a(f"global_store_dwordx2 v{vt}, v[{vt+2}:{vt+3}], s[{PWS}:{PWS+1}] sc1")
    a(f"FIN{p}:")
    a("s_mov_b64 exec, -1")
    stamp(a, "c", f"p{p}_done")


def frag_lane_off(a, d, t):
    a(f"v_and_b32 v{t}, 1, v{GQ}")
    a(f"v_lshlrev_b32 v{d}, 9, v{t}")
    a(f"v_lshrrev_b32 v{t}, 1, v{GQ}")
    a(f"v_lshl_add_u32 v{d}, v{t}, 8, v{d}")
    a(f"v_lshl_add_u32 v{d}, v{L15}, 4, v{d}")


def gen_p0(a):
    g = PH[1]
    m, j = g.mj
    a(f"s_lshl_b32 s3, s{m}, 7")
    a(f"s_lshl_b32 s7, s{j}, 3")
    a("s_add_u32 s3, s3, s7")
    a("s_lshl_b32 s7, s6, 1")
    a("s_add_u32 s34, s3, s7")
    a("s_lshl_b32 s3, s34, 11")
    a("v_lshlrev_b32 v4, 4, v1")
    a("s_waitcnt lgkmcnt(0)")
    stamp(a, "c", "start")
    srd(a, 8, PX, 0, S * D * 2)
    for rr in range(2):
        for hh in range(2):
            a(f"buffer_load_dwordx4 v[{24+rr*8+hh*4}:{27+rr*8+hh*4}], v4, s[8:11], s3 offen offset:{rr*2048+hh*1024}")
    a("s_lshl_b32 s3, s6, 2")
    a(f"s_add_u32 s3, s3, {L_PAIR}")
    a("v_mov_b32 v5, s3")
    a("v_mov_b32 v6, 0")
    a("ds_write_b32 v5, v6")
    a(f"v_mov_b32 v5, {L_CNT}")
    a("ds_write_b32 v5, v6")
    a(f"ds_write_b32 v5, v6 offset:{L_LCNT-L_CNT}")


def gen_p0t(a):
    if OPT["prew"]:
        for p in (1, 2, 3):
            m, j = PH[p].mj
            a(f"s_lshl_b32 s7, s{m}, 11")
            a(f"s_lshl_b32 s3, s{j}, 7")
            a("s_add_u32 s7, s7, s3")
            a(f"s_add_u32 s{35+p}, s7, {WS_FD + p*32768}")
        a("s_cmp_eq_u32 s6, 2")
        a("s_cselect_b32 s36, s37, s36")
        a("s_cmp_eq_u32 s6, 3")
        a("s_cselect_b32 s36, s38, s36")
        a("v_lshlrev_b32 v54, 4, v1")
        a("v_add_u32 v54, s36, v54")
        for i in range(4):
            a(f"v_mov_b32 v{56+i}, 0")
        a("s_mov_b64 exec, 0xff")
        a(f"global_store_dwordx4 v54, v[56:59], s[{PWS}:{PWS+1}] sc1")
        a("s_mov_b64 exec, -1")
    code_touch(a, "CT_s", "CT_e1", 240, 51, True)
    code_touch(a, "LOADER", "LD1_e", 241, 51, True)
    a("CT_s:")


def gen_p0b(a):
    a(f"s_waitcnt vmcnt({(2 if OPT['ctouch'] else 0) + (1 if OPT['prew'] else 0)})")
    a("v_mov_b32 v48, 0x3f803f80")
    R = [40, 41, 42, 43]
    for i in range(8):
        for rr in range(2):
            x = 24 + rr * 8 + i
            a(f"v_dot2_f32_bf16 v{R[2*rr]}, v{x}, v48, {'0' if i == 0 else 'v%d' % R[2*rr]}")
            a(f"v_dot2_f32_bf16 v{R[2*rr+1]}, v{x}, v{x}, {'0' if i == 0 else 'v%d' % R[2*rr+1]}")
    a("s_nop 2")
    wave_sum_multi(a, R, [44, 45, 46, 47])
    for rr in range(2):
        a(f"v_mul_f32 v{R[2*rr]}, {hexf(1.0/1024)}, v{R[2*rr]}")
        a(f"v_mul_f32 v{R[2*rr+1]}, {hexf(1.0/1024)}, v{R[2*rr+1]}")
        a(f"v_fma_f32 v{R[2*rr+1]}, -v{R[2*rr]}, v{R[2*rr]}, v{R[2*rr+1]}")
        a(f"v_max_f32 v{R[2*rr+1]}, 0, v{R[2*rr+1]}")
    for rr in range(2):
        ln_finish(a, R[2 * rr], R[2 * rr + 1], 44 + 2 * rr)
    a("s_lshl_b32 s3, s6, 4")
    a(f"s_add_u32 s3, s3, {L_P0}")
    a("v_mov_b32 v48, s3")
    a("ds_write_b128 v48, v[44:47]")
    stamp(a, "c", "p0_done")


def gen_p1(a):
    g = PH[1]
    m, j = g.mj
    g2 = PH[2]
    V = Regs("v", 68, RES)
    srd(a, 20, PWS, WS_O, S * D * 2)
    a("s_and_b32 s34, s6, 1")
    a("s_lshr_b32 s35, s6, 1")
    a("s_lshl_b32 s36, s34, 13")
    t = 4
    vA, vAh = [5, 6], [7, 8]
    for h in range(2):
        a(f"v_lshrrev_b32 v{t}, 1, v{L15}")
        a(f"v_xor_b32 v{t}, v{t}, v{GQ}")
        if h:
            a(f"v_xor_b32 v{t}, 4, v{t}")
        a(f"v_lshlrev_b32 v{t}, 4, v{t}")
        a(f"v_lshl_add_u32 v{vAh[h]}, v{L15}, 7, v{t}")
        if g.slot0:
            a(f"v_add_u32 v{vAh[h]}, {g.slot0*SLOT}, v{vAh[h]}")
        a(f"v_add_u32 v{vA[h]}, s36, v{vAh[h]}")
        a(f"v_add_u32 v{vA[h]}, 2048, v{vA[h]}")
    a(f"s_mov_b32 s36, {g.Boff + g.slot0*SLOT}")
    a("s_lshl_b32 s37, s35, 1")
    a("s_add_u32 s38, s37, 1")
    V2 = Regs("v", 12, 24)
    vB = b_addr128(a, V2, ["s37", "s38"], 36)
    acc = V.alloc(104, 4)
    W = [V.alloc(24, 4), 0]
    X = [V.alloc(20, 4), 0]
    W[1], X[1] = 24, 48
    accr = lambda t, u: acc + (t * 4 + u) * 4
    acch = lambda c: acc + 96 + c * 4
    zero_acc(a, acc, 104)
    gen_p0b(a)

    def reads(h, b):
        r = []
        for u in range(4):
            r.append(f"ds_read_b128 {vr(X[b]+4*u,4)}, v{vA[h]} offset:{u*2048}")
        for t in range(6):
            for jj in range(2):
                r.append(f"ds_read_b64_tr_b16 {vr(W[b]+4*t+2*jj,2)}, v{vB[t&1]} offset:{(t>>1)*8192+jj*512+h*4096}")
            if t == 1:
                r.append(f"ds_read_b128 {vr(X[b]+16,4)}, v{vAh[h]}")
        return r

    def mk_mfmas(rsel):
        def mfmas(b):
            ml = []
            for t in range(6):
                for u in (range(4) if t % 2 == 0 else (3, 2, 1, 0)):
                    w, x, d = vr(W[b] + 4 * t, 4), vr(X[b] + 4 * u, 4), vr(accr(t, u), 4)
                    ml.append(f"v_mfma_f32_16x16x32_bf16 {d}, {w}, {x}, {d}" if t < 4 else
                              f"v_mfma_f32_16x16x32_bf16 {d}, {x}, {w}, {d}")
                if (t >> 1) == 1 + rsel:
                    w, x, d = vr(W[b] + 4 * t, 4), vr(X[b] + 16, 4), vr(acch(t & 1), 4)
                    ml.append(f"v_mfma_f32_16x16x32_bf16 {d}, {w}, {x}, {d}" if t < 4 else
                              f"v_mfma_f32_16x16x32_bf16 {d}, {x}, {w}, {d}")
            return ml
        return mfmas

    g.reads = reads
    g.adv = vA + vAh + vB
    a("s_cmp_eq_u32 s34, 1")
    a("s_cbranch_scc1 P1_r1")
    g.mfmas = mk_mfmas(0)
    gen_mainloop(a, g, "P1a")
    a("s_branch P1_epi")
    a("P1_r1:")
    g.mfmas = mk_mfmas(1)
    gen_mainloop(a, g, "P1b")
    a("P1_epi:")
    RP = 24
    CSq = 36
    CSv = 34
    R4 = W[0]
    N4 = W[0] + 20
    assert X[0] == W[0] + 24
    T = 52
    a("s_lshl_b32 s36, s34, 9")
    a(f"s_add_u32 s36, s36, {L_ROW + 128}")
    a(f"v_lshlrev_b32 v4, 3, v{L15}")
    a(f"v_add_u32 v5, {L_ROW}, v4")
    a(f"v_add_u32 v4, s36, v4")
    a(f"ds_read_b64 {vr(RP+8,2)}, v5")
    a(f"v_mov_b32 v16, {L_NONCE}")
    a("ds_read_b64 v[16:17], v16")
    a(f"v_lshlrev_b32 v6, 4, v{GQ}")
    a("s_lshl_b32 s36, s35, 7")
    a(f"s_add_u32 s36, s36, {L_CS}")
    a(f"v_add_u32 v7, s36, v6")
    for c in range(2):
        a(f"ds_read_b128 {vr(CSq+8+4*c,4)}, v7 offset:{256+64*c}")
    a(f"v_lshlrev_b32 v8, 2, v{L15}")
    a(f"v_add_u32 v8, s36, v8")
    a(f"ds_read2_b32 {vr(CSv,2)}, v8 offset0:128 offset1:144")
    a(f"v_add_u32 v9, {L_RS}, v6")
    a(f"ds_read_b128 {vr(R4+16,4)}, v9")
    a(f"ds_read_b128 {vr(N4+16,4)}, v9 offset:{L_NM-L_RS}")
    for u in (3, 2, 1, 0):
        a(f"ds_read_b64 {vr(RP+2*u,2)}, v4 offset:{u*128}")
    a("s_lshl_b32 s36, s34, 8")
    a(f"v_add_u32 v9, s36, v9")
    for u in (3, 2, 1, 0):
        a(f"ds_read_b128 {vr(R4+4*u,4)}, v9 offset:{64+64*u}")
        a(f"ds_read_b128 {vr(N4+4*u,4)}, v9 offset:{64+64*u+L_NM-L_RS}")
    for c in range(2):
        a(f"ds_read_b128 {vr(CSq+4*c,4)}, v7 offset:{64*c}")
    m2, j2 = g2.mj
    a(f"s_lshl_b32 s36, s{m2}, 7")
    a("s_lshl_b32 s37, s34, 6")
    a("s_add_u32 s36, s36, s37")
    a("s_lshl_b32 s37, s35, 5")
    a("s_add_u32 s36, s36, s37")
    a(f"v_add_u32 v10, s36, v{L15}")
    a("v_lshlrev_b32 v10, 11, v10")
    a(f"v_lshl_add_u32 v10, v{GQ}, 3, v10")
    a(f"s_lshl_b32 s36, s{j2}, 7")
    a("s_add_u32 s37, s36, 32768")
    for uu in range(2):
        for t_ in range(4):
            a(f"buffer_load_dwordx2 {vr(RES+8*uu+2*t_,2)}, v10, s[8:11], s{36+uu} offen offset:{32*t_}")

    def fold_qk(d, cs, rp):
        for i in (0, 2):
            a(f"v_pk_mul_f32 {vr(T+i,2)}, {vr(cs+i,2)}, {vr(rp,2)} op_sel:[0,1] op_sel_hi:[1,1]")
        for i in (0, 2):
            a(f"v_pk_fma_f32 {vr(d+i,2)}, {vr(d+i,2)}, {vr(rp,2)}, {vr(T+i,2)} op_sel:[0,0,0] op_sel_hi:[1,0,1]")

    def fold_v(d, c, ui):
        for i in (0, 2):
            a(f"v_pk_mul_f32 {vr(T+i,2)}, {vr(N4+4*ui+i,2)}, {vr(CSv,2)} op_sel:[0,{c}] op_sel_hi:[1,{c}]")
        for i in (0, 2):
            a(f"v_pk_fma_f32 {vr(d+i,2)}, {vr(d+i,2)}, {vr(R4+4*ui+i,2)}, {vr(T+i,2)}")

    def pack(dst, d):
        a(f"v_cvt_pk_bf16_f32 v{dst}, v{d}, v{d+1}")
        a(f"v_cvt_pk_bf16_f32 v{dst+1}, v{d+2}, v{d+3}")

    ex, PV = 12, 14
    a(f"v_lshlrev_b32 v{ex}, 4, v1")
    a("s_mul_i32 s36, s35, 3072")
    a(f"s_add_u32 s36, s36, {g.exch}")
    a(f"v_add_u32 v{ex}, s36, v{ex}")
    Hp = 60
    a("s_waitcnt lgkmcnt(0)")
    a(f"v_readfirstlane_b32 s{NONCE}, v16")
    a(f"v_readfirstlane_b32 s{NONCE+1}, v17")
    a("s_cmp_eq_u32 s34, 1")
    a("s_cbranch_scc1 P1_ex1")
    for c in range(2):
        fold_qk(accr(2 + c, 3), CSq + 8 + 4 * c, RP + 6)
        fold_v(accr(4 + c, 3), c, 3)
    for c in range(2):
        pack(Hp + 2 * c, accr(2 + c, 3))
        pack(Hp + 4 + 2 * c, accr(4 + c, 3))
    a(f"ds_write_b128 v{ex}, {vr(Hp,4)}")
    a(f"ds_write_b128 v{ex}, {vr(Hp+4,4)} offset:1024")
    pair_post(a, 1, PV)
    for c in range(2):
        fold_qk(acch(c), CSq + 8 + 4 * c, RP + 8)
    a("s_branch P1_ex2")
    a("P1_ex1:")
    for c in range(2):
        fold_v(acch(c), c, 4)
    for c in range(2):
        pack(Hp + 2 * c, acch(c))
    a(f"ds_write_b128 v{ex}, {vr(Hp,4)} offset:2048")
    pair_post(a, 1, PV)
    for c in range(2):
        fold_qk(accr(2 + c, 3), CSq + 8 + 4 * c, RP + 6)
        fold_v(accr(4 + c, 3), c, 3)
    a("P1_ex2:")
    for u in range(3):
        for c in range(2):
            fold_qk(accr(2 + c, u), CSq + 8 + 4 * c, RP + 2 * u)
            fold_v(accr(4 + c, u), c, u)
    a(f"s_mov_b32 s36, {hexf(32 ** -0.5 * math.log2(math.e))}")
    a("s_mov_b32 s37, s36")
    for u in range(4):
        a(f"v_pk_mul_f32 {vr(RP+2*u,2)}, {vr(RP+2*u,2)}, s[36:37]")
    for u in range(4):
        for c in range(2):
            fold_qk(accr(c, u), CSq + 4 * c, RP + 2 * u)
    Kf, Vp, Qf = W[0], [W[0] + 20, W[0] + 30], 24
    for u in range(4):
        for c in range(2):
            pack(Kf + 4 * (u + 1) + 2 * c, accr(2 + c, u))
            pack(Vp[c] + 2 * (u + 1), accr(4 + c, u))
            pack(Qf + 4 * u + 2 * c, accr(c, u))
    a("s_cmp_eq_u32 s34, 1")
    a("s_cbranch_scc1 P1_ex3")
    for c in range(2):
        pack(Kf + 2 * c, acch(c))
    pair_wait(a, "P1a", 1, 1, PV)
    for c in range(2):
        a(f"ds_read_b64 {vr(Vp[c],2)}, v{ex} offset:{2048+8*c}")
    a("s_branch P1_ex4")
    a("P1_ex3:")
    pair_wait(a, "P1b", 1, 1, PV)
    a(f"ds_read_b128 {vr(Kf,4)}, v{ex}")
    for c in range(2):
        a(f"ds_read_b64 {vr(Vp[c],2)}, v{ex} offset:{1024+8*c}")
    a("P1_ex4:")
    t0, t1 = acc, acc + 1
    MA, MB = acc + 2, acc + 4
    a(f"v_and_b32 v{t0}, 1, v{L15}")
    a(f"v_cmp_eq_u32 s[76:77], 1, v{t0}")
    a(f"v_lshl_add_u32 v{t0}, v{GQ}, 2, v{t0}")
    a(f"v_cmp_le_u32 s[78:79], v{t0}, v{L15}")
    a(f"v_add_u32 v{t0}, 2, v{t0}")
    a(f"v_cmp_le_u32 s[80:81], v{t0}, v{L15}")
    a(f"v_mov_b32 v{t0}, 0xffff")
    a(f"v_mov_b32 v{t1}, 0xffff0000")
    a(f"v_cndmask_b32 v{t0}, v{t0}, v{t1}, s[76:77]")
    a(f"v_cndmask_b32 v{MA}, v{t0}, 0, s[78:79]")
    a(f"v_cndmask_b32 v{MA+1}, 0, v{t0}, s[78:79]")
    a(f"v_cndmask_b32 v{MB}, v{t0}, 0, s[80:81]")
    a(f"v_cndmask_b32 v{MB+1}, 0, v{t0}, s[80:81]")
    a(f"s_or_b32 s36, s{m}, s34")
    a("s_cmp_eq_u32 s36, 0")
    a("s_cselect_b64 s[82:83], s[78:79], -1")
    a("s_cselect_b64 s[84:85], s[80:81], -1")
    vo = acc + 6
    frag_lane_off(a, vo, t0)
    a(f"s_lshl_b32 s36, s{m}, 3")
    a("s_lshl_b32 s37, s34, 2")
    a("s_add_u32 s36, s36, s37")
    a("s_lshl_b32 s36, s36, 5")
    a(f"s_lshl_b32 s37, s{j}, 1")
    a("s_add_u32 s36, s36, s37")
    a("s_add_u32 s36, s36, s35")
    a("s_lshl_b32 s36, s36, 10")
    a(f"v_add_u32 v{vo}, s36, v{vo}")
    NEG = acc + 7
    a(f"v_mov_b32 v{NEG}, 0xff800000")
    Sc = acc + 8
    for u in (1, 2, 3):
        for blk in range(2):
            a(f"v_mfma_f32_16x16x32_bf16 {vr(Sc+8*u+4*blk,4)}, {vr(Kf+4*(u+blk),4)}, {vr(Qf+4*u,4)}, 0")
    a("s_waitcnt lgkmcnt(0)")
    for blk in (1, 0):
        a(f"v_mfma_f32_16x16x32_bf16 {vr(Sc+4*blk,4)}, {vr(Kf+4*blk,4)}, {vr(Qf,4)}, 0")
    VA, VB_, MX, TM = acc + 40, acc + 44, acc + 48, acc + 52
    order = (1, 2, 3, 0)
    for u in order:
        s = Sc + 8 * u
        a(f"v_cndmask_b32 v{s}, v{s}, v{s+1}, s[76:77]")
        a(f"v_cndmask_b32 v{s+4}, v{s+4}, v{s+5}, s[76:77]")
        a(f"v_cndmask_b32 v{s+2}, v{s+2}, v{s+3}, s[76:77]")
        a(f"v_cndmask_b32 v{s+6}, v{s+6}, v{s+7}, s[76:77]")
        a(f"v_cndmask_b32 v{VA+u}, v{s}, v{s+4}, s[78:79]")
        a(f"v_cndmask_b32 v{VB_+u}, v{s+2}, v{s+6}, s[80:81]")
    a(f"v_cndmask_b32 v{VA}, v{NEG}, v{VA}, s[82:83]")
    a(f"v_cndmask_b32 v{VB_}, v{NEG}, v{VB_}, s[84:85]")
    for u in order:
        a(f"v_max_f32 v{MX+u}, v{VA+u}, v{VB_+u}")
    xrow_reduce_multi(a, "v_max_f32", [MX + u for u in order], [TM + u for u in order])
    for u in order:
        a(f"v_sub_f32 v{VA+u}, v{VA+u}, v{MX+u}")
        a(f"v_sub_f32 v{VB_+u}, v{VB_+u}, v{MX+u}")
    for u in order:
        a(f"v_exp_f32 v{VA+u}, v{VA+u}")
        a(f"v_exp_f32 v{VB_+u}, v{VB_+u}")
    for u in order:
        a(f"v_add_f32 v{MX+u}, v{VA+u}, v{VB_+u}")
    xrow_reduce_multi(a, "v_add_f32", [MX + u for u in order], [TM + u for u in order])
    for u in order:
        a(f"v_rcp_f32 v{MX+u}, v{MX+u}")
    for u in order:
        a(f"v_mul_f32 v{VA+u}, v{VA+u}, v{MX+u}")
        a(f"v_mul_f32 v{VB_+u}, v{VB_+u}, v{MX+u}")
    for u in order:
        a(f"v_cvt_pk_bf16_f32 v{VA+u}, v{VA+u}, v{VA+u}")
        a(f"v_cvt_pk_bf16_f32 v{VB_+u}, v{VB_+u}, v{VB_+u}")
    Pp, Om = acc + 56, acc + 72
    for u in order:
        a(f"v_and_b32 v{Pp+4*u}, v{VA+u}, v{MA}")
        a(f"v_and_b32 v{Pp+4*u+1}, v{VB_+u}, v{MB}")
        a(f"v_and_b32 v{Pp+4*u+2}, v{VA+u}, v{MA+1}")
        a(f"v_and_b32 v{Pp+4*u+3}, v{VB_+u}, v{MB+1}")
    for u in order:
        for c in range(2):
            a(f"v_mfma_f32_16x16x32_bf16 {vr(Om+8*u+4*c,4)}, {vr(Vp[c]+2*u,4)}, {vr(Pp+4*u,4)}, 0")
    for u in range(4):
        a(f"s_mov_b32 s{76+u}, {u*32768}")
    for u in order:
        o = Om + 8 * u
        p = Sc + 4 * u
        for i in range(4):
            a(f"v_cvt_pk_bf16_f32 v{p+i}, v{o+2*i}, v{o+2*i+1}")
    for u in order:
        p = Sc + 4 * u
        a(f"v_permlane16_swap_b32 v{p}, v{p+2}")
        a(f"v_permlane16_swap_b32 v{p+1}, v{p+3}")
        a(f"buffer_store_dwordx4 {vr(p,4)}, v{vo}, s[20:23], s{76+u} offen sc1")
    stamp(a, "c", "p1_stored")
    finish_phase(a, 1, g, acc + 40)


def gen_p24(a, which):
    g = PH[which]
    m, j = g.mj
    k2 = which == 2
    P = f"P{which}"
    V = Regs("v", 4, RES)
    if k2:
        srd(a, 16, PWS, WS_H, S * D * 2)
        srd(a, 24, PWS, WS_ST, 16 * S * 8)
    else:
        srd(a, 16, POUT, 0, S * D * 2)
    a("s_and_b32 s34, s6, 1")
    a("s_lshr_b32 s35, s6, 1")
    vA = [V.alloc(), V.alloc()]
    a("s_lshl_b32 s36, s34, 14")
    a("s_lshl_b32 s37, s35, 11")
    a("s_add_u32 s36, s36, s37")
    a(f"s_add_u32 s36, s36, {g.slot0*SLOT}")
    a(f"v_lshlrev_b32 v{vA[0]}, 4, v1")
    a(f"v_add_u32 v{vA[0]}, s36, v{vA[0]}")
    a("s_lshl_b32 s37, s35, 13")
    a(f"s_sub_u32 s38, 8192, s37")
    a(f"v_add_u32 v{vA[1]}, s38, v{vA[0]}")
    a(f"v_add_u32 v{vA[0]}, s37, v{vA[0]}")
    a("s_lshl_b32 s36, s35, 13")
    a(f"s_add_u32 s36, s36, {g.Boff + g.slot0*SLOT}")
    vB = b_addr128(a, V, [0, 1, 2, 3], 36)
    acc = V.alloc(64, 4)
    X = [V.alloc(16, 4) for _ in range(2)]
    W = [V.alloc(16, 4) for _ in range(2)]
    accr = lambda t, u: acc + (t * 4 + u) * 4
    vo, t0, vrow, ex, exr, PV = V.alloc(), V.alloc(), V.alloc(), V.alloc(), V.alloc(), V.alloc(2)
    a(f"s_lshl_b32 s36, s{m}, 7")
    a("s_lshl_b32 s37, s34, 6")
    a("s_add_u32 s36, s36, s37")
    a("s_lshl_b32 s37, s35, 5")
    a("s_add_u32 s36, s36, s37")
    if k2:
        a(f"v_add_u32 v{vrow}, s36, v{L15}")
        a(f"v_lshlrev_b32 v{vrow}, 3, v{vrow}")
        a(f"v_cmp_eq_u32 vcc, 0, v{GQ}")
        a(f"v_mov_b32 v{t0}, {BIG}")
        a(f"v_cndmask_b32 v{vrow}, v{t0}, v{vrow}, vcc")
        frag_lane_off(a, vo, t0)
        a("s_lshl_b32 s36, s36, 11")
        a(f"s_lshl_b32 s37, s{j}, 11")
        a("s_add_u32 s36, s36, s37")
        a(f"v_add_u32 v{vo}, s36, v{vo}")
    else:
        a(f"v_add_u32 v{vo}, s36, v{L15}")
        a(f"v_lshlrev_b32 v{vo}, 11, v{vo}")
        a(f"v_and_b32 v{t0}, 1, v{GQ}")
        a(f"v_lshl_add_u32 v{vo}, v{t0}, 5, v{vo}")
        a(f"v_lshrrev_b32 v{t0}, 1, v{GQ}")
        a(f"v_lshl_add_u32 v{vo}, v{t0}, 4, v{vo}")
        a(f"s_lshl_b32 s36, s{j}, 7")
        a(f"v_add_u32 v{vo}, s36, v{vo}")
    a("s_mov_b32 s45, 32768")
    a(f"v_lshlrev_b32 v{ex}, 4, v1")
    a("s_lshl_b32 s36, s6, 13")
    a(f"v_add_u32 v{ex}, s36, v{ex}")
    a(f"v_xor_b32 v{exr}, 16384, v{ex}")
    a(f"v_add_u32 v{ex}, {g.exch}, v{ex}")
    a(f"v_add_u32 v{exr}, {g.exch}, v{exr}")
    for t in range(4):
        for uu in range(2):
            d = accr(t, uu)
            for i in range(2):
                a(f"v_lshlrev_b32 v{d+2*i}, 16, v{RES+8*uu+2*t+i}")
                a(f"v_and_b32 v{d+2*i+1}, 0xffff0000, v{RES+8*uu+2*t+i}")
        if not k2:
            z = accr(t, 2)
            for i in range(2):
                a(f"v_lshlrev_b32 v{z+2*i}, 16, v{BIA+2*t+i}")
                a(f"v_and_b32 v{z+2*i+1}, 0xffff0000, v{BIA+2*t+i}")
            for uu in range(2):
                for i in (0, 2):
                    a(f"v_pk_add_f32 {vr(accr(t,uu)+i,2)}, {vr(accr(t,uu)+i,2)}, {vr(z+i,2)}")
        zero_acc(a, accr(t, 2), 8)

    def reads(h, b):
        r = []
        for u in range(4):
            r.append(f"ds_read_b128 {vr(X[b]+4*u,4)}, v{vA[u>>1]} offset:{(u&1)*4096+h*1024}")
        for t in range(4):
            for jj in range(2):
                r.append(f"ds_read_b64_tr_b16 {vr(W[b]+4*t+2*jj,2)}, v{vB[t]} offset:{jj*512+h*4096}")
        return r

    def mfmas(b):
        ml = []
        for t in range(4):
            for u in ((2, 3, 0, 1) if t % 2 == 0 else (1, 0, 3, 2)):
                w, x, d = vr(W[b] + 4 * t, 4), vr(X[b] + 4 * u, 4), vr(accr(t, u), 4)
                ml.append(f"v_mfma_f32_16x16x32_bf16 {d}, {w}, {x}, {d}")
        return ml

    g.reads, g.mfmas = reads, mfmas
    g.adv = vA + vB
    gen_mainloop(a, g, P)
    for t in range(4):
        for uu in range(2):
            a(f"ds_write_b128 v{ex}, {vr(accr(t, 2+uu),4)} offset:{(t*2+uu)*1024}")
    pair_post(a, which, PV)
    pair_wait(a, P, which, 2, PV)
    Rv = X[0]
    assert X[1] == X[0] + 16
    lst = [(t, uu) for uu in range(2) for t in range(4)]
    for (t, uu) in lst:
        a(f"ds_read_b128 {vr(Rv+(t*2+uu)*4,4)}, v{exr} offset:{(t*2+uu)*1024}")
    ob = W[0]
    for n_, (t, uu) in enumerate(lst):
        a(f"s_waitcnt lgkmcnt({7-n_})")
        d = accr(t, uu)
        for i in (0, 2):
            a(f"v_pk_add_f32 {vr(d+i,2)}, {vr(d+i,2)}, {vr(Rv+(t*2+uu)*4+i,2)}")
        o = ob + 8 * uu + 2 * t
        a(f"v_cvt_pk_bf16_f32 v{o}, v{d}, v{d+1}")
        a(f"v_cvt_pk_bf16_f32 v{o+1}, v{d+2}, v{d+3}")
        if t & 1:
            o -= 2
            a(f"v_permlane16_swap_b32 v{o}, v{o+2}")
            a(f"v_permlane16_swap_b32 v{o+1}, v{o+3}")
            so = "s45" if uu else "0"
            if k2:
                a(f"buffer_store_dwordx4 {vr(o,4)}, v{vo}, s[16:19], {so} offen offset:{1024*(t>>1)} sc1")
            else:
                a(f"buffer_store_dwordx4 {vr(o,4)}, v{vo}, s[16:19], {so} offen offset:{64*(t>>1)} {['', 'sc1', 'nt', 'sc0 sc1', 'sc1 nt'][OPT['ost']]}")
    if k2:
        SM = [Rv, Rv + 2]
        PK = [Rv + 8, Rv + 10]
        PQ = [Rv + 12, Rv + 14]
        for uu in range(2):
            a(f"v_pk_add_f32 {vr(PK[uu],2)}, {vr(accr(0,uu),2)}, {vr(accr(0,uu)+2,2)}")
            a(f"v_pk_mul_f32 {vr(PQ[uu],2)}, {vr(accr(0,uu),2)}, {vr(accr(0,uu),2)}")
        for t in range(4):
            for i in (0, 2):
                for uu in range(2):
                    d = vr(accr(t, uu) + i, 2)
                    if t:
                        a(f"v_pk_add_f32 {vr(PK[uu],2)}, {vr(PK[uu],2)}, {d}")
                    if t or i:
                        a(f"v_pk_fma_f32 {vr(PQ[uu],2)}, {d}, {d}, {vr(PQ[uu],2)}")
        for uu in range(2):
            a(f"v_add_f32 v{SM[uu]}, v{PK[uu]}, v{PK[uu]+1}")
            a(f"v_add_f32 v{SM[uu]+1}, v{PQ[uu]}, v{PQ[uu]+1}")
        xrow_reduce_multi(a, "v_add_f32", [Rv, Rv + 1, Rv + 2, Rv + 3], [Rv + 4, Rv + 5, Rv + 6, Rv + 7])
        a(f"s_lshl_b32 s36, s{j}, 14")
        for uu in range(2):
            a(f"buffer_store_dwordx2 {vr(SM[uu],2)}, v{vrow}, s[24:27], s36 offen offset:{uu*128} sc1")
    stamp(a, "c", f"p{which}_stored")
    if k2:
        finish_phase(a, 2, g, X[1])


def gen_p4(a):
    g = PH[4]
    m, J = g.mj
    V = Regs("v", 4, RES)
    srd(a, 16, POUT, 0, S * D * 2)
    srd(a, 20, PWS, WS_XB, 256 * 4 * 8192)
    a("s_and_b32 s34, s6, 1")
    a("s_lshr_b32 s35, s6, 1")
    vA = [V.alloc(), V.alloc()]
    a("s_lshl_b32 s36, s34, 13")
    a(f"s_add_u32 s36, s36, {g.slot0*SLOT}")
    a(f"v_lshlrev_b32 v{vA[0]}, 4, v1")
    a(f"v_add_u32 v{vA[0]}, s36, v{vA[0]}")
    a("s_lshl_b32 s37, s5, 12")
    a("s_sub_u32 s38, 4096, s37")
    a(f"v_add_u32 v{vA[1]}, s38, v{vA[0]}")
    a(f"v_add_u32 v{vA[0]}, s37, v{vA[0]}")
    a("s_lshl_b32 s36, s35, 13")
    a(f"s_add_u32 s36, s36, {g.Boff + g.slot0*SLOT}")
    vB = b_addr128(a, V, [0, 1, 2, 3], 36)
    acc = V.alloc(64, 4)
    X = [V.alloc(16, 4) for _ in range(2)]
    W = [V.alloc(16, 4) for _ in range(2)]
    accr = lambda t, u: acc + (t * 4 + u) * 4
    vo, t0, xl = V.alloc(), V.alloc(), V.alloc()
    FA = V.alloc(6, 2)
    a(f"s_lshl_b32 s36, s{m}, 7")
    a("s_lshl_b32 s37, s34, 6")
    a("s_add_u32 s36, s36, s37")
    a("s_lshl_b32 s37, s5, 5")
    a("s_add_u32 s36, s36, s37")
    a(f"v_add_u32 v{vo}, s36, v{L15}")
    a(f"v_lshlrev_b32 v{vo}, 11, v{vo}")
    a(f"v_and_b32 v{t0}, 1, v{GQ}")
    a(f"v_lshl_add_u32 v{vo}, v{t0}, 5, v{vo}")
    a(f"v_lshrrev_b32 v{t0}, 1, v{GQ}")
    a(f"v_lshl_add_u32 v{vo}, v{t0}, 4, v{vo}")
    a(f"s_lshl_b32 s36, s{J}, 8")
    a("s_lshl_b32 s37, s35, 7")
    a("s_add_u32 s36, s36, s37")
    a(f"v_add_u32 v{vo}, s36, v{vo}")
    a("s_mov_b32 s45, 32768")
    a(f"v_lshlrev_b32 v{xl}, 4, v1")
    a("s_lshl_b32 s36, s2, 2")
    a("s_add_u32 s36, s36, s6")
    a("s_xor_b32 s37, s36, 8")
    a("s_lshl_b32 s76, s36, 13")
    a("s_add_u32 s77, s76, 4096")
    a("s_lshl_b32 s78, s37, 13")
    a("s_add_u32 s79, s78, 4096")
    a("s_lshl_b32 s36, s36, 7")
    a("s_lshl_b32 s37, s37, 7")
    a(f"s_add_u32 s36, s36, {WS_XF}")
    a(f"s_add_u32 s37, s37, {WS_XF}")
    a(f"v_mov_b32 v{FA}, s36")
    a(f"v_mov_b32 v{FA+1}, s37")
    a(f"v_mov_b32 v{FA+2}, s{NONCE}")
    a(f"v_mov_b32 v{FA+3}, s{NONCE+1}")
    for t in range(4):
        z = accr(t, 2)
        for i in range(2):
            a(f"v_lshlrev_b32 v{z+2*i}, 16, v{BIA+2*t+i}")
            a(f"v_and_b32 v{z+2*i+1}, 0xffff0000, v{BIA+2*t+i}")
        for uu in range(2):
            d = accr(t, uu)
            for i in range(2):
                a(f"v_lshlrev_b32 v{d+2*i}, 16, v{RES+8*uu+2*t+i}")
                a(f"v_and_b32 v{d+2*i+1}, 0xffff0000, v{RES+8*uu+2*t+i}")
        for uu in range(2):
            for i in (0, 2):
                a(f"v_pk_add_f32 {vr(accr(t,uu)+i,2)}, {vr(accr(t,uu)+i,2)}, {vr(z+i,2)}")
        zero_acc(a, accr(t, 2), 8)

    def reads(h, b):
        r = []
        for u in range(4):
            r.append(f"ds_read_b128 {vr(X[b]+4*u,4)}, v{vA[u>>1]} offset:{(u&1)*2048+h*1024}")
        for t in range(4):
            for jj in range(2):
                r.append(f"ds_read_b64_tr_b16 {vr(W[b]+4*t+2*jj,2)}, v{vB[t]} offset:{jj*512+h*4096}")
        return r

    def mfmas(b):
        if b == 0:
            order = [(t, u) for t in range(4) for u in ((2, 3, 0, 1) if t % 2 == 0 else (1, 0, 3, 2))]
        else:
            order = [(t, u) for t in range(4) for u in ((2, 3) if t % 2 == 0 else (3, 2))]
            order += [(t, u) for t in (3, 2, 1, 0) for u in ((0, 1) if t % 2 else (1, 0))]
        return [f"v_mfma_f32_16x16x32_bf16 {vr(accr(t,u),4)}, {vr(W[b]+4*t,4)}, {vr(X[b]+4*u,4)}, {vr(accr(t,u),4)}" for (t, u) in order]

    g.reads, g.mfmas = reads, mfmas
    g.adv = vA + vB
    gen_mainloop(a, g, "P4")
    if OPT["tagx"]:
        lst = [(t, uu) for uu in range(2) for t in range(4)]
        SB_, RB = X[0], W[0]
        slot = lambda k: 4 * (k // 3) + k % 3
        for gi in range(6):
            a(f"v_mov_b32 v{SB_+4*gi+3}, s{NONCE}")
        done = 0
        for n_, (t, uu) in enumerate(lst):
            d = accr(t, 2 + uu)
            for i in range(2):
                a(f"v_cvt_pk_bf16_f32 v{SB_+slot(2*n_+i)}, v{d+2*i}, v{d+2*i+1}")
            while done < 6 and (3 * done + 2 <= 2 * n_ + 1 or n_ == 7):
                a(f"buffer_store_dwordx4 {vr(SB_+4*done,4)}, v{xl}, s[20:23], s{76+(done>>2)} offen offset:{(done&3)*1024} sc1")
                done += 1
        stamp(a, "c", "p4_sent")
        a("s_mov_b32 s3, 0x40000")
        if OPT["tagx"] == 2:
            a("s_mov_b32 exec_lo, 0")
            a("s_mov_b32 exec_hi, 0x80000000")
            a("P4_hl:")
            a(f"buffer_load_dword v{RB}, v{xl}, s[20:23], s79 offen offset:{1024+12} sc1")
            a("s_sub_u32 s3, s3, 1")
            a("s_waitcnt vmcnt(0)")
            a(f"v_cmp_eq_u32 vcc, s{NONCE}, v{RB}")
            a("s_cmp_eq_u32 s3, 0")
            a("s_cselect_b32 s3, 1, s3")
            a("s_cbranch_scc1 P4_hd")
            a("s_cmp_eq_u32 vcc_hi, 0")
            a("s_cbranch_scc1 P4_hl")
            a("P4_hd:")
            stamp(a, "c", "p4_hint")
            a("s_mov_b64 exec, -1")
        a("P4_pl:")
        for gi in range(6):
            a(f"buffer_load_dwordx4 {vr(RB+4*gi,4)}, v{xl}, s[20:23], s{78+(gi>>2)} offen offset:{(gi&3)*1024} sc1")
        a("s_sub_u32 s3, s3, 1")
        a("s_mov_b64 s[36:37], -1")
        for gi in range(6):
            a(f"s_waitcnt vmcnt({5-gi})")
            a(f"v_cmp_eq_u32 vcc, s{NONCE}, v{RB+4*gi+3}")
            a("s_and_b64 s[36:37], s[36:37], vcc")
        a("s_cmp_eq_u32 s3, 0")
        a("s_cbranch_scc1 P4_pd")
        a("s_cmp_eq_u64 s[36:37], -1")
        a("s_cbranch_scc0 P4_pl")
        a("P4_pd:")
        stamp(a, "c", "p4_got")
        if OPT["stamp"]:
            a("v_writelane_b32 v254, s3, 40")
        ob, Z = X[0], X[1] + 8
        for n_, (t, uu) in enumerate(lst):
            d = accr(t, uu)
            z = Z + 4 * (n_ & 1)
            for i in range(2):
                a(f"v_lshlrev_b32 v{z+2*i}, 16, v{RB+slot(2*n_+i)}")
                a(f"v_and_b32 v{z+2*i+1}, 0xffff0000, v{RB+slot(2*n_+i)}")
            for i in (0, 2):
                a(f"v_pk_add_f32 {vr(d+i,2)}, {vr(d+i,2)}, {vr(z+i,2)}")
            o = ob + 8 * uu + 2 * t
            a(f"v_cvt_pk_bf16_f32 v{o}, v{d}, v{d+1}")
            a(f"v_cvt_pk_bf16_f32 v{o+1}, v{d+2}, v{d+3}")
            if t & 1:
                o -= 2
                a(f"v_permlane16_swap_b32 v{o}, v{o+2}")
                a(f"v_permlane16_swap_b32 v{o+1}, v{o+3}")
                so = "s45" if uu else "0"
                a(f"buffer_store_dwordx4 {vr(o,4)}, v{vo}, s[16:19], {so} offen offset:{64*(t>>1)} {['', 'sc1', 'nt', 'sc0 sc1', 'sc1 nt'][OPT['ost']]}")
        stamp(a, "c", "p4_stored")
        return
    lst = [(t, uu) for uu in range(2) for t in range(4)]
    for n_, (t, uu) in enumerate(lst):
        a(f"buffer_store_dwordx4 {vr(accr(t,2+uu),4)}, v{xl}, s[20:23], s{76+uu} offen offset:{t*1024} sc1")
    a("s_mov_b32 s3, 0x40000")
    a("s_mov_b64 exec, 1")
    a("s_waitcnt vmcnt(0)")
    a(f"global_store_dwordx2 v{FA}, {vr(FA+2,2)}, s[{PWS}:{PWS+1}] sc1")
    stamp(a, "c", "p4_sent")
    a("P4_pl:")
    a(f"global_load_dwordx2 {vr(FA+4,2)}, v{FA+1}, s[{PWS}:{PWS+1}] sc1")
    a("s_sub_u32 s3, s3, 1")
    a("s_waitcnt vmcnt(0)")
    a(f"v_cmp_eq_u64 vcc, {vr(FA+2,2)}, {vr(FA+4,2)}")
    a("s_cmp_eq_u32 s3, 0")
    a("s_cbranch_scc1 P4_pd")
    a("s_cmp_eq_u32 vcc_lo, 0")
    a("s_cbranch_scc1 P4_pl")
    a("P4_pd:")
    a("s_mov_b64 exec, -1")
    Rv = X[0]
    assert X[1] == X[0] + 16
    for n_, (t, uu) in enumerate(lst):
        a(f"buffer_load_dwordx4 {vr(Rv+4*n_,4)}, v{xl}, s[20:23], s{78+uu} offen offset:{t*1024} sc1")
    ob = W[0]
    for n_, (t, uu) in enumerate(lst):
        a(f"s_waitcnt vmcnt({7 - n_ + (n_ >> 1)})")
        d = accr(t, uu)
        for i in (0, 2):
            a(f"v_pk_add_f32 {vr(d+i,2)}, {vr(d+i,2)}, {vr(Rv+4*n_+i,2)}")
        o = ob + 8 * uu + 2 * t
        a(f"v_cvt_pk_bf16_f32 v{o}, v{d}, v{d+1}")
        a(f"v_cvt_pk_bf16_f32 v{o+1}, v{d+2}, v{d+3}")
        if t & 1:
            o -= 2
            a(f"v_permlane16_swap_b32 v{o}, v{o+2}")
            a(f"v_permlane16_swap_b32 v{o+1}, v{o+3}")
            so = "s45" if uu else "0"
            a(f"buffer_store_dwordx4 {vr(o,4)}, v{vo}, s[16:19], {so} offen offset:{64*(t>>1)} {['', 'sc1', 'nt', 'sc0 sc1', 'sc1 nt'][OPT['ost']]}")
    stamp(a, "c", "p4_stored")


def gen_p3(a):
    g = PH[3]
    m, j = g.mj
    g4 = PH[4]
    V = Regs("v", 4, RES)
    srd(a, 16, PWS, WS_H1, S * F * 2)
    srd(a, 20, PB2, 0, D * 2)
    acc = V.alloc(112, 4)
    X = [V.alloc(16, 4) for _ in range(2)]
    W = [V.alloc(28, 4) for _ in range(2)]
    accr = lambda t, u: acc + (t * 4 + u) * 4
    a("s_and_b32 s34, s6, 1")
    a("s_lshr_b32 s35, s6, 1")
    vA = V.alloc()
    a("s_lshl_b32 s36, s34, 13")
    a(f"s_add_u32 s36, s36, {g.slot0*SLOT}")
    a(f"v_lshlrev_b32 v{vA}, 4, v1")
    a(f"v_add_u32 v{vA}, s36, v{vA}")
    t = X[0]
    base, f = X[0] + 1, X[0] + 2
    vB = [V.alloc() for _ in range(7)]
    a(f"v_lshrrev_b32 v{t}, 2, v{L15}")
    a(f"v_and_b32 v{f}, 1, v{GQ}")
    a(f"v_lshl_or_b32 v{f}, v{f}, 2, v{t}")
    a(f"v_lshl_add_u32 v{t}, v{GQ}, 3, v{t}")
    a(f"v_lshlrev_b32 v{base}, 9, v{t}")
    a(f"v_and_b32 v{t}, 3, v{L15}")
    a(f"v_lshl_add_u32 v{base}, v{t}, 3, v{base}")
    a(f"v_add_u32 v{base}, {g.Boff + g.slot0*SLOT}, v{base}")
    a(f"s_and_b32 s36, s{j}, 1")
    a("s_lshl_b32 s36, s36, 1")
    a("s_add_u32 s37, s36, s35")
    a("s_add_u32 s37, s37, 12")
    a("s_mul_i32 s38, s35, 6")
    a("s_add_u32 s36, s36, s38")
    for t_ in range(7):
        a(f"v_xor_b32 v{t}, s{36 if t_ < 6 else 37}, v{f}")
        a(f"v_lshl_add_u32 v{vB[t_]}, v{t}, 5, v{base}")
        if t_ < 5:
            a("s_add_u32 s36, s36, 1")
    RP, CSr, B1r = X[0], W[0], W[1]
    e0, vo, ex, KK, tq = 240, 244, 246, 248, X[0] + 3
    a("s_lshl_b32 s36, s34, 9")
    a(f"s_add_u32 s36, s36, {L_ROW}")
    a(f"v_lshlrev_b32 v{e0}, 3, v{L15}")
    a(f"v_add_u32 v{e0}, s36, v{e0}")
    a(f"v_lshlrev_b32 v{e0+1}, 4, v{GQ}")
    a("s_lshl_b32 s36, s35, 6")
    a(f"s_add_u32 s36, s36, {L_CS + 768}")
    a(f"v_add_u32 v{e0+2}, s36, v{e0+1}")
    a("s_mul_i32 s36, s35, 384")
    a(f"s_add_u32 s36, s36, {L_CS}")
    a(f"v_add_u32 v{e0+1}, s36, v{e0+1}")
    a(f"v_lshlrev_b32 v{e0+3}, 3, v{GQ}")
    a(f"s_lshl_b32 s82, s{g4.mj[1]}, 8")
    a("s_lshl_b32 s36, s35, 7")
    a("s_add_u32 s82, s82, s36")
    srd(a, 24, PWS, WS_H, S * D * 2)
    hv = 250
    a(f"v_lshrrev_b32 v{hv}, 1, v{GQ}")
    a(f"v_lshlrev_b32 v{hv}, 8, v{hv}")
    a(f"v_lshl_add_u32 v{hv}, v{L15}, 4, v{hv}")
    a(f"v_and_b32 v{tq}, 1, v{GQ}")
    a(f"v_lshl_add_u32 v{hv}, v{tq}, 3, v{hv}")
    a(f"s_lshl_b32 s36, s{g4.mj[0]}, 3")
    a("s_lshl_b32 s37, s34, 2")
    a("s_add_u32 s36, s36, s37")
    a("s_lshl_b32 s37, s5, 1")
    a("s_add_u32 s36, s36, s37")
    a("s_lshl_b32 s36, s36, 5")
    a(f"s_lshl_b32 s37, s{g4.mj[1]}, 2")
    a("s_add_u32 s36, s36, s37")
    a("s_lshl_b32 s37, s35, 1")
    a("s_add_u32 s36, s36, s37")
    a("s_lshl_b32 s83, s36, 10")
    a("s_add_u32 s84, s83, 32768")
    assert g.mj[0] == g4.mj[0]
    frag_lane_off(a, vo, tq)
    a(f"s_lshl_b32 s36, s{m}, 3")
    a("s_lshl_b32 s37, s34, 2")
    a("s_add_u32 s36, s36, s37")
    a("s_mul_i32 s36, s36, 112")
    a(f"s_mul_i32 s37, s{j}, 7")
    a("s_add_u32 s36, s36, s37")
    a("s_lshl_b32 s36, s36, 10")
    a(f"v_add_u32 v{vo}, s36, v{vo}")
    a("s_mul_i32 s36, s35, 3072")
    for u in range(4):
        a(f"s_add_u32 s{76+u}, s36, {u*112*1024}")
    a(f"s_mul_i32 s36, s35, {2*112*1024}")
    a("s_add_u32 s80, s36, 6144")
    a(f"s_add_u32 s81, s80, {112*1024}")
    a(f"v_lshlrev_b32 v{ex}, 4, v1")
    a("s_lshl_b32 s36, s34, 12")
    a(f"s_add_u32 s36, s36, {g.exch}")
    a(f"v_add_u32 v{ex}, s36, v{ex}")
    a("s_lshl_b32 s36, s35, 3")
    a(f"v_add_u32 v{ex+1}, s36, v{ex}")
    a("s_lshl_b32 s36, s35, 11")
    a(f"v_add_u32 v{ex}, s36, v{ex}")
    k1 = -2.0 * math.sqrt(2.0 / math.pi) * math.log2(math.e)
    a(f"v_mov_b32 v{KK}, {hexf(k1*0.044715)}")
    a(f"v_mov_b32 v{KK+1}, {hexf(k1)}")
    zero_acc(a, acc, 112)

    def reads(h, b):
        r = []
        for u in range(4):
            r.append(f"ds_read_b128 {vr(X[b]+4*u,4)}, v{vA} offset:{u*2048+h*1024}")
        for t_ in range(7):
            for jj in range(2):
                r.append(f"ds_read_b64_tr_b16 {vr(W[b]+4*t_+2*jj,2)}, v{vB[t_]} offset:{jj*2048+h*16384}")
        return r

    def mfmas(b):
        ml = []
        for t_ in range(7):
            for u in (range(4) if t_ % 2 == 0 else (3, 2, 1, 0)):
                w, x, d = vr(W[b] + 4 * t_, 4), vr(X[b] + 4 * u, 4), vr(accr(t_, u), 4)
                ml.append(f"v_mfma_f32_16x16x32_bf16 {d}, {w}, {x}, {d}")
        return ml

    g.reads, g.mfmas = reads, mfmas
    g.adv = [vA] + vB
    gen_mainloop(a, g, "P3")
    for u in range(4):
        a(f"ds_read_b64 {vr(RP+2*u,2)}, v{e0} offset:{u*128}")
    a(f"ds_read_b128 {vr(CSr+24,4)}, v{e0+2}")
    a(f"ds_read_b128 {vr(B1r+24,4)}, v{e0+2} offset:1024")
    for t_ in range(6):
        a(f"ds_read_b128 {vr(CSr+4*t_,4)}, v{e0+1} offset:{t_*64}")
        a(f"ds_read_b128 {vr(B1r+4*t_,4)}, v{e0+1} offset:{1024+t_*64}")
    for t_ in range(4):
        a(f"buffer_load_dwordx2 {vr(BIA+2*t_,2)}, v{e0+3}, s[20:23], s82 offen offset:{32*t_}")
    for uu in range(2):
        for t_ in range(4):
            a(f"buffer_load_dwordx2 {vr(RES+8*uu+2*t_,2)}, v{hv}, s[24:27], s{83+uu} offen offset:{(t_>>1)*1024+(t_&1)*512} sc1")
    T, PV = X[1], X[0] + 8
    a("s_waitcnt lgkmcnt(12)")

    def gelu2(tiles, o):
        ch = [(accr(t_, u) + i, T + 4 * k + i, t_, u, i) for k, (t_, u) in enumerate(tiles) for i in (0, 2)]
        for (d, tt, t_, u, i) in ch:
            a(f"v_pk_fma_f32 {vr(tt,2)}, {vr(CSr+4*t_+i,2)}, {vr(RP+2*u,2)}, {vr(B1r+4*t_+i,2)} op_sel:[0,1,0] op_sel_hi:[1,1,1]")
        for (d, tt, t_, u, i) in ch:
            a(f"v_pk_fma_f32 {vr(d,2)}, {vr(d,2)}, {vr(RP+2*u,2)}, {vr(tt,2)} op_sel:[0,0,0] op_sel_hi:[1,0,1]")
        for (d, tt, t_, u, i) in ch:
            a(f"v_pk_mul_f32 {vr(tt,2)}, {vr(d,2)}, {vr(d,2)}")
        for (d, tt, t_, u, i) in ch:
            a(f"v_pk_fma_f32 {vr(tt,2)}, {vr(tt,2)}, {vr(KK,2)}, {vr(KK,2)} op_sel:[0,0,1] op_sel_hi:[1,0,1]")
        for (d, tt, t_, u, i) in ch:
            a(f"v_pk_mul_f32 {vr(tt,2)}, {vr(tt,2)}, {vr(d,2)}")
        for i in range(8):
            a(f"v_exp_f32 v{T+i}, v{T+i}")
        for (d, tt, t_, u, i) in ch:
            a(f"v_pk_add_f32 {vr(tt,2)}, {vr(tt,2)}, 1.0 op_sel_hi:[1,0]")
        for i in range(8):
            a(f"v_rcp_f32 v{T+i}, v{T+i}")
        for (d, tt, t_, u, i) in ch:
            a(f"v_pk_mul_f32 {vr(d,2)}, {vr(d,2)}, {vr(tt,2)}")
        for k, (d, tt, t_, u, i) in enumerate(ch):
            a(f"v_cvt_pk_bf16_f32 v{o+k}, v{d}, v{d+1}")

    obs = [X[0] + 12, X[1] + 12]
    for up in range(2):
        gelu2([(6, 2 * up), (6, 2 * up + 1)], obs[up])
        for k in range(2):
            a(f"ds_write_b64 v{ex+1}, {vr(obs[up]+2*k,2)} offset:{(2*up+k)*1024}")
    pair_post(a, 3, PV)
    pend = None

    def flush():
        o, so, off = pend
        a(f"v_permlane16_swap_b32 v{o}, v{o+2}")
        a(f"v_permlane16_swap_b32 v{o+1}, v{o+3}")
        a(f"buffer_store_dwordx4 {vr(o,4)}, v{vo}, s[16:19], s{so} offen offset:{off} sc1")

    n_ = 0
    for u in range(4):
        for p in range(3):
            o = obs[n_ & 1]
            n_ += 1
            gelu2([(2 * p, u), (2 * p + 1, u)], o)
            pend = (o, 76 + u, 1024 * p)
            flush()
        if u == 0:
            pair_wait(a, "P3", 3, 2, PV)
            for uu in range(2):
                a(f"ds_read_b128 {vr(accr(6,uu),4)}, v{ex} offset:{uu*1024}")
        if u == 1:
            a("s_waitcnt lgkmcnt(0)")
            for uu in range(2):
                pend = (accr(6, uu), 80 + uu, 0)
                flush()
    stamp(a, "c", "p3_stored")
    finish_phase(a, 3, g, acc)


def main():
    out = sys.argv[1]
    a = Asm()
    name = NAME + "_kernel"
    a.raw(f".globl {name}\n.p2align 8\n.type {name},@function\n{name}:")
    if OPT["early"]:
        a("s_memrealtime s[98:99]")
    a("s_cmp_ge_u32 s2, 256\ns_cbranch_scc1 KEND")
    a("s_load_dwordx16 s[48:63], s[0:1], 0")
    a("s_load_dwordx4 s[64:67], s[0:1], 64")
    a("s_load_dwordx2 s[68:69], s[0:1], 80")
    a("v_lshrrev_b32 v1, 6, v0")
    a("s_and_b32 s3, s2, 7")
    a("s_lshr_b32 s7, s2, 3")
    a("v_readfirstlane_b32 s6, v1")
    a("s_and_b32 s70, s3, 1")
    a("s_lshl_b32 s70, s70, 3")
    a("s_and_b32 s4, s7, 7")
    a("s_add_u32 s70, s70, s4")
    a("s_lshr_b32 s71, s3, 1")
    a("s_lshr_b32 s4, s7, 3")
    a("s_lshl_b32 s71, s71, 2")
    a("s_add_u32 s71, s71, s4")
    a("s_and_b32 s72, s7, 15")
    a("s_lshl_b32 s73, s3, 1")
    a("s_lshr_b32 s4, s7, 4")
    a("s_add_u32 s73, s73, s4")
    a("s_lshr_b32 s4, s3, 2")
    a("s_lshl_b32 s4, s4, 2")
    a("s_lshr_b32 s5, s7, 3")
    a("s_add_u32 s4, s4, s5")
    a("s_bfe_u32 s5, s3, 0x10001")
    a("v_and_b32 v1, 63, v0")
    a(f"v_and_b32 v{L15}, 15, v0")
    a(f"v_lshrrev_b32 v{GQ}, 4, v1")
    a("s_cmp_ge_u32 s6, 4")
    a("s_cbranch_scc1 LOADER")
    gen_p0(a)
    gen_p0t(a)
    gen_p1(a)
    gen_p24(a, 2)
    gen_p3(a)
    gen_p4(a)
    stamp_flush(a, 0)
    if OPT["spin"]:
        a("SPIN:")
        a("s_memrealtime s[100:101]")
        a("s_waitcnt lgkmcnt(0)")
        a(f"s_sub_u32 s100, s100, s{NONCE}")
        a(f"s_cmp_lt_u32 s100, {OPT['spin']*100}")
        a("s_cbranch_scc1 SPIN")
    a("KEND:")
    a("s_endpgm")
    gen_loader(a)
    vg = 256
    print(DBG)
    a.raw(f'.section .rodata,"a"\n.p2align 6\n.amdhsa_kernel {name}\n'
          f"  .amdhsa_next_free_vgpr {vg}\n  .amdhsa_next_free_sgpr 102\n  .amdhsa_accum_offset {(vg+3)//4*4}\n"
          "  .amdhsa_group_segment_fixed_size 0\n  .amdhsa_kernarg_size 88\n  .amdhsa_user_sgpr_count 2\n"
          "  .amdhsa_user_sgpr_kernarg_segment_ptr 1\n  .amdhsa_system_sgpr_workgroup_id_x 1\n"
          "  .amdhsa_float_denorm_mode_32 3\n"
          ".end_amdhsa_kernel\n")
    head = open("header.txt").read()
    head += f"; @launch grid=(256,1,1) block=(512,1,1) lds={LDS_TOTAL}\n"
    head += '.amdgcn_target "amdgcn-amd-amdhsa--gfx950"\n.text\n'
    open(out, "w").write(head + a.text())
    if OPT["stamp"]:
        import json
        json.dump(STAMPS, open(out + ".stamps.json", "w"))
    print("generated", out, "nops:", a.nops, "lds", LDS_TOTAL)


main()
```

```python
import sys, struct, math
from asmx import Asm, Regs, vr, sr

NAME = "sequential_preLN__sliding_local_dilated__dense_activation_gelu__prompt"
S, D, F = 2048, 1024, 3584
OPT = dict(stamp=0, map1=1, map3=0, sleep=2, prio=0, nt1=0, seg=2, warm=0, wr1=2, wr2=2, wr3=3, wg=7, touch1=1, dbgt=0, ctouch=1, ost=1, spin=0, rd2=0, tagx=2, prew=1, unr=2, gadv=1, early=0, norot=0, prewx=1, spoll=0, ew=3, onep=1, hrot=1, peel=1)
for a_ in sys.argv[2:]:
    k_, v_ = a_.split("=")
    assert k_ in OPT, k_
    OPT[k_] = int(v_)
WS_O, WS_H, WS_H1 = 4 << 20, 8 << 20, 12 << 20
WS_ST, WS_CS, WS_FL = 28 << 20, 29 << 20, 30 << 20
WS_ST1, WS_CS1 = 0, 1 << 20
WS_XB = 48 << 20
WS_XF = 31 << 20
FL_CS3, FL_CS1 = WS_FL + 32768, WS_FL + 40960
WS_FD = WS_FL + 65536
SLOT = 49152
LDS_X = 3 * SLOT
L_PAIR = LDS_X
L_CNT = LDS_X + 16
L_LCNT = LDS_X + 20
L_CNT2 = LDS_X + 24
L_RDY = LDS_X + 48
L_NONCE = LDS_X + 32
L_P0 = LDS_X + 64
L_ROW = LDS_X + 256
L_RS = L_ROW + 2048
L_NM = L_RS + 1024
L_CS = L_NM + 1024
L_B1 = L_CS + 1024
L_SC = L_B1 + 1024
L_SS = L_SC + 4096
LDS_TOTAL = L_SS + 4096
PX, PWQKV, PWO, PW1, PB1, PW2, PB2, POUT, PDBG, PWS = 48, 50, 52, 56, 58, 60, 62, 64, 66, 68
NONCE = 74
RES, BIA = 216, 232
BIG = "0x7ffffff0"


def f2u(x):
    return struct.unpack("<I", struct.pack("<f", x))[0]


def hexf(x):
    return "0x%08x" % f2u(x)


def srd(a, d, base, off, nbytes):
    if off:
        a(f"s_add_u32 s{d}, s{base}, {off}")
        a(f"s_addc_u32 s{d+1}, s{base+1}, 0")
    else:
        a(f"s_mov_b32 s{d}, s{base}")
        a(f"s_mov_b32 s{d+1}, s{base+1}")
    a(f"s_mov_b32 s{d+2}, {nbytes}")
    a(f"s_mov_b32 s{d+3}, 0x20000")


def round_bf16(a, v):
    a(f"v_cvt_pk_bf16_f32 v{v}, v{v}, v{v}")
    a(f"v_lshlrev_b32 v{v}, 16, v{v}")


def xrow_reduce_multi(a, op, vs, ts):
    for sw in ("v_permlane16_swap_b32", "v_permlane32_swap_b32"):
        for v, t in zip(vs, ts):
            a(f"v_mov_b32 v{t}, v{v}")
        for v, t in zip(vs, ts):
            a(f"{sw} v{v}, v{t}")
        for v, t in zip(vs, ts):
            a(f"{op} v{v}, v{v}, v{t}")


def wave_sum_multi(a, vs, ts):
    for p in ("quad_perm:[1,0,3,2]", "quad_perm:[2,3,0,1]", "row_half_mirror", "row_mirror"):
        for v in vs:
            a(f"v_add_f32_dpp v{v}, v{v}, v{v} {p} row_mask:0xf bank_mask:0xf")
    xrow_reduce_multi(a, "v_add_f32", vs, ts)


def ln_finish(a, mean, var, out):
    round_bf16(a, mean)
    round_bf16(a, var)
    a(f"v_add_f32 v{var}, {hexf(1e-5)}, v{var}")
    round_bf16(a, var)
    a(f"v_sqrt_f32 v{var}, v{var}")
    round_bf16(a, var)
    a(f"v_rcp_f32 v{out}, v{var}")
    a(f"v_mul_f32 v{out+1}, v{mean}, v{out}")
    a(f"v_sub_f32 v{out+1}, 0, v{out+1}")


STAMPS = {"c": [], "l": []}


DBG = []


def stamp(a, role, name):
    if OPT["dbgt"] and role == "c" and name not in ("start", "p0_done") and not name.endswith("stored") or (OPT["dbgt"] and name == "p4_stored"):
        if name not in DBG:
            DBG.append(name)
        a("s_memrealtime s[100:101]")
        a("s_waitcnt lgkmcnt(0)")
        a(f"v_writelane_b32 v255, s100, {DBG.index(name)}")
        if name == "p4_stored":
            a("s_cmp_lg_u32 s6, 0")
            a("s_cbranch_scc1 DBG_e")
            a("v_mov_b32 v254, s100")
            a("v_mov_b32 v253, 0")
            a("s_mov_b64 exec, 1")
            a(f"global_atomic_umax v253, v254, s[{PDBG}:{PDBG+1}] offset:60")
            a("s_mov_b64 exec, 0xfff")
            a(f"s_cmp_lg_u32 s2, {OPT['dbgt']-1}")
            a("s_cbranch_scc1 DBG_e")
            a("v_lshlrev_b32 v253, 2, v1")
            a(f"global_store_dword v253, v255, s[{PDBG}:{PDBG+1}] offset:8")
            a("DBG_e:")
            a("s_mov_b64 exec, -1")
    if not OPT["stamp"]:
        return
    if name in STAMPS[role]:
        i = STAMPS[role].index(name)
    else:
        i = len(STAMPS[role])
        STAMPS[role].append(name)
    a("s_memtime s[100:101]")
    a("s_waitcnt lgkmcnt(0)")
    a(f"v_writelane_b32 v254, s100, {i}")
    a("s_memrealtime s[100:101]")
    a("s_waitcnt lgkmcnt(0)")
    a(f"v_writelane_b32 v255, s100, {i}")


def stamp_flush(a, wavereg_off):
    if not OPT["stamp"]:
        return
    a("v_lshlrev_b32 v2, 2, v1")
    a("s_lshl_b32 s100, s2, 3")
    a(f"s_add_u32 s100, s100, s6")
    a(f"s_add_u32 s100, s100, {wavereg_off}")
    a("s_lshl_b32 s100, s100, 9")
    a(f"s_add_u32 s100, s100, {32<<20}")
    a("v_add_u32 v2, s100, v2")
    a(f"global_store_dword v2, v254, s[{PWS}:{PWS+1}]")
    a(f"global_store_dword v2, v255, s[{PWS}:{PWS+1}] offset:256")
    if OPT["stamp"] == 2:
        a(f"v_add_u32 v2, {8<<20}, v2")
        a(f"global_store_dword v2, v252, s[{PWS}:{PWS+1}]")
        a(f"global_store_dword v2, v253, s[{PWS}:{PWS+1}] offset:256")


class G:
    pass


def phase_cfgs():
    P = {}
    g = G(); P[1] = g
    g.n, g.KS, g.nst, g.B448 = 1, 64, 16, False
    g.nA, g.nB, g.strideB, g.Boff, g.KT = 18, 24, 6144, 24576, 0
    g.A = (PX, 0, S * D * 2); g.B = (PWQKV, 0, D * 3 * D * 2); g.map = OPT["map1"]
    g = G(); P[2] = g
    g.n, g.KS, g.nst, g.B448 = 2, 128, 8, False
    g.nA, g.nB, g.strideB, g.Boff, g.KT = 32, 16, 2048, 32768, 32
    g.A = (PWS, WS_O, S * D * 2); g.B = (PWO, 0, D * D * 2); g.map = 0
    g = G(); P[3] = g
    g.n, g.KS, g.nst, g.B448 = 3, 64, 16, True
    g.nA, g.nB, g.strideB, g.Boff, g.KT = 16, 32, 7168, 16384, 32
    g.A = (PWS, WS_H, S * D * 2); g.B = (PW1, 0, D * F * 2); g.map = OPT["map3"]
    g = G(); P[4] = g
    g.n, g.KS, g.nst, g.B448 = 4, 64, 28, False
    g.nA, g.nB, g.strideB, g.Boff, g.KT = 16, 16, 2048, 16384, 112
    g.A = (PWS, WS_H1, S * F * 2); g.B = (PW2, 0, F * D * 2); g.map = 0
    s = 0
    for p in (1, 2, 3, 4):
        P[p].slot0 = s % 3
        s += P[p].nst
        P[p].mj = (72, 73) if P[p].map else (70, 71)
        if p == 4:
            P[p].mj = (70, 4)
        P[p].exch = ((s - 1) % 3) * SLOT
    return P


PH = phase_cfgs()


def interleave(a, mf, fillers, first=None, dense=0):
    n = len(mf)
    fl = list(fillers)
    gaps = list(range(1, n)) if first is not None else list(range(n))
    k = len(fl)
    assert k <= 2 * len(gaps), (k, len(gaps))
    cnt = {}
    idx = 0
    for gi, g in enumerate(gaps):
        left_gaps = len(gaps) - gi
        c = 2 if (idx < dense or k - idx > left_gaps) else 1
        cnt[g] = min(c, k - idx)
        idx += cnt[g]
    idx = 0
    for i in range(n):
        a(mf[i])
        if i == 0 and first is not None:
            for f in first:
                a(f)
        for _ in range(cnt.get(i, 0)):
            a(fl[idx])
            idx += 1
    assert idx == k


def nonce_load(a, vt):
    a(f"v_mov_b32 v{vt}, 0")
    a(f"global_load_dwordx2 v[{vt+2}:{vt+3}], v{vt}, s[{PDBG}:{PDBG+1}] sc1")


def nonce_check(a, lab, vt):
    a("s_mov_b32 s3, 0x40000")
    a(f"{lab}_nl:")
    a(f"v_readfirstlane_b32 s{NONCE}, v{vt+2}")
    a(f"v_readfirstlane_b32 s{NONCE+1}, v{vt+3}")
    a(f"s_cmp_lg_u32 s{NONCE}, 0")
    a(f"s_cbranch_scc1 {lab}_nd")
    a(f"global_load_dwordx2 v[{vt+2}:{vt+3}], v{vt}, s[{PDBG}:{PDBG+1}] sc1")
    a("s_waitcnt vmcnt(0)")
    a("s_sub_u32 s3, s3, 1")
    a("s_cmp_lg_u32 s3, 0")
    a(f"s_cbranch_scc1 {lab}_nl")
    a(f"{lab}_nd:")


def signal(a, off_sgpr, vt):
    a(f"v_mov_b32 v{vt}, s{off_sgpr}")
    a(f"v_mov_b32 v{vt+2}, s{NONCE}")
    a(f"v_mov_b32 v{vt+3}, s{NONCE+1}")
    a("s_mov_b64 exec, 1")
    a(f"global_store_dwordx2 v{vt}, v[{vt+2}:{vt+3}], s[{PWS}:{PWS+1}] sc1")
    a("s_mov_b64 exec, -1")


def flag_off(a, d, base, hi, lo):
    a(f"s_lshl_b32 s{d}, s{lo}, 2")
    a(f"s_add_u32 s{d}, s{d}, s6")
    a(f"s_lshl_b32 s{d}, s{d}, 3")
    a(f"s_lshl_b32 s3, s{hi}, 9")
    a(f"s_add_u32 s{d}, s{d}, s3")
    a(f"s_add_u32 s{d}, s{d}, {base}")


def poll_loads(a, vaddrs, vt):
    for i, v in enumerate(vaddrs):
        a(f"global_load_dwordx2 v[{vt+2*i}:{vt+2*i+1}], v{v}, s[{PWS}:{PWS+1}] sc1")


def poll_check(a, lab, vaddrs, vt):
    a("s_mov_b32 s3, 0x40000")
    a(f"{lab}_pl:")
    a(f"v_cmp_eq_u64 vcc, s[{NONCE}:{NONCE+1}], v[{vt}:{vt+1}]")
    for i in range(1, len(vaddrs)):
        a(f"v_cmp_eq_u64 s[34:35], s[{NONCE}:{NONCE+1}], v[{vt+2*i}:{vt+2*i+1}]")
        a("s_and_b64 vcc, vcc, s[34:35]")
    a("s_cmp_eq_u64 vcc, -1")
    a(f"s_cbranch_scc1 {lab}_pd")
    if OPT["sleep"]:
        a(f"s_sleep {OPT['sleep']}")
    poll_loads(a, vaddrs, vt)
    a("s_waitcnt vmcnt(0)")
    a("s_sub_u32 s3, s3, 1")
    a("s_cmp_lg_u32 s3, 0")
    a(f"s_cbranch_scc1 {lab}_pl")
    a(f"{lab}_pd:")


def ld_offsets_A(a, g, vA):
    m, j = g.mj
    if g.KT:
        a(f"s_lshl_b32 s7, s{m}, 3")
        a("s_add_u32 s7, s7, s6")
        a(f"s_mul_i32 s7, s7, {g.KT*1024}")
        if g.n == 4:
            a(f"s_mul_i32 s3, s5, {56*1024}")
            a("s_add_u32 s7, s7, s3")
        a(f"v_lshlrev_b32 v{vA}, 4, v1")
        a(f"v_add_u32 v{vA}, s7, v{vA}")
        a(f"v_add_u32 v{vA+1}, {4*g.KT*1024}, v{vA}")
        return
    a("s_and_b32 s3, s6, 1")
    a("s_lshl_b32 s7, s3, 2")
    a("v_lshrrev_b32 v4, 4, v1")
    a("v_or_b32 v4, s7, v4")
    a("v_xor_b32 v4, v3, v4")
    a("v_lshlrev_b32 v4, 4, v4")
    a(f"s_lshl_b32 s7, s{m}, 7")
    a("s_lshl_b32 s34, s6, 3")
    a("s_add_u32 s7, s7, s34")
    a("s_sub_u32 s7, s7, 16")
    for q in range(5):
        a("v_add_u32 v5, s7, v2")
        if q:
            a(f"v_add_u32 v5, {32*q}, v5")
        else:
            a("v_max_i32 v5, 0, v5")
        a(f"v_lshl_add_u32 v{vA+q}, v5, 11, v4")


def ld_offsets_B(a, g, vB):
    m, j = g.mj
    nBq = g.nB // 4
    if g.B448:
        a("v_lshrrev_b32 v5, 5, v1")
        a("s_lshl_b32 s7, s6, 1")
        a("v_add_u32 v5, s7, v5")
        a("v_and_b32 v6, 3, v5")
        a("v_lshlrev_b32 v6, 1, v6")
        a("v_and_b32 v7, 31, v1")
        a("v_xor_b32 v6, v6, v7")
        a("v_mul_u32_u24 v5, 7168, v5")
        a(f"s_mul_i32 s35, s{j}, 448")
        a("s_andn2_b32 s35, s35, 127")
        a("v_add_u32 v5, s35, v5")
        for q in range(nBq):
            if q < 2:
                if q:
                    a("v_xor_b32 v6, 8, v6")
                a(f"v_lshl_add_u32 v{vB+q}, v6, 4, v5")
                if q:
                    a(f"v_add_u32 v{vB+q}, {8*7168}, v{vB+q}")
            else:
                a(f"v_add_u32 v{vB+q}, {16*7168}, v{vB+q-2}")
    else:
        a("v_bfe_u32 v5, v1, 4, 1")
        a("s_and_b32 s7, s6, 1")
        a("s_lshl_b32 s7, s7, 1")
        a("v_or_b32 v5, s7, v5")
        a("v_lshlrev_b32 v5, 1, v5")
        a("v_xor_b32 v5, v3, v5")
        a("v_lshlrev_b32 v5, 4, v5")
        a(f"s_lshl_b32 s7, s{j}, {8 if g.n == 4 else 7}")
        a("v_add_u32 v5, s7, v5")
        if g.n == 4:
            a(f"s_mul_i32 s7, s5, {1792*2048}")
            a("v_add_u32 v5, s7, v5")
        a("s_lshl_b32 s7, s6, 3")
        a("v_add_u32 v6, s7, v2")
        a(f"v_mul_u32_u24 v6, {g.strideB}, v6")
        a("v_add_u32 v5, v5, v6")
        for q in range(nBq):
            if g.n == 4:
                off = (q >> 1) * 128
            elif g.n == 1:
                off = (q >> 1) * 2048 + (q & 1) * 32 * g.strideB
            else:
                off = q * 32 * g.strideB
            a(f"v_add_u32 v{vB+q}, {off}, v5")


def rot_start(a, g, d):
    m, j = g.mj
    if (OPT["norot"] >> g.n) & 1:
        a(f"s_and_b32 s{d}, s{m}, {8 if g.map else 4}")
        if not g.map:
            a(f"s_lshl_b32 s{d}, s{d}, 1")
        return
    if g.n == 1 and OPT["hrot"]:
        assert g.map
        a(f"s_and_b32 s{d}, s{m}, 8")
    elif g.map:
        assert g.nst == 16
        a(f"s_mov_b32 s{d}, s{m}")
    else:
        a(f"s_and_b32 s{d}, s{m}, 7")
        if g.nst == 16:
            a(f"s_lshl_b32 s{d}, s{d}, 1")
        elif g.nst == 28:
            a(f"s_mul_i32 s{d}, s{d}, 7")
            a(f"s_lshr_b32 s{d}, s{d}, 1")


RDY, TMO, PF = 94, 96, 40
LAB = [0]
POLLW = [16]


def poll_once(a):
    a("s_mov_b32 exec_hi, 0" if POLLW[0] == 32 else "s_mov_b64 exec, 0xffff")
    a(f"global_load_dwordx2 v[{PF+2}:{PF+3}], v{PF}, s[{PWS}:{PWS+1}] sc1")
    a(f"s_max_u32 s{TMO}, s{TMO}, 1")
    a(f"s_sub_u32 s{TMO}, s{TMO}, 1")
    a("s_waitcnt vmcnt(0)")
    a(f"v_cmp_eq_u64 s[{RDY}:{RDY+1}], s[{NONCE}:{NONCE+1}], v[{PF+2}:{PF+3}]")
    a("s_mov_b64 exec, -1")
    a(f"s_cmp_eq_u32 s{TMO}, 0")
    a(f"s_cselect_b32 s{RDY}, {'-1' if POLLW[0] == 32 else '0xffff'}, s{RDY}")
    a(f"s_cselect_b32 s{TMO}, 1, s{TMO}")


class Stream:
    def __init__(self, g, isA, srd_, vbase, so, st, lb, sl, of, cur=None):
        self.g, self.isA, self.srd, self.v = g, isA, srd_, vbase
        self.so, self.st, self.lb, self.sl, self.of = so, st, lb, sl, of
        self.cur = cur
        self.frag = isA and g.KT
        self.seg = OPT["seg"] and g.n in (2, 4)
        if self.frag:
            self.step = g.KS * 32
            self.per = g.KS // 32
        else:
            self.step = g.KS * 2 if isA else g.KS * g.strideB

    def seg_so(self, a):
        a(f"s_add_u32 s7, s{self.st}, s{self.of}")
        a("s_and_b32 s7, s7, 3")
        a(f"s_andn2_b32 s{self.so}, s{self.st}, 3")
        a(f"s_add_u32 s{self.so}, s{self.so}, s7")
        if self.cur:
            a(f"s_mov_b32 s{self.cur}, s{self.so}")
        a(f"s_mul_i32 s{self.so}, s{self.so}, {self.step}")

    def init(self, a):
        g = self.g
        m, j = g.mj
        if self.seg:
            a(f"s_and_b32 s{self.st}, s{m}, 7")
            a(f"s_mul_i32 s{self.st}, s{self.st}, {g.nst // 4}")
            a(f"s_lshr_b32 s{self.st}, s{self.st}, 3")
            a(f"s_lshl_b32 s{self.st}, s{self.st}, 2")
            if OPT["seg"] == 2 and g.n == 4:
                a(f"s_mov_b32 s{self.st}, 0")
            a(f"s_add_u32 s{self.of}, s{m}, s{j}")
            self.seg_so(a)
        else:
            rot_start(a, g, self.st)
            a(f"s_mul_i32 s{self.so}, s{self.st}, {self.step}")
        a(f"s_mul_i32 s{self.lb}, s6, {1024*self.per if self.frag else 1024}")
        off = g.slot0 * SLOT + (0 if self.isA else g.Boff)
        if off:
            a(f"s_add_u32 s{self.lb}, s{self.lb}, {off}")
        a(f"s_mov_b32 s{self.sl}, {g.slot0}")

    def need(self, a, ok):
        g = self.g
        cur = self.cur if self.seg else self.st
        a(f"s_cmp_eq_u32 s{RDY}, 0xffff")
        a(f"s_cbranch_scc1 {ok}")
        if g.n == 2:
            a(f"s_lshl_b32 s3, s{cur}, 1")
            a("s_lshl_b32 s34, 3, s3")
        elif g.n == 3:
            a(f"s_lshl_b32 s34, 1, s{cur}")
        else:
            a("s_mul_i32 s3, s5, 28")
            a(f"s_add_u32 s3, s3, s{cur}")
            a(f"s_mul_i32 s3, s3, {2*9363}")
            a(f"s_add_u32 s7, s3, 9363")
            a("s_lshr_b32 s3, s3, 16")
            a("s_lshr_b32 s7, s7, 16")
            a("s_lshl_b32 s34, 1, s3")
            a("s_bitset1_b32 s34, s7")
        a(f"s_andn2_b32 s3, s34, s{RDY}")
        a(f"s_cbranch_scc0 {ok}")

    def wait_ready(self, a, scalar=False):
        if not self.frag:
            return
        LAB[0] += 1
        L = f"WR{LAB[0]}"
        self.need(a, f"{L}_ok")
        a(f"{L}_t:")
        if OPT["spoll"] and scalar:
            a("s_ff1_i32_b32 s7, s3")
            a("s_lshl_b32 s35, s7, 7")
            if self.g.n == 4:
                a("s_cmp_ge_u32 s7, 16")
                a(f"s_cselect_b32 s3, {3*32768 + 2048}, 0")
                a("s_sub_u32 s35, s35, s3")
            a("s_add_u32 s35, s35, s83")
            a(f"{L}_s:")
            a(f"s_load_dwordx2 s[92:93], s[{PWS}:{PWS+1}], s35 glc")
            a(f"s_sub_u32 s{TMO}, s{TMO}, 1")
            a("s_cselect_b32 s3, 1, 0")
            a(f"s_cselect_b32 s{TMO}, 0, s{TMO}")
            a("s_waitcnt lgkmcnt(0)")
            a(f"s_cmp_eq_u64 s[92:93], s[{NONCE}:{NONCE+1}]")
            a("s_cselect_b32 s3, 1, s3")
            a("s_cmp_eq_u32 s3, 0")
            a(f"s_cbranch_scc1 {L}_s")
            a(f"s_bitset1_b32 s{RDY}, s7")
            a(f"s_andn2_b32 s3, s34, s{RDY}")
            a(f"s_cbranch_scc1 {L}_t")
        elif OPT["onep"] and scalar:
            a("s_cmp_lg_u32 s6, 0")
            a(f"s_cbranch_scc1 {L}_w")
            poll_once(a)
            a(f"v_mov_b32 v{PF+5}, s{RDY}")
            a(f"ds_write_b32 v{PF+4}, v{PF+5}")
            a(f"s_branch {L}_c")
            a(f"{L}_w:")
            a(f"ds_read_b32 v{PF+5}, v{PF+4}")
            a(f"s_sub_u32 s{TMO}, s{TMO}, 1")
            a(f"s_cselect_b32 s{TMO}, 0, s{TMO}")
            a("s_cselect_b32 s7, -1, 0")
            a("s_waitcnt lgkmcnt(0)")
            a(f"v_readfirstlane_b32 s3, v{PF+5}")
            a(f"s_or_b32 s{RDY}, s{RDY}, s3")
            a(f"s_or_b32 s{RDY}, s{RDY}, s7")
            a(f"{L}_c:")
            a(f"s_andn2_b32 s3, s34, s{RDY}")
            a(f"s_cbranch_scc0 {L}_ok")
            if OPT["sleep"]:
                a(f"s_sleep {OPT['sleep']}")
            a(f"s_branch {L}_t")
        else:
            poll_once(a)
            a(f"s_andn2_b32 s3, s34, s{RDY}")
            a(f"s_cbranch_scc0 {L}_ok")
            if OPT["sleep"]:
                a(f"s_sleep {OPT['sleep']}")
            a(f"s_branch {L}_t")
        a(f"{L}_ok:")

    def loads(self, n, nt=False):
        out = []
        if self.frag:
            for q in range(n):
                u, k = q // self.per, q % self.per
                out.append((f"s_add_u32 m0, s{self.lb}, {u*4096*self.per}",
                            f"buffer_load_dwordx4 v{self.v+u}, s[{self.srd}:{self.srd+3}], s{self.so} offen offset:{k*1024} sc1 lds"))
            return out
        return [(f"s_add_u32 m0, s{self.lb}, {q*4096}",
                 f"buffer_load_dwordx4 v{self.v+q}, s[{self.srd}:{self.srd+3}], s{self.so} offen {'nt ' if (nt and not self.isA) else ''}lds") for q in range(n)]

    def advance(self, a):
        if not self.seg:
            a(f"s_add_u32 s{self.so}, s{self.so}, {self.step}")
        a(f"s_add_u32 s{self.st}, s{self.st}, 1")
        a(f"s_cmp_eq_u32 s{self.st}, {self.g.nst}")
        a(f"s_cselect_b32 s{self.st}, 0, s{self.st}")
        if self.seg:
            self.seg_so(a)
        else:
            a(f"s_cselect_b32 s{self.so}, 0, s{self.so}")
        a(f"s_add_u32 s{self.lb}, s{self.lb}, {SLOT}")
        a(f"s_add_u32 s{self.sl}, s{self.sl}, 1")
        a(f"s_cmp_eq_u32 s{self.sl}, 3")
        a(f"s_cselect_b32 s7, {3*SLOT}, 0")
        a(f"s_cselect_b32 s{self.sl}, 0, s{self.sl}")
        a(f"s_sub_u32 s{self.lb}, s{self.lb}, s7")


def p4_step(st, of, outs):
    sg, jl, x, d, nb, sh, t = 24, 25, 26, 27, 28, 29, 30
    g = [f"s_add_u32 s{t}, s{st}, s{of}", f"s_and_b32 s{t}, s{t}, 3", f"s_andn2_b32 s{sg}, s{st}, 3",
         f"s_add_u32 s{sg}, s{sg}, s{t}", f"s_sub_u32 s{jl}, s{sg}, 8", f"s_lshr_b32 s{jl}, s{jl}, 1",
         f"s_and_b32 s{x}, s{sg}, 1", f"s_mul_i32 s{x}, s{x}, 3", f"s_add_u32 s{x}, s{x}, 1",
         [f"s_cmp_lt_u32 s{sg}, 8", f"s_cselect_b32 s{jl}, s{sg}, s{jl}", f"s_cselect_b32 s{x}, 0, s{x}",
          f"s_cselect_b32 s{d}, 3, 1", f"s_cselect_b32 s{sh}, 16, 0"],
         f"s_sub_u32 s{t}, s{sg}, 24", f"s_lshl_b32 s{t}, s{t}, 1",
         [f"s_cmp_ge_u32 s{sg}, 24", f"s_cselect_b32 s{jl}, s{t}, s{jl}", f"s_cselect_b32 s{x}, 6, s{x}",
          f"s_cselect_b32 s{d}, 7, s{d}", f"s_cselect_b32 s{nb}, 3, 1"],
         f"s_mul_i32 s{t}, s{jl}, 7", f"s_add_u32 s{x}, s{x}, s{t}", f"s_add_u32 s{d}, s{d}, s{x}"]
    a0, a1, b0, b1, nd = outs
    if a0 is not None:
        g += [f"s_lshl_b32 s{a0}, s{x}, 10", f"s_lshl_b32 s{a1}, s{d}, 10", f"s_sub_u32 s{a1}, s{a1}, 1024"]
    if b0 is not None:
        g += [f"s_lshl_b32 s{b0}, s{x}, 16", f"s_lshl_b32 s{b1}, s{d}, 16"]
    if nd is not None:
        g += [f"s_lshl_b32 s{t}, s5, 3", f"s_add_u32 s{sh}, s{sh}, s{jl}", f"s_add_u32 s{sh}, s{sh}, s{t}",
              f"s_lshl_b32 s{nd}, s{nb}, s{sh}"]
    return [(y if isinstance(y, list) else [y]) for y in g]


class Stream4(Stream):
    SO2 = {True: 80, False: 81}
    ND = 82

    def tiles(self, a):
        o = (self.so, self.SO2[True], None, None, self.ND) if self.isA else (None, None, self.so, self.SO2[False], None)
        for grp in p4_step(self.st, self.of, o):
            for t in grp:
                a(t)

    def init(self, a):
        g = self.g
        a(f"s_mov_b32 s{self.st}, 0")
        a(f"s_add_u32 s{self.of}, s{g.mj[0]}, s{g.mj[1]}")
        self.tiles(a)
        a(f"s_mul_i32 s{self.lb}, s6, {2048 if self.isA else 1024}")
        a(f"s_add_u32 s{self.lb}, s{self.lb}, {g.slot0 * SLOT + (0 if self.isA else g.Boff)}")
        a(f"s_mov_b32 s{self.sl}, {g.slot0}")

    def need(self, a, ok):
        a(f"s_mov_b32 s34, s{self.ND}")
        a(f"s_andn2_b32 s3, s34, s{RDY}")
        a(f"s_cbranch_scc0 {ok}")

    def loads(self, n, nt=False):
        so = [self.so, self.SO2[self.isA]]
        if self.isA:
            return [(f"s_add_u32 m0, s{self.lb}, {(q>>1)*8192}",
                     f"buffer_load_dwordx4 v{self.v+(q>>1)}, s[{self.srd}:{self.srd+3}], s{so[q&1]} offen offset:{(q&1)*1024} sc1 lds") for q in range(n)]
        return [(f"s_add_u32 m0, s{self.lb}, {q*4096}",
                 f"buffer_load_dwordx4 v{self.v+q}, s[{self.srd}:{self.srd+3}], s{so[q&1]} offen lds") for q in range(n)]

    def advance(self, a):
        a(f"s_add_u32 s{self.st}, s{self.st}, 1")
        self.tiles(a)
        a(f"s_add_u32 s{self.lb}, s{self.lb}, {SLOT}")
        a(f"s_add_u32 s{self.sl}, s{self.sl}, 1")
        a(f"s_cmp_eq_u32 s{self.sl}, 3")
        a(f"s_cselect_b32 s7, {3*SLOT}, 0")
        a(f"s_cselect_b32 s{self.sl}, 0, s{self.sl}")
        a(f"s_sub_u32 s{self.lb}, s{self.lb}, s7")


class Rec:
    def __init__(self):
        self.g = []
        self.open = False

    def __call__(self, t):
        if self.open:
            self.g[-1].append(t)
        else:
            self.g.append([t])

    def begin(self):
        self.g.append([])
        self.open = True

    def end(self):
        self.open = False


def issue(a, items, nt=False, fill=None, ready=True, mid=0):
    if ready:
        for (s_, n) in items:
            s_.wait_ready(a, len(items) == 1)
    ls = [s.loads(n, nt) for (s, n) in items]
    seq = []
    for q in range(max(len(x) for x in ls)):
        for x in ls:
            if q < len(x):
                seq.append(x[q])
    fill = list(fill or [])
    commit = None
    if OPT["gadv"] and len(items) == 2:
        B_, A_ = items[0][0], items[1][0]
        g_ = A_.g
    if OPT["gadv"] and len(items) == 2 and g_.n == 4:
        fill = ([[f"s_add_u32 s{A_.st}, s{A_.st}, 1"]] + p4_step(A_.st, A_.of, (90, 76, 91, 77, A_.ND)) +
                [[f"s_add_u32 s{A_.sl}, s{A_.sl}, 1"],
                 [f"s_cmp_eq_u32 s{A_.sl}, 3", f"s_cselect_b32 s93, {3*SLOT}, 0", f"s_cselect_b32 s{A_.sl}, 0, s{A_.sl}"],
                 [f"s_sub_u32 s93, {SLOT}, s93"]] + fill)
        commit = [f"s_mov_b32 s{A_.so}, s90", f"s_mov_b32 s{B_.so}, s91", "s_mov_b32 s80, s76", "s_mov_b32 s81, s77",
                  f"s_add_u32 s{A_.lb}, s{A_.lb}, s93", f"s_add_u32 s{B_.lb}, s{B_.lb}, s93"]
    elif OPT["gadv"] and len(items) == 2:
        pre_ = [f"s_add_u32 s{A_.st}, s{A_.st}, 1", [f"s_cmp_eq_u32 s{A_.st}, {g_.nst}", f"s_cselect_b32 s{A_.st}, 0, s{A_.st}"]]
        if A_.seg:
            pre_ += [f"s_add_u32 s92, s{A_.st}, s{A_.of}", "s_and_b32 s92, s92, 3", f"s_andn2_b32 s93, s{A_.st}, 3",
                     f"s_add_u32 s{A_.cur}, s93, s92"]
            cur = A_.cur
        else:
            cur = A_.st
        pre_ += [f"s_mul_i32 s90, s{cur}, {A_.step}", f"s_mul_i32 s91, s{cur}, {B_.step}",
                 f"s_add_u32 s{A_.sl}, s{A_.sl}, 1",
                 [f"s_cmp_eq_u32 s{A_.sl}, 3", f"s_cselect_b32 s93, {3*SLOT}, 0", f"s_cselect_b32 s{A_.sl}, 0, s{A_.sl}"],
                 f"s_sub_u32 s93, {SLOT}, s93"]
        fill = [(x if isinstance(x, list) else [x]) for x in pre_] + fill
        commit = [f"s_mov_b32 s{A_.so}, s90", f"s_mov_b32 s{B_.so}, s91", f"s_add_u32 s{A_.lb}, s{A_.lb}, s93",
                  f"s_add_u32 s{B_.lb}, s{B_.lb}, s93"]
    per = -(-len(fill) // max(1, len(seq) - 1)) if fill else 0
    last = None
    for k, (m0, ld) in enumerate(seq):
        if m0 != last:
            a(m0)
            last = m0
        a(ld)
        if mid and k == mid - 1:
            a(f"s_waitcnt vmcnt({mid})")
            a("s_barrier")
        for _ in range(per):
            if fill:
                for t in fill.pop(0):
                    a(t)
    for grp in fill:
        for t in grp:
            a(t)
    if commit:
        for t in commit:
            a(t)
    else:
        for (s, n) in items:
            s.advance(a)


ACC, WF, ONE, AD, TB, TT, VT = 64, 96, 128, 132, 133, 134, 32
A_CSS, A_CS3, A_ST, A_GA, A_GB, TID = 136, 137, 138, 139, 156, 157
ST = 140
AD2 = 158
A_XB, ZERO = 180, 184
A_SC = 166
SG = 160
PA = 168


def fold_setup(a, g):
    m, j = g.mj
    p1 = g.n == 1
    nsh = 16 if g.map else 8
    ncol = 3 * D if p1 else F
    wscs, flcs = (WS_CS1, FL_CS1) if p1 else (WS_CS, FL_CS3)
    row = 512 if g.B448 else 128
    a(f"v_and_b32 v{TT}, 15, v1")
    a(f"v_lshrrev_b32 v{AD}, 2, v{TT}")
    a(f"v_lshrrev_b32 v{TB}, 4, v1")
    a(f"v_lshl_add_u32 v{AD}, v{TB}, 3, v{AD}")
    a(f"v_mul_u32_u24 v{AD}, {row}, v{AD}")
    a(f"v_and_b32 v{TT}, 3, v1")
    a(f"v_lshl_add_u32 v{AD}, v{TT}, 3, v{AD}")
    a(f"v_and_b32 v{TB}, 1, v{TB}")
    if g.B448:
        a(f"v_bfe_u32 v{TT}, v1, 2, 2")
        a(f"v_lshl_or_b32 v{TB}, v{TB}, 2, v{TT}")
        a(f"s_and_b32 s3, s{j}, 1")
        a("s_lshl_b32 s3, s3, 1")
        a("s_add_u32 s3, s3, s6")
        a(f"v_add_u32 v{AD}, {g.slot0*SLOT + g.Boff}, v{AD}")
        a("s_add_u32 s7, s3, 4")
        a(f"v_xor_b32 v{TT}, s7, v{TB}")
        a(f"v_lshl_add_u32 v{AD2}, v{TT}, 5, v{AD}")
        a(f"v_xor_b32 v{TT}, s3, v{TB}")
        a(f"v_lshl_add_u32 v{AD}, v{TT}, 5, v{AD}")
    else:
        a(f"v_bfe_u32 v{TT}, v1, 3, 1")
        a(f"v_lshl_or_b32 v{TB}, v{TB}, 1, v{TT}")
        a(f"v_xor_b32 v{TB}, s6, v{TB}")
        a(f"v_lshl_add_u32 v{AD}, v{TB}, 5, v{AD}")
        a(f"v_add_u32 v{AD}, {g.slot0*SLOT + g.Boff}, v{AD}")
    if p1 and OPT["hrot"]:
        a(f"s_and_b32 s78, s{m}, 7")
        a("s_mul_i32 s3, s78, 86")
        a("s_lshr_b32 s3, s3, 8")
        a("s_mul_i32 s3, s3, 3")
        a("s_sub_u32 s3, s78, s3")
        a(f"s_mul_i32 s3, s3, {SLOT}")
        a(f"v_add_u32 v{AD}, s3, v{AD}")
        a("s_lshl_b32 s79, 11, s78")
        a("s_or_b32 s79, s79, 0x2b")
        a("s_mov_b32 s77, 0")
    d = SLOT if g.slot0 < 2 else -2 * SLOT
    a(f"v_add_u32 v{AD+3}, {d & 0xffffffff}, v{AD}")
    if g.B448:
        a(f"v_add_u32 v{AD2+1}, {d & 0xffffffff}, v{AD2}")
    for i in range(4):
        a(f"v_mov_b32 v{ONE+i}, 0x3f803f80")
    for i in range(16):
        a(f"v_mov_b32 v{ACC+i}, 0")
    srd(a, 24, PWS, wscs, 16 * ncol * 4)
    if p1:
        srd(a, 28, PWS, WS_ST1, S * 8)
    else:
        srd(a, 28, PWS, WS_ST, 16 * S * 8)
        srd(a, 76, PB1, 0, F * 2)
    a(f"v_lshrrev_b32 v{TT}, 4, v1")
    a(f"v_lshlrev_b32 v{TT}, 4, v{TT}")
    a(f"s_mul_i32 s3, s{m}, {ncol*4}")
    a(f"s_mul_i32 s7, s{j}, {256 if p1 else 896}")
    a("s_add_u32 s3, s3, s7")
    a("s_lshl_b32 s7, s6, 6")
    a("s_add_u32 s3, s3, s7")
    a(f"v_add_u32 v{TT}, s3, v{TT}")
    a(f"v_and_b32 v{TB}, 15, v1")
    a(f"v_cmp_eq_u32 vcc, 0, v{TB}")
    a(f"v_mov_b32 v{TB}, {BIG}")
    a(f"v_cndmask_b32 v{A_CSS}, v{TB}, v{TT}, vcc")
    a("s_lshl_b32 s3, s6, 6")
    a(f"v_add_u32 v{TID}, s3, v1")
    if p1:
        a("s_mov_b32 s80, 4096")
        a("s_mov_b32 s81, 8192")
        a(f"s_lshl_b32 s3, s{m}, 10")
        a(f"s_lshl_b32 s7, s{j}, 6")
        a("s_add_u32 s3, s3, s7")
        a("s_lshl_b32 s7, s6, 4")
        a("s_add_u32 s3, s3, s7")
        a(f"v_mov_b32 v{TT}, s3")
        a("v_cmp_eq_u32 vcc, 0, v1")
        a(f"v_cndmask_b32 v{A_ST}, v{TB}, v{TT}, vcc")
        a("v_cmp_gt_u32 vcc, 48, v1")
        a(f"v_lshrrev_b32 v{TT}, 4, v1")
        a(f"v_lshlrev_b32 v{TT}, 12, v{TT}")
        a(f"v_and_b32 v{A_GA}, 15, v1")
        a(f"v_lshl_add_u32 v{TT}, v{A_GA}, 4, v{TT}")
        a(f"s_lshl_b32 s3, s{j}, 8")
        a(f"v_add_u32 v{TT}, s3, v{TT}")
        a(f"v_cndmask_b32 v{A_GA}, v{TB}, v{TT}, vcc")
        a(f"s_lshl_b32 s3, s{m}, 7")
        a("s_sub_u32 s3, s3, 16")
        a(f"v_add_u32 v{TT}, s3, v{TID}")
        a(f"v_max_i32 v{TT}, 0, v{TT}")
        a(f"v_lshlrev_b32 v{TT}, 3, v{TT}")
        a(f"v_cmp_gt_u32 vcc, 144, v{TID}")
        a(f"v_cndmask_b32 v{A_GB}, v{TB}, v{TT}, vcc")
    else:
        a("s_cmp_ge_u32 s6, 2")
        a(f"s_cselect_b32 s3, {BIG}, 0")
        a(f"v_max_u32 v{A_CS3}, s3, v{A_CSS}")
        a(f"v_lshlrev_b32 v{A_ST}, 4, v1")
        a(f"s_lshl_b32 s3, s{m}, 10")
        a("s_lshl_b32 s7, s6, 16")
        a("s_add_u32 s3, s3, s7")
        a(f"v_add_u32 v{A_ST}, s3, v{A_ST}")
        a("v_cmp_gt_u32 vcc, 56, v1")
        a(f"v_lshlrev_b32 v{TT}, 4, v1")
        a(f"s_mul_i32 s3, s{j}, 896")
        a(f"v_add_u32 v{TT}, s3, v{TT}")
        a(f"v_cndmask_b32 v{A_GA}, v{TB}, v{TT}, vcc")
        a(f"v_cmp_gt_u32 vcc, 224, v{TID}")
        a(f"v_lshlrev_b32 v{TT}, 1, v{TID}")
        a(f"s_mul_i32 s3, s{j}, 448")
        a(f"v_add_u32 v{TT}, s3, v{TT}")
        a(f"v_cndmask_b32 v{A_GB}, v{TB}, v{TT}, vcc")
    if nsh == 8:
        a(f"s_and_b32 s82, s{m}, 8")
        a(f"s_mul_i32 s82, s82, {ncol*4}")
    else:
        a("s_mov_b32 s82, 0")
    a(f"s_mul_i32 s3, s6, {(nsh // 4) * ncol * 4}")
    a("s_add_u32 s82, s82, s3")
    a(f"v_lshlrev_b32 v{A_SC}, 4, v1")
    a("s_lshl_b32 s3, s6, 10")
    a(f"s_add_u32 s3, s3, {L_SC}")
    a(f"v_add_u32 v{A_SC}, s3, v{A_SC}")
    srd(a, 84, PWS, WS_FL, 65536)
    a("v_cmp_eq_u32 vcc, 0, v1")
    flag_off(a, 7, flcs - WS_FL, j, m)
    a(f"v_mov_b32 v{TT}, s7")
    a(f"v_cndmask_b32 v{SG}, v{TB}, v{TT}, vcc")
    if p1:
        flag_off(a, 7, 0, m, j)
        a(f"v_mov_b32 v{TT}, s7")
        a(f"v_cndmask_b32 v{SG+4}, v{TB}, v{TT}, vcc")
    else:
        a(f"v_mov_b32 v{SG+2}, s{NONCE}")
        a(f"v_mov_b32 v{SG+3}, s{NONCE+1}")
    a(f"v_lshlrev_b32 v{PA}, 3, v1")
    a(f"s_lshl_b32 s3, s{j}, 9")
    a(f"s_add_u32 s3, s3, {flcs}")
    if p1:
        a(f"s_lshl_b32 s7, s{m}, 9")
        a(f"s_add_u32 s7, s7, {WS_FL}")
        a(f"v_add_u32 v{PA+1}, s7, v{PA}")
        a(f"v_or_b32 v{PA+2}, 56, v1")
        a(f"v_lshlrev_b32 v{PA+2}, 3, v{PA+2}")
        a(f"s_cmp_eq_u32 s{m}, 0")
        a("s_cselect_b32 s34, 0, 512")
        a("s_sub_u32 s7, s7, s34")
        a(f"v_add_u32 v{PA+2}, s7, v{PA+2}")
    if nsh == 8:
        a(f"v_and_b32 v{PA}, 0xff, v{PA}")
        a(f"s_and_b32 s7, s{m}, 8")
        a("s_lshl_b32 s7, s7, 5")
        a("s_add_u32 s3, s3, s7")
    a(f"v_add_u32 v{PA}, s3, v{PA}")
    if p1:
        a("s_lshl_b32 s3, s6, 4")
        a(f"s_add_u32 s3, s3, {L_P0}")
        a(f"v_mov_b32 v{TB}, s3")
        a(f"v_mov_b32 v{VT}, 0")
        a(f"v_mov_b32 v{VT+1}, {L_NONCE}")
        a("s_lshl_b32 s3, s2, 2")
        a("s_add_u32 s3, s3, s6")
        a("s_lshl_b32 s3, s3, 13")
        a(f"s_add_u32 s3, s3, {WS_XB}")
        a(f"v_lshlrev_b32 v{A_XB}, 4, v1")
        a(f"v_add_u32 v{A_XB}, s3, v{A_XB}")
        a(f"v_add_u32 v{A_XB+1}, 4096, v{A_XB}")
        for i in range(4):
            a(f"v_mov_b32 v{ZERO+i}, 0")


LGK = [False]
WARM = {"left": [56, 56], "save": None}


def warm(a, n, iters=1):
    if not OPT["warm"]:
        return
    w = 0 if WARM["phase"] == 1 else 1
    n = min(n, WARM["left"][w] // iters)
    if n <= 0:
        return
    WARM["left"][w] -= n * iters
    b = 88 if w else 32
    for i in range(n):
        a(f"s_load_dwordx2 s[{90+2*(i&1)}:{91+2*(i&1)}], s[{b}:{b+1}], {60+128*i}")
    a(f"s_add_u32 s{b}, s{b}, {128*n}")
    a(f"s_addc_u32 s{b+1}, s{b+1}, 0")


def fold_body(a, g, both, c, loop, sfx):
    p1 = g.n == 1
    P = f"LD{g.n}{sfx}"
    nsh = 16 if g.map else 8
    nstg = 1 if g.map else 2
    nu = 3 if p1 else 4
    ncol = 3 * D if p1 else F
    npw = nsh // 4

    def cs_reads(r, ad):
        for h in range(2):
            for i in range(nu):
                for jj in range(2):
                    off = (i * 8192 + jj * 512 + h * 4096) if p1 else ((i >> 1) * 256 + jj * 2048 + h * 16384)
                    v = ad if (p1 or not i & 1) else (AD2 if ad == AD else AD2 + 1)
                    r(f"ds_read_b64_tr_b16 {vr(WF+16*h+4*i+2*jj,2)}, v{v} offset:{off}")
        LGK[0] = True

    def cs_mfma(r):
        for h in range(2):
            for i in range(nu):
                r(f"v_mfma_f32_16x16x32_bf16 {vr(ACC+4*i,4)}, {vr(WF+16*h+4*i,4)}, {vr(ONE,4)}, {vr(ACC+4*i,4)}")

    def f0(r):
        if p1:
            r(f"ds_read_b128 {vr(ST,4)}, v{TB}")
        cs_reads(r, AD)
        return 0

    def f1(r):
        n = 0
        if p1:
            r.begin()
            r("s_mov_b64 exec, 1")
            r(f"buffer_store_dwordx4 {vr(ST,4)}, v{A_ST}, s[28:31], 0 offen sc1")
            r(f"global_load_dwordx2 v[{VT+2}:{VT+3}], v{VT}, s[{PDBG}:{PDBG+1}] sc1")
            r("s_mov_b64 exec, -1")
            r.end()
            n = 2
        cs_mfma(r)
        if nstg == 2:
            cs_reads(r, AD + 3)
        return n

    def f2(r):
        cs_mfma(r)
        return 0

    def f3(r):
        for i in range(nu):
            r.begin()
            r("s_mov_b32 exec_lo, 0x10001")
            r("s_mov_b32 exec_hi, 0x10001")
            if p1:
                r(f"buffer_store_dwordx4 {vr(ACC+4*i,4)}, v{A_CSS}, s[24:27], {['0','s80','s81'][i]} offen sc1")
            else:
                r(f"buffer_store_dwordx4 {vr(ACC+4*i,4)}, v{A_CSS if i < 3 else A_CS3}, s[24:27], 0 offen offset:{i*256} sc1")
            r("s_mov_b64 exec, -1")
            r.end()
        return nu

    def post3():
        nonce_check(a, P, VT)
        a(f"v_mov_b32 v{SG+2}, s{NONCE}")
        a(f"v_mov_b32 v{SG+3}, s{NONCE+1}")
        a(f"ds_write_b64 v{VT+1}, {vr(SG+2,2)}")

    def f5(r):
        r.begin()
        r("s_mov_b64 exec, 1")
        r(f"buffer_store_dwordx2 {vr(SG+2,2)}, v{SG}, s[84:85+2], 0 offen sc1".replace("85+2", "87"))
        if p1:
            r(f"buffer_store_dwordx2 {vr(SG+2,2)}, v{SG+4}, s[84:87], 0 offen sc1")
        r("s_mov_b64 exec, -1")
        r.end()
        return 2 if p1 else 1

    def pre_allready():
        a(f"{P}_ar:")
        a(f"s_cmp_eq_u32 s{RDY}, 0xffff")
        a(f"s_cbranch_scc1 {P}_ar2")
        poll_once(a)
        a(f"s_branch {P}_ar")
        a(f"{P}_ar2:")

    def f_stload(r):
        for i in range(4):
            r.begin()
            r(f"s_mov_b32 s3, {i*16384}")
            r(f"buffer_load_dwordx4 {vr(ST+4*i,4)}, v{A_ST}, s[28:31], s3 offen sc1")
            r.end()
        return 4

    def f_st1(r):
        for i in range(8):
            r(f"v_add_f32 v{ST+i}, v{ST+i}, v{ST+8+i}")
        for i in range(4):
            r(f"v_add_f32 v{ST+i}, v{ST+i}, v{ST+4+i}")
        r(f"ds_write_b128 v{A_SC}, {vr(ST,4)} offset:{L_SS-L_SC}")
        r(f"v_and_b32 v{TT}, 127, v{TID}")
        r(f"v_lshlrev_b32 v{TT}, 3, v{TT}")
        r(f"v_add_u32 v{TB}, {L_SS}, v{TT}")
        r(f"v_add_u32 v{TT}, {L_ROW}, v{TT}")
        r("s_waitcnt lgkmcnt(0)")
        return 0

    def f_st2(r):
        r(f"ds_read2st64_b64 {vr(ST,4)}, v{TB} offset0:0 offset1:2")
        r(f"ds_read2st64_b64 {vr(ST+4,4)}, v{TB} offset0:4 offset1:6")
        r("s_waitcnt lgkmcnt(0)")
        for i in range(4):
            r(f"v_add_f32 v{ST+i}, v{ST+i}, v{ST+4+i}")
        r(f"v_add_f32 v{ST}, v{ST}, v{ST+2}")
        r(f"v_add_f32 v{ST+1}, v{ST+1}, v{ST+3}")
        r(f"v_mul_f32 v{ST}, {hexf(1/1024)}, v{ST}")
        r(f"v_mul_f32 v{ST+1}, {hexf(1/1024)}, v{ST+1}")
        r(f"v_fma_f32 v{ST+1}, -v{ST}, v{ST}, v{ST+1}")
        r(f"v_max_f32 v{ST+1}, 0, v{ST+1}")
        ln_finish(r, ST, ST + 1, ST + 2)
        r(f"ds_write_b64 v{TT}, {vr(ST+2,2)}")
        return 0

    def mk_prew(k):
        def f(r):
            for gi in (2 * k, 2 * k + 1):
                r(f"global_store_dwordx4 v{A_XB+(gi>>2)}, {vr(ZERO,4)}, s[{PWS}:{PWS+1}] offset:{(gi&3)*1024} sc1")
            return 2
        return f

    addrs = [PA] + ([PA + 1, PA + 2] if p1 else [])

    def f_poll(r):
        poll_loads(r, addrs, PA + 4)
        return len(addrs)

    def post_check():
        poll_check(a, P + "cs", addrs, PA + 4)

    def tail0():
        a("s_mov_b32 s3, s82")
        for i in range(npw):
            a(f"buffer_load_dwordx4 {vr(ACC+4*i,4)}, v{A_GA}, s[24:27], s3 offen sc1")
            if i < npw - 1:
                a(f"s_add_u32 s3, s3, {ncol*4}")
        if p1:
            a(f"buffer_load_dwordx2 {vr(ST,2)}, v{A_GB}, s[28:31], 0 offen sc1")
        else:
            a(f"buffer_load_ushort v{WF}, v{A_GB}, s[76:79], 0 offen")
            pre_allready()
            r = Rec()
            f_stload(r)
            for grp in r.g:
                for t in grp:
                    a(t)
        a(f"v_lshlrev_b32 v{AD}, 2, v{TID}")
        a(f"v_add_u32 v{TB}, {L_SC}, v{AD}")
        a(f"v_add_u32 v{AD}, {L_RS}, v{AD}")
        if p1:
            a(f"v_lshlrev_b32 v{TT}, 3, v{TID}")
        else:
            a(f"v_and_b32 v{TT}, 127, v{TID}")
            a(f"v_lshlrev_b32 v{TT}, 3, v{TT}")
            a(f"v_add_u32 v{AD2}, {L_SS}, v{TT}")
        a(f"v_add_u32 v{TT}, {L_ROW}, v{TT}")
        a(f"v_mov_b32 v{VT}, {L_LCNT}")
        a(f"v_mov_b32 v{VT+1}, 1")
        return npw + 1 + (0 if p1 else 4)

    def tail1():
        a("s_setprio 3")
        k = npw
        while k > 1:
            k //= 2
            for i in range(4 * k):
                a(f"v_add_f32 v{ACC+i}, v{ACC+i}, v{ACC+i+4*k}")
        a(f"ds_write_b128 v{A_SC}, {vr(ACC,4)}")
        if not p1:
            for i in range(8):
                a(f"v_add_f32 v{ST+i}, v{ST+i}, v{ST+8+i}")
            for i in range(4):
                a(f"v_add_f32 v{ST+i}, v{ST+i}, v{ST+4+i}")
            a(f"ds_write_b128 v{A_SC}, {vr(ST,4)} offset:{L_SS-L_SC}")
        a("s_mov_b64 exec, 1")
        a("s_waitcnt lgkmcnt(0)")
        a(f"ds_add_u32 v{VT}, v{VT+1}")
        a(f"{P}_ls:")
        a(f"ds_read_b32 v{VT+2}, v{VT}")
        a("s_waitcnt lgkmcnt(0)")
        a(f"v_readfirstlane_b32 s3, v{VT+2}")
        a(f"s_cmp_lt_u32 s3, {4 if p1 else 8}")
        a(f"s_cbranch_scc1 {P}_ls")
        a("s_mov_b64 exec, -1")

    def tail2():
        if not p1:
            a(f"ds_read2st64_b64 {vr(ST,4)}, v{AD2} offset0:0 offset1:2")
            a(f"ds_read2st64_b64 {vr(ST+4,4)}, v{AD2} offset0:4 offset1:6")
        a(f"ds_read2st64_b32 {vr(ACC,2)}, v{TB} offset0:0 offset1:4")
        a(f"ds_read2st64_b32 {vr(ACC+2,2)}, v{TB} offset0:8 offset1:12")
        if p1:
            a(f"ds_write_b32 v{AD}, v{ST}")
            a(f"ds_write_b32 v{AD}, v{ST+1} offset:{L_NM-L_RS}")
            a(f"ds_write_b64 v{TT}, {vr(ST,2)}")
        else:
            a(f"v_lshlrev_b32 v{WF}, 16, v{WF}")
            a(f"ds_write_b32 v{AD}, v{WF} offset:{L_B1-L_RS}")
        a("s_waitcnt lgkmcnt(0)")
        a(f"v_add_f32 v{ACC}, v{ACC}, v{ACC+1}")
        a(f"v_add_f32 v{ACC+2}, v{ACC+2}, v{ACC+3}")
        a(f"v_add_f32 v{ACC}, v{ACC}, v{ACC+2}")
        a(f"ds_write_b32 v{AD}, v{ACC} offset:{L_CS-L_RS}")
        if not p1:
            for i in range(4):
                a(f"v_add_f32 v{ST+i}, v{ST+i}, v{ST+4+i}")
            a(f"v_add_f32 v{ST}, v{ST}, v{ST+2}")
            a(f"v_add_f32 v{ST+1}, v{ST+1}, v{ST+3}")
            a(f"v_mul_f32 v{ST}, {hexf(1/1024)}, v{ST}")
            a(f"v_mul_f32 v{ST+1}, {hexf(1/1024)}, v{ST+1}")
            a(f"v_fma_f32 v{ST+1}, -v{ST}, v{ST}, v{ST+1}")
            a(f"v_max_f32 v{ST+1}, 0, v{ST+1}")
            ln_finish(a, ST, ST + 1, ST + 2)
            a(f"ds_write_b64 v{TT}, {vr(ST+2,2)}")
        a("s_waitcnt lgkmcnt(0)")
        a(f"s_setprio {OPT['prio']}")

    fill = {1: f1, 3: f3, 5: f5, 11: f_poll}
    post = {13: post_check}
    pre = {}
    nowarm = {0, 1}
    if nstg == 2:
        fill[2] = f2
    if p1 and OPT["hrot"]:
        def cond(r, reg, val, body):
            LAB[0] += 1
            r(f"s_cmp_lg_u32 s{reg}, {val}")
            r(f"s_cbranch_scc1 CD{LAB[0]}")
            lab = LAB[0]
            body(r)
            r(f"CD{lab}:")

        def flat(f):
            def body(r):
                q = Rec()
                f(q)
                for grp in q.g:
                    for t in grp:
                        r(t)
            return body

        a(f"{P}_hl:")
        r = Rec()
        r.begin()
        cond(r, 78, 0, lambda q: cs_reads(q, AD))
        r.end()
        issue(a, both, fill=r.g)
        a("s_bitcmp1_b32 s79, s77")
        a(f"s_cbranch_scc0 {P}_hs")
        cond(a, 77, 0, lambda q: q(f"ds_read_b128 {vr(ST,4)}, v{TB}"))
        a("s_waitcnt lgkmcnt(0)")

        def mf(q):
            q("s_setprio 3")
            cs_mfma(q)
            q(f"s_setprio {OPT['prio']}")
        cond(a, 78, 0, mf)
        cond(a, 78, -1, flat(f3))

        def sig(k):
            def body(q):
                q("s_mov_b64 exec, 1")
                q(f"buffer_store_dwordx2 {vr(SG+2,2)}, v{SG+k}, s[84:87], 0 offen sc1")
                q("s_mov_b64 exec, -1")
            return body

        def p0st(q):
            q("s_mov_b64 exec, 1")
            q(f"buffer_store_dwordx4 {vr(ST,4)}, v{A_ST}, s[28:31], 0 offen sc1")
            q(f"global_load_dwordx2 v[{VT+2}:{VT+3}], v{VT}, s[{PDBG}:{PDBG+1}] sc1")
            q("s_mov_b64 exec, -1")
        cond(a, 77, 1, p0st)
        cond(a, 77, 3, lambda q: post3())
        cond(a, 78, -3, sig(0))
        cond(a, 77, 5, sig(4))
        a(f"{P}_hs:")
        a(f"s_waitcnt vmcnt({c})")
        a("s_barrier")
        a("s_sub_u32 s78, s78, 1")
        a("s_add_u32 s77, s77, 1")
        a("s_cmp_lt_u32 s77, 13")
        a(f"s_cbranch_scc1 {P}_hl")
        poll_loads(a, addrs, PA + 4)
        issue(a, both)
        a(f"s_waitcnt vmcnt({c})")
        a("s_barrier")

        def tail0h():
            post_check()
            return tail0()
        return tail0h, tail1, tail2
    fill[0] = f0
    i = 0
    if p1:
        post[3] = post3

    if not OPT["warm"]:
        nowarm = set()
    tag = 0
    special = set(fill) | set(post) | set(pre) | nowarm
    while i <= g.nst - 3:
        if i in special:
            if i in pre:
                pre[i]()
            r = Rec()
            LGK[0] = False
            x = fill[i](r) if i in fill else 0
            hot = any(t.startswith("v_") for grp in r.g for t in grp)
            if hot:
                a("s_setprio 3")
            issue(a, both, fill=r.g)
            if hot:
                a(f"s_setprio {OPT['prio']}")
            if i in post:
                post[i]()
            if i not in nowarm:
                warm(a, WARM["rate"])
            a(f"s_waitcnt vmcnt({c})" + (" lgkmcnt(0)" if LGK[0] else ""))
            a("s_barrier")
            i += 1
        else:
            k = i
            while k <= g.nst - 3 and k not in special:
                k += 1
            loop(f"t{tag}", k - i)
            tag += 1
            i = k
    return tail0, tail1, tail2


def code_touch(a, lab0, lab1, vt, vo, always=False):
    if not OPT["ctouch"]:
        return
    LAB[0] += 1
    L = f"CT{LAB[0]}"
    a("s_getpc_b64 s[34:35]")
    a(f"{L}:")
    a(f"s_add_u32 s34, s34, {lab0}-{L}")
    a(f"s_addc_u32 s35, s35, ({lab0}-{L})>>32")
    a("s_lshl_b32 s3, s6, 7")
    a(f"v_lshlrev_b32 v{vo}, 9, v1")
    a(f"v_add_u32 v{vo}, s3, v{vo}")
    a(f"v_cmp_gt_u32 vcc, {lab1}-{lab0}, v{vo}")
    a("s_mov_b64 exec, vcc")
    if not always:
        a(f"s_cbranch_execz {L}_e")
    a(f"global_load_dword v{vt}, v{vo}, s[34:35]")
    a(f"{L}_e:")
    a("s_mov_b64 exec, -1")


def gen_loader(a):
    a("LOADER:")
    a.hist = []
    a("s_sub_u32 s6, s6, 4")
    if OPT["prio"]:
        a(f"s_setprio {OPT['prio']}")
    a("v_lshrrev_b32 v2, 3, v1")
    a("v_and_b32 v3, 7, v1")
    vA, vBs = 8, [16, 24]
    srdB = [12, 16]
    regsB = [(36, 37, 38, 39, 46), (40, 41, 42, 43, 47)]
    regsA = (20, 21, 22, 23, 45, 97)
    SB = {p: (Stream4 if p == 4 else Stream)(PH[p], False, srdB[p & 1], vBs[p & 1], *regsB[p & 1]) for p in (1, 2, 3, 4)}

    def prepB(p):
        srd(a, SB[p].srd, *PH[p].B)
        ld_offsets_B(a, PH[p], SB[p].v)
        SB[p].init(a)

    ld_offsets_B(a, PH[1], SB[1].v)
    SB[1].init(a)
    SA1 = Stream(PH[1], True, 8, vA, *regsA)
    ld_offsets_A(a, PH[1], vA)
    SA1.init(a)
    a("s_waitcnt lgkmcnt(0)")
    srd(a, SB[1].srd, *PH[1].B)
    a("s_or_b32 s3, s2, s6")
    a("s_cmp_lg_u32 s3, 0")
    a("s_cbranch_scc1 LD_nopub")
    a("s_mov_b64 s[34:35], s[98:99]" if OPT["early"] else "s_memrealtime s[34:35]")
    a("v_mov_b32 v6, 0")
    a("s_waitcnt lgkmcnt(0)")
    a("s_or_b32 s34, s34, 1")
    a("v_mov_b32 v4, s34")
    a("v_mov_b32 v5, s35")
    a("s_mov_b64 exec, 1")
    a(f"global_store_dwordx2 v6, v[4:5], s[{PDBG}:{PDBG+1}] sc1")
    a("s_mov_b64 exec, -1")
    a("LD_nopub:")
    stamp(a, "l", "start")
    a("s_lshl_b32 s3, s2, 2")
    a("s_add_u32 s3, s3, s6")
    a("s_mul_i32 s3, s3, 7168")
    a(f"s_add_u32 s88, s{PW2}, s3")
    a(f"s_addc_u32 s89, s{PW2+1}, 0")
    a(f"s_add_u32 s32, s{PW1}, s3")
    a(f"s_addc_u32 s33, s{PW1+1}, 0")
    for p in (1, 2, 3, 4):
        g = PH[p]
        P = f"LD{p}"
        m, j = g.mj
        SA = (Stream4 if p == 4 else Stream)(g, True, 8, vA, *regsA)
        POLLW[0] = 32 if p == 4 else 16
        srd(a, 8, *g.A)
        if p > 1:
            ld_offsets_A(a, g, vA)
            SA.init(a)
        nBq = g.nB // 4
        nAq = (g.nA + 3) // 4
        if p > 1:
            a(f"s_lshl_b32 s3, s{m}, 11")
            a(f"s_add_u32 s3, s3, {WS_FD + (p-1)*32768}")
            a("s_mov_b32 s83, s3")
            a(f"v_mov_b32 v{PF+4}, {L_RDY + 4*(p-1)}")
            a(f"v_lshlrev_b32 v{PF}, 7, v1")
            a(f"v_add_u32 v{PF}, s3, v{PF}")
            if p == 4:
                a(f"v_add_u32 v{PF+1}, {(-3*32768 - 2048) & 0xffffffff}, v{PF}")
                a("v_cmp_gt_u32 vcc, 16, v1")
                a(f"v_cndmask_b32 v{PF}, v{PF+1}, v{PF}, vcc")
            a(f"s_mov_b64 s[{RDY}:{RDY+1}], 0")
            a(f"s_mov_b32 s{TMO}, 0x40000")
            if p == 2:
                prepB(p + 1)
            if p == 3:
                srd(a, SB[4].srd, *PH[4].B)
                ld_offsets_B(a, PH[4], SB[4].v)
                fold_setup(a, g)
            stamp(a, "l", f"p{p}_prepoll")
        variants = [(nAq, "")]
        if g.nA % 4:
            variants = [(nAq, "x"), (nAq - 1, "y")]
            a(f"s_cmp_ge_u32 s6, {g.nA % 4}")
            a(f"s_cbranch_scc1 {P}_y")
        for (na, sfx) in variants:
            if sfx == "y":
                a(f"{P}_y:")
            c = na + nBq
            WARM["phase"], WARM["rate"] = p, OPT[f"wr{p}"] if p < 4 else 0
            if sfx == "x":
                WARM["save"] = list(WARM["left"])
            if sfx == "y":
                WARM["left"] = list(WARM["save"])
            both = [(SB[p], nBq), (SA, na)]
            if p == 1:
                issue(a, both, OPT["nt1"] > 0)
                prepB(2)
                fold_setup(a, g)
                issue(a, both, mid=5)
            else:
                issue(a, [(SA, na)])
                stamp(a, "l", f"p{p}_A0")
                SA.need(a, f"{P}_x1")
                a("s_waitcnt vmcnt(0)")
                a("s_barrier")
                issue(a, [(SA, na)])
                a(f"s_branch {P}_x2")
                a(f"{P}_x1:")
                issue(a, [(SA, na)], ready=False, mid=min(na, 5))
            if p > 1:
                a(f"{P}_x2:")

            def loop(tag, cnt):
                a(f"s_mov_b32 s44, {cnt}")
                a(f"{P}_l{tag}{sfx}:")
                issue(a, both)
                warm(a, WARM["rate"], cnt)
                a(f"s_waitcnt vmcnt({c})")
                a("s_barrier")
                a("s_sub_u32 s44, s44, 1")
                a("s_cmp_lg_u32 s44, 0")
                a(f"s_cbranch_scc1 {P}_l{tag}{sfx}")

            if p in (2, 4):
                loop("a", g.nst - 2)
                tails = (lambda: None, lambda: None, lambda: None)
            else:
                tails = fold_body(a, g, both, c, loop, sfx)
            if p < 4:
                nb2 = PH[p + 1].nB // 4
                ng = tails[0]() or 0
                if p == 3:
                    SB[4].init(a)
                issue(a, [(SB[p + 1], nb2)])
                a(f"s_waitcnt vmcnt({nb2 + ng})")
                a("s_barrier")
                if ng:
                    a(f"s_waitcnt vmcnt({nb2})")
                tails[1]()
                tails[2]()
                code_touch(a, f"CT_e{p}", f"CT_e{p+1}", 48, 49)
                code_touch(a, f"LD{p}_e", f"LD{p+1}_e", 50, 49)
                a("s_barrier")
                issue(a, [(SB[p + 1], nb2)])
                if p == 1 and OPT["touch1"] and OPT["warm"] and WARM["left"][0]:
                    a(f"v_lshlrev_b32 v{TT}, 7, v1")
                    a(f"s_mov_b64 exec, {hex((1 << WARM['left'][0]) - 1)}")
                    a(f"global_load_dword v{TB}, v{TT}, s[32:33]")
                    a("s_mov_b64 exec, -1")
                if p == 3 and OPT["prewx"]:
                    for gi in range(6):
                        a(f"global_store_dwordx4 v{A_XB+(gi>>2)}, {vr(ZERO,4)}, s[{PWS}:{PWS+1}] offset:{(gi&3)*1024} sc1")
                WARM["phase"] = 2
                warm(a, OPT["wg"])
            else:
                a("s_waitcnt vmcnt(0)")
                a("s_barrier")
                code_touch(a, "CT_e4", "KEND", 48, 49)
                a("s_barrier")
            if sfx == "x":
                a(f"s_branch {P}_e")
        a(f"{P}_e:")
    print("warm lines not covered:", WARM["left"])
    stamp(a, "l", "end")
    stamp_flush(a, 4)
    a("s_endpgm")


def gen_mainloop(a, g, P):
    a(f"s_mov_b32 s42, {g.slot0}")
    a(f"s_mov_b32 s46, {(-2*SLOT) & 0xffffffff}")
    a(f"s_mov_b32 s47, {SLOT}")
    a(f"s_mov_b32 s43, {g.nst}")
    a("s_waitcnt lgkmcnt(0)")
    a("s_barrier")
    stamp(a, "c", f"p{g.n}_B0")
    rd0 = g.reads(0, 0)
    if OPT["peel"]:
        from asmx import Ins
        fl = g.reads(1, 1) + ["s_cmp_eq_u32 s42, 2", "s_cselect_b32 s44, s46, s47"] + [f"v_add_u32 v{v}, s44, v{v}" for v in g.adv]
        mf0 = g.mfmas(0)
        wr = [Ins(x).w for x in rd0]
        head = min(len(rd0), 10)
        for x in rd0[:head]:
            a(x)
        pending = rd0[head:] + fl
        issued, have = head, -1
        per = -(-len(pending) // len(mf0))
        nrd = len(rd0) + len(g.reads(1, 1))
        for mfi in mf0:
            k = max(i for i, w in enumerate(wr) if w & Ins(mfi).ra)
            while k >= issued:
                a(pending.pop(0))
                issued += 1
            if k > have:
                a(f"s_waitcnt lgkmcnt({min(min(issued, nrd) - 1 - k, 14)})")
                have = k
            a(mfi)
            for _ in range(per):
                if pending:
                    a(pending.pop(0))
                    issued += 1
        for x in pending:
            a(x)
        if OPT["stamp"] == 2:
            a("s_memtime s[98:99]")
        a(f"s_branch {P}_h1")
    else:
        for r in rd0:
            a(r)
    a(f"{P}_loop:")
    U = 1 if OPT["stamp"] == 2 and not OPT["unr"] else max(1, OPT["unr"])
    dn = len(g.reads(0, 0)) if (OPT["rd2"] == 2 or (OPT["rd2"] and g.n in (2, 4))) else 0
    for k in range(U):
        sal = ["s_cmp_eq_u32 s42, 2", "s_cselect_b32 s44, s46, s47"]
        sal2 = ["s_add_u32 s42, s42, 1", "s_cmp_eq_u32 s42, 3", "s_cselect_b32 s42, 0, s42", "s_sub_u32 s43, s43, 1"]
        if k == U - 1:
            sal2 += ["s_cmp_lg_u32 s43, 0"]
        a("s_waitcnt lgkmcnt(0)")
        if OPT["stamp"] == 2:
            base = {1: 0, 2: 17, 3: 26, 4: 0}[g.n]
            a(f"s_add_u32 m0, s43, {base}")
            a(f"v_writelane_b32 v{253 if g.n == 4 else 252}, s98, m0")
            a("s_memtime s[98:99]")
        interleave(a, g.mfmas(0), g.reads(1, 1) + sal + [f"v_add_u32 v{v}, s44, v{v}" for v in g.adv], dense=dn)
        if k == 0:
            a(f"{P}_h1:")
        a("s_waitcnt lgkmcnt(0)")
        interleave(a, g.mfmas(1), g.reads(0, 0) + sal2, first=["s_barrier"], dense=dn)
    a(f"s_cbranch_scc1 {P}_loop")
    if P != "P1a":
        a(f"CT_e{g.n}:")
    a("s_waitcnt lgkmcnt(0)")
    if OPT["stamp"] == 2:
        a(f"v_writelane_b32 v{253 if g.n == 4 else 252}, s98, {base}")
    stamp(a, "c", f"p{g.n}_loopend")


L15, GQ = 2, 3


def b_addr128(a, V, units, sbase):
    t = V.alloc()
    f = V.alloc()
    base = V.alloc()
    a(f"v_bfe_u32 v{f}, v{L15}, 3, 1")
    a(f"v_and_b32 v{t}, 1, v{GQ}")
    a(f"v_lshl_or_b32 v{f}, v{t}, 1, v{f}")
    a(f"v_lshrrev_b32 v{t}, 2, v{L15}")
    a(f"v_lshl_add_u32 v{t}, v{GQ}, 3, v{t}")
    a(f"v_lshlrev_b32 v{base}, 7, v{t}")
    a(f"v_and_b32 v{t}, 3, v{L15}")
    a(f"v_lshl_add_u32 v{base}, v{t}, 3, v{base}")
    a(f"v_add_u32 v{base}, s{sbase}, v{base}")
    out = []
    for u in units:
        v0 = V.alloc()
        a(f"v_xor_b32 v{t}, {u}, v{f}")
        a(f"v_lshl_add_u32 v{v0}, v{t}, 5, v{base}")
        out.append(v0)
    return out


def zero_acc(a, acc, n):
    for i in range(n):
        a(f"v_mov_b32 v{acc+i}, 0")


def pair_post(a, tag, vt):
    a("s_lshl_b32 s3, s6, 2")
    a(f"s_add_u32 s3, s3, {L_PAIR}")
    a(f"v_mov_b32 v{vt}, s3")
    a(f"v_mov_b32 v{vt+1}, {tag}")
    a("s_waitcnt lgkmcnt(0)")
    a(f"ds_write_b32 v{vt}, v{vt+1}")


def pair_wait(a, lab, tag, xor, vt):
    a(f"v_xor_b32 v{vt}, {xor*4}, v{vt}")
    a(f"{lab}_ps:")
    a(f"ds_read_b32 v{vt+1}, v{vt}")
    a("s_waitcnt lgkmcnt(0)")
    a(f"v_readfirstlane_b32 s3, v{vt+1}")
    a(f"s_cmp_lg_u32 s3, {tag}")
    a(f"s_cbranch_scc1 {lab}_ps")


def finish_phase(a, p, g, vt):
    m, j = g.mj
    a(f"s_lshl_b32 s7, s{m}, 11")
    a(f"s_lshl_b32 s3, s{j}, 7")
    a("s_add_u32 s7, s7, s3")
    a(f"s_add_u32 s7, s7, {WS_FD + p*32768}")
    a(f"v_mov_b32 v{vt}, {L_CNT}")
    a(f"v_mov_b32 v{vt+1}, 1")
    a(f"v_mov_b32 v{vt+2}, s{NONCE}")
    a(f"v_mov_b32 v{vt+3}, s{NONCE+1}")
    a("s_mov_b64 exec, 1")
    a("s_waitcnt vmcnt(0)")
    a(f"ds_add_rtn_u32 v{vt+1}, v{vt}, v{vt+1}")
    a(f"v_mov_b32 v{vt}, s7")
    a("s_waitcnt lgkmcnt(0)")
    a(f"v_readfirstlane_b32 s3, v{vt+1}")
    a(f"s_cmp_lg_u32 s3, {4*p-1}")
    a(f"s_cbranch_scc1 FIN{p}")
    a(f"global_store_dwordx2 v{vt}, v[{vt+2}:{vt+3}], s[{PWS}:{PWS+1}] sc1")
    a(f"FIN{p}:")
    a("s_mov_b64 exec, -1")
    stamp(a, "c", f"p{p}_done")


def frag_lane_off(a, d, t):
    a(f"v_and_b32 v{t}, 1, v{GQ}")
    a(f"v_lshlrev_b32 v{d}, 9, v{t}")
    a(f"v_lshrrev_b32 v{t}, 1, v{GQ}")
    a(f"v_lshl_add_u32 v{d}, v{t}, 8, v{d}")
    a(f"v_lshl_add_u32 v{d}, v{L15}, 4, v{d}")


def gen_p0(a):
    g = PH[1]
    m, j = g.mj
    a(f"s_lshl_b32 s3, s{m}, 7")
    a(f"s_lshl_b32 s7, s{j}, 3")
    a("s_add_u32 s3, s3, s7")
    a("s_lshl_b32 s7, s6, 1")
    a("s_add_u32 s34, s3, s7")
    a("s_lshl_b32 s3, s34, 11")
    a("v_lshlrev_b32 v4, 4, v1")
    a("s_waitcnt lgkmcnt(0)")
    stamp(a, "c", "start")
    srd(a, 8, PX, 0, S * D * 2)
    for rr in range(2):
        for hh in range(2):
            a(f"buffer_load_dwordx4 v[{24+rr*8+hh*4}:{27+rr*8+hh*4}], v4, s[8:11], s3 offen offset:{rr*2048+hh*1024}")
    a("s_lshl_b32 s3, s6, 2")
    a(f"s_add_u32 s3, s3, {L_PAIR}")
    a("v_mov_b32 v5, s3")
    a("v_mov_b32 v6, 0")
    a("ds_write_b32 v5, v6")
    a(f"v_mov_b32 v5, {L_CNT}")
    a("ds_write_b32 v5, v6")
    a(f"ds_write_b32 v5, v6 offset:{L_LCNT-L_CNT}")
    a(f"ds_write_b32 v5, v6 offset:{L_CNT2-L_CNT}")
    for i in range(1, 4):
        a(f"ds_write_b32 v5, v6 offset:{L_RDY-L_CNT+4*i}")


def gen_p0t(a):
    code_touch(a, "CT_s", "CT_e1", 240, 51, True)
    code_touch(a, "LOADER", "LD1_e", 241, 51, True)
    a("CT_s:")


def gen_p0b(a):
    a(f"s_waitcnt vmcnt({2 if OPT['ctouch'] else 0})")
    a("v_mov_b32 v48, 0x3f803f80")
    R = [40, 41, 42, 43]
    for i in range(8):
        for rr in range(2):
            x = 24 + rr * 8 + i
            a(f"v_dot2_f32_bf16 v{R[2*rr]}, v{x}, v48, {'0' if i == 0 else 'v%d' % R[2*rr]}")
            a(f"v_dot2_f32_bf16 v{R[2*rr+1]}, v{x}, v{x}, {'0' if i == 0 else 'v%d' % R[2*rr+1]}")
    a("s_nop 2")
    wave_sum_multi(a, R, [44, 45, 46, 47])
    for rr in range(2):
        a(f"v_mul_f32 v{R[2*rr]}, {hexf(1.0/1024)}, v{R[2*rr]}")
        a(f"v_mul_f32 v{R[2*rr+1]}, {hexf(1.0/1024)}, v{R[2*rr+1]}")
        a(f"v_fma_f32 v{R[2*rr+1]}, -v{R[2*rr]}, v{R[2*rr]}, v{R[2*rr+1]}")
        a(f"v_max_f32 v{R[2*rr+1]}, 0, v{R[2*rr+1]}")
    for rr in range(2):
        ln_finish(a, R[2 * rr], R[2 * rr + 1], 44 + 2 * rr)
    a("s_lshl_b32 s3, s6, 4")
    a(f"s_add_u32 s3, s3, {L_P0}")
    a("v_mov_b32 v48, s3")
    a("ds_write_b128 v48, v[44:47]")
    if OPT["prew"]:
        for p in (1, 2, 3):
            m, j = PH[p].mj
            a(f"s_lshl_b32 s7, s{m}, 11")
            a(f"s_lshl_b32 s3, s{j}, 7")
            a("s_add_u32 s7, s7, s3")
            a(f"s_add_u32 s{36+p}, s7, {WS_FD + p*32768}")
        a(f"s_sub_u32 s40, s39, {3*32768}")
        a("s_cmp_eq_u32 s6, 0")
        a("s_cselect_b32 s37, s40, s37")
        a("s_cmp_eq_u32 s6, 2")
        a("s_cselect_b32 s37, s38, s37")
        a("s_cmp_eq_u32 s6, 3")
        a("s_cselect_b32 s37, s39, s37")
        a("v_lshlrev_b32 v54, 4, v1")
        a("v_add_u32 v54, s37, v54")
        for i in range(4):
            a(f"v_mov_b32 v{56+i}, 0")
        a("s_mov_b64 exec, 0xff")
        a(f"global_store_dwordx4 v54, v[56:59], s[{PWS}:{PWS+1}] sc1")
        a("s_mov_b64 exec, -1")
    stamp(a, "c", "p0_done")


def gen_p1(a):
    g = PH[1]
    m, j = g.mj
    g2 = PH[2]
    V = Regs("v", 68, RES)
    srd(a, 20, PWS, WS_O, S * D * 2)
    a("s_and_b32 s34, s6, 1")
    a("s_lshr_b32 s35, s6, 1")
    a("s_lshl_b32 s36, s34, 13")
    t = 4
    vA, vAh = [5, 6], [7, 8]
    for h in range(2):
        a(f"v_lshrrev_b32 v{t}, 1, v{L15}")
        a(f"v_xor_b32 v{t}, v{t}, v{GQ}")
        if h:
            a(f"v_xor_b32 v{t}, 4, v{t}")
        a(f"v_lshlrev_b32 v{t}, 4, v{t}")
        a(f"v_lshl_add_u32 v{vAh[h]}, v{L15}, 7, v{t}")
        if g.slot0:
            a(f"v_add_u32 v{vAh[h]}, {g.slot0*SLOT}, v{vAh[h]}")
        a(f"v_add_u32 v{vA[h]}, s36, v{vAh[h]}")
        a(f"v_add_u32 v{vA[h]}, 2048, v{vA[h]}")
    a(f"s_mov_b32 s36, {g.Boff + g.slot0*SLOT}")
    a("s_lshl_b32 s37, s35, 1")
    a("s_add_u32 s38, s37, 1")
    V2 = Regs("v", 12, 24)
    vB = b_addr128(a, V2, ["s37", "s38"], 36)
    acc = V.alloc(104, 4)
    W = [V.alloc(24, 4), 0]
    X = [V.alloc(20, 4), 0]
    W[1], X[1] = 24, 48
    accr = lambda t, u: acc + (t * 4 + u) * 4
    acch = lambda c: acc + 96 + c * 4
    zero_acc(a, acc, 104)
    gen_p0b(a)

    def reads(h, b):
        r = []
        for u in range(4):
            r.append(f"ds_read_b128 {vr(X[b]+4*u,4)}, v{vA[h]} offset:{u*2048}")
        for t in range(6):
            for jj in range(2):
                r.append(f"ds_read_b64_tr_b16 {vr(W[b]+4*t+2*jj,2)}, v{vB[t&1]} offset:{(t>>1)*8192+jj*512+h*4096}")
            if t == 1:
                r.append(f"ds_read_b128 {vr(X[b]+16,4)}, v{vAh[h]}")
        return r

    def mk_mfmas(rsel):
        def mfmas(b):
            ml = []
            for t in range(6):
                for u in (range(4) if t % 2 == 0 else (3, 2, 1, 0)):
                    w, x, d = vr(W[b] + 4 * t, 4), vr(X[b] + 4 * u, 4), vr(accr(t, u), 4)
                    ml.append(f"v_mfma_f32_16x16x32_bf16 {d}, {w}, {x}, {d}" if t < 4 else
                              f"v_mfma_f32_16x16x32_bf16 {d}, {x}, {w}, {d}")
                if (t >> 1) == 1 + rsel:
                    w, x, d = vr(W[b] + 4 * t, 4), vr(X[b] + 16, 4), vr(acch(t & 1), 4)
                    ml.append(f"v_mfma_f32_16x16x32_bf16 {d}, {w}, {x}, {d}" if t < 4 else
                              f"v_mfma_f32_16x16x32_bf16 {d}, {x}, {w}, {d}")
            return ml
        return mfmas

    g.reads = reads
    g.adv = vA + vAh + vB
    a("s_cmp_eq_u32 s34, 1")
    a("s_cbranch_scc1 P1_r1")
    g.mfmas = mk_mfmas(0)
    gen_mainloop(a, g, "P1a")
    a("s_branch P1_epi")
    a("P1_r1:")
    g.mfmas = mk_mfmas(1)
    gen_mainloop(a, g, "P1b")
    a("P1_epi:")
    RP = 24
    CSq = 36
    CSv = 34
    R4 = W[0]
    N4 = W[0] + 20
    assert X[0] == W[0] + 24
    T = 52
    a("s_lshl_b32 s36, s34, 9")
    a(f"s_add_u32 s36, s36, {L_ROW + 128}")
    a(f"v_lshlrev_b32 v4, 3, v{L15}")
    a(f"v_add_u32 v5, {L_ROW}, v4")
    a(f"v_add_u32 v4, s36, v4")
    a(f"ds_read_b64 {vr(RP+8,2)}, v5")
    a(f"v_mov_b32 v16, {L_NONCE}")
    a("ds_read_b64 v[16:17], v16")
    a(f"v_lshlrev_b32 v6, 4, v{GQ}")
    a("s_lshl_b32 s36, s35, 7")
    a(f"s_add_u32 s36, s36, {L_CS}")
    a(f"v_add_u32 v7, s36, v6")
    for c in range(2):
        a(f"ds_read_b128 {vr(CSq+8+4*c,4)}, v7 offset:{256+64*c}")
    a(f"v_lshlrev_b32 v8, 2, v{L15}")
    a(f"v_add_u32 v8, s36, v8")
    a(f"ds_read2_b32 {vr(CSv,2)}, v8 offset0:128 offset1:144")
    a(f"v_add_u32 v9, {L_RS}, v6")
    a(f"ds_read_b128 {vr(R4+16,4)}, v9")
    a(f"ds_read_b128 {vr(N4+16,4)}, v9 offset:{L_NM-L_RS}")
    for u in (3, 2, 1, 0):
        a(f"ds_read_b64 {vr(RP+2*u,2)}, v4 offset:{u*128}")
    a("s_lshl_b32 s36, s34, 8")
    a(f"v_add_u32 v9, s36, v9")
    for u in (3, 2, 1, 0):
        a(f"ds_read_b128 {vr(R4+4*u,4)}, v9 offset:{64+64*u}")
        a(f"ds_read_b128 {vr(N4+4*u,4)}, v9 offset:{64+64*u+L_NM-L_RS}")
    for c in range(2):
        a(f"ds_read_b128 {vr(CSq+4*c,4)}, v7 offset:{64*c}")
    m2, j2 = g2.mj
    a(f"s_lshl_b32 s36, s{m2}, 7")
    a("s_lshl_b32 s37, s34, 6")
    a("s_add_u32 s36, s36, s37")
    a("s_lshl_b32 s37, s35, 5")
    a("s_add_u32 s36, s36, s37")
    a(f"v_add_u32 v10, s36, v{L15}")
    a("v_lshlrev_b32 v10, 11, v10")
    a(f"v_lshl_add_u32 v10, v{GQ}, 3, v10")
    a(f"s_lshl_b32 s36, s{j2}, 7")
    a("s_add_u32 s37, s36, 32768")
    for uu in range(2):
        for t_ in range(4):
            a(f"buffer_load_dwordx2 {vr(RES+8*uu+2*t_,2)}, v10, s[8:11], s{36+uu} offen offset:{32*t_}")

    def fold_qk(d, cs, rp):
        for i in (0, 2):
            a(f"v_pk_mul_f32 {vr(T+i,2)}, {vr(cs+i,2)}, {vr(rp,2)} op_sel:[0,1] op_sel_hi:[1,1]")
        for i in (0, 2):
            a(f"v_pk_fma_f32 {vr(d+i,2)}, {vr(d+i,2)}, {vr(rp,2)}, {vr(T+i,2)} op_sel:[0,0,0] op_sel_hi:[1,0,1]")

    def fold_v(d, c, ui):
        for i in (0, 2):
            a(f"v_pk_mul_f32 {vr(T+i,2)}, {vr(N4+4*ui+i,2)}, {vr(CSv,2)} op_sel:[0,{c}] op_sel_hi:[1,{c}]")
        for i in (0, 2):
            a(f"v_pk_fma_f32 {vr(d+i,2)}, {vr(d+i,2)}, {vr(R4+4*ui+i,2)}, {vr(T+i,2)}")

    def pack(dst, d):
        a(f"v_cvt_pk_bf16_f32 v{dst}, v{d}, v{d+1}")
        a(f"v_cvt_pk_bf16_f32 v{dst+1}, v{d+2}, v{d+3}")

    ex, PV = 12, 14
    a(f"v_lshlrev_b32 v{ex}, 4, v1")
    a("s_mul_i32 s36, s35, 3072")
    a(f"s_add_u32 s36, s36, {g.exch}")
    a(f"v_add_u32 v{ex}, s36, v{ex}")
    Hp = 60
    a("s_waitcnt lgkmcnt(0)")
    a(f"v_readfirstlane_b32 s{NONCE}, v16")
    a(f"v_readfirstlane_b32 s{NONCE+1}, v17")
    a("s_cmp_eq_u32 s34, 1")
    a("s_cbranch_scc1 P1_ex1")
    for c in range(2):
        fold_qk(accr(2 + c, 3), CSq + 8 + 4 * c, RP + 6)
        fold_v(accr(4 + c, 3), c, 3)
    for c in range(2):
        pack(Hp + 2 * c, accr(2 + c, 3))
        pack(Hp + 4 + 2 * c, accr(4 + c, 3))
    a(f"ds_write_b128 v{ex}, {vr(Hp,4)}")
    a(f"ds_write_b128 v{ex}, {vr(Hp+4,4)} offset:1024")
    pair_post(a, 1, PV)
    for c in range(2):
        fold_qk(acch(c), CSq + 8 + 4 * c, RP + 8)
    a("s_branch P1_ex2")
    a("P1_ex1:")
    for c in range(2):
        fold_v(acch(c), c, 4)
    for c in range(2):
        pack(Hp + 2 * c, acch(c))
    a(f"ds_write_b128 v{ex}, {vr(Hp,4)} offset:2048")
    pair_post(a, 1, PV)
    for c in range(2):
        fold_qk(accr(2 + c, 3), CSq + 8 + 4 * c, RP + 6)
        fold_v(accr(4 + c, 3), c, 3)
    a("P1_ex2:")
    for u in range(3):
        for c in range(2):
            fold_qk(accr(2 + c, u), CSq + 8 + 4 * c, RP + 2 * u)
            fold_v(accr(4 + c, u), c, u)
    a(f"s_mov_b32 s36, {hexf(32 ** -0.5 * math.log2(math.e))}")
    a("s_mov_b32 s37, s36")
    for u in range(4):
        a(f"v_pk_mul_f32 {vr(RP+2*u,2)}, {vr(RP+2*u,2)}, s[36:37]")
    for u in range(4):
        for c in range(2):
            fold_qk(accr(c, u), CSq + 4 * c, RP + 2 * u)
    Kf, Vp, Qf = W[0], [W[0] + 20, W[0] + 30], 24
    for u in range(4):
        for c in range(2):
            pack(Kf + 4 * (u + 1) + 2 * c, accr(2 + c, u))
            pack(Vp[c] + 2 * (u + 1), accr(4 + c, u))
            pack(Qf + 4 * u + 2 * c, accr(c, u))
    a("s_cmp_eq_u32 s34, 1")
    a("s_cbranch_scc1 P1_ex3")
    for c in range(2):
        pack(Kf + 2 * c, acch(c))
    pair_wait(a, "P1a", 1, 1, PV)
    for c in range(2):
        a(f"ds_read_b64 {vr(Vp[c],2)}, v{ex} offset:{2048+8*c}")
    a("s_branch P1_ex4")
    a("P1_ex3:")
    pair_wait(a, "P1b", 1, 1, PV)
    a(f"ds_read_b128 {vr(Kf,4)}, v{ex}")
    for c in range(2):
        a(f"ds_read_b64 {vr(Vp[c],2)}, v{ex} offset:{1024+8*c}")
    a("P1_ex4:")
    t0, t1 = acc, acc + 1
    MA, MB = acc + 2, acc + 4
    a(f"v_and_b32 v{t0}, 1, v{L15}")
    a(f"v_cmp_eq_u32 s[76:77], 1, v{t0}")
    a(f"v_lshl_add_u32 v{t0}, v{GQ}, 2, v{t0}")
    a(f"v_cmp_le_u32 s[78:79], v{t0}, v{L15}")
    a(f"v_add_u32 v{t0}, 2, v{t0}")
    a(f"v_cmp_le_u32 s[80:81], v{t0}, v{L15}")
    a(f"v_mov_b32 v{t0}, 0xffff")
    a(f"v_mov_b32 v{t1}, 0xffff0000")
    a(f"v_cndmask_b32 v{t0}, v{t0}, v{t1}, s[76:77]")
    a(f"v_cndmask_b32 v{MA}, v{t0}, 0, s[78:79]")
    a(f"v_cndmask_b32 v{MA+1}, 0, v{t0}, s[78:79]")
    a(f"v_cndmask_b32 v{MB}, v{t0}, 0, s[80:81]")
    a(f"v_cndmask_b32 v{MB+1}, 0, v{t0}, s[80:81]")
    a(f"s_or_b32 s36, s{m}, s34")
    a("s_cmp_eq_u32 s36, 0")
    a("s_cselect_b64 s[82:83], s[78:79], -1")
    a("s_cselect_b64 s[84:85], s[80:81], -1")
    vo = acc + 6
    frag_lane_off(a, vo, t0)
    a(f"s_lshl_b32 s36, s{m}, 3")
    a("s_lshl_b32 s37, s34, 2")
    a("s_add_u32 s36, s36, s37")
    a("s_lshl_b32 s36, s36, 5")
    a(f"s_lshl_b32 s37, s{j}, 1")
    a("s_add_u32 s36, s36, s37")
    a("s_add_u32 s36, s36, s35")
    a("s_lshl_b32 s36, s36, 10")
    a(f"v_add_u32 v{vo}, s36, v{vo}")
    NEG = acc + 7
    a(f"v_mov_b32 v{NEG}, 0xff800000")
    Sc = acc + 8
    for u in (1, 2, 3):
        for blk in range(2):
            a(f"v_mfma_f32_16x16x32_bf16 {vr(Sc+8*u+4*blk,4)}, {vr(Kf+4*(u+blk),4)}, {vr(Qf+4*u,4)}, 0")
    a("s_waitcnt lgkmcnt(0)")
    for blk in (1, 0):
        a(f"v_mfma_f32_16x16x32_bf16 {vr(Sc+4*blk,4)}, {vr(Kf+4*blk,4)}, {vr(Qf,4)}, 0")
    VA, VB_, MX, TM = acc + 40, acc + 44, acc + 48, acc + 52
    order = (1, 2, 3, 0)
    for u in order:
        s = Sc + 8 * u
        a(f"v_cndmask_b32 v{s}, v{s}, v{s+1}, s[76:77]")
        a(f"v_cndmask_b32 v{s+4}, v{s+4}, v{s+5}, s[76:77]")
        a(f"v_cndmask_b32 v{s+2}, v{s+2}, v{s+3}, s[76:77]")
        a(f"v_cndmask_b32 v{s+6}, v{s+6}, v{s+7}, s[76:77]")
        a(f"v_cndmask_b32 v{VA+u}, v{s}, v{s+4}, s[78:79]")
        a(f"v_cndmask_b32 v{VB_+u}, v{s+2}, v{s+6}, s[80:81]")
    a(f"v_cndmask_b32 v{VA}, v{NEG}, v{VA}, s[82:83]")
    a(f"v_cndmask_b32 v{VB_}, v{NEG}, v{VB_}, s[84:85]")
    for u in order:
        a(f"v_max_f32 v{MX+u}, v{VA+u}, v{VB_+u}")
    xrow_reduce_multi(a, "v_max_f32", [MX + u for u in order], [TM + u for u in order])
    for u in order:
        a(f"v_sub_f32 v{VA+u}, v{VA+u}, v{MX+u}")
        a(f"v_sub_f32 v{VB_+u}, v{VB_+u}, v{MX+u}")
    for u in order:
        a(f"v_exp_f32 v{VA+u}, v{VA+u}")
        a(f"v_exp_f32 v{VB_+u}, v{VB_+u}")
    for u in order:
        a(f"v_add_f32 v{MX+u}, v{VA+u}, v{VB_+u}")
    xrow_reduce_multi(a, "v_add_f32", [MX + u for u in order], [TM + u for u in order])
    for u in order:
        a(f"v_rcp_f32 v{MX+u}, v{MX+u}")
    for u in order:
        a(f"v_mul_f32 v{VA+u}, v{VA+u}, v{MX+u}")
        a(f"v_mul_f32 v{VB_+u}, v{VB_+u}, v{MX+u}")
    for u in order:
        a(f"v_cvt_pk_bf16_f32 v{VA+u}, v{VA+u}, v{VA+u}")
        a(f"v_cvt_pk_bf16_f32 v{VB_+u}, v{VB_+u}, v{VB_+u}")
    Pp, Om = acc + 56, acc + 72
    for u in order:
        a(f"v_and_b32 v{Pp+4*u}, v{VA+u}, v{MA}")
        a(f"v_and_b32 v{Pp+4*u+1}, v{VB_+u}, v{MB}")
        a(f"v_and_b32 v{Pp+4*u+2}, v{VA+u}, v{MA+1}")
        a(f"v_and_b32 v{Pp+4*u+3}, v{VB_+u}, v{MB+1}")
    for u in order:
        for c in range(2):
            a(f"v_mfma_f32_16x16x32_bf16 {vr(Om+8*u+4*c,4)}, {vr(Vp[c]+2*u,4)}, {vr(Pp+4*u,4)}, 0")
    for u in range(4):
        a(f"s_mov_b32 s{76+u}, {u*32768}")
    for u in order:
        o = Om + 8 * u
        p = Sc + 4 * u
        for i in range(4):
            a(f"v_cvt_pk_bf16_f32 v{p+i}, v{o+2*i}, v{o+2*i+1}")
    for u in order:
        p = Sc + 4 * u
        a(f"v_permlane16_swap_b32 v{p}, v{p+2}")
        a(f"v_permlane16_swap_b32 v{p+1}, v{p+3}")
        a(f"buffer_store_dwordx4 {vr(p,4)}, v{vo}, s[20:23], s{76+u} offen sc1")
    stamp(a, "c", "p1_stored")
    finish_phase(a, 1, g, acc + 40)


def gen_p24(a, which):
    g = PH[which]
    m, j = g.mj
    k2 = which == 2
    P = f"P{which}"
    V = Regs("v", 4, RES)
    if k2:
        srd(a, 16, PWS, WS_H, S * D * 2)
        srd(a, 24, PWS, WS_ST, 16 * S * 8)
    else:
        srd(a, 16, POUT, 0, S * D * 2)
    a("s_and_b32 s34, s6, 1")
    a("s_lshr_b32 s35, s6, 1")
    vA = [V.alloc(), V.alloc()]
    a("s_lshl_b32 s36, s34, 14")
    a("s_lshl_b32 s37, s35, 11")
    a("s_add_u32 s36, s36, s37")
    a(f"s_add_u32 s36, s36, {g.slot0*SLOT}")
    a(f"v_lshlrev_b32 v{vA[0]}, 4, v1")
    a(f"v_add_u32 v{vA[0]}, s36, v{vA[0]}")
    a("s_lshl_b32 s37, s35, 13")
    a(f"s_sub_u32 s38, 8192, s37")
    a(f"v_add_u32 v{vA[1]}, s38, v{vA[0]}")
    a(f"v_add_u32 v{vA[0]}, s37, v{vA[0]}")
    a("s_lshl_b32 s36, s35, 13")
    a(f"s_add_u32 s36, s36, {g.Boff + g.slot0*SLOT}")
    vB = b_addr128(a, V, [0, 1, 2, 3], 36)
    acc = V.alloc(64, 4)
    X = [V.alloc(16, 4) for _ in range(2)]
    W = [V.alloc(16, 4) for _ in range(2)]
    accr = lambda t, u: acc + (t * 4 + u) * 4
    vo, t0, vrow, ex, exr, PV = V.alloc(), V.alloc(), V.alloc(), V.alloc(), V.alloc(), V.alloc(2)
    a(f"s_lshl_b32 s36, s{m}, 7")
    a("s_lshl_b32 s37, s34, 6")
    a("s_add_u32 s36, s36, s37")
    a("s_lshl_b32 s37, s35, 5")
    a("s_add_u32 s36, s36, s37")
    if k2:
        a(f"v_add_u32 v{vrow}, s36, v{L15}")
        a(f"v_lshlrev_b32 v{vrow}, 3, v{vrow}")
        a(f"v_cmp_eq_u32 vcc, 0, v{GQ}")
        a(f"v_mov_b32 v{t0}, {BIG}")
        a(f"v_cndmask_b32 v{vrow}, v{t0}, v{vrow}, vcc")
        frag_lane_off(a, vo, t0)
        a("s_lshl_b32 s36, s36, 11")
        a(f"s_lshl_b32 s37, s{j}, 11")
        a("s_add_u32 s36, s36, s37")
        a(f"v_add_u32 v{vo}, s36, v{vo}")
    else:
        a(f"v_add_u32 v{vo}, s36, v{L15}")
        a(f"v_lshlrev_b32 v{vo}, 11, v{vo}")
        a(f"v_and_b32 v{t0}, 1, v{GQ}")
        a(f"v_lshl_add_u32 v{vo}, v{t0}, 5, v{vo}")
        a(f"v_lshrrev_b32 v{t0}, 1, v{GQ}")
        a(f"v_lshl_add_u32 v{vo}, v{t0}, 4, v{vo}")
        a(f"s_lshl_b32 s36, s{j}, 7")
        a(f"v_add_u32 v{vo}, s36, v{vo}")
    a("s_mov_b32 s45, 32768")
    a(f"v_lshlrev_b32 v{ex}, 4, v1")
    a("s_lshl_b32 s36, s6, 13")
    a(f"v_add_u32 v{ex}, s36, v{ex}")
    a(f"v_xor_b32 v{exr}, 16384, v{ex}")
    a(f"v_add_u32 v{ex}, {g.exch}, v{ex}")
    a(f"v_add_u32 v{exr}, {g.exch}, v{exr}")
    for t in range(4):
        for uu in range(2):
            d = accr(t, uu)
            for i in range(2):
                a(f"v_lshlrev_b32 v{d+2*i}, 16, v{RES+8*uu+2*t+i}")
                a(f"v_and_b32 v{d+2*i+1}, 0xffff0000, v{RES+8*uu+2*t+i}")
        if not k2:
            z = accr(t, 2)
            for i in range(2):
                a(f"v_lshlrev_b32 v{z+2*i}, 16, v{BIA+2*t+i}")
                a(f"v_and_b32 v{z+2*i+1}, 0xffff0000, v{BIA+2*t+i}")
            for uu in range(2):
                for i in (0, 2):
                    a(f"v_pk_add_f32 {vr(accr(t,uu)+i,2)}, {vr(accr(t,uu)+i,2)}, {vr(z+i,2)}")
        zero_acc(a, accr(t, 2), 8)

    def reads(h, b):
        r = []
        for u in range(4):
            r.append(f"ds_read_b128 {vr(X[b]+4*u,4)}, v{vA[u>>1]} offset:{(u&1)*4096+h*1024}")
        for t in range(4):
            for jj in range(2):
                r.append(f"ds_read_b64_tr_b16 {vr(W[b]+4*t+2*jj,2)}, v{vB[t]} offset:{jj*512+h*4096}")
        return r

    def mfmas(b):
        ml = []
        for t in range(4):
            for u in ((2, 3, 0, 1) if t % 2 == 0 else (1, 0, 3, 2)):
                w, x, d = vr(W[b] + 4 * t, 4), vr(X[b] + 4 * u, 4), vr(accr(t, u), 4)
                ml.append(f"v_mfma_f32_16x16x32_bf16 {d}, {w}, {x}, {d}")
        return ml

    g.reads, g.mfmas = reads, mfmas
    g.adv = vA + vB
    gen_mainloop(a, g, P)
    for t in range(4):
        for uu in range(2):
            a(f"ds_write_b128 v{ex}, {vr(accr(t, 2+uu),4)} offset:{(t*2+uu)*1024}")
    pair_post(a, which, PV)
    pair_wait(a, P, which, 2, PV)
    Rv = X[0]
    assert X[1] == X[0] + 16
    lst = [(t, uu) for uu in range(2) for t in range(4)]
    for (t, uu) in lst:
        a(f"ds_read_b128 {vr(Rv+(t*2+uu)*4,4)}, v{exr} offset:{(t*2+uu)*1024}")
    ob = W[0]
    for n_, (t, uu) in enumerate(lst):
        a(f"s_waitcnt lgkmcnt({7-n_})")
        d = accr(t, uu)
        for i in (0, 2):
            a(f"v_pk_add_f32 {vr(d+i,2)}, {vr(d+i,2)}, {vr(Rv+(t*2+uu)*4+i,2)}")
        o = ob + 8 * uu + 2 * t
        a(f"v_cvt_pk_bf16_f32 v{o}, v{d}, v{d+1}")
        a(f"v_cvt_pk_bf16_f32 v{o+1}, v{d+2}, v{d+3}")
        if t & 1:
            o -= 2
            a(f"v_permlane16_swap_b32 v{o}, v{o+2}")
            a(f"v_permlane16_swap_b32 v{o+1}, v{o+3}")
            so = "s45" if uu else "0"
            if k2:
                a(f"buffer_store_dwordx4 {vr(o,4)}, v{vo}, s[16:19], {so} offen offset:{1024*(t>>1)} sc1")
            else:
                a(f"buffer_store_dwordx4 {vr(o,4)}, v{vo}, s[16:19], {so} offen offset:{64*(t>>1)} {['', 'sc1', 'nt', 'sc0 sc1', 'sc1 nt'][OPT['ost']]}")
    if k2:
        SM = [Rv, Rv + 2]
        PK = [Rv + 8, Rv + 10]
        PQ = [Rv + 12, Rv + 14]
        for uu in range(2):
            a(f"v_pk_add_f32 {vr(PK[uu],2)}, {vr(accr(0,uu),2)}, {vr(accr(0,uu)+2,2)}")
            a(f"v_pk_mul_f32 {vr(PQ[uu],2)}, {vr(accr(0,uu),2)}, {vr(accr(0,uu),2)}")
        for t in range(4):
            for i in (0, 2):
                for uu in range(2):
                    d = vr(accr(t, uu) + i, 2)
                    if t:
                        a(f"v_pk_add_f32 {vr(PK[uu],2)}, {vr(PK[uu],2)}, {d}")
                    if t or i:
                        a(f"v_pk_fma_f32 {vr(PQ[uu],2)}, {d}, {d}, {vr(PQ[uu],2)}")
        for uu in range(2):
            a(f"v_add_f32 v{SM[uu]}, v{PK[uu]}, v{PK[uu]+1}")
            a(f"v_add_f32 v{SM[uu]+1}, v{PQ[uu]}, v{PQ[uu]+1}")
        xrow_reduce_multi(a, "v_add_f32", [Rv, Rv + 1, Rv + 2, Rv + 3], [Rv + 4, Rv + 5, Rv + 6, Rv + 7])
        a(f"s_lshl_b32 s36, s{j}, 14")
        for uu in range(2):
            a(f"buffer_store_dwordx2 {vr(SM[uu],2)}, v{vrow}, s[24:27], s36 offen offset:{uu*128} sc1")
    stamp(a, "c", f"p{which}_stored")
    if k2:
        finish_phase(a, 2, g, X[1])


def gen_p4(a):
    g = PH[4]
    m, J = g.mj
    V = Regs("v", 4, RES)
    srd(a, 16, POUT, 0, S * D * 2)
    srd(a, 20, PWS, WS_XB, 256 * 4 * 8192)
    a("s_and_b32 s34, s6, 1")
    a("s_lshr_b32 s35, s6, 1")
    vA = [V.alloc(), V.alloc()]
    a("s_lshl_b32 s36, s34, 13")
    a(f"s_add_u32 s36, s36, {g.slot0*SLOT}")
    a(f"v_lshlrev_b32 v{vA[0]}, 4, v1")
    a(f"v_add_u32 v{vA[0]}, s36, v{vA[0]}")
    a("s_lshl_b32 s37, s5, 12")
    a("s_sub_u32 s38, 4096, s37")
    a(f"v_add_u32 v{vA[1]}, s38, v{vA[0]}")
    a(f"v_add_u32 v{vA[0]}, s37, v{vA[0]}")
    a("s_lshl_b32 s36, s35, 13")
    a(f"s_add_u32 s36, s36, {g.Boff + g.slot0*SLOT}")
    vB = b_addr128(a, V, [0, 1, 2, 3], 36)
    acc = V.alloc(64, 4)
    X = [V.alloc(16, 4) for _ in range(2)]
    W = [V.alloc(16, 4) for _ in range(2)]
    accr = lambda t, u: acc + (t * 4 + u) * 4
    vo, t0, xl = V.alloc(), V.alloc(), V.alloc()
    FA = V.alloc(6, 2)
    a(f"s_lshl_b32 s36, s{m}, 7")
    a("s_lshl_b32 s37, s34, 6")
    a("s_add_u32 s36, s36, s37")
    a("s_lshl_b32 s37, s5, 5")
    a("s_add_u32 s36, s36, s37")
    a(f"v_add_u32 v{vo}, s36, v{L15}")
    a(f"v_lshlrev_b32 v{vo}, 11, v{vo}")
    a(f"v_and_b32 v{t0}, 1, v{GQ}")
    a(f"v_lshl_add_u32 v{vo}, v{t0}, 5, v{vo}")
    a(f"v_lshrrev_b32 v{t0}, 1, v{GQ}")
    a(f"v_lshl_add_u32 v{vo}, v{t0}, 4, v{vo}")
    a(f"s_lshl_b32 s36, s{J}, 8")
    a("s_lshl_b32 s37, s35, 7")
    a("s_add_u32 s36, s36, s37")
    a(f"v_add_u32 v{vo}, s36, v{vo}")
    a("s_mov_b32 s45, 32768")
    a(f"v_lshlrev_b32 v{xl}, 4, v1")
    a("s_lshl_b32 s36, s2, 2")
    a("s_add_u32 s36, s36, s6")
    a("s_xor_b32 s37, s36, 8")
    a("s_lshl_b32 s76, s36, 13")
    a("s_add_u32 s77, s76, 4096")
    a("s_lshl_b32 s78, s37, 13")
    a("s_add_u32 s79, s78, 4096")
    a("s_lshl_b32 s36, s36, 7")
    a("s_lshl_b32 s37, s37, 7")
    a(f"s_add_u32 s36, s36, {WS_XF}")
    a(f"s_add_u32 s37, s37, {WS_XF}")
    a(f"v_mov_b32 v{FA}, s36")
    a(f"v_mov_b32 v{FA+1}, s37")
    a(f"v_mov_b32 v{FA+2}, s{NONCE}")
    a(f"v_mov_b32 v{FA+3}, s{NONCE+1}")
    for t in range(4):
        z = accr(t, 2)
        for i in range(2):
            a(f"v_lshlrev_b32 v{z+2*i}, 16, v{BIA+2*t+i}")
            a(f"v_and_b32 v{z+2*i+1}, 0xffff0000, v{BIA+2*t+i}")
        for uu in range(2):
            d = accr(t, uu)
            for i in range(2):
                a(f"v_lshlrev_b32 v{d+2*i}, 16, v{RES+8*uu+2*t+i}")
                a(f"v_and_b32 v{d+2*i+1}, 0xffff0000, v{RES+8*uu+2*t+i}")
        for uu in range(2):
            for i in (0, 2):
                a(f"v_pk_add_f32 {vr(accr(t,uu)+i,2)}, {vr(accr(t,uu)+i,2)}, {vr(z+i,2)}")
        zero_acc(a, accr(t, 2), 8)
    finish_phase(a, 3, PH[3], 244)

    def reads(h, b):
        r = []
        for u in range(4):
            r.append(f"ds_read_b128 {vr(X[b]+4*u,4)}, v{vA[u>>1]} offset:{(u&1)*2048+h*1024}")
        for t in range(4):
            for jj in range(2):
                r.append(f"ds_read_b64_tr_b16 {vr(W[b]+4*t+2*jj,2)}, v{vB[t]} offset:{jj*512+h*4096}")
        return r

    def mfmas(b):
        if b == 0:
            order = [(t, u) for t in range(4) for u in ((2, 3, 0, 1) if t % 2 == 0 else (1, 0, 3, 2))]
        else:
            order = [(t, u) for t in range(4) for u in ((2, 3) if t % 2 == 0 else (3, 2))]
            order += [(t, u) for t in (3, 2, 1, 0) for u in ((0, 1) if t % 2 else (1, 0))]
        return [f"v_mfma_f32_16x16x32_bf16 {vr(accr(t,u),4)}, {vr(W[b]+4*t,4)}, {vr(X[b]+4*u,4)}, {vr(accr(t,u),4)}" for (t, u) in order]

    g.reads, g.mfmas = reads, mfmas
    g.adv = vA + vB
    gen_mainloop(a, g, "P4")
    if OPT["tagx"]:
        lst = [(t, uu) for uu in range(2) for t in range(4)]
        SB_, RB = X[0], W[0]
        slot = lambda k: 4 * (k // 3) + k % 3
        for gi in range(6):
            a(f"v_mov_b32 v{SB_+4*gi+3}, s{NONCE}")
        done = 0
        for n_, (t, uu) in enumerate(lst):
            d = accr(t, 2 + uu)
            for i in range(2):
                a(f"v_cvt_pk_bf16_f32 v{SB_+slot(2*n_+i)}, v{d+2*i}, v{d+2*i+1}")
            while done < 6 and (3 * done + 2 <= 2 * n_ + 1 or n_ == 7):
                a(f"buffer_store_dwordx4 {vr(SB_+4*done,4)}, v{xl}, s[20:23], s{76+(done>>2)} offen offset:{(done&3)*1024} sc1")
                done += 1
        stamp(a, "c", "p4_sent")
        a("s_mov_b32 s3, 0x40000")
        if OPT["tagx"] == 2:
            a("s_mov_b32 exec_lo, 0")
            a("s_mov_b32 exec_hi, 0x80000000")
            a("P4_hl:")
            a(f"buffer_load_dword v{RB}, v{xl}, s[20:23], s79 offen offset:{1024+12} sc1")
            a("s_sub_u32 s3, s3, 1")
            a("s_waitcnt vmcnt(0)")
            a(f"v_cmp_eq_u32 vcc, s{NONCE}, v{RB}")
            a("s_cmp_eq_u32 s3, 0")
            a("s_cselect_b32 s3, 1, s3")
            a("s_cbranch_scc1 P4_hd")
            a("s_cmp_eq_u32 vcc_hi, 0")
            a("s_cbranch_scc1 P4_hl")
            a("P4_hd:")
            stamp(a, "c", "p4_hint")
            a("s_mov_b64 exec, -1")
        a("P4_pl:")
        for gi in range(6):
            a(f"buffer_load_dwordx4 {vr(RB+4*gi,4)}, v{xl}, s[20:23], s{78+(gi>>2)} offen offset:{(gi&3)*1024} sc1")
        a("s_sub_u32 s3, s3, 1")
        a("s_mov_b64 s[36:37], -1")
        for gi in range(6):
            a(f"s_waitcnt vmcnt({5-gi})")
            a(f"v_cmp_eq_u32 vcc, s{NONCE}, v{RB+4*gi+3}")
            a("s_and_b64 s[36:37], s[36:37], vcc")
        a("s_cmp_eq_u32 s3, 0")
        a("s_cbranch_scc1 P4_pd")
        a("s_cmp_eq_u64 s[36:37], -1")
        a("s_cbranch_scc0 P4_pl")
        a("P4_pd:")
        stamp(a, "c", "p4_got")
        if OPT["stamp"]:
            a("v_writelane_b32 v254, s3, 40")
        ob, Z = X[0], X[1] + 8
        for n_, (t, uu) in enumerate(lst):
            d = accr(t, uu)
            z = Z + 4 * (n_ & 1)
            for i in range(2):
                a(f"v_lshlrev_b32 v{z+2*i}, 16, v{RB+slot(2*n_+i)}")
                a(f"v_and_b32 v{z+2*i+1}, 0xffff0000, v{RB+slot(2*n_+i)}")
            for i in (0, 2):
                a(f"v_pk_add_f32 {vr(d+i,2)}, {vr(d+i,2)}, {vr(z+i,2)}")
            o = ob + 8 * uu + 2 * t
            a(f"v_cvt_pk_bf16_f32 v{o}, v{d}, v{d+1}")
            a(f"v_cvt_pk_bf16_f32 v{o+1}, v{d+2}, v{d+3}")
            if t & 1:
                o -= 2
                a(f"v_permlane16_swap_b32 v{o}, v{o+2}")
                a(f"v_permlane16_swap_b32 v{o+1}, v{o+3}")
                so = "s45" if uu else "0"
                a(f"buffer_store_dwordx4 {vr(o,4)}, v{vo}, s[16:19], {so} offen offset:{64*(t>>1)} {['', 'sc1', 'nt', 'sc0 sc1', 'sc1 nt'][OPT['ost']]}")
        stamp(a, "c", "p4_stored")
        return
    lst = [(t, uu) for uu in range(2) for t in range(4)]
    for n_, (t, uu) in enumerate(lst):
        a(f"buffer_store_dwordx4 {vr(accr(t,2+uu),4)}, v{xl}, s[20:23], s{76+uu} offen offset:{t*1024} sc1")
    a("s_mov_b32 s3, 0x40000")
    a("s_mov_b64 exec, 1")
    a("s_waitcnt vmcnt(0)")
    a(f"global_store_dwordx2 v{FA}, {vr(FA+2,2)}, s[{PWS}:{PWS+1}] sc1")
    stamp(a, "c", "p4_sent")
    a("P4_pl:")
    a(f"global_load_dwordx2 {vr(FA+4,2)}, v{FA+1}, s[{PWS}:{PWS+1}] sc1")
    a("s_sub_u32 s3, s3, 1")
    a("s_waitcnt vmcnt(0)")
    a(f"v_cmp_eq_u64 vcc, {vr(FA+2,2)}, {vr(FA+4,2)}")
    a("s_cmp_eq_u32 s3, 0")
    a("s_cbranch_scc1 P4_pd")
    a("s_cmp_eq_u32 vcc_lo, 0")
    a("s_cbranch_scc1 P4_pl")
    a("P4_pd:")
    a("s_mov_b64 exec, -1")
    Rv = X[0]
    assert X[1] == X[0] + 16
    for n_, (t, uu) in enumerate(lst):
        a(f"buffer_load_dwordx4 {vr(Rv+4*n_,4)}, v{xl}, s[20:23], s{78+uu} offen offset:{t*1024} sc1")
    ob = W[0]
    for n_, (t, uu) in enumerate(lst):
        a(f"s_waitcnt vmcnt({7 - n_ + (n_ >> 1)})")
        d = accr(t, uu)
        for i in (0, 2):
            a(f"v_pk_add_f32 {vr(d+i,2)}, {vr(d+i,2)}, {vr(Rv+4*n_+i,2)}")
        o = ob + 8 * uu + 2 * t
        a(f"v_cvt_pk_bf16_f32 v{o}, v{d}, v{d+1}")
        a(f"v_cvt_pk_bf16_f32 v{o+1}, v{d+2}, v{d+3}")
        if t & 1:
            o -= 2
            a(f"v_permlane16_swap_b32 v{o}, v{o+2}")
            a(f"v_permlane16_swap_b32 v{o+1}, v{o+3}")
            so = "s45" if uu else "0"
            a(f"buffer_store_dwordx4 {vr(o,4)}, v{vo}, s[16:19], {so} offen offset:{64*(t>>1)} {['', 'sc1', 'nt', 'sc0 sc1', 'sc1 nt'][OPT['ost']]}")
    stamp(a, "c", "p4_stored")


def gen_p3(a):
    g = PH[3]
    m, j = g.mj
    g4 = PH[4]
    V = Regs("v", 4, RES)
    srd(a, 16, PWS, WS_H1, S * F * 2)
    srd(a, 20, PB2, 0, D * 2)
    acc = V.alloc(112, 4)
    X = [V.alloc(16, 4) for _ in range(2)]
    W = [V.alloc(28, 4) for _ in range(2)]
    accr = lambda t, u: acc + (t * 4 + u) * 4
    a("s_and_b32 s34, s6, 1")
    a("s_lshr_b32 s35, s6, 1")
    vA = V.alloc()
    a("s_lshl_b32 s36, s34, 13")
    a(f"s_add_u32 s36, s36, {g.slot0*SLOT}")
    a(f"v_lshlrev_b32 v{vA}, 4, v1")
    a(f"v_add_u32 v{vA}, s36, v{vA}")
    t = X[0]
    base, f = X[0] + 1, X[0] + 2
    vB = [V.alloc() for _ in range(7)]
    a(f"v_lshrrev_b32 v{t}, 2, v{L15}")
    a(f"v_and_b32 v{f}, 1, v{GQ}")
    a(f"v_lshl_or_b32 v{f}, v{f}, 2, v{t}")
    a(f"v_lshl_add_u32 v{t}, v{GQ}, 3, v{t}")
    a(f"v_lshlrev_b32 v{base}, 9, v{t}")
    a(f"v_and_b32 v{t}, 3, v{L15}")
    a(f"v_lshl_add_u32 v{base}, v{t}, 3, v{base}")
    a(f"v_add_u32 v{base}, {g.Boff + g.slot0*SLOT}, v{base}")
    a(f"s_and_b32 s36, s{j}, 1")
    a("s_lshl_b32 s36, s36, 1")
    a("s_add_u32 s37, s36, s35")
    a("s_add_u32 s37, s37, 12")
    a("s_mul_i32 s38, s35, 6")
    a("s_add_u32 s36, s36, s38")
    for t_ in range(7):
        a(f"v_xor_b32 v{t}, s{36 if t_ < 6 else 37}, v{f}")
        a(f"v_lshl_add_u32 v{vB[t_]}, v{t}, 5, v{base}")
        if t_ < 5:
            a("s_add_u32 s36, s36, 1")
    RP, CSr, B1r = X[0], W[0], W[1]
    e0, vo, ex, KK, tq = 240, 244, 246, 248, X[0] + 3
    a("s_lshl_b32 s36, s34, 9")
    a(f"s_add_u32 s36, s36, {L_ROW}")
    a(f"v_lshlrev_b32 v{e0}, 3, v{L15}")
    a(f"v_add_u32 v{e0}, s36, v{e0}")
    a(f"v_lshlrev_b32 v{e0+1}, 4, v{GQ}")
    a("s_lshl_b32 s36, s35, 6")
    a(f"s_add_u32 s36, s36, {L_CS + 768}")
    a(f"v_add_u32 v{e0+2}, s36, v{e0+1}")
    a("s_mul_i32 s36, s35, 384")
    a(f"s_add_u32 s36, s36, {L_CS}")
    a(f"v_add_u32 v{e0+1}, s36, v{e0+1}")
    a(f"v_lshlrev_b32 v{e0+3}, 3, v{GQ}")
    a(f"s_lshl_b32 s82, s{g4.mj[1]}, 8")
    a("s_lshl_b32 s36, s35, 7")
    a("s_add_u32 s82, s82, s36")
    srd(a, 24, PWS, WS_H, S * D * 2)
    hv = 250
    a(f"v_lshrrev_b32 v{hv}, 1, v{GQ}")
    a(f"v_lshlrev_b32 v{hv}, 8, v{hv}")
    a(f"v_lshl_add_u32 v{hv}, v{L15}, 4, v{hv}")
    a(f"v_and_b32 v{tq}, 1, v{GQ}")
    a(f"v_lshl_add_u32 v{hv}, v{tq}, 3, v{hv}")
    a(f"s_lshl_b32 s36, s{g4.mj[0]}, 3")
    a("s_lshl_b32 s37, s34, 2")
    a("s_add_u32 s36, s36, s37")
    a("s_lshl_b32 s37, s5, 1")
    a("s_add_u32 s36, s36, s37")
    a("s_lshl_b32 s36, s36, 5")
    a(f"s_lshl_b32 s37, s{g4.mj[1]}, 2")
    a("s_add_u32 s36, s36, s37")
    a("s_lshl_b32 s37, s35, 1")
    a("s_add_u32 s36, s36, s37")
    a("s_lshl_b32 s83, s36, 10")
    a("s_add_u32 s84, s83, 32768")
    a(f"s_lshl_b32 s85, s{m}, 11")
    a(f"s_lshl_b32 s36, s{j}, 7")
    a("s_add_u32 s85, s85, s36")
    a(f"s_add_u32 s85, s85, {WS_FD}")
    assert g.mj[0] == g4.mj[0]
    frag_lane_off(a, vo, tq)
    a(f"s_lshl_b32 s36, s{m}, 3")
    a("s_lshl_b32 s37, s34, 2")
    a("s_add_u32 s36, s36, s37")
    a("s_mul_i32 s36, s36, 112")
    a(f"s_mul_i32 s37, s{j}, 7")
    a("s_add_u32 s36, s36, s37")
    a("s_lshl_b32 s36, s36, 10")
    a(f"v_add_u32 v{vo}, s36, v{vo}")
    a("s_mul_i32 s36, s35, 3072")
    for u in range(4):
        a(f"s_add_u32 s{76+u}, s36, {u*112*1024}")
    a(f"s_mul_i32 s36, s35, {2*112*1024}")
    a("s_add_u32 s80, s36, 6144")
    a(f"s_add_u32 s81, s80, {112*1024}")
    a(f"v_lshlrev_b32 v{ex}, 4, v1")
    a("s_lshl_b32 s36, s34, 12")
    a(f"s_add_u32 s36, s36, {g.exch}")
    a(f"v_add_u32 v{ex}, s36, v{ex}")
    a("s_lshl_b32 s36, s35, 3")
    a(f"v_add_u32 v{ex+1}, s36, v{ex}")
    a("s_lshl_b32 s36, s35, 11")
    a(f"v_add_u32 v{ex}, s36, v{ex}")
    k1 = -2.0 * math.sqrt(2.0 / math.pi) * math.log2(math.e)
    a(f"v_mov_b32 v{KK}, {hexf(k1*0.044715)}")
    a(f"v_mov_b32 v{KK+1}, {hexf(k1)}")
    zero_acc(a, acc, 112)

    def reads(h, b):
        r = []
        for u in range(4):
            r.append(f"ds_read_b128 {vr(X[b]+4*u,4)}, v{vA} offset:{u*2048+h*1024}")
        for t_ in range(7):
            for jj in range(2):
                r.append(f"ds_read_b64_tr_b16 {vr(W[b]+4*t_+2*jj,2)}, v{vB[t_]} offset:{jj*2048+h*16384}")
        return r

    def mfmas(b):
        ml = []
        for t_ in range(7):
            for u in (range(4) if t_ % 2 == 0 else (3, 2, 1, 0)):
                w, x, d = vr(W[b] + 4 * t_, 4), vr(X[b] + 4 * u, 4), vr(accr(t_, u), 4)
                ml.append(f"v_mfma_f32_16x16x32_bf16 {d}, {w}, {x}, {d}")
        return ml

    g.reads, g.mfmas = reads, mfmas
    g.adv = [vA] + vB
    gen_mainloop(a, g, "P3")
    for u in range(4):
        a(f"ds_read_b64 {vr(RP+2*u,2)}, v{e0} offset:{u*128}")
    for t_ in range(6):
        a(f"ds_read_b128 {vr(CSr+4*t_,4)}, v{e0+1} offset:{t_*64}")
        a(f"ds_read_b128 {vr(B1r+4*t_,4)}, v{e0+1} offset:{1024+t_*64}")
        if t_ == 1:
            a(f"ds_read_b128 {vr(CSr+24,4)}, v{e0+2}")
            a(f"ds_read_b128 {vr(B1r+24,4)}, v{e0+2} offset:1024")
    for t_ in range(4):
        a(f"buffer_load_dwordx2 {vr(BIA+2*t_,2)}, v{e0+3}, s[20:23], s82 offen offset:{32*t_}")
    for uu in range(2):
        for t_ in range(4):
            a(f"buffer_load_dwordx2 {vr(RES+8*uu+2*t_,2)}, v{hv}, s[24:27], s{83+uu} offen offset:{(t_>>1)*1024+(t_&1)*512} sc1")
    T, PV = X[1], X[0] + 8
    a("s_waitcnt lgkmcnt(8)")

    def gelu2(tiles, o):
        ch = [(accr(t_, u) + i, T + 4 * k + i, t_, u, i) for k, (t_, u) in enumerate(tiles) for i in (0, 2)]
        for (d, tt, t_, u, i) in ch:
            a(f"v_pk_fma_f32 {vr(tt,2)}, {vr(CSr+4*t_+i,2)}, {vr(RP+2*u,2)}, {vr(B1r+4*t_+i,2)} op_sel:[0,1,0] op_sel_hi:[1,1,1]")
        for (d, tt, t_, u, i) in ch:
            a(f"v_pk_fma_f32 {vr(d,2)}, {vr(d,2)}, {vr(RP+2*u,2)}, {vr(tt,2)} op_sel:[0,0,0] op_sel_hi:[1,0,1]")
        for (d, tt, t_, u, i) in ch:
            a(f"v_pk_mul_f32 {vr(tt,2)}, {vr(d,2)}, {vr(d,2)}")
        for (d, tt, t_, u, i) in ch:
            a(f"v_pk_fma_f32 {vr(tt,2)}, {vr(tt,2)}, {vr(KK,2)}, {vr(KK,2)} op_sel:[0,0,1] op_sel_hi:[1,0,1]")
        for (d, tt, t_, u, i) in ch:
            a(f"v_pk_mul_f32 {vr(tt,2)}, {vr(tt,2)}, {vr(d,2)}")
        for i in range(8):
            a(f"v_exp_f32 v{T+i}, v{T+i}")
        for (d, tt, t_, u, i) in ch:
            a(f"v_pk_add_f32 {vr(tt,2)}, {vr(tt,2)}, 1.0 op_sel_hi:[1,0]")
        for i in range(8):
            a(f"v_rcp_f32 v{T+i}, v{T+i}")
        for (d, tt, t_, u, i) in ch:
            a(f"v_pk_mul_f32 {vr(d,2)}, {vr(d,2)}, {vr(tt,2)}")
        for k, (d, tt, t_, u, i) in enumerate(ch):
            a(f"v_cvt_pk_bf16_f32 v{o+k}, v{d}, v{d+1}")

    obs = [X[0] + 12, X[1] + 12]
    pend = [None]

    def flush():
        if pend[0] is None:
            return
        o, so, off = pend[0]
        pend[0] = None
        a(f"v_permlane16_swap_b32 v{o}, v{o+2}")
        a(f"v_permlane16_swap_b32 v{o+1}, v{o+3}")
        a(f"buffer_store_dwordx4 {vr(o,4)}, v{vo}, s[16:19], s{so} offen offset:{off} sc1")

    EC = X[0] + 10
    n_ = 0
    for p in range(3):
        for u in range(4):
            o = obs[n_ & 1]
            n_ += 1
            gelu2([(2 * p, u), (2 * p + 1, u)], o)
            pend[0] = (o, 76 + u, 1024 * p)
            flush()
            k_ = 4 * p + u - 4
            if k_ == OPT["ew"]:
                a(f"v_mov_b32 v{EC}, {L_CNT2}")
                a(f"v_mov_b32 v{EC+1}, 1")
                a("s_mov_b64 exec, 1")
                a(f"s_waitcnt vmcnt({k_+1})")
                a(f"ds_add_rtn_u32 v{EC+1}, v{EC}, v{EC+1}")
                a("s_mov_b64 exec, -1")
            if p == 1 and u == 1:
                pair_wait(a, "P3", 3, 2, PV)
                for uu in range(2):
                    a(f"ds_read_b128 {vr(accr(6,uu),4)}, v{ex} offset:{uu*1024}")
            if k_ == OPT["ew"] + 1:
                a("s_waitcnt lgkmcnt(0)")
                a(f"v_readfirstlane_b32 s3, v{EC+1}")
                a("s_cmp_lg_u32 s3, 3")
                a("s_cbranch_scc1 P3_ne")
                a(f"v_mov_b32 v{EC}, s85")
                a(f"v_mov_b32 v{T}, s{NONCE}")
                a(f"v_mov_b32 v{T+1}, s{NONCE+1}")
                a("s_mov_b64 exec, 1")
                a(f"global_store_dwordx2 v{EC}, {vr(T,2)}, s[{PWS}:{PWS+1}] sc1")
                a("s_mov_b64 exec, -1")
                a("P3_ne:")
                stamp(a, "c", "p3_early")
            if p == 2 and u == 1:
                a("s_waitcnt lgkmcnt(0)")
                for uu in range(2):
                    pend[0] = (accr(6, uu), 80 + uu, 0)
                    flush()
        if p == 0:
            for up in range(2):
                gelu2([(6, 2 * up), (6, 2 * up + 1)], obs[up])
                for k in range(2):
                    a(f"ds_write_b64 v{ex+1}, {vr(obs[up]+2*k,2)} offset:{(2*up+k)*1024}")
            pair_post(a, 3, PV)
    stamp(a, "c", "p3_stored")


def main():
    out = sys.argv[1]
    a = Asm()
    name = NAME + "_kernel"
    a.raw(f".globl {name}\n.p2align 8\n.type {name},@function\n{name}:")
    if OPT["early"]:
        a("s_memrealtime s[98:99]")
    a("s_cmp_ge_u32 s2, 256\ns_cbranch_scc1 KEND")
    a("s_load_dwordx16 s[48:63], s[0:1], 0")
    a("s_load_dwordx4 s[64:67], s[0:1], 64")
    a("s_load_dwordx2 s[68:69], s[0:1], 80")
    a("v_lshrrev_b32 v1, 6, v0")
    a("s_and_b32 s3, s2, 7")
    a("s_lshr_b32 s7, s2, 3")
    a("v_readfirstlane_b32 s6, v1")
    a("s_and_b32 s70, s3, 1")
    a("s_lshl_b32 s70, s70, 3")
    a("s_and_b32 s4, s7, 7")
    a("s_add_u32 s70, s70, s4")
    a("s_lshr_b32 s71, s3, 1")
    a("s_lshr_b32 s4, s7, 3")
    a("s_lshl_b32 s71, s71, 2")
    a("s_add_u32 s71, s71, s4")
    a("s_and_b32 s72, s7, 15")
    a("s_lshl_b32 s73, s3, 1")
    a("s_lshr_b32 s4, s7, 4")
    a("s_add_u32 s73, s73, s4")
    a("s_lshr_b32 s4, s3, 2")
    a("s_lshl_b32 s4, s4, 2")
    a("s_lshr_b32 s5, s7, 3")
    a("s_add_u32 s4, s4, s5")
    a("s_bfe_u32 s5, s3, 0x10001")
    a("v_and_b32 v1, 63, v0")
    a(f"v_and_b32 v{L15}, 15, v0")
    a(f"v_lshrrev_b32 v{GQ}, 4, v1")
    a("s_cmp_ge_u32 s6, 4")
    a("s_cbranch_scc1 LOADER")
    gen_p0(a)
    gen_p0t(a)
    gen_p1(a)
    gen_p24(a, 2)
    gen_p3(a)
    gen_p4(a)
    stamp_flush(a, 0)
    if OPT["spin"]:
        a("SPIN:")
        a("s_memrealtime s[100:101]")
        a("s_waitcnt lgkmcnt(0)")
        a(f"s_sub_u32 s100, s100, s{NONCE}")
        a(f"s_cmp_lt_u32 s100, {OPT['spin']*100}")
        a("s_cbranch_scc1 SPIN")
    a("KEND:")
    a("s_endpgm")
    gen_loader(a)
    vg = 256
    print(DBG)
    a.raw(f'.section .rodata,"a"\n.p2align 6\n.amdhsa_kernel {name}\n'
          f"  .amdhsa_next_free_vgpr {vg}\n  .amdhsa_next_free_sgpr 102\n  .amdhsa_accum_offset {(vg+3)//4*4}\n"
          "  .amdhsa_group_segment_fixed_size 0\n  .amdhsa_kernarg_size 88\n  .amdhsa_user_sgpr_count 2\n"
          "  .amdhsa_user_sgpr_kernarg_segment_ptr 1\n  .amdhsa_system_sgpr_workgroup_id_x 1\n"
          "  .amdhsa_float_denorm_mode_32 3\n"
          ".end_amdhsa_kernel\n")
    head = open("header.txt").read()
    head += f"; @launch grid=(256,1,1) block=(512,1,1) lds={LDS_TOTAL}\n"
    head += '.amdgcn_target "amdgcn-amd-amdhsa--gfx950"\n.text\n'
    open(out, "w").write(head + a.text())
    if OPT["stamp"]:
        import json
        json.dump(STAMPS, open(out + ".stamps.json", "w"))
    print("generated", out, "nops:", a.nops, "lds", LDS_TOTAL)


main()
```

```python
import sys, struct, math
from asmx import Asm, Regs, vr, sr

NAME = "sequential_preLN__sliding_local_dilated__dense_activation_gelu__prompt"
S, D, F = 2048, 1024, 3584
OPT = dict(stamp=0, map1=1, map3=0, sleep=2, prio=0, nt1=0, seg=2, warm=0, wr1=2, wr2=2, wr3=3, wg=7, touch1=1, dbgt=0, ctouch=1, ost=1, spin=0, rd2=0, tagx=2, prew=1, unr=2, gadv=1, early=0, norot=0, prewx=1, spoll=0, ew=3, onep=1, hrot=0, peel=1, tlb=0)
for a_ in sys.argv[2:]:
    k_, v_ = a_.split("=")
    assert k_ in OPT, k_
    OPT[k_] = int(v_)
WS_O, WS_H, WS_H1 = 4 << 20, 8 << 20, 12 << 20
WS_ST, WS_CS, WS_FL = 28 << 20, 29 << 20, 30 << 20
WS_ST1, WS_CS1 = 0, 1 << 20
WS_XB = 48 << 20
WS_XF = 31 << 20
FL_CS3, FL_CS1 = WS_FL + 32768, WS_FL + 40960
WS_FD = WS_FL + 65536
SLOT = 49152
LDS_X = 3 * SLOT
L_PAIR = LDS_X
L_CNT = LDS_X + 16
L_LCNT = LDS_X + 20
L_CNT2 = LDS_X + 24
L_RDY = LDS_X + 48
L_NONCE = LDS_X + 32
L_P0 = LDS_X + 64
L_ROW = LDS_X + 256
L_RS = L_ROW + 2048
L_NM = L_RS + 1024
L_CS = L_NM + 1024
L_B1 = L_CS + 1024
L_SC = L_B1 + 1024
L_SS = L_SC + 4096
LDS_TOTAL = L_SS + 4096
PX, PWQKV, PWO, PW1, PB1, PW2, PB2, POUT, PDBG, PWS = 48, 50, 52, 56, 58, 60, 62, 64, 66, 68
NONCE = 74
RES, BIA = 216, 232
BIG = "0x7ffffff0"


def f2u(x):
    return struct.unpack("<I", struct.pack("<f", x))[0]


def hexf(x):
    return "0x%08x" % f2u(x)


def srd(a, d, base, off, nbytes):
    if off:
        a(f"s_add_u32 s{d}, s{base}, {off}")
        a(f"s_addc_u32 s{d+1}, s{base+1}, 0")
    else:
        a(f"s_mov_b32 s{d}, s{base}")
        a(f"s_mov_b32 s{d+1}, s{base+1}")
    a(f"s_mov_b32 s{d+2}, {nbytes}")
    a(f"s_mov_b32 s{d+3}, 0x20000")


def round_bf16(a, v):
    a(f"v_cvt_pk_bf16_f32 v{v}, v{v}, v{v}")
    a(f"v_lshlrev_b32 v{v}, 16, v{v}")


def xrow_reduce_multi(a, op, vs, ts):
    for sw in ("v_permlane16_swap_b32", "v_permlane32_swap_b32"):
        for v, t in zip(vs, ts):
            a(f"v_mov_b32 v{t}, v{v}")
        for v, t in zip(vs, ts):
            a(f"{sw} v{v}, v{t}")
        for v, t in zip(vs, ts):
            a(f"{op} v{v}, v{v}, v{t}")


def wave_sum_multi(a, vs, ts):
    for p in ("quad_perm:[1,0,3,2]", "quad_perm:[2,3,0,1]", "row_half_mirror", "row_mirror"):
        for v in vs:
            a(f"v_add_f32_dpp v{v}, v{v}, v{v} {p} row_mask:0xf bank_mask:0xf")
    xrow_reduce_multi(a, "v_add_f32", vs, ts)


def ln_finish(a, mean, var, out):
    round_bf16(a, mean)
    round_bf16(a, var)
    a(f"v_add_f32 v{var}, {hexf(1e-5)}, v{var}")
    round_bf16(a, var)
    a(f"v_sqrt_f32 v{var}, v{var}")
    round_bf16(a, var)
    a(f"v_rcp_f32 v{out}, v{var}")
    a(f"v_mul_f32 v{out+1}, v{mean}, v{out}")
    a(f"v_sub_f32 v{out+1}, 0, v{out+1}")


STAMPS = {"c": [], "l": []}


DBG = []


def stamp(a, role, name):
    if OPT["dbgt"] and role == "c" and name not in ("start", "p0_done") and not name.endswith("stored") or (OPT["dbgt"] and name == "p4_stored"):
        if name not in DBG:
            DBG.append(name)
        a("s_memrealtime s[100:101]")
        a("s_waitcnt lgkmcnt(0)")
        a(f"v_writelane_b32 v255, s100, {DBG.index(name)}")
        if name == "p4_stored":
            a("s_cmp_lg_u32 s6, 0")
            a("s_cbranch_scc1 DBG_e")
            a("v_mov_b32 v254, s100")
            a("v_mov_b32 v253, 0")
            a("s_mov_b64 exec, 1")
            a(f"global_atomic_umax v253, v254, s[{PDBG}:{PDBG+1}] offset:60")
            a("s_mov_b64 exec, 0xfff")
            a(f"s_cmp_lg_u32 s2, {OPT['dbgt']-1}")
            a("s_cbranch_scc1 DBG_e")
            a("v_lshlrev_b32 v253, 2, v1")
            a(f"global_store_dword v253, v255, s[{PDBG}:{PDBG+1}] offset:8")
            a("DBG_e:")
            a("s_mov_b64 exec, -1")
    if not OPT["stamp"]:
        return
    if name in STAMPS[role]:
        i = STAMPS[role].index(name)
    else:
        i = len(STAMPS[role])
        STAMPS[role].append(name)
    a("s_memtime s[100:101]")
    a("s_waitcnt lgkmcnt(0)")
    a(f"v_writelane_b32 v254, s100, {i}")
    a("s_memrealtime s[100:101]")
    a("s_waitcnt lgkmcnt(0)")
    a(f"v_writelane_b32 v255, s100, {i}")


def stamp_flush(a, wavereg_off):
    if not OPT["stamp"]:
        return
    a("v_lshlrev_b32 v2, 2, v1")
    a("s_lshl_b32 s100, s2, 3")
    a(f"s_add_u32 s100, s100, s6")
    a(f"s_add_u32 s100, s100, {wavereg_off}")
    a("s_lshl_b32 s100, s100, 9")
    a(f"s_add_u32 s100, s100, {32<<20}")
    a("v_add_u32 v2, s100, v2")
    a(f"global_store_dword v2, v254, s[{PWS}:{PWS+1}]")
    a(f"global_store_dword v2, v255, s[{PWS}:{PWS+1}] offset:256")
    if OPT["stamp"] == 2:
        a(f"v_add_u32 v2, {8<<20}, v2")
        a(f"global_store_dword v2, v252, s[{PWS}:{PWS+1}]")
        a(f"global_store_dword v2, v253, s[{PWS}:{PWS+1}] offset:256")


class G:
    pass


def phase_cfgs():
    P = {}
    g = G(); P[1] = g
    g.n, g.KS, g.nst, g.B448 = 1, 64, 16, False
    g.nA, g.nB, g.strideB, g.Boff, g.KT = 18, 24, 6144, 24576, 0
    g.A = (PX, 0, S * D * 2); g.B = (PWQKV, 0, D * 3 * D * 2); g.map = OPT["map1"]
    g = G(); P[2] = g
    g.n, g.KS, g.nst, g.B448 = 2, 128, 8, False
    g.nA, g.nB, g.strideB, g.Boff, g.KT = 32, 16, 2048, 32768, 32
    g.A = (PWS, WS_O, S * D * 2); g.B = (PWO, 0, D * D * 2); g.map = 0
    g = G(); P[3] = g
    g.n, g.KS, g.nst, g.B448 = 3, 64, 16, True
    g.nA, g.nB, g.strideB, g.Boff, g.KT = 16, 32, 7168, 16384, 32
    g.A = (PWS, WS_H, S * D * 2); g.B = (PW1, 0, D * F * 2); g.map = OPT["map3"]
    g = G(); P[4] = g
    g.n, g.KS, g.nst, g.B448 = 4, 64, 28, False
    g.nA, g.nB, g.strideB, g.Boff, g.KT = 16, 16, 2048, 16384, 112
    g.A = (PWS, WS_H1, S * F * 2); g.B = (PW2, 0, F * D * 2); g.map = 0
    s = 0
    for p in (1, 2, 3, 4):
        P[p].slot0 = s % 3
        s += P[p].nst
        P[p].mj = (72, 73) if P[p].map else (70, 71)
        if p == 4:
            P[p].mj = (70, 4)
        P[p].exch = ((s - 1) % 3) * SLOT
    return P


PH = phase_cfgs()


def interleave(a, mf, fillers, first=None, dense=0):
    n = len(mf)
    fl = list(fillers)
    gaps = list(range(1, n)) if first is not None else list(range(n))
    k = len(fl)
    assert k <= 2 * len(gaps), (k, len(gaps))
    cnt = {}
    idx = 0
    for gi, g in enumerate(gaps):
        left_gaps = len(gaps) - gi
        c = 2 if (idx < dense or k - idx > left_gaps) else 1
        cnt[g] = min(c, k - idx)
        idx += cnt[g]
    idx = 0
    for i in range(n):
        a(mf[i])
        if i == 0 and first is not None:
            for f in first:
                a(f)
        for _ in range(cnt.get(i, 0)):
            a(fl[idx])
            idx += 1
    assert idx == k


def nonce_load(a, vt):
    a(f"v_mov_b32 v{vt}, 0")
    a(f"global_load_dwordx2 v[{vt+2}:{vt+3}], v{vt}, s[{PDBG}:{PDBG+1}] sc1")


def nonce_check(a, lab, vt):
    a("s_mov_b32 s3, 0x40000")
    a(f"{lab}_nl:")
    a(f"v_readfirstlane_b32 s{NONCE}, v{vt+2}")
    a(f"v_readfirstlane_b32 s{NONCE+1}, v{vt+3}")
    a(f"s_cmp_lg_u32 s{NONCE}, 0")
    a(f"s_cbranch_scc1 {lab}_nd")
    a(f"global_load_dwordx2 v[{vt+2}:{vt+3}], v{vt}, s[{PDBG}:{PDBG+1}] sc1")
    a("s_waitcnt vmcnt(0)")
    a("s_sub_u32 s3, s3, 1")
    a("s_cmp_lg_u32 s3, 0")
    a(f"s_cbranch_scc1 {lab}_nl")
    a(f"{lab}_nd:")


def signal(a, off_sgpr, vt):
    a(f"v_mov_b32 v{vt}, s{off_sgpr}")
    a(f"v_mov_b32 v{vt+2}, s{NONCE}")
    a(f"v_mov_b32 v{vt+3}, s{NONCE+1}")
    a("s_mov_b64 exec, 1")
    a(f"global_store_dwordx2 v{vt}, v[{vt+2}:{vt+3}], s[{PWS}:{PWS+1}] sc1")
    a("s_mov_b64 exec, -1")


def flag_off(a, d, base, hi, lo):
    a(f"s_lshl_b32 s{d}, s{lo}, 2")
    a(f"s_add_u32 s{d}, s{d}, s6")
    a(f"s_lshl_b32 s{d}, s{d}, 3")
    a(f"s_lshl_b32 s3, s{hi}, 9")
    a(f"s_add_u32 s{d}, s{d}, s3")
    a(f"s_add_u32 s{d}, s{d}, {base}")


def poll_loads(a, vaddrs, vt):
    for i, v in enumerate(vaddrs):
        a(f"global_load_dwordx2 v[{vt+2*i}:{vt+2*i+1}], v{v}, s[{PWS}:{PWS+1}] sc1")


def poll_check(a, lab, vaddrs, vt):
    a("s_mov_b32 s3, 0x40000")
    a(f"{lab}_pl:")
    a(f"v_cmp_eq_u64 vcc, s[{NONCE}:{NONCE+1}], v[{vt}:{vt+1}]")
    for i in range(1, len(vaddrs)):
        a(f"v_cmp_eq_u64 s[34:35], s[{NONCE}:{NONCE+1}], v[{vt+2*i}:{vt+2*i+1}]")
        a("s_and_b64 vcc, vcc, s[34:35]")
    a("s_cmp_eq_u64 vcc, -1")
    a(f"s_cbranch_scc1 {lab}_pd")
    if OPT["sleep"]:
        a(f"s_sleep {OPT['sleep']}")
    poll_loads(a, vaddrs, vt)
    a("s_waitcnt vmcnt(0)")
    a("s_sub_u32 s3, s3, 1")
    a("s_cmp_lg_u32 s3, 0")
    a(f"s_cbranch_scc1 {lab}_pl")
    a(f"{lab}_pd:")


def ld_offsets_A(a, g, vA):
    m, j = g.mj
    if g.KT:
        a(f"s_lshl_b32 s7, s{m}, 3")
        a("s_add_u32 s7, s7, s6")
        a(f"s_mul_i32 s7, s7, {g.KT*1024}")
        if g.n == 4:
            a(f"s_mul_i32 s3, s5, {56*1024}")
            a("s_add_u32 s7, s7, s3")
        a(f"v_lshlrev_b32 v{vA}, 4, v1")
        a(f"v_add_u32 v{vA}, s7, v{vA}")
        a(f"v_add_u32 v{vA+1}, {4*g.KT*1024}, v{vA}")
        return
    a("s_and_b32 s3, s6, 1")
    a("s_lshl_b32 s7, s3, 2")
    a("v_lshrrev_b32 v4, 4, v1")
    a("v_or_b32 v4, s7, v4")
    a("v_xor_b32 v4, v3, v4")
    a("v_lshlrev_b32 v4, 4, v4")
    a(f"s_lshl_b32 s7, s{m}, 7")
    a("s_lshl_b32 s34, s6, 3")
    a("s_add_u32 s7, s7, s34")
    a("s_sub_u32 s7, s7, 16")
    for q in range(5):
        a("v_add_u32 v5, s7, v2")
        if q:
            a(f"v_add_u32 v5, {32*q}, v5")
        else:
            a("v_max_i32 v5, 0, v5")
        a(f"v_lshl_add_u32 v{vA+q}, v5, 11, v4")


def ld_offsets_B(a, g, vB):
    m, j = g.mj
    nBq = g.nB // 4
    if g.B448:
        a("v_lshrrev_b32 v5, 5, v1")
        a("s_lshl_b32 s7, s6, 1")
        a("v_add_u32 v5, s7, v5")
        a("v_and_b32 v6, 3, v5")
        a("v_lshlrev_b32 v6, 1, v6")
        a("v_and_b32 v7, 31, v1")
        a("v_xor_b32 v6, v6, v7")
        a("v_mul_u32_u24 v5, 7168, v5")
        a(f"s_mul_i32 s35, s{j}, 448")
        a("s_andn2_b32 s35, s35, 127")
        a("v_add_u32 v5, s35, v5")
        for q in range(nBq):
            if q < 2:
                if q:
                    a("v_xor_b32 v6, 8, v6")
                a(f"v_lshl_add_u32 v{vB+q}, v6, 4, v5")
                if q:
                    a(f"v_add_u32 v{vB+q}, {8*7168}, v{vB+q}")
            else:
                a(f"v_add_u32 v{vB+q}, {16*7168}, v{vB+q-2}")
    else:
        a("v_bfe_u32 v5, v1, 4, 1")
        a("s_and_b32 s7, s6, 1")
        a("s_lshl_b32 s7, s7, 1")
        a("v_or_b32 v5, s7, v5")
        a("v_lshlrev_b32 v5, 1, v5")
        a("v_xor_b32 v5, v3, v5")
        a("v_lshlrev_b32 v5, 4, v5")
        a(f"s_lshl_b32 s7, s{j}, {8 if g.n == 4 else 7}")
        a("v_add_u32 v5, s7, v5")
        if g.n == 4:
            a(f"s_mul_i32 s7, s5, {1792*2048}")
            a("v_add_u32 v5, s7, v5")
        a("s_lshl_b32 s7, s6, 3")
        a("v_add_u32 v6, s7, v2")
        a(f"v_mul_u32_u24 v6, {g.strideB}, v6")
        a("v_add_u32 v5, v5, v6")
        for q in range(nBq):
            if g.n == 4:
                off = (q >> 1) * 128
            elif g.n == 1:
                off = (q >> 1) * 2048 + (q & 1) * 32 * g.strideB
            else:
                off = q * 32 * g.strideB
            a(f"v_add_u32 v{vB+q}, {off}, v5")


def rot_start(a, g, d):
    m, j = g.mj
    if (OPT["norot"] >> g.n) & 1:
        a(f"s_and_b32 s{d}, s{m}, {8 if g.map else 4}")
        if not g.map:
            a(f"s_lshl_b32 s{d}, s{d}, 1")
        return
    if g.n == 1 and OPT["hrot"]:
        assert g.map
        a(f"s_and_b32 s{d}, s{m}, 8")
    elif g.map:
        assert g.nst == 16
        a(f"s_mov_b32 s{d}, s{m}")
    else:
        a(f"s_and_b32 s{d}, s{m}, 7")
        if g.nst == 16:
            a(f"s_lshl_b32 s{d}, s{d}, 1")
        elif g.nst == 28:
            a(f"s_mul_i32 s{d}, s{d}, 7")
            a(f"s_lshr_b32 s{d}, s{d}, 1")


RDY, TMO, PF = 94, 96, 40
LAB = [0]
POLLW = [16]


def poll_once(a):
    a("s_mov_b32 exec_hi, 0" if POLLW[0] == 32 else "s_mov_b64 exec, 0xffff")
    a(f"global_load_dwordx2 v[{PF+2}:{PF+3}], v{PF}, s[{PWS}:{PWS+1}] sc1")
    a(f"s_max_u32 s{TMO}, s{TMO}, 1")
    a(f"s_sub_u32 s{TMO}, s{TMO}, 1")
    a("s_waitcnt vmcnt(0)")
    a(f"v_cmp_eq_u64 s[{RDY}:{RDY+1}], s[{NONCE}:{NONCE+1}], v[{PF+2}:{PF+3}]")
    a("s_mov_b64 exec, -1")
    a(f"s_cmp_eq_u32 s{TMO}, 0")
    a(f"s_cselect_b32 s{RDY}, {'-1' if POLLW[0] == 32 else '0xffff'}, s{RDY}")
    a(f"s_cselect_b32 s{TMO}, 1, s{TMO}")


class Stream:
    def __init__(self, g, isA, srd_, vbase, so, st, lb, sl, of, cur=None):
        self.g, self.isA, self.srd, self.v = g, isA, srd_, vbase
        self.so, self.st, self.lb, self.sl, self.of = so, st, lb, sl, of
        self.cur = cur
        self.frag = isA and g.KT
        self.seg = OPT["seg"] and g.n in (2, 4)
        if self.frag:
            self.step = g.KS * 32
            self.per = g.KS // 32
        else:
            self.step = g.KS * 2 if isA else g.KS * g.strideB

    def seg_so(self, a):
        a(f"s_add_u32 s7, s{self.st}, s{self.of}")
        a("s_and_b32 s7, s7, 3")
        a(f"s_andn2_b32 s{self.so}, s{self.st}, 3")
        a(f"s_add_u32 s{self.so}, s{self.so}, s7")
        if self.cur:
            a(f"s_mov_b32 s{self.cur}, s{self.so}")
        a(f"s_mul_i32 s{self.so}, s{self.so}, {self.step}")

    def init(self, a):
        g = self.g
        m, j = g.mj
        if self.seg:
            a(f"s_and_b32 s{self.st}, s{m}, 7")
            a(f"s_mul_i32 s{self.st}, s{self.st}, {g.nst // 4}")
            a(f"s_lshr_b32 s{self.st}, s{self.st}, 3")
            a(f"s_lshl_b32 s{self.st}, s{self.st}, 2")
            if OPT["seg"] == 2 and g.n == 4:
                a(f"s_mov_b32 s{self.st}, 0")
            a(f"s_add_u32 s{self.of}, s{m}, s{j}")
            self.seg_so(a)
        else:
            rot_start(a, g, self.st)
            a(f"s_mul_i32 s{self.so}, s{self.st}, {self.step}")
        a(f"s_mul_i32 s{self.lb}, s6, {1024*self.per if self.frag else 1024}")
        off = g.slot0 * SLOT + (0 if self.isA else g.Boff)
        if off:
            a(f"s_add_u32 s{self.lb}, s{self.lb}, {off}")
        a(f"s_mov_b32 s{self.sl}, {g.slot0}")

    def need(self, a, ok):
        g = self.g
        cur = self.cur if self.seg else self.st
        a(f"s_cmp_eq_u32 s{RDY}, 0xffff")
        a(f"s_cbranch_scc1 {ok}")
        if g.n == 2:
            a(f"s_lshl_b32 s3, s{cur}, 1")
            a("s_lshl_b32 s34, 3, s3")
        elif g.n == 3:
            a(f"s_lshl_b32 s34, 1, s{cur}")
        else:
            a("s_mul_i32 s3, s5, 28")
            a(f"s_add_u32 s3, s3, s{cur}")
            a(f"s_mul_i32 s3, s3, {2*9363}")
            a(f"s_add_u32 s7, s3, 9363")
            a("s_lshr_b32 s3, s3, 16")
            a("s_lshr_b32 s7, s7, 16")
            a("s_lshl_b32 s34, 1, s3")
            a("s_bitset1_b32 s34, s7")
        a(f"s_andn2_b32 s3, s34, s{RDY}")
        a(f"s_cbranch_scc0 {ok}")

    def wait_ready(self, a, scalar=False):
        if not self.frag:
            return
        LAB[0] += 1
        L = f"WR{LAB[0]}"
        self.need(a, f"{L}_ok")
        a(f"{L}_t:")
        if OPT["spoll"] and scalar:
            a("s_ff1_i32_b32 s7, s3")
            a("s_lshl_b32 s35, s7, 7")
            if self.g.n == 4:
                a("s_cmp_ge_u32 s7, 16")
                a(f"s_cselect_b32 s3, {3*32768 + 2048}, 0")
                a("s_sub_u32 s35, s35, s3")
            a("s_add_u32 s35, s35, s83")
            a(f"{L}_s:")
            a(f"s_load_dwordx2 s[92:93], s[{PWS}:{PWS+1}], s35 glc")
            a(f"s_sub_u32 s{TMO}, s{TMO}, 1")
            a("s_cselect_b32 s3, 1, 0")
            a(f"s_cselect_b32 s{TMO}, 0, s{TMO}")
            a("s_waitcnt lgkmcnt(0)")
            a(f"s_cmp_eq_u64 s[92:93], s[{NONCE}:{NONCE+1}]")
            a("s_cselect_b32 s3, 1, s3")
            a("s_cmp_eq_u32 s3, 0")
            a(f"s_cbranch_scc1 {L}_s")
            a(f"s_bitset1_b32 s{RDY}, s7")
            a(f"s_andn2_b32 s3, s34, s{RDY}")
            a(f"s_cbranch_scc1 {L}_t")
        elif OPT["onep"] and scalar:
            a("s_cmp_lg_u32 s6, 0")
            a(f"s_cbranch_scc1 {L}_w")
            poll_once(a)
            a(f"v_mov_b32 v{PF+5}, s{RDY}")
            a(f"ds_write_b32 v{PF+4}, v{PF+5}")
            a(f"s_branch {L}_c")
            a(f"{L}_w:")
            a(f"ds_read_b32 v{PF+5}, v{PF+4}")
            a(f"s_sub_u32 s{TMO}, s{TMO}, 1")
            a(f"s_cselect_b32 s{TMO}, 0, s{TMO}")
            a("s_cselect_b32 s7, -1, 0")
            a("s_waitcnt lgkmcnt(0)")
            a(f"v_readfirstlane_b32 s3, v{PF+5}")
            a(f"s_or_b32 s{RDY}, s{RDY}, s3")
            a(f"s_or_b32 s{RDY}, s{RDY}, s7")
            a(f"{L}_c:")
            a(f"s_andn2_b32 s3, s34, s{RDY}")
            a(f"s_cbranch_scc0 {L}_ok")
            if OPT["sleep"]:
                a(f"s_sleep {OPT['sleep']}")
            a(f"s_branch {L}_t")
        else:
            poll_once(a)
            a(f"s_andn2_b32 s3, s34, s{RDY}")
            a(f"s_cbranch_scc0 {L}_ok")
            if OPT["sleep"]:
                a(f"s_sleep {OPT['sleep']}")
            a(f"s_branch {L}_t")
        a(f"{L}_ok:")

    def loads(self, n, nt=False):
        out = []
        if self.frag:
            for q in range(n):
                u, k = q // self.per, q % self.per
                out.append((f"s_add_u32 m0, s{self.lb}, {u*4096*self.per}",
                            f"buffer_load_dwordx4 v{self.v+u}, s[{self.srd}:{self.srd+3}], s{self.so} offen offset:{k*1024} sc1 lds"))
            return out
        return [(f"s_add_u32 m0, s{self.lb}, {q*4096}",
                 f"buffer_load_dwordx4 v{self.v+q}, s[{self.srd}:{self.srd+3}], s{self.so} offen {'nt ' if (nt and not self.isA) else ''}lds") for q in range(n)]

    def advance(self, a):
        if not self.seg:
            a(f"s_add_u32 s{self.so}, s{self.so}, {self.step}")
        a(f"s_add_u32 s{self.st}, s{self.st}, 1")
        a(f"s_cmp_eq_u32 s{self.st}, {self.g.nst}")
        a(f"s_cselect_b32 s{self.st}, 0, s{self.st}")
        if self.seg:
            self.seg_so(a)
        else:
            a(f"s_cselect_b32 s{self.so}, 0, s{self.so}")
        a(f"s_add_u32 s{self.lb}, s{self.lb}, {SLOT}")
        a(f"s_add_u32 s{self.sl}, s{self.sl}, 1")
        a(f"s_cmp_eq_u32 s{self.sl}, 3")
        a(f"s_cselect_b32 s7, {3*SLOT}, 0")
        a(f"s_cselect_b32 s{self.sl}, 0, s{self.sl}")
        a(f"s_sub_u32 s{self.lb}, s{self.lb}, s7")


def p4_step(st, of, outs):
    sg, jl, x, d, nb, sh, t = 24, 25, 26, 27, 28, 29, 30
    g = [f"s_add_u32 s{t}, s{st}, s{of}", f"s_and_b32 s{t}, s{t}, 3", f"s_andn2_b32 s{sg}, s{st}, 3",
         f"s_add_u32 s{sg}, s{sg}, s{t}", f"s_sub_u32 s{jl}, s{sg}, 8", f"s_lshr_b32 s{jl}, s{jl}, 1",
         f"s_and_b32 s{x}, s{sg}, 1", f"s_mul_i32 s{x}, s{x}, 3", f"s_add_u32 s{x}, s{x}, 1",
         [f"s_cmp_lt_u32 s{sg}, 8", f"s_cselect_b32 s{jl}, s{sg}, s{jl}", f"s_cselect_b32 s{x}, 0, s{x}",
          f"s_cselect_b32 s{d}, 3, 1", f"s_cselect_b32 s{sh}, 16, 0"],
         f"s_sub_u32 s{t}, s{sg}, 24", f"s_lshl_b32 s{t}, s{t}, 1",
         [f"s_cmp_ge_u32 s{sg}, 24", f"s_cselect_b32 s{jl}, s{t}, s{jl}", f"s_cselect_b32 s{x}, 6, s{x}",
          f"s_cselect_b32 s{d}, 7, s{d}", f"s_cselect_b32 s{nb}, 3, 1"],
         f"s_mul_i32 s{t}, s{jl}, 7", f"s_add_u32 s{x}, s{x}, s{t}", f"s_add_u32 s{d}, s{d}, s{x}"]
    a0, a1, b0, b1, nd = outs
    if a0 is not None:
        g += [f"s_lshl_b32 s{a0}, s{x}, 10", f"s_lshl_b32 s{a1}, s{d}, 10", f"s_sub_u32 s{a1}, s{a1}, 1024"]
    if b0 is not None:
        g += [f"s_lshl_b32 s{b0}, s{x}, 16", f"s_lshl_b32 s{b1}, s{d}, 16"]
    if nd is not None:
        g += [f"s_lshl_b32 s{t}, s5, 3", f"s_add_u32 s{sh}, s{sh}, s{jl}", f"s_add_u32 s{sh}, s{sh}, s{t}",
              f"s_lshl_b32 s{nd}, s{nb}, s{sh}"]
    return [(y if isinstance(y, list) else [y]) for y in g]


class Stream4(Stream):
    SO2 = {True: 80, False: 81}
    ND = 82

    def tiles(self, a):
        o = (self.so, self.SO2[True], None, None, self.ND) if self.isA else (None, None, self.so, self.SO2[False], None)
        for grp in p4_step(self.st, self.of, o):
            for t in grp:
                a(t)

    def init(self, a):
        g = self.g
        a(f"s_mov_b32 s{self.st}, 0")
        a(f"s_add_u32 s{self.of}, s{g.mj[0]}, s{g.mj[1]}")
        self.tiles(a)
        a(f"s_mul_i32 s{self.lb}, s6, {2048 if self.isA else 1024}")
        a(f"s_add_u32 s{self.lb}, s{self.lb}, {g.slot0 * SLOT + (0 if self.isA else g.Boff)}")
        a(f"s_mov_b32 s{self.sl}, {g.slot0}")

    def need(self, a, ok):
        a(f"s_mov_b32 s34, s{self.ND}")
        a(f"s_andn2_b32 s3, s34, s{RDY}")
        a(f"s_cbranch_scc0 {ok}")

    def loads(self, n, nt=False):
        so = [self.so, self.SO2[self.isA]]
        if self.isA:
            return [(f"s_add_u32 m0, s{self.lb}, {(q>>1)*8192}",
                     f"buffer_load_dwordx4 v{self.v+(q>>1)}, s[{self.srd}:{self.srd+3}], s{so[q&1]} offen offset:{(q&1)*1024} sc1 lds") for q in range(n)]
        return [(f"s_add_u32 m0, s{self.lb}, {q*4096}",
                 f"buffer_load_dwordx4 v{self.v+q}, s[{self.srd}:{self.srd+3}], s{so[q&1]} offen lds") for q in range(n)]

    def advance(self, a):
        a(f"s_add_u32 s{self.st}, s{self.st}, 1")
        self.tiles(a)
        a(f"s_add_u32 s{self.lb}, s{self.lb}, {SLOT}")
        a(f"s_add_u32 s{self.sl}, s{self.sl}, 1")
        a(f"s_cmp_eq_u32 s{self.sl}, 3")
        a(f"s_cselect_b32 s7, {3*SLOT}, 0")
        a(f"s_cselect_b32 s{self.sl}, 0, s{self.sl}")
        a(f"s_sub_u32 s{self.lb}, s{self.lb}, s7")


class Rec:
    def __init__(self):
        self.g = []
        self.open = False

    def __call__(self, t):
        if self.open:
            self.g[-1].append(t)
        else:
            self.g.append([t])

    def begin(self):
        self.g.append([])
        self.open = True

    def end(self):
        self.open = False


def issue(a, items, nt=False, fill=None, ready=True, mid=0):
    if ready:
        for (s_, n) in items:
            s_.wait_ready(a, len(items) == 1)
    ls = [s.loads(n, nt) for (s, n) in items]
    seq = []
    for q in range(max(len(x) for x in ls)):
        for x in ls:
            if q < len(x):
                seq.append(x[q])
    fill = list(fill or [])
    commit = None
    if OPT["gadv"] and len(items) == 2:
        B_, A_ = items[0][0], items[1][0]
        g_ = A_.g
    if OPT["gadv"] and len(items) == 2 and g_.n == 4:
        fill = ([[f"s_add_u32 s{A_.st}, s{A_.st}, 1"]] + p4_step(A_.st, A_.of, (90, 76, 91, 77, A_.ND)) +
                [[f"s_add_u32 s{A_.sl}, s{A_.sl}, 1"],
                 [f"s_cmp_eq_u32 s{A_.sl}, 3", f"s_cselect_b32 s93, {3*SLOT}, 0", f"s_cselect_b32 s{A_.sl}, 0, s{A_.sl}"],
                 [f"s_sub_u32 s93, {SLOT}, s93"]] + fill)
        commit = [f"s_mov_b32 s{A_.so}, s90", f"s_mov_b32 s{B_.so}, s91", "s_mov_b32 s80, s76", "s_mov_b32 s81, s77",
                  f"s_add_u32 s{A_.lb}, s{A_.lb}, s93", f"s_add_u32 s{B_.lb}, s{B_.lb}, s93"]
    elif OPT["gadv"] and len(items) == 2:
        pre_ = [f"s_add_u32 s{A_.st}, s{A_.st}, 1", [f"s_cmp_eq_u32 s{A_.st}, {g_.nst}", f"s_cselect_b32 s{A_.st}, 0, s{A_.st}"]]
        if A_.seg:
            pre_ += [f"s_add_u32 s92, s{A_.st}, s{A_.of}", "s_and_b32 s92, s92, 3", f"s_andn2_b32 s93, s{A_.st}, 3",
                     f"s_add_u32 s{A_.cur}, s93, s92"]
            cur = A_.cur
        else:
            cur = A_.st
        pre_ += [f"s_mul_i32 s90, s{cur}, {A_.step}", f"s_mul_i32 s91, s{cur}, {B_.step}",
                 f"s_add_u32 s{A_.sl}, s{A_.sl}, 1",
                 [f"s_cmp_eq_u32 s{A_.sl}, 3", f"s_cselect_b32 s93, {3*SLOT}, 0", f"s_cselect_b32 s{A_.sl}, 0, s{A_.sl}"],
                 f"s_sub_u32 s93, {SLOT}, s93"]
        fill = [(x if isinstance(x, list) else [x]) for x in pre_] + fill
        commit = [f"s_mov_b32 s{A_.so}, s90", f"s_mov_b32 s{B_.so}, s91", f"s_add_u32 s{A_.lb}, s{A_.lb}, s93",
                  f"s_add_u32 s{B_.lb}, s{B_.lb}, s93"]
    per = -(-len(fill) // max(1, len(seq) - 1)) if fill else 0
    last = None
    for k, (m0, ld) in enumerate(seq):
        if m0 != last:
            a(m0)
            last = m0
        a(ld)
        if mid and k == mid - 1:
            a(f"s_waitcnt vmcnt({mid})")
            a("s_barrier")
        for _ in range(per):
            if fill:
                for t in fill.pop(0):
                    a(t)
    for grp in fill:
        for t in grp:
            a(t)
    if commit:
        for t in commit:
            a(t)
    else:
        for (s, n) in items:
            s.advance(a)


ACC, WF, ONE, AD, TB, TT, VT = 64, 96, 128, 132, 133, 134, 32
A_CSS, A_CS3, A_ST, A_GA, A_GB, TID = 136, 137, 138, 139, 156, 157
ST = 140
AD2 = 158
A_XB, ZERO = 180, 184
A_SC = 166
SG = 160
PA = 168


def fold_setup(a, g):
    m, j = g.mj
    p1 = g.n == 1
    nsh = 16 if g.map else 8
    ncol = 3 * D if p1 else F
    wscs, flcs = (WS_CS1, FL_CS1) if p1 else (WS_CS, FL_CS3)
    row = 512 if g.B448 else 128
    a(f"v_and_b32 v{TT}, 15, v1")
    a(f"v_lshrrev_b32 v{AD}, 2, v{TT}")
    a(f"v_lshrrev_b32 v{TB}, 4, v1")
    a(f"v_lshl_add_u32 v{AD}, v{TB}, 3, v{AD}")
    a(f"v_mul_u32_u24 v{AD}, {row}, v{AD}")
    a(f"v_and_b32 v{TT}, 3, v1")
    a(f"v_lshl_add_u32 v{AD}, v{TT}, 3, v{AD}")
    a(f"v_and_b32 v{TB}, 1, v{TB}")
    if g.B448:
        a(f"v_bfe_u32 v{TT}, v1, 2, 2")
        a(f"v_lshl_or_b32 v{TB}, v{TB}, 2, v{TT}")
        a(f"s_and_b32 s3, s{j}, 1")
        a("s_lshl_b32 s3, s3, 1")
        a("s_add_u32 s3, s3, s6")
        a(f"v_add_u32 v{AD}, {g.slot0*SLOT + g.Boff}, v{AD}")
        a("s_add_u32 s7, s3, 4")
        a(f"v_xor_b32 v{TT}, s7, v{TB}")
        a(f"v_lshl_add_u32 v{AD2}, v{TT}, 5, v{AD}")
        a(f"v_xor_b32 v{TT}, s3, v{TB}")
        a(f"v_lshl_add_u32 v{AD}, v{TT}, 5, v{AD}")
    else:
        a(f"v_bfe_u32 v{TT}, v1, 3, 1")
        a(f"v_lshl_or_b32 v{TB}, v{TB}, 1, v{TT}")
        a(f"v_xor_b32 v{TB}, s6, v{TB}")
        a(f"v_lshl_add_u32 v{AD}, v{TB}, 5, v{AD}")
        a(f"v_add_u32 v{AD}, {g.slot0*SLOT + g.Boff}, v{AD}")
    if p1 and OPT["hrot"]:
        a(f"s_and_b32 s78, s{m}, 7")
        a("s_mul_i32 s3, s78, 86")
        a("s_lshr_b32 s3, s3, 8")
        a("s_mul_i32 s3, s3, 3")
        a("s_sub_u32 s3, s78, s3")
        a(f"s_mul_i32 s3, s3, {SLOT}")
        a(f"v_add_u32 v{AD}, s3, v{AD}")
        a("s_lshl_b32 s79, 11, s78")
        a("s_or_b32 s79, s79, 0x2b")
        a("s_mov_b32 s77, 0")
    d = SLOT if g.slot0 < 2 else -2 * SLOT
    a(f"v_add_u32 v{AD+3}, {d & 0xffffffff}, v{AD}")
    if g.B448:
        a(f"v_add_u32 v{AD2+1}, {d & 0xffffffff}, v{AD2}")
    for i in range(4):
        a(f"v_mov_b32 v{ONE+i}, 0x3f803f80")
    for i in range(16):
        a(f"v_mov_b32 v{ACC+i}, 0")
    srd(a, 24, PWS, wscs, 16 * ncol * 4)
    if p1:
        srd(a, 28, PWS, WS_ST1, S * 8)
    else:
        srd(a, 28, PWS, WS_ST, 16 * S * 8)
        srd(a, 76, PB1, 0, F * 2)
    a(f"v_lshrrev_b32 v{TT}, 4, v1")
    a(f"v_lshlrev_b32 v{TT}, 4, v{TT}")
    a(f"s_mul_i32 s3, s{m}, {ncol*4}")
    a(f"s_mul_i32 s7, s{j}, {256 if p1 else 896}")
    a("s_add_u32 s3, s3, s7")
    a("s_lshl_b32 s7, s6, 6")
    a("s_add_u32 s3, s3, s7")
    a(f"v_add_u32 v{TT}, s3, v{TT}")
    a(f"v_and_b32 v{TB}, 15, v1")
    a(f"v_cmp_eq_u32 vcc, 0, v{TB}")
    a(f"v_mov_b32 v{TB}, {BIG}")
    a(f"v_cndmask_b32 v{A_CSS}, v{TB}, v{TT}, vcc")
    a("s_lshl_b32 s3, s6, 6")
    a(f"v_add_u32 v{TID}, s3, v1")
    if p1:
        a("s_mov_b32 s80, 4096")
        a("s_mov_b32 s81, 8192")
        a(f"s_lshl_b32 s3, s{m}, 10")
        a(f"s_lshl_b32 s7, s{j}, 6")
        a("s_add_u32 s3, s3, s7")
        a("s_lshl_b32 s7, s6, 4")
        a("s_add_u32 s3, s3, s7")
        a(f"v_mov_b32 v{TT}, s3")
        a("v_cmp_eq_u32 vcc, 0, v1")
        a(f"v_cndmask_b32 v{A_ST}, v{TB}, v{TT}, vcc")
        a("v_cmp_gt_u32 vcc, 48, v1")
        a(f"v_lshrrev_b32 v{TT}, 4, v1")
        a(f"v_lshlrev_b32 v{TT}, 12, v{TT}")
        a(f"v_and_b32 v{A_GA}, 15, v1")
        a(f"v_lshl_add_u32 v{TT}, v{A_GA}, 4, v{TT}")
        a(f"s_lshl_b32 s3, s{j}, 8")
        a(f"v_add_u32 v{TT}, s3, v{TT}")
        a(f"v_cndmask_b32 v{A_GA}, v{TB}, v{TT}, vcc")
        a(f"s_lshl_b32 s3, s{m}, 7")
        a("s_sub_u32 s3, s3, 16")
        a(f"v_add_u32 v{TT}, s3, v{TID}")
        a(f"v_max_i32 v{TT}, 0, v{TT}")
        a(f"v_lshlrev_b32 v{TT}, 3, v{TT}")
        a(f"v_cmp_gt_u32 vcc, 144, v{TID}")
        a(f"v_cndmask_b32 v{A_GB}, v{TB}, v{TT}, vcc")
    else:
        a("s_cmp_ge_u32 s6, 2")
        a(f"s_cselect_b32 s3, {BIG}, 0")
        a(f"v_max_u32 v{A_CS3}, s3, v{A_CSS}")
        a(f"v_lshlrev_b32 v{A_ST}, 4, v1")
        a(f"s_lshl_b32 s3, s{m}, 10")
        a("s_lshl_b32 s7, s6, 16")
        a("s_add_u32 s3, s3, s7")
        a(f"v_add_u32 v{A_ST}, s3, v{A_ST}")
        a("v_cmp_gt_u32 vcc, 56, v1")
        a(f"v_lshlrev_b32 v{TT}, 4, v1")
        a(f"s_mul_i32 s3, s{j}, 896")
        a(f"v_add_u32 v{TT}, s3, v{TT}")
        a(f"v_cndmask_b32 v{A_GA}, v{TB}, v{TT}, vcc")
        a(f"v_cmp_gt_u32 vcc, 224, v{TID}")
        a(f"v_lshlrev_b32 v{TT}, 1, v{TID}")
        a(f"s_mul_i32 s3, s{j}, 448")
        a(f"v_add_u32 v{TT}, s3, v{TT}")
        a(f"v_cndmask_b32 v{A_GB}, v{TB}, v{TT}, vcc")
    if nsh == 8:
        a(f"s_and_b32 s82, s{m}, 8")
        a(f"s_mul_i32 s82, s82, {ncol*4}")
    else:
        a("s_mov_b32 s82, 0")
    a(f"s_mul_i32 s3, s6, {(nsh // 4) * ncol * 4}")
    a("s_add_u32 s82, s82, s3")
    a(f"v_lshlrev_b32 v{A_SC}, 4, v1")
    a("s_lshl_b32 s3, s6, 10")
    a(f"s_add_u32 s3, s3, {L_SC}")
    a(f"v_add_u32 v{A_SC}, s3, v{A_SC}")
    srd(a, 84, PWS, WS_FL, 65536)
    a("v_cmp_eq_u32 vcc, 0, v1")
    flag_off(a, 7, flcs - WS_FL, j, m)
    a(f"v_mov_b32 v{TT}, s7")
    a(f"v_cndmask_b32 v{SG}, v{TB}, v{TT}, vcc")
    if p1:
        flag_off(a, 7, 0, m, j)
        a(f"v_mov_b32 v{TT}, s7")
        a(f"v_cndmask_b32 v{SG+4}, v{TB}, v{TT}, vcc")
    else:
        a(f"v_mov_b32 v{SG+2}, s{NONCE}")
        a(f"v_mov_b32 v{SG+3}, s{NONCE+1}")
    a(f"v_lshlrev_b32 v{PA}, 3, v1")
    a(f"s_lshl_b32 s3, s{j}, 9")
    a(f"s_add_u32 s3, s3, {flcs}")
    if p1:
        a(f"s_lshl_b32 s7, s{m}, 9")
        a(f"s_add_u32 s7, s7, {WS_FL}")
        a(f"v_add_u32 v{PA+1}, s7, v{PA}")
        a(f"v_or_b32 v{PA+2}, 56, v1")
        a(f"v_lshlrev_b32 v{PA+2}, 3, v{PA+2}")
        a(f"s_cmp_eq_u32 s{m}, 0")
        a("s_cselect_b32 s34, 0, 512")
        a("s_sub_u32 s7, s7, s34")
        a(f"v_add_u32 v{PA+2}, s7, v{PA+2}")
    if nsh == 8:
        a(f"v_and_b32 v{PA}, 0xff, v{PA}")
        a(f"s_and_b32 s7, s{m}, 8")
        a("s_lshl_b32 s7, s7, 5")
        a("s_add_u32 s3, s3, s7")
    a(f"v_add_u32 v{PA}, s3, v{PA}")
    if p1:
        a("s_lshl_b32 s3, s6, 4")
        a(f"s_add_u32 s3, s3, {L_P0}")
        a(f"v_mov_b32 v{TB}, s3")
        a(f"v_mov_b32 v{VT}, 0")
        a(f"v_mov_b32 v{VT+1}, {L_NONCE}")
        a("s_lshl_b32 s3, s2, 2")
        a("s_add_u32 s3, s3, s6")
        a("s_lshl_b32 s3, s3, 13")
        a(f"s_add_u32 s3, s3, {WS_XB}")
        a(f"v_lshlrev_b32 v{A_XB}, 4, v1")
        a(f"v_add_u32 v{A_XB}, s3, v{A_XB}")
        a(f"v_add_u32 v{A_XB+1}, 4096, v{A_XB}")
        for i in range(4):
            a(f"v_mov_b32 v{ZERO+i}, 0")


LGK = [False]
WARM = {"left": [56, 56], "save": None}


def warm(a, n, iters=1):
    if not OPT["warm"]:
        return
    w = 0 if WARM["phase"] == 1 else 1
    n = min(n, WARM["left"][w] // iters)
    if n <= 0:
        return
    WARM["left"][w] -= n * iters
    b = 88 if w else 32
    for i in range(n):
        a(f"s_load_dwordx2 s[{90+2*(i&1)}:{91+2*(i&1)}], s[{b}:{b+1}], {60+128*i}")
    a(f"s_add_u32 s{b}, s{b}, {128*n}")
    a(f"s_addc_u32 s{b+1}, s{b+1}, 0")


def fold_body(a, g, both, c, loop, sfx):
    p1 = g.n == 1
    P = f"LD{g.n}{sfx}"
    nsh = 16 if g.map else 8
    nstg = 1 if g.map else 2
    nu = 3 if p1 else 4
    ncol = 3 * D if p1 else F
    npw = nsh // 4

    def cs_reads(r, ad):
        for h in range(2):
            for i in range(nu):
                for jj in range(2):
                    off = (i * 8192 + jj * 512 + h * 4096) if p1 else ((i >> 1) * 256 + jj * 2048 + h * 16384)
                    v = ad if (p1 or not i & 1) else (AD2 if ad == AD else AD2 + 1)
                    r(f"ds_read_b64_tr_b16 {vr(WF+16*h+4*i+2*jj,2)}, v{v} offset:{off}")
        LGK[0] = True

    def cs_mfma(r):
        for h in range(2):
            for i in range(nu):
                r(f"v_mfma_f32_16x16x32_bf16 {vr(ACC+4*i,4)}, {vr(WF+16*h+4*i,4)}, {vr(ONE,4)}, {vr(ACC+4*i,4)}")

    def f0(r):
        if p1:
            r(f"ds_read_b128 {vr(ST,4)}, v{TB}")
        cs_reads(r, AD)
        return 0

    def f1(r):
        n = 0
        if p1:
            r.begin()
            r("s_mov_b64 exec, 1")
            r(f"buffer_store_dwordx4 {vr(ST,4)}, v{A_ST}, s[28:31], 0 offen sc1")
            r(f"global_load_dwordx2 v[{VT+2}:{VT+3}], v{VT}, s[{PDBG}:{PDBG+1}] sc1")
            r("s_mov_b64 exec, -1")
            r.end()
            n = 2
        cs_mfma(r)
        if nstg == 2:
            cs_reads(r, AD + 3)
        return n

    def f2(r):
        cs_mfma(r)
        return 0

    def f3(r):
        for i in range(nu):
            r.begin()
            r("s_mov_b32 exec_lo, 0x10001")
            r("s_mov_b32 exec_hi, 0x10001")
            if p1:
                r(f"buffer_store_dwordx4 {vr(ACC+4*i,4)}, v{A_CSS}, s[24:27], {['0','s80','s81'][i]} offen sc1")
            else:
                r(f"buffer_store_dwordx4 {vr(ACC+4*i,4)}, v{A_CSS if i < 3 else A_CS3}, s[24:27], 0 offen offset:{i*256} sc1")
            r("s_mov_b64 exec, -1")
            r.end()
        return nu

    def post3():
        nonce_check(a, P, VT)
        a(f"v_mov_b32 v{SG+2}, s{NONCE}")
        a(f"v_mov_b32 v{SG+3}, s{NONCE+1}")
        a(f"ds_write_b64 v{VT+1}, {vr(SG+2,2)}")

    def f5(r):
        r.begin()
        r("s_mov_b64 exec, 1")
        r(f"buffer_store_dwordx2 {vr(SG+2,2)}, v{SG}, s[84:85+2], 0 offen sc1".replace("85+2", "87"))
        if p1:
            r(f"buffer_store_dwordx2 {vr(SG+2,2)}, v{SG+4}, s[84:87], 0 offen sc1")
        r("s_mov_b64 exec, -1")
        r.end()
        return 2 if p1 else 1

    def pre_allready():
        a(f"{P}_ar:")
        a(f"s_cmp_eq_u32 s{RDY}, 0xffff")
        a(f"s_cbranch_scc1 {P}_ar2")
        poll_once(a)
        a(f"s_branch {P}_ar")
        a(f"{P}_ar2:")

    def f_stload(r):
        for i in range(4):
            r.begin()
            r(f"s_mov_b32 s3, {i*16384}")
            r(f"buffer_load_dwordx4 {vr(ST+4*i,4)}, v{A_ST}, s[28:31], s3 offen sc1")
            r.end()
        return 4

    def f_st1(r):
        for i in range(8):
            r(f"v_add_f32 v{ST+i}, v{ST+i}, v{ST+8+i}")
        for i in range(4):
            r(f"v_add_f32 v{ST+i}, v{ST+i}, v{ST+4+i}")
        r(f"ds_write_b128 v{A_SC}, {vr(ST,4)} offset:{L_SS-L_SC}")
        r(f"v_and_b32 v{TT}, 127, v{TID}")
        r(f"v_lshlrev_b32 v{TT}, 3, v{TT}")
        r(f"v_add_u32 v{TB}, {L_SS}, v{TT}")
        r(f"v_add_u32 v{TT}, {L_ROW}, v{TT}")
        r("s_waitcnt lgkmcnt(0)")
        return 0

    def f_st2(r):
        r(f"ds_read2st64_b64 {vr(ST,4)}, v{TB} offset0:0 offset1:2")
        r(f"ds_read2st64_b64 {vr(ST+4,4)}, v{TB} offset0:4 offset1:6")
        r("s_waitcnt lgkmcnt(0)")
        for i in range(4):
            r(f"v_add_f32 v{ST+i}, v{ST+i}, v{ST+4+i}")
        r(f"v_add_f32 v{ST}, v{ST}, v{ST+2}")
        r(f"v_add_f32 v{ST+1}, v{ST+1}, v{ST+3}")
        r(f"v_mul_f32 v{ST}, {hexf(1/1024)}, v{ST}")
        r(f"v_mul_f32 v{ST+1}, {hexf(1/1024)}, v{ST+1}")
        r(f"v_fma_f32 v{ST+1}, -v{ST}, v{ST}, v{ST+1}")
        r(f"v_max_f32 v{ST+1}, 0, v{ST+1}")
        ln_finish(r, ST, ST + 1, ST + 2)
        r(f"ds_write_b64 v{TT}, {vr(ST+2,2)}")
        return 0

    def mk_prew(k):
        def f(r):
            for gi in (2 * k, 2 * k + 1):
                r(f"global_store_dwordx4 v{A_XB+(gi>>2)}, {vr(ZERO,4)}, s[{PWS}:{PWS+1}] offset:{(gi&3)*1024} sc1")
            return 2
        return f

    addrs = [PA] + ([PA + 1, PA + 2] if p1 else [])

    def f_poll(r):
        poll_loads(r, addrs, PA + 4)
        return len(addrs)

    def post_check():
        poll_check(a, P + "cs", addrs, PA + 4)

    def tail0():
        a("s_mov_b32 s3, s82")
        for i in range(npw):
            a(f"buffer_load_dwordx4 {vr(ACC+4*i,4)}, v{A_GA}, s[24:27], s3 offen sc1")
            if i < npw - 1:
                a(f"s_add_u32 s3, s3, {ncol*4}")
        if p1:
            a(f"buffer_load_dwordx2 {vr(ST,2)}, v{A_GB}, s[28:31], 0 offen sc1")
        else:
            a(f"buffer_load_ushort v{WF}, v{A_GB}, s[76:79], 0 offen")
            pre_allready()
            r = Rec()
            f_stload(r)
            for grp in r.g:
                for t in grp:
                    a(t)
        a(f"v_lshlrev_b32 v{AD}, 2, v{TID}")
        a(f"v_add_u32 v{TB}, {L_SC}, v{AD}")
        a(f"v_add_u32 v{AD}, {L_RS}, v{AD}")
        if p1:
            a(f"v_lshlrev_b32 v{TT}, 3, v{TID}")
        else:
            a(f"v_and_b32 v{TT}, 127, v{TID}")
            a(f"v_lshlrev_b32 v{TT}, 3, v{TT}")
            a(f"v_add_u32 v{AD2}, {L_SS}, v{TT}")
        a(f"v_add_u32 v{TT}, {L_ROW}, v{TT}")
        a(f"v_mov_b32 v{VT}, {L_LCNT}")
        a(f"v_mov_b32 v{VT+1}, 1")
        return npw + 1 + (0 if p1 else 4)

    def tail1():
        a("s_setprio 3")
        k = npw
        while k > 1:
            k //= 2
            for i in range(4 * k):
                a(f"v_add_f32 v{ACC+i}, v{ACC+i}, v{ACC+i+4*k}")
        a(f"ds_write_b128 v{A_SC}, {vr(ACC,4)}")
        if not p1:
            for i in range(8):
                a(f"v_add_f32 v{ST+i}, v{ST+i}, v{ST+8+i}")
            for i in range(4):
                a(f"v_add_f32 v{ST+i}, v{ST+i}, v{ST+4+i}")
            a(f"ds_write_b128 v{A_SC}, {vr(ST,4)} offset:{L_SS-L_SC}")
        a("s_mov_b64 exec, 1")
        a("s_waitcnt lgkmcnt(0)")
        a(f"ds_add_u32 v{VT}, v{VT+1}")
        a(f"{P}_ls:")
        a(f"ds_read_b32 v{VT+2}, v{VT}")
        a("s_waitcnt lgkmcnt(0)")
        a(f"v_readfirstlane_b32 s3, v{VT+2}")
        a(f"s_cmp_lt_u32 s3, {4 if p1 else 8}")
        a(f"s_cbranch_scc1 {P}_ls")
        a("s_mov_b64 exec, -1")

    def tail2():
        if not p1:
            a(f"ds_read2st64_b64 {vr(ST,4)}, v{AD2} offset0:0 offset1:2")
            a(f"ds_read2st64_b64 {vr(ST+4,4)}, v{AD2} offset0:4 offset1:6")
        a(f"ds_read2st64_b32 {vr(ACC,2)}, v{TB} offset0:0 offset1:4")
        a(f"ds_read2st64_b32 {vr(ACC+2,2)}, v{TB} offset0:8 offset1:12")
        if p1:
            a(f"ds_write_b32 v{AD}, v{ST}")
            a(f"ds_write_b32 v{AD}, v{ST+1} offset:{L_NM-L_RS}")
            a(f"ds_write_b64 v{TT}, {vr(ST,2)}")
        else:
            a(f"v_lshlrev_b32 v{WF}, 16, v{WF}")
            a(f"ds_write_b32 v{AD}, v{WF} offset:{L_B1-L_RS}")
        a("s_waitcnt lgkmcnt(0)")
        a(f"v_add_f32 v{ACC}, v{ACC}, v{ACC+1}")
        a(f"v_add_f32 v{ACC+2}, v{ACC+2}, v{ACC+3}")
        a(f"v_add_f32 v{ACC}, v{ACC}, v{ACC+2}")
        a(f"ds_write_b32 v{AD}, v{ACC} offset:{L_CS-L_RS}")
        if not p1:
            for i in range(4):
                a(f"v_add_f32 v{ST+i}, v{ST+i}, v{ST+4+i}")
            a(f"v_add_f32 v{ST}, v{ST}, v{ST+2}")
            a(f"v_add_f32 v{ST+1}, v{ST+1}, v{ST+3}")
            a(f"v_mul_f32 v{ST}, {hexf(1/1024)}, v{ST}")
            a(f"v_mul_f32 v{ST+1}, {hexf(1/1024)}, v{ST+1}")
            a(f"v_fma_f32 v{ST+1}, -v{ST}, v{ST}, v{ST+1}")
            a(f"v_max_f32 v{ST+1}, 0, v{ST+1}")
            ln_finish(a, ST, ST + 1, ST + 2)
            a(f"ds_write_b64 v{TT}, {vr(ST+2,2)}")
        a("s_waitcnt lgkmcnt(0)")
        a(f"s_setprio {OPT['prio']}")

    fill = {1: f1, 3: f3, 5: f5, 11: f_poll}
    post = {13: post_check}
    pre = {}
    nowarm = {0, 1}
    if nstg == 2:
        fill[2] = f2
    if p1 and OPT["hrot"]:
        def cond(r, reg, val, body):
            LAB[0] += 1
            r(f"s_cmp_lg_u32 s{reg}, {val}")
            r(f"s_cbranch_scc1 CD{LAB[0]}")
            lab = LAB[0]
            body(r)
            r(f"CD{lab}:")

        def flat(f):
            def body(r):
                q = Rec()
                f(q)
                for grp in q.g:
                    for t in grp:
                        r(t)
            return body

        a(f"{P}_hl:")
        r = Rec()
        r.begin()
        cond(r, 78, 0, lambda q: cs_reads(q, AD))
        r.end()
        issue(a, both, fill=r.g)
        a("s_bitcmp1_b32 s79, s77")
        a(f"s_cbranch_scc0 {P}_hs")
        cond(a, 77, 0, lambda q: q(f"ds_read_b128 {vr(ST,4)}, v{TB}"))
        a("s_waitcnt lgkmcnt(0)")

        def mf(q):
            q("s_setprio 3")
            cs_mfma(q)
            q(f"s_setprio {OPT['prio']}")
        cond(a, 78, 0, mf)
        cond(a, 78, -1, flat(f3))

        def sig(k):
            def body(q):
                q("s_mov_b64 exec, 1")
                q(f"buffer_store_dwordx2 {vr(SG+2,2)}, v{SG+k}, s[84:87], 0 offen sc1")
                q("s_mov_b64 exec, -1")
            return body

        def p0st(q):
            q("s_mov_b64 exec, 1")
            q(f"buffer_store_dwordx4 {vr(ST,4)}, v{A_ST}, s[28:31], 0 offen sc1")
            q(f"global_load_dwordx2 v[{VT+2}:{VT+3}], v{VT}, s[{PDBG}:{PDBG+1}] sc1")
            q("s_mov_b64 exec, -1")
        cond(a, 77, 1, p0st)
        cond(a, 77, 3, lambda q: post3())
        cond(a, 78, -3, sig(0))
        cond(a, 77, 5, sig(4))
        a(f"{P}_hs:")
        a(f"s_waitcnt vmcnt({c})")
        a("s_barrier")
        a("s_sub_u32 s78, s78, 1")
        a("s_add_u32 s77, s77, 1")
        a("s_cmp_lt_u32 s77, 13")
        a(f"s_cbranch_scc1 {P}_hl")
        poll_loads(a, addrs, PA + 4)
        issue(a, both)
        a(f"s_waitcnt vmcnt({c})")
        a("s_barrier")

        def tail0h():
            post_check()
            return tail0()
        return tail0h, tail1, tail2
    fill[0] = f0
    i = 0
    if p1:
        post[3] = post3

    if not OPT["warm"]:
        nowarm = set()
    tag = 0
    special = set(fill) | set(post) | set(pre) | nowarm
    while i <= g.nst - 3:
        if i in special:
            if i in pre:
                pre[i]()
            r = Rec()
            LGK[0] = False
            x = fill[i](r) if i in fill else 0
            hot = any(t.startswith("v_") for grp in r.g for t in grp)
            if hot:
                a("s_setprio 3")
            issue(a, both, fill=r.g)
            if hot:
                a(f"s_setprio {OPT['prio']}")
            if i in post:
                post[i]()
            if i not in nowarm:
                warm(a, WARM["rate"])
            a(f"s_waitcnt vmcnt({c})" + (" lgkmcnt(0)" if LGK[0] else ""))
            a("s_barrier")
            i += 1
        else:
            k = i
            while k <= g.nst - 3 and k not in special:
                k += 1
            loop(f"t{tag}", k - i)
            tag += 1
            i = k
    return tail0, tail1, tail2


def code_touch(a, lab0, lab1, vt, vo, always=False):
    if not OPT["ctouch"]:
        return
    LAB[0] += 1
    L = f"CT{LAB[0]}"
    a("s_getpc_b64 s[34:35]")
    a(f"{L}:")
    a(f"s_add_u32 s34, s34, {lab0}-{L}")
    a(f"s_addc_u32 s35, s35, ({lab0}-{L})>>32")
    a("s_lshl_b32 s3, s6, 7")
    a(f"v_lshlrev_b32 v{vo}, 9, v1")
    a(f"v_add_u32 v{vo}, s3, v{vo}")
    a(f"v_cmp_gt_u32 vcc, {lab1}-{lab0}, v{vo}")
    a("s_mov_b64 exec, vcc")
    if not always:
        a(f"s_cbranch_execz {L}_e")
    a(f"global_load_dword v{vt}, v{vo}, s[34:35]")
    a(f"{L}_e:")
    a("s_mov_b64 exec, -1")


def gen_loader(a):
    a("LOADER:")
    a.hist = []
    a("s_sub_u32 s6, s6, 4")
    if OPT["prio"]:
        a(f"s_setprio {OPT['prio']}")
    a("v_lshrrev_b32 v2, 3, v1")
    a("v_and_b32 v3, 7, v1")
    vA, vBs = 8, [16, 24]
    srdB = [12, 16]
    regsB = [(36, 37, 38, 39, 46), (40, 41, 42, 43, 47)]
    regsA = (20, 21, 22, 23, 45, 97)
    SB = {p: (Stream4 if p == 4 else Stream)(PH[p], False, srdB[p & 1], vBs[p & 1], *regsB[p & 1]) for p in (1, 2, 3, 4)}

    def prepB(p):
        srd(a, SB[p].srd, *PH[p].B)
        ld_offsets_B(a, PH[p], SB[p].v)
        SB[p].init(a)

    ld_offsets_B(a, PH[1], SB[1].v)
    SB[1].init(a)
    SA1 = Stream(PH[1], True, 8, vA, *regsA)
    ld_offsets_A(a, PH[1], vA)
    SA1.init(a)
    a("s_waitcnt lgkmcnt(0)")
    srd(a, SB[1].srd, *PH[1].B)
    a("s_or_b32 s3, s2, s6")
    a("s_cmp_lg_u32 s3, 0")
    a("s_cbranch_scc1 LD_nopub")
    a("s_mov_b64 s[34:35], s[98:99]" if OPT["early"] else "s_memrealtime s[34:35]")
    a("v_mov_b32 v6, 0")
    a("s_waitcnt lgkmcnt(0)")
    a("s_or_b32 s34, s34, 1")
    a("v_mov_b32 v4, s34")
    a("v_mov_b32 v5, s35")
    a("s_mov_b64 exec, 1")
    a(f"global_store_dwordx2 v6, v[4:5], s[{PDBG}:{PDBG+1}] sc1")
    a("s_mov_b64 exec, -1")
    a("LD_nopub:")
    stamp(a, "l", "start")
    a("s_lshl_b32 s3, s2, 2")
    a("s_add_u32 s3, s3, s6")
    a("s_mul_i32 s3, s3, 7168")
    a(f"s_add_u32 s88, s{PW2}, s3")
    a(f"s_addc_u32 s89, s{PW2+1}, 0")
    a(f"s_add_u32 s32, s{PW1}, s3")
    a(f"s_addc_u32 s33, s{PW1+1}, 0")
    for p in (1, 2, 3, 4):
        g = PH[p]
        P = f"LD{p}"
        m, j = g.mj
        SA = (Stream4 if p == 4 else Stream)(g, True, 8, vA, *regsA)
        POLLW[0] = 32 if p == 4 else 16
        srd(a, 8, *g.A)
        if p > 1:
            ld_offsets_A(a, g, vA)
            SA.init(a)
        nBq = g.nB // 4
        nAq = (g.nA + 3) // 4
        if p > 1:
            a(f"s_lshl_b32 s3, s{m}, 11")
            a(f"s_add_u32 s3, s3, {WS_FD + (p-1)*32768}")
            a("s_mov_b32 s83, s3")
            a(f"v_mov_b32 v{PF+4}, {L_RDY + 4*(p-1)}")
            a(f"v_lshlrev_b32 v{PF}, 7, v1")
            a(f"v_add_u32 v{PF}, s3, v{PF}")
            if p == 4:
                a(f"v_add_u32 v{PF+1}, {(-3*32768 - 2048) & 0xffffffff}, v{PF}")
                a("v_cmp_gt_u32 vcc, 16, v1")
                a(f"v_cndmask_b32 v{PF}, v{PF+1}, v{PF}, vcc")
            a(f"s_mov_b64 s[{RDY}:{RDY+1}], 0")
            a(f"s_mov_b32 s{TMO}, 0x40000")
            if p == 2:
                prepB(p + 1)
            if p == 3:
                srd(a, SB[4].srd, *PH[4].B)
                ld_offsets_B(a, PH[4], SB[4].v)
                fold_setup(a, g)
            stamp(a, "l", f"p{p}_prepoll")
        variants = [(nAq, "")]
        if g.nA % 4:
            variants = [(nAq, "x"), (nAq - 1, "y")]
            a(f"s_cmp_ge_u32 s6, {g.nA % 4}")
            a(f"s_cbranch_scc1 {P}_y")
        for (na, sfx) in variants:
            if sfx == "y":
                a(f"{P}_y:")
            c = na + nBq
            WARM["phase"], WARM["rate"] = p, OPT[f"wr{p}"] if p < 4 else 0
            if sfx == "x":
                WARM["save"] = list(WARM["left"])
            if sfx == "y":
                WARM["left"] = list(WARM["save"])
            both = [(SB[p], nBq), (SA, na)]
            if p == 1:
                issue(a, both, OPT["nt1"] > 0)
                prepB(2)
                fold_setup(a, g)
                issue(a, both, mid=5)
            else:
                issue(a, [(SA, na)])
                stamp(a, "l", f"p{p}_A0")
                SA.need(a, f"{P}_x1")
                a("s_waitcnt vmcnt(0)")
                a("s_barrier")
                issue(a, [(SA, na)])
                a(f"s_branch {P}_x2")
                a(f"{P}_x1:")
                issue(a, [(SA, na)], ready=False, mid=min(na, 5))
            if p > 1:
                a(f"{P}_x2:")

            def loop(tag, cnt):
                a(f"s_mov_b32 s44, {cnt}")
                a(f"{P}_l{tag}{sfx}:")
                issue(a, both)
                warm(a, WARM["rate"], cnt)
                a(f"s_waitcnt vmcnt({c})")
                a("s_barrier")
                a("s_sub_u32 s44, s44, 1")
                a("s_cmp_lg_u32 s44, 0")
                a(f"s_cbranch_scc1 {P}_l{tag}{sfx}")

            if p in (2, 4):
                loop("a", g.nst - 2)
                tails = (lambda: None, lambda: None, lambda: None)
            else:
                tails = fold_body(a, g, both, c, loop, sfx)
            if p < 4:
                nb2 = PH[p + 1].nB // 4
                ng = tails[0]() or 0
                if p == 3:
                    SB[4].init(a)
                issue(a, [(SB[p + 1], nb2)])
                a(f"s_waitcnt vmcnt({nb2 + ng})")
                a("s_barrier")
                if ng:
                    a(f"s_waitcnt vmcnt({nb2})")
                tails[1]()
                tails[2]()
                code_touch(a, f"CT_e{p}", f"CT_e{p+1}", 48, 49)
                code_touch(a, f"LD{p}_e", f"LD{p+1}_e", 50, 49)
                a("s_barrier")
                issue(a, [(SB[p + 1], nb2)])
                if p == 1 and OPT["touch1"] and OPT["warm"] and WARM["left"][0]:
                    a(f"v_lshlrev_b32 v{TT}, 7, v1")
                    a(f"s_mov_b64 exec, {hex((1 << WARM['left'][0]) - 1)}")
                    a(f"global_load_dword v{TB}, v{TT}, s[32:33]")
                    a("s_mov_b64 exec, -1")
                if p == 3 and OPT["prewx"]:
                    for gi in range(6):
                        a(f"global_store_dwordx4 v{A_XB+(gi>>2)}, {vr(ZERO,4)}, s[{PWS}:{PWS+1}] offset:{(gi&3)*1024} sc1")
                WARM["phase"] = 2
                warm(a, OPT["wg"])
            else:
                a("s_waitcnt vmcnt(0)")
                a("s_barrier")
                code_touch(a, "CT_e4", "KEND", 48, 49)
                a("s_barrier")
            if sfx == "x":
                a(f"s_branch {P}_e")
        a(f"{P}_e:")
    print("warm lines not covered:", WARM["left"])
    stamp(a, "l", "end")
    stamp_flush(a, 4)
    a("s_endpgm")


def gen_mainloop(a, g, P):
    a(f"s_mov_b32 s42, {g.slot0}")
    a(f"s_mov_b32 s46, {(-2*SLOT) & 0xffffffff}")
    a(f"s_mov_b32 s47, {SLOT}")
    a(f"s_mov_b32 s43, {g.nst}")
    a("s_waitcnt lgkmcnt(0)")
    a("s_barrier")
    stamp(a, "c", f"p{g.n}_B0")
    rd0 = g.reads(0, 0)
    if OPT["peel"]:
        from asmx import Ins
        fl = g.reads(1, 1) + ["s_cmp_eq_u32 s42, 2", "s_cselect_b32 s44, s46, s47"] + [f"v_add_u32 v{v}, s44, v{v}" for v in g.adv]
        mf0 = g.mfmas(0)
        wr = [Ins(x).w for x in rd0]
        head = min(len(rd0), 10)
        for x in rd0[:head]:
            a(x)
        pending = rd0[head:] + fl
        issued, have = head, -1
        per = -(-len(pending) // len(mf0))
        nrd = len(rd0) + len(g.reads(1, 1))
        for mfi in mf0:
            k = max(i for i, w in enumerate(wr) if w & Ins(mfi).ra)
            while k >= issued:
                a(pending.pop(0))
                issued += 1
            if k > have:
                a(f"s_waitcnt lgkmcnt({min(min(issued, nrd) - 1 - k, 14)})")
                have = k
            a(mfi)
            for _ in range(per):
                if pending:
                    a(pending.pop(0))
                    issued += 1
        for x in pending:
            a(x)
        if OPT["stamp"] == 2:
            a("s_memtime s[98:99]")
        a(f"s_branch {P}_h1")
    else:
        for r in rd0:
            a(r)
    a(f"{P}_loop:")
    U = 1 if OPT["stamp"] == 2 and not OPT["unr"] else max(1, OPT["unr"])
    dn = len(g.reads(0, 0)) if (OPT["rd2"] == 2 or (OPT["rd2"] and g.n in (2, 4))) else 0
    for k in range(U):
        sal = ["s_cmp_eq_u32 s42, 2", "s_cselect_b32 s44, s46, s47"]
        sal2 = ["s_add_u32 s42, s42, 1", "s_cmp_eq_u32 s42, 3", "s_cselect_b32 s42, 0, s42", "s_sub_u32 s43, s43, 1"]
        if k == U - 1:
            sal2 += ["s_cmp_lg_u32 s43, 0"]
        a("s_waitcnt lgkmcnt(0)")
        if OPT["stamp"] == 2:
            base = {1: 0, 2: 17, 3: 26, 4: 0}[g.n]
            a(f"s_add_u32 m0, s43, {base}")
            a(f"v_writelane_b32 v{253 if g.n == 4 else 252}, s98, m0")
            a("s_memtime s[98:99]")
        interleave(a, g.mfmas(0), g.reads(1, 1) + sal + [f"v_add_u32 v{v}, s44, v{v}" for v in g.adv], dense=dn)
        if k == 0:
            a(f"{P}_h1:")
        a("s_waitcnt lgkmcnt(0)")
        interleave(a, g.mfmas(1), g.reads(0, 0) + sal2, first=["s_barrier"], dense=dn)
    a(f"s_cbranch_scc1 {P}_loop")
    if P != "P1a":
        a(f"CT_e{g.n}:")
    a("s_waitcnt lgkmcnt(0)")
    if OPT["stamp"] == 2:
        a(f"v_writelane_b32 v{253 if g.n == 4 else 252}, s98, {base}")
    stamp(a, "c", f"p{g.n}_loopend")


L15, GQ = 2, 3


def b_addr128(a, V, units, sbase):
    t = V.alloc()
    f = V.alloc()
    base = V.alloc()
    a(f"v_bfe_u32 v{f}, v{L15}, 3, 1")
    a(f"v_and_b32 v{t}, 1, v{GQ}")
    a(f"v_lshl_or_b32 v{f}, v{t}, 1, v{f}")
    a(f"v_lshrrev_b32 v{t}, 2, v{L15}")
    a(f"v_lshl_add_u32 v{t}, v{GQ}, 3, v{t}")
    a(f"v_lshlrev_b32 v{base}, 7, v{t}")
    a(f"v_and_b32 v{t}, 3, v{L15}")
    a(f"v_lshl_add_u32 v{base}, v{t}, 3, v{base}")
    a(f"v_add_u32 v{base}, s{sbase}, v{base}")
    out = []
    for u in units:
        v0 = V.alloc()
        a(f"v_xor_b32 v{t}, {u}, v{f}")
        a(f"v_lshl_add_u32 v{v0}, v{t}, 5, v{base}")
        out.append(v0)
    return out


def zero_acc(a, acc, n):
    for i in range(n):
        a(f"v_mov_b32 v{acc+i}, 0")


def pair_post(a, tag, vt):
    a("s_lshl_b32 s3, s6, 2")
    a(f"s_add_u32 s3, s3, {L_PAIR}")
    a(f"v_mov_b32 v{vt}, s3")
    a(f"v_mov_b32 v{vt+1}, {tag}")
    a("s_waitcnt lgkmcnt(0)")
    a(f"ds_write_b32 v{vt}, v{vt+1}")


def pair_wait(a, lab, tag, xor, vt):
    a(f"v_xor_b32 v{vt}, {xor*4}, v{vt}")
    a(f"{lab}_ps:")
    a(f"ds_read_b32 v{vt+1}, v{vt}")
    a("s_waitcnt lgkmcnt(0)")
    a(f"v_readfirstlane_b32 s3, v{vt+1}")
    a(f"s_cmp_lg_u32 s3, {tag}")
    a(f"s_cbranch_scc1 {lab}_ps")


def finish_phase(a, p, g, vt):
    m, j = g.mj
    a(f"s_lshl_b32 s7, s{m}, 11")
    a(f"s_lshl_b32 s3, s{j}, 7")
    a("s_add_u32 s7, s7, s3")
    a(f"s_add_u32 s7, s7, {WS_FD + p*32768}")
    a(f"v_mov_b32 v{vt}, {L_CNT}")
    a(f"v_mov_b32 v{vt+1}, 1")
    a(f"v_mov_b32 v{vt+2}, s{NONCE}")
    a(f"v_mov_b32 v{vt+3}, s{NONCE+1}")
    a("s_mov_b64 exec, 1")
    a("s_waitcnt vmcnt(0)")
    a(f"ds_add_rtn_u32 v{vt+1}, v{vt}, v{vt+1}")
    a(f"v_mov_b32 v{vt}, s7")
    a("s_waitcnt lgkmcnt(0)")
    a(f"v_readfirstlane_b32 s3, v{vt+1}")
    a(f"s_cmp_lg_u32 s3, {4*p-1}")
    a(f"s_cbranch_scc1 FIN{p}")
    a(f"global_store_dwordx2 v{vt}, v[{vt+2}:{vt+3}], s[{PWS}:{PWS+1}] sc1")
    a(f"FIN{p}:")
    a("s_mov_b64 exec, -1")
    stamp(a, "c", f"p{p}_done")


def frag_lane_off(a, d, t):
    a(f"v_and_b32 v{t}, 1, v{GQ}")
    a(f"v_lshlrev_b32 v{d}, 9, v{t}")
    a(f"v_lshrrev_b32 v{t}, 1, v{GQ}")
    a(f"v_lshl_add_u32 v{d}, v{t}, 8, v{d}")
    a(f"v_lshl_add_u32 v{d}, v{L15}, 4, v{d}")


def gen_p0(a):
    g = PH[1]
    m, j = g.mj
    a(f"s_lshl_b32 s3, s{m}, 7")
    a(f"s_lshl_b32 s7, s{j}, 3")
    a("s_add_u32 s3, s3, s7")
    a("s_lshl_b32 s7, s6, 1")
    a("s_add_u32 s34, s3, s7")
    a("s_lshl_b32 s3, s34, 11")
    a("v_lshlrev_b32 v4, 4, v1")
    a("s_waitcnt lgkmcnt(0)")
    stamp(a, "c", "start")
    srd(a, 8, PX, 0, S * D * 2)
    for rr in range(2):
        for hh in range(2):
            a(f"buffer_load_dwordx4 v[{24+rr*8+hh*4}:{27+rr*8+hh*4}], v4, s[8:11], s3 offen offset:{rr*2048+hh*1024}")
    a("s_lshl_b32 s3, s6, 2")
    a(f"s_add_u32 s3, s3, {L_PAIR}")
    a("v_mov_b32 v5, s3")
    a("v_mov_b32 v6, 0")
    a("ds_write_b32 v5, v6")
    a(f"v_mov_b32 v5, {L_CNT}")
    a("ds_write_b32 v5, v6")
    a(f"ds_write_b32 v5, v6 offset:{L_LCNT-L_CNT}")
    a(f"ds_write_b32 v5, v6 offset:{L_CNT2-L_CNT}")
    for i in range(1, 4):
        a(f"ds_write_b32 v5, v6 offset:{L_RDY-L_CNT+4*i}")


def gen_p0t(a):
    if OPT["tlb"]:
        sh = OPT["tlb"]
        a("s_cmp_eq_u32 s6, 2")
        a(f"s_cselect_b64 s[12:13], s[{PW1}:{PW1+1}], s[{PWO}:{PWO+1}]")
        a(f"s_cselect_b32 s14, {D*F*2}, 0")
        a("s_cmp_eq_u32 s6, 3")
        a(f"s_cselect_b64 s[12:13], s[{PW2}:{PW2+1}], s[12:13]")
        a(f"s_cselect_b32 s14, {D*F*2}, s14")
        a("s_cmp_eq_u32 s6, 1")
        a(f"s_cselect_b32 s14, {D*D*2}, s14")
        a("s_mov_b32 s15, 0x20000")
        a("s_lshr_b32 s3, s2, 3")
        a("s_lshl_b32 s3, s3, 6")
        a("v_add_u32 v51, s3, v1")
        a(f"v_lshlrev_b32 v51, {sh}, v51")
        a("buffer_load_dword v242, v51, s[12:15], 0 offen")
    code_touch(a, "CT_s", "CT_e1", 240, 51, True)
    code_touch(a, "LOADER", "LD1_e", 241, 51, True)
    a("CT_s:")


def gen_p0b(a):
    a(f"s_waitcnt vmcnt({(2 if OPT['ctouch'] else 0) + (1 if OPT['tlb'] else 0)})")
    a("v_mov_b32 v48, 0x3f803f80")
    R = [40, 41, 42, 43]
    for i in range(8):
        for rr in range(2):
            x = 24 + rr * 8 + i
            a(f"v_dot2_f32_bf16 v{R[2*rr]}, v{x}, v48, {'0' if i == 0 else 'v%d' % R[2*rr]}")
            a(f"v_dot2_f32_bf16 v{R[2*rr+1]}, v{x}, v{x}, {'0' if i == 0 else 'v%d' % R[2*rr+1]}")
    a("s_nop 2")
    wave_sum_multi(a, R, [44, 45, 46, 47])
    for rr in range(2):
        a(f"v_mul_f32 v{R[2*rr]}, {hexf(1.0/1024)}, v{R[2*rr]}")
        a(f"v_mul_f32 v{R[2*rr+1]}, {hexf(1.0/1024)}, v{R[2*rr+1]}")
        a(f"v_fma_f32 v{R[2*rr+1]}, -v{R[2*rr]}, v{R[2*rr]}, v{R[2*rr+1]}")
        a(f"v_max_f32 v{R[2*rr+1]}, 0, v{R[2*rr+1]}")
    for rr in range(2):
        ln_finish(a, R[2 * rr], R[2 * rr + 1], 44 + 2 * rr)
    a("s_lshl_b32 s3, s6, 4")
    a(f"s_add_u32 s3, s3, {L_P0}")
    a("v_mov_b32 v48, s3")
    a("ds_write_b128 v48, v[44:47]")
    if OPT["prew"]:
        for p in (1, 2, 3):
            m, j = PH[p].mj
            a(f"s_lshl_b32 s7, s{m}, 11")
            a(f"s_lshl_b32 s3, s{j}, 7")
            a("s_add_u32 s7, s7, s3")
            a(f"s_add_u32 s{36+p}, s7, {WS_FD + p*32768}")
        a(f"s_sub_u32 s40, s39, {3*32768}")
        a("s_cmp_eq_u32 s6, 0")
        a("s_cselect_b32 s37, s40, s37")
        a("s_cmp_eq_u32 s6, 2")
        a("s_cselect_b32 s37, s38, s37")
        a("s_cmp_eq_u32 s6, 3")
        a("s_cselect_b32 s37, s39, s37")
        a("v_lshlrev_b32 v54, 4, v1")
        a("v_add_u32 v54, s37, v54")
        for i in range(4):
            a(f"v_mov_b32 v{56+i}, 0")
        a("s_mov_b64 exec, 0xff")
        a(f"global_store_dwordx4 v54, v[56:59], s[{PWS}:{PWS+1}] sc1")
        a("s_mov_b64 exec, -1")
    stamp(a, "c", "p0_done")


def gen_p1(a):
    g = PH[1]
    m, j = g.mj
    g2 = PH[2]
    V = Regs("v", 68, RES)
    srd(a, 20, PWS, WS_O, S * D * 2)
    a("s_and_b32 s34, s6, 1")
    a("s_lshr_b32 s35, s6, 1")
    a("s_lshl_b32 s36, s34, 13")
    t = 4
    vA, vAh = [5, 6], [7, 8]
    for h in range(2):
        a(f"v_lshrrev_b32 v{t}, 1, v{L15}")
        a(f"v_xor_b32 v{t}, v{t}, v{GQ}")
        if h:
            a(f"v_xor_b32 v{t}, 4, v{t}")
        a(f"v_lshlrev_b32 v{t}, 4, v{t}")
        a(f"v_lshl_add_u32 v{vAh[h]}, v{L15}, 7, v{t}")
        if g.slot0:
            a(f"v_add_u32 v{vAh[h]}, {g.slot0*SLOT}, v{vAh[h]}")
        a(f"v_add_u32 v{vA[h]}, s36, v{vAh[h]}")
        a(f"v_add_u32 v{vA[h]}, 2048, v{vA[h]}")
    a(f"s_mov_b32 s36, {g.Boff + g.slot0*SLOT}")
    a("s_lshl_b32 s37, s35, 1")
    a("s_add_u32 s38, s37, 1")
    V2 = Regs("v", 12, 24)
    vB = b_addr128(a, V2, ["s37", "s38"], 36)
    acc = V.alloc(104, 4)
    W = [V.alloc(24, 4), 0]
    X = [V.alloc(20, 4), 0]
    W[1], X[1] = 24, 48
    accr = lambda t, u: acc + (t * 4 + u) * 4
    acch = lambda c: acc + 96 + c * 4
    zero_acc(a, acc, 104)
    gen_p0b(a)

    def reads(h, b):
        r = []
        for u in range(4):
            r.append(f"ds_read_b128 {vr(X[b]+4*u,4)}, v{vA[h]} offset:{u*2048}")
        for t in range(6):
            for jj in range(2):
                r.append(f"ds_read_b64_tr_b16 {vr(W[b]+4*t+2*jj,2)}, v{vB[t&1]} offset:{(t>>1)*8192+jj*512+h*4096}")
            if t == 1:
                r.append(f"ds_read_b128 {vr(X[b]+16,4)}, v{vAh[h]}")
        return r

    def mk_mfmas(rsel):
        def mfmas(b):
            ml = []
            for t in range(6):
                for u in (range(4) if t % 2 == 0 else (3, 2, 1, 0)):
                    w, x, d = vr(W[b] + 4 * t, 4), vr(X[b] + 4 * u, 4), vr(accr(t, u), 4)
                    ml.append(f"v_mfma_f32_16x16x32_bf16 {d}, {w}, {x}, {d}" if t < 4 else
                              f"v_mfma_f32_16x16x32_bf16 {d}, {x}, {w}, {d}")
                if (t >> 1) == 1 + rsel:
                    w, x, d = vr(W[b] + 4 * t, 4), vr(X[b] + 16, 4), vr(acch(t & 1), 4)
                    ml.append(f"v_mfma_f32_16x16x32_bf16 {d}, {w}, {x}, {d}" if t < 4 else
                              f"v_mfma_f32_16x16x32_bf16 {d}, {x}, {w}, {d}")
            return ml
        return mfmas

    g.reads = reads
    g.adv = vA + vAh + vB
    a("s_cmp_eq_u32 s34, 1")
    a("s_cbranch_scc1 P1_r1")
    g.mfmas = mk_mfmas(0)
    gen_mainloop(a, g, "P1a")
    a("s_branch P1_epi")
    a("P1_r1:")
    g.mfmas = mk_mfmas(1)
    gen_mainloop(a, g, "P1b")
    a("P1_epi:")
    RP = 24
    CSq = 36
    CSv = 34
    R4 = W[0]
    N4 = W[0] + 20
    assert X[0] == W[0] + 24
    T = 52
    a("s_lshl_b32 s36, s34, 9")
    a(f"s_add_u32 s36, s36, {L_ROW + 128}")
    a(f"v_lshlrev_b32 v4, 3, v{L15}")
    a(f"v_add_u32 v5, {L_ROW}, v4")
    a(f"v_add_u32 v4, s36, v4")
    a(f"ds_read_b64 {vr(RP+8,2)}, v5")
    a(f"v_mov_b32 v16, {L_NONCE}")
    a("ds_read_b64 v[16:17], v16")
    a(f"v_lshlrev_b32 v6, 4, v{GQ}")
    a("s_lshl_b32 s36, s35, 7")
    a(f"s_add_u32 s36, s36, {L_CS}")
    a(f"v_add_u32 v7, s36, v6")
    for c in range(2):
        a(f"ds_read_b128 {vr(CSq+8+4*c,4)}, v7 offset:{256+64*c}")
    a(f"v_lshlrev_b32 v8, 2, v{L15}")
    a(f"v_add_u32 v8, s36, v8")
    a(f"ds_read2_b32 {vr(CSv,2)}, v8 offset0:128 offset1:144")
    a(f"v_add_u32 v9, {L_RS}, v6")
    a(f"ds_read_b128 {vr(R4+16,4)}, v9")
    a(f"ds_read_b128 {vr(N4+16,4)}, v9 offset:{L_NM-L_RS}")
    for u in (3, 2, 1, 0):
        a(f"ds_read_b64 {vr(RP+2*u,2)}, v4 offset:{u*128}")
    a("s_lshl_b32 s36, s34, 8")
    a(f"v_add_u32 v9, s36, v9")
    for u in (3, 2, 1, 0):
        a(f"ds_read_b128 {vr(R4+4*u,4)}, v9 offset:{64+64*u}")
        a(f"ds_read_b128 {vr(N4+4*u,4)}, v9 offset:{64+64*u+L_NM-L_RS}")
    for c in range(2):
        a(f"ds_read_b128 {vr(CSq+4*c,4)}, v7 offset:{64*c}")
    m2, j2 = g2.mj
    a(f"s_lshl_b32 s36, s{m2}, 7")
    a("s_lshl_b32 s37, s34, 6")
    a("s_add_u32 s36, s36, s37")
    a("s_lshl_b32 s37, s35, 5")
    a("s_add_u32 s36, s36, s37")
    a(f"v_add_u32 v10, s36, v{L15}")
    a("v_lshlrev_b32 v10, 11, v10")
    a(f"v_lshl_add_u32 v10, v{GQ}, 3, v10")
    a(f"s_lshl_b32 s36, s{j2}, 7")
    a("s_add_u32 s37, s36, 32768")
    for uu in range(2):
        for t_ in range(4):
            a(f"buffer_load_dwordx2 {vr(RES+8*uu+2*t_,2)}, v10, s[8:11], s{36+uu} offen offset:{32*t_}")

    def fold_qk(d, cs, rp):
        for i in (0, 2):
            a(f"v_pk_mul_f32 {vr(T+i,2)}, {vr(cs+i,2)}, {vr(rp,2)} op_sel:[0,1] op_sel_hi:[1,1]")
        for i in (0, 2):
            a(f"v_pk_fma_f32 {vr(d+i,2)}, {vr(d+i,2)}, {vr(rp,2)}, {vr(T+i,2)} op_sel:[0,0,0] op_sel_hi:[1,0,1]")

    def fold_v(d, c, ui):
        for i in (0, 2):
            a(f"v_pk_mul_f32 {vr(T+i,2)}, {vr(N4+4*ui+i,2)}, {vr(CSv,2)} op_sel:[0,{c}] op_sel_hi:[1,{c}]")
        for i in (0, 2):
            a(f"v_pk_fma_f32 {vr(d+i,2)}, {vr(d+i,2)}, {vr(R4+4*ui+i,2)}, {vr(T+i,2)}")

    def pack(dst, d):
        a(f"v_cvt_pk_bf16_f32 v{dst}, v{d}, v{d+1}")
        a(f"v_cvt_pk_bf16_f32 v{dst+1}, v{d+2}, v{d+3}")

    ex, PV = 12, 14
    a(f"v_lshlrev_b32 v{ex}, 4, v1")
    a("s_mul_i32 s36, s35, 3072")
    a(f"s_add_u32 s36, s36, {g.exch}")
    a(f"v_add_u32 v{ex}, s36, v{ex}")
    Hp = 60
    a("s_waitcnt lgkmcnt(0)")
    a(f"v_readfirstlane_b32 s{NONCE}, v16")
    a(f"v_readfirstlane_b32 s{NONCE+1}, v17")
    a("s_cmp_eq_u32 s34, 1")
    a("s_cbranch_scc1 P1_ex1")
    for c in range(2):
        fold_qk(accr(2 + c, 3), CSq + 8 + 4 * c, RP + 6)
        fold_v(accr(4 + c, 3), c, 3)
    for c in range(2):
        pack(Hp + 2 * c, accr(2 + c, 3))
        pack(Hp + 4 + 2 * c, accr(4 + c, 3))
    a(f"ds_write_b128 v{ex}, {vr(Hp,4)}")
    a(f"ds_write_b128 v{ex}, {vr(Hp+4,4)} offset:1024")
    pair_post(a, 1, PV)
    for c in range(2):
        fold_qk(acch(c), CSq + 8 + 4 * c, RP + 8)
    a("s_branch P1_ex2")
    a("P1_ex1:")
    for c in range(2):
        fold_v(acch(c), c, 4)
    for c in range(2):
        pack(Hp + 2 * c, acch(c))
    a(f"ds_write_b128 v{ex}, {vr(Hp,4)} offset:2048")
    pair_post(a, 1, PV)
    for c in range(2):
        fold_qk(accr(2 + c, 3), CSq + 8 + 4 * c, RP + 6)
        fold_v(accr(4 + c, 3), c, 3)
    a("P1_ex2:")
    for u in range(3):
        for c in range(2):
            fold_qk(accr(2 + c, u), CSq + 8 + 4 * c, RP + 2 * u)
            fold_v(accr(4 + c, u), c, u)
    a(f"s_mov_b32 s36, {hexf(32 ** -0.5 * math.log2(math.e))}")
    a("s_mov_b32 s37, s36")
    for u in range(4):
        a(f"v_pk_mul_f32 {vr(RP+2*u,2)}, {vr(RP+2*u,2)}, s[36:37]")
    for u in range(4):
        for c in range(2):
            fold_qk(accr(c, u), CSq + 4 * c, RP + 2 * u)
    Kf, Vp, Qf = W[0], [W[0] + 20, W[0] + 30], 24
    for u in range(4):
        for c in range(2):
            pack(Kf + 4 * (u + 1) + 2 * c, accr(2 + c, u))
            pack(Vp[c] + 2 * (u + 1), accr(4 + c, u))
            pack(Qf + 4 * u + 2 * c, accr(c, u))
    a("s_cmp_eq_u32 s34, 1")
    a("s_cbranch_scc1 P1_ex3")
    for c in range(2):
        pack(Kf + 2 * c, acch(c))
    pair_wait(a, "P1a", 1, 1, PV)
    for c in range(2):
        a(f"ds_read_b64 {vr(Vp[c],2)}, v{ex} offset:{2048+8*c}")
    a("s_branch P1_ex4")
    a("P1_ex3:")
    pair_wait(a, "P1b", 1, 1, PV)
    a(f"ds_read_b128 {vr(Kf,4)}, v{ex}")
    for c in range(2):
        a(f"ds_read_b64 {vr(Vp[c],2)}, v{ex} offset:{1024+8*c}")
    a("P1_ex4:")
    t0, t1 = acc, acc + 1
    MA, MB = acc + 2, acc + 4
    a(f"v_and_b32 v{t0}, 1, v{L15}")
    a(f"v_cmp_eq_u32 s[76:77], 1, v{t0}")
    a(f"v_lshl_add_u32 v{t0}, v{GQ}, 2, v{t0}")
    a(f"v_cmp_le_u32 s[78:79], v{t0}, v{L15}")
    a(f"v_add_u32 v{t0}, 2, v{t0}")
    a(f"v_cmp_le_u32 s[80:81], v{t0}, v{L15}")
    a(f"v_mov_b32 v{t0}, 0xffff")
    a(f"v_mov_b32 v{t1}, 0xffff0000")
    a(f"v_cndmask_b32 v{t0}, v{t0}, v{t1}, s[76:77]")
    a(f"v_cndmask_b32 v{MA}, v{t0}, 0, s[78:79]")
    a(f"v_cndmask_b32 v{MA+1}, 0, v{t0}, s[78:79]")
    a(f"v_cndmask_b32 v{MB}, v{t0}, 0, s[80:81]")
    a(f"v_cndmask_b32 v{MB+1}, 0, v{t0}, s[80:81]")
    a(f"s_or_b32 s36, s{m}, s34")
    a("s_cmp_eq_u32 s36, 0")
    a("s_cselect_b64 s[82:83], s[78:79], -1")
    a("s_cselect_b64 s[84:85], s[80:81], -1")
    vo = acc + 6
    frag_lane_off(a, vo, t0)
    a(f"s_lshl_b32 s36, s{m}, 3")
    a("s_lshl_b32 s37, s34, 2")
    a("s_add_u32 s36, s36, s37")
    a("s_lshl_b32 s36, s36, 5")
    a(f"s_lshl_b32 s37, s{j}, 1")
    a("s_add_u32 s36, s36, s37")
    a("s_add_u32 s36, s36, s35")
    a("s_lshl_b32 s36, s36, 10")
    a(f"v_add_u32 v{vo}, s36, v{vo}")
    NEG = acc + 7
    a(f"v_mov_b32 v{NEG}, 0xff800000")
    Sc = acc + 8
    for u in (1, 2, 3):
        for blk in range(2):
            a(f"v_mfma_f32_16x16x32_bf16 {vr(Sc+8*u+4*blk,4)}, {vr(Kf+4*(u+blk),4)}, {vr(Qf+4*u,4)}, 0")
    a("s_waitcnt lgkmcnt(0)")
    for blk in (1, 0):
        a(f"v_mfma_f32_16x16x32_bf16 {vr(Sc+4*blk,4)}, {vr(Kf+4*blk,4)}, {vr(Qf,4)}, 0")
    VA, VB_, MX, TM = acc + 40, acc + 44, acc + 48, acc + 52
    order = (1, 2, 3, 0)
    for u in order:
        s = Sc + 8 * u
        a(f"v_cndmask_b32 v{s}, v{s}, v{s+1}, s[76:77]")
        a(f"v_cndmask_b32 v{s+4}, v{s+4}, v{s+5}, s[76:77]")
        a(f"v_cndmask_b32 v{s+2}, v{s+2}, v{s+3}, s[76:77]")
        a(f"v_cndmask_b32 v{s+6}, v{s+6}, v{s+7}, s[76:77]")
        a(f"v_cndmask_b32 v{VA+u}, v{s}, v{s+4}, s[78:79]")
        a(f"v_cndmask_b32 v{VB_+u}, v{s+2}, v{s+6}, s[80:81]")
    a(f"v_cndmask_b32 v{VA}, v{NEG}, v{VA}, s[82:83]")
    a(f"v_cndmask_b32 v{VB_}, v{NEG}, v{VB_}, s[84:85]")
    for u in order:
        a(f"v_max_f32 v{MX+u}, v{VA+u}, v{VB_+u}")
    xrow_reduce_multi(a, "v_max_f32", [MX + u for u in order], [TM + u for u in order])
    for u in order:
        a(f"v_sub_f32 v{VA+u}, v{VA+u}, v{MX+u}")
        a(f"v_sub_f32 v{VB_+u}, v{VB_+u}, v{MX+u}")
    for u in order:
        a(f"v_exp_f32 v{VA+u}, v{VA+u}")
        a(f"v_exp_f32 v{VB_+u}, v{VB_+u}")
    for u in order:
        a(f"v_add_f32 v{MX+u}, v{VA+u}, v{VB_+u}")
    xrow_reduce_multi(a, "v_add_f32", [MX + u for u in order], [TM + u for u in order])
    for u in order:
        a(f"v_rcp_f32 v{MX+u}, v{MX+u}")
    for u in order:
        a(f"v_mul_f32 v{VA+u}, v{VA+u}, v{MX+u}")
        a(f"v_mul_f32 v{VB_+u}, v{VB_+u}, v{MX+u}")
    for u in order:
        a(f"v_cvt_pk_bf16_f32 v{VA+u}, v{VA+u}, v{VA+u}")
        a(f"v_cvt_pk_bf16_f32 v{VB_+u}, v{VB_+u}, v{VB_+u}")
    Pp, Om = acc + 56, acc + 72
    for u in order:
        a(f"v_and_b32 v{Pp+4*u}, v{VA+u}, v{MA}")
        a(f"v_and_b32 v{Pp+4*u+1}, v{VB_+u}, v{MB}")
        a(f"v_and_b32 v{Pp+4*u+2}, v{VA+u}, v{MA+1}")
        a(f"v_and_b32 v{Pp+4*u+3}, v{VB_+u}, v{MB+1}")
    for u in order:
        for c in range(2):
            a(f"v_mfma_f32_16x16x32_bf16 {vr(Om+8*u+4*c,4)}, {vr(Vp[c]+2*u,4)}, {vr(Pp+4*u,4)}, 0")
    for u in range(4):
        a(f"s_mov_b32 s{76+u}, {u*32768}")
    for u in order:
        o = Om + 8 * u
        p = Sc + 4 * u
        for i in range(4):
            a(f"v_cvt_pk_bf16_f32 v{p+i}, v{o+2*i}, v{o+2*i+1}")
    for u in order:
        p = Sc + 4 * u
        a(f"v_permlane16_swap_b32 v{p}, v{p+2}")
        a(f"v_permlane16_swap_b32 v{p+1}, v{p+3}")
        a(f"buffer_store_dwordx4 {vr(p,4)}, v{vo}, s[20:23], s{76+u} offen sc1")
    stamp(a, "c", "p1_stored")
    finish_phase(a, 1, g, acc + 40)


def gen_p24(a, which):
    g = PH[which]
    m, j = g.mj
    k2 = which == 2
    P = f"P{which}"
    V = Regs("v", 4, RES)
    if k2:
        srd(a, 16, PWS, WS_H, S * D * 2)
        srd(a, 24, PWS, WS_ST, 16 * S * 8)
    else:
        srd(a, 16, POUT, 0, S * D * 2)
    a("s_and_b32 s34, s6, 1")
    a("s_lshr_b32 s35, s6, 1")
    vA = [V.alloc(), V.alloc()]
    a("s_lshl_b32 s36, s34, 14")
    a("s_lshl_b32 s37, s35, 11")
    a("s_add_u32 s36, s36, s37")
    a(f"s_add_u32 s36, s36, {g.slot0*SLOT}")
    a(f"v_lshlrev_b32 v{vA[0]}, 4, v1")
    a(f"v_add_u32 v{vA[0]}, s36, v{vA[0]}")
    a("s_lshl_b32 s37, s35, 13")
    a(f"s_sub_u32 s38, 8192, s37")
    a(f"v_add_u32 v{vA[1]}, s38, v{vA[0]}")
    a(f"v_add_u32 v{vA[0]}, s37, v{vA[0]}")
    a("s_lshl_b32 s36, s35, 13")
    a(f"s_add_u32 s36, s36, {g.Boff + g.slot0*SLOT}")
    vB = b_addr128(a, V, [0, 1, 2, 3], 36)
    acc = V.alloc(64, 4)
    X = [V.alloc(16, 4) for _ in range(2)]
    W = [V.alloc(16, 4) for _ in range(2)]
    accr = lambda t, u: acc + (t * 4 + u) * 4
    vo, t0, vrow, ex, exr, PV = V.alloc(), V.alloc(), V.alloc(), V.alloc(), V.alloc(), V.alloc(2)
    a(f"s_lshl_b32 s36, s{m}, 7")
    a("s_lshl_b32 s37, s34, 6")
    a("s_add_u32 s36, s36, s37")
    a("s_lshl_b32 s37, s35, 5")
    a("s_add_u32 s36, s36, s37")
    if k2:
        a(f"v_add_u32 v{vrow}, s36, v{L15}")
        a(f"v_lshlrev_b32 v{vrow}, 3, v{vrow}")
        a(f"v_cmp_eq_u32 vcc, 0, v{GQ}")
        a(f"v_mov_b32 v{t0}, {BIG}")
        a(f"v_cndmask_b32 v{vrow}, v{t0}, v{vrow}, vcc")
        frag_lane_off(a, vo, t0)
        a("s_lshl_b32 s36, s36, 11")
        a(f"s_lshl_b32 s37, s{j}, 11")
        a("s_add_u32 s36, s36, s37")
        a(f"v_add_u32 v{vo}, s36, v{vo}")
    else:
        a(f"v_add_u32 v{vo}, s36, v{L15}")
        a(f"v_lshlrev_b32 v{vo}, 11, v{vo}")
        a(f"v_and_b32 v{t0}, 1, v{GQ}")
        a(f"v_lshl_add_u32 v{vo}, v{t0}, 5, v{vo}")
        a(f"v_lshrrev_b32 v{t0}, 1, v{GQ}")
        a(f"v_lshl_add_u32 v{vo}, v{t0}, 4, v{vo}")
        a(f"s_lshl_b32 s36, s{j}, 7")
        a(f"v_add_u32 v{vo}, s36, v{vo}")
    a("s_mov_b32 s45, 32768")
    a(f"v_lshlrev_b32 v{ex}, 4, v1")
    a("s_lshl_b32 s36, s6, 13")
    a(f"v_add_u32 v{ex}, s36, v{ex}")
    a(f"v_xor_b32 v{exr}, 16384, v{ex}")
    a(f"v_add_u32 v{ex}, {g.exch}, v{ex}")
    a(f"v_add_u32 v{exr}, {g.exch}, v{exr}")
    for t in range(4):
        for uu in range(2):
            d = accr(t, uu)
            for i in range(2):
                a(f"v_lshlrev_b32 v{d+2*i}, 16, v{RES+8*uu+2*t+i}")
                a(f"v_and_b32 v{d+2*i+1}, 0xffff0000, v{RES+8*uu+2*t+i}")
        if not k2:
            z = accr(t, 2)
            for i in range(2):
                a(f"v_lshlrev_b32 v{z+2*i}, 16, v{BIA+2*t+i}")
                a(f"v_and_b32 v{z+2*i+1}, 0xffff0000, v{BIA+2*t+i}")
            for uu in range(2):
                for i in (0, 2):
                    a(f"v_pk_add_f32 {vr(accr(t,uu)+i,2)}, {vr(accr(t,uu)+i,2)}, {vr(z+i,2)}")
        zero_acc(a, accr(t, 2), 8)

    def reads(h, b):
        r = []
        for u in range(4):
            r.append(f"ds_read_b128 {vr(X[b]+4*u,4)}, v{vA[u>>1]} offset:{(u&1)*4096+h*1024}")
        for t in range(4):
            for jj in range(2):
                r.append(f"ds_read_b64_tr_b16 {vr(W[b]+4*t+2*jj,2)}, v{vB[t]} offset:{jj*512+h*4096}")
        return r

    def mfmas(b):
        ml = []
        for t in range(4):
            for u in ((2, 3, 0, 1) if t % 2 == 0 else (1, 0, 3, 2)):
                w, x, d = vr(W[b] + 4 * t, 4), vr(X[b] + 4 * u, 4), vr(accr(t, u), 4)
                ml.append(f"v_mfma_f32_16x16x32_bf16 {d}, {w}, {x}, {d}")
        return ml

    g.reads, g.mfmas = reads, mfmas
    g.adv = vA + vB
    gen_mainloop(a, g, P)
    for t in range(4):
        for uu in range(2):
            a(f"ds_write_b128 v{ex}, {vr(accr(t, 2+uu),4)} offset:{(t*2+uu)*1024}")
    pair_post(a, which, PV)
    pair_wait(a, P, which, 2, PV)
    Rv = X[0]
    assert X[1] == X[0] + 16
    lst = [(t, uu) for uu in range(2) for t in range(4)]
    for (t, uu) in lst:
        a(f"ds_read_b128 {vr(Rv+(t*2+uu)*4,4)}, v{exr} offset:{(t*2+uu)*1024}")
    ob = W[0]
    for n_, (t, uu) in enumerate(lst):
        a(f"s_waitcnt lgkmcnt({7-n_})")
        d = accr(t, uu)
        for i in (0, 2):
            a(f"v_pk_add_f32 {vr(d+i,2)}, {vr(d+i,2)}, {vr(Rv+(t*2+uu)*4+i,2)}")
        o = ob + 8 * uu + 2 * t
        a(f"v_cvt_pk_bf16_f32 v{o}, v{d}, v{d+1}")
        a(f"v_cvt_pk_bf16_f32 v{o+1}, v{d+2}, v{d+3}")
        if t & 1:
            o -= 2
            a(f"v_permlane16_swap_b32 v{o}, v{o+2}")
            a(f"v_permlane16_swap_b32 v{o+1}, v{o+3}")
            so = "s45" if uu else "0"
            if k2:
                a(f"buffer_store_dwordx4 {vr(o,4)}, v{vo}, s[16:19], {so} offen offset:{1024*(t>>1)} sc1")
            else:
                a(f"buffer_store_dwordx4 {vr(o,4)}, v{vo}, s[16:19], {so} offen offset:{64*(t>>1)} {['', 'sc1', 'nt', 'sc0 sc1', 'sc1 nt'][OPT['ost']]}")
    if k2:
        SM = [Rv, Rv + 2]
        PK = [Rv + 8, Rv + 10]
        PQ = [Rv + 12, Rv + 14]
        for uu in range(2):
            a(f"v_pk_add_f32 {vr(PK[uu],2)}, {vr(accr(0,uu),2)}, {vr(accr(0,uu)+2,2)}")
            a(f"v_pk_mul_f32 {vr(PQ[uu],2)}, {vr(accr(0,uu),2)}, {vr(accr(0,uu),2)}")
        for t in range(4):
            for i in (0, 2):
                for uu in range(2):
                    d = vr(accr(t, uu) + i, 2)
                    if t:
                        a(f"v_pk_add_f32 {vr(PK[uu],2)}, {vr(PK[uu],2)}, {d}")
                    if t or i:
                        a(f"v_pk_fma_f32 {vr(PQ[uu],2)}, {d}, {d}, {vr(PQ[uu],2)}")
        for uu in range(2):
            a(f"v_add_f32 v{SM[uu]}, v{PK[uu]}, v{PK[uu]+1}")
            a(f"v_add_f32 v{SM[uu]+1}, v{PQ[uu]}, v{PQ[uu]+1}")
        xrow_reduce_multi(a, "v_add_f32", [Rv, Rv + 1, Rv + 2, Rv + 3], [Rv + 4, Rv + 5, Rv + 6, Rv + 7])
        a(f"s_lshl_b32 s36, s{j}, 14")
        for uu in range(2):
            a(f"buffer_store_dwordx2 {vr(SM[uu],2)}, v{vrow}, s[24:27], s36 offen offset:{uu*128} sc1")
    stamp(a, "c", f"p{which}_stored")
    if k2:
        finish_phase(a, 2, g, X[1])


def gen_p4(a):
    g = PH[4]
    m, J = g.mj
    V = Regs("v", 4, RES)
    srd(a, 16, POUT, 0, S * D * 2)
    srd(a, 20, PWS, WS_XB, 256 * 4 * 8192)
    a("s_and_b32 s34, s6, 1")
    a("s_lshr_b32 s35, s6, 1")
    vA = [V.alloc(), V.alloc()]
    a("s_lshl_b32 s36, s34, 13")
    a(f"s_add_u32 s36, s36, {g.slot0*SLOT}")
    a(f"v_lshlrev_b32 v{vA[0]}, 4, v1")
    a(f"v_add_u32 v{vA[0]}, s36, v{vA[0]}")
    a("s_lshl_b32 s37, s5, 12")
    a("s_sub_u32 s38, 4096, s37")
    a(f"v_add_u32 v{vA[1]}, s38, v{vA[0]}")
    a(f"v_add_u32 v{vA[0]}, s37, v{vA[0]}")
    a("s_lshl_b32 s36, s35, 13")
    a(f"s_add_u32 s36, s36, {g.Boff + g.slot0*SLOT}")
    vB = b_addr128(a, V, [0, 1, 2, 3], 36)
    acc = V.alloc(64, 4)
    X = [V.alloc(16, 4) for _ in range(2)]
    W = [V.alloc(16, 4) for _ in range(2)]
    accr = lambda t, u: acc + (t * 4 + u) * 4
    vo, t0, xl = V.alloc(), V.alloc(), V.alloc()
    FA = V.alloc(6, 2)
    a(f"s_lshl_b32 s36, s{m}, 7")
    a("s_lshl_b32 s37, s34, 6")
    a("s_add_u32 s36, s36, s37")
    a("s_lshl_b32 s37, s5, 5")
    a("s_add_u32 s36, s36, s37")
    a(f"v_add_u32 v{vo}, s36, v{L15}")
    a(f"v_lshlrev_b32 v{vo}, 11, v{vo}")
    a(f"v_and_b32 v{t0}, 1, v{GQ}")
    a(f"v_lshl_add_u32 v{vo}, v{t0}, 5, v{vo}")
    a(f"v_lshrrev_b32 v{t0}, 1, v{GQ}")
    a(f"v_lshl_add_u32 v{vo}, v{t0}, 4, v{vo}")
    a(f"s_lshl_b32 s36, s{J}, 8")
    a("s_lshl_b32 s37, s35, 7")
    a("s_add_u32 s36, s36, s37")
    a(f"v_add_u32 v{vo}, s36, v{vo}")
    a("s_mov_b32 s45, 32768")
    a(f"v_lshlrev_b32 v{xl}, 4, v1")
    a("s_lshl_b32 s36, s2, 2")
    a("s_add_u32 s36, s36, s6")
    a("s_xor_b32 s37, s36, 8")
    a("s_lshl_b32 s76, s36, 13")
    a("s_add_u32 s77, s76, 4096")
    a("s_lshl_b32 s78, s37, 13")
    a("s_add_u32 s79, s78, 4096")
    a("s_lshl_b32 s36, s36, 7")
    a("s_lshl_b32 s37, s37, 7")
    a(f"s_add_u32 s36, s36, {WS_XF}")
    a(f"s_add_u32 s37, s37, {WS_XF}")
    a(f"v_mov_b32 v{FA}, s36")
    a(f"v_mov_b32 v{FA+1}, s37")
    a(f"v_mov_b32 v{FA+2}, s{NONCE}")
    a(f"v_mov_b32 v{FA+3}, s{NONCE+1}")
    for t in range(4):
        z = accr(t, 2)
        for i in range(2):
            a(f"v_lshlrev_b32 v{z+2*i}, 16, v{BIA+2*t+i}")
            a(f"v_and_b32 v{z+2*i+1}, 0xffff0000, v{BIA+2*t+i}")
        for uu in range(2):
            d = accr(t, uu)
            for i in range(2):
                a(f"v_lshlrev_b32 v{d+2*i}, 16, v{RES+8*uu+2*t+i}")
                a(f"v_and_b32 v{d+2*i+1}, 0xffff0000, v{RES+8*uu+2*t+i}")
        for uu in range(2):
            for i in (0, 2):
                a(f"v_pk_add_f32 {vr(accr(t,uu)+i,2)}, {vr(accr(t,uu)+i,2)}, {vr(z+i,2)}")
        zero_acc(a, accr(t, 2), 8)
    finish_phase(a, 3, PH[3], 244)

    def reads(h, b):
        r = []
        for u in range(4):
            r.append(f"ds_read_b128 {vr(X[b]+4*u,4)}, v{vA[u>>1]} offset:{(u&1)*2048+h*1024}")
        for t in range(4):
            for jj in range(2):
                r.append(f"ds_read_b64_tr_b16 {vr(W[b]+4*t+2*jj,2)}, v{vB[t]} offset:{jj*512+h*4096}")
        return r

    def mfmas(b):
        if b == 0:
            order = [(t, u) for t in range(4) for u in ((2, 3, 0, 1) if t % 2 == 0 else (1, 0, 3, 2))]
        else:
            order = [(t, u) for t in range(4) for u in ((2, 3) if t % 2 == 0 else (3, 2))]
            order += [(t, u) for t in (3, 2, 1, 0) for u in ((0, 1) if t % 2 else (1, 0))]
        return [f"v_mfma_f32_16x16x32_bf16 {vr(accr(t,u),4)}, {vr(W[b]+4*t,4)}, {vr(X[b]+4*u,4)}, {vr(accr(t,u),4)}" for (t, u) in order]

    g.reads, g.mfmas = reads, mfmas
    g.adv = vA + vB
    gen_mainloop(a, g, "P4")
    if OPT["tagx"]:
        lst = [(t, uu) for uu in range(2) for t in range(4)]
        SB_, RB = X[0], W[0]
        slot = lambda k: 4 * (k // 3) + k % 3
        for gi in range(6):
            a(f"v_mov_b32 v{SB_+4*gi+3}, s{NONCE}")
        done = 0
        for n_, (t, uu) in enumerate(lst):
            d = accr(t, 2 + uu)
            for i in range(2):
                a(f"v_cvt_pk_bf16_f32 v{SB_+slot(2*n_+i)}, v{d+2*i}, v{d+2*i+1}")
            while done < 6 and (3 * done + 2 <= 2 * n_ + 1 or n_ == 7):
                a(f"buffer_store_dwordx4 {vr(SB_+4*done,4)}, v{xl}, s[20:23], s{76+(done>>2)} offen offset:{(done&3)*1024} sc1")
                done += 1
        stamp(a, "c", "p4_sent")
        a("s_mov_b32 s3, 0x40000")
        if OPT["tagx"] == 2:
            a("s_mov_b32 exec_lo, 0")
            a("s_mov_b32 exec_hi, 0x80000000")
            a("P4_hl:")
            a(f"buffer_load_dword v{RB}, v{xl}, s[20:23], s79 offen offset:{1024+12} sc1")
            a("s_sub_u32 s3, s3, 1")
            a("s_waitcnt vmcnt(0)")
            a(f"v_cmp_eq_u32 vcc, s{NONCE}, v{RB}")
            a("s_cmp_eq_u32 s3, 0")
            a("s_cselect_b32 s3, 1, s3")
            a("s_cbranch_scc1 P4_hd")
            a("s_cmp_eq_u32 vcc_hi, 0")
            a("s_cbranch_scc1 P4_hl")
            a("P4_hd:")
            stamp(a, "c", "p4_hint")
            a("s_mov_b64 exec, -1")
        a("P4_pl:")
        for gi in range(6):
            a(f"buffer_load_dwordx4 {vr(RB+4*gi,4)}, v{xl}, s[20:23], s{78+(gi>>2)} offen offset:{(gi&3)*1024} sc1")
        a("s_sub_u32 s3, s3, 1")
        a("s_mov_b64 s[36:37], -1")
        for gi in range(6):
            a(f"s_waitcnt vmcnt({5-gi})")
            a(f"v_cmp_eq_u32 vcc, s{NONCE}, v{RB+4*gi+3}")
            a("s_and_b64 s[36:37], s[36:37], vcc")
        a("s_cmp_eq_u32 s3, 0")
        a("s_cbranch_scc1 P4_pd")
        a("s_cmp_eq_u64 s[36:37], -1")
        a("s_cbranch_scc0 P4_pl")
        a("P4_pd:")
        stamp(a, "c", "p4_got")
        if OPT["stamp"]:
            a("v_writelane_b32 v254, s3, 40")
        ob, Z = X[0], X[1] + 8
        for n_, (t, uu) in enumerate(lst):
            d = accr(t, uu)
            z = Z + 4 * (n_ & 1)
            for i in range(2):
                a(f"v_lshlrev_b32 v{z+2*i}, 16, v{RB+slot(2*n_+i)}")
                a(f"v_and_b32 v{z+2*i+1}, 0xffff0000, v{RB+slot(2*n_+i)}")
            for i in (0, 2):
                a(f"v_pk_add_f32 {vr(d+i,2)}, {vr(d+i,2)}, {vr(z+i,2)}")
            o = ob + 8 * uu + 2 * t
            a(f"v_cvt_pk_bf16_f32 v{o}, v{d}, v{d+1}")
            a(f"v_cvt_pk_bf16_f32 v{o+1}, v{d+2}, v{d+3}")
            if t & 1:
                o -= 2
                a(f"v_permlane16_swap_b32 v{o}, v{o+2}")
                a(f"v_permlane16_swap_b32 v{o+1}, v{o+3}")
                so = "s45" if uu else "0"
                a(f"buffer_store_dwordx4 {vr(o,4)}, v{vo}, s[16:19], {so} offen offset:{64*(t>>1)} {['', 'sc1', 'nt', 'sc0 sc1', 'sc1 nt'][OPT['ost']]}")
        stamp(a, "c", "p4_stored")
        return
    lst = [(t, uu) for uu in range(2) for t in range(4)]
    for n_, (t, uu) in enumerate(lst):
        a(f"buffer_store_dwordx4 {vr(accr(t,2+uu),4)}, v{xl}, s[20:23], s{76+uu} offen offset:{t*1024} sc1")
    a("s_mov_b32 s3, 0x40000")
    a("s_mov_b64 exec, 1")
    a("s_waitcnt vmcnt(0)")
    a(f"global_store_dwordx2 v{FA}, {vr(FA+2,2)}, s[{PWS}:{PWS+1}] sc1")
    stamp(a, "c", "p4_sent")
    a("P4_pl:")
    a(f"global_load_dwordx2 {vr(FA+4,2)}, v{FA+1}, s[{PWS}:{PWS+1}] sc1")
    a("s_sub_u32 s3, s3, 1")
    a("s_waitcnt vmcnt(0)")
    a(f"v_cmp_eq_u64 vcc, {vr(FA+2,2)}, {vr(FA+4,2)}")
    a("s_cmp_eq_u32 s3, 0")
    a("s_cbranch_scc1 P4_pd")
    a("s_cmp_eq_u32 vcc_lo, 0")
    a("s_cbranch_scc1 P4_pl")
    a("P4_pd:")
    a("s_mov_b64 exec, -1")
    Rv = X[0]
    assert X[1] == X[0] + 16
    for n_, (t, uu) in enumerate(lst):
        a(f"buffer_load_dwordx4 {vr(Rv+4*n_,4)}, v{xl}, s[20:23], s{78+uu} offen offset:{t*1024} sc1")
    ob = W[0]
    for n_, (t, uu) in enumerate(lst):
        a(f"s_waitcnt vmcnt({7 - n_ + (n_ >> 1)})")
        d = accr(t, uu)
        for i in (0, 2):
            a(f"v_pk_add_f32 {vr(d+i,2)}, {vr(d+i,2)}, {vr(Rv+4*n_+i,2)}")
        o = ob + 8 * uu + 2 * t
        a(f"v_cvt_pk_bf16_f32 v{o}, v{d}, v{d+1}")
        a(f"v_cvt_pk_bf16_f32 v{o+1}, v{d+2}, v{d+3}")
        if t & 1:
            o -= 2
            a(f"v_permlane16_swap_b32 v{o}, v{o+2}")
            a(f"v_permlane16_swap_b32 v{o+1}, v{o+3}")
            so = "s45" if uu else "0"
            a(f"buffer_store_dwordx4 {vr(o,4)}, v{vo}, s[16:19], {so} offen offset:{64*(t>>1)} {['', 'sc1', 'nt', 'sc0 sc1', 'sc1 nt'][OPT['ost']]}")
    stamp(a, "c", "p4_stored")


def gen_p3(a):
    g = PH[3]
    m, j = g.mj
    g4 = PH[4]
    V = Regs("v", 4, RES)
    srd(a, 16, PWS, WS_H1, S * F * 2)
    srd(a, 20, PB2, 0, D * 2)
    acc = V.alloc(112, 4)
    X = [V.alloc(16, 4) for _ in range(2)]
    W = [V.alloc(28, 4) for _ in range(2)]
    accr = lambda t, u: acc + (t * 4 + u) * 4
    a("s_and_b32 s34, s6, 1")
    a("s_lshr_b32 s35, s6, 1")
    vA = V.alloc()
    a("s_lshl_b32 s36, s34, 13")
    a(f"s_add_u32 s36, s36, {g.slot0*SLOT}")
    a(f"v_lshlrev_b32 v{vA}, 4, v1")
    a(f"v_add_u32 v{vA}, s36, v{vA}")
    t = X[0]
    base, f = X[0] + 1, X[0] + 2
    vB = [V.alloc() for _ in range(7)]
    a(f"v_lshrrev_b32 v{t}, 2, v{L15}")
    a(f"v_and_b32 v{f}, 1, v{GQ}")
    a(f"v_lshl_or_b32 v{f}, v{f}, 2, v{t}")
    a(f"v_lshl_add_u32 v{t}, v{GQ}, 3, v{t}")
    a(f"v_lshlrev_b32 v{base}, 9, v{t}")
    a(f"v_and_b32 v{t}, 3, v{L15}")
    a(f"v_lshl_add_u32 v{base}, v{t}, 3, v{base}")
    a(f"v_add_u32 v{base}, {g.Boff + g.slot0*SLOT}, v{base}")
    a(f"s_and_b32 s36, s{j}, 1")
    a("s_lshl_b32 s36, s36, 1")
    a("s_add_u32 s37, s36, s35")
    a("s_add_u32 s37, s37, 12")
    a("s_mul_i32 s38, s35, 6")
    a("s_add_u32 s36, s36, s38")
    for t_ in range(7):
        a(f"v_xor_b32 v{t}, s{36 if t_ < 6 else 37}, v{f}")
        a(f"v_lshl_add_u32 v{vB[t_]}, v{t}, 5, v{base}")
        if t_ < 5:
            a("s_add_u32 s36, s36, 1")
    RP, CSr, B1r = X[0], W[0], W[1]
    e0, vo, ex, KK, tq = 240, 244, 246, 248, X[0] + 3
    a("s_lshl_b32 s36, s34, 9")
    a(f"s_add_u32 s36, s36, {L_ROW}")
    a(f"v_lshlrev_b32 v{e0}, 3, v{L15}")
    a(f"v_add_u32 v{e0}, s36, v{e0}")
    a(f"v_lshlrev_b32 v{e0+1}, 4, v{GQ}")
    a("s_lshl_b32 s36, s35, 6")
    a(f"s_add_u32 s36, s36, {L_CS + 768}")
    a(f"v_add_u32 v{e0+2}, s36, v{e0+1}")
    a("s_mul_i32 s36, s35, 384")
    a(f"s_add_u32 s36, s36, {L_CS}")
    a(f"v_add_u32 v{e0+1}, s36, v{e0+1}")
    a(f"v_lshlrev_b32 v{e0+3}, 3, v{GQ}")
    a(f"s_lshl_b32 s82, s{g4.mj[1]}, 8")
    a("s_lshl_b32 s36, s35, 7")
    a("s_add_u32 s82, s82, s36")
    srd(a, 24, PWS, WS_H, S * D * 2)
    hv = 250
    a(f"v_lshrrev_b32 v{hv}, 1, v{GQ}")
    a(f"v_lshlrev_b32 v{hv}, 8, v{hv}")
    a(f"v_lshl_add_u32 v{hv}, v{L15}, 4, v{hv}")
    a(f"v_and_b32 v{tq}, 1, v{GQ}")
    a(f"v_lshl_add_u32 v{hv}, v{tq}, 3, v{hv}")
    a(f"s_lshl_b32 s36, s{g4.mj[0]}, 3")
    a("s_lshl_b32 s37, s34, 2")
    a("s_add_u32 s36, s36, s37")
    a("s_lshl_b32 s37, s5, 1")
    a("s_add_u32 s36, s36, s37")
    a("s_lshl_b32 s36, s36, 5")
    a(f"s_lshl_b32 s37, s{g4.mj[1]}, 2")
    a("s_add_u32 s36, s36, s37")
    a("s_lshl_b32 s37, s35, 1")
    a("s_add_u32 s36, s36, s37")
    a("s_lshl_b32 s83, s36, 10")
    a("s_add_u32 s84, s83, 32768")
    a(f"s_lshl_b32 s85, s{m}, 11")
    a(f"s_lshl_b32 s36, s{j}, 7")
    a("s_add_u32 s85, s85, s36")
    a(f"s_add_u32 s85, s85, {WS_FD}")
    assert g.mj[0] == g4.mj[0]
    frag_lane_off(a, vo, tq)
    a(f"s_lshl_b32 s36, s{m}, 3")
    a("s_lshl_b32 s37, s34, 2")
    a("s_add_u32 s36, s36, s37")
    a("s_mul_i32 s36, s36, 112")
    a(f"s_mul_i32 s37, s{j}, 7")
    a("s_add_u32 s36, s36, s37")
    a("s_lshl_b32 s36, s36, 10")
    a(f"v_add_u32 v{vo}, s36, v{vo}")
    a("s_mul_i32 s36, s35, 3072")
    for u in range(4):
        a(f"s_add_u32 s{76+u}, s36, {u*112*1024}")
    a(f"s_mul_i32 s36, s35, {2*112*1024}")
    a("s_add_u32 s80, s36, 6144")
    a(f"s_add_u32 s81, s80, {112*1024}")
    a(f"v_lshlrev_b32 v{ex}, 4, v1")
    a("s_lshl_b32 s36, s34, 12")
    a(f"s_add_u32 s36, s36, {g.exch}")
    a(f"v_add_u32 v{ex}, s36, v{ex}")
    a("s_lshl_b32 s36, s35, 3")
    a(f"v_add_u32 v{ex+1}, s36, v{ex}")
    a("s_lshl_b32 s36, s35, 11")
    a(f"v_add_u32 v{ex}, s36, v{ex}")
    k1 = -2.0 * math.sqrt(2.0 / math.pi) * math.log2(math.e)
    a(f"v_mov_b32 v{KK}, {hexf(k1*0.044715)}")
    a(f"v_mov_b32 v{KK+1}, {hexf(k1)}")
    zero_acc(a, acc, 112)

    def reads(h, b):
        r = []
        for u in range(4):
            r.append(f"ds_read_b128 {vr(X[b]+4*u,4)}, v{vA} offset:{u*2048+h*1024}")
        for t_ in range(7):
            for jj in range(2):
                r.append(f"ds_read_b64_tr_b16 {vr(W[b]+4*t_+2*jj,2)}, v{vB[t_]} offset:{jj*2048+h*16384}")
        return r

    def mfmas(b):
        ml = []
        for t_ in range(7):
            for u in (range(4) if t_ % 2 == 0 else (3, 2, 1, 0)):
                w, x, d = vr(W[b] + 4 * t_, 4), vr(X[b] + 4 * u, 4), vr(accr(t_, u), 4)
                ml.append(f"v_mfma_f32_16x16x32_bf16 {d}, {w}, {x}, {d}")
        return ml

    g.reads, g.mfmas = reads, mfmas
    g.adv = [vA] + vB
    gen_mainloop(a, g, "P3")
    for u in range(4):
        a(f"ds_read_b64 {vr(RP+2*u,2)}, v{e0} offset:{u*128}")
    for t_ in range(6):
        a(f"ds_read_b128 {vr(CSr+4*t_,4)}, v{e0+1} offset:{t_*64}")
        a(f"ds_read_b128 {vr(B1r+4*t_,4)}, v{e0+1} offset:{1024+t_*64}")
        if t_ == 1:
            a(f"ds_read_b128 {vr(CSr+24,4)}, v{e0+2}")
            a(f"ds_read_b128 {vr(B1r+24,4)}, v{e0+2} offset:1024")
    for t_ in range(4):
        a(f"buffer_load_dwordx2 {vr(BIA+2*t_,2)}, v{e0+3}, s[20:23], s82 offen offset:{32*t_}")
    for uu in range(2):
        for t_ in range(4):
            a(f"buffer_load_dwordx2 {vr(RES+8*uu+2*t_,2)}, v{hv}, s[24:27], s{83+uu} offen offset:{(t_>>1)*1024+(t_&1)*512} sc1")
    T, PV = X[1], X[0] + 8
    a("s_waitcnt lgkmcnt(8)")

    def gelu2(tiles, o):
        ch = [(accr(t_, u) + i, T + 4 * k + i, t_, u, i) for k, (t_, u) in enumerate(tiles) for i in (0, 2)]
        for (d, tt, t_, u, i) in ch:
            a(f"v_pk_fma_f32 {vr(tt,2)}, {vr(CSr+4*t_+i,2)}, {vr(RP+2*u,2)}, {vr(B1r+4*t_+i,2)} op_sel:[0,1,0] op_sel_hi:[1,1,1]")
        for (d, tt, t_, u, i) in ch:
            a(f"v_pk_fma_f32 {vr(d,2)}, {vr(d,2)}, {vr(RP+2*u,2)}, {vr(tt,2)} op_sel:[0,0,0] op_sel_hi:[1,0,1]")
        for (d, tt, t_, u, i) in ch:
            a(f"v_pk_mul_f32 {vr(tt,2)}, {vr(d,2)}, {vr(d,2)}")
        for (d, tt, t_, u, i) in ch:
            a(f"v_pk_fma_f32 {vr(tt,2)}, {vr(tt,2)}, {vr(KK,2)}, {vr(KK,2)} op_sel:[0,0,1] op_sel_hi:[1,0,1]")
        for (d, tt, t_, u, i) in ch:
            a(f"v_pk_mul_f32 {vr(tt,2)}, {vr(tt,2)}, {vr(d,2)}")
        for i in range(8):
            a(f"v_exp_f32 v{T+i}, v{T+i}")
        for (d, tt, t_, u, i) in ch:
            a(f"v_pk_add_f32 {vr(tt,2)}, {vr(tt,2)}, 1.0 op_sel_hi:[1,0]")
        for i in range(8):
            a(f"v_rcp_f32 v{T+i}, v{T+i}")
        for (d, tt, t_, u, i) in ch:
            a(f"v_pk_mul_f32 {vr(d,2)}, {vr(d,2)}, {vr(tt,2)}")
        for k, (d, tt, t_, u, i) in enumerate(ch):
            a(f"v_cvt_pk_bf16_f32 v{o+k}, v{d}, v{d+1}")

    obs = [X[0] + 12, X[1] + 12]
    pend = [None]

    def flush():
        if pend[0] is None:
            return
        o, so, off = pend[0]
        pend[0] = None
        a(f"v_permlane16_swap_b32 v{o}, v{o+2}")
        a(f"v_permlane16_swap_b32 v{o+1}, v{o+3}")
        a(f"buffer_store_dwordx4 {vr(o,4)}, v{vo}, s[16:19], s{so} offen offset:{off} sc1")

    EC = X[0] + 10
    n_ = 0
    for p in range(3):
        for u in range(4):
            o = obs[n_ & 1]
            n_ += 1
            gelu2([(2 * p, u), (2 * p + 1, u)], o)
            pend[0] = (o, 76 + u, 1024 * p)
            flush()
            k_ = 4 * p + u - 4
            if k_ == OPT["ew"]:
                a(f"v_mov_b32 v{EC}, {L_CNT2}")
                a(f"v_mov_b32 v{EC+1}, 1")
                a("s_mov_b64 exec, 1")
                a(f"s_waitcnt vmcnt({k_+1})")
                a(f"ds_add_rtn_u32 v{EC+1}, v{EC}, v{EC+1}")
                a("s_mov_b64 exec, -1")
            if p == 1 and u == 1:
                pair_wait(a, "P3", 3, 2, PV)
                for uu in range(2):
                    a(f"ds_read_b128 {vr(accr(6,uu),4)}, v{ex} offset:{uu*1024}")
            if k_ == OPT["ew"] + 1:
                a("s_waitcnt lgkmcnt(0)")
                a(f"v_readfirstlane_b32 s3, v{EC+1}")
                a("s_cmp_lg_u32 s3, 3")
                a("s_cbranch_scc1 P3_ne")
                a(f"v_mov_b32 v{EC}, s85")
                a(f"v_mov_b32 v{T}, s{NONCE}")
                a(f"v_mov_b32 v{T+1}, s{NONCE+1}")
                a("s_mov_b64 exec, 1")
                a(f"global_store_dwordx2 v{EC}, {vr(T,2)}, s[{PWS}:{PWS+1}] sc1")
                a("s_mov_b64 exec, -1")
                a("P3_ne:")
                stamp(a, "c", "p3_early")
            if p == 2 and u == 1:
                a("s_waitcnt lgkmcnt(0)")
                for uu in range(2):
                    pend[0] = (accr(6, uu), 80 + uu, 0)
                    flush()
        if p == 0:
            for up in range(2):
                gelu2([(6, 2 * up), (6, 2 * up + 1)], obs[up])
                for k in range(2):
                    a(f"ds_write_b64 v{ex+1}, {vr(obs[up]+2*k,2)} offset:{(2*up+k)*1024}")
            pair_post(a, 3, PV)
    stamp(a, "c", "p3_stored")


def main():
    out = sys.argv[1]
    a = Asm()
    name = NAME + "_kernel"
    a.raw(f".globl {name}\n.p2align 8\n.type {name},@function\n{name}:")
    if OPT["early"]:
        a("s_memrealtime s[98:99]")
    a("s_cmp_ge_u32 s2, 256\ns_cbranch_scc1 KEND")
    a("s_load_dwordx16 s[48:63], s[0:1], 0")
    a("s_load_dwordx4 s[64:67], s[0:1], 64")
    a("s_load_dwordx2 s[68:69], s[0:1], 80")
    a("v_lshrrev_b32 v1, 6, v0")
    a("s_and_b32 s3, s2, 7")
    a("s_lshr_b32 s7, s2, 3")
    a("v_readfirstlane_b32 s6, v1")
    a("s_and_b32 s70, s3, 1")
    a("s_lshl_b32 s70, s70, 3")
    a("s_and_b32 s4, s7, 7")
    a("s_add_u32 s70, s70, s4")
    a("s_lshr_b32 s71, s3, 1")
    a("s_lshr_b32 s4, s7, 3")
    a("s_lshl_b32 s71, s71, 2")
    a("s_add_u32 s71, s71, s4")
    a("s_and_b32 s72, s7, 15")
    a("s_lshl_b32 s73, s3, 1")
    a("s_lshr_b32 s4, s7, 4")
    a("s_add_u32 s73, s73, s4")
    a("s_lshr_b32 s4, s3, 2")
    a("s_lshl_b32 s4, s4, 2")
    a("s_lshr_b32 s5, s7, 3")
    a("s_add_u32 s4, s4, s5")
    a("s_bfe_u32 s5, s3, 0x10001")
    a("v_and_b32 v1, 63, v0")
    a(f"v_and_b32 v{L15}, 15, v0")
    a(f"v_lshrrev_b32 v{GQ}, 4, v1")
    a("s_cmp_ge_u32 s6, 4")
    a("s_cbranch_scc1 LOADER")
    gen_p0(a)
    gen_p0t(a)
    gen_p1(a)
    gen_p24(a, 2)
    gen_p3(a)
    gen_p4(a)
    stamp_flush(a, 0)
    if OPT["spin"]:
        a("SPIN:")
        a("s_memrealtime s[100:101]")
        a("s_waitcnt lgkmcnt(0)")
        a(f"s_sub_u32 s100, s100, s{NONCE}")
        a(f"s_cmp_lt_u32 s100, {OPT['spin']*100}")
        a("s_cbranch_scc1 SPIN")
    a("KEND:")
    a("s_endpgm")
    gen_loader(a)
    vg = 256
    print(DBG)
    a.raw(f'.section .rodata,"a"\n.p2align 6\n.amdhsa_kernel {name}\n'
          f"  .amdhsa_next_free_vgpr {vg}\n  .amdhsa_next_free_sgpr 102\n  .amdhsa_accum_offset {(vg+3)//4*4}\n"
          "  .amdhsa_group_segment_fixed_size 0\n  .amdhsa_kernarg_size 88\n  .amdhsa_user_sgpr_count 2\n"
          "  .amdhsa_user_sgpr_kernarg_segment_ptr 1\n  .amdhsa_system_sgpr_workgroup_id_x 1\n"
          "  .amdhsa_float_denorm_mode_32 3\n"
          ".end_amdhsa_kernel\n")
    head = open("header.txt").read()
    head += f"; @launch grid=(256,1,1) block=(512,1,1) lds={LDS_TOTAL}\n"
    head += '.amdgcn_target "amdgcn-amd-amdhsa--gfx950"\n.text\n'
    open(out, "w").write(head + a.text())
    if OPT["stamp"]:
        import json
        json.dump(STAMPS, open(out + ".stamps.json", "w"))
    print("generated", out, "nops:", a.nops, "lds", LDS_TOTAL)


main()
```

```python
import sys, struct, math
from asmx import Asm, Regs, vr, sr

NAME = "sequential_preLN__sliding_local_dilated__dense_activation_gelu__prompt"
S, D, F = 2048, 1024, 3584
OPT = dict(stamp=0, map1=0, map3=0, sleep=2, prio=0, nt1=0, seg=2, warm=1, wr1=0, wr2=2, wr3=3, wg=7, touch1=0, dbgt=0, ctouch=1, ost=1, spin=0, rd2=0, tagx=2, prew=1, unr=2, gadv=1, early=0, norot=0, prewx=1, spoll=0, ew=3, onep=1, hrot=0, peel=1, tlb=0, spinat=0)
for a_ in sys.argv[2:]:
    k_, v_ = a_.split("=")
    assert k_ in OPT, k_
    OPT[k_] = int(v_)
WS_O, WS_H, WS_H1 = 4 << 20, 8 << 20, 12 << 20
WS_ST, WS_CS, WS_FL = 28 << 20, 29 << 20, 30 << 20
WS_ST1, WS_CS1 = 0, 1 << 20
WS_XB = 48 << 20
WS_XF = 31 << 20
FL_CS3, FL_CS1 = WS_FL + 32768, WS_FL + 40960
WS_FD = WS_FL + 65536
SLOT = 49152
LDS_X = 3 * SLOT
L_PAIR = LDS_X
L_CNT = LDS_X + 16
L_LCNT = LDS_X + 20
L_CNT2 = LDS_X + 24
L_RDY = LDS_X + 48
L_NONCE = LDS_X + 32
L_P0 = LDS_X + 64
L_ROW = LDS_X + 256
L_RS = L_ROW + 2048
L_NM = L_RS + 1024
L_CS = L_NM + 1024
L_B1 = L_CS + 1024
L_SC = L_B1 + 1024
L_SS = L_SC + 4096
LDS_TOTAL = L_SS + 4096
PX, PWQKV, PWO, PW1, PB1, PW2, PB2, POUT, PDBG, PWS = 48, 50, 52, 56, 58, 60, 62, 64, 66, 68
NONCE = 74
RES, BIA = 216, 232
BIG = "0x7ffffff0"


def f2u(x):
    return struct.unpack("<I", struct.pack("<f", x))[0]


def hexf(x):
    return "0x%08x" % f2u(x)


def srd(a, d, base, off, nbytes):
    if off:
        a(f"s_add_u32 s{d}, s{base}, {off}")
        a(f"s_addc_u32 s{d+1}, s{base+1}, 0")
    else:
        a(f"s_mov_b32 s{d}, s{base}")
        a(f"s_mov_b32 s{d+1}, s{base+1}")
    a(f"s_mov_b32 s{d+2}, {nbytes}")
    a(f"s_mov_b32 s{d+3}, 0x20000")


def round_bf16(a, v):
    a(f"v_cvt_pk_bf16_f32 v{v}, v{v}, v{v}")
    a(f"v_lshlrev_b32 v{v}, 16, v{v}")


def xrow_reduce_multi(a, op, vs, ts):
    for sw in ("v_permlane16_swap_b32", "v_permlane32_swap_b32"):
        for v, t in zip(vs, ts):
            a(f"v_mov_b32 v{t}, v{v}")
        for v, t in zip(vs, ts):
            a(f"{sw} v{v}, v{t}")
        for v, t in zip(vs, ts):
            a(f"{op} v{v}, v{v}, v{t}")


def wave_sum_multi(a, vs, ts):
    for p in ("quad_perm:[1,0,3,2]", "quad_perm:[2,3,0,1]", "row_half_mirror", "row_mirror"):
        for v in vs:
            a(f"v_add_f32_dpp v{v}, v{v}, v{v} {p} row_mask:0xf bank_mask:0xf")
    xrow_reduce_multi(a, "v_add_f32", vs, ts)


def ln_finish(a, mean, var, out):
    round_bf16(a, mean)
    round_bf16(a, var)
    a(f"v_add_f32 v{var}, {hexf(1e-5)}, v{var}")
    round_bf16(a, var)
    a(f"v_sqrt_f32 v{var}, v{var}")
    round_bf16(a, var)
    a(f"v_rcp_f32 v{out}, v{var}")
    a(f"v_mul_f32 v{out+1}, v{mean}, v{out}")
    a(f"v_sub_f32 v{out+1}, 0, v{out+1}")


STAMPS = {"c": [], "l": []}


DBG = []
LABS = [0]


def stamp(a, role, name):
    if OPT["spinat"] and role == "c" and name == ["", "p1_B0", "p1_loopend", "p2_B0", "p3_B0", "p3_loopend", "p4_B0", "p4_loopend"][OPT["spinat"]]:
        LABS[0] += 1
        a(f"SP{LABS[0]}:")
        a("s_memrealtime s[100:101]")
        a("s_waitcnt lgkmcnt(0)")
        a("s_sub_u32 s100, s100, s98")
        a("s_cmp_lt_u32 s100, 6000")
        a(f"s_cbranch_scc1 SP{LABS[0]}")
    if OPT["dbgt"] and role == "c" and name not in ("start", "p0_done") and not name.endswith("stored") or (OPT["dbgt"] and name == "p4_stored"):
        if name not in DBG:
            DBG.append(name)
        a("s_memrealtime s[100:101]")
        a("s_waitcnt lgkmcnt(0)")
        a(f"v_writelane_b32 v255, s100, {DBG.index(name)}")
        if name == "p4_stored":
            a("s_cmp_lg_u32 s6, 0")
            a("s_cbranch_scc1 DBG_e")
            a("v_mov_b32 v254, s100")
            a("v_mov_b32 v253, 0")
            a("s_mov_b64 exec, 1")
            a(f"global_atomic_umax v253, v254, s[{PDBG}:{PDBG+1}] offset:60")
            a("s_mov_b64 exec, 0xfff")
            a(f"s_cmp_lg_u32 s2, {OPT['dbgt']-1}")
            a("s_cbranch_scc1 DBG_e")
            a("v_lshlrev_b32 v253, 2, v1")
            a(f"global_store_dword v253, v255, s[{PDBG}:{PDBG+1}] offset:8")
            a("DBG_e:")
            a("s_mov_b64 exec, -1")
    if not OPT["stamp"]:
        return
    if name in STAMPS[role]:
        i = STAMPS[role].index(name)
    else:
        i = len(STAMPS[role])
        STAMPS[role].append(name)
    a("s_memtime s[100:101]")
    a("s_waitcnt lgkmcnt(0)")
    a(f"v_writelane_b32 v254, s100, {i}")
    a("s_memrealtime s[100:101]")
    a("s_waitcnt lgkmcnt(0)")
    a(f"v_writelane_b32 v255, s100, {i}")


def stamp_flush(a, wavereg_off):
    if not OPT["stamp"]:
        return
    a("v_lshlrev_b32 v2, 2, v1")
    a("s_lshl_b32 s100, s2, 3")
    a(f"s_add_u32 s100, s100, s6")
    a(f"s_add_u32 s100, s100, {wavereg_off}")
    a("s_lshl_b32 s100, s100, 9")
    a(f"s_add_u32 s100, s100, {32<<20}")
    a("v_add_u32 v2, s100, v2")
    a(f"global_store_dword v2, v254, s[{PWS}:{PWS+1}]")
    a(f"global_store_dword v2, v255, s[{PWS}:{PWS+1}] offset:256")
    if OPT["stamp"] == 2:
        a(f"v_add_u32 v2, {8<<20}, v2")
        a(f"global_store_dword v2, v252, s[{PWS}:{PWS+1}]")
        a(f"global_store_dword v2, v253, s[{PWS}:{PWS+1}] offset:256")


class G:
    pass


def phase_cfgs():
    P = {}
    g = G(); P[1] = g
    g.n, g.KS, g.nst, g.B448 = 1, 64, 16, False
    g.nA, g.nB, g.strideB, g.Boff, g.KT = 18, 24, 6144, 24576, 0
    g.A = (PX, 0, S * D * 2); g.B = (PWQKV, 0, D * 3 * D * 2); g.map = OPT["map1"]
    g = G(); P[2] = g
    g.n, g.KS, g.nst, g.B448 = 2, 128, 8, False
    g.nA, g.nB, g.strideB, g.Boff, g.KT = 32, 16, 2048, 32768, 32
    g.A = (PWS, WS_O, S * D * 2); g.B = (PWO, 0, D * D * 2); g.map = 0
    g = G(); P[3] = g
    g.n, g.KS, g.nst, g.B448 = 3, 64, 16, True
    g.nA, g.nB, g.strideB, g.Boff, g.KT = 16, 32, 7168, 16384, 32
    g.A = (PWS, WS_H, S * D * 2); g.B = (PW1, 0, D * F * 2); g.map = OPT["map3"]
    g = G(); P[4] = g
    g.n, g.KS, g.nst, g.B448 = 4, 64, 28, False
    g.nA, g.nB, g.strideB, g.Boff, g.KT = 16, 16, 2048, 16384, 112
    g.A = (PWS, WS_H1, S * F * 2); g.B = (PW2, 0, F * D * 2); g.map = 0
    s = 0
    for p in (1, 2, 3, 4):
        P[p].slot0 = s % 3
        s += P[p].nst
        P[p].mj = (72, 73) if P[p].map else (70, 71)
        if p == 4:
            P[p].mj = (70, 4)
        P[p].exch = ((s - 1) % 3) * SLOT
    return P


PH = phase_cfgs()


def interleave(a, mf, fillers, first=None, dense=0):
    n = len(mf)
    fl = list(fillers)
    gaps = list(range(1, n)) if first is not None else list(range(n))
    k = len(fl)
    assert k <= 2 * len(gaps), (k, len(gaps))
    cnt = {}
    idx = 0
    for gi, g in enumerate(gaps):
        left_gaps = len(gaps) - gi
        c = 2 if (idx < dense or k - idx > left_gaps) else 1
        cnt[g] = min(c, k - idx)
        idx += cnt[g]
    idx = 0
    for i in range(n):
        a(mf[i])
        if i == 0 and first is not None:
            for f in first:
                a(f)
        for _ in range(cnt.get(i, 0)):
            a(fl[idx])
            idx += 1
    assert idx == k


def nonce_load(a, vt):
    a(f"v_mov_b32 v{vt}, 0")
    a(f"global_load_dwordx2 v[{vt+2}:{vt+3}], v{vt}, s[{PDBG}:{PDBG+1}] sc1")


def nonce_check(a, lab, vt):
    a("s_mov_b32 s3, 0x40000")
    a(f"{lab}_nl:")
    a(f"v_readfirstlane_b32 s{NONCE}, v{vt+2}")
    a(f"v_readfirstlane_b32 s{NONCE+1}, v{vt+3}")
    a(f"s_cmp_lg_u32 s{NONCE}, 0")
    a(f"s_cbranch_scc1 {lab}_nd")
    a(f"global_load_dwordx2 v[{vt+2}:{vt+3}], v{vt}, s[{PDBG}:{PDBG+1}] sc1")
    a("s_waitcnt vmcnt(0)")
    a("s_sub_u32 s3, s3, 1")
    a("s_cmp_lg_u32 s3, 0")
    a(f"s_cbranch_scc1 {lab}_nl")
    a(f"{lab}_nd:")


def signal(a, off_sgpr, vt):
    a(f"v_mov_b32 v{vt}, s{off_sgpr}")
    a(f"v_mov_b32 v{vt+2}, s{NONCE}")
    a(f"v_mov_b32 v{vt+3}, s{NONCE+1}")
    a("s_mov_b64 exec, 1")
    a(f"global_store_dwordx2 v{vt}, v[{vt+2}:{vt+3}], s[{PWS}:{PWS+1}] sc1")
    a("s_mov_b64 exec, -1")


def flag_off(a, d, base, hi, lo):
    a(f"s_lshl_b32 s{d}, s{lo}, 2")
    a(f"s_add_u32 s{d}, s{d}, s6")
    a(f"s_lshl_b32 s{d}, s{d}, 3")
    a(f"s_lshl_b32 s3, s{hi}, 9")
    a(f"s_add_u32 s{d}, s{d}, s3")
    a(f"s_add_u32 s{d}, s{d}, {base}")


def poll_loads(a, vaddrs, vt):
    for i, v in enumerate(vaddrs):
        a(f"global_load_dwordx2 v[{vt+2*i}:{vt+2*i+1}], v{v}, s[{PWS}:{PWS+1}] sc1")


def poll_check(a, lab, vaddrs, vt):
    a("s_mov_b32 s3, 0x40000")
    a(f"{lab}_pl:")
    a(f"v_cmp_eq_u64 vcc, s[{NONCE}:{NONCE+1}], v[{vt}:{vt+1}]")
    for i in range(1, len(vaddrs)):
        a(f"v_cmp_eq_u64 s[34:35], s[{NONCE}:{NONCE+1}], v[{vt+2*i}:{vt+2*i+1}]")
        a("s_and_b64 vcc, vcc, s[34:35]")
    a("s_cmp_eq_u64 vcc, -1")
    a(f"s_cbranch_scc1 {lab}_pd")
    if OPT["sleep"]:
        a(f"s_sleep {OPT['sleep']}")
    poll_loads(a, vaddrs, vt)
    a("s_waitcnt vmcnt(0)")
    a("s_sub_u32 s3, s3, 1")
    a("s_cmp_lg_u32 s3, 0")
    a(f"s_cbranch_scc1 {lab}_pl")
    a(f"{lab}_pd:")


def ld_offsets_A(a, g, vA):
    m, j = g.mj
    if g.KT:
        a(f"s_lshl_b32 s7, s{m}, 3")
        a("s_add_u32 s7, s7, s6")
        a(f"s_mul_i32 s7, s7, {g.KT*1024}")
        if g.n == 4:
            a(f"s_mul_i32 s3, s5, {56*1024}")
            a("s_add_u32 s7, s7, s3")
        a(f"v_lshlrev_b32 v{vA}, 4, v1")
        a(f"v_add_u32 v{vA}, s7, v{vA}")
        a(f"v_add_u32 v{vA+1}, {4*g.KT*1024}, v{vA}")
        return
    a("s_and_b32 s3, s6, 1")
    a("s_lshl_b32 s7, s3, 2")
    a("v_lshrrev_b32 v4, 4, v1")
    a("v_or_b32 v4, s7, v4")
    a("v_xor_b32 v4, v3, v4")
    a("v_lshlrev_b32 v4, 4, v4")
    a(f"s_lshl_b32 s7, s{m}, 7")
    a("s_lshl_b32 s34, s6, 3")
    a("s_add_u32 s7, s7, s34")
    a("s_sub_u32 s7, s7, 16")
    for q in range(5):
        a("v_add_u32 v5, s7, v2")
        if q:
            a(f"v_add_u32 v5, {32*q}, v5")
        else:
            a("v_max_i32 v5, 0, v5")
        a(f"v_lshl_add_u32 v{vA+q}, v5, 11, v4")


def ld_offsets_B(a, g, vB):
    m, j = g.mj
    nBq = g.nB // 4
    if g.B448:
        a("v_lshrrev_b32 v5, 5, v1")
        a("s_lshl_b32 s7, s6, 1")
        a("v_add_u32 v5, s7, v5")
        a("v_and_b32 v6, 3, v5")
        a("v_lshlrev_b32 v6, 1, v6")
        a("v_and_b32 v7, 31, v1")
        a("v_xor_b32 v6, v6, v7")
        a("v_mul_u32_u24 v5, 7168, v5")
        a(f"s_mul_i32 s35, s{j}, 448")
        a("s_andn2_b32 s35, s35, 127")
        a("v_add_u32 v5, s35, v5")
        for q in range(nBq):
            if q < 2:
                if q:
                    a("v_xor_b32 v6, 8, v6")
                a(f"v_lshl_add_u32 v{vB+q}, v6, 4, v5")
                if q:
                    a(f"v_add_u32 v{vB+q}, {8*7168}, v{vB+q}")
            else:
                a(f"v_add_u32 v{vB+q}, {16*7168}, v{vB+q-2}")
    else:
        a("v_bfe_u32 v5, v1, 4, 1")
        a("s_and_b32 s7, s6, 1")
        a("s_lshl_b32 s7, s7, 1")
        a("v_or_b32 v5, s7, v5")
        a("v_lshlrev_b32 v5, 1, v5")
        a("v_xor_b32 v5, v3, v5")
        a("v_lshlrev_b32 v5, 4, v5")
        a(f"s_lshl_b32 s7, s{j}, {8 if g.n == 4 else 7}")
        a("v_add_u32 v5, s7, v5")
        if g.n == 4:
            a(f"s_mul_i32 s7, s5, {1792*2048}")
            a("v_add_u32 v5, s7, v5")
        a("s_lshl_b32 s7, s6, 3")
        a("v_add_u32 v6, s7, v2")
        a(f"v_mul_u32_u24 v6, {g.strideB}, v6")
        a("v_add_u32 v5, v5, v6")
        for q in range(nBq):
            if g.n == 4:
                off = (q >> 1) * 128
            elif g.n == 1:
                off = (q >> 1) * 2048 + (q & 1) * 32 * g.strideB
            else:
                off = q * 32 * g.strideB
            a(f"v_add_u32 v{vB+q}, {off}, v5")


def rot_start(a, g, d):
    m, j = g.mj
    if (OPT["norot"] >> g.n) & 1:
        a(f"s_and_b32 s{d}, s{m}, {8 if g.map else 4}")
        if not g.map:
            a(f"s_lshl_b32 s{d}, s{d}, 1")
        return
    if g.n == 1 and OPT["hrot"]:
        assert g.map
        a(f"s_and_b32 s{d}, s{m}, 8")
    elif g.map:
        assert g.nst == 16
        a(f"s_mov_b32 s{d}, s{m}")
    else:
        a(f"s_and_b32 s{d}, s{m}, 7")
        if g.nst == 16:
            a(f"s_lshl_b32 s{d}, s{d}, 1")
        elif g.nst == 28:
            a(f"s_mul_i32 s{d}, s{d}, 7")
            a(f"s_lshr_b32 s{d}, s{d}, 1")


RDY, TMO, PF = 94, 96, 40
LAB = [0]
POLLW = [16]


def poll_once(a):
    a("s_mov_b32 exec_hi, 0" if POLLW[0] == 32 else "s_mov_b64 exec, 0xffff")
    a(f"global_load_dwordx2 v[{PF+2}:{PF+3}], v{PF}, s[{PWS}:{PWS+1}] sc1")
    a(f"s_max_u32 s{TMO}, s{TMO}, 1")
    a(f"s_sub_u32 s{TMO}, s{TMO}, 1")
    a("s_waitcnt vmcnt(0)")
    a(f"v_cmp_eq_u64 s[{RDY}:{RDY+1}], s[{NONCE}:{NONCE+1}], v[{PF+2}:{PF+3}]")
    a("s_mov_b64 exec, -1")
    a(f"s_cmp_eq_u32 s{TMO}, 0")
    a(f"s_cselect_b32 s{RDY}, {'-1' if POLLW[0] == 32 else '0xffff'}, s{RDY}")
    a(f"s_cselect_b32 s{TMO}, 1, s{TMO}")


class Stream:
    def __init__(self, g, isA, srd_, vbase, so, st, lb, sl, of, cur=None):
        self.g, self.isA, self.srd, self.v = g, isA, srd_, vbase
        self.so, self.st, self.lb, self.sl, self.of = so, st, lb, sl, of
        self.cur = cur
        self.frag = isA and g.KT
        self.seg = OPT["seg"] and g.n in (2, 4)
        if self.frag:
            self.step = g.KS * 32
            self.per = g.KS // 32
        else:
            self.step = g.KS * 2 if isA else g.KS * g.strideB

    def seg_so(self, a):
        a(f"s_add_u32 s7, s{self.st}, s{self.of}")
        a("s_and_b32 s7, s7, 3")
        a(f"s_andn2_b32 s{self.so}, s{self.st}, 3")
        a(f"s_add_u32 s{self.so}, s{self.so}, s7")
        if self.cur:
            a(f"s_mov_b32 s{self.cur}, s{self.so}")
        a(f"s_mul_i32 s{self.so}, s{self.so}, {self.step}")

    def init(self, a):
        g = self.g
        m, j = g.mj
        if self.seg:
            a(f"s_and_b32 s{self.st}, s{m}, 7")
            a(f"s_mul_i32 s{self.st}, s{self.st}, {g.nst // 4}")
            a(f"s_lshr_b32 s{self.st}, s{self.st}, 3")
            a(f"s_lshl_b32 s{self.st}, s{self.st}, 2")
            if OPT["seg"] == 2 and g.n == 4:
                a(f"s_mov_b32 s{self.st}, 0")
            a(f"s_add_u32 s{self.of}, s{m}, s{j}")
            self.seg_so(a)
        else:
            rot_start(a, g, self.st)
            a(f"s_mul_i32 s{self.so}, s{self.st}, {self.step}")
        a(f"s_mul_i32 s{self.lb}, s6, {1024*self.per if self.frag else 1024}")
        off = g.slot0 * SLOT + (0 if self.isA else g.Boff)
        if off:
            a(f"s_add_u32 s{self.lb}, s{self.lb}, {off}")
        a(f"s_mov_b32 s{self.sl}, {g.slot0}")

    def need(self, a, ok):
        g = self.g
        cur = self.cur if self.seg else self.st
        a(f"s_cmp_eq_u32 s{RDY}, 0xffff")
        a(f"s_cbranch_scc1 {ok}")
        if g.n == 2:
            a(f"s_lshl_b32 s3, s{cur}, 1")
            a("s_lshl_b32 s34, 3, s3")
        elif g.n == 3:
            a(f"s_lshl_b32 s34, 1, s{cur}")
        else:
            a("s_mul_i32 s3, s5, 28")
            a(f"s_add_u32 s3, s3, s{cur}")
            a(f"s_mul_i32 s3, s3, {2*9363}")
            a(f"s_add_u32 s7, s3, 9363")
            a("s_lshr_b32 s3, s3, 16")
            a("s_lshr_b32 s7, s7, 16")
            a("s_lshl_b32 s34, 1, s3")
            a("s_bitset1_b32 s34, s7")
        a(f"s_andn2_b32 s3, s34, s{RDY}")
        a(f"s_cbranch_scc0 {ok}")

    def wait_ready(self, a, scalar=False):
        if not self.frag:
            return
        LAB[0] += 1
        L = f"WR{LAB[0]}"
        self.need(a, f"{L}_ok")
        a(f"{L}_t:")
        if OPT["spoll"] and scalar:
            a("s_ff1_i32_b32 s7, s3")
            a("s_lshl_b32 s35, s7, 7")
            if self.g.n == 4:
                a("s_cmp_ge_u32 s7, 16")
                a(f"s_cselect_b32 s3, {3*32768 + 2048}, 0")
                a("s_sub_u32 s35, s35, s3")
            a("s_add_u32 s35, s35, s83")
            a(f"{L}_s:")
            a(f"s_load_dwordx2 s[92:93], s[{PWS}:{PWS+1}], s35 glc")
            a(f"s_sub_u32 s{TMO}, s{TMO}, 1")
            a("s_cselect_b32 s3, 1, 0")
            a(f"s_cselect_b32 s{TMO}, 0, s{TMO}")
            a("s_waitcnt lgkmcnt(0)")
            a(f"s_cmp_eq_u64 s[92:93], s[{NONCE}:{NONCE+1}]")
            a("s_cselect_b32 s3, 1, s3")
            a("s_cmp_eq_u32 s3, 0")
            a(f"s_cbranch_scc1 {L}_s")
            a(f"s_bitset1_b32 s{RDY}, s7")
            a(f"s_andn2_b32 s3, s34, s{RDY}")
            a(f"s_cbranch_scc1 {L}_t")
        elif OPT["onep"] and scalar:
            a("s_cmp_lg_u32 s6, 0")
            a(f"s_cbranch_scc1 {L}_w")
            poll_once(a)
            a(f"v_mov_b32 v{PF+5}, s{RDY}")
            a(f"ds_write_b32 v{PF+4}, v{PF+5}")
            a(f"s_branch {L}_c")
            a(f"{L}_w:")
            a(f"ds_read_b32 v{PF+5}, v{PF+4}")
            a(f"s_sub_u32 s{TMO}, s{TMO}, 1")
            a(f"s_cselect_b32 s{TMO}, 0, s{TMO}")
            a("s_cselect_b32 s7, -1, 0")
            a("s_waitcnt lgkmcnt(0)")
            a(f"v_readfirstlane_b32 s3, v{PF+5}")
            a(f"s_or_b32 s{RDY}, s{RDY}, s3")
            a(f"s_or_b32 s{RDY}, s{RDY}, s7")
            a(f"{L}_c:")
            a(f"s_andn2_b32 s3, s34, s{RDY}")
            a(f"s_cbranch_scc0 {L}_ok")
            if OPT["sleep"]:
                a(f"s_sleep {OPT['sleep']}")
            a(f"s_branch {L}_t")
        else:
            poll_once(a)
            a(f"s_andn2_b32 s3, s34, s{RDY}")
            a(f"s_cbranch_scc0 {L}_ok")
            if OPT["sleep"]:
                a(f"s_sleep {OPT['sleep']}")
            a(f"s_branch {L}_t")
        a(f"{L}_ok:")

    def loads(self, n, nt=False):
        out = []
        if self.frag:
            for q in range(n):
                u, k = q // self.per, q % self.per
                out.append((f"s_add_u32 m0, s{self.lb}, {u*4096*self.per}",
                            f"buffer_load_dwordx4 v{self.v+u}, s[{self.srd}:{self.srd+3}], s{self.so} offen offset:{k*1024} sc1 lds"))
            return out
        return [(f"s_add_u32 m0, s{self.lb}, {q*4096}",
                 f"buffer_load_dwordx4 v{self.v+q}, s[{self.srd}:{self.srd+3}], s{self.so} offen {'nt ' if (nt and not self.isA) else ''}lds") for q in range(n)]

    def advance(self, a):
        if not self.seg:
            a(f"s_add_u32 s{self.so}, s{self.so}, {self.step}")
        a(f"s_add_u32 s{self.st}, s{self.st}, 1")
        a(f"s_cmp_eq_u32 s{self.st}, {self.g.nst}")
        a(f"s_cselect_b32 s{self.st}, 0, s{self.st}")
        if self.seg:
            self.seg_so(a)
        else:
            a(f"s_cselect_b32 s{self.so}, 0, s{self.so}")
        a(f"s_add_u32 s{self.lb}, s{self.lb}, {SLOT}")
        a(f"s_add_u32 s{self.sl}, s{self.sl}, 1")
        a(f"s_cmp_eq_u32 s{self.sl}, 3")
        a(f"s_cselect_b32 s7, {3*SLOT}, 0")
        a(f"s_cselect_b32 s{self.sl}, 0, s{self.sl}")
        a(f"s_sub_u32 s{self.lb}, s{self.lb}, s7")


def p4_step(st, of, outs):
    sg, jl, x, d, nb, sh, t = 24, 25, 26, 27, 28, 29, 30
    g = [f"s_add_u32 s{t}, s{st}, s{of}", f"s_and_b32 s{t}, s{t}, 3", f"s_andn2_b32 s{sg}, s{st}, 3",
         f"s_add_u32 s{sg}, s{sg}, s{t}", f"s_sub_u32 s{jl}, s{sg}, 8", f"s_lshr_b32 s{jl}, s{jl}, 1",
         f"s_and_b32 s{x}, s{sg}, 1", f"s_mul_i32 s{x}, s{x}, 3", f"s_add_u32 s{x}, s{x}, 1",
         [f"s_cmp_lt_u32 s{sg}, 8", f"s_cselect_b32 s{jl}, s{sg}, s{jl}", f"s_cselect_b32 s{x}, 0, s{x}",
          f"s_cselect_b32 s{d}, 3, 1", f"s_cselect_b32 s{sh}, 16, 0"],
         f"s_sub_u32 s{t}, s{sg}, 24", f"s_lshl_b32 s{t}, s{t}, 1",
         [f"s_cmp_ge_u32 s{sg}, 24", f"s_cselect_b32 s{jl}, s{t}, s{jl}", f"s_cselect_b32 s{x}, 6, s{x}",
          f"s_cselect_b32 s{d}, 7, s{d}", f"s_cselect_b32 s{nb}, 3, 1"],
         f"s_mul_i32 s{t}, s{jl}, 7", f"s_add_u32 s{x}, s{x}, s{t}", f"s_add_u32 s{d}, s{d}, s{x}"]
    a0, a1, b0, b1, nd = outs
    if a0 is not None:
        g += [f"s_lshl_b32 s{a0}, s{x}, 10", f"s_lshl_b32 s{a1}, s{d}, 10", f"s_sub_u32 s{a1}, s{a1}, 1024"]
    if b0 is not None:
        g += [f"s_lshl_b32 s{b0}, s{x}, 16", f"s_lshl_b32 s{b1}, s{d}, 16"]
    if nd is not None:
        g += [f"s_lshl_b32 s{t}, s5, 3", f"s_add_u32 s{sh}, s{sh}, s{jl}", f"s_add_u32 s{sh}, s{sh}, s{t}",
              f"s_lshl_b32 s{nd}, s{nb}, s{sh}"]
    return [(y if isinstance(y, list) else [y]) for y in g]


class Stream4(Stream):
    SO2 = {True: 80, False: 81}
    ND = 82

    def tiles(self, a):
        o = (self.so, self.SO2[True], None, None, self.ND) if self.isA else (None, None, self.so, self.SO2[False], None)
        for grp in p4_step(self.st, self.of, o):
            for t in grp:
                a(t)

    def init(self, a):
        g = self.g
        a(f"s_mov_b32 s{self.st}, 0")
        a(f"s_add_u32 s{self.of}, s{g.mj[0]}, s{g.mj[1]}")
        self.tiles(a)
        a(f"s_mul_i32 s{self.lb}, s6, {2048 if self.isA else 1024}")
        a(f"s_add_u32 s{self.lb}, s{self.lb}, {g.slot0 * SLOT + (0 if self.isA else g.Boff)}")
        a(f"s_mov_b32 s{self.sl}, {g.slot0}")

    def need(self, a, ok):
        a(f"s_mov_b32 s34, s{self.ND}")
        a(f"s_andn2_b32 s3, s34, s{RDY}")
        a(f"s_cbranch_scc0 {ok}")

    def loads(self, n, nt=False):
        so = [self.so, self.SO2[self.isA]]
        if self.isA:
            return [(f"s_add_u32 m0, s{self.lb}, {(q>>1)*8192}",
                     f"buffer_load_dwordx4 v{self.v+(q>>1)}, s[{self.srd}:{self.srd+3}], s{so[q&1]} offen offset:{(q&1)*1024} sc1 lds") for q in range(n)]
        return [(f"s_add_u32 m0, s{self.lb}, {q*4096}",
                 f"buffer_load_dwordx4 v{self.v+q}, s[{self.srd}:{self.srd+3}], s{so[q&1]} offen lds") for q in range(n)]

    def advance(self, a):
        a(f"s_add_u32 s{self.st}, s{self.st}, 1")
        self.tiles(a)
        a(f"s_add_u32 s{self.lb}, s{self.lb}, {SLOT}")
        a(f"s_add_u32 s{self.sl}, s{self.sl}, 1")
        a(f"s_cmp_eq_u32 s{self.sl}, 3")
        a(f"s_cselect_b32 s7, {3*SLOT}, 0")
        a(f"s_cselect_b32 s{self.sl}, 0, s{self.sl}")
        a(f"s_sub_u32 s{self.lb}, s{self.lb}, s7")


class Rec:
    def __init__(self):
        self.g = []
        self.open = False

    def __call__(self, t):
        if self.open:
            self.g[-1].append(t)
        else:
            self.g.append([t])

    def begin(self):
        self.g.append([])
        self.open = True

    def end(self):
        self.open = False


def issue(a, items, nt=False, fill=None, ready=True, mid=0):
    if ready:
        for (s_, n) in items:
            s_.wait_ready(a, len(items) == 1)
    ls = [s.loads(n, nt) for (s, n) in items]
    seq = []
    for q in range(max(len(x) for x in ls)):
        for x in ls:
            if q < len(x):
                seq.append(x[q])
    fill = list(fill or [])
    commit = None
    if OPT["gadv"] and len(items) == 2:
        B_, A_ = items[0][0], items[1][0]
        g_ = A_.g
    if OPT["gadv"] and len(items) == 2 and g_.n == 4:
        fill = ([[f"s_add_u32 s{A_.st}, s{A_.st}, 1"]] + p4_step(A_.st, A_.of, (90, 76, 91, 77, A_.ND)) +
                [[f"s_add_u32 s{A_.sl}, s{A_.sl}, 1"],
                 [f"s_cmp_eq_u32 s{A_.sl}, 3", f"s_cselect_b32 s93, {3*SLOT}, 0", f"s_cselect_b32 s{A_.sl}, 0, s{A_.sl}"],
                 [f"s_sub_u32 s93, {SLOT}, s93"]] + fill)
        commit = [f"s_mov_b32 s{A_.so}, s90", f"s_mov_b32 s{B_.so}, s91", "s_mov_b32 s80, s76", "s_mov_b32 s81, s77",
                  f"s_add_u32 s{A_.lb}, s{A_.lb}, s93", f"s_add_u32 s{B_.lb}, s{B_.lb}, s93"]
    elif OPT["gadv"] and len(items) == 2:
        pre_ = [f"s_add_u32 s{A_.st}, s{A_.st}, 1", [f"s_cmp_eq_u32 s{A_.st}, {g_.nst}", f"s_cselect_b32 s{A_.st}, 0, s{A_.st}"]]
        if A_.seg:
            pre_ += [f"s_add_u32 s92, s{A_.st}, s{A_.of}", "s_and_b32 s92, s92, 3", f"s_andn2_b32 s93, s{A_.st}, 3",
                     f"s_add_u32 s{A_.cur}, s93, s92"]
            cur = A_.cur
        else:
            cur = A_.st
        pre_ += [f"s_mul_i32 s90, s{cur}, {A_.step}", f"s_mul_i32 s91, s{cur}, {B_.step}",
                 f"s_add_u32 s{A_.sl}, s{A_.sl}, 1",
                 [f"s_cmp_eq_u32 s{A_.sl}, 3", f"s_cselect_b32 s93, {3*SLOT}, 0", f"s_cselect_b32 s{A_.sl}, 0, s{A_.sl}"],
                 f"s_sub_u32 s93, {SLOT}, s93"]
        fill = [(x if isinstance(x, list) else [x]) for x in pre_] + fill
        commit = [f"s_mov_b32 s{A_.so}, s90", f"s_mov_b32 s{B_.so}, s91", f"s_add_u32 s{A_.lb}, s{A_.lb}, s93",
                  f"s_add_u32 s{B_.lb}, s{B_.lb}, s93"]
    per = -(-len(fill) // max(1, len(seq) - 1)) if fill else 0
    last = None
    for k, (m0, ld) in enumerate(seq):
        if m0 != last:
            a(m0)
            last = m0
        a(ld)
        if mid and k == mid - 1:
            a(f"s_waitcnt vmcnt({mid})")
            a("s_barrier")
        for _ in range(per):
            if fill:
                for t in fill.pop(0):
                    a(t)
    for grp in fill:
        for t in grp:
            a(t)
    if commit:
        for t in commit:
            a(t)
    else:
        for (s, n) in items:
            s.advance(a)


ACC, WF, ONE, AD, TB, TT, VT = 64, 96, 128, 132, 133, 134, 32
A_CSS, A_CS3, A_ST, A_GA, A_GB, TID = 136, 137, 138, 139, 156, 157
ST = 140
AD2 = 158
A_XB, ZERO = 180, 184
A_SC = 166
SG = 160
PA = 168


def fold_setup(a, g):
    m, j = g.mj
    p1 = g.n == 1
    nsh = 16 if g.map else 8
    ncol = 3 * D if p1 else F
    wscs, flcs = (WS_CS1, FL_CS1) if p1 else (WS_CS, FL_CS3)
    row = 512 if g.B448 else 128
    a(f"v_and_b32 v{TT}, 15, v1")
    a(f"v_lshrrev_b32 v{AD}, 2, v{TT}")
    a(f"v_lshrrev_b32 v{TB}, 4, v1")
    a(f"v_lshl_add_u32 v{AD}, v{TB}, 3, v{AD}")
    a(f"v_mul_u32_u24 v{AD}, {row}, v{AD}")
    a(f"v_and_b32 v{TT}, 3, v1")
    a(f"v_lshl_add_u32 v{AD}, v{TT}, 3, v{AD}")
    a(f"v_and_b32 v{TB}, 1, v{TB}")
    if g.B448:
        a(f"v_bfe_u32 v{TT}, v1, 2, 2")
        a(f"v_lshl_or_b32 v{TB}, v{TB}, 2, v{TT}")
        a(f"s_and_b32 s3, s{j}, 1")
        a("s_lshl_b32 s3, s3, 1")
        a("s_add_u32 s3, s3, s6")
        a(f"v_add_u32 v{AD}, {g.slot0*SLOT + g.Boff}, v{AD}")
        a("s_add_u32 s7, s3, 4")
        a(f"v_xor_b32 v{TT}, s7, v{TB}")
        a(f"v_lshl_add_u32 v{AD2}, v{TT}, 5, v{AD}")
        a(f"v_xor_b32 v{TT}, s3, v{TB}")
        a(f"v_lshl_add_u32 v{AD}, v{TT}, 5, v{AD}")
    else:
        a(f"v_bfe_u32 v{TT}, v1, 3, 1")
        a(f"v_lshl_or_b32 v{TB}, v{TB}, 1, v{TT}")
        a(f"v_xor_b32 v{TB}, s6, v{TB}")
        a(f"v_lshl_add_u32 v{AD}, v{TB}, 5, v{AD}")
        a(f"v_add_u32 v{AD}, {g.slot0*SLOT + g.Boff}, v{AD}")
    if p1 and OPT["hrot"]:
        a(f"s_and_b32 s78, s{m}, 7")
        a("s_mul_i32 s3, s78, 86")
        a("s_lshr_b32 s3, s3, 8")
        a("s_mul_i32 s3, s3, 3")
        a("s_sub_u32 s3, s78, s3")
        a(f"s_mul_i32 s3, s3, {SLOT}")
        a(f"v_add_u32 v{AD}, s3, v{AD}")
        a("s_lshl_b32 s79, 11, s78")
        a("s_or_b32 s79, s79, 0x2b")
        a("s_mov_b32 s77, 0")
    d = SLOT if g.slot0 < 2 else -2 * SLOT
    a(f"v_add_u32 v{AD+3}, {d & 0xffffffff}, v{AD}")
    if g.B448:
        a(f"v_add_u32 v{AD2+1}, {d & 0xffffffff}, v{AD2}")
    for i in range(4):
        a(f"v_mov_b32 v{ONE+i}, 0x3f803f80")
    for i in range(16):
        a(f"v_mov_b32 v{ACC+i}, 0")
    srd(a, 24, PWS, wscs, 16 * ncol * 4)
    if p1:
        srd(a, 28, PWS, WS_ST1, S * 8)
    else:
        srd(a, 28, PWS, WS_ST, 16 * S * 8)
        srd(a, 76, PB1, 0, F * 2)
    a(f"v_lshrrev_b32 v{TT}, 4, v1")
    a(f"v_lshlrev_b32 v{TT}, 4, v{TT}")
    a(f"s_mul_i32 s3, s{m}, {ncol*4}")
    a(f"s_mul_i32 s7, s{j}, {256 if p1 else 896}")
    a("s_add_u32 s3, s3, s7")
    a("s_lshl_b32 s7, s6, 6")
    a("s_add_u32 s3, s3, s7")
    a(f"v_add_u32 v{TT}, s3, v{TT}")
    a(f"v_and_b32 v{TB}, 15, v1")
    a(f"v_cmp_eq_u32 vcc, 0, v{TB}")
    a(f"v_mov_b32 v{TB}, {BIG}")
    a(f"v_cndmask_b32 v{A_CSS}, v{TB}, v{TT}, vcc")
    a("s_lshl_b32 s3, s6, 6")
    a(f"v_add_u32 v{TID}, s3, v1")
    if p1:
        a("s_mov_b32 s80, 4096")
        a("s_mov_b32 s81, 8192")
        a(f"s_lshl_b32 s3, s{m}, 10")
        a(f"s_lshl_b32 s7, s{j}, 6")
        a("s_add_u32 s3, s3, s7")
        a("s_lshl_b32 s7, s6, 4")
        a("s_add_u32 s3, s3, s7")
        a(f"v_mov_b32 v{TT}, s3")
        a("v_cmp_eq_u32 vcc, 0, v1")
        a(f"v_cndmask_b32 v{A_ST}, v{TB}, v{TT}, vcc")
        a("v_cmp_gt_u32 vcc, 48, v1")
        a(f"v_lshrrev_b32 v{TT}, 4, v1")
        a(f"v_lshlrev_b32 v{TT}, 12, v{TT}")
        a(f"v_and_b32 v{A_GA}, 15, v1")
        a(f"v_lshl_add_u32 v{TT}, v{A_GA}, 4, v{TT}")
        a(f"s_lshl_b32 s3, s{j}, 8")
        a(f"v_add_u32 v{TT}, s3, v{TT}")
        a(f"v_cndmask_b32 v{A_GA}, v{TB}, v{TT}, vcc")
        a(f"s_lshl_b32 s3, s{m}, 7")
        a("s_sub_u32 s3, s3, 16")
        a(f"v_add_u32 v{TT}, s3, v{TID}")
        a(f"v_max_i32 v{TT}, 0, v{TT}")
        a(f"v_lshlrev_b32 v{TT}, 3, v{TT}")
        a(f"v_cmp_gt_u32 vcc, 144, v{TID}")
        a(f"v_cndmask_b32 v{A_GB}, v{TB}, v{TT}, vcc")
    else:
        a("s_cmp_ge_u32 s6, 2")
        a(f"s_cselect_b32 s3, {BIG}, 0")
        a(f"v_max_u32 v{A_CS3}, s3, v{A_CSS}")
        a(f"v_lshlrev_b32 v{A_ST}, 4, v1")
        a(f"s_lshl_b32 s3, s{m}, 10")
        a("s_lshl_b32 s7, s6, 16")
        a("s_add_u32 s3, s3, s7")
        a(f"v_add_u32 v{A_ST}, s3, v{A_ST}")
        a("v_cmp_gt_u32 vcc, 56, v1")
        a(f"v_lshlrev_b32 v{TT}, 4, v1")
        a(f"s_mul_i32 s3, s{j}, 896")
        a(f"v_add_u32 v{TT}, s3, v{TT}")
        a(f"v_cndmask_b32 v{A_GA}, v{TB}, v{TT}, vcc")
        a(f"v_cmp_gt_u32 vcc, 224, v{TID}")
        a(f"v_lshlrev_b32 v{TT}, 1, v{TID}")
        a(f"s_mul_i32 s3, s{j}, 448")
        a(f"v_add_u32 v{TT}, s3, v{TT}")
        a(f"v_cndmask_b32 v{A_GB}, v{TB}, v{TT}, vcc")
    if nsh == 8:
        a(f"s_and_b32 s82, s{m}, 8")
        a(f"s_mul_i32 s82, s82, {ncol*4}")
    else:
        a("s_mov_b32 s82, 0")
    a(f"s_mul_i32 s3, s6, {(nsh // 4) * ncol * 4}")
    a("s_add_u32 s82, s82, s3")
    a(f"v_lshlrev_b32 v{A_SC}, 4, v1")
    a("s_lshl_b32 s3, s6, 10")
    a(f"s_add_u32 s3, s3, {L_SC}")
    a(f"v_add_u32 v{A_SC}, s3, v{A_SC}")
    srd(a, 84, PWS, WS_FL, 65536)
    a("v_cmp_eq_u32 vcc, 0, v1")
    flag_off(a, 7, flcs - WS_FL, j, m)
    a(f"v_mov_b32 v{TT}, s7")
    a(f"v_cndmask_b32 v{SG}, v{TB}, v{TT}, vcc")
    if p1:
        flag_off(a, 7, 0, m, j)
        a(f"v_mov_b32 v{TT}, s7")
        a(f"v_cndmask_b32 v{SG+4}, v{TB}, v{TT}, vcc")
    else:
        a(f"v_mov_b32 v{SG+2}, s{NONCE}")
        a(f"v_mov_b32 v{SG+3}, s{NONCE+1}")
    a(f"v_lshlrev_b32 v{PA}, 3, v1")
    a(f"s_lshl_b32 s3, s{j}, 9")
    a(f"s_add_u32 s3, s3, {flcs}")
    if p1:
        a(f"s_lshl_b32 s7, s{m}, 9")
        a(f"s_add_u32 s7, s7, {WS_FL}")
        a(f"v_add_u32 v{PA+1}, s7, v{PA}")
        a(f"v_or_b32 v{PA+2}, 56, v1")
        a(f"v_lshlrev_b32 v{PA+2}, 3, v{PA+2}")
        a(f"s_cmp_eq_u32 s{m}, 0")
        a("s_cselect_b32 s34, 0, 512")
        a("s_sub_u32 s7, s7, s34")
        a(f"v_add_u32 v{PA+2}, s7, v{PA+2}")
    if nsh == 8:
        a(f"v_and_b32 v{PA}, 0xff, v{PA}")
        a(f"s_and_b32 s7, s{m}, 8")
        a("s_lshl_b32 s7, s7, 5")
        a("s_add_u32 s3, s3, s7")
    a(f"v_add_u32 v{PA}, s3, v{PA}")
    if p1:
        a("s_lshl_b32 s3, s6, 4")
        a(f"s_add_u32 s3, s3, {L_P0}")
        a(f"v_mov_b32 v{TB}, s3")
        a(f"v_mov_b32 v{VT}, 0")
        a(f"v_mov_b32 v{VT+1}, {L_NONCE}")
        a("s_lshl_b32 s3, s2, 2")
        a("s_add_u32 s3, s3, s6")
        a("s_lshl_b32 s3, s3, 13")
        a(f"s_add_u32 s3, s3, {WS_XB}")
        a(f"v_lshlrev_b32 v{A_XB}, 4, v1")
        a(f"v_add_u32 v{A_XB}, s3, v{A_XB}")
        a(f"v_add_u32 v{A_XB+1}, 4096, v{A_XB}")
        for i in range(4):
            a(f"v_mov_b32 v{ZERO+i}, 0")


LGK = [False]
WARM = {"left": [56, 56], "save": None}


def warm(a, n, iters=1):
    if not OPT["warm"]:
        return
    w = 0 if WARM["phase"] == 1 else 1
    n = min(n, WARM["left"][w] // iters)
    if n <= 0:
        return
    WARM["left"][w] -= n * iters
    b = 88 if w else 32
    for i in range(n):
        a(f"s_load_dwordx2 s[100:101], s[{b}:{b+1}], {60+128*i}")
    a(f"s_add_u32 s{b}, s{b}, {128*n}")
    a(f"s_addc_u32 s{b+1}, s{b+1}, 0")


def fold_body(a, g, both, c, loop, sfx):
    p1 = g.n == 1
    P = f"LD{g.n}{sfx}"
    nsh = 16 if g.map else 8
    nstg = 1 if g.map else 2
    nu = 3 if p1 else 4
    ncol = 3 * D if p1 else F
    npw = nsh // 4

    def cs_reads(r, ad):
        for h in range(2):
            for i in range(nu):
                for jj in range(2):
                    off = (i * 8192 + jj * 512 + h * 4096) if p1 else ((i >> 1) * 256 + jj * 2048 + h * 16384)
                    v = ad if (p1 or not i & 1) else (AD2 if ad == AD else AD2 + 1)
                    r(f"ds_read_b64_tr_b16 {vr(WF+16*h+4*i+2*jj,2)}, v{v} offset:{off}")
        LGK[0] = True

    def cs_mfma(r):
        for h in range(2):
            for i in range(nu):
                r(f"v_mfma_f32_16x16x32_bf16 {vr(ACC+4*i,4)}, {vr(WF+16*h+4*i,4)}, {vr(ONE,4)}, {vr(ACC+4*i,4)}")

    def f0(r):
        if p1:
            r(f"ds_read_b128 {vr(ST,4)}, v{TB}")
        cs_reads(r, AD)
        return 0

    def f1(r):
        n = 0
        if p1:
            r.begin()
            r("s_mov_b64 exec, 1")
            r(f"buffer_store_dwordx4 {vr(ST,4)}, v{A_ST}, s[28:31], 0 offen sc1")
            r(f"global_load_dwordx2 v[{VT+2}:{VT+3}], v{VT}, s[{PDBG}:{PDBG+1}] sc1")
            r("s_mov_b64 exec, -1")
            r.end()
            n = 2
        cs_mfma(r)
        if nstg == 2:
            cs_reads(r, AD + 3)
        return n

    def f2(r):
        cs_mfma(r)
        return 0

    def f3(r):
        for i in range(nu):
            r.begin()
            r("s_mov_b32 exec_lo, 0x10001")
            r("s_mov_b32 exec_hi, 0x10001")
            if p1:
                r(f"buffer_store_dwordx4 {vr(ACC+4*i,4)}, v{A_CSS}, s[24:27], {['0','s80','s81'][i]} offen sc1")
            else:
                r(f"buffer_store_dwordx4 {vr(ACC+4*i,4)}, v{A_CSS if i < 3 else A_CS3}, s[24:27], 0 offen offset:{i*256} sc1")
            r("s_mov_b64 exec, -1")
            r.end()
        return nu

    def post3():
        nonce_check(a, P, VT)
        a(f"v_mov_b32 v{SG+2}, s{NONCE}")
        a(f"v_mov_b32 v{SG+3}, s{NONCE+1}")
        a(f"ds_write_b64 v{VT+1}, {vr(SG+2,2)}")

    def f5(r):
        r.begin()
        r("s_mov_b64 exec, 1")
        r(f"buffer_store_dwordx2 {vr(SG+2,2)}, v{SG}, s[84:85+2], 0 offen sc1".replace("85+2", "87"))
        if p1:
            r(f"buffer_store_dwordx2 {vr(SG+2,2)}, v{SG+4}, s[84:87], 0 offen sc1")
        r("s_mov_b64 exec, -1")
        r.end()
        return 2 if p1 else 1

    def pre_allready():
        a(f"{P}_ar:")
        a(f"s_cmp_eq_u32 s{RDY}, 0xffff")
        a(f"s_cbranch_scc1 {P}_ar2")
        poll_once(a)
        a(f"s_branch {P}_ar")
        a(f"{P}_ar2:")

    def f_stload(r):
        for i in range(4):
            r.begin()
            r(f"s_mov_b32 s3, {i*16384}")
            r(f"buffer_load_dwordx4 {vr(ST+4*i,4)}, v{A_ST}, s[28:31], s3 offen sc1")
            r.end()
        return 4

    def f_st1(r):
        for i in range(8):
            r(f"v_add_f32 v{ST+i}, v{ST+i}, v{ST+8+i}")
        for i in range(4):
            r(f"v_add_f32 v{ST+i}, v{ST+i}, v{ST+4+i}")
        r(f"ds_write_b128 v{A_SC}, {vr(ST,4)} offset:{L_SS-L_SC}")
        r(f"v_and_b32 v{TT}, 127, v{TID}")
        r(f"v_lshlrev_b32 v{TT}, 3, v{TT}")
        r(f"v_add_u32 v{TB}, {L_SS}, v{TT}")
        r(f"v_add_u32 v{TT}, {L_ROW}, v{TT}")
        r("s_waitcnt lgkmcnt(0)")
        return 0

    def f_st2(r):
        r(f"ds_read2st64_b64 {vr(ST,4)}, v{TB} offset0:0 offset1:2")
        r(f"ds_read2st64_b64 {vr(ST+4,4)}, v{TB} offset0:4 offset1:6")
        r("s_waitcnt lgkmcnt(0)")
        for i in range(4):
            r(f"v_add_f32 v{ST+i}, v{ST+i}, v{ST+4+i}")
        r(f"v_add_f32 v{ST}, v{ST}, v{ST+2}")
        r(f"v_add_f32 v{ST+1}, v{ST+1}, v{ST+3}")
        r(f"v_mul_f32 v{ST}, {hexf(1/1024)}, v{ST}")
        r(f"v_mul_f32 v{ST+1}, {hexf(1/1024)}, v{ST+1}")
        r(f"v_fma_f32 v{ST+1}, -v{ST}, v{ST}, v{ST+1}")
        r(f"v_max_f32 v{ST+1}, 0, v{ST+1}")
        ln_finish(r, ST, ST + 1, ST + 2)
        r(f"ds_write_b64 v{TT}, {vr(ST+2,2)}")
        return 0

    def mk_prew(k):
        def f(r):
            for gi in (2 * k, 2 * k + 1):
                r(f"global_store_dwordx4 v{A_XB+(gi>>2)}, {vr(ZERO,4)}, s[{PWS}:{PWS+1}] offset:{(gi&3)*1024} sc1")
            return 2
        return f

    addrs = [PA] + ([PA + 1, PA + 2] if p1 else [])

    def f_poll(r):
        poll_loads(r, addrs, PA + 4)
        return len(addrs)

    def post_check():
        poll_check(a, P + "cs", addrs, PA + 4)

    def tail0():
        a("s_mov_b32 s3, s82")
        for i in range(npw):
            a(f"buffer_load_dwordx4 {vr(ACC+4*i,4)}, v{A_GA}, s[24:27], s3 offen sc1")
            if i < npw - 1:
                a(f"s_add_u32 s3, s3, {ncol*4}")
        if p1:
            a(f"buffer_load_dwordx2 {vr(ST,2)}, v{A_GB}, s[28:31], 0 offen sc1")
        else:
            a(f"buffer_load_ushort v{WF}, v{A_GB}, s[76:79], 0 offen")
            pre_allready()
            r = Rec()
            f_stload(r)
            for grp in r.g:
                for t in grp:
                    a(t)
        a(f"v_lshlrev_b32 v{AD}, 2, v{TID}")
        a(f"v_add_u32 v{TB}, {L_SC}, v{AD}")
        a(f"v_add_u32 v{AD}, {L_RS}, v{AD}")
        if p1:
            a(f"v_lshlrev_b32 v{TT}, 3, v{TID}")
        else:
            a(f"v_and_b32 v{TT}, 127, v{TID}")
            a(f"v_lshlrev_b32 v{TT}, 3, v{TT}")
            a(f"v_add_u32 v{AD2}, {L_SS}, v{TT}")
        a(f"v_add_u32 v{TT}, {L_ROW}, v{TT}")
        a(f"v_mov_b32 v{VT}, {L_LCNT}")
        a(f"v_mov_b32 v{VT+1}, 1")
        return npw + 1 + (0 if p1 else 4)

    def tail1():
        a("s_setprio 3")
        k = npw
        while k > 1:
            k //= 2
            for i in range(4 * k):
                a(f"v_add_f32 v{ACC+i}, v{ACC+i}, v{ACC+i+4*k}")
        a(f"ds_write_b128 v{A_SC}, {vr(ACC,4)}")
        if not p1:
            for i in range(8):
                a(f"v_add_f32 v{ST+i}, v{ST+i}, v{ST+8+i}")
            for i in range(4):
                a(f"v_add_f32 v{ST+i}, v{ST+i}, v{ST+4+i}")
            a(f"ds_write_b128 v{A_SC}, {vr(ST,4)} offset:{L_SS-L_SC}")
        a("s_mov_b64 exec, 1")
        a("s_waitcnt lgkmcnt(0)")
        a(f"ds_add_u32 v{VT}, v{VT+1}")
        a(f"{P}_ls:")
        a(f"ds_read_b32 v{VT+2}, v{VT}")
        a("s_waitcnt lgkmcnt(0)")
        a(f"v_readfirstlane_b32 s3, v{VT+2}")
        a(f"s_cmp_lt_u32 s3, {4 if p1 else 8}")
        a(f"s_cbranch_scc1 {P}_ls")
        a("s_mov_b64 exec, -1")

    def tail2():
        if not p1:
            a(f"ds_read2st64_b64 {vr(ST,4)}, v{AD2} offset0:0 offset1:2")
            a(f"ds_read2st64_b64 {vr(ST+4,4)}, v{AD2} offset0:4 offset1:6")
        a(f"ds_read2st64_b32 {vr(ACC,2)}, v{TB} offset0:0 offset1:4")
        a(f"ds_read2st64_b32 {vr(ACC+2,2)}, v{TB} offset0:8 offset1:12")
        if p1:
            a(f"ds_write_b32 v{AD}, v{ST}")
            a(f"ds_write_b32 v{AD}, v{ST+1} offset:{L_NM-L_RS}")
            a(f"ds_write_b64 v{TT}, {vr(ST,2)}")
        else:
            a(f"v_lshlrev_b32 v{WF}, 16, v{WF}")
            a(f"ds_write_b32 v{AD}, v{WF} offset:{L_B1-L_RS}")
        a("s_waitcnt lgkmcnt(0)")
        a(f"v_add_f32 v{ACC}, v{ACC}, v{ACC+1}")
        a(f"v_add_f32 v{ACC+2}, v{ACC+2}, v{ACC+3}")
        a(f"v_add_f32 v{ACC}, v{ACC}, v{ACC+2}")
        a(f"ds_write_b32 v{AD}, v{ACC} offset:{L_CS-L_RS}")
        if not p1:
            for i in range(4):
                a(f"v_add_f32 v{ST+i}, v{ST+i}, v{ST+4+i}")
            a(f"v_add_f32 v{ST}, v{ST}, v{ST+2}")
            a(f"v_add_f32 v{ST+1}, v{ST+1}, v{ST+3}")
            a(f"v_mul_f32 v{ST}, {hexf(1/1024)}, v{ST}")
            a(f"v_mul_f32 v{ST+1}, {hexf(1/1024)}, v{ST+1}")
            a(f"v_fma_f32 v{ST+1}, -v{ST}, v{ST}, v{ST+1}")
            a(f"v_max_f32 v{ST+1}, 0, v{ST+1}")
            ln_finish(a, ST, ST + 1, ST + 2)
            a(f"ds_write_b64 v{TT}, {vr(ST+2,2)}")
        a("s_waitcnt lgkmcnt(0)")
        a(f"s_setprio {OPT['prio']}")

    fill = {1: f1, 3: f3, 5: f5, 11: f_poll}
    post = {13: post_check}
    pre = {}
    nowarm = {0, 1}
    if nstg == 2:
        fill[2] = f2
    if p1 and OPT["hrot"]:
        def cond(r, reg, val, body):
            LAB[0] += 1
            r(f"s_cmp_lg_u32 s{reg}, {val}")
            r(f"s_cbranch_scc1 CD{LAB[0]}")
            lab = LAB[0]
            body(r)
            r(f"CD{lab}:")

        def flat(f):
            def body(r):
                q = Rec()
                f(q)
                for grp in q.g:
                    for t in grp:
                        r(t)
            return body

        a(f"{P}_hl:")
        r = Rec()
        r.begin()
        cond(r, 78, 0, lambda q: cs_reads(q, AD))
        r.end()
        issue(a, both, fill=r.g)
        a("s_bitcmp1_b32 s79, s77")
        a(f"s_cbranch_scc0 {P}_hs")
        cond(a, 77, 0, lambda q: q(f"ds_read_b128 {vr(ST,4)}, v{TB}"))
        a("s_waitcnt lgkmcnt(0)")

        def mf(q):
            q("s_setprio 3")
            cs_mfma(q)
            q(f"s_setprio {OPT['prio']}")
        cond(a, 78, 0, mf)
        cond(a, 78, -1, flat(f3))

        def sig(k):
            def body(q):
                q("s_mov_b64 exec, 1")
                q(f"buffer_store_dwordx2 {vr(SG+2,2)}, v{SG+k}, s[84:87], 0 offen sc1")
                q("s_mov_b64 exec, -1")
            return body

        def p0st(q):
            q("s_mov_b64 exec, 1")
            q(f"buffer_store_dwordx4 {vr(ST,4)}, v{A_ST}, s[28:31], 0 offen sc1")
            q(f"global_load_dwordx2 v[{VT+2}:{VT+3}], v{VT}, s[{PDBG}:{PDBG+1}] sc1")
            q("s_mov_b64 exec, -1")
        cond(a, 77, 1, p0st)
        cond(a, 77, 3, lambda q: post3())
        cond(a, 78, -3, sig(0))
        cond(a, 77, 5, sig(4))
        a(f"{P}_hs:")
        a(f"s_waitcnt vmcnt({c})")
        a("s_barrier")
        a("s_sub_u32 s78, s78, 1")
        a("s_add_u32 s77, s77, 1")
        a("s_cmp_lt_u32 s77, 13")
        a(f"s_cbranch_scc1 {P}_hl")
        poll_loads(a, addrs, PA + 4)
        issue(a, both)
        a(f"s_waitcnt vmcnt({c})")
        a("s_barrier")

        def tail0h():
            post_check()
            return tail0()
        return tail0h, tail1, tail2
    fill[0] = f0
    i = 0
    if p1:
        post[3] = post3

    if not OPT["warm"]:
        nowarm = set()
    tag = 0
    special = set(fill) | set(post) | set(pre) | nowarm
    while i <= g.nst - 3:
        if i in special:
            if i in pre:
                pre[i]()
            r = Rec()
            LGK[0] = False
            x = fill[i](r) if i in fill else 0
            hot = any(t.startswith("v_") for grp in r.g for t in grp)
            if hot:
                a("s_setprio 3")
            issue(a, both, fill=r.g)
            if hot:
                a(f"s_setprio {OPT['prio']}")
            if i in post:
                post[i]()
            if i not in nowarm:
                warm(a, WARM["rate"])
            a(f"s_waitcnt vmcnt({c})" + (" lgkmcnt(0)" if LGK[0] else ""))
            a("s_barrier")
            i += 1
        else:
            k = i
            while k <= g.nst - 3 and k not in special:
                k += 1
            loop(f"t{tag}", k - i)
            tag += 1
            i = k
    return tail0, tail1, tail2


def code_touch(a, lab0, lab1, vt, vo, always=False):
    if not OPT["ctouch"]:
        return
    LAB[0] += 1
    L = f"CT{LAB[0]}"
    a("s_getpc_b64 s[34:35]")
    a(f"{L}:")
    a(f"s_add_u32 s34, s34, {lab0}-{L}")
    a(f"s_addc_u32 s35, s35, ({lab0}-{L})>>32")
    a("s_lshl_b32 s3, s6, 7")
    a(f"v_lshlrev_b32 v{vo}, 9, v1")
    a(f"v_add_u32 v{vo}, s3, v{vo}")
    a(f"v_cmp_gt_u32 vcc, {lab1}-{lab0}, v{vo}")
    a("s_mov_b64 exec, vcc")
    if not always:
        a(f"s_cbranch_execz {L}_e")
    a(f"global_load_dword v{vt}, v{vo}, s[34:35]")
    a(f"{L}_e:")
    a("s_mov_b64 exec, -1")


def gen_loader(a):
    a("LOADER:")
    a.hist = []
    a("s_sub_u32 s6, s6, 4")
    if OPT["prio"]:
        a(f"s_setprio {OPT['prio']}")
    a("v_lshrrev_b32 v2, 3, v1")
    a("v_and_b32 v3, 7, v1")
    vA, vBs = 8, [16, 24]
    srdB = [12, 16]
    regsB = [(36, 37, 38, 39, 46), (40, 41, 42, 43, 47)]
    regsA = (20, 21, 22, 23, 45, 97)
    SB = {p: (Stream4 if p == 4 else Stream)(PH[p], False, srdB[p & 1], vBs[p & 1], *regsB[p & 1]) for p in (1, 2, 3, 4)}

    def prepB(p):
        srd(a, SB[p].srd, *PH[p].B)
        ld_offsets_B(a, PH[p], SB[p].v)
        SB[p].init(a)

    ld_offsets_B(a, PH[1], SB[1].v)
    SB[1].init(a)
    SA1 = Stream(PH[1], True, 8, vA, *regsA)
    ld_offsets_A(a, PH[1], vA)
    SA1.init(a)
    a("s_waitcnt lgkmcnt(0)")
    srd(a, SB[1].srd, *PH[1].B)
    a("s_or_b32 s3, s2, s6")
    a("s_cmp_lg_u32 s3, 0")
    a("s_cbranch_scc1 LD_nopub")
    a("s_mov_b64 s[34:35], s[98:99]" if OPT["early"] else "s_memrealtime s[34:35]")
    a("v_mov_b32 v6, 0")
    a("s_waitcnt lgkmcnt(0)")
    a("s_or_b32 s34, s34, 1")
    a("v_mov_b32 v4, s34")
    a("v_mov_b32 v5, s35")
    a("s_mov_b64 exec, 1")
    a(f"global_store_dwordx2 v6, v[4:5], s[{PDBG}:{PDBG+1}] sc1")
    a("s_mov_b64 exec, -1")
    a("LD_nopub:")
    stamp(a, "l", "start")
    a("s_lshl_b32 s3, s2, 2")
    a("s_add_u32 s3, s3, s6")
    a("s_mul_i32 s3, s3, 7168")
    a(f"s_add_u32 s88, s{PW2}, s3")
    a(f"s_addc_u32 s89, s{PW2+1}, 0")
    a(f"s_add_u32 s32, s{PW1}, s3")
    a(f"s_addc_u32 s33, s{PW1+1}, 0")
    for p in (1, 2, 3, 4):
        g = PH[p]
        P = f"LD{p}"
        m, j = g.mj
        SA = (Stream4 if p == 4 else Stream)(g, True, 8, vA, *regsA)
        POLLW[0] = 32 if p == 4 else 16
        srd(a, 8, *g.A)
        if p > 1:
            ld_offsets_A(a, g, vA)
            SA.init(a)
        nBq = g.nB // 4
        nAq = (g.nA + 3) // 4
        if p > 1:
            a(f"s_lshl_b32 s3, s{m}, 11")
            a(f"s_add_u32 s3, s3, {WS_FD + (p-1)*32768}")
            a("s_mov_b32 s83, s3")
            a(f"v_mov_b32 v{PF+4}, {L_RDY + 4*(p-1)}")
            a(f"v_lshlrev_b32 v{PF}, 7, v1")
            a(f"v_add_u32 v{PF}, s3, v{PF}")
            if p == 4:
                a(f"v_add_u32 v{PF+1}, {(-3*32768 - 2048) & 0xffffffff}, v{PF}")
                a("v_cmp_gt_u32 vcc, 16, v1")
                a(f"v_cndmask_b32 v{PF}, v{PF+1}, v{PF}, vcc")
            a(f"s_mov_b64 s[{RDY}:{RDY+1}], 0")
            a(f"s_mov_b32 s{TMO}, 0x40000")
            if p == 2:
                prepB(p + 1)
            if p == 3:
                srd(a, SB[4].srd, *PH[4].B)
                ld_offsets_B(a, PH[4], SB[4].v)
                fold_setup(a, g)
            stamp(a, "l", f"p{p}_prepoll")
        variants = [(nAq, "")]
        if g.nA % 4:
            variants = [(nAq, "x"), (nAq - 1, "y")]
            a(f"s_cmp_ge_u32 s6, {g.nA % 4}")
            a(f"s_cbranch_scc1 {P}_y")
        for (na, sfx) in variants:
            if sfx == "y":
                a(f"{P}_y:")
            c = na + nBq
            WARM["phase"], WARM["rate"] = p, OPT[f"wr{p}"] if p < 4 else 0
            if sfx == "x":
                WARM["save"] = list(WARM["left"])
            if sfx == "y":
                WARM["left"] = list(WARM["save"])
            both = [(SB[p], nBq), (SA, na)]
            if p == 1:
                issue(a, both, OPT["nt1"] > 0)
                prepB(2)
                fold_setup(a, g)
                issue(a, both, mid=5)
            else:
                issue(a, [(SA, na)])
                stamp(a, "l", f"p{p}_A0")
                SA.need(a, f"{P}_x1")
                a("s_waitcnt vmcnt(0)")
                a("s_barrier")
                issue(a, [(SA, na)])
                a(f"s_branch {P}_x2")
                a(f"{P}_x1:")
                issue(a, [(SA, na)], ready=False, mid=min(na, 5))
            if p > 1:
                a(f"{P}_x2:")

            def loop(tag, cnt):
                a(f"s_mov_b32 s44, {cnt}")
                a(f"{P}_l{tag}{sfx}:")
                issue(a, both)
                warm(a, WARM["rate"], cnt)
                a(f"s_waitcnt vmcnt({c})")
                a("s_barrier")
                a("s_sub_u32 s44, s44, 1")
                a("s_cmp_lg_u32 s44, 0")
                a(f"s_cbranch_scc1 {P}_l{tag}{sfx}")

            if p in (2, 4):
                loop("a", g.nst - 2)
                tails = (lambda: None, lambda: None, lambda: None)
            else:
                tails = fold_body(a, g, both, c, loop, sfx)
            if p < 4:
                nb2 = PH[p + 1].nB // 4
                ng = tails[0]() or 0
                if p == 3:
                    SB[4].init(a)
                issue(a, [(SB[p + 1], nb2)])
                a(f"s_waitcnt vmcnt({nb2 + ng})")
                a("s_barrier")
                if ng:
                    a(f"s_waitcnt vmcnt({nb2})")
                tails[1]()
                tails[2]()
                code_touch(a, f"CT_e{p}", f"CT_e{p+1}", 48, 49)
                code_touch(a, f"LD{p}_e", f"LD{p+1}_e", 50, 49)
                a("s_barrier")
                issue(a, [(SB[p + 1], nb2)])
                if p == 1 and OPT["touch1"] and OPT["warm"] and WARM["left"][0]:
                    a(f"v_lshlrev_b32 v{TT}, 7, v1")
                    a(f"s_bfm_b64 exec, {WARM['left'][0]}, 0")
                    a(f"global_load_dword v{TB}, v{TT}, s[32:33]")
                    a("s_mov_b64 exec, -1")
                if p == 3 and OPT["prewx"]:
                    for gi in range(6):
                        a(f"global_store_dwordx4 v{A_XB+(gi>>2)}, {vr(ZERO,4)}, s[{PWS}:{PWS+1}] offset:{(gi&3)*1024} sc1")
                WARM["phase"] = 2
                warm(a, OPT["wg"])
            else:
                a("s_waitcnt vmcnt(0)")
                a("s_barrier")
                code_touch(a, "CT_e4", "KEND", 48, 49)
                a("s_barrier")
            if sfx == "x":
                a(f"s_branch {P}_e")
        a(f"{P}_e:")
    print("warm lines not covered:", WARM["left"])
    stamp(a, "l", "end")
    stamp_flush(a, 4)
    a("s_endpgm")


def gen_mainloop(a, g, P):
    a(f"s_mov_b32 s42, {g.slot0}")
    a(f"s_mov_b32 s46, {(-2*SLOT) & 0xffffffff}")
    a(f"s_mov_b32 s47, {SLOT}")
    a(f"s_mov_b32 s43, {g.nst}")
    a("s_waitcnt lgkmcnt(0)")
    a("s_barrier")
    stamp(a, "c", f"p{g.n}_B0")
    rd0 = g.reads(0, 0)
    if OPT["peel"]:
        from asmx import Ins
        fl = g.reads(1, 1) + ["s_cmp_eq_u32 s42, 2", "s_cselect_b32 s44, s46, s47"] + [f"v_add_u32 v{v}, s44, v{v}" for v in g.adv]
        mf0 = g.mfmas(0)
        wr = [Ins(x).w for x in rd0]
        head = min(len(rd0), 10)
        for x in rd0[:head]:
            a(x)
        pending = rd0[head:] + fl
        issued, have = head, -1
        per = -(-len(pending) // len(mf0))
        nrd = len(rd0) + len(g.reads(1, 1))
        for mfi in mf0:
            k = max(i for i, w in enumerate(wr) if w & Ins(mfi).ra)
            while k >= issued:
                a(pending.pop(0))
                issued += 1
            if k > have:
                a(f"s_waitcnt lgkmcnt({min(min(issued, nrd) - 1 - k, 14)})")
                have = k
            a(mfi)
            for _ in range(per):
                if pending:
                    a(pending.pop(0))
                    issued += 1
        for x in pending:
            a(x)
        if OPT["stamp"] == 2:
            a("s_memtime s[98:99]")
        a(f"s_branch {P}_h1")
    else:
        for r in rd0:
            a(r)
    a(f"{P}_loop:")
    U = 1 if OPT["stamp"] == 2 and not OPT["unr"] else max(1, OPT["unr"])
    dn = len(g.reads(0, 0)) if (OPT["rd2"] == 2 or (OPT["rd2"] and g.n in (2, 4))) else 0
    for k in range(U):
        sal = ["s_cmp_eq_u32 s42, 2", "s_cselect_b32 s44, s46, s47"]
        sal2 = ["s_add_u32 s42, s42, 1", "s_cmp_eq_u32 s42, 3", "s_cselect_b32 s42, 0, s42", "s_sub_u32 s43, s43, 1"]
        if k == U - 1:
            sal2 += ["s_cmp_lg_u32 s43, 0"]
        a("s_waitcnt lgkmcnt(0)")
        if OPT["stamp"] == 2:
            base = {1: 0, 2: 17, 3: 26, 4: 0}[g.n]
            a(f"s_add_u32 m0, s43, {base}")
            a(f"v_writelane_b32 v{253 if g.n == 4 else 252}, s98, m0")
            a("s_memtime s[98:99]")
        interleave(a, g.mfmas(0), g.reads(1, 1) + sal + [f"v_add_u32 v{v}, s44, v{v}" for v in g.adv], dense=dn)
        if k == 0:
            a(f"{P}_h1:")
        a("s_waitcnt lgkmcnt(0)")
        interleave(a, g.mfmas(1), g.reads(0, 0) + sal2, first=["s_barrier"], dense=dn)
    a(f"s_cbranch_scc1 {P}_loop")
    if P != "P1a":
        a(f"CT_e{g.n}:")
    a("s_waitcnt lgkmcnt(0)")
    if OPT["stamp"] == 2:
        a(f"v_writelane_b32 v{253 if g.n == 4 else 252}, s98, {base}")
    stamp(a, "c", f"p{g.n}_loopend")


L15, GQ = 2, 3


def b_addr128(a, V, units, sbase):
    t = V.alloc()
    f = V.alloc()
    base = V.alloc()
    a(f"v_bfe_u32 v{f}, v{L15}, 3, 1")
    a(f"v_and_b32 v{t}, 1, v{GQ}")
    a(f"v_lshl_or_b32 v{f}, v{t}, 1, v{f}")
    a(f"v_lshrrev_b32 v{t}, 2, v{L15}")
    a(f"v_lshl_add_u32 v{t}, v{GQ}, 3, v{t}")
    a(f"v_lshlrev_b32 v{base}, 7, v{t}")
    a(f"v_and_b32 v{t}, 3, v{L15}")
    a(f"v_lshl_add_u32 v{base}, v{t}, 3, v{base}")
    a(f"v_add_u32 v{base}, s{sbase}, v{base}")
    out = []
    for u in units:
        v0 = V.alloc()
        a(f"v_xor_b32 v{t}, {u}, v{f}")
        a(f"v_lshl_add_u32 v{v0}, v{t}, 5, v{base}")
        out.append(v0)
    return out


def zero_acc(a, acc, n):
    for i in range(n):
        a(f"v_mov_b32 v{acc+i}, 0")


def pair_post(a, tag, vt):
    a("s_lshl_b32 s3, s6, 2")
    a(f"s_add_u32 s3, s3, {L_PAIR}")
    a(f"v_mov_b32 v{vt}, s3")
    a(f"v_mov_b32 v{vt+1}, {tag}")
    a("s_waitcnt lgkmcnt(0)")
    a(f"ds_write_b32 v{vt}, v{vt+1}")


def pair_wait(a, lab, tag, xor, vt):
    a(f"v_xor_b32 v{vt}, {xor*4}, v{vt}")
    a(f"{lab}_ps:")
    a(f"ds_read_b32 v{vt+1}, v{vt}")
    a("s_waitcnt lgkmcnt(0)")
    a(f"v_readfirstlane_b32 s3, v{vt+1}")
    a(f"s_cmp_lg_u32 s3, {tag}")
    a(f"s_cbranch_scc1 {lab}_ps")


def finish_phase(a, p, g, vt):
    m, j = g.mj
    a(f"s_lshl_b32 s7, s{m}, 11")
    a(f"s_lshl_b32 s3, s{j}, 7")
    a("s_add_u32 s7, s7, s3")
    a(f"s_add_u32 s7, s7, {WS_FD + p*32768}")
    a(f"v_mov_b32 v{vt}, {L_CNT}")
    a(f"v_mov_b32 v{vt+1}, 1")
    a(f"v_mov_b32 v{vt+2}, s{NONCE}")
    a(f"v_mov_b32 v{vt+3}, s{NONCE+1}")
    a("s_mov_b64 exec, 1")
    a("s_waitcnt vmcnt(0)")
    a(f"ds_add_rtn_u32 v{vt+1}, v{vt}, v{vt+1}")
    a(f"v_mov_b32 v{vt}, s7")
    a("s_waitcnt lgkmcnt(0)")
    a(f"v_readfirstlane_b32 s3, v{vt+1}")
    a(f"s_cmp_lg_u32 s3, {4*p-1}")
    a(f"s_cbranch_scc1 FIN{p}")
    a(f"global_store_dwordx2 v{vt}, v[{vt+2}:{vt+3}], s[{PWS}:{PWS+1}] sc1")
    a(f"FIN{p}:")
    a("s_mov_b64 exec, -1")
    stamp(a, "c", f"p{p}_done")


def frag_lane_off(a, d, t):
    a(f"v_and_b32 v{t}, 1, v{GQ}")
    a(f"v_lshlrev_b32 v{d}, 9, v{t}")
    a(f"v_lshrrev_b32 v{t}, 1, v{GQ}")
    a(f"v_lshl_add_u32 v{d}, v{t}, 8, v{d}")
    a(f"v_lshl_add_u32 v{d}, v{L15}, 4, v{d}")


def gen_p0(a):
    g = PH[1]
    m, j = g.mj
    a(f"s_lshl_b32 s3, s{m}, 7")
    a(f"s_lshl_b32 s7, s{j}, 3")
    a("s_add_u32 s3, s3, s7")
    a("s_lshl_b32 s7, s6, 1")
    a("s_add_u32 s34, s3, s7")
    a("s_lshl_b32 s3, s34, 11")
    a("v_lshlrev_b32 v4, 4, v1")
    a("s_waitcnt lgkmcnt(0)")
    stamp(a, "c", "start")
    srd(a, 8, PX, 0, S * D * 2)
    for rr in range(2):
        for hh in range(2):
            a(f"buffer_load_dwordx4 v[{24+rr*8+hh*4}:{27+rr*8+hh*4}], v4, s[8:11], s3 offen offset:{rr*2048+hh*1024}")
    a("s_lshl_b32 s3, s6, 2")
    a(f"s_add_u32 s3, s3, {L_PAIR}")
    a("v_mov_b32 v5, s3")
    a("v_mov_b32 v6, 0")
    a("ds_write_b32 v5, v6")
    a(f"v_mov_b32 v5, {L_CNT}")
    a("ds_write_b32 v5, v6")
    a(f"ds_write_b32 v5, v6 offset:{L_LCNT-L_CNT}")
    a(f"ds_write_b32 v5, v6 offset:{L_CNT2-L_CNT}")
    for i in range(1, 4):
        a(f"ds_write_b32 v5, v6 offset:{L_RDY-L_CNT+4*i}")


def gen_p0t(a):
    if OPT["tlb"]:
        sh = OPT["tlb"]
        a("s_cmp_eq_u32 s6, 2")
        a(f"s_cselect_b64 s[12:13], s[{PW1}:{PW1+1}], s[{PWO}:{PWO+1}]")
        a(f"s_cselect_b32 s14, {D*F*2}, 0")
        a("s_cmp_eq_u32 s6, 3")
        a(f"s_cselect_b64 s[12:13], s[{PW2}:{PW2+1}], s[12:13]")
        a(f"s_cselect_b32 s14, {D*F*2}, s14")
        a("s_cmp_eq_u32 s6, 1")
        a(f"s_cselect_b32 s14, {D*D*2}, s14")
        a("s_mov_b32 s15, 0x20000")
        a("s_lshr_b32 s3, s2, 3")
        a("s_lshl_b32 s3, s3, 6")
        a("v_add_u32 v51, s3, v1")
        a(f"v_lshlrev_b32 v51, {sh}, v51")
        a("buffer_load_dword v242, v51, s[12:15], 0 offen")
    code_touch(a, "CT_s", "CT_e1", 240, 51, True)
    code_touch(a, "LOADER", "LD1_e", 241, 51, True)
    a("CT_s:")


def gen_p0b(a):
    a(f"s_waitcnt vmcnt({(2 if OPT['ctouch'] else 0) + (1 if OPT['tlb'] else 0)})")
    a("v_mov_b32 v48, 0x3f803f80")
    R = [40, 41, 42, 43]
    for i in range(8):
        for rr in range(2):
            x = 24 + rr * 8 + i
            a(f"v_dot2_f32_bf16 v{R[2*rr]}, v{x}, v48, {'0' if i == 0 else 'v%d' % R[2*rr]}")
            a(f"v_dot2_f32_bf16 v{R[2*rr+1]}, v{x}, v{x}, {'0' if i == 0 else 'v%d' % R[2*rr+1]}")
    a("s_nop 2")
    wave_sum_multi(a, R, [44, 45, 46, 47])
    for rr in range(2):
        a(f"v_mul_f32 v{R[2*rr]}, {hexf(1.0/1024)}, v{R[2*rr]}")
        a(f"v_mul_f32 v{R[2*rr+1]}, {hexf(1.0/1024)}, v{R[2*rr+1]}")
        a(f"v_fma_f32 v{R[2*rr+1]}, -v{R[2*rr]}, v{R[2*rr]}, v{R[2*rr+1]}")
        a(f"v_max_f32 v{R[2*rr+1]}, 0, v{R[2*rr+1]}")
    for rr in range(2):
        ln_finish(a, R[2 * rr], R[2 * rr + 1], 44 + 2 * rr)
    a("s_lshl_b32 s3, s6, 4")
    a(f"s_add_u32 s3, s3, {L_P0}")
    a("v_mov_b32 v48, s3")
    a("ds_write_b128 v48, v[44:47]")
    if OPT["prew"]:
        for p in (1, 2, 3):
            m, j = PH[p].mj
            a(f"s_lshl_b32 s7, s{m}, 11")
            a(f"s_lshl_b32 s3, s{j}, 7")
            a("s_add_u32 s7, s7, s3")
            a(f"s_add_u32 s{36+p}, s7, {WS_FD + p*32768}")
        a(f"s_sub_u32 s40, s39, {3*32768}")
        a("s_cmp_eq_u32 s6, 0")
        a("s_cselect_b32 s37, s40, s37")
        a("s_cmp_eq_u32 s6, 2")
        a("s_cselect_b32 s37, s38, s37")
        a("s_cmp_eq_u32 s6, 3")
        a("s_cselect_b32 s37, s39, s37")
        a("v_lshlrev_b32 v54, 4, v1")
        a("v_add_u32 v54, s37, v54")
        for i in range(4):
            a(f"v_mov_b32 v{56+i}, 0")
        a("s_mov_b64 exec, 0xff")
        a(f"global_store_dwordx4 v54, v[56:59], s[{PWS}:{PWS+1}] sc1")
        a("s_mov_b64 exec, -1")
    stamp(a, "c", "p0_done")


def gen_p1(a):
    g = PH[1]
    m, j = g.mj
    g2 = PH[2]
    V = Regs("v", 68, RES)
    srd(a, 20, PWS, WS_O, S * D * 2)
    a("s_and_b32 s34, s6, 1")
    a("s_lshr_b32 s35, s6, 1")
    a("s_lshl_b32 s36, s34, 13")
    t = 4
    vA, vAh = [5, 6], [7, 8]
    for h in range(2):
        a(f"v_lshrrev_b32 v{t}, 1, v{L15}")
        a(f"v_xor_b32 v{t}, v{t}, v{GQ}")
        if h:
            a(f"v_xor_b32 v{t}, 4, v{t}")
        a(f"v_lshlrev_b32 v{t}, 4, v{t}")
        a(f"v_lshl_add_u32 v{vAh[h]}, v{L15}, 7, v{t}")
        if g.slot0:
            a(f"v_add_u32 v{vAh[h]}, {g.slot0*SLOT}, v{vAh[h]}")
        a(f"v_add_u32 v{vA[h]}, s36, v{vAh[h]}")
        a(f"v_add_u32 v{vA[h]}, 2048, v{vA[h]}")
    a(f"s_mov_b32 s36, {g.Boff + g.slot0*SLOT}")
    a("s_lshl_b32 s37, s35, 1")
    a("s_add_u32 s38, s37, 1")
    V2 = Regs("v", 12, 24)
    vB = b_addr128(a, V2, ["s37", "s38"], 36)
    acc = V.alloc(104, 4)
    W = [V.alloc(24, 4), 0]
    X = [V.alloc(20, 4), 0]
    W[1], X[1] = 24, 48
    accr = lambda t, u: acc + (t * 4 + u) * 4
    acch = lambda c: acc + 96 + c * 4
    zero_acc(a, acc, 104)
    gen_p0b(a)

    def reads(h, b):
        r = []
        for u in range(4):
            r.append(f"ds_read_b128 {vr(X[b]+4*u,4)}, v{vA[h]} offset:{u*2048}")
        for t in range(6):
            for jj in range(2):
                r.append(f"ds_read_b64_tr_b16 {vr(W[b]+4*t+2*jj,2)}, v{vB[t&1]} offset:{(t>>1)*8192+jj*512+h*4096}")
            if t == 1:
                r.append(f"ds_read_b128 {vr(X[b]+16,4)}, v{vAh[h]}")
        return r

    def mk_mfmas(rsel):
        def mfmas(b):
            ml = []
            for t in range(6):
                for u in (range(4) if t % 2 == 0 else (3, 2, 1, 0)):
                    w, x, d = vr(W[b] + 4 * t, 4), vr(X[b] + 4 * u, 4), vr(accr(t, u), 4)
                    ml.append(f"v_mfma_f32_16x16x32_bf16 {d}, {w}, {x}, {d}" if t < 4 else
                              f"v_mfma_f32_16x16x32_bf16 {d}, {x}, {w}, {d}")
                if (t >> 1) == 1 + rsel:
                    w, x, d = vr(W[b] + 4 * t, 4), vr(X[b] + 16, 4), vr(acch(t & 1), 4)
                    ml.append(f"v_mfma_f32_16x16x32_bf16 {d}, {w}, {x}, {d}" if t < 4 else
                              f"v_mfma_f32_16x16x32_bf16 {d}, {x}, {w}, {d}")
            return ml
        return mfmas

    g.reads = reads
    g.adv = vA + vAh + vB
    a("s_cmp_eq_u32 s34, 1")
    a("s_cbranch_scc1 P1_r1")
    g.mfmas = mk_mfmas(0)
    gen_mainloop(a, g, "P1a")
    a("s_branch P1_epi")
    a("P1_r1:")
    g.mfmas = mk_mfmas(1)
    gen_mainloop(a, g, "P1b")
    a("P1_epi:")
    RP = 24
    CSq = 36
    CSv = 34
    R4 = W[0]
    N4 = W[0] + 20
    assert X[0] == W[0] + 24
    T = 52
    a("s_lshl_b32 s36, s34, 9")
    a(f"s_add_u32 s36, s36, {L_ROW + 128}")
    a(f"v_lshlrev_b32 v4, 3, v{L15}")
    a(f"v_add_u32 v5, {L_ROW}, v4")
    a(f"v_add_u32 v4, s36, v4")
    a(f"ds_read_b64 {vr(RP+8,2)}, v5")
    a(f"v_mov_b32 v16, {L_NONCE}")
    a("ds_read_b64 v[16:17], v16")
    a(f"v_lshlrev_b32 v6, 4, v{GQ}")
    a("s_lshl_b32 s36, s35, 7")
    a(f"s_add_u32 s36, s36, {L_CS}")
    a(f"v_add_u32 v7, s36, v6")
    for c in range(2):
        a(f"ds_read_b128 {vr(CSq+8+4*c,4)}, v7 offset:{256+64*c}")
    a(f"v_lshlrev_b32 v8, 2, v{L15}")
    a(f"v_add_u32 v8, s36, v8")
    a(f"ds_read2_b32 {vr(CSv,2)}, v8 offset0:128 offset1:144")
    a(f"v_add_u32 v9, {L_RS}, v6")
    a(f"ds_read_b128 {vr(R4+16,4)}, v9")
    a(f"ds_read_b128 {vr(N4+16,4)}, v9 offset:{L_NM-L_RS}")
    for u in (3, 2, 1, 0):
        a(f"ds_read_b64 {vr(RP+2*u,2)}, v4 offset:{u*128}")
    a("s_lshl_b32 s36, s34, 8")
    a(f"v_add_u32 v9, s36, v9")
    for u in (3, 2, 1, 0):
        a(f"ds_read_b128 {vr(R4+4*u,4)}, v9 offset:{64+64*u}")
        a(f"ds_read_b128 {vr(N4+4*u,4)}, v9 offset:{64+64*u+L_NM-L_RS}")
    for c in range(2):
        a(f"ds_read_b128 {vr(CSq+4*c,4)}, v7 offset:{64*c}")
    m2, j2 = g2.mj
    a(f"s_lshl_b32 s36, s{m2}, 7")
    a("s_lshl_b32 s37, s34, 6")
    a("s_add_u32 s36, s36, s37")
    a("s_lshl_b32 s37, s35, 5")
    a("s_add_u32 s36, s36, s37")
    a(f"v_add_u32 v10, s36, v{L15}")
    a("v_lshlrev_b32 v10, 11, v10")
    a(f"v_lshl_add_u32 v10, v{GQ}, 3, v10")
    a(f"s_lshl_b32 s36, s{j2}, 7")
    a("s_add_u32 s37, s36, 32768")
    for uu in range(2):
        for t_ in range(4):
            a(f"buffer_load_dwordx2 {vr(RES+8*uu+2*t_,2)}, v10, s[8:11], s{36+uu} offen offset:{32*t_}")

    def fold_qk(d, cs, rp):
        for i in (0, 2):
            a(f"v_pk_mul_f32 {vr(T+i,2)}, {vr(cs+i,2)}, {vr(rp,2)} op_sel:[0,1] op_sel_hi:[1,1]")
        for i in (0, 2):
            a(f"v_pk_fma_f32 {vr(d+i,2)}, {vr(d+i,2)}, {vr(rp,2)}, {vr(T+i,2)} op_sel:[0,0,0] op_sel_hi:[1,0,1]")

    def fold_v(d, c, ui):
        for i in (0, 2):
            a(f"v_pk_mul_f32 {vr(T+i,2)}, {vr(N4+4*ui+i,2)}, {vr(CSv,2)} op_sel:[0,{c}] op_sel_hi:[1,{c}]")
        for i in (0, 2):
            a(f"v_pk_fma_f32 {vr(d+i,2)}, {vr(d+i,2)}, {vr(R4+4*ui+i,2)}, {vr(T+i,2)}")

    def pack(dst, d):
        a(f"v_cvt_pk_bf16_f32 v{dst}, v{d}, v{d+1}")
        a(f"v_cvt_pk_bf16_f32 v{dst+1}, v{d+2}, v{d+3}")

    ex, PV = 12, 14
    a(f"v_lshlrev_b32 v{ex}, 4, v1")
    a("s_mul_i32 s36, s35, 3072")
    a(f"s_add_u32 s36, s36, {g.exch}")
    a(f"v_add_u32 v{ex}, s36, v{ex}")
    Hp = 60
    a("s_waitcnt lgkmcnt(0)")
    a(f"v_readfirstlane_b32 s{NONCE}, v16")
    a(f"v_readfirstlane_b32 s{NONCE+1}, v17")
    a("s_cmp_eq_u32 s34, 1")
    a("s_cbranch_scc1 P1_ex1")
    for c in range(2):
        fold_qk(accr(2 + c, 3), CSq + 8 + 4 * c, RP + 6)
        fold_v(accr(4 + c, 3), c, 3)
    for c in range(2):
        pack(Hp + 2 * c, accr(2 + c, 3))
        pack(Hp + 4 + 2 * c, accr(4 + c, 3))
    a(f"ds_write_b128 v{ex}, {vr(Hp,4)}")
    a(f"ds_write_b128 v{ex}, {vr(Hp+4,4)} offset:1024")
    pair_post(a, 1, PV)
    for c in range(2):
        fold_qk(acch(c), CSq + 8 + 4 * c, RP + 8)
    a("s_branch P1_ex2")
    a("P1_ex1:")
    for c in range(2):
        fold_v(acch(c), c, 4)
    for c in range(2):
        pack(Hp + 2 * c, acch(c))
    a(f"ds_write_b128 v{ex}, {vr(Hp,4)} offset:2048")
    pair_post(a, 1, PV)
    for c in range(2):
        fold_qk(accr(2 + c, 3), CSq + 8 + 4 * c, RP + 6)
        fold_v(accr(4 + c, 3), c, 3)
    a("P1_ex2:")
    for u in range(3):
        for c in range(2):
            fold_qk(accr(2 + c, u), CSq + 8 + 4 * c, RP + 2 * u)
            fold_v(accr(4 + c, u), c, u)
    a(f"s_mov_b32 s36, {hexf(32 ** -0.5 * math.log2(math.e))}")
    a("s_mov_b32 s37, s36")
    for u in range(4):
        a(f"v_pk_mul_f32 {vr(RP+2*u,2)}, {vr(RP+2*u,2)}, s[36:37]")
    for u in range(4):
        for c in range(2):
            fold_qk(accr(c, u), CSq + 4 * c, RP + 2 * u)
    Kf, Vp, Qf = W[0], [W[0] + 20, W[0] + 30], 24
    for u in range(4):
        for c in range(2):
            pack(Kf + 4 * (u + 1) + 2 * c, accr(2 + c, u))
            pack(Vp[c] + 2 * (u + 1), accr(4 + c, u))
            pack(Qf + 4 * u + 2 * c, accr(c, u))
    a("s_cmp_eq_u32 s34, 1")
    a("s_cbranch_scc1 P1_ex3")
    for c in range(2):
        pack(Kf + 2 * c, acch(c))
    pair_wait(a, "P1a", 1, 1, PV)
    for c in range(2):
        a(f"ds_read_b64 {vr(Vp[c],2)}, v{ex} offset:{2048+8*c}")
    a("s_branch P1_ex4")
    a("P1_ex3:")
    pair_wait(a, "P1b", 1, 1, PV)
    a(f"ds_read_b128 {vr(Kf,4)}, v{ex}")
    for c in range(2):
        a(f"ds_read_b64 {vr(Vp[c],2)}, v{ex} offset:{1024+8*c}")
    a("P1_ex4:")
    t0, t1 = acc, acc + 1
    MA, MB = acc + 2, acc + 4
    a(f"v_and_b32 v{t0}, 1, v{L15}")
    a(f"v_cmp_eq_u32 s[76:77], 1, v{t0}")
    a(f"v_lshl_add_u32 v{t0}, v{GQ}, 2, v{t0}")
    a(f"v_cmp_le_u32 s[78:79], v{t0}, v{L15}")
    a(f"v_add_u32 v{t0}, 2, v{t0}")
    a(f"v_cmp_le_u32 s[80:81], v{t0}, v{L15}")
    a(f"v_mov_b32 v{t0}, 0xffff")
    a(f"v_mov_b32 v{t1}, 0xffff0000")
    a(f"v_cndmask_b32 v{t0}, v{t0}, v{t1}, s[76:77]")
    a(f"v_cndmask_b32 v{MA}, v{t0}, 0, s[78:79]")
    a(f"v_cndmask_b32 v{MA+1}, 0, v{t0}, s[78:79]")
    a(f"v_cndmask_b32 v{MB}, v{t0}, 0, s[80:81]")
    a(f"v_cndmask_b32 v{MB+1}, 0, v{t0}, s[80:81]")
    a(f"s_or_b32 s36, s{m}, s34")
    a("s_cmp_eq_u32 s36, 0")
    a("s_cselect_b64 s[82:83], s[78:79], -1")
    a("s_cselect_b64 s[84:85], s[80:81], -1")
    vo = acc + 6
    frag_lane_off(a, vo, t0)
    a(f"s_lshl_b32 s36, s{m}, 3")
    a("s_lshl_b32 s37, s34, 2")
    a("s_add_u32 s36, s36, s37")
    a("s_lshl_b32 s36, s36, 5")
    a(f"s_lshl_b32 s37, s{j}, 1")
    a("s_add_u32 s36, s36, s37")
    a("s_add_u32 s36, s36, s35")
    a("s_lshl_b32 s36, s36, 10")
    a(f"v_add_u32 v{vo}, s36, v{vo}")
    NEG = acc + 7
    a(f"v_mov_b32 v{NEG}, 0xff800000")
    Sc = acc + 8
    for u in (1, 2, 3):
        for blk in range(2):
            a(f"v_mfma_f32_16x16x32_bf16 {vr(Sc+8*u+4*blk,4)}, {vr(Kf+4*(u+blk),4)}, {vr(Qf+4*u,4)}, 0")
    a("s_waitcnt lgkmcnt(0)")
    for blk in (1, 0):
        a(f"v_mfma_f32_16x16x32_bf16 {vr(Sc+4*blk,4)}, {vr(Kf+4*blk,4)}, {vr(Qf,4)}, 0")
    VA, VB_, MX, TM = acc + 40, acc + 44, acc + 48, acc + 52
    order = (1, 2, 3, 0)
    for u in order:
        s = Sc + 8 * u
        a(f"v_cndmask_b32 v{s}, v{s}, v{s+1}, s[76:77]")
        a(f"v_cndmask_b32 v{s+4}, v{s+4}, v{s+5}, s[76:77]")
        a(f"v_cndmask_b32 v{s+2}, v{s+2}, v{s+3}, s[76:77]")
        a(f"v_cndmask_b32 v{s+6}, v{s+6}, v{s+7}, s[76:77]")
        a(f"v_cndmask_b32 v{VA+u}, v{s}, v{s+4}, s[78:79]")
        a(f"v_cndmask_b32 v{VB_+u}, v{s+2}, v{s+6}, s[80:81]")
    a(f"v_cndmask_b32 v{VA}, v{NEG}, v{VA}, s[82:83]")
    a(f"v_cndmask_b32 v{VB_}, v{NEG}, v{VB_}, s[84:85]")
    for u in order:
        a(f"v_max_f32 v{MX+u}, v{VA+u}, v{VB_+u}")
    xrow_reduce_multi(a, "v_max_f32", [MX + u for u in order], [TM + u for u in order])
    for u in order:
        a(f"v_sub_f32 v{VA+u}, v{VA+u}, v{MX+u}")
        a(f"v_sub_f32 v{VB_+u}, v{VB_+u}, v{MX+u}")
    for u in order:
        a(f"v_exp_f32 v{VA+u}, v{VA+u}")
        a(f"v_exp_f32 v{VB_+u}, v{VB_+u}")
    for u in order:
        a(f"v_add_f32 v{MX+u}, v{VA+u}, v{VB_+u}")
    xrow_reduce_multi(a, "v_add_f32", [MX + u for u in order], [TM + u for u in order])
    for u in order:
        a(f"v_rcp_f32 v{MX+u}, v{MX+u}")
    for u in order:
        a(f"v_mul_f32 v{VA+u}, v{VA+u}, v{MX+u}")
        a(f"v_mul_f32 v{VB_+u}, v{VB_+u}, v{MX+u}")
    for u in order:
        a(f"v_cvt_pk_bf16_f32 v{VA+u}, v{VA+u}, v{VA+u}")
        a(f"v_cvt_pk_bf16_f32 v{VB_+u}, v{VB_+u}, v{VB_+u}")
    Pp, Om = acc + 56, acc + 72
    for u in order:
        a(f"v_and_b32 v{Pp+4*u}, v{VA+u}, v{MA}")
        a(f"v_and_b32 v{Pp+4*u+1}, v{VB_+u}, v{MB}")
        a(f"v_and_b32 v{Pp+4*u+2}, v{VA+u}, v{MA+1}")
        a(f"v_and_b32 v{Pp+4*u+3}, v{VB_+u}, v{MB+1}")
    for u in order:
        for c in range(2):
            a(f"v_mfma_f32_16x16x32_bf16 {vr(Om+8*u+4*c,4)}, {vr(Vp[c]+2*u,4)}, {vr(Pp+4*u,4)}, 0")
    for u in range(4):
        a(f"s_mov_b32 s{76+u}, {u*32768}")
    for u in order:
        o = Om + 8 * u
        p = Sc + 4 * u
        for i in range(4):
            a(f"v_cvt_pk_bf16_f32 v{p+i}, v{o+2*i}, v{o+2*i+1}")
    for u in order:
        p = Sc + 4 * u
        a(f"v_permlane16_swap_b32 v{p}, v{p+2}")
        a(f"v_permlane16_swap_b32 v{p+1}, v{p+3}")
        a(f"buffer_store_dwordx4 {vr(p,4)}, v{vo}, s[20:23], s{76+u} offen sc1")
    stamp(a, "c", "p1_stored")
    finish_phase(a, 1, g, acc + 40)


def gen_p24(a, which):
    g = PH[which]
    m, j = g.mj
    k2 = which == 2
    P = f"P{which}"
    V = Regs("v", 4, RES)
    if k2:
        srd(a, 16, PWS, WS_H, S * D * 2)
        srd(a, 24, PWS, WS_ST, 16 * S * 8)
    else:
        srd(a, 16, POUT, 0, S * D * 2)
    a("s_and_b32 s34, s6, 1")
    a("s_lshr_b32 s35, s6, 1")
    vA = [V.alloc(), V.alloc()]
    a("s_lshl_b32 s36, s34, 14")
    a("s_lshl_b32 s37, s35, 11")
    a("s_add_u32 s36, s36, s37")
    a(f"s_add_u32 s36, s36, {g.slot0*SLOT}")
    a(f"v_lshlrev_b32 v{vA[0]}, 4, v1")
    a(f"v_add_u32 v{vA[0]}, s36, v{vA[0]}")
    a("s_lshl_b32 s37, s35, 13")
    a(f"s_sub_u32 s38, 8192, s37")
    a(f"v_add_u32 v{vA[1]}, s38, v{vA[0]}")
    a(f"v_add_u32 v{vA[0]}, s37, v{vA[0]}")
    a("s_lshl_b32 s36, s35, 13")
    a(f"s_add_u32 s36, s36, {g.Boff + g.slot0*SLOT}")
    vB = b_addr128(a, V, [0, 1, 2, 3], 36)
    acc = V.alloc(64, 4)
    X = [V.alloc(16, 4) for _ in range(2)]
    W = [V.alloc(16, 4) for _ in range(2)]
    accr = lambda t, u: acc + (t * 4 + u) * 4
    vo, t0, vrow, ex, exr, PV = V.alloc(), V.alloc(), V.alloc(), V.alloc(), V.alloc(), V.alloc(2)
    a(f"s_lshl_b32 s36, s{m}, 7")
    a("s_lshl_b32 s37, s34, 6")
    a("s_add_u32 s36, s36, s37")
    a("s_lshl_b32 s37, s35, 5")
    a("s_add_u32 s36, s36, s37")
    if k2:
        a(f"v_add_u32 v{vrow}, s36, v{L15}")
        a(f"v_lshlrev_b32 v{vrow}, 3, v{vrow}")
        a(f"v_cmp_eq_u32 vcc, 0, v{GQ}")
        a(f"v_mov_b32 v{t0}, {BIG}")
        a(f"v_cndmask_b32 v{vrow}, v{t0}, v{vrow}, vcc")
        frag_lane_off(a, vo, t0)
        a("s_lshl_b32 s36, s36, 11")
        a(f"s_lshl_b32 s37, s{j}, 11")
        a("s_add_u32 s36, s36, s37")
        a(f"v_add_u32 v{vo}, s36, v{vo}")
    else:
        a(f"v_add_u32 v{vo}, s36, v{L15}")
        a(f"v_lshlrev_b32 v{vo}, 11, v{vo}")
        a(f"v_and_b32 v{t0}, 1, v{GQ}")
        a(f"v_lshl_add_u32 v{vo}, v{t0}, 5, v{vo}")
        a(f"v_lshrrev_b32 v{t0}, 1, v{GQ}")
        a(f"v_lshl_add_u32 v{vo}, v{t0}, 4, v{vo}")
        a(f"s_lshl_b32 s36, s{j}, 7")
        a(f"v_add_u32 v{vo}, s36, v{vo}")
    a("s_mov_b32 s45, 32768")
    a(f"v_lshlrev_b32 v{ex}, 4, v1")
    a("s_lshl_b32 s36, s6, 13")
    a(f"v_add_u32 v{ex}, s36, v{ex}")
    a(f"v_xor_b32 v{exr}, 16384, v{ex}")
    a(f"v_add_u32 v{ex}, {g.exch}, v{ex}")
    a(f"v_add_u32 v{exr}, {g.exch}, v{exr}")
    for t in range(4):
        for uu in range(2):
            d = accr(t, uu)
            for i in range(2):
                a(f"v_lshlrev_b32 v{d+2*i}, 16, v{RES+8*uu+2*t+i}")
                a(f"v_and_b32 v{d+2*i+1}, 0xffff0000, v{RES+8*uu+2*t+i}")
        if not k2:
            z = accr(t, 2)
            for i in range(2):
                a(f"v_lshlrev_b32 v{z+2*i}, 16, v{BIA+2*t+i}")
                a(f"v_and_b32 v{z+2*i+1}, 0xffff0000, v{BIA+2*t+i}")
            for uu in range(2):
                for i in (0, 2):
                    a(f"v_pk_add_f32 {vr(accr(t,uu)+i,2)}, {vr(accr(t,uu)+i,2)}, {vr(z+i,2)}")
        zero_acc(a, accr(t, 2), 8)

    def reads(h, b):
        r = []
        for u in range(4):
            r.append(f"ds_read_b128 {vr(X[b]+4*u,4)}, v{vA[u>>1]} offset:{(u&1)*4096+h*1024}")
        for t in range(4):
            for jj in range(2):
                r.append(f"ds_read_b64_tr_b16 {vr(W[b]+4*t+2*jj,2)}, v{vB[t]} offset:{jj*512+h*4096}")
        return r

    def mfmas(b):
        ml = []
        for t in range(4):
            for u in ((2, 3, 0, 1) if t % 2 == 0 else (1, 0, 3, 2)):
                w, x, d = vr(W[b] + 4 * t, 4), vr(X[b] + 4 * u, 4), vr(accr(t, u), 4)
                ml.append(f"v_mfma_f32_16x16x32_bf16 {d}, {w}, {x}, {d}")
        return ml

    g.reads, g.mfmas = reads, mfmas
    g.adv = vA + vB
    gen_mainloop(a, g, P)
    for t in range(4):
        for uu in range(2):
            a(f"ds_write_b128 v{ex}, {vr(accr(t, 2+uu),4)} offset:{(t*2+uu)*1024}")
    pair_post(a, which, PV)
    pair_wait(a, P, which, 2, PV)
    Rv = X[0]
    assert X[1] == X[0] + 16
    lst = [(t, uu) for uu in range(2) for t in range(4)]
    for (t, uu) in lst:
        a(f"ds_read_b128 {vr(Rv+(t*2+uu)*4,4)}, v{exr} offset:{(t*2+uu)*1024}")
    ob = W[0]
    for n_, (t, uu) in enumerate(lst):
        a(f"s_waitcnt lgkmcnt({7-n_})")
        d = accr(t, uu)
        for i in (0, 2):
            a(f"v_pk_add_f32 {vr(d+i,2)}, {vr(d+i,2)}, {vr(Rv+(t*2+uu)*4+i,2)}")
        o = ob + 8 * uu + 2 * t
        a(f"v_cvt_pk_bf16_f32 v{o}, v{d}, v{d+1}")
        a(f"v_cvt_pk_bf16_f32 v{o+1}, v{d+2}, v{d+3}")
        if t & 1:
            o -= 2
            a(f"v_permlane16_swap_b32 v{o}, v{o+2}")
            a(f"v_permlane16_swap_b32 v{o+1}, v{o+3}")
            so = "s45" if uu else "0"
            if k2:
                a(f"buffer_store_dwordx4 {vr(o,4)}, v{vo}, s[16:19], {so} offen offset:{1024*(t>>1)} sc1")
            else:
                a(f"buffer_store_dwordx4 {vr(o,4)}, v{vo}, s[16:19], {so} offen offset:{64*(t>>1)} {['', 'sc1', 'nt', 'sc0 sc1', 'sc1 nt'][OPT['ost']]}")
    if k2:
        SM = [Rv, Rv + 2]
        PK = [Rv + 8, Rv + 10]
        PQ = [Rv + 12, Rv + 14]
        for uu in range(2):
            a(f"v_pk_add_f32 {vr(PK[uu],2)}, {vr(accr(0,uu),2)}, {vr(accr(0,uu)+2,2)}")
            a(f"v_pk_mul_f32 {vr(PQ[uu],2)}, {vr(accr(0,uu),2)}, {vr(accr(0,uu),2)}")
        for t in range(4):
            for i in (0, 2):
                for uu in range(2):
                    d = vr(accr(t, uu) + i, 2)
                    if t:
                        a(f"v_pk_add_f32 {vr(PK[uu],2)}, {vr(PK[uu],2)}, {d}")
                    if t or i:
                        a(f"v_pk_fma_f32 {vr(PQ[uu],2)}, {d}, {d}, {vr(PQ[uu],2)}")
        for uu in range(2):
            a(f"v_add_f32 v{SM[uu]}, v{PK[uu]}, v{PK[uu]+1}")
            a(f"v_add_f32 v{SM[uu]+1}, v{PQ[uu]}, v{PQ[uu]+1}")
        xrow_reduce_multi(a, "v_add_f32", [Rv, Rv + 1, Rv + 2, Rv + 3], [Rv + 4, Rv + 5, Rv + 6, Rv + 7])
        a(f"s_lshl_b32 s36, s{j}, 14")
        for uu in range(2):
            a(f"buffer_store_dwordx2 {vr(SM[uu],2)}, v{vrow}, s[24:27], s36 offen offset:{uu*128} sc1")
    stamp(a, "c", f"p{which}_stored")
    if k2:
        finish_phase(a, 2, g, X[1])


def gen_p4(a):
    g = PH[4]
    m, J = g.mj
    V = Regs("v", 4, RES)
    srd(a, 16, POUT, 0, S * D * 2)
    srd(a, 20, PWS, WS_XB, 256 * 4 * 8192)
    a("s_and_b32 s34, s6, 1")
    a("s_lshr_b32 s35, s6, 1")
    vA = [V.alloc(), V.alloc()]
    a("s_lshl_b32 s36, s34, 13")
    a(f"s_add_u32 s36, s36, {g.slot0*SLOT}")
    a(f"v_lshlrev_b32 v{vA[0]}, 4, v1")
    a(f"v_add_u32 v{vA[0]}, s36, v{vA[0]}")
    a("s_lshl_b32 s37, s5, 12")
    a("s_sub_u32 s38, 4096, s37")
    a(f"v_add_u32 v{vA[1]}, s38, v{vA[0]}")
    a(f"v_add_u32 v{vA[0]}, s37, v{vA[0]}")
    a("s_lshl_b32 s36, s35, 13")
    a(f"s_add_u32 s36, s36, {g.Boff + g.slot0*SLOT}")
    vB = b_addr128(a, V, [0, 1, 2, 3], 36)
    acc = V.alloc(64, 4)
    X = [V.alloc(16, 4) for _ in range(2)]
    W = [V.alloc(16, 4) for _ in range(2)]
    accr = lambda t, u: acc + (t * 4 + u) * 4
    vo, t0, xl = V.alloc(), V.alloc(), V.alloc()
    FA = V.alloc(6, 2)
    a(f"s_lshl_b32 s36, s{m}, 7")
    a("s_lshl_b32 s37, s34, 6")
    a("s_add_u32 s36, s36, s37")
    a("s_lshl_b32 s37, s5, 5")
    a("s_add_u32 s36, s36, s37")
    a(f"v_add_u32 v{vo}, s36, v{L15}")
    a(f"v_lshlrev_b32 v{vo}, 11, v{vo}")
    a(f"v_and_b32 v{t0}, 1, v{GQ}")
    a(f"v_lshl_add_u32 v{vo}, v{t0}, 5, v{vo}")
    a(f"v_lshrrev_b32 v{t0}, 1, v{GQ}")
    a(f"v_lshl_add_u32 v{vo}, v{t0}, 4, v{vo}")
    a(f"s_lshl_b32 s36, s{J}, 8")
    a("s_lshl_b32 s37, s35, 7")
    a("s_add_u32 s36, s36, s37")
    a(f"v_add_u32 v{vo}, s36, v{vo}")
    a("s_mov_b32 s45, 32768")
    a(f"v_lshlrev_b32 v{xl}, 4, v1")
    a("s_lshl_b32 s36, s2, 2")
    a("s_add_u32 s36, s36, s6")
    a("s_xor_b32 s37, s36, 8")
    a("s_lshl_b32 s76, s36, 13")
    a("s_add_u32 s77, s76, 4096")
    a("s_lshl_b32 s78, s37, 13")
    a("s_add_u32 s79, s78, 4096")
    a("s_lshl_b32 s36, s36, 7")
    a("s_lshl_b32 s37, s37, 7")
    a(f"s_add_u32 s36, s36, {WS_XF}")
    a(f"s_add_u32 s37, s37, {WS_XF}")
    a(f"v_mov_b32 v{FA}, s36")
    a(f"v_mov_b32 v{FA+1}, s37")
    a(f"v_mov_b32 v{FA+2}, s{NONCE}")
    a(f"v_mov_b32 v{FA+3}, s{NONCE+1}")
    for t in range(4):
        z = accr(t, 2)
        for i in range(2):
            a(f"v_lshlrev_b32 v{z+2*i}, 16, v{BIA+2*t+i}")
            a(f"v_and_b32 v{z+2*i+1}, 0xffff0000, v{BIA+2*t+i}")
        for uu in range(2):
            d = accr(t, uu)
            for i in range(2):
                a(f"v_lshlrev_b32 v{d+2*i}, 16, v{RES+8*uu+2*t+i}")
                a(f"v_and_b32 v{d+2*i+1}, 0xffff0000, v{RES+8*uu+2*t+i}")
        for uu in range(2):
            for i in (0, 2):
                a(f"v_pk_add_f32 {vr(accr(t,uu)+i,2)}, {vr(accr(t,uu)+i,2)}, {vr(z+i,2)}")
        zero_acc(a, accr(t, 2), 8)
    finish_phase(a, 3, PH[3], 244)

    def reads(h, b):
        r = []
        for u in range(4):
            r.append(f"ds_read_b128 {vr(X[b]+4*u,4)}, v{vA[u>>1]} offset:{(u&1)*2048+h*1024}")
        for t in range(4):
            for jj in range(2):
                r.append(f"ds_read_b64_tr_b16 {vr(W[b]+4*t+2*jj,2)}, v{vB[t]} offset:{jj*512+h*4096}")
        return r

    def mfmas(b):
        if b == 0:
            order = [(t, u) for t in range(4) for u in ((2, 3, 0, 1) if t % 2 == 0 else (1, 0, 3, 2))]
        else:
            order = [(t, u) for t in range(4) for u in ((2, 3) if t % 2 == 0 else (3, 2))]
            order += [(t, u) for t in (3, 2, 1, 0) for u in ((0, 1) if t % 2 else (1, 0))]
        return [f"v_mfma_f32_16x16x32_bf16 {vr(accr(t,u),4)}, {vr(W[b]+4*t,4)}, {vr(X[b]+4*u,4)}, {vr(accr(t,u),4)}" for (t, u) in order]

    g.reads, g.mfmas = reads, mfmas
    g.adv = vA + vB
    gen_mainloop(a, g, "P4")
    if OPT["tagx"]:
        lst = [(t, uu) for uu in range(2) for t in range(4)]
        SB_, RB = X[0], W[0]
        slot = lambda k: 4 * (k // 3) + k % 3
        for gi in range(6):
            a(f"v_mov_b32 v{SB_+4*gi+3}, s{NONCE}")
        done = 0
        for n_, (t, uu) in enumerate(lst):
            d = accr(t, 2 + uu)
            for i in range(2):
                a(f"v_cvt_pk_bf16_f32 v{SB_+slot(2*n_+i)}, v{d+2*i}, v{d+2*i+1}")
            while done < 6 and (3 * done + 2 <= 2 * n_ + 1 or n_ == 7):
                a(f"buffer_store_dwordx4 {vr(SB_+4*done,4)}, v{xl}, s[20:23], s{76+(done>>2)} offen offset:{(done&3)*1024} sc1")
                done += 1
        stamp(a, "c", "p4_sent")
        a("s_mov_b32 s3, 0x40000")
        if OPT["tagx"] == 2:
            a("s_mov_b32 exec_lo, 0")
            a("s_mov_b32 exec_hi, 0x80000000")
            a("P4_hl:")
            a(f"buffer_load_dword v{RB}, v{xl}, s[20:23], s79 offen offset:{1024+12} sc1")
            a("s_sub_u32 s3, s3, 1")
            a("s_waitcnt vmcnt(0)")
            a(f"v_cmp_eq_u32 vcc, s{NONCE}, v{RB}")
            a("s_cmp_eq_u32 s3, 0")
            a("s_cselect_b32 s3, 1, s3")
            a("s_cbranch_scc1 P4_hd")
            a("s_cmp_eq_u32 vcc_hi, 0")
            a("s_cbranch_scc1 P4_hl")
            a("P4_hd:")
            stamp(a, "c", "p4_hint")
            a("s_mov_b64 exec, -1")
        a("P4_pl:")
        for gi in range(6):
            a(f"buffer_load_dwordx4 {vr(RB+4*gi,4)}, v{xl}, s[20:23], s{78+(gi>>2)} offen offset:{(gi&3)*1024} sc1")
        a("s_sub_u32 s3, s3, 1")
        a("s_mov_b64 s[36:37], -1")
        for gi in range(6):
            a(f"s_waitcnt vmcnt({5-gi})")
            a(f"v_cmp_eq_u32 vcc, s{NONCE}, v{RB+4*gi+3}")
            a("s_and_b64 s[36:37], s[36:37], vcc")
        a("s_cmp_eq_u32 s3, 0")
        a("s_cbranch_scc1 P4_pd")
        a("s_cmp_eq_u64 s[36:37], -1")
        a("s_cbranch_scc0 P4_pl")
        a("P4_pd:")
        stamp(a, "c", "p4_got")
        if OPT["stamp"]:
            a("v_writelane_b32 v254, s3, 40")
        ob, Z = X[0], X[1] + 8
        for n_, (t, uu) in enumerate(lst):
            d = accr(t, uu)
            z = Z + 4 * (n_ & 1)
            for i in range(2):
                a(f"v_lshlrev_b32 v{z+2*i}, 16, v{RB+slot(2*n_+i)}")
                a(f"v_and_b32 v{z+2*i+1}, 0xffff0000, v{RB+slot(2*n_+i)}")
            for i in (0, 2):
                a(f"v_pk_add_f32 {vr(d+i,2)}, {vr(d+i,2)}, {vr(z+i,2)}")
            o = ob + 8 * uu + 2 * t
            a(f"v_cvt_pk_bf16_f32 v{o}, v{d}, v{d+1}")
            a(f"v_cvt_pk_bf16_f32 v{o+1}, v{d+2}, v{d+3}")
            if t & 1:
                o -= 2
                a(f"v_permlane16_swap_b32 v{o}, v{o+2}")
                a(f"v_permlane16_swap_b32 v{o+1}, v{o+3}")
                so = "s45" if uu else "0"
                a(f"buffer_store_dwordx4 {vr(o,4)}, v{vo}, s[16:19], {so} offen offset:{64*(t>>1)} {['', 'sc1', 'nt', 'sc0 sc1', 'sc1 nt'][OPT['ost']]}")
        stamp(a, "c", "p4_stored")
        return
    lst = [(t, uu) for uu in range(2) for t in range(4)]
    for n_, (t, uu) in enumerate(lst):
        a(f"buffer_store_dwordx4 {vr(accr(t,2+uu),4)}, v{xl}, s[20:23], s{76+uu} offen offset:{t*1024} sc1")
    a("s_mov_b32 s3, 0x40000")
    a("s_mov_b64 exec, 1")
    a("s_waitcnt vmcnt(0)")
    a(f"global_store_dwordx2 v{FA}, {vr(FA+2,2)}, s[{PWS}:{PWS+1}] sc1")
    stamp(a, "c", "p4_sent")
    a("P4_pl:")
    a(f"global_load_dwordx2 {vr(FA+4,2)}, v{FA+1}, s[{PWS}:{PWS+1}] sc1")
    a("s_sub_u32 s3, s3, 1")
    a("s_waitcnt vmcnt(0)")
    a(f"v_cmp_eq_u64 vcc, {vr(FA+2,2)}, {vr(FA+4,2)}")
    a("s_cmp_eq_u32 s3, 0")
    a("s_cbranch_scc1 P4_pd")
    a("s_cmp_eq_u32 vcc_lo, 0")
    a("s_cbranch_scc1 P4_pl")
    a("P4_pd:")
    a("s_mov_b64 exec, -1")
    Rv = X[0]
    assert X[1] == X[0] + 16
    for n_, (t, uu) in enumerate(lst):
        a(f"buffer_load_dwordx4 {vr(Rv+4*n_,4)}, v{xl}, s[20:23], s{78+uu} offen offset:{t*1024} sc1")
    ob = W[0]
    for n_, (t, uu) in enumerate(lst):
        a(f"s_waitcnt vmcnt({7 - n_ + (n_ >> 1)})")
        d = accr(t, uu)
        for i in (0, 2):
            a(f"v_pk_add_f32 {vr(d+i,2)}, {vr(d+i,2)}, {vr(Rv+4*n_+i,2)}")
        o = ob + 8 * uu + 2 * t
        a(f"v_cvt_pk_bf16_f32 v{o}, v{d}, v{d+1}")
        a(f"v_cvt_pk_bf16_f32 v{o+1}, v{d+2}, v{d+3}")
        if t & 1:
            o -= 2
            a(f"v_permlane16_swap_b32 v{o}, v{o+2}")
            a(f"v_permlane16_swap_b32 v{o+1}, v{o+3}")
            so = "s45" if uu else "0"
            a(f"buffer_store_dwordx4 {vr(o,4)}, v{vo}, s[16:19], {so} offen offset:{64*(t>>1)} {['', 'sc1', 'nt', 'sc0 sc1', 'sc1 nt'][OPT['ost']]}")
    stamp(a, "c", "p4_stored")


def gen_p3(a):
    g = PH[3]
    m, j = g.mj
    g4 = PH[4]
    V = Regs("v", 4, RES)
    srd(a, 16, PWS, WS_H1, S * F * 2)
    srd(a, 20, PB2, 0, D * 2)
    acc = V.alloc(112, 4)
    X = [V.alloc(16, 4) for _ in range(2)]
    W = [V.alloc(28, 4) for _ in range(2)]
    accr = lambda t, u: acc + (t * 4 + u) * 4
    a("s_and_b32 s34, s6, 1")
    a("s_lshr_b32 s35, s6, 1")
    vA = V.alloc()
    a("s_lshl_b32 s36, s34, 13")
    a(f"s_add_u32 s36, s36, {g.slot0*SLOT}")
    a(f"v_lshlrev_b32 v{vA}, 4, v1")
    a(f"v_add_u32 v{vA}, s36, v{vA}")
    t = X[0]
    base, f = X[0] + 1, X[0] + 2
    vB = [V.alloc() for _ in range(7)]
    a(f"v_lshrrev_b32 v{t}, 2, v{L15}")
    a(f"v_and_b32 v{f}, 1, v{GQ}")
    a(f"v_lshl_or_b32 v{f}, v{f}, 2, v{t}")
    a(f"v_lshl_add_u32 v{t}, v{GQ}, 3, v{t}")
    a(f"v_lshlrev_b32 v{base}, 9, v{t}")
    a(f"v_and_b32 v{t}, 3, v{L15}")
    a(f"v_lshl_add_u32 v{base}, v{t}, 3, v{base}")
    a(f"v_add_u32 v{base}, {g.Boff + g.slot0*SLOT}, v{base}")
    a(f"s_and_b32 s36, s{j}, 1")
    a("s_lshl_b32 s36, s36, 1")
    a("s_add_u32 s37, s36, s35")
    a("s_add_u32 s37, s37, 12")
    a("s_mul_i32 s38, s35, 6")
    a("s_add_u32 s36, s36, s38")
    for t_ in range(7):
        a(f"v_xor_b32 v{t}, s{36 if t_ < 6 else 37}, v{f}")
        a(f"v_lshl_add_u32 v{vB[t_]}, v{t}, 5, v{base}")
        if t_ < 5:
            a("s_add_u32 s36, s36, 1")
    RP, CSr, B1r = X[0], W[0], W[1]
    e0, vo, ex, KK, tq = 240, 244, 246, 248, X[0] + 3
    a("s_lshl_b32 s36, s34, 9")
    a(f"s_add_u32 s36, s36, {L_ROW}")
    a(f"v_lshlrev_b32 v{e0}, 3, v{L15}")
    a(f"v_add_u32 v{e0}, s36, v{e0}")
    a(f"v_lshlrev_b32 v{e0+1}, 4, v{GQ}")
    a("s_lshl_b32 s36, s35, 6")
    a(f"s_add_u32 s36, s36, {L_CS + 768}")
    a(f"v_add_u32 v{e0+2}, s36, v{e0+1}")
    a("s_mul_i32 s36, s35, 384")
    a(f"s_add_u32 s36, s36, {L_CS}")
    a(f"v_add_u32 v{e0+1}, s36, v{e0+1}")
    a(f"v_lshlrev_b32 v{e0+3}, 3, v{GQ}")
    a(f"s_lshl_b32 s82, s{g4.mj[1]}, 8")
    a("s_lshl_b32 s36, s35, 7")
    a("s_add_u32 s82, s82, s36")
    srd(a, 24, PWS, WS_H, S * D * 2)
    hv = 250
    a(f"v_lshrrev_b32 v{hv}, 1, v{GQ}")
    a(f"v_lshlrev_b32 v{hv}, 8, v{hv}")
    a(f"v_lshl_add_u32 v{hv}, v{L15}, 4, v{hv}")
    a(f"v_and_b32 v{tq}, 1, v{GQ}")
    a(f"v_lshl_add_u32 v{hv}, v{tq}, 3, v{hv}")
    a(f"s_lshl_b32 s36, s{g4.mj[0]}, 3")
    a("s_lshl_b32 s37, s34, 2")
    a("s_add_u32 s36, s36, s37")
    a("s_lshl_b32 s37, s5, 1")
    a("s_add_u32 s36, s36, s37")
    a("s_lshl_b32 s36, s36, 5")
    a(f"s_lshl_b32 s37, s{g4.mj[1]}, 2")
    a("s_add_u32 s36, s36, s37")
    a("s_lshl_b32 s37, s35, 1")
    a("s_add_u32 s36, s36, s37")
    a("s_lshl_b32 s83, s36, 10")
    a("s_add_u32 s84, s83, 32768")
    a(f"s_lshl_b32 s85, s{m}, 11")
    a(f"s_lshl_b32 s36, s{j}, 7")
    a("s_add_u32 s85, s85, s36")
    a(f"s_add_u32 s85, s85, {WS_FD}")
    assert g.mj[0] == g4.mj[0]
    frag_lane_off(a, vo, tq)
    a(f"s_lshl_b32 s36, s{m}, 3")
    a("s_lshl_b32 s37, s34, 2")
    a("s_add_u32 s36, s36, s37")
    a("s_mul_i32 s36, s36, 112")
    a(f"s_mul_i32 s37, s{j}, 7")
    a("s_add_u32 s36, s36, s37")
    a("s_lshl_b32 s36, s36, 10")
    a(f"v_add_u32 v{vo}, s36, v{vo}")
    a("s_mul_i32 s36, s35, 3072")
    for u in range(4):
        a(f"s_add_u32 s{76+u}, s36, {u*112*1024}")
    a(f"s_mul_i32 s36, s35, {2*112*1024}")
    a("s_add_u32 s80, s36, 6144")
    a(f"s_add_u32 s81, s80, {112*1024}")
    a(f"v_lshlrev_b32 v{ex}, 4, v1")
    a("s_lshl_b32 s36, s34, 12")
    a(f"s_add_u32 s36, s36, {g.exch}")
    a(f"v_add_u32 v{ex}, s36, v{ex}")
    a("s_lshl_b32 s36, s35, 3")
    a(f"v_add_u32 v{ex+1}, s36, v{ex}")
    a("s_lshl_b32 s36, s35, 11")
    a(f"v_add_u32 v{ex}, s36, v{ex}")
    k1 = -2.0 * math.sqrt(2.0 / math.pi) * math.log2(math.e)
    a(f"v_mov_b32 v{KK}, {hexf(k1*0.044715)}")
    a(f"v_mov_b32 v{KK+1}, {hexf(k1)}")
    zero_acc(a, acc, 112)

    def reads(h, b):
        r = []
        for u in range(4):
            r.append(f"ds_read_b128 {vr(X[b]+4*u,4)}, v{vA} offset:{u*2048+h*1024}")
        for t_ in range(7):
            for jj in range(2):
                r.append(f"ds_read_b64_tr_b16 {vr(W[b]+4*t_+2*jj,2)}, v{vB[t_]} offset:{jj*2048+h*16384}")
        return r

    def mfmas(b):
        ml = []
        for t_ in range(7):
            for u in (range(4) if t_ % 2 == 0 else (3, 2, 1, 0)):
                w, x, d = vr(W[b] + 4 * t_, 4), vr(X[b] + 4 * u, 4), vr(accr(t_, u), 4)
                ml.append(f"v_mfma_f32_16x16x32_bf16 {d}, {w}, {x}, {d}")
        return ml

    g.reads, g.mfmas = reads, mfmas
    g.adv = [vA] + vB
    gen_mainloop(a, g, "P3")
    for u in range(4):
        a(f"ds_read_b64 {vr(RP+2*u,2)}, v{e0} offset:{u*128}")
    for t_ in range(6):
        a(f"ds_read_b128 {vr(CSr+4*t_,4)}, v{e0+1} offset:{t_*64}")
        a(f"ds_read_b128 {vr(B1r+4*t_,4)}, v{e0+1} offset:{1024+t_*64}")
        if t_ == 1:
            a(f"ds_read_b128 {vr(CSr+24,4)}, v{e0+2}")
            a(f"ds_read_b128 {vr(B1r+24,4)}, v{e0+2} offset:1024")
    for t_ in range(4):
        a(f"buffer_load_dwordx2 {vr(BIA+2*t_,2)}, v{e0+3}, s[20:23], s82 offen offset:{32*t_}")
    for uu in range(2):
        for t_ in range(4):
            a(f"buffer_load_dwordx2 {vr(RES+8*uu+2*t_,2)}, v{hv}, s[24:27], s{83+uu} offen offset:{(t_>>1)*1024+(t_&1)*512} sc1")
    T, PV = X[1], X[0] + 8
    a("s_waitcnt lgkmcnt(8)")

    def gelu2(tiles, o):
        ch = [(accr(t_, u) + i, T + 4 * k + i, t_, u, i) for k, (t_, u) in enumerate(tiles) for i in (0, 2)]
        for (d, tt, t_, u, i) in ch:
            a(f"v_pk_fma_f32 {vr(tt,2)}, {vr(CSr+4*t_+i,2)}, {vr(RP+2*u,2)}, {vr(B1r+4*t_+i,2)} op_sel:[0,1,0] op_sel_hi:[1,1,1]")
        for (d, tt, t_, u, i) in ch:
            a(f"v_pk_fma_f32 {vr(d,2)}, {vr(d,2)}, {vr(RP+2*u,2)}, {vr(tt,2)} op_sel:[0,0,0] op_sel_hi:[1,0,1]")
        for (d, tt, t_, u, i) in ch:
            a(f"v_pk_mul_f32 {vr(tt,2)}, {vr(d,2)}, {vr(d,2)}")
        for (d, tt, t_, u, i) in ch:
            a(f"v_pk_fma_f32 {vr(tt,2)}, {vr(tt,2)}, {vr(KK,2)}, {vr(KK,2)} op_sel:[0,0,1] op_sel_hi:[1,0,1]")
        for (d, tt, t_, u, i) in ch:
            a(f"v_pk_mul_f32 {vr(tt,2)}, {vr(tt,2)}, {vr(d,2)}")
        for i in range(8):
            a(f"v_exp_f32 v{T+i}, v{T+i}")
        for (d, tt, t_, u, i) in ch:
            a(f"v_pk_add_f32 {vr(tt,2)}, {vr(tt,2)}, 1.0 op_sel_hi:[1,0]")
        for i in range(8):
            a(f"v_rcp_f32 v{T+i}, v{T+i}")
        for (d, tt, t_, u, i) in ch:
            a(f"v_pk_mul_f32 {vr(d,2)}, {vr(d,2)}, {vr(tt,2)}")
        for k, (d, tt, t_, u, i) in enumerate(ch):
            a(f"v_cvt_pk_bf16_f32 v{o+k}, v{d}, v{d+1}")

    obs = [X[0] + 12, X[1] + 12]
    pend = [None]

    def flush():
        if pend[0] is None:
            return
        o, so, off = pend[0]
        pend[0] = None
        a(f"v_permlane16_swap_b32 v{o}, v{o+2}")
        a(f"v_permlane16_swap_b32 v{o+1}, v{o+3}")
        a(f"buffer_store_dwordx4 {vr(o,4)}, v{vo}, s[16:19], s{so} offen offset:{off} sc1")

    EC = X[0] + 10
    n_ = 0
    for p in range(3):
        for u in range(4):
            o = obs[n_ & 1]
            n_ += 1
            gelu2([(2 * p, u), (2 * p + 1, u)], o)
            pend[0] = (o, 76 + u, 1024 * p)
            flush()
            k_ = 4 * p + u - 4
            if k_ == OPT["ew"]:
                a(f"v_mov_b32 v{EC}, {L_CNT2}")
                a(f"v_mov_b32 v{EC+1}, 1")
                a("s_mov_b64 exec, 1")
                a(f"s_waitcnt vmcnt({k_+1})")
                a(f"ds_add_rtn_u32 v{EC+1}, v{EC}, v{EC+1}")
                a("s_mov_b64 exec, -1")
            if p == 1 and u == 1:
                pair_wait(a, "P3", 3, 2, PV)
                for uu in range(2):
                    a(f"ds_read_b128 {vr(accr(6,uu),4)}, v{ex} offset:{uu*1024}")
            if k_ == OPT["ew"] + 1:
                a("s_waitcnt lgkmcnt(0)")
                a(f"v_readfirstlane_b32 s3, v{EC+1}")
                a("s_cmp_lg_u32 s3, 3")
                a("s_cbranch_scc1 P3_ne")
                a(f"v_mov_b32 v{EC}, s85")
                a(f"v_mov_b32 v{T}, s{NONCE}")
                a(f"v_mov_b32 v{T+1}, s{NONCE+1}")
                a("s_mov_b64 exec, 1")
                a(f"global_store_dwordx2 v{EC}, {vr(T,2)}, s[{PWS}:{PWS+1}] sc1")
                a("s_mov_b64 exec, -1")
                a("P3_ne:")
                stamp(a, "c", "p3_early")
            if p == 2 and u == 1:
                a("s_waitcnt lgkmcnt(0)")
                for uu in range(2):
                    pend[0] = (accr(6, uu), 80 + uu, 0)
                    flush()
        if p == 0:
            for up in range(2):
                gelu2([(6, 2 * up), (6, 2 * up + 1)], obs[up])
                for k in range(2):
                    a(f"ds_write_b64 v{ex+1}, {vr(obs[up]+2*k,2)} offset:{(2*up+k)*1024}")
            pair_post(a, 3, PV)
    stamp(a, "c", "p3_stored")


def main():
    out = sys.argv[1]
    a = Asm()
    name = NAME + "_kernel"
    a.raw(f".globl {name}\n.p2align 8\n.type {name},@function\n{name}:")
    if OPT["early"]:
        a("s_memrealtime s[98:99]")
    a("s_cmp_ge_u32 s2, 256\ns_cbranch_scc1 KEND")
    a("s_load_dwordx16 s[48:63], s[0:1], 0")
    a("s_load_dwordx4 s[64:67], s[0:1], 64")
    a("s_load_dwordx2 s[68:69], s[0:1], 80")
    a("v_lshrrev_b32 v1, 6, v0")
    a("s_and_b32 s3, s2, 7")
    a("s_lshr_b32 s7, s2, 3")
    a("v_readfirstlane_b32 s6, v1")
    a("s_and_b32 s70, s3, 1")
    a("s_lshl_b32 s70, s70, 3")
    a("s_and_b32 s4, s7, 7")
    a("s_add_u32 s70, s70, s4")
    a("s_lshr_b32 s71, s3, 1")
    a("s_lshr_b32 s4, s7, 3")
    a("s_lshl_b32 s71, s71, 2")
    a("s_add_u32 s71, s71, s4")
    a("s_and_b32 s72, s7, 15")
    a("s_lshl_b32 s73, s3, 1")
    a("s_lshr_b32 s4, s7, 4")
    a("s_add_u32 s73, s73, s4")
    a("s_lshr_b32 s4, s3, 2")
    a("s_lshl_b32 s4, s4, 2")
    a("s_lshr_b32 s5, s7, 3")
    a("s_add_u32 s4, s4, s5")
    a("s_bfe_u32 s5, s3, 0x10001")
    a("v_and_b32 v1, 63, v0")
    a(f"v_and_b32 v{L15}, 15, v0")
    a(f"v_lshrrev_b32 v{GQ}, 4, v1")
    a("s_cmp_ge_u32 s6, 4")
    a("s_cbranch_scc1 LOADER")
    gen_p0(a)
    gen_p0t(a)
    gen_p1(a)
    gen_p24(a, 2)
    gen_p3(a)
    gen_p4(a)
    stamp_flush(a, 0)
    if OPT["spin"]:
        a("SPIN:")
        a("s_memrealtime s[100:101]")
        a("s_waitcnt lgkmcnt(0)")
        a(f"s_sub_u32 s100, s100, s{NONCE}")
        a(f"s_cmp_lt_u32 s100, {OPT['spin']*100}")
        a("s_cbranch_scc1 SPIN")
    a("KEND:")
    a("s_endpgm")
    gen_loader(a)
    vg = 256
    print(DBG)
    a.raw(f'.section .rodata,"a"\n.p2align 6\n.amdhsa_kernel {name}\n'
          f"  .amdhsa_next_free_vgpr {vg}\n  .amdhsa_next_free_sgpr 102\n  .amdhsa_accum_offset {(vg+3)//4*4}\n"
          "  .amdhsa_group_segment_fixed_size 0\n  .amdhsa_kernarg_size 88\n  .amdhsa_user_sgpr_count 2\n"
          "  .amdhsa_user_sgpr_kernarg_segment_ptr 1\n  .amdhsa_system_sgpr_workgroup_id_x 1\n"
          "  .amdhsa_float_denorm_mode_32 3\n"
          ".end_amdhsa_kernel\n")
    head = open("header.txt").read()
    head += f"; @launch grid=(256,1,1) block=(512,1,1) lds={LDS_TOTAL}\n"
    head += '.amdgcn_target "amdgcn-amd-amdhsa--gfx950"\n.text\n'
    open(out, "w").write(head + a.text())
    if OPT["stamp"]:
        import json
        json.dump(STAMPS, open(out + ".stamps.json", "w"))
    print("generated", out, "nops:", a.nops, "lds", LDS_TOTAL)


main()
```
